```python
import torch

def _softmax(x, axis=-1):
    return torch.softmax(x, dim=axis)
def _gelu(x):
    return torch.nn.functional.gelu(x, approximate="tanh")
def _silu(x):
    return torch.nn.functional.silu(x)
def _sigmoid(x):
    return torch.sigmoid(x)
def _layernorm(x, axis=-1, eps=1e-5):
    m = x.mean(dim=axis, keepdim=True)
    v = x.var(dim=axis, keepdim=True, unbiased=False)
    return (x - m) / torch.sqrt(v + eps)
def _scatter_add(tgt, idx, src, axis=0):
    return tgt.clone().index_add_(axis, idx, src)
def _segment_sum(src, seg, n):
    out = torch.zeros((n,) + src.shape[1:], dtype=src.dtype)
    return out.index_add_(0, seg, src)
def _pad(x, pw):
    flat = tuple(v for pair in reversed(pw) for v in pair)
    return torch.nn.functional.pad(x, flat)

kernel_name = 'parallel_sum__ssm_conv_s5__glu_gated_geglu__prompt'

def setup_inputs():

    _w = (lambda a: (lambda t: t.to(torch.bfloat16) if t.is_floating_point() else t)(torch.as_tensor(a)))
    def _A_setup():
        B, S, D = 1, 2048, 512
        P = D
        Lambda_re = -0.5 * (lambda _x: torch.exp(torch.as_tensor(_x)))((lambda *s: torch.randn(*s, dtype=torch.bfloat16) * 0.2)(P))
        Lambda_im = (lambda *s: torch.randn(*s, dtype=torch.bfloat16) * 0.4)(P) * 1.0
        B_re = (lambda *s: torch.randn(*s, dtype=torch.bfloat16) * 0.2)(P, D) * (D ** -0.5)
        B_im = (lambda *s: torch.randn(*s, dtype=torch.bfloat16) * 0.2)(P, D) * (D ** -0.5)
        C_re = (lambda *s: torch.randn(*s, dtype=torch.bfloat16) * 0.2)(D, P) * (P ** -0.5)
        C_im = (lambda *s: torch.randn(*s, dtype=torch.bfloat16) * 0.2)(D, P) * (P ** -0.5)
        log_dt = (lambda *s: torch.randn(*s, dtype=torch.bfloat16) * 0.2)(P) * 0.3 - 2.0
        Dskip = (lambda *s: torch.randn(*s, dtype=torch.bfloat16) * 0.05)(D)
        return {
            "x": _w((lambda *s: torch.randn(*s, dtype=torch.bfloat16) * 0.05)(B, S, D)),
            "Lambda_re": _w(Lambda_re),
            "Lambda_im": _w(Lambda_im),
            "B_re": _w(B_re),
            "B_im": _w(B_im),
            "C_re": _w(C_re),
            "C_im": _w(C_im),
            "log_dt": _w(log_dt),
            "Dskip": _w(Dskip),
        }
    _A_in = _A_setup()

    def _B_setup():
        B, S, Dm, Df = 1, 2048, 512, 1376
        return {
            "x": _w((lambda *s: torch.randn(*s, dtype=torch.bfloat16) * 0.05)(B, S, Dm)),
            "w_gate": _w((lambda *s: torch.randn(*s, dtype=torch.bfloat16) * 0.4)(Dm, Df) * (Dm ** -0.5)),
            "w_up": _w((lambda *s: torch.randn(*s, dtype=torch.bfloat16) * 0.4)(Dm, Df) * (Dm ** -0.5)),
            "w_down": _w((lambda *s: torch.randn(*s, dtype=torch.bfloat16) * 0.4)(Df, Dm) * (Df ** -0.5)),
        }
    _B_in = _B_setup()

    return {
        "A_x": _A_in["x"],
        "A_Lambda_re": _A_in["Lambda_re"],
        "A_Lambda_im": _A_in["Lambda_im"],
        "A_B_re": _A_in["B_re"],
        "A_B_im": _A_in["B_im"],
        "A_C_re": _A_in["C_re"],
        "A_C_im": _A_in["C_im"],
        "A_log_dt": _A_in["log_dt"],
        "A_Dskip": _A_in["Dskip"],
        "B_x": _B_in["x"],
        "B_w_gate": _B_in["w_gate"],
        "B_w_up": _B_in["w_up"],
        "B_w_down": _B_in["w_down"],
    }

def reference(A_x, A_Lambda_re, A_Lambda_im, A_B_re, A_B_im, A_C_re, A_C_im, A_log_dt, A_Dskip, B_x, B_w_gate, B_w_up, B_w_down):
    def _A_ref(x, Lambda_re, Lambda_im, B_re, B_im, C_re, C_im, log_dt, Dskip):
        Bsz, L, H = x.shape
        Lam = Lambda_re + 1j * Lambda_im
        Bmat = B_re + 1j * B_im
        Cmat = C_re + 1j * C_im
        dt = torch.exp(log_dt)
        Lam_bar = torch.exp(dt * Lam)
        B_bar = ((Lam_bar - 1.0) / Lam)[:, None] * Bmat
        Bu = torch.einsum("bld,pd->blp", x + 0j, B_bar)
        h = torch.zeros_like(Bu[:, 0, :])
        hs = []
        for t in range(L):
            h = Lam_bar[None, :] * h + Bu[:, t, :]
            hs.append(h)
        hseq = torch.stack(hs, 1)
        y = 2.0 * torch.einsum("blp,dp->bld", hseq, Cmat).real + x * Dskip[None, None, :]
        return y

    def _B_ref(x, w_gate, w_up, w_down):
        g = torch.einsum("bsd,df->bsf", x, w_gate)
        u = torch.einsum("bsd,df->bsf", x, w_up)
        h = _gelu(g) * u
        return torch.einsum("bsf,fd->bsd", h, w_down)

    x = A_x
    xn = _layernorm(x, axis=-1)
    return x + _A_ref(xn, A_Lambda_re, A_Lambda_im, A_B_re, A_B_im, A_C_re, A_C_im, A_log_dt, A_Dskip) + _B_ref(xn, B_w_gate, B_w_up, B_w_down)
```

```python
import sys, math, struct

NAME = "parallel_sum__ssm_conv_s5__glu_gated_geglu__prompt"

KA_X, KA_LRE, KA_LIM, KA_BRE, KA_BIM, KA_CRE, KA_CIM, KA_LDT, KA_DSK, KA_BX, KA_WG, KA_WU, KA_WD, KA_OUT, KA_DBG, KA_WS = [8 * i for i in range(16)]
WS_HB = 0
NKS = 150
RT_STRIDE = NKS * 1024
WS_XN = 0xA00000
WS_AGG = 0xC00000
WS_SIZE = 0x10000000

LOG2E = 1.4426950408889634


def f2u(x):
    return struct.unpack("<I", struct.pack("<f", x))[0]


class A:
    def __init__(self):
        self.l = []
        self.nlab = 0

    def __call__(self, s):
        for line in s.strip("\n").split("\n"):
            self.l.append("  " + line.strip())

    def label(self, name):
        self.l.append(name + ":")

    def newlab(self, p="L"):
        self.nlab += 1
        return f"{p}_{self.nlab}"

    def text(self):
        return "\n".join(self.l) + "\n"


def srd(a, s, ptr_lo, nbytes):
    a(f"""s_mov_b32 s{s}, s{ptr_lo}
    s_and_b32 s{s+1}, s{ptr_lo+1}, 0xffff
    s_mov_b32 s{s+2}, {nbytes}
    s_mov_b32 s{s+3}, 0x20000""")


def kernel_head(a, name):
    a.l.append(f".globl {name}")
    a.l.append(".p2align 8")
    a.l.append(f".type {name},@function")
    a.l.append(f"{name}:")


def kdesc(name, vgpr, sgpr=96):
    acc = (vgpr + 3) // 4 * 4
    return f""".amdhsa_kernel {name}
  .amdhsa_next_free_vgpr {vgpr}
  .amdhsa_next_free_sgpr {sgpr}
  .amdhsa_accum_offset {acc}
  .amdhsa_group_segment_fixed_size 0
  .amdhsa_kernarg_size 128
  .amdhsa_user_sgpr_count 2
  .amdhsa_user_sgpr_kernarg_segment_ptr 1
  .amdhsa_system_sgpr_workgroup_id_x 1
.end_amdhsa_kernel
"""


def wave_sum(a, v, tmp_s):
    for ctrl in ("row_shr:1", "row_shr:2", "row_shr:4", "row_shr:8"):
        a(f"s_nop 1\nv_add_f32_dpp v{v}, v{v}, v{v} {ctrl} row_mask:0xf bank_mask:0xf")
    a(f"s_nop 1\nv_add_f32_dpp v{v}, v{v}, v{v} row_bcast:15 row_mask:0xa bank_mask:0xf")
    a(f"s_nop 1\nv_add_f32_dpp v{v}, v{v}, v{v} row_bcast:31 row_mask:0xc bank_mask:0xf")
    a(f"s_nop 1\nv_readlane_b32 s{tmp_s}, v{v}, 63")


def rne_bf16(a, v, tmp=None):
    a(f"v_cvt_pk_bf16_f32 v{v}, v{v}, v{v}\nv_lshlrev_b32 v{v}, 16, v{v}")


def gen_k0(a):
    name = "k0_ln_kernel"
    kernel_head(a, name)
    a(f"""s_cmp_ge_u32 s2, 256
    s_cbranch_scc1 K0_END
    s_load_dwordx2 s[4:5], s[0:1], {KA_X}
    s_load_dwordx2 s[6:7], s[0:1], {KA_WS}
    v_and_b32 v1, 63, v0
    v_lshrrev_b32 v2, 6, v0
    s_lshl_b32 s3, s2, 3
    v_add_u32 v2, s3, v2              ; row
    v_lshlrev_b32 v3, 10, v2
    v_lshl_add_u32 v3, v1, 4, v3
    s_waitcnt lgkmcnt(0)""")
    srd(a, 8, 4, 2048 * 1024)
    srd(a, 12, 6, WS_SIZE)
    a("buffer_load_dwordx4 v[4:7], v3, s[8:11], 0 offen")
    a(f"""v_mov_b32 v20, 0
    s_lshl_b32 s16, s2, 9
    s_add_u32 s16, s16, {WS_AGG}
    v_lshlrev_b32 v21, 2, v0
    v_cmp_gt_u32 vcc, 128, v0
    s_and_saveexec_b64 s[18:19], vcc
    buffer_store_dword v20, v21, s[12:15], s16 offen
    s_mov_b64 exec, s[18:19]
    s_waitcnt vmcnt(1)""")
    for i in range(4):
        a(f"v_lshlrev_b32 v{8+2*i}, 16, v{4+i}\nv_and_b32 v{9+2*i}, 0xffff0000, v{4+i}")
    a("""v_add_f32 v16, v8, v9
    v_add_f32 v17, v10, v11
    v_add_f32 v18, v12, v13
    v_add_f32 v19, v14, v15
    v_add_f32 v16, v16, v17
    v_add_f32 v18, v18, v19
    v_add_f32 v16, v16, v18""")
    wave_sum(a, 16, 20)
    a(f"""s_nop 1
    v_mov_b32 v17, s20
    v_mul_f32 v17, {f2u(1.0/512)}, v17     ; mean (f32)""")
    a("v_mov_b32 v16, 0")
    for i in range(8):
        a(f"v_sub_f32 v18, v{8+i}, v17\nv_fmac_f32 v16, v18, v18")
    wave_sum(a, 16, 21)
    a(f"""s_nop 1
    v_mov_b32 v18, s21
    v_mul_f32 v18, {f2u(1.0/512)}, v18     ; var""")
    rne_bf16(a, 17)
    rne_bf16(a, 18)
    a(f"v_add_f32 v18, {f2u(1e-5)}, v18")
    rne_bf16(a, 18)
    a("v_sqrt_f32 v18, v18\ns_nop 0")
    rne_bf16(a, 18)
    a("v_rcp_f32 v19, v18\ns_nop 0")
    for i in range(8):
        a(f"v_sub_f32 v{8+i}, v{8+i}, v17")
    for i in range(4):
        a(f"v_cvt_pk_bf16_f32 v{4+i}, v{8+2*i}, v{9+2*i}")
    for i in range(4):
        a(f"v_lshlrev_b32 v{8+2*i}, 16, v{4+i}\nv_and_b32 v{9+2*i}, 0xffff0000, v{4+i}")
    for i in range(8):
        a(f"v_mul_f32 v{8+i}, v{8+i}, v19")
    for i in range(4):
        a(f"v_cvt_pk_bf16_f32 v{4+i}, v{8+2*i}, v{9+2*i}")
    a(f"""s_mov_b32 s16, {WS_XN}
    buffer_store_dwordx4 v[4:7], v3, s[12:15], s16 offen""")
    a.label("K0_END")
    a("s_endpgm")
    return name


SLOT = 49152
X_OFF, S_OFF, M_OFF = 0, 16384, 24576
NST = 8

S_SRD_X, S_SRD_S, S_SRD_M, S_SRD_WS = 4, 8, 12, 16
sW, sRG, sU, sRB, sCG, sST, sSLOT, sKC, sT0, sT1, sMX, sMS, sMM, sU0, sDUM, sDELTA = range(20, 36)
sT2, sT3, sT4, sT5 = 36, 37, 38, 39
vLANE = 1
vXA = 4
vWA = 8
vDX0, vDX1, vDS, vDM = 12, 13, 14, 15
vFR = 64
vACC = 128


def dma_stage(a, slot_s, kc_s):
    a(f"""s_lshl_b32 s{sT0}, s{kc_s}, 7            ; kc*128
    s_add_u32 m0, s{slot_s}, s{sMX}
    s_mul_i32 s{sT1}, s{kc_s}, {64*2752}
    buffer_load_dwordx4 v{vDX0}, s[{S_SRD_X}:{S_SRD_X+3}], s{sT0} offen lds
    s_add_u32 m0, m0, 1024
    s_nop 0
    buffer_load_dwordx4 v{vDX1}, s[{S_SRD_X}:{S_SRD_X+3}], s{sT0} offen lds
    s_add_u32 m0, s{slot_s}, s{sMS}
    s_add_u32 s{sT1}, s{sT1}, s{sU0}
    buffer_load_dwordx4 v{vDS}, s[{S_SRD_S}:{S_SRD_S+3}], s{sT0} offen lds
    s_add_u32 m0, s{slot_s}, s{sMM}
    s_add_u32 s{sT2}, s{sT1}, 64
    buffer_load_dwordx4 v{vDM}, s[{S_SRD_M}:{S_SRD_M+3}], s{sT1} offen lds
    s_add_u32 m0, m0, 8192
    s_add_u32 s{sT3}, s{sT1}, s{sDUM}
    buffer_load_dwordx4 v{vDM}, s[{S_SRD_M}:{S_SRD_M+3}], s{sT2} offen lds
    s_add_u32 m0, m0, 8192
    s_nop 0
    buffer_load_dwordx4 v{vDM}, s[{S_SRD_M}:{S_SRD_M+3}], s{sT3} offen lds""")


def k1_reads(a, is_s, ks, b):
    f = vFR + 16 * b
    ttoff = 2048 if is_s else 4096
    a(f"ds_read_b128 v[{f}:{f+3}], v{vXA+ks}")
    a(f"ds_read_b128 v[{f+4}:{f+7}], v{vXA+ks} offset:{ttoff}")
    if is_s:
        a(f"ds_read_b128 v[{f+8}:{f+11}], v{vWA+ks}")
        a(f"ds_read_b128 v[{f+12}:{f+15}], v{vWA+ks} offset:4096")
        return 4
    for mat in range(2):
        o = mat * 4096 + ks * 1024
        a(f"ds_read_b64_tr_b16 v[{f+8+4*mat}:{f+9+4*mat}], v{vWA} offset:{o}")
        a(f"ds_read_b64_tr_b16 v[{f+10+4*mat}:{f+11+4*mat}], v{vWA} offset:{o+256}")
    return 6


def k1_mfma(a, is_s, b, which=range(4)):
    f = vFR + 16 * b
    for i in which:
        mat, tt = i >> 1, i & 1
        acc = vACC + 32 * mat + 16 * tt
        xf = f"v[{f+4*tt}:{f+4*tt+3}]"
        wf = f"v[{f+8+4*mat}:{f+8+4*mat+3}]"
        if is_s:
            a(f"v_mfma_f32_32x32x16_bf16 v[{acc}:{acc+15}], {xf}, {wf}, v[{acc}:{acc+15}]")
        else:
            a(f"v_mfma_f32_32x32x16_bf16 v[{acc}:{acc+15}], {wf}, {xf}, v[{acc}:{acc+15}]")


def k1_loop(a, is_s):
    p = "S" if is_s else "M"
    nrd = 4 if is_s else 6
    naddr = 8 if is_s else 5
    a.label(f"K1{p}_LOOP")
    for ks in range(3):
        k1_reads(a, is_s, ks + 1, (ks + 1) & 1)
        a(f"s_waitcnt lgkmcnt({nrd})")
        k1_mfma(a, is_s, ks & 1)
    a("s_waitcnt lgkmcnt(0)")
    a(f"""s_cmp_eq_u32 s{sST}, {NST-1}
    s_cbranch_scc1 K1{p}_LAST
    s_cmp_eq_u32 s{sST}, {NST-2}
    s_cbranch_scc1 K1{p}_W0
    s_waitcnt vmcnt(6)
    s_branch K1{p}_WD""")
    a.label(f"K1{p}_W0")
    a("s_waitcnt vmcnt(0)")
    a.label(f"K1{p}_WD")
    a("s_barrier")
    a(f"""s_mov_b32 s{sT4}, s{sSLOT}
    s_add_u32 s{sSLOT}, s{sSLOT}, {SLOT}
    s_cmp_eq_u32 s{sSLOT}, {3*SLOT}
    s_cselect_b32 s{sSLOT}, 0, s{sSLOT}
    s_sub_u32 s{sDELTA}, s{sSLOT}, s{sT4}""")
    regs = [vXA + i for i in range(4)] + ([vWA + i for i in range(4)] if is_s else [vWA])
    for r in regs:
        a(f"v_add_u32 v{r}, s{sDELTA}, v{r}")
    k1_reads(a, is_s, 0, 0)
    k1_mfma(a, is_s, 1, range(0, 2))
    a(f"""s_cmp_gt_u32 s{sST}, {NST-4}
    s_cbranch_scc1 K1{p}_NODMA
    s_add_u32 s{sKC}, s{sST}, 3""")
    dma_stage(a, sT4, sKC)
    a.label(f"K1{p}_NODMA")
    k1_mfma(a, is_s, 1, range(2, 4))
    a(f"""s_add_u32 s{sST}, s{sST}, 1
    s_branch K1{p}_LOOP""")
    a.label(f"K1{p}_LAST")
    k1_mfma(a, is_s, 1)
    a("s_nop 15\ns_nop 3")


def gen_k1(a):
    name = "k1_p1_kernel"
    kernel_head(a, name)
    a(f"""s_cmp_ge_u32 s2, 256
    s_cbranch_scc1 K1_END
    s_load_dwordx4 s[40:43], s[0:1], {KA_LRE}
    s_load_dwordx4 s[44:47], s[0:1], {KA_BRE}
    s_load_dwordx2 s[48:49], s[0:1], {KA_LDT}
    s_load_dwordx4 s[52:55], s[0:1], {KA_WG}
    s_load_dwordx2 s[56:57], s[0:1], {KA_WS}
    v_and_b32 v{vLANE}, 63, v0
    v_lshrrev_b32 v2, 6, v0
    s_nop 0
    v_readfirstlane_b32 s{sW}, v2
    s_and_b32 s{sT0}, s2, 7            ; xcd
    s_lshr_b32 s{sT1}, s2, 3           ; idx
    s_and_b32 s{sRB}, s{sT0}, 1
    s_lshl_b32 s{sRB}, s{sRB}, 3
    s_and_b32 s{sT2}, s{sT1}, 7
    s_add_u32 s{sRB}, s{sRB}, s{sT2}   ; rb
    s_lshr_b32 s{sCG}, s{sT0}, 1
    s_lshl_b32 s{sCG}, s{sCG}, 2
    s_lshr_b32 s{sT2}, s{sT1}, 3
    s_add_u32 s{sCG}, s{sCG}, s{sT2}   ; cg
    s_and_b32 s{sRG}, s{sW}, 1
    s_lshr_b32 s{sU}, s{sW}, 1
    s_mul_i32 s{sT2}, s{sCG}, 3
    s_lshl_b32 s{sT3}, s{sCG}, 1
    s_add_u32 s{sT3}, s{sT3}, 11
    s_cmp_lt_u32 s{sCG}, 11
    s_cselect_b32 s{sU0}, s{sT2}, s{sT3}       ; unit0
    s_cselect_b32 s{sDUM}, 128, 0x40000000
    s_mov_b32 s{sT5}, s{sU0}
    s_lshl_b32 s{sU0}, s{sU0}, 6
    ; M0 bases
    s_lshl_b32 s{sMX}, s{sW}, 11
    s_lshl_b32 s{sMS}, s{sW}, 10
    s_add_u32 s{sMS}, s{sMS}, {S_OFF}
    s_and_b32 s{sT2}, s{sW}, 1
    s_lshl_b32 s{sT2}, s{sT2}, 12
    s_lshr_b32 s{sT3}, s{sW}, 1
    s_lshl_b32 s{sT3}, s{sT3}, 10
    s_add_u32 s{sMM}, s{sT2}, s{sT3}
    s_add_u32 s{sMM}, s{sMM}, {M_OFF}
    s_waitcnt lgkmcnt(0)""")
    a(f"""s_add_u32 s58, s56, {WS_XN}
    s_addc_u32 s59, s57, 0""")
    srd(a, S_SRD_X, 58, 2048 * 1024)
    srd(a, S_SRD_WS, 56, WS_SIZE)
    a(f"""s_cmp_lt_u32 s{sW}, 4
    s_cselect_b32 s58, s44, s46
    s_cselect_b32 s59, s45, s47""")
    srd(a, S_SRD_S, 58, 512 * 1024)
    a(f"""s_and_b32 s{sT2}, s{sW}, 1
    s_cmp_eq_u32 s{sT2}, 0
    s_cselect_b32 s58, s52, s54
    s_cselect_b32 s59, s53, s55""")
    srd(a, S_SRD_M, 58, 512 * 2752)
    a(f"""v_lshrrev_b32 v2, 3, v{vLANE}
    s_lshl_b32 s{sT2}, s{sRB}, 7
    s_lshl_b32 s{sT3}, s{sW}, 4
    s_add_u32 s{sT2}, s{sT2}, s{sT3}
    v_add_u32 v2, s{sT2}, v2
    v_lshlrev_b32 v2, 10, v2                 ; row*1024
    v_and_b32 v3, 7, v{vLANE}
    v_lshrrev_b32 v16, 4, v{vLANE}
    v_xor_b32 v3, v3, v16
    v_lshl_add_u32 v{vDX0}, v3, 4, v2
    v_xor_b32 v{vDX1}, 64, v{vDX0}
    v_add_u32 v{vDX1}, 8192, v{vDX1}""")
    a(f"""v_lshrrev_b32 v2, 3, v{vLANE}
    s_and_b32 s{sT2}, s{sW}, 3
    s_lshl_b32 s{sT3}, s{sT2}, 3
    s_lshl_b32 s{sT4}, s{sCG}, 5
    s_add_u32 s{sT3}, s{sT3}, s{sT4}
    v_add_u32 v2, s{sT3}, v2
    v_lshlrev_b32 v2, 10, v2
    s_lshl_b32 s{sT2}, s{sT2}, 2
    v_add_u32 v16, s{sT2}, v16               ; 4(w&3) + (lane>>4)
    v_and_b32 v16, 7, v16
    v_and_b32 v3, 7, v{vLANE}
    v_xor_b32 v3, v3, v16
    v_lshl_add_u32 v{vDS}, v3, 4, v2""")
    a(f"""v_lshrrev_b32 v2, 2, v{vLANE}
    s_lshr_b32 s{sT2}, s{sW}, 1
    s_lshl_b32 s{sT2}, s{sT2}, 4
    v_add_u32 v2, s{sT2}, v2
    s_movk_i32 s{sT3}, 2752
    v_mul_lo_u32 v2, s{sT3}, v2
    v_and_b32 v3, 3, v{vLANE}
    v_lshl_add_u32 v{vDM}, v3, 4, v2""")
    a(f"""v_and_b32 v2, 31, v{vLANE}
    s_lshl_b32 s{sT2}, s{sCG}, 5
    v_add_u32 v2, s{sT2}, v2
    v_lshlrev_b32 v2, 1, v2""")
    srd(a, 60, 40, 1024)
    a("buffer_load_ushort v56, v2, s[60:63], 0 offen")
    srd(a, 64, 42, 1024)
    a("buffer_load_ushort v57, v2, s[64:67], 0 offen")
    srd(a, 68, 48, 1024)
    a("buffer_load_ushort v58, v2, s[68:71], 0 offen")
    for st in range(3):
        a(f"s_mov_b32 s{sKC}, {st}\ns_mov_b32 s{sT4}, {st*SLOT}")
        dma_stage(a, sT4, sKC)
    for i in range(64):
        a(f"v_mov_b32 v{vACC+i}, 0")
    a(f"""s_mov_b32 s{sST}, 0
    s_mov_b32 s{sSLOT}, 0
    s_cmp_eq_u32 s{sU}, 0
    s_cbranch_scc1 K1S_SETUP""")
    a(f"""v_and_b32 v2, 31, v{vLANE}
    s_lshl_b32 s{sT2}, s{sRG}, 6
    v_add_u32 v2, s{sT2}, v2
    v_lshlrev_b32 v2, 7, v2
    v_lshrrev_b32 v3, 5, v{vLANE}
    v_bfe_u32 v16, v{vLANE}, 1, 3
    v_xor_b32 v3, v3, v16
    v_lshl_add_u32 v{vXA}, v3, 4, v2
    v_xor_b32 v{vXA+1}, 32, v{vXA}
    v_xor_b32 v{vXA+2}, 64, v{vXA}
    v_xor_b32 v{vXA+3}, 96, v{vXA}
    v_lshrrev_b32 v2, 5, v{vLANE}
    v_lshlrev_b32 v2, 3, v2
    v_bfe_u32 v3, v{vLANE}, 2, 2
    v_add_u32 v2, v2, v3
    v_lshlrev_b32 v2, 6, v2
    v_bfe_u32 v3, v{vLANE}, 4, 1
    v_lshl_add_u32 v2, v3, 5, v2
    v_and_b32 v3, 3, v{vLANE}
    v_lshl_add_u32 v2, v3, 3, v2
    s_sub_u32 s{sT2}, s{sU}, 1
    s_lshl_b32 s{sT2}, s{sT2}, 13
    s_add_u32 s{sT2}, s{sT2}, {M_OFF}
    v_add_u32 v{vWA}, s{sT2}, v2
    s_waitcnt vmcnt(12)
    s_barrier""")
    k1_reads(a, False, 0, 0)
    k1_loop(a, False)
    K0 = -2.0 * math.sqrt(2.0 / math.pi) * LOG2E
    K1c = K0 * 0.044715
    a(f"""v_mov_b32 v60, {f2u(K1c)}
    s_add_u32 s{sT1}, s{sT5}, s{sU}
    s_sub_u32 s{sT1}, s{sT1}, 1
    s_cmp_eq_u32 s{sU}, 3
    s_cselect_b32 s{sT2}, 1, 0
    s_cmp_ge_u32 s{sCG}, 11
    s_cselect_b32 s{sT3}, s{sT2}, 0
    s_cmp_eq_u32 s{sT3}, 1
    s_cbranch_scc1 K1M_SKIP
    s_lshl_b32 s{sT2}, s{sRB}, 2
    s_lshl_b32 s{sT3}, s{sRG}, 1
    s_add_u32 s{sT2}, s{sT2}, s{sT3}
    s_mul_i32 s{sT2}, s{sT2}, {NKS}
    s_lshl_b32 s{sT1}, s{sT1}, 1
    s_add_u32 s{sT2}, s{sT2}, s{sT1}
    s_lshl_b32 s{sT2}, s{sT2}, 10
    v_lshlrev_b32 v2, 4, v{vLANE}""")
    for tt in range(2):
        g0 = vACC + 16 * tt
        u0 = vACC + 32 + 16 * tt
        for q in range(4):
            T = 16
            rs = [4 * q + i for i in range(4)]
            for i, r in enumerate(rs):
                a(f"v_mul_f32 v{T+i}, v{g0+r}, v{g0+r}")
            for i, r in enumerate(rs):
                a(f"v_fmaak_f32 v{T+i}, v60, v{T+i}, {f2u(K0)}")
            for i, r in enumerate(rs):
                a(f"v_mul_f32 v{T+i}, v{T+i}, v{g0+r}")
            for i, r in enumerate(rs):
                a(f"v_exp_f32 v{T+i}, v{T+i}")
            for i, r in enumerate(rs):
                a(f"v_add_f32 v{T+i}, 1.0, v{T+i}")
            for i, r in enumerate(rs):
                a(f"v_rcp_f32 v{T+i}, v{T+i}")
            for i, r in enumerate(rs):
                a(f"v_mul_f32 v{T+4+i}, v{g0+r}, v{u0+r}")
            for i, r in enumerate(rs):
                a(f"v_mul_f32 v{T+i}, v{T+i}, v{T+4+i}")
            P = 32 + 8 * tt + 2 * q
            a(f"v_cvt_pk_bf16_f32 v{P}, v{T}, v{T+1}\nv_cvt_pk_bf16_f32 v{P+1}, v{T+2}, v{T+3}")
        P = 32 + 8 * tt
        a(f"buffer_store_dwordx4 v[{P}:{P+3}], v2, s[{S_SRD_WS}:{S_SRD_WS+3}], s{sT2} offen")
        a(f"buffer_store_dwordx4 v[{P+4}:{P+7}], v2, s[{S_SRD_WS}:{S_SRD_WS+3}], s{sT2} offen offset:1024")
        if tt == 0:
            a(f"s_add_u32 s{sT2}, s{sT2}, {RT_STRIDE}")
    a.label("K1M_SKIP")
    a("s_barrier")
    a("s_endpgm")

    a.label("K1S_SETUP")
    a(f"""v_and_b32 v2, 31, v{vLANE}
    v_bfe_u32 v3, v2, 2, 1
    v_lshlrev_b32 v3, 5, v3
    v_lshrrev_b32 v16, 3, v2
    v_lshl_add_u32 v3, v16, 2, v3
    v_and_b32 v16, 3, v2
    v_add_u32 v3, v3, v16                  ; tau
    v_bfe_u32 v16, v3, 1, 3                ; (tau>>1)&7
    s_lshl_b32 s{sT2}, s{sRG}, 6
    v_add_u32 v3, s{sT2}, v3               ; row
    v_lshlrev_b32 v3, 7, v3
    v_lshrrev_b32 v17, 5, v{vLANE}         ; hf
    v_xor_b32 v16, v16, v17
    v_lshl_add_u32 v{vXA}, v16, 4, v3
    v_xor_b32 v{vXA+1}, 32, v{vXA}
    v_xor_b32 v{vXA+2}, 64, v{vXA}
    v_xor_b32 v{vXA+3}, 96, v{vXA}
    v_bfe_u32 v16, v2, 1, 3
    v_xor_b32 v16, v16, v17
    v_lshlrev_b32 v3, 7, v2
    v_lshl_add_u32 v3, v16, 4, v3
    v_add_u32 v{vWA}, {S_OFF}, v3
    v_xor_b32 v{vWA+1}, 32, v{vWA}
    v_xor_b32 v{vWA+2}, 64, v{vWA}
    v_xor_b32 v{vWA+3}, 96, v{vWA}
    s_waitcnt vmcnt(12)
    s_barrier""")
    k1_reads(a, True, 0, 0)
    vLre, vLim, vLdt = 56, 57, 58
    vAr, vAi, vKr, vKi = 40, 41, 42, 43
    vA32r, vA32i, vA128r, vA128i = 44, 45, 46, 47
    a(f"""v_lshlrev_b32 v{vLre}, 16, v{vLre}
    v_lshlrev_b32 v{vLim}, 16, v{vLim}
    v_lshlrev_b32 v{vLdt}, 16, v{vLdt}
    v_mul_f32 v16, {f2u(LOG2E)}, v{vLdt}
    v_exp_f32 v16, v16
    s_nop 0""")
    rne_bf16(a, 16)
    a(f"""v_mul_f32 v17, v16, v{vLre}           ; zr
    v_mul_f32 v18, v16, v{vLim}           ; zi
    v_mul_f32 v17, {f2u(LOG2E)}, v17
    v_exp_f32 v17, v17                    ; mag
    v_mul_f32 v18, {f2u(1.0/(2*math.pi))}, v18
    v_rndne_f32 v19, v18
    v_sub_f32 v18, v18, v19
    v_cos_f32 v19, v18
    v_sin_f32 v20, v18
    s_nop 0
    v_mul_f32 v{vAr}, v17, v19
    v_mul_f32 v{vAi}, v17, v20
    v_add_f32 v19, -1.0, v{vAr}           ; nr
    v_mul_f32 v20, v{vLre}, v{vLre}
    v_fmac_f32 v20, v{vLim}, v{vLim}      ; den
    v_rcp_f32 v20, v20
    v_mul_f32 v21, v19, v{vLre}
    v_fmac_f32 v21, v{vAi}, v{vLim}
    v_mul_f32 v22, v{vAi}, v{vLre}
    v_fma_f32 v22, -v19, v{vLim}, v22
    v_add_f32 v20, v20, v20               ; 2/den
    v_mul_f32 v{vKr}, v21, v20
    v_mul_f32 v{vKi}, v22, v20
    v_mov_b32 v{vA32r}, v{vAr}
    v_mov_b32 v{vA32i}, v{vAi}""")

    def csq(r, i):
        a(f"""v_mul_f32 v16, v{i}, v{i}
        v_mul_f32 v17, v{r}, v{i}
        v_fma_f32 v{r}, v{r}, v{r}, -v16
        v_add_f32 v{i}, v17, v17""")
    for _ in range(5):
        csq(vA32r, vA32i)
    a(f"v_mov_b32 v{vA128r}, v{vA32r}\nv_mov_b32 v{vA128i}, v{vA32i}")
    for _ in range(2):
        csq(vA128r, vA128i)
    k1_loop(a, True)
    zr = lambda j: vACC + j
    zi = lambda j: vACC + 32 + j
    vEr, vEi = 48, 49

    def scan_step(sr, si, j):
        a(f"""v_fma_f32 v16, v{vAr}, v{sr}, v{zr(j)}
        v_fma_f32 v17, v{vAr}, v{si}, v{zi(j)}
        v_fma_f32 v16, -v{vAi}, v{si}, v16
        v_fma_f32 v{si}, v{vAi}, v{sr}, v17
        v_mov_b32 v{sr}, v16""")
    a(f"v_mov_b32 v{vEr}, v{zr(0)}\nv_mov_b32 v{vEi}, v{zi(0)}")
    cur = (vEr, vEi)
    alt = (50, 51)
    for j in range(1, 32):
        sr, si = cur
        nr, ni = alt
        a(f"""v_fma_f32 v{nr}, v{vAr}, v{sr}, v{zr(j)}
        v_fma_f32 v{ni}, v{vAr}, v{si}, v{zi(j)}
        v_fma_f32 v{nr}, -v{vAi}, v{si}, v{nr}
        v_fma_f32 v{ni}, v{vAi}, v{sr}, v{ni}""")
        cur, alt = alt, cur
    if cur != (vEr, vEi):
        a(f"v_mov_b32 v{vEr}, v{cur[0]}\nv_mov_b32 v{vEi}, v{cur[1]}")
    ES = 0
    a(f"""v_and_b32 v2, 31, v{vLANE}
    v_lshrrev_b32 v3, 5, v{vLANE}           ; hf
    s_lshl_b32 s{sT2}, s{sRG}, 1
    v_add_u32 v16, s{sT2}, v3               ; sigma
    v_lshlrev_b32 v16, 8, v16
    v_lshl_add_u32 v16, v2, 3, v16
    ds_write_b64 v16, v[{vEr}:{vEr+1}] offset:{ES}
    s_waitcnt lgkmcnt(0)
    s_barrier
    v_lshlrev_b32 v16, 3, v2
    ds_read_b64 v[20:21], v16 offset:{ES}
    ds_read_b64 v[22:23], v16 offset:{ES+256}
    ds_read_b64 v[24:25], v16 offset:{ES+512}
    ds_read_b64 v[26:27], v16 offset:{ES+768}
    s_waitcnt lgkmcnt(0)""")

    def cmad(dr, di, ar, ai, xr, xi, yr, yi):
        a(f"""v_fma_f32 v16, v{ar}, v{xr}, v{yr}
        v_fma_f32 v17, v{ar}, v{xi}, v{yi}
        v_fma_f32 v{dr}, -v{ai}, v{xi}, v16
        v_fma_f32 v{di}, v{ai}, v{xr}, v17""")
    cmad(28, 29, vA32r, vA32i, 20, 21, 22, 23)
    cmad(30, 31, vA32r, vA32i, 28, 29, 24, 25)
    cmad(28, 29, vA32r, vA32i, 30, 31, 26, 27)
    TAG = 1
    a(f"""v_mov_b32 v32, v28
    v_mov_b32 v33, {TAG}
    v_mov_b32 v34, v29
    v_mov_b32 v35, {TAG}
    s_lshl_b32 s{sT2}, s{sCG}, 5
    v_add_u32 v36, s{sT2}, v2               ; p
    v_lshlrev_b32 v36, 4, v36               ; p*16
    s_lshl_b32 s{sT3}, s{sRB}, 13           ; rb*512*16
    s_add_u32 s{sT3}, s{sT3}, {WS_AGG}
    s_cmp_eq_u32 s{sRG}, 0
    s_cbranch_scc0 K1S_NOPUB
    v_cmp_gt_u32 vcc, 32, v{vLANE}
    s_and_saveexec_b64 s[72:73], vcc
    buffer_store_dwordx4 v[32:35], v36, s[{S_SRD_WS}:{S_SRD_WS+3}], s{sT3} offen sc0 sc1
    s_mov_b64 exec, s[72:73]""")
    a.label("K1S_NOPUB")
    a("s_mov_b32 s76, 0")
    a.label("K1S_POLL")
    a(f"s_mov_b32 s{sT3}, {WS_AGG}")
    for c in range(15):
        a(f"buffer_load_dwordx4 v[{64+4*c}:{67+4*c}], v36, s[{S_SRD_WS}:{S_SRD_WS+3}], s{sT3} offen sc0 sc1")
        if c < 14:
            a(f"s_add_u32 s{sT3}, s{sT3}, 8192")
    a("s_waitcnt vmcnt(0)")
    a("s_mov_b64 s[74:75], -1")
    for c in range(15):
        a(f"""s_cmp_gt_u32 s{sRB}, {c}
        s_cbranch_scc0 K1S_CHK
        v_cmp_eq_u32 vcc, {TAG}, v{65+4*c}
        s_and_b64 s[74:75], s[74:75], vcc
        v_cmp_eq_u32 vcc, {TAG}, v{67+4*c}
        s_and_b64 s[74:75], s[74:75], vcc""")
    a.label("K1S_CHK")
    a(f"""s_cmp_eq_u64 s[74:75], -1
    s_cbranch_scc1 K1S_GOT
    s_add_u32 s76, s76, 1
    s_cmp_gt_u32 s76, 20000
    s_cbranch_scc1 K1S_GOT
    s_sleep 2
    s_branch K1S_POLL""")
    a.label("K1S_GOT")
    a("v_mov_b32 v52, 0\nv_mov_b32 v53, 0")
    for c in range(15):
        a(f"""s_cmp_gt_u32 s{sRB}, {c}
        s_cbranch_scc0 K1S_HD""")
        a(f"""v_fma_f32 v16, v{vA128r}, v52, v{64+4*c}
        v_fma_f32 v17, v{vA128r}, v53, v{66+4*c}
        v_fma_f32 v18, -v{vA128i}, v53, v16
        v_fma_f32 v53, v{vA128i}, v52, v17
        v_mov_b32 v52, v18""")
    a.label("K1S_HD")
    cmad(54, 55, vA32r, vA32i, 52, 53, 20, 21)
    cmad(28, 29, vA32r, vA32i, 54, 55, 22, 23)
    cmad(30, 31, vA32r, vA32i, 28, 29, 24, 25)
    a(f"""s_cmp_eq_u32 s{sRG}, 0
    s_cbranch_scc1 K1S_SEL
    v_mov_b32 v52, v28
    v_mov_b32 v53, v29
    v_mov_b32 v54, v30
    v_mov_b32 v55, v31""")
    a.label("K1S_SEL")
    a(f"""v_cmp_lt_u32 vcc, 31, v{vLANE}
    s_nop 1
    v_cndmask_b32 v52, v52, v54, vcc
    v_cndmask_b32 v53, v53, v55, vcc""")
    cur = (52, 53)
    alt = (50, 51)
    for j in range(32):
        sr, si = cur
        nr, ni = alt
        a(f"""v_fma_f32 v{nr}, v{vAr}, v{sr}, v{zr(j)}
        v_fma_f32 v{ni}, v{vAr}, v{si}, v{zi(j)}
        v_fma_f32 v{nr}, -v{vAi}, v{si}, v{nr}
        v_fma_f32 v{ni}, v{vAi}, v{sr}, v{ni}
        v_mul_f32 v{zr(j)}, v{vKr}, v{nr}
        v_mul_f32 v{zi(j)}, -v{vKr}, v{ni}
        v_fma_f32 v{zr(j)}, -v{vKi}, v{ni}, v{zr(j)}
        v_fma_f32 v{zi(j)}, -v{vKi}, v{nr}, v{zi(j)}""")
        cur, alt = alt, cur
    for j in range(0, 32, 2):
        a(f"v_cvt_pk_bf16_f32 v{64+j//2}, v{zr(j)}, v{zr(j+1)}")
        a(f"v_cvt_pk_bf16_f32 v{80+j//2}, v{zi(j)}, v{zi(j+1)}")
    TB = 4096
    a(f"""s_lshl_b32 s{sT2}, s{sRG}, 13
    s_add_u32 s{sT2}, s{sT2}, {TB}
    v_lshlrev_b32 v16, 11, v3               ; hf*2048
    v_lshl_add_u32 v16, v2, 6, v16          ; + p*64
    v_add_u32 v16, s{sT2}, v16""")
    for part in range(2):
        for q in range(4):
            r = 64 + 16 * part + 4 * q
            a(f"ds_write_b128 v16, v[{r}:{r+3}] offset:{part*4096 + q*16}")
    a(f"""v_lshrrev_b32 v17, 5, v{vLANE}
    v_lshlrev_b32 v17, 3, v17
    v_bfe_u32 v18, v{vLANE}, 2, 2
    v_add_u32 v17, v17, v18
    v_lshlrev_b32 v17, 6, v17
    v_bfe_u32 v18, v{vLANE}, 4, 1
    v_lshl_add_u32 v17, v18, 5, v17
    v_and_b32 v18, 3, v{vLANE}
    v_lshl_add_u32 v17, v18, 3, v17
    v_add_u32 v17, s{sT2}, v17
    s_waitcnt lgkmcnt(0)""")
    for part in range(2):
        for ht in range(2):
            for s2 in range(2):
                r = 96 + 16 * part + 8 * ht + 4 * s2
                o = part * 4096 + ht * 2048 + s2 * 1024
                a(f"ds_read_b64_tr_b16 v[{r}:{r+1}], v17 offset:{o}")
                a(f"ds_read_b64_tr_b16 v[{r+2}:{r+3}], v17 offset:{o+256}")
    a(f"""s_lshl_b32 s{sT2}, s{sRB}, 2
    s_lshl_b32 s{sT3}, s{sRG}, 1
    s_add_u32 s{sT2}, s{sT2}, s{sT3}
    s_mul_i32 s{sT2}, s{sT2}, {NKS}
    s_lshl_b32 s{sT3}, s{sCG}, 2
    s_add_u32 s{sT2}, s{sT2}, s{sT3}
    s_add_u32 s{sT2}, s{sT2}, 86
    s_lshl_b32 s{sT2}, s{sT2}, 10
    s_add_u32 s{sT3}, s{sT2}, {RT_STRIDE}
    v_lshlrev_b32 v2, 4, v{vLANE}
    s_waitcnt lgkmcnt(0)""")
    for part in range(2):
        for ht in range(2):
            for s2 in range(2):
                r = 96 + 16 * part + 8 * ht + 4 * s2
                so = sT2 if ht == 0 else sT3
                a(f"buffer_store_dwordx4 v[{r}:{r+3}], v2, s[{S_SRD_WS}:{S_SRD_WS+3}], s{so} offen offset:{(2*part+s2)*1024}")
    a.label("K1_END")
    a("s_endpgm")
    return name


SLOT2 = 32768
NSL2 = 4
NST2 = 19


def gen_k2(a):
    name = "k2_p2_kernel"
    kernel_head(a, name)
    sKH, sRT, sCT, sRB2, sCB = 21, 22, 23, 24, 25
    sST2, sSL, sT0, sT1, sT2, sT3, sT4, sW2, sMA, sMB = 26, 27, 28, 29, 30, 31, 32, 20, 33, 34
    SA, SD, SC, SO, SXN, SX, SDK = 4, 8, 12, 16, 60, 64, 68
    vDA, vDB, vDC, vAA, vB0, vB1, vC0, vC1 = 4, 5, 6, 7, 8, 9, 10, 11
    vF = 64
    vAC = 128
    a(f"""s_cmp_ge_u32 s2, 256
    s_cbranch_scc1 K2_END
    s_load_dwordx2 s[40:41], s[0:1], {KA_X}
    s_load_dwordx4 s[44:47], s[0:1], {KA_CRE}
    s_load_dwordx2 s[48:49], s[0:1], {KA_DSK}
    s_load_dwordx4 s[52:55], s[0:1], {KA_WD}
    s_load_dwordx2 s[56:57], s[0:1], {KA_WS}
    v_and_b32 v{vLANE}, 63, v0
    v_lshrrev_b32 v2, 6, v0
    s_nop 0
    v_readfirstlane_b32 s{sW2}, v2
    s_and_b32 s{sT0}, s2, 7
    s_lshr_b32 s{sT1}, s2, 3
    s_lshl_b32 s{sRB2}, s{sT0}, 2
    s_and_b32 s{sT2}, s{sT1}, 3
    s_add_u32 s{sRB2}, s{sRB2}, s{sT2}      ; rb64
    s_lshr_b32 s{sCB}, s{sT1}, 2            ; cb
    s_lshr_b32 s{sKH}, s{sW2}, 2
    s_bfe_u32 s{sRT}, s{sW2}, 0x10001
    s_and_b32 s{sCT}, s{sW2}, 1
    s_lshl_b32 s{sMA}, s{sW2}, 11
    s_add_u32 s{sMB}, s{sMA}, 16384
    s_waitcnt lgkmcnt(0)""")
    srd(a, SA, 56, WS_SIZE)
    srd(a, SD, 52, 1376 * 1024)
    a(f"""s_cmp_lt_u32 s{sW2}, 4
    s_cselect_b32 s58, s44, s46
    s_cselect_b32 s59, s45, s47""")
    srd(a, SC, 58, 512 * 1024)
    srd(a, SO, 54, 2048 * 2048)
    a(f"""s_add_u32 s58, s56, {WS_XN}
    s_addc_u32 s59, s57, 0""")
    srd(a, SXN, 58, 2048 * 1024)
    srd(a, SX, 40, 2048 * 1024)
    srd(a, SDK, 48, 1024)
    a(f"""s_lshl_b32 s{sT0}, s{sRB2}, 1
    s_lshr_b32 s{sT1}, s{sW2}, 2
    s_add_u32 s{sT0}, s{sT0}, s{sT1}
    s_mul_i32 s{sT0}, s{sT0}, {RT_STRIDE}
    s_and_b32 s{sT1}, s{sW2}, 3
    s_lshl_b32 s{sT1}, s{sT1}, 11
    s_add_u32 s{sT0}, s{sT0}, s{sT1}
    v_lshlrev_b32 v{vDA}, 4, v{vLANE}
    v_add_u32 v{vDA}, s{sT0}, v{vDA}""")
    a(f"""v_lshrrev_b32 v2, 3, v{vLANE}
    s_lshl_b32 s{sT0}, s{sW2}, 4
    v_add_u32 v2, s{sT0}, v2
    v_lshlrev_b32 v2, 10, v2
    v_bfe_u32 v3, v{vLANE}, 4, 1
    v_lshlrev_b32 v3, 2, v3
    v_and_b32 v16, 7, v{vLANE}
    v_xor_b32 v3, v3, v16
    v_lshl_add_u32 v2, v3, 4, v2
    s_lshl_b32 s{sT0}, s{sCB}, 7
    v_add_u32 v{vDB}, s{sT0}, v2""")
    a(f"""v_lshrrev_b32 v2, 3, v{vLANE}
    s_and_b32 s{sT0}, s{sW2}, 3
    s_lshl_b32 s{sT0}, s{sT0}, 4
    s_lshl_b32 s{sT1}, s{sCB}, 6
    s_add_u32 s{sT0}, s{sT0}, s{sT1}
    v_add_u32 v2, s{sT0}, v2
    v_lshlrev_b32 v2, 10, v2
    v_lshrrev_b32 v3, 4, v{vLANE}
    v_and_b32 v16, 7, v{vLANE}
    v_xor_b32 v3, v3, v16
    v_lshl_add_u32 v{vDC}, v3, 4, v2""")
    vDC1 = 12
    a(f"v_xor_b32 v{vDC1}, 64, v{vDC}\nv_add_u32 v{vDC1}, 8192, v{vDC1}")
    a(f"""s_lshl_b32 s{sT0}, s{sRT}, 13
    s_lshl_b32 s{sT1}, s{sKH}, 12
    s_add_u32 s{sT0}, s{sT0}, s{sT1}
    v_lshlrev_b32 v{vAA}, 4, v{vLANE}
    v_add_u32 v{vAA}, s{sT0}, v{vAA}""")
    a(f"""v_lshrrev_b32 v2, 5, v{vLANE}
    v_lshlrev_b32 v2, 2, v2
    v_bfe_u32 v3, v{vLANE}, 2, 2
    v_add_u32 v2, v2, v3
    v_lshlrev_b32 v2, 7, v2
    v_bfe_u32 v3, v{vLANE}, 3, 1            ; r>>1
    v_xor_b32 v3, s{sCT}, v3
    v_lshl_add_u32 v2, v3, 6, v2
    v_bfe_u32 v3, v{vLANE}, 4, 1
    v_lshl_add_u32 v2, v3, 5, v2
    v_and_b32 v3, 3, v{vLANE}
    v_lshl_add_u32 v2, v3, 3, v2
    s_lshl_b32 s{sT0}, s{sKH}, 13
    s_add_u32 s{sT0}, s{sT0}, 16384
    v_add_u32 v{vB0}, s{sT0}, v2""")
    a(f"""v_and_b32 v2, 31, v{vLANE}
    v_bfe_u32 v3, v2, 1, 3
    v_lshrrev_b32 v16, 5, v{vLANE}
    s_lshl_b32 s{sT0}, s{sKH}, 2
    v_add_u32 v16, s{sT0}, v16
    v_xor_b32 v3, v3, v16
    v_lshlrev_b32 v2, 7, v2
    v_lshl_add_u32 v2, v3, 4, v2
    s_lshl_b32 s{sT0}, s{sCT}, 12
    s_add_u32 s{sT0}, s{sT0}, 16384
    v_add_u32 v{vC0}, s{sT0}, v2
    v_xor_b32 v{vC1}, 32, v{vC0}""")
    vXO = 13
    a(f"""v_lshrrev_b32 v2, 5, v{vLANE}
    v_lshlrev_b32 v2, 2, v2
    s_lshl_b32 s{sT0}, s{sRB2}, 6
    s_lshl_b32 s{sT1}, s{sRT}, 5
    s_add_u32 s{sT0}, s{sT0}, s{sT1}
    s_lshl_b32 s{sT1}, s{sKH}, 4
    s_add_u32 s{sT0}, s{sT0}, s{sT1}
    v_add_u32 v2, s{sT0}, v2
    v_lshlrev_b32 v2, 9, v2                 ; *512 elements
    v_and_b32 v3, 31, v{vLANE}
    s_lshl_b32 s{sT0}, s{sCB}, 6
    s_lshl_b32 s{sT1}, s{sCT}, 5
    s_add_u32 s{sT0}, s{sT0}, s{sT1}
    v_add_u32 v3, s{sT0}, v3                ; d
    v_add_u32 v2, v2, v3
    v_lshlrev_b32 v{vXO}, 1, v2
    v_lshlrev_b32 v3, 1, v3
    buffer_load_ushort v48, v3, s[{SDK}:{SDK+3}], 0 offen""")
    for q in range(2):
        for i in range(4):
            ro = (8 * q + i) * 1024
            so, io = (ro // 4096) * 4096, ro % 4096
            a(f"s_mov_b32 s{sT0}, {so}")
            a(f"buffer_load_ushort v{32+4*q+i}, v{vXO}, s[{SX}:{SX+3}], s{sT0} offen offset:{io}")
            a(f"buffer_load_ushort v{40+4*q+i}, v{vXO}, s[{SXN}:{SXN+3}], s{sT0} offen offset:{io}")

    def dma2(st_s, slot_s):
        l1, l2 = a.newlab("K2D"), a.newlab("K2D")
        a(f"""s_lshl_b32 s{sT0}, s{st_s}, 13
        s_sub_u32 s{sT1}, s{sT0}, 2048
        s_cmp_lt_u32 s{st_s}, 11
        s_cselect_b32 s{sT0}, s{sT0}, s{sT1}
        s_add_u32 m0, s{slot_s}, s{sMA}
        s_add_u32 s{sT1}, s{sT0}, 1024
        buffer_load_dwordx4 v{vDA}, s[{SA}:{SA+3}], s{sT0} offen lds
        s_add_u32 m0, m0, 1024
        s_nop 0
        buffer_load_dwordx4 v{vDA}, s[{SA}:{SA+3}], s{sT1} offen lds
        s_add_u32 m0, s{slot_s}, s{sMB}
        s_cmp_lt_u32 s{st_s}, 11
        s_cbranch_scc0 {l1}
        s_lshl_b32 s{sT0}, s{st_s}, 17          ; 128 rows * 1024
        s_add_u32 s{sT1}, s{sT0}, 8192
        buffer_load_dwordx4 v{vDB}, s[{SD}:{SD+3}], s{sT0} offen lds
        s_add_u32 m0, m0, 1024
        s_nop 0
        buffer_load_dwordx4 v{vDB}, s[{SD}:{SD+3}], s{sT1} offen lds
        s_branch {l2}""")
        a.label(l1)
        a(f"""s_sub_u32 s{sT0}, s{st_s}, 11
        s_lshl_b32 s{sT0}, s{sT0}, 7            ; j*128 bytes
        s_nop 0
        buffer_load_dwordx4 v{vDC}, s[{SC}:{SC+3}], s{sT0} offen lds
        s_add_u32 m0, m0, 1024
        s_nop 0
        buffer_load_dwordx4 v{vDC1}, s[{SC}:{SC+3}], s{sT0} offen lds""")
        a.label(l2)

    for i in range(16):
        a(f"v_mov_b32 v{vAC+i}, 0")
    sD1, sD2 = 35, 36
    for st in range(NSL2 - 1):
        a(f"s_mov_b32 s{sD1}, {st}\ns_mov_b32 s{sD2}, {st*SLOT2}")
        dma2(sD1, sD2)
    a(f"s_mov_b32 s{sST2}, 0\ns_mov_b32 s{sSL}, 0")
    a.label("K2_LOOP")
    a(f"""s_cmp_ge_u32 s{sST2}, {NST2-2}
    s_cbranch_scc1 K2_W0
    s_waitcnt vmcnt(8)
    s_branch K2_WD""")
    a.label("K2_W0")
    a("s_waitcnt vmcnt(0)")
    a.label("K2_WD")
    a("s_barrier")
    a(f"""s_cmp_ge_u32 s{sST2}, {NST2-3}
    s_cbranch_scc1 K2_NODMA
    s_add_u32 s{sD1}, s{sST2}, 3
    s_add_u32 s{sD2}, s{sSL}, {3*SLOT2}
    s_and_b32 s{sD2}, s{sD2}, {NSL2*SLOT2-1}""")
    dma2(sD1, sD2)
    a.label("K2_NODMA")
    a(f"""v_add_u32 v16, s{sSL}, v{vAA}
    s_cmp_lt_u32 s{sST2}, 11
    s_cbranch_scc0 K2_SSM
    v_add_u32 v17, s{sSL}, v{vB0}""")
    for s in range(4):
        f = vF + 8 * s
        a(f"ds_read_b128 v[{f}:{f+3}], v16 offset:{s*1024}")
        a(f"ds_read_b64_tr_b16 v[{f+4}:{f+5}], v17 offset:{s*2048}")
        a(f"ds_read_b64_tr_b16 v[{f+6}:{f+7}], v17 offset:{s*2048+1024}")
    for s in range(4):
        f = vF + 8 * s
        a(f"s_waitcnt lgkmcnt({3*(3-s)})")
        a(f"v_mfma_f32_32x32x16_bf16 v[{vAC}:{vAC+15}], v[{f}:{f+3}], v[{f+4}:{f+7}], v[{vAC}:{vAC+15}]")
    a("s_branch K2_NEXT")
    a.label("K2_SSM")
    a(f"v_add_u32 v17, s{sSL}, v{vC0}\nv_add_u32 v18, s{sSL}, v{vC1}")
    for s in range(4):
        f = vF + 8 * s
        part, s2 = s >> 1, s & 1
        a(f"ds_read_b128 v[{f}:{f+3}], v16 offset:{s*1024}")
        a(f"ds_read_b128 v[{f+4}:{f+7}], v{17+s2} offset:{part*8192}")
    for s in range(4):
        f = vF + 8 * s
        a(f"s_waitcnt lgkmcnt({2*(3-s)})")
        a(f"v_mfma_f32_32x32x16_bf16 v[{vAC}:{vAC+15}], v[{f}:{f+3}], v[{f+4}:{f+7}], v[{vAC}:{vAC+15}]")
    a.label("K2_NEXT")
    a(f"""s_add_u32 s{sSL}, s{sSL}, {SLOT2}
    s_and_b32 s{sSL}, s{sSL}, {NSL2*SLOT2-1}
    s_add_u32 s{sST2}, s{sST2}, 1
    s_cmp_lt_u32 s{sST2}, {NST2}
    s_cbranch_scc1 K2_LOOP""")
    a(f"""s_nop 15
    s_barrier
    s_and_b32 s{sT0}, s{sW2}, 3
    s_lshl_b32 s{sT0}, s{sT0}, 12
    v_lshlrev_b32 v16, 4, v{vLANE}
    v_add_u32 v16, s{sT0}, v16
    s_cmp_eq_u32 s{sKH}, 0
    s_cbranch_scc0 K2_R1
    ds_write_b128 v16, v[{vAC+8}:{vAC+11}] offset:2048
    ds_write_b128 v16, v[{vAC+12}:{vAC+15}] offset:3072
    s_waitcnt lgkmcnt(0)
    s_barrier
    ds_read_b128 v[20:23], v16
    ds_read_b128 v[24:27], v16 offset:1024
    s_waitcnt lgkmcnt(0)""")
    for i in range(8):
        a(f"v_add_f32 v{20+i}, v{20+i}, v{vAC+i}")
    a("s_branch K2_R2")
    a.label("K2_R1")
    a(f"""ds_write_b128 v16, v[{vAC}:{vAC+3}]
    ds_write_b128 v16, v[{vAC+4}:{vAC+7}] offset:1024
    s_waitcnt lgkmcnt(0)
    s_barrier
    ds_read_b128 v[20:23], v16 offset:2048
    ds_read_b128 v[24:27], v16 offset:3072
    s_waitcnt lgkmcnt(0)""")
    for i in range(8):
        a(f"v_add_f32 v{20+i}, v{20+i}, v{vAC+8+i}")
    a.label("K2_R2")
    a("s_waitcnt vmcnt(0)\nv_lshlrev_b32 v48, 16, v48")
    a(f"v_lshlrev_b32 v16, 1, v{vXO}")
    for k in range(8):
        a(f"""v_lshlrev_b32 v{32+k}, 16, v{32+k}
        v_lshlrev_b32 v{40+k}, 16, v{40+k}
        v_mul_f32 v{40+k}, v{40+k}, v48""")
        rne_bf16(a, 40 + k)
        a(f"""v_add_f32 v{20+k}, v{20+k}, v{40+k}
        v_add_f32 v{20+k}, v{20+k}, v{32+k}""")
    for q in range(2):
        for i in range(4):
            ro = (8 * q + i) * 2048
            so, io = (ro // 4096) * 4096, ro % 4096
            a(f"s_mov_b32 s{sT0}, {so}")
            a(f"buffer_store_dword v{20+4*q+i}, v16, s[{SO}:{SO+3}], s{sT0} offen offset:{io}")
    a.label("K2_END")
    a("s_endpgm")
    return name


def main(out_path):
    ref = open("cdna_kernels/" + NAME + ".s.ref").read()
    head = []
    for line in ref.splitlines():
        if line.startswith(";") and "@launch" not in line and "Override" not in line and "grid=ceil" not in line:
            head.append(line)
        elif not line.startswith(";"):
            break
    a = A()
    k0 = gen_k0(a)
    k1 = gen_k1(a)
    k2 = gen_k2(a)
    txt = "\n".join(head) + "\n"
    txt += f"; @launch kernel={k0} grid=(256,1,1) block=(512,1,1) lds=0\n"
    txt += f"; @launch kernel={k1} grid=(256,1,1) block=(512,1,1) lds={3*SLOT}\n"
    txt += f"; @launch kernel={k2} grid=(256,1,1) block=(512,1,1) lds={NSL2*SLOT2}\n"
    txt += '.amdgcn_target "amdgcn-amd-amdhsa--gfx950"\n.text\n'
    txt += a.text()
    txt += '.section .rodata,"a"\n.p2align 6\n'
    txt += kdesc(k0, 32) + ".p2align 6\n" + kdesc(k1, 192) + ".p2align 6\n" + kdesc(k2, 144)
    open(out_path, "w").write(txt)


if __name__ == "__main__":
    main(sys.argv[1] if len(sys.argv) > 1 else "cdna_kernels/" + NAME + ".s")
```

```python
import sys, math, struct, os

NAME = "parallel_sum__ssm_conv_s5__glu_gated_geglu__prompt"
KNAME = NAME + "_kernel"

STAMPS = int(os.environ.get("STAMPS", "0"))
SPIN_MAX = int(os.environ.get("SPIN_MAX", "200000"))
XS = int(os.environ.get("XS", "2"))
CODE_PREFETCH = int(os.environ.get("CODE_PREFETCH", "1"))
X_NOMFMA = int(os.environ.get("X_NOMFMA", "0"))
X_NOREAD = int(os.environ.get("X_NOREAD", "0"))
X_NOS = int(os.environ.get("X_NOS", "0"))

KA = dict(X=0, LRE=8, LIM=16, BRE=24, BIM=32, CRE=40, CIM=48, LDT=56, DSK=64, BX=72, WG=80, WU=88, WD=96, OUT=104, DBG=112, WS=120)
NKS = 150
RT_STRIDE = NKS * 1024
WS_HB = 0
WS_AGG = 0xA00000
WS_STAT = 0xA40000
WS_CS = 0xA80000
WS_FLG = 0xB00000
WS_EPOCH = 0xB10000
WS_DBG = 0xF00000
WS_SIZE = 0x10000000

LOG2E = 1.4426950408889634
SLOT = 32768
NSLOT = 4
SCR = NSLOT * SLOT
SCR_T = SCR
SCR_CS = 16384
SCR_ST = 17408
SCR_ES = 18432
LDS_BYTES = 163840
NG1 = 12
NST2 = 19
NG = NG1 + NST2


def f2u(x):
    return struct.unpack("<I", struct.pack("<f", x))[0]


class A:
    def __init__(self):
        self.l = []
        self.nlab = 0
        self.vm = []
        self.nvm = 0
        self.lg = []

    def __call__(self, s):
        for line in s.strip("\n").split("\n"):
            line = line.strip()
            if X_NOMFMA and line.startswith("v_mfma"):
                continue
            if X_NOREAD and (line.startswith("ds_read_b128 v[1") or line.startswith("ds_read_b128 v[2") or line.startswith("ds_read_b64_tr") or line.startswith("ds_read_b128 v[4") or line.startswith("ds_read_b128 v[5")):
                continue
            if line:
                self.l.append("  " + line)

    def label(self, name):
        self.l.append(name + ":")

    def newlab(self, p="L"):
        self.nlab += 1
        return f"{p}_{self.nlab}"

    def vmop(self, s, tag, maybe=False):
        self(s)
        if not maybe:
            self.vm.append(tag)
            self.nvm += 1

    def vmwait(self, tag):
        idx = [i for i, t in enumerate(self.vm) if t == tag]
        if not idx:
            return
        n = len(self.vm) - 1 - idx[-1]
        assert n <= 63, n
        self(f"s_waitcnt vmcnt({n})")
        self.vm = self.vm[idx[-1] + 1:]

    def vmwait_all(self):
        self("s_waitcnt vmcnt(0)")
        self.vm = []

    def ldsop(self, s, tag):
        self(s)
        self.lg.append(tag)

    def lgwait(self, tag):
        idx = [i for i, t in enumerate(self.lg) if t == tag]
        if not idx:
            return
        n = len(self.lg) - 1 - idx[-1]
        assert n <= 15, n
        self(f"s_waitcnt lgkmcnt({n})")
        self.lg = self.lg[idx[-1] + 1:]

    def lgwait_all(self):
        self("s_waitcnt lgkmcnt(0)")
        self.lg = []

    def text(self):
        return "\n".join(self.l) + "\n"


def srd(a, s, ptr_lo, nbytes):
    a(f"""s_mov_b32 s{s}, s{ptr_lo}
    s_and_b32 s{s+1}, s{ptr_lo+1}, 0xffff
    s_mov_b32 s{s+2}, {nbytes}
    s_mov_b32 s{s+3}, 0x20000""")


def rne_bf16(a, v):
    a(f"v_cvt_pk_bf16_f32 v{v}, v{v}, v{v}\nv_lshlrev_b32 v{v}, 16, v{v}")


def wave_sum(a, v, tmp_s):
    for ctrl in ("row_shr:1", "row_shr:2", "row_shr:4", "row_shr:8"):
        a(f"s_nop 1\nv_add_f32_dpp v{v}, v{v}, v{v} {ctrl} row_mask:0xf bank_mask:0xf")
    a(f"s_nop 1\nv_add_f32_dpp v{v}, v{v}, v{v} row_bcast:15 row_mask:0xa bank_mask:0xf")
    a(f"s_nop 1\nv_add_f32_dpp v{v}, v{v}, v{v} row_bcast:31 row_mask:0xc bank_mask:0xf")
    a(f"s_nop 1\nv_readlane_b32 s{tmp_s}, v{v}, 63")


SX, SS, SM, SWS, SWD, SC, SO, ST = 4, 8, 12, 16, 20, 24, 28, 32
sW, sRG, sRB, sCG, sKC0, sU0B, sDUM, sTAG = 36, 37, 38, 39, 72, 73, 74, 75
sT0, sT1, sT2, sT3, sT4, sT5 = 76, 77, 78, 79, 80, 81
sMX, sMS, sMU, sM1 = 82, 83, 84, 85
sCSM = 86
sRB2, sCB, sRT, sCT = 87, 88, 89, 90
sSPIN = 91
sEX = 92
sMASK = 94
STAMP0 = 40
P_X, P_LRE, P_LIM, P_BRE, P_BIM, P_CRE, P_CIM, P_LDT = 40, 42, 44, 46, 48, 50, 52, 54
P_DSK, P_BX, P_WG, P_WU, P_WD, P_OUT, P_DBG, P_WS = 56, 58, 60, 62, 64, 66, 68, 70

vLANE = 1
vXA = 4
vWS = 8
vWM = 8
vW1 = 12
vDX0, vDX1, vDS, vDM = 13, 14, 15, 16
vT = 17
vAr, vAi, vKr, vKi, vA16r, vA16i, vA128r, vA128i = 32, 33, 34, 35, 36, 37, 38, 39
vRINV, vNM = 40, 41
vMISC = 42
vFR = 48
vACC = 64
vACC2 = 96
vXF = 128


def stamp(a, i):
    if STAMPS:
        a(f"s_memrealtime s[{STAMP0+2*i}:{STAMP0+2*i+1}]")


def stamp_flush(a, n):
    if not STAMPS:
        return
    a("s_waitcnt lgkmcnt(0)")
    a(f"s_lshl_b32 s{sT0}, s2, 3\ns_add_u32 s{sT0}, s{sT0}, s{sW}\ns_lshl_b32 s{sT0}, s{sT0}, 6\ns_add_u32 s{sT0}, s{sT0}, {WS_DBG}")
    a("v_mov_b32 v3, 0")
    for i in range(n):
        a(f"v_mov_b32 v2, s{STAMP0+2*i}")
        a(f"buffer_store_dword v2, v3, s[{SWS}:{SWS+3}], s{sT0} offen offset:{4*i}")


def dma_p0(s):
    slot = (s % NSLOT) * SLOT
    it = []
    it.append((f"""s_add_u32 s{sT0}, s{sKC0}, {s}
    s_and_b32 s{sT0}, s{sT0}, 7
    s_lshl_b32 s{sT1}, s{sT0}, 7
    s_add_u32 m0, s{sMX}, {slot}
    s_mul_i32 s{sT2}, s{sT0}, {64*2752}
    buffer_load_dwordx4 v{vDX0}, s[{SX}:{SX+3}], s{sT1} offen lds""", f"st{s}"))
    it.append((f"""s_add_u32 m0, s{sMX}, {slot+1024}
    s_add_u32 s{sT2}, s{sT2}, s{sU0B}
    buffer_load_dwordx4 v{vDX1}, s[{SX}:{SX+3}], s{sT1} offen lds""", f"st{s}"))
    it.append((f"""s_add_u32 m0, s{sMS}, {slot}
    s_nop 0
    buffer_load_dwordx4 v{vDS}, s[{SS}:{SS+3}], s{sT1} offen lds""", f"st{s}"))
    it.append((f"""s_add_u32 m0, s{sMU}, {slot}
    s_nop 0
    buffer_load_dwordx4 v{vDM}, s[{SM}:{SM+3}], s{sT2} offen lds""", f"st{s}"))
    return it


def dma_p1(t):
    g = 8 + t
    slot = (g % NSLOT) * SLOT
    it = []
    for c2 in range(2):
        it.append((f"""s_add_u32 s{sT0}, s{sKC0}, {2*t+c2}
        s_and_b32 s{sT0}, s{sT0}, 7
        s_mul_i32 s{sT2}, s{sT0}, {64*2752}
        s_add_u32 s{sT2}, s{sT2}, s{sU0B}
        s_add_u32 m0, s{sM1}, {slot + c2*16384}
        s_add_u32 s{sT2}, s{sT2}, 64
        buffer_load_dwordx4 v{vDM}, s[{SM}:{SM+3}], s{sT2} offen lds""", f"st{g}"))
        it.append((f"""s_add_u32 m0, s{sM1}, {slot + c2*16384 + 8192}
        s_add_u32 s{sT2}, s{sT2}, s{sDUM}
        buffer_load_dwordx4 v{vDM}, s[{SM}:{SM+3}], s{sT2} offen lds""", f"st{g}"))
    return it


vDA, vDB, vDC0, vDC1 = 42, 43, 44, 45


def dma_p2_B(st, pieces):
    g = NG1 + st
    slot = (g % NSLOT) * SLOT + 16384
    it = []
    for i in pieces:
        if st < 11:
            it.append((("B_MLP", st, i, slot), f"st{g}"))
        else:
            it.append((("B_SSM", st, i, slot), f"st{g}"))
    return it


def main(out_path):
    a = A()
    gen(a)
    ref = open("cdna_kernels/" + NAME + ".s.ref").read()
    head = []
    for line in ref.splitlines():
        if line.startswith(";") and "@launch" not in line and "Override" not in line and "grid=ceil" not in line:
            head.append(line)
        elif not line.startswith(";"):
            break
    txt = "\n".join(head) + "\n"
    txt += f"; @launch grid=(256,1,1) block=(512,1,1) lds={LDS_BYTES}\n"
    txt += '.amdgcn_target "amdgcn-amd-amdhsa--gfx950"\n.text\n'
    txt += f".globl {KNAME}\n.p2align 8\n.type {KNAME},@function\n{KNAME}:\n"
    txt += a.text()
    txt += f""".section .rodata,"a"
.p2align 6
.amdhsa_kernel {KNAME}
  .amdhsa_next_free_vgpr 256
  .amdhsa_next_free_sgpr 100
  .amdhsa_accum_offset 256
  .amdhsa_group_segment_fixed_size 0
  .amdhsa_kernarg_size 128
  .amdhsa_user_sgpr_count 2
  .amdhsa_user_sgpr_kernarg_segment_ptr 1
  .amdhsa_system_sgpr_workgroup_id_x 1
.end_amdhsa_kernel
"""
    open(out_path, "w").write(txt)


def poll_flags(a, ev, rb_s):
    lp, ok = a.newlab("PF"), a.newlab("PFOK")
    a(f"""s_lshl_b32 s{sT0}, s{rb_s}, 8
    s_add_u32 s{sT0}, s{sT0}, {WS_FLG + ev*64}
    v_and_b32 v17, 15, v{vLANE}
    v_lshlrev_b32 v17, 2, v17
    s_mov_b32 s{sSPIN}, 0""")
    a.label(lp)
    a(f"""buffer_load_dword v18, v17, s[{SWS}:{SWS+3}], s{sT0} offen sc0 sc1
    s_waitcnt vmcnt(0)
    v_cmp_ne_u32 vcc, s{sTAG}, v18
    s_add_u32 s{sSPIN}, s{sSPIN}, 1
    s_cbranch_vccz {ok}
    s_cmp_gt_u32 s{sSPIN}, {SPIN_MAX}
    s_cbranch_scc1 {ok}
    s_sleep 1
    s_branch {lp}""")
    a.label(ok)
    a.vm = []


def write_flag(a, ev):
    a(f"""s_lshl_b32 s{sT0}, s{sRB}, 8
    s_lshl_b32 s{sT1}, s{sCG}, 2
    s_add_u32 s{sT0}, s{sT0}, s{sT1}
    s_add_u32 s{sT0}, s{sT0}, {WS_FLG + ev*64}
    v_mov_b32 v17, 0
    v_mov_b32 v18, s{sTAG}
    s_mov_b64 s[{sEX}:{sEX+1}], exec
    s_mov_b64 exec, 1""")
    a.vmop(f"buffer_store_dword v18, v17, s[{SWS}:{SWS+3}], s{sT0} offen sc0 sc1", "flag", maybe=True)
    a(f"s_mov_b64 exec, s[{sEX}:{sEX+1}]")


def gelu_epilogue(a, acc, unit_pos_s, cs_off, tagname):
    K0 = -2.0 * math.sqrt(2.0 / math.pi) * LOG2E
    K1c = K0 * 0.044715
    T = vT
    vK1 = 46
    vCA = 47
    a(f"""v_mov_b32 v{vK1}, {f2u(K1c)}
    v_lshrrev_b32 v{vCA}, 5, v{vLANE}
    v_lshlrev_b32 v{vCA}, 4, v{vCA}
    v_add_u32 v{vCA}, {SCR + SCR_CS + cs_off}, v{vCA}""")
    P = vFR
    for q in range(4):
        cg_, cu_ = 56, 60
        a.ldsop(f"ds_read_b128 v[{cg_}:{cg_+3}], v{vCA} offset:{q*32}", "cs")
        a.ldsop(f"ds_read_b128 v[{cu_}:{cu_+3}], v{vCA} offset:{128 + q*32}", "cs")
        a.lgwait("cs")
        rs = [4 * q + i for i in range(4)]
        for i, r in enumerate(rs):
            a(f"v_fma_f32 v{acc+r}, v{vNM}, v{cg_+i}, v{acc+r}")
        for i, r in enumerate(rs):
            a(f"v_fma_f32 v{acc+16+r}, v{vNM}, v{cu_+i}, v{acc+16+r}")
        for i, r in enumerate(rs):
            a(f"v_mul_f32 v{acc+r}, v{acc+r}, v{vRINV}")
        for i, r in enumerate(rs):
            a(f"v_mul_f32 v{T+i}, v{acc+r}, v{acc+r}")
        for i, r in enumerate(rs):
            a(f"v_fmaak_f32 v{T+i}, v{vK1}, v{T+i}, {f2u(K0)}")
        for i, r in enumerate(rs):
            a(f"v_mul_f32 v{T+i}, v{T+i}, v{acc+r}")
        for i, r in enumerate(rs):
            a(f"v_exp_f32 v{T+i}, v{T+i}")
        for i, r in enumerate(rs):
            a(f"v_mul_f32 v{T+4+i}, v{acc+r}, v{acc+16+r}")
        for i, r in enumerate(rs):
            a(f"v_add_f32 v{T+i}, 1.0, v{T+i}")
        for i, r in enumerate(rs):
            a(f"v_rcp_f32 v{T+i}, v{T+i}")
        for i, r in enumerate(rs):
            a(f"v_mul_f32 v{T+4+i}, v{T+4+i}, v{vRINV}")
        for i, r in enumerate(rs):
            a(f"v_mul_f32 v{T+i}, v{T+i}, v{T+4+i}")
        a(f"v_cvt_pk_bf16_f32 v{P+2*q}, v{T}, v{T+1}\nv_cvt_pk_bf16_f32 v{P+2*q+1}, v{T+2}, v{T+3}")
    a(f"v_lshlrev_b32 v{T}, 4, v{vLANE}")
    a.vmop(f"buffer_store_dwordx4 v[{P}:{P+3}], v{T}, s[{SWS}:{SWS+3}], s{unit_pos_s} offen sc0 sc1", tagname)
    a.vmop(f"buffer_store_dwordx4 v[{P+4}:{P+7}], v{T}, s[{SWS}:{SWS+3}], s{unit_pos_s} offen offset:1024 sc0 sc1", tagname)


def gather_issue(a, part):
    pass


def gen(a):
    a(f"""s_cmp_ge_u32 s2, 256
    s_cbranch_scc1 L_END
    s_load_dwordx16 s[40:55], s[0:1], 0
    s_load_dwordx16 s[56:71], s[0:1], 64
    v_and_b32 v{vLANE}, 63, v0
    v_lshrrev_b32 v2, 6, v0
    s_nop 0
    v_readfirstlane_b32 s{sW}, v2
    s_and_b32 s{sT0}, s2, 7            ; xcd
    s_lshr_b32 s{sT1}, s2, 3           ; idx
    s_and_b32 s{sRB}, s{sT0}, 1
    s_lshl_b32 s{sRB}, s{sRB}, 3
    s_and_b32 s{sT2}, s{sT1}, 7
    s_add_u32 s{sRB}, s{sRB}, s{sT2}   ; rb
    s_lshr_b32 s{sCG}, s{sT0}, 1
    s_lshl_b32 s{sCG}, s{sCG}, 2
    s_lshr_b32 s{sT2}, s{sT1}, 3
    s_add_u32 s{sCG}, s{sCG}, s{sT2}   ; cg
    s_and_b32 s{sRG}, s{sW}, 3         ; rg4
    s_add_u32 s{sKC0}, s{sRB}, s{sCG}
    s_and_b32 s{sKC0}, s{sKC0}, 7
    s_lshl_b32 s{sRB2}, s{sT0}, 2
    s_and_b32 s{sT2}, s{sT1}, 3
    s_add_u32 s{sRB2}, s{sRB2}, s{sT2}      ; rb64
    s_lshr_b32 s{sCB}, s{sT1}, 2            ; cb
    s_bfe_u32 s{sRT}, s{sW}, 0x10001
    s_and_b32 s{sCT}, s{sW}, 1
    s_mul_i32 s{sT2}, s{sCG}, 3
    s_lshl_b32 s{sT3}, s{sCG}, 1
    s_add_u32 s{sT3}, s{sT3}, 11
    s_cmp_lt_u32 s{sCG}, 11
    s_cselect_b32 s{sU0B}, s{sT2}, s{sT3}
    s_cselect_b32 s{sDUM}, 64, 0x40000000
    s_lshl_b32 s{sU0B}, s{sU0B}, 6
    ; M0 bases
    s_lshl_b32 s{sMX}, s{sW}, 11
    s_lshl_b32 s{sMS}, s{sW}, 10
    s_add_u32 s{sMS}, s{sMS}, 16384
    s_and_b32 s{sT2}, s{sW}, 1
    s_lshl_b32 s{sT2}, s{sT2}, 12
    s_lshr_b32 s{sT3}, s{sW}, 1
    s_lshl_b32 s{sT3}, s{sT3}, 10
    s_add_u32 s{sM1}, s{sT2}, s{sT3}
    s_add_u32 s{sMU}, s{sM1}, 24576
    v_lshrrev_b32 v2, 3, v{vLANE}           ; lane>>3
    v_and_b32 v3, 7, v{vLANE}
    v_lshrrev_b32 v{vT}, 4, v{vLANE}        ; lane>>4
    v_xor_b32 v{vT+1}, v3, v{vT}            ; (lane&7)^(lane>>4)
    s_lshl_b32 s{sT2}, s{sRB}, 7
    s_lshl_b32 s{sT3}, s{sW}, 4
    s_add_u32 s{sT2}, s{sT2}, s{sT3}
    v_add_u32 v{vT+2}, s{sT2}, v2
    v_lshlrev_b32 v{vT+2}, 10, v{vT+2}
    v_lshl_add_u32 v{vDX0}, v{vT+1}, 4, v{vT+2}
    v_xor_b32 v{vDX1}, 64, v{vDX0}
    v_add_u32 v{vDX1}, 8192, v{vDX1}
    s_lshl_b32 s{sT2}, s2, 3
    s_add_u32 s{sT2}, s{sT2}, s{sW}
    s_lshl_b32 s{sT5}, s{sT2}, 10           ; row*1024
    v_lshlrev_b32 v{vT+3}, 4, v{vLANE}
    s_waitcnt lgkmcnt(0)""")
    srd(a, SX, P_X, 2048 * 1024)
    a.vmop(f"buffer_load_dwordx4 v[{vACC}:{vACC+3}], v{vT+3}, s[{SX}:{SX+3}], s{sT5} offen", "lnrow")
    srd(a, SWS, P_WS, WS_SIZE)
    a(f"""s_add_u32 s{sT2}, s{P_WS}, {WS_EPOCH}
    s_addc_u32 s{sT3}, s{P_WS+1}, 0
    s_load_dword s{sTAG}, s[{sT2}:{sT3}], 0""")
    assert sT2 % 2 == 0 and sT3 == sT2 + 1
    a(f"""s_cmp_lt_u32 s{sW}, 4
    s_cselect_b32 s{P_BRE}, s{P_BRE}, s{P_BIM}
    s_cselect_b32 s{P_BRE+1}, s{P_BRE+1}, s{P_BIM+1}
    s_and_b32 s{sT4}, s{sW}, 2
    s_cmp_eq_u32 s{sT4}, 0
    s_cselect_b32 s{P_CRE}, s{P_CRE}, s{P_CIM}
    s_cselect_b32 s{P_CRE+1}, s{P_CRE+1}, s{P_CIM+1}""")
    srd(a, SS, P_BRE, 512 * 1024)
    a(f"""s_and_b32 s{sT4}, s{sW}, 1
    s_cmp_eq_u32 s{sT4}, 0
    s_cselect_b32 s{P_WG}, s{P_WG}, s{P_WU}
    s_cselect_b32 s{P_WG+1}, s{P_WG+1}, s{P_WU+1}""")
    srd(a, SM, P_WG, 512 * 2752)
    a(f"""s_lshl_b32 s{sT4}, s{sRG}, 3
    s_lshl_b32 s{sT5}, s{sCG}, 5
    s_add_u32 s{sT4}, s{sT4}, s{sT5}
    v_add_u32 v{vT+2}, s{sT4}, v2
    v_lshlrev_b32 v{vT+2}, 10, v{vT+2}
    s_lshl_b32 s{sT4}, s{sRG}, 2
    v_add_u32 v{vT+4}, s{sT4}, v{vT}
    v_and_b32 v{vT+4}, 7, v{vT+4}
    v_xor_b32 v{vT+4}, v3, v{vT+4}
    v_lshl_add_u32 v{vDS}, v{vT+4}, 4, v{vT+2}
    v_lshrrev_b32 v{vT+2}, 2, v{vLANE}
    s_lshr_b32 s{sT4}, s{sW}, 1
    s_lshl_b32 s{sT4}, s{sT4}, 4
    v_add_u32 v{vT+2}, s{sT4}, v{vT+2}
    s_movk_i32 s{sT5}, 2752
    v_mul_lo_u32 v{vT+2}, s{sT5}, v{vT+2}
    v_and_b32 v{vT+4}, 3, v{vLANE}
    v_lshl_add_u32 v{vDM}, v{vT+4}, 4, v{vT+2}""")
    for s in range(4 - 1):
        for code, tag in dma_p0(s):
            a.vmop(code, tag)
    a(f"""v_and_b32 v{vT+2}, 31, v{vLANE}
    s_lshl_b32 s{sT4}, s{sCG}, 5
    v_add_u32 v{vT+2}, s{sT4}, v{vT+2}
    v_lshlrev_b32 v{vT+2}, 1, v{vT+2}""")
    srd(a, ST, P_LRE, 1024)
    a.vmop(f"buffer_load_ushort v{vA16r}, v{vT+2}, s[{ST}:{ST+3}], 0 offen", "par")
    srd(a, ST, P_LIM, 1024)
    a.vmop(f"buffer_load_ushort v{vA16i}, v{vT+2}, s[{ST}:{ST+3}], 0 offen", "par")
    srd(a, ST, P_LDT, 1024)
    a.vmop(f"buffer_load_ushort v{vA128r}, v{vT+2}, s[{ST}:{ST+3}], 0 offen", "par")
    for code, tag in dma_p0(3):
        a.vmop(code, tag)
    srd(a, SWD, P_WD, 1376 * 1024)
    srd(a, SC, P_CRE, 512 * 1024)
    srd(a, SO, P_OUT, 2048 * 2048)
    srd(a, ST, P_DSK, 1024)
    if CODE_PREFETCH:
        lab = a.newlab("CP")
        a(f"""s_cmp_eq_u32 s{sW}, 7
        s_cbranch_scc0 {lab}
        s_getpc_b64 s[{sT2}:{sT3}]""")
        a.label("L_PC")
        a(f"v_lshlrev_b32 v{vT+2}, 7, v{vLANE}")
        for i in range(4):
            a(f"v_cmp_gt_u32 vcc, L_CODE_END-L_PC, v{vT+2}")
            a(f"s_and_saveexec_b64 s[{sEX}:{sEX+1}], vcc")
            l2 = a.newlab("CPS")
            a(f"s_cbranch_execz {l2}")
            a(f"global_load_dword v255, v{vT+2}, s[{sT2}:{sT3}]")
            a.label(l2)
            a(f"s_mov_b64 exec, s[{sEX}:{sEX+1}]")
            a(f"v_add_u32 v{vT+2}, 8192, v{vT+2}")
        a.label(lab)
    a(f"""s_lshl_b32 s{sT4}, s{sRB2}, 1
    s_mul_i32 s{sT4}, s{sT4}, {RT_STRIDE}
    v_lshlrev_b32 v{vDA}, 4, v{vLANE}
    v_add_u32 v{vDA}, s{sT4}, v{vDA}
    v_bfe_u32 v{vT+2}, v{vLANE}, 4, 1
    v_lshlrev_b32 v{vT+2}, 2, v{vT+2}
    v_xor_b32 v{vT+2}, v3, v{vT+2}
    v_lshlrev_b32 v{vT+4}, 10, v2
    v_lshl_add_u32 v{vT+2}, v{vT+2}, 4, v{vT+4}
    s_lshl_b32 s{sT4}, s{sCB}, 7
    v_add_u32 v{vDB}, s{sT4}, v{vT+2}
    s_lshl_b32 s{sT4}, s{sCB}, 6
    v_add_u32 v{vT+2}, s{sT4}, v2
    v_lshlrev_b32 v{vT+2}, 10, v{vT+2}
    v_lshl_add_u32 v{vDC0}, v{vT+1}, 4, v{vT+2}
    v_xor_b32 v{vDC1}, 64, v{vDC0}""")
    a(f"""v_and_b32 v2, 31, v{vLANE}
    v_bfe_u32 v3, v2, 2, 1
    v_lshlrev_b32 v3, 4, v3
    v_lshrrev_b32 v{vT}, 3, v2
    v_lshl_add_u32 v3, v{vT}, 2, v3
    v_and_b32 v{vT+1}, 3, v2
    v_add_u32 v3, v3, v{vT+1}               ; tau
    v_bfe_u32 v{vT}, v3, 1, 3               ; (tau>>1)&7
    s_lshl_b32 s{sT4}, s{sRG}, 5
    v_add_u32 v3, s{sT4}, v3                ; row
    v_lshlrev_b32 v3, 7, v3
    v_lshrrev_b32 v{vT+1}, 5, v{vLANE}      ; hf
    v_xor_b32 v{vT}, v{vT}, v{vT+1}
    v_lshl_add_u32 v{vXA}, v{vT}, 4, v3
    v_xor_b32 v{vXA+1}, 32, v{vXA}
    v_xor_b32 v{vXA+2}, 64, v{vXA}
    v_xor_b32 v{vXA+3}, 96, v{vXA}
    v_lshlrev_b32 v3, 3, v{vT+1}
    v_bfe_u32 v{vT}, v{vLANE}, 2, 2
    v_add_u32 v3, v3, v{vT}
    v_lshlrev_b32 v3, 6, v3
    v_bfe_u32 v{vT}, v{vLANE}, 4, 1
    v_lshl_add_u32 v3, v{vT}, 5, v3
    v_and_b32 v{vT}, 3, v{vLANE}
    v_lshl_add_u32 v3, v{vT}, 3, v3
    s_lshr_b32 s{sT4}, s{sW}, 2
    s_lshl_b32 s{sT4}, s{sT4}, 13
    v_add_u32 v{vW1}, s{sT4}, v3""")
    a.vmwait("lnrow")
    X = vACC
    for i in range(4):
        a(f"v_lshlrev_b32 v{vACC2+2*i}, 16, v{X+i}\nv_and_b32 v{vACC2+2*i+1}, 0xffff0000, v{X+i}")
    U = vACC2
    a(f"""v_add_f32 v{vT}, v{U}, v{U+1}
    v_add_f32 v{vT+1}, v{U+2}, v{U+3}
    v_add_f32 v{vT+2}, v{U+4}, v{U+5}
    v_add_f32 v{vT+4}, v{U+6}, v{U+7}
    v_add_f32 v{vT}, v{vT}, v{vT+1}
    v_add_f32 v{vT+2}, v{vT+2}, v{vT+4}
    v_add_f32 v{vT}, v{vT}, v{vT+2}""")
    wave_sum(a, vT, sT4)
    a(f"""s_nop 1
    v_mov_b32 v{vT+1}, s{sT4}
    v_mul_f32 v{vT+1}, {f2u(1.0/512)}, v{vT+1}
    v_mov_b32 v{vT}, 0""")
    for i in range(8):
        a(f"v_sub_f32 v{vT+2}, v{U+i}, v{vT+1}\nv_fmac_f32 v{vT}, v{vT+2}, v{vT+2}")
    wave_sum(a, vT, sT4)
    a(f"""s_nop 1
    v_mov_b32 v{vT+2}, s{sT4}
    v_mul_f32 v{vT+2}, {f2u(1.0/512)}, v{vT+2}""")
    rne_bf16(a, vT + 1)
    rne_bf16(a, vT + 2)
    a(f"v_add_f32 v{vT+2}, {f2u(1e-5)}, v{vT+2}")
    rne_bf16(a, vT + 2)
    a(f"v_sqrt_f32 v{vT+2}, v{vT+2}\ns_nop 0")
    rne_bf16(a, vT + 2)
    a(f"""s_waitcnt lgkmcnt(0)
    s_add_u32 s{sTAG}, s{sTAG}, 1
    v_mov_b32 v{U}, v{vT+1}
    v_mov_b32 v{U+1}, s{sTAG}
    v_mov_b32 v{U+2}, v{vT+2}
    v_mov_b32 v{U+3}, s{sTAG}
    s_lshl_b32 s{sT4}, s2, 3
    s_add_u32 s{sT4}, s{sT4}, s{sW}
    s_lshl_b32 s{sT4}, s{sT4}, 4
    s_add_u32 s{sT4}, s{sT4}, {WS_STAT}
    v_mov_b32 v{vT}, 0
    s_mov_b64 s[{sEX}:{sEX+1}], exec
    s_mov_b64 exec, 1""")
    a.vmop(f"buffer_store_dwordx4 v[{U}:{U+3}], v{vT}, s[{SWS}:{SWS+3}], s{sT4} offen sc0 sc1", "stat")
    a(f"s_mov_b64 exec, s[{sEX}:{sEX+1}]")
    stamp(a, 0)
    a(f"""s_lshr_b32 s{sCSM}, s{sRB}, 3
    s_add_u32 s{sCSM}, s{sCSM}, 1
    s_cmp_eq_u32 s{sRG}, 0
    s_cselect_b32 s{sCSM}, s{sCSM}, 0
    v_mov_b32 v{vMISC+4}, 0x3f803f80
    v_mov_b32 v{vMISC+5}, 0x3f803f80""")
    ONES = 28
    for i in range(4):
        a(f"v_mov_b32 v{ONES+i}, 0x3f803f80")
    a(f"""s_cmp_ge_u32 s{sW}, 4
    s_cbranch_scc1 L_STREAM_B""")
    vm_save, lg_save = list(a.vm), list(a.lg)
    stream(a, 0, v3_lanepart=3)
    a.vm, a.lg = list(vm_save), list(lg_save)
    a.label("L_STREAM_B")
    stream(a, 1, v3_lanepart=3)
    a.label("L_END")
    a("s_endpgm")
    a.label("L_CODE_END")


ONES = 28
CSACC = 96


def colsum_mfma(a, wf0, wf1, accreg, first=False):
    l1, l2 = a.newlab("CS"), a.newlab("CS")
    a(f"""s_cmp_eq_u32 s{sCSM}, 0
    s_cbranch_scc1 {l2}
    s_cmp_eq_u32 s{sCSM}, 1
    s_cbranch_scc0 {l1}
    v_mfma_f32_32x32x16_bf16 v[{accreg}:{accreg+15}], v[{ONES}:{ONES+3}], v[{wf0}:{wf0+3}], {"0" if first else f"v[{accreg}:{accreg+15}]"}
    s_branch {l2}""")
    a.label(l1)
    a(f"v_mfma_f32_32x32x16_bf16 v[{accreg}:{accreg+15}], v[{ONES}:{ONES+3}], v[{wf1}:{wf1+3}], " + ("0" if first else f"v[{accreg}:{accreg+15}]"))
    a.label(l2)


def colsum_store(a, accreg, unit, koff=0):
    l2 = a.newlab("CSS")
    a(f"""s_cmp_eq_u32 s{sCSM}, 0
    s_cbranch_scc1 {l2}
    s_nop 7
    s_nop 7
    s_add_u32 s{sT1}, s{sKC0}, {koff}
    s_and_b32 s{sT1}, s{sT1}, 7
    s_lshl_b32 s{sT0}, s{sCG}, 3
    s_add_u32 s{sT0}, s{sT0}, s{sT1}
    s_lshl_b32 s{sT0}, s{sT0}, 11                 ; (cg*8+chunk)*2048
    s_sub_u32 s{sT1}, s{sCSM}, 1
    s_lshl_b32 s{sT1}, s{sT1}, 8                  ; tile*32*8
    s_add_u32 s{sT0}, s{sT0}, s{sT1}
    s_add_u32 s{sT0}, s{sT0}, {WS_CS + unit*512}
    v_mov_b32 v{accreg+1}, s{sTAG}
    v_lshlrev_b32 v{vT}, 3, v{vLANE}
    v_cmp_gt_u32 vcc, 32, v{vLANE}
    s_and_saveexec_b64 s[{sEX}:{sEX+1}], vcc
    buffer_store_dwordx2 v[{accreg}:{accreg+1}], v{vT}, s[{SWS}:{SWS+3}], s{sT0} offen sc0 sc1
    s_mov_b64 exec, s[{sEX}:{sEX+1}]""")
    a.label(l2)


def gather_loads(a, part, dst):
    l1, l2 = a.newlab("G"), a.newlab("G")
    a(f"""s_cmp_lt_u32 s{sRG}, 2
    s_cbranch_scc0 {l1}
    s_lshl_b32 s{sT0}, s{sCG}, 14                 ; cg*8*2048
    s_add_u32 s{sT0}, s{sT0}, {WS_CS + part*1024}
    s_lshl_b32 s{sT1}, s{sRG}, 9
    s_add_u32 s{sT0}, s{sT0}, s{sT1}
    v_lshlrev_b32 v{vT}, 3, v{vLANE}""")
    for j in range(8):
        so, io = (j * 2048 // 4096) * 4096, (j * 2048) % 4096
        a(f"s_add_u32 s{sT1}, s{sT0}, {so}")
        a(f"buffer_load_dwordx2 v[{dst+2*j}:{dst+2*j+1}], v{vT}, s[{SWS}:{SWS+3}], s{sT1} offen offset:{io} sc0 sc1")
    a(f"s_branch {l2}")
    a.label(l1)
    if part == 0:
        a(f"""s_lshl_b32 s{sT0}, s{sRB}, 11               ; rb*128*16
        s_sub_u32 s{sT1}, s{sRG}, 2
        s_lshl_b32 s{sT1}, s{sT1}, 10
        s_add_u32 s{sT0}, s{sT0}, s{sT1}
        s_add_u32 s{sT0}, s{sT0}, {WS_STAT}
        v_lshlrev_b32 v{vT}, 4, v{vLANE}
        buffer_load_dwordx4 v[{dst}:{dst+3}], v{vT}, s[{SWS}:{SWS+3}], s{sT0} offen sc0 sc1""")
    a.label(l2)


def gather_finish(a, part, dst, nyounger):
    lr, l1, l2, lok, lok2 = a.newlab("GR"), a.newlab("GF"), a.newlab("GF"), a.newlab("GOK"), a.newlab("GOK")
    l0 = a.newlab("GR0")
    a(f"s_mov_b32 s{sSPIN}, 0")
    a(f"s_waitcnt vmcnt({nyounger})")
    a(f"s_branch {l0}")
    a.label(lr)
    a("s_waitcnt vmcnt(0)")
    a.label(l0)
    a(f"""s_cmp_lt_u32 s{sRG}, 2
    s_cbranch_scc0 {l1}
    s_mov_b64 s[{sMASK}:{sMASK+1}], 0""")
    for j in range(8):
        a(f"""v_cmp_ne_u32 vcc, s{sTAG}, v{dst+2*j+1}
        s_or_b64 s[{sMASK}:{sMASK+1}], s[{sMASK}:{sMASK+1}], vcc""")
    a(f"""s_cmp_eq_u64 s[{sMASK}:{sMASK+1}], 0
    s_cbranch_scc1 {lok}
    s_add_u32 s{sSPIN}, s{sSPIN}, 1
    s_cmp_gt_u32 s{sSPIN}, {SPIN_MAX}
    s_cbranch_scc1 {lok}
    s_sleep 1""")
    gather_loads(a, part, dst)
    a(f"s_branch {lr}")
    a.label(lok)
    a(f"""v_add_f32 v{dst}, v{dst}, v{dst+2}
    v_add_f32 v{dst+4}, v{dst+4}, v{dst+6}
    v_add_f32 v{dst+8}, v{dst+8}, v{dst+10}
    v_add_f32 v{dst+12}, v{dst+12}, v{dst+14}
    v_add_f32 v{dst}, v{dst}, v{dst+4}
    v_add_f32 v{dst+8}, v{dst+8}, v{dst+12}
    v_add_f32 v{dst}, v{dst}, v{dst+8}
    s_lshl_b32 s{sT0}, s{sRG}, 8
    s_add_u32 s{sT0}, s{sT0}, {SCR}
    v_lshlrev_b32 v{vT}, 2, v{vLANE}
    v_add_u32 v{vT}, s{sT0}, v{vT}
    ds_write_b32 v{vT}, v{dst} offset:{SCR_CS + part*512}
    s_branch {l2}""")
    a.label(l1)
    if part == 0:
        a(f"""v_cmp_ne_u32 vcc, s{sTAG}, v{dst+1}
        s_mov_b64 s[{sMASK}:{sMASK+1}], vcc
        v_cmp_ne_u32 vcc, s{sTAG}, v{dst+3}
        s_or_b64 s[{sMASK}:{sMASK+1}], s[{sMASK}:{sMASK+1}], vcc
        s_cmp_eq_u64 s[{sMASK}:{sMASK+1}], 0
        s_cbranch_scc1 {lok2}
        s_add_u32 s{sSPIN}, s{sSPIN}, 1
        s_cmp_gt_u32 s{sSPIN}, {SPIN_MAX}
        s_cbranch_scc1 {lok2}
        s_sleep 1""")
        gather_loads(a, part, dst)
        a(f"s_branch {lr}")
        a.label(lok2)
        a(f"""v_rcp_f32 v{dst+2}, v{dst+2}
        v_sub_f32 v{dst+3}, 0, v{dst}
        s_sub_u32 s{sT0}, s{sRG}, 2
        s_lshl_b32 s{sT0}, s{sT0}, 9
        s_add_u32 s{sT0}, s{sT0}, {SCR}
        v_lshlrev_b32 v{vT}, 3, v{vLANE}
        v_add_u32 v{vT}, s{sT0}, v{vT}
        ds_write_b64 v{vT}, v[{dst+2}:{dst+3}] offset:{SCR_ST}""")
    a.label(l2)
    a("s_waitcnt lgkmcnt(0)")
    a.lg = []


def w_reads(a, kind, g, j, setp, c2=0):
    slot = (g % NSLOT) * SLOT
    f = vFR + 8 * setp
    tag = f"w{g}_{c2}_{j}"
    if kind == "S":
        for t in range(2):
            a.ldsop(f"ds_read_b128 v[{f+4*t}:{f+4*t+3}], v{vWS+j} offset:{(slot & 0xffff) + 16384 + t*4096 - 16384}", tag)
    elif kind == "M0":
        for t in range(2):
            o = (slot & 0xffff) + t * 4096 + j * 1024
            a.ldsop(f"ds_read_b64_tr_b16 v[{f+4*t}:{f+4*t+1}], v{vWM} offset:{o}", tag)
            a.ldsop(f"ds_read_b64_tr_b16 v[{f+4*t+2}:{f+4*t+3}], v{vWM} offset:{o+256}", tag)
    else:
        for t in range(2):
            o = (slot & 0xffff) + c2 * 16384 + t * 4096 + j * 1024
            a.ldsop(f"ds_read_b64_tr_b16 v[{f+4*t}:{f+4*t+1}], v{vW1} offset:{o}", tag)
            a.ldsop(f"ds_read_b64_tr_b16 v[{f+4*t+2}:{f+4*t+3}], v{vW1} offset:{o+256}", tag)
    return tag


def hi_toggle(a, regs, g_from, g_to):
    hf = ((g_from % NSLOT) * SLOT) >> 16
    ht = ((g_to % NSLOT) * SLOT) >> 16
    if hf != ht:
        for r in regs:
            a(f"v_xor_b32 v{r}, 0x10000, v{r}")


def stream(a, ch, v3_lanepart):
    P = "A" if ch == 0 else "B"
    if ch == 0:
        a(f"""v_and_b32 v2, 31, v{vLANE}
        v_bfe_u32 v{vT}, v2, 1, 3
        v_lshrrev_b32 v{vT+1}, 5, v{vLANE}
        v_xor_b32 v{vT}, v{vT}, v{vT+1}
        v_lshlrev_b32 v2, 7, v2
        v_lshl_add_u32 v2, v{vT}, 4, v2
        v_add_u32 v{vWS}, 16384, v2
        v_xor_b32 v{vWS+1}, 32, v{vWS}
        v_xor_b32 v{vWS+2}, 64, v{vWS}
        v_xor_b32 v{vWS+3}, 96, v{vWS}""")
        addr0 = [vXA + i for i in range(4)] + [vWS + i for i in range(4)]
    else:
        a(f"v_add_u32 v{vWM}, 24576, v{v3_lanepart}")
        addr0 = [vXA + i for i in range(4)] + [vWM]
    for i in range(32):
        a(f"v_mov_b32 v{vACC+i}, 0")
    for i in range(32):
        a(f"v_mov_b32 v{vACC2+i}, 0")
    kind0 = "S" if ch == 0 else "M0"

    def xreads(g):
        slot = (g % NSLOT) * SLOT
        for j in range(4):
            r = vXF + 4 * (4 * g + j)
            a.ldsop(f"ds_read_b128 v[{r}:{r+3}], v{vXA+j} offset:{slot & 0xffff}", f"x{g}")

    def mfma0(g, j, t, setp):
        f = vFR + 8 * setp + 4 * t
        xf = vXF + 4 * (4 * g + j)
        acc = vACC + 16 * t
        if ch == 0:
            a(f"v_mfma_f32_32x32x16_bf16 v[{acc}:{acc+15}], v[{xf}:{xf+3}], v[{f}:{f+3}], v[{acc}:{acc+15}]")
        else:
            a(f"v_mfma_f32_32x32x16_bf16 v[{acc}:{acc+15}], v[{f}:{f+3}], v[{xf}:{xf+3}], v[{acc}:{acc+15}]")

    def mfma1(t4, c2, j, t, setp):
        f = vFR + 8 * setp + 4 * t
        xf = vXF + 4 * (4 * (2 * t4 + c2) + j)
        acc = vACC2 + 16 * t
        a(f"v_mfma_f32_32x32x16_bf16 v[{acc}:{acc+15}], v[{f}:{f+3}], v[{xf}:{xf+3}], v[{acc}:{acc+15}]")

    def p2_B_all(st):
        g = NG1 + st
        slot = (g % NSLOT) * SLOT + 16384
        items = []
        for i in range(2):
            code = f"""s_lshr_b32 s{sT0}, s{sW}, 1
            s_add_u32 s{sT0}, s{sT0}, {4*st}          ; q
            s_mul_i32 s{sT1}, s{sT0}, 3
            s_lshl_b32 s{sT2}, s{sT0}, 1
            s_add_u32 s{sT2}, s{sT2}, 11
            s_cmp_lt_u32 s{sT0}, 11
            s_cselect_b32 s{sT1}, s{sT1}, s{sT2}       ; unit
            s_lshl_b32 s{sT1}, s{sT1}, 15              ; *32 rows*1024
            s_and_b32 s{sT2}, s{sW}, 1
            s_lshl_b32 s{sT2}, s{sT2}, 14              ; 2(w&1)*8 rows*1024
            s_add_u32 s{sT1}, s{sT1}, s{sT2}
            s_add_u32 s{sT1}, s{sT1}, {i*8192}
            s_add_u32 m0, s{sMX}, {slot + i*1024}
            s_nop 0
            buffer_load_dwordx4 v{vDB}, s[{SWD}:{SWD+3}], s{sT1} offen lds"""
            items.append((code, f"st{g}B"))
        return items

    def p2_A(st, tagsuffix=""):
        g = NG1 + st
        slot = (g % NSLOT) * SLOT
        ks0 = 8 * st if st < 11 else 8 * st - 2
        items = []
        for i in range(4):
            pre = ""
            if i == 0:
                pre = f"""s_lshr_b32 s{sT3}, s{sRG}, 1
                s_mul_i32 s{sT3}, s{sT3}, {RT_STRIDE}
                s_and_b32 s{sT4}, s{sRG}, 1
                s_lshl_b32 s{sT4}, s{sT4}, 12
                s_add_u32 s{sT3}, s{sT3}, s{sT4}
                s_lshl_b32 s{sT4}, s{sRG}, 12
                """
            code = pre + f"""s_add_u32 s{sT1}, s{sT3}, {(ks0+i)*1024}
            s_add_u32 m0, s{sT4}, {slot + i*1024}
            s_nop 0
            buffer_load_dwordx4 v{vDA}, s[{SWS}:{SWS+3}], s{sT1} offen sc0 sc1 lds"""
            items.append((code, f"st{g}" + tagsuffix))
        return items

    def p2_B(st):
        g = NG1 + st
        slot = (g % NSLOT) * SLOT + 16384
        items = []
        if st < 11:
            q0 = 4 * st
            if st < 4:
                pre = f"""s_add_u32 s{sT0}, s{sRG}, {q0}
                s_mul_i32 s{sT1}, s{sT0}, 3
                s_lshl_b32 s{sT2}, s{sT0}, 1
                s_add_u32 s{sT2}, s{sT2}, 11
                s_cmp_lt_u32 s{sT0}, 11
                s_cselect_b32 s{sT5}, s{sT1}, s{sT2}
                """
            elif st < 8:
                pre = f"""s_add_u32 s{sT0}, s{sRG}, {q0-16}
                s_mul_i32 s{sT1}, s{sT0}, 3
                s_lshl_b32 s{sT2}, s{sT0}, 1
                s_add_u32 s{sT2}, s{sT2}, 11
                s_cmp_lt_u32 s{sT0}, 11
                s_cselect_b32 s{sT5}, s{sT1}, s{sT2}
                s_add_u32 s{sT5}, s{sT5}, 1
                """
            else:
                pre = f"""s_add_u32 s{sT0}, s{sRG}, {q0-32}
                s_mul_i32 s{sT5}, s{sT0}, 3
                s_add_u32 s{sT5}, s{sT5}, 2
                s_cmp_lt_u32 s{sT0}, 11
                s_cselect_b32 s{sT5}, s{sT5}, 64
                """
            pre += f"""s_lshl_b32 s{sT5}, s{sT5}, 15
            s_lshl_b32 s{sT2}, s{sRG}, 12
            """
            for i in range(4):
                code = (pre if i == 0 else "") + f"""s_add_u32 s{sT1}, s{sT5}, {i*8192}
                s_add_u32 m0, s{sT2}, {slot + i*1024}
                s_nop 0
                buffer_load_dwordx4 v{vDB}, s[{SWD}:{SWD+3}], s{sT1} offen lds"""
                items.append((code, f"st{g}"))
        else:
            j = st - 11
            for i in range(4):
                pre = ""
                if i == 0:
                    pre = f"""s_and_b32 s{sT0}, s{sRG}, 1
                    s_lshl_b32 s{sT0}, s{sT0}, 15            ; 32 rows*1024
                    s_add_u32 s{sT0}, s{sT0}, {j*128}
                    s_lshl_b32 s{sT2}, s{sRG}, 12
                    """
                vd = vDC0 if i % 2 == 0 else vDC1
                code = pre + f"""s_add_u32 s{sT1}, s{sT0}, {i*8192}
                s_add_u32 m0, s{sT2}, {slot + i*1024}
                s_nop 0
                buffer_load_dwordx4 v{vd}, s[{SC}:{SC+3}], s{sT1} offen lds"""
                items.append((code, f"st{g}"))
        return items

    a.vmwait("st0")
    a("s_barrier")
    stamp(a, 1)
    if STAMPS:
        a("s_waitcnt lgkmcnt(0)")
    xreads(0)
    w_reads(a, kind0, 0, 0, 0)
    for g in range(8):
        pend = []
        for j in range(4):
            setp = j & 1
            if j < 3:
                w_reads(a, kind0, g, j + 1, setp ^ 1)
                a.lgwait(f"x{g}")
                a.lgwait(f"w{g}_0_{j}")
                mfma0(g, j, 0, setp)
                if g == 0:
                    colsum_mfma(a, vFR + 8 * setp, vFR + 8 * setp + 4, CSACC, first=(j == 0))
                mfma0(g, j, 1, setp)
                if pend:
                    code, tag = pend.pop(0)
                    a.vmop(code, tag)
            else:
                a.lgwait_all()
                mfma0(g, j, 0, setp)
                if g == 0:
                    colsum_mfma(a, vFR + 8 * setp, vFR + 8 * setp + 4, CSACC)
                a.vmwait(f"st{g+1}")
                if g + 1 >= NG1 - 4 + 4:
                    pass
                a("s_barrier")
                if g < 7:
                    hi_toggle(a, addr0, g, g + 1)
                    xreads(g + 1)
                    w_reads(a, kind0, g + 1, 0, 0)
                else:
                    w_reads(a, "M1", 8, 0, 0, 0)
                mfma0(g, j, 1, setp)
                nxt = g + 4
                items = dma_p0(nxt) if nxt < 8 else dma_p1(nxt - 8)
                for code, tag in items:
                    a.vmop(code, tag)
        if g == 0:
            colsum_store(a, CSACC, ch)
            a("s_nop 7")
            for i in range(16):
                a(f"v_mov_b32 v{CSACC+i}, 0")
        if g == 5 and ch == 0:
            gather_loads(a, 0, vACC2 + 16)
            gmark0 = a.nvm
    stamp(a, 2)
    if ch == 0:
        gather_finish(a, 0, vACC2 + 16, a.nvm - gmark0)
        for i in range(16):
            a(f"v_mov_b32 v{vACC2+16+i}, 0")
    else:
        a.lgwait_all()
    a("s_barrier")
    a("s_nop 7")
    if ch == 1:
        a(f"""s_lshl_b32 s{sT2}, s{sRB}, 2
        s_add_u32 s{sT2}, s{sT2}, s{sRG}
        s_mul_i32 s{sT2}, s{sT2}, {NKS}
        s_lshl_b32 s{sT3}, s{sCG}, 1
        s_add_u32 s{sT2}, s{sT2}, s{sT3}
        s_lshl_b32 s{sT5}, s{sT2}, 10""")
        load_row_stats_M(a)
        gelu_epilogue_safe(a, vACC, sT5, 64 * 4, "u0")
    else:
        load_row_stats_M(a)
        s_epilogue1(a)
    stamp(a, 3)
    addr1 = [vW1]
    for t4 in range(4):
        g = 8 + t4
        for c2 in range(2):
            for j in range(4):
                idx = c2 * 4 + j
                setp = idx & 1
                last = (idx == 7)
                if not last:
                    nc2, nj = (c2, j + 1) if j < 3 else (c2 + 1, 0)
                    w_reads(a, "M1", g, nj, setp ^ 1, nc2)
                    a.lgwait(f"w{g}_{c2}_{j}")
                    mfma1(t4, c2, j, 0, setp)
                    if t4 == 0 and c2 == 1:
                        colsum_mfma(a, vFR + 8 * setp, vFR + 8 * setp + 4, CS1ACC, first=(j == 0))
                    mfma1(t4, c2, j, 1, setp)
                else:
                    a.lgwait_all()
                    mfma1(t4, c2, j, 0, setp)
                    if t4 == 0:
                        colsum_mfma(a, vFR + 8 * setp, vFR + 8 * setp + 4, CS1ACC)
                    if g + 1 < NG1:
                        a.vmwait(f"st{g+1}")
                    a("s_barrier")
                    if t4 < 3:
                        hi_toggle(a, addr1, g, g + 1)
                        w_reads(a, "M1", g + 1, 0, 0, 0)
                    mfma1(t4, c2, j, 1, setp)
                    for code, tag in p2_B_all(t4):
                        a.vmop(code, tag)
        if t4 == 0:
            colsum_store(a, CS1ACC, 2 + ch, koff=1)
        if t4 == 1:
            pass
        if t4 == 1 and ch == 1:
            a.vmwait("u0")
        if t4 == 2 and ch == 1:
            lab = a.newlab("F0")
            a(f"s_cmp_eq_u32 s{sRG}, 0\ns_cbranch_scc0 {lab}")
            write_flag(a, 0)
            a.label(lab)
        if t4 == 0 and ch == 0:
            s_publish(a)
        if t4 == 1 and ch == 0:
            gather_loads(a, 1, GATH1)
            gmark1 = a.nvm
    stamp(a, 4)
    if ch == 0:
        gather_finish(a, 1, GATH1, a.nvm - gmark1)
    else:
        a.lgwait_all()
    a("s_barrier")
    a("s_nop 7")
    if ch == 1:
        a(f"s_lshr_b32 s{sT5}, s{sRB2}, 1")
        poll_flags(a, 0, sT5)
        for st in range(4):
            for code, tag in p2_A(st):
                a.vmop(code, tag)
        stamp(a, 5)
        lab = a.newlab("U2S")
        a(f"""s_cmp_ge_u32 s{sCG}, 11
        s_cbranch_scc1 {lab}
        s_lshl_b32 s{sT2}, s{sRB}, 2
        s_add_u32 s{sT2}, s{sT2}, s{sRG}
        s_mul_i32 s{sT2}, s{sT2}, {NKS}
        s_lshl_b32 s{sT3}, s{sCG}, 1
        s_add_u32 s{sT2}, s{sT2}, s{sT3}
        s_add_u32 s{sT2}, s{sT2}, 64
        s_lshl_b32 s{sT5}, s{sT2}, 10""")
        vm0 = list(a.vm)
        gelu_epilogue_safe(a, vACC2, sT5, 192 * 4, "u12", maybe=True)
        a.label(lab)
        a.vm = vm0
    else:
        stamp(a, 5)
        a(f"""s_lshl_b32 s{sT2}, s{sRB}, 2
        s_add_u32 s{sT2}, s{sT2}, s{sRG}
        s_mul_i32 s{sT2}, s{sT2}, {NKS}
        s_lshl_b32 s{sT3}, s{sCG}, 1
        s_add_u32 s{sT2}, s{sT2}, s{sT3}
        s_add_u32 s{sT2}, s{sT2}, 32
        s_lshl_b32 s{sT5}, s{sT2}, 10""")
        gelu_epilogue_safe(a, vACC2, sT5, 128 * 4, "u12")
    stamp(a, 6)
    phase2(a, ch, p2_A, p2_B)


CS1ACC = 128
GATH1 = 144


def load_row_stats_M(a):
    a(f"""v_and_b32 v2, 31, v{vLANE}
    v_bfe_u32 v3, v2, 2, 1
    v_lshlrev_b32 v3, 4, v3
    v_lshrrev_b32 v{vT}, 3, v2
    v_lshl_add_u32 v3, v{vT}, 2, v3
    v_and_b32 v{vT}, 3, v2
    v_add_u32 v3, v3, v{vT}
    s_lshl_b32 s{sT0}, s{sRG}, 5
    v_add_u32 v3, s{sT0}, v3
    v_lshlrev_b32 v3, 3, v3
    v_add_u32 v3, {SCR}, v3
    ds_read_b64 v[{vRINV}:{vRINV+1}], v3 offset:{SCR_ST}
    s_waitcnt lgkmcnt(0)""")
    a.lg = []


def gelu_epilogue_safe(a, acc, pos_s, cs_off, tagname, maybe=False):
    K0 = -2.0 * math.sqrt(2.0 / math.pi) * LOG2E
    K1c = K0 * 0.044715
    T = vT
    vK1 = 46
    vCA = 47
    a(f"""v_mov_b32 v{vK1}, {f2u(K1c)}
    v_lshrrev_b32 v{vCA}, 5, v{vLANE}
    v_lshlrev_b32 v{vCA}, 4, v{vCA}
    v_add_u32 v{vCA}, {SCR + SCR_CS + cs_off}, v{vCA}""")
    cg_, cu_ = 56, 60
    for q in range(4):
        a(f"ds_read_b128 v[{cg_}:{cg_+3}], v{vCA} offset:{q*32}")
        a(f"ds_read_b128 v[{cu_}:{cu_+3}], v{vCA} offset:{128 + q*32}")
        a("s_waitcnt lgkmcnt(0)")
        rs = [4 * q + i for i in range(4)]
        for i, r in enumerate(rs):
            a(f"v_fma_f32 v{acc+r}, v{vNM}, v{cg_+i}, v{acc+r}")
        for i, r in enumerate(rs):
            a(f"v_fma_f32 v{acc+16+r}, v{vNM}, v{cu_+i}, v{acc+16+r}")
        for i, r in enumerate(rs):
            a(f"v_mul_f32 v{acc+r}, v{acc+r}, v{vRINV}")
        for i, r in enumerate(rs):
            a(f"v_mul_f32 v{T+i}, v{acc+r}, v{acc+r}")
        for i, r in enumerate(rs):
            a(f"v_fmaak_f32 v{T+i}, v{vK1}, v{T+i}, {f2u(K0)}")
        for i, r in enumerate(rs):
            a(f"v_mul_f32 v{T+i}, v{T+i}, v{acc+r}")
        for i, r in enumerate(rs):
            a(f"v_exp_f32 v{T+i}, v{T+i}")
        for i, r in enumerate(rs):
            a(f"v_mul_f32 v{T+4+i}, v{acc+r}, v{acc+16+r}")
        for i, r in enumerate(rs):
            a(f"v_add_f32 v{T+i}, 1.0, v{T+i}")
        for i, r in enumerate(rs):
            a(f"v_rcp_f32 v{T+i}, v{T+i}")
        for i, r in enumerate(rs):
            a(f"v_mul_f32 v{T+4+i}, v{T+4+i}, v{vRINV}")
        for i, r in enumerate(rs):
            a(f"v_mul_f32 v{T+i}, v{T+i}, v{T+4+i}")
        a(f"v_cvt_pk_bf16_f32 v{acc+2*q}, v{T}, v{T+1}\nv_cvt_pk_bf16_f32 v{acc+2*q+1}, v{T+2}, v{T+3}")
    a.lg = []
    a(f"v_lshlrev_b32 v{T}, 4, v{vLANE}")
    a.vmop(f"buffer_store_dwordx4 v[{acc}:{acc+3}], v{T}, s[{SWS}:{SWS+3}], s{pos_s} offen sc0 sc1", tagname, maybe)
    a.vmop(f"buffer_store_dwordx4 v[{acc+4}:{acc+7}], v{T}, s[{SWS}:{SWS+3}], s{pos_s} offen offset:1024 sc0 sc1", tagname, maybe)


vEr, vEi = 2, 3


def s_params(a):
    vLre, vLim, vLdt = 56, 57, 58
    a(f"v_mov_b32 v56, v{vA16r}\nv_mov_b32 v57, v{vA16i}\nv_mov_b32 v58, v{vA128r}")
    t0, t1, t2, t3, t4, t5, t6 = [vT + i for i in range(7)]
    a(f"""v_lshlrev_b32 v{vLre}, 16, v{vLre}
    v_lshlrev_b32 v{vLim}, 16, v{vLim}
    v_lshlrev_b32 v{vLdt}, 16, v{vLdt}
    v_mul_f32 v{t0}, {f2u(LOG2E)}, v{vLdt}
    v_exp_f32 v{t0}, v{t0}
    s_nop 0""")
    rne_bf16(a, t0)
    a(f"""v_mul_f32 v{t1}, v{t0}, v{vLre}
    v_mul_f32 v{t2}, v{t0}, v{vLim}
    v_mul_f32 v{t1}, {f2u(LOG2E)}, v{t1}
    v_exp_f32 v{t1}, v{t1}
    v_mul_f32 v{t2}, {f2u(1.0/(2*math.pi))}, v{t2}
    v_rndne_f32 v{t3}, v{t2}
    v_sub_f32 v{t2}, v{t2}, v{t3}
    v_cos_f32 v{t3}, v{t2}
    v_sin_f32 v{t4}, v{t2}
    s_nop 0
    v_mul_f32 v{vAr}, v{t1}, v{t3}
    v_mul_f32 v{vAi}, v{t1}, v{t4}
    v_add_f32 v{t3}, -1.0, v{vAr}
    v_mul_f32 v{t4}, v{vLre}, v{vLre}
    v_fmac_f32 v{t4}, v{vLim}, v{vLim}
    v_rcp_f32 v{t4}, v{t4}
    v_mul_f32 v{t5}, v{t3}, v{vLre}
    v_fmac_f32 v{t5}, v{vAi}, v{vLim}
    v_mul_f32 v{t6}, v{vAi}, v{vLre}
    v_fma_f32 v{t6}, -v{t3}, v{vLim}, v{t6}
    v_add_f32 v{t4}, v{t4}, v{t4}
    v_mul_f32 v{vKr}, v{t5}, v{t4}
    v_mul_f32 v{vKi}, v{t6}, v{t4}
    v_mov_b32 v{vA16r}, v{vAr}
    v_mov_b32 v{vA16i}, v{vAi}""")

    def csq(r, i):
        a(f"""v_mul_f32 v{t0}, v{i}, v{i}
        v_mul_f32 v{t1}, v{r}, v{i}
        v_fma_f32 v{r}, v{r}, v{r}, -v{t0}
        v_add_f32 v{i}, v{t1}, v{t1}""")
    for _ in range(4):
        csq(vA16r, vA16i)
    a(f"v_mov_b32 v{vA128r}, v{vA16r}\nv_mov_b32 v{vA128i}, v{vA16i}")
    for _ in range(3):
        csq(vA128r, vA128i)


def s_epilogue1(a):
    zr = lambda j: vACC + j
    zi = lambda j: vACC + 16 + j
    T = vT
    s_params(a)
    a(f"""v_and_b32 v2, 31, v{vLANE}
    v_lshlrev_b32 v3, 2, v2
    v_add_u32 v3, {SCR}, v3
    ds_read_b32 v56, v3 offset:{SCR_CS}
    ds_read_b32 v57, v3 offset:{SCR_CS+128}
    v_lshrrev_b32 v3, 5, v{vLANE}           ; hf
    s_lshl_b32 s{sT0}, s{sRG}, 5
    v_lshlrev_b32 v{T}, 4, v3
    v_add_u32 v{T}, s{sT0}, v{T}
    v_lshlrev_b32 v{T}, 3, v{T}             ; *8 bytes
    v_add_u32 v{T}, {SCR}, v{T}""")
    for q in range(4):
        a(f"ds_read_b128 v[{T+1+0}:{T+4}], v{T} offset:{SCR_ST + q*32}" if False else f"ds_read_b128 v[58:61], v{T} offset:{SCR_ST + q*32}")
        a(f"ds_read_b128 v[{T+3}:{T+6}], v{T} offset:{SCR_ST + q*32 + 16}")
        a("s_waitcnt lgkmcnt(0)")
        st = [(58, 59), (60, 61), (T + 3, T + 4), (T + 5, T + 6)]
        for i in range(4):
            j = 4 * q + i
            ri, nm = st[i]
            a(f"""v_fma_f32 v{zr(j)}, v{nm}, v56, v{zr(j)}
            v_fma_f32 v{zi(j)}, v{nm}, v57, v{zi(j)}
            v_mul_f32 v{zr(j)}, v{zr(j)}, v{ri}
            v_mul_f32 v{zi(j)}, v{zi(j)}, v{ri}""")
    a.lg = []
    cur, alt = (T + 1, T + 2), (T + 7, T + 8)
    a(f"v_mov_b32 v{cur[0]}, v{zr(0)}\nv_mov_b32 v{cur[1]}, v{zi(0)}")
    for j in range(1, 16):
        sr, si = cur
        nr, ni = alt
        a(f"""v_fma_f32 v{nr}, v{vAr}, v{sr}, v{zr(j)}
        v_fma_f32 v{ni}, v{vAr}, v{si}, v{zi(j)}
        v_fma_f32 v{nr}, -v{vAi}, v{si}, v{nr}
        v_fma_f32 v{ni}, v{vAi}, v{sr}, v{ni}""")
        cur, alt = alt, cur
    assert cur == (T + 7, T + 8)
    assert (T + 7) % 2 == 0
    a(f"""s_lshl_b32 s{sT0}, s{sRG}, 1
    v_add_u32 v{T}, s{sT0}, v3
    v_lshlrev_b32 v{T}, 8, v{T}
    v_lshl_add_u32 v{T}, v2, 3, v{T}
    v_add_u32 v{T}, {SCR}, v{T}
    ds_write_b64 v{T}, v[{T+7}:{T+8}] offset:{SCR_ES}
    s_waitcnt lgkmcnt(0)""")


def s_publish(a):
    lab = a.newlab("PUB")
    T = vT
    lg_save = list(a.lg)
    a(f"""s_cmp_eq_u32 s{sRG}, 0
    s_cbranch_scc0 {lab}""")
    a(f"""s_waitcnt lgkmcnt(0)
    v_and_b32 v2, 31, v{vLANE}
    v_lshlrev_b32 v3, 3, v2
    v_add_u32 v3, {SCR}, v3
    ds_read_b64 v[{T+1}:{T+2}], v3 offset:{SCR_ES}""")
    assert (T + 1) % 2 == 0
    for s in range(1, 8):
        a(f"""ds_read_b64 v[{T+3}:{T+4}], v3 offset:{SCR_ES + s*256}
        s_waitcnt lgkmcnt(0)
        v_fma_f32 v{T+5}, v{vA16r}, v{T+1}, v{T+3}
        v_fma_f32 v{T+6}, v{vA16r}, v{T+2}, v{T+4}
        v_fma_f32 v{T+5}, -v{vA16i}, v{T+2}, v{T+5}
        v_fma_f32 v{T+2}, v{vA16i}, v{T+1}, v{T+6}
        v_mov_b32 v{T+1}, v{T+5}""")
    a(f"""v_mov_b32 v{T+3}, v{T+1}
    v_mov_b32 v{T+4}, s{sTAG}
    v_mov_b32 v{T+5}, v{T+2}
    v_mov_b32 v{T+6}, s{sTAG}
    s_lshl_b32 s{sT0}, s{sCG}, 5
    v_add_u32 v3, s{sT0}, v2
    v_lshlrev_b32 v3, 4, v3
    s_lshl_b32 s{sT0}, s{sRB}, 13
    s_add_u32 s{sT0}, s{sT0}, {WS_AGG}
    v_cmp_gt_u32 vcc, 32, v{vLANE}
    s_and_saveexec_b64 s[{sEX}:{sEX+1}], vcc
    buffer_store_dwordx4 v[{T+3}:{T+6}], v3, s[{SWS}:{SWS+3}], s{sT0} offen sc0 sc1
    s_mov_b64 exec, s[{sEX}:{sEX+1}]""")
    assert (T + 3) % 2 == 0
    a.label(lab)
    a.lg = lg_save


def s_phase2_work(a):
    zr = lambda j: vACC + j
    zi = lambda j: vACC + 16 + j
    T = vT
    G = 192
    lp, chk, got, hd = a.newlab("LB"), a.newlab("LBC"), a.newlab("LBG"), a.newlab("LBH")
    a(f"""v_and_b32 v2, 31, v{vLANE}
    s_lshl_b32 s{sT0}, s{sCG}, 5
    v_add_u32 v3, s{sT0}, v2
    v_lshlrev_b32 v3, 4, v3
    s_mov_b32 s{sSPIN}, 0""")
    a.label(lp)
    a(f"s_mov_b32 s{sT0}, {WS_AGG}")
    for c in range(15):
        a(f"buffer_load_dwordx4 v[{G+4*c}:{G+4*c+3}], v3, s[{SWS}:{SWS+3}], s{sT0} offen sc0 sc1")
        if c < 14:
            a(f"s_add_u32 s{sT0}, s{sT0}, 8192")
    a(f"v_lshlrev_b32 v{T}, 3, v2\nv_add_u32 v{T}, {SCR}, v{T}")
    EB = 96
    for s in range(8):
        a(f"ds_read_b64 v[{EB+2*s}:{EB+2*s+1}], v{T} offset:{SCR_ES + s*256}")
    a("s_waitcnt vmcnt(0) lgkmcnt(0)")
    a(f"s_mov_b64 s[{sMASK}:{sMASK+1}], 0")
    for c in range(15):
        a(f"""s_cmp_gt_u32 s{sRB}, {c}
        s_cbranch_scc0 {chk}
        v_cmp_ne_u32 vcc, s{sTAG}, v{G+4*c+1}
        s_or_b64 s[{sMASK}:{sMASK+1}], s[{sMASK}:{sMASK+1}], vcc
        v_cmp_ne_u32 vcc, s{sTAG}, v{G+4*c+3}
        s_or_b64 s[{sMASK}:{sMASK+1}], s[{sMASK}:{sMASK+1}], vcc""")
    a.label(chk)
    a(f"""s_cmp_eq_u64 s[{sMASK}:{sMASK+1}], 0
    s_cbranch_scc1 {got}
    s_add_u32 s{sSPIN}, s{sSPIN}, 1
    s_cmp_gt_u32 s{sSPIN}, {SPIN_MAX}
    s_cbranch_scc1 {got}
    s_sleep 1
    s_branch {lp}""")
    a.label(got)
    cr, ci = T + 1, T + 2
    a(f"v_mov_b32 v{cr}, 0\nv_mov_b32 v{ci}, 0")
    for c in range(15):
        a(f"""s_cmp_gt_u32 s{sRB}, {c}
        s_cbranch_scc0 {hd}
        v_fma_f32 v{T+3}, v{vA128r}, v{cr}, v{G+4*c}
        v_fma_f32 v{T+4}, v{vA128r}, v{ci}, v{G+4*c+2}
        v_fma_f32 v{T+3}, -v{vA128i}, v{ci}, v{T+3}
        v_fma_f32 v{ci}, v{vA128i}, v{cr}, v{T+4}
        v_mov_b32 v{cr}, v{T+3}""")
    a.label(hd)
    a(f"""v_lshrrev_b32 v{T+5}, 5, v{vLANE}
    s_lshl_b32 s{sT0}, s{sRG}, 1
    v_add_u32 v{T+5}, s{sT0}, v{T+5}       ; sigma""")
    for s in range(7):
        a(f"""v_fma_f32 v{T+3}, v{vA16r}, v{cr}, v{EB+2*s}
        v_fma_f32 v{T+4}, v{vA16r}, v{ci}, v{EB+2*s+1}
        v_fma_f32 v{T+3}, -v{vA16i}, v{ci}, v{T+3}
        v_fma_f32 v{T+4}, v{vA16i}, v{cr}, v{T+4}
        v_cmp_lt_u32 vcc, {s}, v{T+5}
        s_nop 1
        v_cndmask_b32 v{cr}, v{cr}, v{T+3}, vcc
        v_cndmask_b32 v{ci}, v{ci}, v{T+4}, vcc""")
    cur, alt = (cr, ci), (T + 3, T + 4)
    for j in range(16):
        sr, si = cur
        nr, ni = alt
        a(f"""v_fma_f32 v{nr}, v{vAr}, v{sr}, v{zr(j)}
        v_fma_f32 v{ni}, v{vAr}, v{si}, v{zi(j)}
        v_fma_f32 v{nr}, -v{vAi}, v{si}, v{nr}
        v_fma_f32 v{ni}, v{vAi}, v{sr}, v{ni}
        v_mul_f32 v{zr(j)}, v{vKr}, v{nr}
        v_mul_f32 v{zi(j)}, -v{vKr}, v{ni}
        v_fma_f32 v{zr(j)}, -v{vKi}, v{ni}, v{zr(j)}
        v_fma_f32 v{zi(j)}, -v{vKi}, v{nr}, v{zi(j)}""")
        cur, alt = alt, cur
    for j in range(0, 16, 2):
        a(f"v_cvt_pk_bf16_f32 v{G+j//2}, v{zr(j)}, v{zr(j+1)}")
        a(f"v_cvt_pk_bf16_f32 v{G+8+j//2}, v{zi(j)}, v{zi(j+1)}")
    a(f"""s_lshl_b32 s{sT0}, s{sRG}, 12
    s_add_u32 s{sT0}, s{sT0}, {SCR_T}
    v_lshrrev_b32 v{T+5}, 5, v{vLANE}
    v_lshlrev_b32 v{T+5}, 3, v{T+5}
    v_lshl_add_u32 v{T+5}, v2, 6, v{T+5}
    v_add_u32 v{T+5}, s{sT0}, v{T+5}""")
    for part in range(2):
        for q in range(4):
            r = G + 8 * part + 2 * q
            a(f"ds_write_b64 v{T+5}, v[{r}:{r+1}] offset:{part*2048 + q*16}")
    a(f"""v_lshrrev_b32 v{T+6}, 5, v{vLANE}
    v_lshlrev_b32 v{T+6}, 3, v{T+6}
    v_bfe_u32 v{T+7}, v{vLANE}, 2, 2
    v_add_u32 v{T+6}, v{T+6}, v{T+7}
    v_lshlrev_b32 v{T+6}, 6, v{T+6}
    v_bfe_u32 v{T+7}, v{vLANE}, 4, 1
    v_lshl_add_u32 v{T+6}, v{T+7}, 5, v{T+6}
    v_and_b32 v{T+7}, 3, v{vLANE}
    v_lshl_add_u32 v{T+6}, v{T+7}, 3, v{T+6}
    v_add_u32 v{T+6}, s{sT0}, v{T+6}
    s_waitcnt lgkmcnt(0)""")
    R = G + 16
    for part in range(2):
        for s2 in range(2):
            r = R + 8 * part + 4 * s2
            o = part * 2048 + s2 * 1024
            a(f"ds_read_b64_tr_b16 v[{r}:{r+1}], v{T+6} offset:{o}")
            a(f"ds_read_b64_tr_b16 v[{r+2}:{r+3}], v{T+6} offset:{o+256}")
    a(f"""s_lshl_b32 s{sT2}, s{sRB}, 2
    s_add_u32 s{sT2}, s{sT2}, s{sRG}
    s_mul_i32 s{sT2}, s{sT2}, {NKS}
    s_lshl_b32 s{sT3}, s{sCG}, 2
    s_add_u32 s{sT2}, s{sT2}, s{sT3}
    s_add_u32 s{sT2}, s{sT2}, 86
    s_lshl_b32 s{sT2}, s{sT2}, 10
    v_lshlrev_b32 v{T}, 4, v{vLANE}
    s_waitcnt lgkmcnt(0)""")
    for part in range(2):
        for s2 in range(2):
            r = R + 8 * part + 4 * s2
            a.vmop(f"buffer_store_dwordx4 v[{r}:{r+3}], v{T}, s[{SWS}:{SWS+3}], s{sT2} offen offset:{(2*part+s2)*1024} sc0 sc1", "h")
    a.lg = []


def phase2(a, ch, p2_A, p2_B):
    kh = ch
    vAA, vB0, vC0, vC1 = 4, 5, 6, 7
    vXO = 8
    vF = 128
    vAC = 160
    vEX = 192
    vDK = 9
    a(f"""s_lshl_b32 s{sT0}, s{sRT}, 13
    v_lshlrev_b32 v{vAA}, 4, v{vLANE}
    v_add_u32 v{vAA}, s{sT0}, v{vAA}
    v_add_u32 v{vAA}, {kh*4096}, v{vAA}
    v_lshrrev_b32 v2, 5, v{vLANE}
    v_lshlrev_b32 v2, 2, v2
    v_bfe_u32 v3, v{vLANE}, 2, 2
    v_add_u32 v2, v2, v3
    v_lshlrev_b32 v2, 7, v2
    v_bfe_u32 v3, v{vLANE}, 3, 1
    v_xor_b32 v3, s{sCT}, v3
    v_lshl_add_u32 v2, v3, 6, v2
    v_bfe_u32 v3, v{vLANE}, 4, 1
    v_lshl_add_u32 v2, v3, 5, v2
    v_and_b32 v3, 3, v{vLANE}
    v_lshl_add_u32 v2, v3, 3, v2
    v_add_u32 v{vB0}, {16384 + kh*8192}, v2
    v_and_b32 v2, 31, v{vLANE}
    v_bfe_u32 v3, v2, 1, 3
    v_lshrrev_b32 v{vT}, 5, v{vLANE}
    v_add_u32 v{vT}, {4*kh}, v{vT}
    v_xor_b32 v3, v3, v{vT}
    v_lshlrev_b32 v2, 7, v2
    v_lshl_add_u32 v2, v3, 4, v2
    s_lshl_b32 s{sT0}, s{sCT}, 12
    s_add_u32 s{sT0}, s{sT0}, 16384
    v_add_u32 v{vC0}, s{sT0}, v2
    v_xor_b32 v{vC1}, 32, v{vC0}
    v_lshrrev_b32 v2, 5, v{vLANE}
    v_lshlrev_b32 v2, 4, v2
    s_lshl_b32 s{sT0}, s{sRB2}, 6
    s_lshl_b32 s{sT1}, s{sRT}, 5
    s_add_u32 s{sT0}, s{sT0}, s{sT1}
    s_add_u32 s{sT0}, s{sT0}, {8*kh}
    v_add_u32 v2, s{sT0}, v2
    v_lshlrev_b32 v{vT+1}, 4, v2
    v_lshlrev_b32 v2, 9, v2
    v_and_b32 v3, 31, v{vLANE}
    s_lshl_b32 s{sT0}, s{sCB}, 6
    s_lshl_b32 s{sT1}, s{sCT}, 5
    s_add_u32 s{sT0}, s{sT0}, s{sT1}
    v_add_u32 v3, s{sT0}, v3
    v_add_u32 v2, v2, v3
    v_lshlrev_b32 v{vXO}, 1, v2
    v_lshlrev_b32 v3, 1, v3""")
    a(f"v_mov_b32 v10, v3\nv_mov_b32 v11, v{vT+1}")
    def epi_loads():
        a.vmop(f"buffer_load_ushort v{vDK}, v10, s[{ST}:{ST+3}], 0 offen", "epi")
        for k in range(8):
            ro = k * 1024
            so, io = (ro // 4096) * 4096, ro % 4096
            a(f"s_mov_b32 s{sT0}, {so}")
            a.vmop(f"buffer_load_ushort v{vEX+k}, v{vXO}, s[{SX}:{SX+3}], s{sT0} offen offset:{io}", "epi")
        a(f"s_mov_b32 s{sT0}, {WS_STAT}")
        for k in range(8):
            a.vmop(f"buffer_load_dword v{vEX+8+k}, v11, s[{SWS}:{SWS+3}], s{sT0} offen offset:{k*16} sc0 sc1", "epi")
            a.vmop(f"buffer_load_dword v{vEX+16+k}, v11, s[{SWS}:{SWS+3}], s{sT0} offen offset:{k*16+8} sc0 sc1", "epi")
    for i in range(16):
        a(f"v_mov_b32 v{vAC+i}, 0")
    a.vmwait_all()
    a("s_barrier")
    if ch == 0:
        lab = a.newlab("F1")
        a(f"s_cmp_eq_u32 s{sRG}, 0\ns_cbranch_scc0 {lab}")
        write_flag(a, 1)
        a.label(lab)
        a.vm = []
    stamp(a, 7)
    addr = [vAA, vB0, vC0, vC1]
    cur_hi = 0
    for st in range(NST2):
        g = NG1 + st
        slot = (g % NSLOT) * SLOT
        hi = slot >> 16
        lo = slot & 0xffff
        if ch == 1:
            a.vmwait(f"st{g}")
            a.vmwait(f"st{g}B")
            if st == 1:
                a(f"s_lshr_b32 s{sT5}, s{sRB2}, 1")
                lagain = list(a.vm)
                poll_flags(a, 1, sT5)
            if st == 8:
                a(f"s_lshr_b32 s{sT5}, s{sRB2}, 1")
                poll_flags(a, 2, sT5)
        else:
            if st == XS + 2:
                a.vmwait("h")
        a("s_barrier")
        if ch == 0 and st == XS + 2:
            lab = a.newlab("F2")
            a(f"s_cmp_eq_u32 s{sRG}, 0\ns_cbranch_scc0 {lab}")
            write_flag(a, 2)
            a.label(lab)
            a.vm = []
        if ch == 1 and st >= 1:
            n = st + 3
            if n < NST2:
                for code, tag in p2_B(n):
                    a.vmop(code, tag)
                for code, tag in p2_A(n):
                    a.vmop(code, tag)
        if hi != cur_hi:
            for r in addr:
                a(f"v_xor_b32 v{r}, 0x10000, v{r}")
            cur_hi = hi
        nvalid = 4
        if st == 10 and kh == 1:
            nvalid = 2
        if st < 11:
            for s in range(nvalid):
                f = vF + 8 * s
                a.ldsop(f"ds_read_b128 v[{f}:{f+3}], v{vAA} offset:{lo + s*1024}", f"r{s}")
                a.ldsop(f"ds_read_b64_tr_b16 v[{f+4}:{f+5}], v{vB0} offset:{lo + s*2048}", f"r{s}")
                a.ldsop(f"ds_read_b64_tr_b16 v[{f+6}:{f+7}], v{vB0} offset:{lo + s*2048+1024}", f"r{s}")
        else:
            for s in range(4):
                f = vF + 8 * s
                part, s2 = s >> 1, s & 1
                a.ldsop(f"ds_read_b128 v[{f}:{f+3}], v{vAA} offset:{lo + s*1024}", f"r{s}")
                a.ldsop(f"ds_read_b128 v[{f+4}:{f+7}], v{vC0+s2} offset:{lo + part*8192}", f"r{s}")
        for s in range(nvalid):
            f = vF + 8 * s
            a.lgwait(f"r{s}")
            a(f"v_mfma_f32_32x32x16_bf16 v[{vAC}:{vAC+15}], v[{f}:{f+3}], v[{f+4}:{f+7}], v[{vAC}:{vAC+15}]")
        if ch == 0 and st == XS:
            stamp(a, 8)
            if not X_NOS:
                s_phase2_work(a)
            stamp(a, 9)
        if st == XS + 3:
            epi_loads()
    stamp(a, 10)
    a(f"""s_nop 15
    s_barrier
    s_and_b32 s{sT0}, s{sW}, 3
    s_lshl_b32 s{sT0}, s{sT0}, 12
    v_lshlrev_b32 v{vT}, 4, v{vLANE}
    v_add_u32 v{vT}, s{sT0}, v{vT}""")
    R = vF
    if kh == 0:
        a(f"""ds_write_b128 v{vT}, v[{vAC+8}:{vAC+11}] offset:2048
        ds_write_b128 v{vT}, v[{vAC+12}:{vAC+15}] offset:3072
        s_waitcnt lgkmcnt(0)
        s_barrier
        ds_read_b128 v[{R}:{R+3}], v{vT}
        ds_read_b128 v[{R+4}:{R+7}], v{vT} offset:1024
        s_waitcnt lgkmcnt(0)""")
        for i in range(8):
            a(f"v_add_f32 v{R+i}, v{R+i}, v{vAC+i}")
    else:
        a(f"""ds_write_b128 v{vT}, v[{vAC}:{vAC+3}]
        ds_write_b128 v{vT}, v[{vAC+4}:{vAC+7}] offset:1024
        s_waitcnt lgkmcnt(0)
        s_barrier
        ds_read_b128 v[{R}:{R+3}], v{vT} offset:2048
        ds_read_b128 v[{R+4}:{R+7}], v{vT} offset:3072
        s_waitcnt lgkmcnt(0)""")
        for i in range(8):
            a(f"v_add_f32 v{R+i}, v{R+i}, v{vAC+8+i}")
    a("s_waitcnt vmcnt(0)")
    a.vm = []
    a(f"v_lshlrev_b32 v{vDK}, 16, v{vDK}\nv_lshlrev_b32 v{vT}, 1, v{vXO}")
    for k in range(8):
        x, m, s = vEX + k, vEX + 8 + k, vEX + 16 + k
        t = vT + 1
        a(f"""v_lshlrev_b32 v{x}, 16, v{x}
        v_rcp_f32 v{s}, v{s}
        v_sub_f32 v{t}, v{x}, v{m}""")
        rne_bf16(a, t)
        a(f"v_mul_f32 v{t}, v{t}, v{s}")
        rne_bf16(a, t)
        a(f"v_mul_f32 v{t}, v{t}, v{vDK}")
        rne_bf16(a, t)
        a(f"""v_add_f32 v{R+k}, v{R+k}, v{t}
        v_add_f32 v{R+k}, v{R+k}, v{x}""")
    for k in range(8):
        ro = k * 2048
        so, io = (ro // 4096) * 4096, ro % 4096
        a(f"s_mov_b32 s{sT0}, {so}")
        a(f"buffer_store_dword v{R+k}, v{vT}, s[{SO}:{SO+3}], s{sT0} offen offset:{io}")
    if ch == 0:
        lab = a.newlab("EP")
        a(f"""s_cmp_eq_u32 s{sRB2}, 31
        s_cbranch_scc0 {lab}
        s_cmp_eq_u32 s{sCB}, 0
        s_cbranch_scc0 {lab}
        s_cmp_eq_u32 s{sW}, 0
        s_cbranch_scc0 {lab}
        v_mov_b32 v2, s{sTAG}
        v_mov_b32 v3, 0
        s_mov_b32 s{sT0}, {WS_EPOCH}
        s_mov_b64 exec, 1
        buffer_store_dword v2, v3, s[{SWS}:{SWS+3}], s{sT0} offen sc0 sc1
        s_mov_b64 exec, -1""")
        a.label(lab)
    stamp(a, 11)
    if STAMPS:
        a("s_waitcnt vmcnt(0)")
        stamp(a, 12)
    stamp_flush(a, 13)
    a("s_endpgm")


if __name__ == "__main__":
    main(sys.argv[1] if len(sys.argv) > 1 else "cdna_kernels/" + NAME + ".s")
```

```python
import sys, math, struct, os

NAME = "parallel_sum__ssm_conv_s5__glu_gated_geglu__prompt"
KNAME = NAME + "_kernel"

E = lambda k, d: int(os.environ.get(k, str(d)))
STAMPS = E("STAMPS", 0)
SPIN_MAX = E("SPIN_MAX", 200000)
CODE_PREFETCH = E("CODE_PREFETCH", 1)
W2_PREFETCH = E("W2_PREFETCH", 1)
FILL = E("FILL", 7)
FILL0 = E("FILL0", 9)
LOOK = E("LOOK", 3)
A_TOUCH = E("A_TOUCH", 1)
E2_ST = E("E2_ST", 7)
E1_ST = E("E1_ST", 2)
X_NOMFMA = E("X_NOMFMA", 0)
X_NOREAD = E("X_NOREAD", 0)

NKS = 150
RT_STRIDE = NKS * 1024
WS_AGG = 0xA00000
WS_STAT = 0xA40000
WS_CS = 0xA80000
WS_FLG = 0xB00000
WS_EPOCH = 0xB10000
WS_DBG = 0xF00000
WS_SIZE = 0x10000000

LOG2E = 1.4426950408889634
SLOT = 32768
NSLOT = 4
SCR = NSLOT * SLOT
SCR_T = SCR
SCR_CS = 16384
SCR_ST = 17408
SCR_ES = 18432
LDS_BYTES = 163840
NST2 = 19
NBS, NAS = 3, 5
B_BASE, A_BASE = 0, 49152


def f2u(x):
    return struct.unpack("<I", struct.pack("<f", x))[0]


class A:
    def __init__(self):
        self.l = []
        self.nlab = 0
        self.vm = []
        self.nvm = 0
        self.lg = []
        self.fillq = []

    def __call__(self, s):
        for line in s.strip("\n").split("\n"):
            line = line.strip()
            if not line:
                continue
            if X_NOMFMA and line.startswith("v_mfma"):
                continue
            self.l.append("  " + line)

    def label(self, name):
        self.l.append(name + ":")

    def newlab(self, p="L"):
        self.nlab += 1
        return f"{p}_{self.nlab}"

    def vmop(self, s, tag, maybe=False):
        self(s)
        if not maybe:
            self.vm.append(tag)
            self.nvm += 1

    def vmwait(self, tag):
        idx = [i for i, t in enumerate(self.vm) if t == tag]
        if not idx:
            return
        n = len(self.vm) - 1 - idx[-1]
        assert n <= 63, n
        self(f"s_waitcnt vmcnt({n})")
        self.vm = self.vm[idx[-1] + 1:]

    def vmwait_all(self):
        self("s_waitcnt vmcnt(0)")
        self.vm = []

    def ldsop(self, s, tag):
        if X_NOREAD and tag[0] in "xwr":
            return
        self(s)
        self.lg.append(tag)
        assert len(self.lg) <= 30

    def lgwait(self, tag):
        idx = [i for i, t in enumerate(self.lg) if t == tag]
        if not idx:
            return
        n = len(self.lg) - 1 - idx[-1]
        n = min(n, 15)
        self(f"s_waitcnt lgkmcnt({n})")
        self.lg = self.lg[len(self.lg) - n:] if n else []

    def lgwait_all(self):
        self("s_waitcnt lgkmcnt(0)")
        self.lg = []

    def fill(self, n):
        while n > 0 and self.fillq:
            at = self.fillq.pop(0)
            k = at[0]
            if k == "v":
                self(at[1]); n -= 1
            elif k == "lds":
                self.ldsop(at[1], at[2]); n -= 1
            elif k == "lgw":
                self.lgwait(at[1])
            elif k == "vm":
                self.vmop(at[1], at[2], at[3]); n -= 1
            elif k == "call":
                at[1]()

    def fill_all(self):
        self.fill(10 ** 9)

    def text(self):
        return "\n".join(self.l) + "\n"


class Q:
    def __init__(self):
        self.q = []

    def __call__(self, s):
        for line in s.strip("\n").split("\n"):
            line = line.strip()
            if line:
                self.q.append(("v", line))

    def ldsop(self, s, tag):
        self.q.append(("lds", s, tag))

    def lgwait(self, tag):
        self.q.append(("lgw", tag))

    def vmop(self, s, tag, maybe=False):
        self.q.append(("vm", s, tag, maybe))


def srd(a, s, ptr_lo, nbytes):
    a(f"""s_mov_b32 s{s}, s{ptr_lo}
    s_and_b32 s{s+1}, s{ptr_lo+1}, 0xffff
    s_mov_b32 s{s+2}, {nbytes}
    s_mov_b32 s{s+3}, 0x20000""")


def rne_bf16(a, v):
    a(f"v_cvt_pk_bf16_f32 v{v}, v{v}, v{v}\nv_lshlrev_b32 v{v}, 16, v{v}")


def wave_sum(a, v, tmp_s):
    for ctrl in ("row_shr:1", "row_shr:2", "row_shr:4", "row_shr:8"):
        a(f"s_nop 1\nv_add_f32_dpp v{v}, v{v}, v{v} {ctrl} row_mask:0xf bank_mask:0xf")
    a(f"s_nop 1\nv_add_f32_dpp v{v}, v{v}, v{v} row_bcast:15 row_mask:0xa bank_mask:0xf")
    a(f"s_nop 1\nv_add_f32_dpp v{v}, v{v}, v{v} row_bcast:31 row_mask:0xc bank_mask:0xf")
    a(f"s_nop 1\nv_readlane_b32 s{tmp_s}, v{v}, 63")


SX, SS, SM, SWS, SWD, SC, SO, ST = 4, 8, 12, 16, 20, 24, 28, 32
sW, sRG, sRB, sCG = 36, 37, 38, 39
sKC0, sU0B, sDUM, sTAG = 72, 73, 74, 75
sT0, sT1, sT2, sT3, sT4, sT5 = 76, 77, 78, 79, 80, 81
sMX, sMS, sMU, sM1 = 82, 83, 84, 85
sCSM = 86
sRB2, sCB, sRT, sCT = 87, 88, 89, 90
sSPIN = 91
sEX = 92
sMASK = 94
sAOFF, sLW, s3RG, s2RG = 96, 97, 98, 99
sXB, sHPOS = 100, 101
SM2 = 68
STAMP0 = 40
P_X, P_LRE, P_LIM, P_BRE, P_BIM, P_CRE, P_CIM, P_LDT = 40, 42, 44, 46, 48, 50, 52, 54
P_DSK, P_BX, P_WG, P_WU, P_WD, P_OUT, P_DBG, P_WS = 56, 58, 60, 62, 64, 66, 68, 70

vLANE = 1
vXA = 4
vWS = 8
vWM = 8
vW1 = 12
vDX0, vDX1, vDS, vDM = 13, 14, 15, 16
vDS1 = 47
vT = 17
ONES = 28
vAr, vAi, vKr, vKi, vA16r, vA16i, vA128r, vA128i = 32, 33, 34, 35, 36, 37, 38, 39
vRINV, vNM = 40, 41
vDA, vDB, vDC0, vDC1 = 42, 43, 44, 45
vK1, vCA = 46, 47
vFR = 48
vACC = 64
vACC2 = 96
vXF = 128
CSACC = 96
GATH0 = 112
CS1ACC = 128
GATH1 = 144
JUNK = 255


def stamp(a, i):
    if STAMPS:
        a(f"s_memrealtime s[{STAMP0+2*i}:{STAMP0+2*i+1}]")


def stamp_flush(a, n):
    if not STAMPS:
        return
    a("s_waitcnt lgkmcnt(0)")
    a(f"s_lshl_b32 s{sT0}, s2, 3\ns_add_u32 s{sT0}, s{sT0}, s{sW}\ns_lshl_b32 s{sT0}, s{sT0}, 6\ns_add_u32 s{sT0}, s{sT0}, {WS_DBG}")
    a("v_mov_b32 v3, 0")
    for i in range(n):
        a(f"v_mov_b32 v2, s{STAMP0+2*i}")
        a(f"buffer_store_dword v2, v3, s[{SWS}:{SWS+3}], s{sT0} offen offset:{4*i}")


def dma_p0(s):
    slot = (s % NSLOT) * SLOT
    it = []
    pre = f"""s_add_u32 s{sT0}, s{sKC0}, {s}
    s_and_b32 s{sT0}, s{sT0}, 7
    s_lshl_b32 s{sT3}, s{sT0}, 7
    s_mul_i32 s{sT2}, s{sT0}, {64*2752}
    s_add_u32 s{sT2}, s{sT2}, s{sU0B}
    s_add_u32 s{sT4}, s{sT3}, 16384
    """
    for i in range(4):
        vd = vDX0 if i % 2 == 0 else vDX1
        so = sT3 if i < 2 else sT4
        it.append(((pre if i == 0 else "") + f"""s_add_u32 m0, s{sLW}, {slot + i*1024}
        s_nop 0
        buffer_load_dwordx4 v{vd}, s[{SX}:{SX+3}], s{so} offen lds""", f"st{s}"))
    for i in range(2):
        vd = vDS if i == 0 else vDS1
        it.append((f"""s_add_u32 m0, s{sMS}, {slot + i*1024}
        s_nop 0
        buffer_load_dwordx4 v{vd}, s[{SS}:{SS+3}], s{sT3} offen lds""", f"st{s}"))
    for mat in range(2):
        sr = SM if mat == 0 else SM2
        it.append((f"""s_add_u32 m0, s{sM1}, {slot + 24576 + mat*4096}
        s_nop 0
        buffer_load_dwordx4 v{vDM}, s[{sr}:{sr+3}], s{sT2} offen lds""", f"st{s}"))
    return it


def dma_p1(t):
    g = 8 + t
    slot = (g % NSLOT) * SLOT
    it = []
    for c2 in range(2):
        pre = f"""s_add_u32 s{sT0}, s{sKC0}, {2*t+c2}
        s_and_b32 s{sT0}, s{sT0}, 7
        s_mul_i32 s{sT2}, s{sT0}, {64*2752}
        s_add_u32 s{sT2}, s{sT2}, s{sU0B}
        s_add_u32 s{sT2}, s{sT2}, 64
        s_add_u32 s{sT3}, s{sT2}, s{sDUM}
        """
        for mat in range(2):
            sr = SM if mat == 0 else SM2
            for j in range(2):
                so = sT2 if j == 0 else sT3
                it.append(((pre if (mat == 0 and j == 0) else "") + f"""s_add_u32 m0, s{sM1}, {slot + c2*16384 + j*8192 + mat*4096}
                s_nop 0
                buffer_load_dwordx4 v{vDM}, s[{sr}:{sr+3}], s{so} offen lds""", f"st{g}"))
    return it


def p2_A(st):
    slot = ((12 + st) % NSLOT) * SLOT
    ks0 = 8 * st if st < 11 else 8 * st - 2
    it = []
    for i in range(4):
        it.append((f"""s_add_u32 s{sT1}, s{sAOFF}, {(ks0+i)*1024}
        s_add_u32 m0, s{sLW}, {slot + i*1024}
        s_nop 0
        buffer_load_dwordx4 v{vDA}, s[{SWS}:{SWS+3}], s{sT1} offen sc0 sc1 lds""", f"A{st}"))
    return it


def p2_B(st):
    slot = ((12 + st) % NSLOT) * SLOT + 16384
    it = []
    if st < 11:
        if st < 3:
            reg, c = s3RG, 3 * 4 * st
        elif st == 3:
            reg, c = s2RG, 2 * 12 + 11
        elif st < 7:
            reg, c = s3RG, 3 * 4 * (st - 4) + 1
        elif st == 7:
            reg, c = s2RG, 2 * 12 + 11 + 1
        else:
            reg, c = s3RG, 3 * 4 * (st - 8) + 2
        for i in range(4):
            it.append((f"""s_add_u32 s{sT1}, s{reg}, {c*32768 + i*8192}
            s_add_u32 m0, s{sLW}, {slot + i*1024}
            s_nop 0
            buffer_load_dwordx4 v{vDB}, s[{SWD}:{SWD+3}], s{sT1} offen lds""", f"B{st}"))
    else:
        j = st - 11
        for i in range(4):
            vd = vDC0 if i % 2 == 0 else vDC1
            it.append((f"""s_add_u32 s{sT1}, s{sXB}, {j*128 + i*8192}
            s_add_u32 m0, s{sLW}, {slot + i*1024}
            s_nop 0
            buffer_load_dwordx4 v{vd}, s[{SC}:{SC+3}], s{sT1} offen lds""", f"B{st}"))
    return it


def main(out_path):
    a = A()
    gen(a)
    ref = open("cdna_kernels/" + NAME + ".s.ref").read()
    head = []
    for line in ref.splitlines():
        if line.startswith(";") and "@launch" not in line and "Override" not in line and "grid=ceil" not in line:
            head.append(line)
        elif not line.startswith(";"):
            break
    txt = "\n".join(head) + "\n"
    txt += f"; @launch grid=(256,1,1) block=(512,1,1) lds={LDS_BYTES}\n"
    txt += '.amdgcn_target "amdgcn-amd-amdhsa--gfx950"\n.text\n'
    txt += f".globl {KNAME}\n.p2align 8\n.type {KNAME},@function\n{KNAME}:\n"
    txt += a.text()
    txt += f""".section .rodata,"a"
.p2align 6
.amdhsa_kernel {KNAME}
  .amdhsa_next_free_vgpr 256
  .amdhsa_next_free_sgpr 102
  .amdhsa_accum_offset 256
  .amdhsa_group_segment_fixed_size 0
  .amdhsa_kernarg_size 128
  .amdhsa_user_sgpr_count 2
  .amdhsa_user_sgpr_kernarg_segment_ptr 1
  .amdhsa_system_sgpr_workgroup_id_x 1
.end_amdhsa_kernel
"""
    open(out_path, "w").write(txt)


def flag_load(a, ev, rb_s, vdst, tag):
    a(f"""s_lshl_b32 s{sT0}, s{rb_s}, 8
    s_add_u32 s{sT0}, s{sT0}, {WS_FLG + ev*64}
    v_and_b32 v{vdst}, 15, v{vLANE}
    v_lshlrev_b32 v{vdst}, 2, v{vdst}""")
    a.vmop(f"buffer_load_dword v{vdst}, v{vdst}, s[{SWS}:{SWS+3}], s{sT0} offen sc0 sc1", tag)


PRG = (252, 253, 254)


FLG_OFF = {0: 0, 1: 512, 2: 1024}


def poll_flags(a, ev):
    lp, ok = a.newlab("PF"), a.newlab("PFOK")
    wide = (ev == 1)
    a(f"""s_lshr_b32 s{sT0}, s{sRB2}, 1
    s_lshl_b32 s{sT0}, s{sT0}, 11
    s_add_u32 s{sT0}, s{sT0}, {WS_FLG + FLG_OFF[ev]}
    v_lshlrev_b32 v{vT}, {3 if wide else 2}, v{vLANE}
    s_mov_b32 s{sSPIN}, 0""")
    regs = [(248, 249), (250, 251), (252, 253)]
    ld = (lambda r: f"buffer_load_dwordx2 v[{r[0]}:{r[1]}], v{vT}, s[{SWS}:{SWS+3}], s{sT0} offen sc0 sc1") if wide else \
         (lambda r: f"buffer_load_dword v{r[0]}, v{vT}, s[{SWS}:{SWS+3}], s{sT0} offen sc0 sc1")
    for r in regs:
        a(ld(r) + "\ns_sleep 2")
    a.label(lp)
    for r in regs:
        nx = a.newlab("PFN")
        a(f"""s_waitcnt vmcnt(2)
        v_cmp_ne_u32 vcc, s{sTAG}, v{r[0]}
        s_add_u32 s{sSPIN}, s{sSPIN}, 1""")
        if wide:
            a(f"""s_cbranch_vccnz {nx}
            v_cmp_ne_u32 vcc, s{sTAG}, v{r[1]}
            s_nop 0
            s_cbranch_vccz {ok}""")
            a.label(nx)
        else:
            a(f"s_cbranch_vccz {ok}")
        a(ld(r))
    a(f"""s_cmp_gt_u32 s{sSPIN}, {SPIN_MAX}
    s_cbranch_scc0 {lp}""")
    a.label(ok)


def touch_A(a, ev):
    if not A_TOUCH:
        return
    k0, nl = {0: (0, 64), 1: (32, 108), 2: (86, 128)}[ev]
    a(f"""s_lshr_b32 s{sT0}, s{sCB}, 2
    s_lshl_b32 s{sT1}, s{sRB2}, 1
    s_add_u32 s{sT0}, s{sT0}, s{sT1}
    s_mul_i32 s{sT0}, s{sT0}, {RT_STRIDE}
    s_and_b32 s{sT1}, s{sCB}, 3
    s_mul_i32 s{sT1}, s{sT1}, {nl*128}
    s_add_u32 s{sT0}, s{sT0}, s{sT1}
    s_add_u32 s{sT0}, s{sT0}, {k0*1024}
    v_lshlrev_b32 v{vT+1}, 7, v{vLANE}
    buffer_load_dword v{JUNK}, v{vT+1}, s[{SWS}:{SWS+3}], s{sT0} offen sc1""")
    if nl > 64:
        a(f"s_add_u32 s{sT0}, s{sT0}, 8192")
        if nl < 128:
            a(f"""v_cmp_gt_u32 vcc, {nl-64}, v{vLANE}
            s_and_saveexec_b64 s[{sEX}:{sEX+1}], vcc
            buffer_load_dword v{JUNK}, v{vT+1}, s[{SWS}:{SWS+3}], s{sT0} offen sc1
            s_mov_b64 exec, s[{sEX}:{sEX+1}]""")
        else:
            a(f"buffer_load_dword v{JUNK}, v{vT+1}, s[{SWS}:{SWS+3}], s{sT0} offen sc1")


def write_flag(a, ev, ch):
    sh = 5 if ev == 1 else 4
    a(f"""s_lshl_b32 s{sT0}, s{sRB}, 11
    s_lshl_b32 s{sT1}, s{sCG}, {sh}
    s_add_u32 s{sT0}, s{sT0}, s{sT1}
    s_lshl_b32 s{sT1}, s{sW if ev == 1 else sRG}, 2
    s_add_u32 s{sT0}, s{sT0}, s{sT1}
    s_add_u32 s{sT0}, s{sT0}, {WS_FLG + FLG_OFF[ev]}
    v_mov_b32 v{vT+9}, 0
    v_mov_b32 v{vT+10}, s{sTAG}
    s_mov_b64 s[{sEX}:{sEX+1}], exec
    s_mov_b64 exec, 1""")
    a.vmop(f"buffer_store_dword v{vT+10}, v{vT+9}, s[{SWS}:{SWS+3}], s{sT0} offen sc0 sc1", "flag")
    a(f"s_mov_b64 exec, s[{sEX}:{sEX+1}]")


def only_rg(a, rg, fn):
    lab = a.newlab("RG")
    a(f"s_cmp_eq_u32 s{sRG}, {rg}\ns_cbranch_scc0 {lab}")
    lg = list(a.lg)
    fn()
    a.label(lab)
    a.lg = lg


def colsum_mfma(a, wf0, wf1, accreg, first=False):
    l1, l2 = a.newlab("CS"), a.newlab("CS")
    c = "0" if first else f"v[{accreg}:{accreg+15}]"
    a(f"""s_cmp_eq_u32 s{sCSM}, 0
    s_cbranch_scc1 {l2}
    s_cmp_eq_u32 s{sCSM}, 1
    s_cbranch_scc0 {l1}
    v_mfma_f32_32x32x16_bf16 v[{accreg}:{accreg+15}], v[{ONES}:{ONES+3}], v[{wf0}:{wf0+3}], {c}
    s_branch {l2}""")
    a.label(l1)
    a(f"v_mfma_f32_32x32x16_bf16 v[{accreg}:{accreg+15}], v[{ONES}:{ONES+3}], v[{wf1}:{wf1+3}], {c}")
    a.label(l2)


def colsum_store(a, accreg, unit, koff=0):
    l2 = a.newlab("CSS")
    a(f"""s_cmp_eq_u32 s{sCSM}, 0
    s_cbranch_scc1 {l2}
    s_nop 7
    s_nop 7
    s_add_u32 s{sT1}, s{sKC0}, {koff}
    s_and_b32 s{sT1}, s{sT1}, 7
    s_lshl_b32 s{sT0}, s{sCG}, 3
    s_add_u32 s{sT0}, s{sT0}, s{sT1}
    s_lshl_b32 s{sT0}, s{sT0}, 11
    s_sub_u32 s{sT1}, s{sCSM}, 1
    s_lshl_b32 s{sT1}, s{sT1}, 8
    s_add_u32 s{sT0}, s{sT0}, s{sT1}
    s_add_u32 s{sT0}, s{sT0}, {WS_CS + unit*512}
    v_mov_b32 v{accreg+1}, s{sTAG}
    v_lshlrev_b32 v{accreg+2}, 3, v{vLANE}
    v_cmp_gt_u32 vcc, 32, v{vLANE}
    s_and_saveexec_b64 s[{sEX}:{sEX+1}], vcc
    buffer_store_dwordx2 v[{accreg}:{accreg+1}], v{accreg+2}, s[{SWS}:{SWS+3}], s{sT0} offen sc0 sc1
    s_mov_b64 exec, s[{sEX}:{sEX+1}]""")
    a.label(l2)


def gather_loads(a, part, dst, atmp):
    l1, l2 = a.newlab("G"), a.newlab("G")
    a(f"""s_cmp_lt_u32 s{sRG}, 2
    s_cbranch_scc0 {l1}
    s_lshl_b32 s{sT0}, s{sCG}, 14
    s_add_u32 s{sT0}, s{sT0}, {WS_CS + part*1024}
    s_lshl_b32 s{sT1}, s{sRG}, 9
    s_add_u32 s{sT0}, s{sT0}, s{sT1}
    v_lshlrev_b32 v{atmp}, 3, v{vLANE}""")
    for j in range(8):
        so, io = (j * 2048 // 4096) * 4096, (j * 2048) % 4096
        a(f"s_add_u32 s{sT1}, s{sT0}, {so}")
        a(f"buffer_load_dwordx2 v[{dst+2*j}:{dst+2*j+1}], v{atmp}, s[{SWS}:{SWS+3}], s{sT1} offen offset:{io} sc0 sc1")
    a(f"s_branch {l2}")
    a.label(l1)
    if part == 0:
        a(f"""s_lshl_b32 s{sT0}, s{sRB}, 11
        s_sub_u32 s{sT1}, s{sRG}, 2
        s_lshl_b32 s{sT1}, s{sT1}, 10
        s_add_u32 s{sT0}, s{sT0}, s{sT1}
        s_add_u32 s{sT0}, s{sT0}, {WS_STAT}
        v_lshlrev_b32 v{atmp}, 4, v{vLANE}
        buffer_load_dwordx4 v[{dst}:{dst+3}], v{atmp}, s[{SWS}:{SWS+3}], s{sT0} offen sc0 sc1""")
    a.label(l2)


def gather_finish(a, part, dst, nyounger, atmp):
    lr, l1, l2, lok, lok2, l0 = [a.newlab("GF") for _ in range(6)]
    a(f"s_mov_b32 s{sSPIN}, 0")
    a(f"s_waitcnt vmcnt({nyounger})")
    a(f"s_branch {l0}")
    a.label(lr)
    a("s_waitcnt vmcnt(0)")
    a.label(l0)
    a(f"""s_cmp_lt_u32 s{sRG}, 2
    s_cbranch_scc0 {l1}
    s_mov_b64 s[{sMASK}:{sMASK+1}], 0""")
    for j in range(8):
        a(f"""v_cmp_ne_u32 vcc, s{sTAG}, v{dst+2*j+1}
        s_or_b64 s[{sMASK}:{sMASK+1}], s[{sMASK}:{sMASK+1}], vcc""")
    a(f"""s_cmp_eq_u64 s[{sMASK}:{sMASK+1}], 0
    s_cbranch_scc1 {lok}
    s_add_u32 s{sSPIN}, s{sSPIN}, 1
    s_cmp_gt_u32 s{sSPIN}, {SPIN_MAX}
    s_cbranch_scc1 {lok}""")
    gather_loads(a, part, dst, atmp)
    a(f"s_branch {lr}")
    a.label(lok)
    a(f"""v_add_f32 v{dst}, v{dst}, v{dst+2}
    v_add_f32 v{dst+4}, v{dst+4}, v{dst+6}
    v_add_f32 v{dst+8}, v{dst+8}, v{dst+10}
    v_add_f32 v{dst+12}, v{dst+12}, v{dst+14}
    v_add_f32 v{dst}, v{dst}, v{dst+4}
    v_add_f32 v{dst+8}, v{dst+8}, v{dst+12}
    v_add_f32 v{dst}, v{dst}, v{dst+8}
    s_lshl_b32 s{sT0}, s{sRG}, 8
    s_add_u32 s{sT0}, s{sT0}, {SCR}
    v_lshlrev_b32 v{atmp}, 2, v{vLANE}
    v_add_u32 v{atmp}, s{sT0}, v{atmp}
    ds_write_b32 v{atmp}, v{dst} offset:{SCR_CS + part*512}
    s_branch {l2}""")
    a.label(l1)
    if part == 0:
        a(f"""v_cmp_ne_u32 vcc, s{sTAG}, v{dst+1}
        s_mov_b64 s[{sMASK}:{sMASK+1}], vcc
        v_cmp_ne_u32 vcc, s{sTAG}, v{dst+3}
        s_or_b64 s[{sMASK}:{sMASK+1}], s[{sMASK}:{sMASK+1}], vcc
        s_cmp_eq_u64 s[{sMASK}:{sMASK+1}], 0
        s_cbranch_scc1 {lok2}
        s_add_u32 s{sSPIN}, s{sSPIN}, 1
        s_cmp_gt_u32 s{sSPIN}, {SPIN_MAX}
        s_cbranch_scc1 {lok2}""")
        gather_loads(a, part, dst, atmp)
        a(f"s_branch {lr}")
        a.label(lok2)
        a(f"""v_rcp_f32 v{dst+2}, v{dst+2}
        v_sub_f32 v{dst+3}, 0, v{dst}
        s_sub_u32 s{sT0}, s{sRG}, 2
        s_lshl_b32 s{sT0}, s{sT0}, 9
        s_add_u32 s{sT0}, s{sT0}, {SCR}
        v_lshlrev_b32 v{atmp}, 3, v{vLANE}
        v_add_u32 v{atmp}, s{sT0}, v{atmp}
        ds_write_b64 v{atmp}, v[{dst+2}:{dst+3}] offset:{SCR_ST}""")
    a.label(l2)
    a.lgwait_all()


def row_stats_M(q, tmp):
    q(f"""v_and_b32 v{tmp}, 31, v{vLANE}
    v_bfe_u32 v{tmp+1}, v{tmp}, 2, 1
    v_lshlrev_b32 v{tmp+1}, 4, v{tmp+1}
    v_lshrrev_b32 v{tmp+2}, 3, v{tmp}
    v_lshl_add_u32 v{tmp+1}, v{tmp+2}, 2, v{tmp+1}
    v_and_b32 v{tmp+2}, 3, v{tmp}
    v_add_u32 v{tmp+1}, v{tmp+1}, v{tmp+2}
    v_lshlrev_b32 v{tmp+2}, 5, v{vRGV}
    v_add_u32 v{tmp+1}, v{tmp+2}, v{tmp+1}
    v_lshlrev_b32 v{tmp+1}, 3, v{tmp+1}
    v_add_u32 v{tmp+1}, {SCR}, v{tmp+1}""")
    q.ldsop(f"ds_read_b64 v[{vRINV}:{vRINV+1}], v{tmp+1} offset:{SCR_ST}", "rs")
    q.lgwait("rs")


vRGV = 2


def gelu_epi(q, acc, pos_s, cs_off, tagname, csr, T, maybe=False):
    K0 = -2.0 * math.sqrt(2.0 / math.pi) * LOG2E
    K1c = K0 * 0.044715
    q(f"""v_mov_b32 v{vK1}, {f2u(K1c)}
    v_lshrrev_b32 v{vCA}, 5, v{vLANE}
    v_lshlrev_b32 v{vCA}, 4, v{vCA}
    v_add_u32 v{vCA}, {SCR + SCR_CS + cs_off}, v{vCA}""")
    cg_, cu_ = csr, csr + 4
    for qq in range(4):
        q.ldsop(f"ds_read_b128 v[{cg_}:{cg_+3}], v{vCA} offset:{qq*32}", "cs")
        q.ldsop(f"ds_read_b128 v[{cu_}:{cu_+3}], v{vCA} offset:{128 + qq*32}", "cs")
        q.lgwait("cs")
        rs = [4 * qq + i for i in range(4)]
        for i, r in enumerate(rs):
            q(f"v_fma_f32 v{acc+r}, v{vNM}, v{cg_+i}, v{acc+r}")
        for i, r in enumerate(rs):
            q(f"v_fma_f32 v{acc+16+r}, v{vNM}, v{cu_+i}, v{acc+16+r}")
        for i, r in enumerate(rs):
            q(f"v_mul_f32 v{acc+r}, v{acc+r}, v{vRINV}")
        for i, r in enumerate(rs):
            q(f"v_mul_f32 v{T+i}, v{acc+r}, v{acc+r}")
        for i, r in enumerate(rs):
            q(f"v_fmaak_f32 v{T+i}, v{vK1}, v{T+i}, {f2u(K0)}")
        for i, r in enumerate(rs):
            q(f"v_mul_f32 v{T+i}, v{T+i}, v{acc+r}")
        for i, r in enumerate(rs):
            q(f"v_exp_f32 v{T+i}, v{T+i}")
        for i, r in enumerate(rs):
            q(f"v_mul_f32 v{T+4+i}, v{acc+r}, v{acc+16+r}")
        for i, r in enumerate(rs):
            q(f"v_add_f32 v{T+i}, 1.0, v{T+i}")
        for i, r in enumerate(rs):
            q(f"v_rcp_f32 v{T+i}, v{T+i}")
        for i, r in enumerate(rs):
            q(f"v_mul_f32 v{T+4+i}, v{T+4+i}, v{vRINV}")
        for i, r in enumerate(rs):
            q(f"v_mul_f32 v{T+i}, v{T+i}, v{T+4+i}")
        q(f"v_cvt_pk_bf16_f32 v{acc+2*qq}, v{T}, v{T+1}\nv_cvt_pk_bf16_f32 v{acc+2*qq+1}, v{T+2}, v{T+3}")
    q(f"v_lshlrev_b32 v{T}, 4, v{vLANE}")
    q.vmop(f"buffer_store_dwordx4 v[{acc}:{acc+3}], v{T}, s[{SWS}:{SWS+3}], s{pos_s} offen sc0 sc1", tagname, maybe)
    q.vmop(f"buffer_store_dwordx4 v[{acc+4}:{acc+7}], v{T}, s[{SWS}:{SWS+3}], s{pos_s} offen offset:1024 sc0 sc1", tagname, maybe)


def s_params(q):
    vLre, vLim, vLdt = 4, 5, 6
    t0, t1, t2, t3, t4, t5, t6 = [vT + i for i in range(7)]
    q(f"""v_lshlrev_b32 v{vLre}, 16, v{vA16r}
    v_lshlrev_b32 v{vLim}, 16, v{vA16i}
    v_lshlrev_b32 v{vLdt}, 16, v{vA128r}
    v_mul_f32 v{t0}, {f2u(LOG2E)}, v{vLdt}
    v_exp_f32 v{t0}, v{t0}
    s_nop 0""")
    rne_bf16(q, t0)
    q(f"""v_mul_f32 v{t1}, v{t0}, v{vLre}
    v_mul_f32 v{t2}, v{t0}, v{vLim}
    v_mul_f32 v{t1}, {f2u(LOG2E)}, v{t1}
    v_exp_f32 v{t1}, v{t1}
    v_mul_f32 v{t2}, {f2u(1.0/(2*math.pi))}, v{t2}
    v_rndne_f32 v{t3}, v{t2}
    v_sub_f32 v{t2}, v{t2}, v{t3}
    v_cos_f32 v{t3}, v{t2}
    v_sin_f32 v{t4}, v{t2}
    s_nop 0
    v_mul_f32 v{vAr}, v{t1}, v{t3}
    v_mul_f32 v{vAi}, v{t1}, v{t4}
    v_add_f32 v{t3}, -1.0, v{vAr}
    v_mul_f32 v{t4}, v{vLre}, v{vLre}
    v_fmac_f32 v{t4}, v{vLim}, v{vLim}
    v_rcp_f32 v{t4}, v{t4}
    v_mul_f32 v{t5}, v{t3}, v{vLre}
    v_fmac_f32 v{t5}, v{vAi}, v{vLim}
    v_mul_f32 v{t6}, v{vAi}, v{vLre}
    v_fma_f32 v{t6}, -v{t3}, v{vLim}, v{t6}
    v_add_f32 v{t4}, v{t4}, v{t4}
    v_mul_f32 v{vKr}, v{t5}, v{t4}
    v_mul_f32 v{vKi}, v{t6}, v{t4}
    v_mov_b32 v{vA16r}, v{vAr}
    v_mov_b32 v{vA16i}, v{vAi}""")

    def csq(r, i):
        q(f"""v_mul_f32 v{t0}, v{i}, v{i}
        v_mul_f32 v{t1}, v{r}, v{i}
        v_fma_f32 v{r}, v{r}, v{r}, -v{t0}
        v_add_f32 v{i}, v{t1}, v{t1}""")
    for _ in range(4):
        csq(vA16r, vA16i)
    q(f"v_mov_b32 v{vA128r}, v{vA16r}\nv_mov_b32 v{vA128i}, v{vA16i}")
    for _ in range(3):
        csq(vA128r, vA128i)


def s_epilogue1(q):
    zr = lambda j: vACC + j
    zi = lambda j: vACC + 16 + j
    T = vT
    s_params(q)
    CR, CI = T + 9, T + 10
    q(f"""v_and_b32 v{T}, 31, v{vLANE}
    v_lshlrev_b32 v{T+1}, 2, v{T}
    v_add_u32 v{T+1}, {SCR}, v{T+1}""")
    q.ldsop(f"ds_read_b32 v{CR}, v{T+1} offset:{SCR_CS}", "sc")
    q.ldsop(f"ds_read_b32 v{CI}, v{T+1} offset:{SCR_CS+128}", "sc")
    q(f"""v_lshrrev_b32 v{T+2}, 5, v{vLANE}
    v_lshlrev_b32 v{T+3}, 5, v{vRGV}
    v_lshl_add_u32 v{T+3}, v{T+2}, 4, v{T+3}
    v_lshlrev_b32 v{T+3}, 3, v{T+3}
    v_add_u32 v{T+3}, {SCR}, v{T+3}""")
    for qq in range(4):
        q.ldsop(f"ds_read_b128 v[4:7], v{T+3} offset:{SCR_ST + qq*32}", "sc")
        q.ldsop(f"ds_read_b128 v[8:11], v{T+3} offset:{SCR_ST + qq*32 + 16}", "sc")
        q.lgwait("sc")
        for i in range(4):
            j = 4 * qq + i
            ri, nm = 4 + 2 * i, 5 + 2 * i
            q(f"""v_fma_f32 v{zr(j)}, v{nm}, v{CR}, v{zr(j)}
            v_fma_f32 v{zi(j)}, v{nm}, v{CI}, v{zi(j)}
            v_mul_f32 v{zr(j)}, v{zr(j)}, v{ri}
            v_mul_f32 v{zi(j)}, v{zi(j)}, v{ri}""")
    cur, alt = (T + 4, T + 5), (T + 7, T + 8)
    q(f"v_mov_b32 v{cur[0]}, v{zr(0)}\nv_mov_b32 v{cur[1]}, v{zi(0)}")
    for j in range(1, 16):
        sr, si = cur
        nr, ni = alt
        q(f"""v_fma_f32 v{nr}, v{vAr}, v{sr}, v{zr(j)}
        v_fma_f32 v{ni}, v{vAr}, v{si}, v{zi(j)}
        v_fma_f32 v{nr}, -v{vAi}, v{si}, v{nr}
        v_fma_f32 v{ni}, v{vAi}, v{sr}, v{ni}""")
        cur, alt = alt, cur
    assert cur == (T + 7, T + 8) and (T + 7) % 2 == 0
    q(f"""v_lshlrev_b32 v{T+1}, 1, v{vRGV}
    v_add_u32 v{T+1}, v{T+1}, v{T+2}
    v_lshlrev_b32 v{T+1}, 8, v{T+1}
    v_lshl_add_u32 v{T+1}, v{T}, 3, v{T+1}
    v_add_u32 v{T+1}, {SCR}, v{T+1}""")
    q.ldsop(f"ds_write_b64 v{T+1}, v[{T+7}:{T+8}] offset:{SCR_ES}", "ew")


def s_publish(a):
    T = vT
    a(f"""s_waitcnt lgkmcnt(0)
    v_and_b32 v{T}, 31, v{vLANE}
    v_lshlrev_b32 v{T+1}, 3, v{T}
    v_add_u32 v{T+1}, {SCR}, v{T+1}
    ds_read_b64 v[4:5], v{T+1} offset:{SCR_ES}
    ds_read_b64 v[6:7], v{T+1} offset:{SCR_ES+256}
    ds_read_b64 v[8:9], v{T+1} offset:{SCR_ES+512}
    ds_read_b64 v[10:11], v{T+1} offset:{SCR_ES+768}
    s_waitcnt lgkmcnt(0)""")

    def step(er, ei):
        a(f"""v_fma_f32 v{T+2}, v{vA16r}, v4, v{er}
        v_fma_f32 v{T+3}, v{vA16r}, v5, v{ei}
        v_fma_f32 v{T+2}, -v{vA16i}, v5, v{T+2}
        v_fma_f32 v5, v{vA16i}, v4, v{T+3}
        v_mov_b32 v4, v{T+2}""")
    step(6, 7); step(8, 9); step(10, 11)
    a(f"""ds_read_b64 v[6:7], v{T+1} offset:{SCR_ES+1024}
    ds_read_b64 v[8:9], v{T+1} offset:{SCR_ES+1280}
    ds_read_b64 v[10:11], v{T+1} offset:{SCR_ES+1536}
    ds_read_b64 v[{T+5}:{T+6}], v{T+1} offset:{SCR_ES+1792}
    s_waitcnt lgkmcnt(0)""")
    assert (T + 5) % 2 == 0
    step(6, 7); step(8, 9); step(10, 11); step(T + 5, T + 6)
    a(f"""v_mov_b32 v6, v5
    v_mov_b32 v5, s{sTAG}
    v_mov_b32 v7, s{sTAG}
    s_lshl_b32 s{sT0}, s{sCG}, 5
    v_add_u32 v{T}, s{sT0}, v{T}
    v_lshlrev_b32 v{T}, 4, v{T}
    s_lshl_b32 s{sT0}, s{sRB}, 13
    s_add_u32 s{sT0}, s{sT0}, {WS_AGG}
    v_cmp_gt_u32 vcc, 32, v{vLANE}
    s_and_saveexec_b64 s[{sEX}:{sEX+1}], vcc
    buffer_store_dwordx4 v[4:7], v{T}, s[{SWS}:{SWS+3}], s{sT0} offen sc0 sc1
    s_mov_b64 exec, s[{sEX}:{sEX+1}]""")


LBG = 192


def lookback_loads(a, tracked=True):
    a(f"""v_and_b32 v{vT}, 31, v{vLANE}
    s_lshl_b32 s{sT0}, s{sCG}, 5
    v_add_u32 v3, s{sT0}, v{vT}
    v_lshlrev_b32 v3, 4, v3
    s_mov_b32 s{sT0}, {WS_AGG}""")
    for c in range(15):
        code = f"buffer_load_dwordx4 v[{LBG+4*c}:{LBG+4*c+3}], v3, s[{SWS}:{SWS+3}], s{sT0} offen sc0 sc1"
        if tracked:
            a.vmop(code, "lb")
        else:
            a(code)
        if c < 14:
            a(f"s_add_u32 s{sT0}, s{sT0}, 8192")


def s_work(a):
    zr = lambda j: vACC + j
    zi = lambda j: vACC + 16 + j
    T = vT
    G = LBG
    lp, chk, got, hd = a.newlab("LB"), a.newlab("LBC"), a.newlab("LBG"), a.newlab("LBH")
    EB = 160
    a(f"""v_and_b32 v{T+8}, 31, v{vLANE}
    v_lshlrev_b32 v{T}, 3, v{T+8}
    v_add_u32 v{T}, {SCR}, v{T}""")
    for s in range(8):
        a(f"ds_read_b64 v[{EB+2*s}:{EB+2*s+1}], v{T} offset:{SCR_ES + s*256}")
    a(f"s_mov_b32 s{sSPIN}, 0")
    a.vmwait("lb")
    a.label(lp)
    a(f"s_mov_b64 s[{sMASK}:{sMASK+1}], 0")
    for c in range(15):
        a(f"""s_cmp_gt_u32 s{sRB}, {c}
        s_cbranch_scc0 {chk}
        v_cmp_ne_u32 vcc, s{sTAG}, v{G+4*c+1}
        s_or_b64 s[{sMASK}:{sMASK+1}], s[{sMASK}:{sMASK+1}], vcc
        v_cmp_ne_u32 vcc, s{sTAG}, v{G+4*c+3}
        s_or_b64 s[{sMASK}:{sMASK+1}], s[{sMASK}:{sMASK+1}], vcc""")
    a.label(chk)
    a(f"""s_cmp_eq_u64 s[{sMASK}:{sMASK+1}], 0
    s_cbranch_scc1 {got}
    s_add_u32 s{sSPIN}, s{sSPIN}, 1
    s_cmp_gt_u32 s{sSPIN}, {SPIN_MAX}
    s_cbranch_scc1 {got}""")
    lookback_loads(a, tracked=False)
    a(f"s_waitcnt vmcnt(0)\ns_branch {lp}")
    a.label(got)
    cr, ci = T + 1, T + 2
    a(f"v_mov_b32 v{cr}, 0\nv_mov_b32 v{ci}, 0")
    for c in range(15):
        a(f"""s_cmp_gt_u32 s{sRB}, {c}
        s_cbranch_scc0 {hd}
        v_fma_f32 v{T+3}, v{vA128r}, v{cr}, v{G+4*c}
        v_fma_f32 v{T+4}, v{vA128r}, v{ci}, v{G+4*c+2}
        v_fma_f32 v{T+3}, -v{vA128i}, v{ci}, v{T+3}
        v_fma_f32 v{ci}, v{vA128i}, v{cr}, v{T+4}
        v_mov_b32 v{cr}, v{T+3}""")
    a.label(hd)
    a(f"""v_lshrrev_b32 v{T+5}, 5, v{vLANE}
    v_lshl_add_u32 v{T+5}, v{vRGV}, 1, v{T+5}
    s_waitcnt lgkmcnt(0)""")
    for s in range(7):
        a(f"""v_fma_f32 v{T+3}, v{vA16r}, v{cr}, v{EB+2*s}
        v_fma_f32 v{T+4}, v{vA16r}, v{ci}, v{EB+2*s+1}
        v_cmp_lt_u32 vcc, {s}, v{T+5}
        v_fma_f32 v{T+3}, -v{vA16i}, v{ci}, v{T+3}
        v_fma_f32 v{T+4}, v{vA16i}, v{cr}, v{T+4}
        v_cndmask_b32 v{cr}, v{cr}, v{T+3}, vcc
        v_cndmask_b32 v{ci}, v{ci}, v{T+4}, vcc""")
    cur, alt = (cr, ci), (T + 3, T + 4)
    for j in range(16):
        if j == 12:
            a.vmwait("u12")
            write_flag(a, 1, 0)
        sr, si = cur
        nr, ni = alt
        a(f"""v_fma_f32 v{nr}, v{vAr}, v{sr}, v{zr(j)}
        v_fma_f32 v{ni}, v{vAr}, v{si}, v{zi(j)}
        v_fma_f32 v{nr}, -v{vAi}, v{si}, v{nr}
        v_fma_f32 v{ni}, v{vAi}, v{sr}, v{ni}
        v_mul_f32 v{zr(j)}, v{vKr}, v{nr}
        v_mul_f32 v{zi(j)}, -v{vKr}, v{ni}
        v_fma_f32 v{zr(j)}, -v{vKi}, v{ni}, v{zr(j)}
        v_fma_f32 v{zi(j)}, -v{vKi}, v{nr}, v{zi(j)}""")
        cur, alt = alt, cur
    for j in range(0, 16, 2):
        a(f"v_cvt_pk_bf16_f32 v{G+j//2}, v{zr(j)}, v{zr(j+1)}")
        a(f"v_cvt_pk_bf16_f32 v{G+8+j//2}, v{zi(j)}, v{zi(j+1)}")
    a(f"""s_lshl_b32 s{sT0}, s{sRG}, 12
    s_add_u32 s{sT0}, s{sT0}, {SCR_T}
    v_lshrrev_b32 v{T+5}, 5, v{vLANE}
    v_lshlrev_b32 v{T+5}, 3, v{T+5}
    v_lshl_add_u32 v{T+5}, v{T+8}, 6, v{T+5}
    v_add_u32 v{T+5}, s{sT0}, v{T+5}""")
    for part in range(2):
        for q in range(4):
            r = G + 8 * part + 2 * q
            a(f"ds_write_b64 v{T+5}, v[{r}:{r+1}] offset:{part*2048 + q*16}")
    a(f"""v_add_u32 v{T+6}, s{sT0}, v{vTRL}
    v_lshlrev_b32 v{T}, 4, v{vLANE}
    s_waitcnt lgkmcnt(0)""")
    R = G + 16
    for part in range(2):
        for s2 in range(2):
            r = R + 8 * part + 4 * s2
            o = part * 2048 + s2 * 1024
            a(f"ds_read_b64_tr_b16 v[{r}:{r+1}], v{T+6} offset:{o}")
            a(f"ds_read_b64_tr_b16 v[{r+2}:{r+3}], v{T+6} offset:{o+256}")
    a("s_waitcnt lgkmcnt(0)")
    for part in range(2):
        for s2 in range(2):
            r = R + 8 * part + 4 * s2
            a.vmop(f"buffer_store_dwordx4 v[{r}:{r+3}], v{T}, s[{SWS}:{SWS+3}], s{sHPOS} offen offset:{(2*part+s2)*1024} sc0 sc1", "h")
    a.lg = []


vTRL = 3


def gen(a):
    global vTRL
    vTRL = 0
    sIDX = sMX
    a(f"""s_cmp_ge_u32 s2, 256
    s_cbranch_scc1 L_END
    s_load_dwordx16 s[40:55], s[0:1], 0
    s_load_dwordx16 s[56:71], s[0:1], 64
    v_and_b32 v{vLANE}, 63, v0
    v_lshrrev_b32 v2, 6, v0
    s_and_b32 s{sT0}, s2, 7            ; xcd
    v_readfirstlane_b32 s{sW}, v2
    s_lshr_b32 s{sIDX}, s2, 3          ; idx
    s_and_b32 s{sRB}, s{sT0}, 1
    s_lshl_b32 s{sRB}, s{sRB}, 3
    s_and_b32 s{sT2}, s{sIDX}, 7
    s_add_u32 s{sRB}, s{sRB}, s{sT2}   ; rb
    s_lshr_b32 s{sCG}, s{sT0}, 1
    s_lshl_b32 s{sCG}, s{sCG}, 2
    s_lshr_b32 s{sT2}, s{sIDX}, 3
    s_add_u32 s{sCG}, s{sCG}, s{sT2}   ; cg
    s_and_b32 s{sRG}, s{sW}, 3
    s_add_u32 s{sKC0}, s{sRB}, s{sCG}
    s_and_b32 s{sKC0}, s{sKC0}, 7
    s_lshl_b32 s{sRB2}, s{sT0}, 2
    s_and_b32 s{sT2}, s{sIDX}, 3
    s_add_u32 s{sRB2}, s{sRB2}, s{sT2}
    s_lshr_b32 s{sCB}, s{sIDX}, 2
    s_mul_i32 s{sT2}, s{sCG}, 3
    s_lshl_b32 s{sT3}, s{sCG}, 1
    s_add_u32 s{sT3}, s{sT3}, 11
    s_cmp_lt_u32 s{sCG}, 11
    s_cselect_b32 s{sU0B}, s{sT2}, s{sT3}
    s_cselect_b32 s{sDUM}, 64, 0x40000000
    s_lshl_b32 s{sU0B}, s{sU0B}, 6
    s_lshl_b32 s{sLW}, s{sRG}, 12           ; w'*4096
    s_lshl_b32 s{sMS}, s{sRG}, 11
    s_add_u32 s{sMS}, s{sMS}, 16384         ; S pieces: 16384 + w'*2048
    s_lshl_b32 s{sM1}, s{sRG}, 10           ; kstep*1024
    v_lshrrev_b32 v2, 3, v{vLANE}           ; lane>>3
    v_and_b32 v3, 7, v{vLANE}
    v_lshrrev_b32 v{vT}, 4, v{vLANE}        ; lane>>4
    v_xor_b32 v{vT+1}, v3, v{vT}            ; (lane&7)^(lane>>4)
    s_lshl_b32 s{sT2}, s{sRB}, 7
    s_lshl_b32 s{sT3}, s{sRG}, 5
    s_add_u32 s{sT2}, s{sT2}, s{sT3}
    v_add_u32 v{vT+2}, s{sT2}, v2
    v_lshlrev_b32 v{vT+2}, 10, v{vT+2}
    v_lshl_add_u32 v{vDX0}, v{vT+1}, 4, v{vT+2}
    v_xor_b32 v{vDX1}, 64, v{vDX0}
    v_add_u32 v{vDX1}, 8192, v{vDX1}
    s_and_b32 s{sT4}, s{sRG}, 1
    s_lshl_b32 s{sT4}, s{sT4}, 4
    s_lshl_b32 s{sT3}, s{sCG}, 5
    s_add_u32 s{sT4}, s{sT4}, s{sT3}
    v_add_u32 v{vT+2}, s{sT4}, v2
    v_lshlrev_b32 v{vT+2}, 10, v{vT+2}
    v_lshl_add_u32 v{vDS}, v{vT+1}, 4, v{vT+2}
    v_xor_b32 v{vDS1}, 64, v{vDS}
    v_add_u32 v{vDS1}, 8192, v{vDS1}
    v_lshrrev_b32 v{vT+2}, 2, v{vLANE}
    s_lshl_b32 s{sT4}, s{sRG}, 4
    v_add_u32 v{vT+2}, s{sT4}, v{vT+2}
    v_mul_u32_u24 v{vT+2}, 2752, v{vT+2}
    v_and_b32 v{vT+4}, 3, v{vLANE}
    v_lshl_add_u32 v{vDM}, v{vT+4}, 4, v{vT+2}
    s_lshl_b32 s{sT2}, s2, 3
    s_add_u32 s{sT2}, s{sT2}, s{sW}
    s_lshl_b32 s{sT5}, s{sT2}, 10
    v_lshlrev_b32 v{vT+3}, 4, v{vLANE}
    s_and_b32 s{sT4}, s{sW}, 2
    s_waitcnt lgkmcnt(0)""")
    srd(a, SX, P_X, 2048 * 1024)
    a(f"""s_cmp_eq_u32 s{sT4}, 0
    s_cselect_b32 s{P_BRE}, s{P_BRE}, s{P_BIM}
    s_cselect_b32 s{P_BRE+1}, s{P_BRE+1}, s{P_BIM+1}
    s_cselect_b32 s{P_CRE}, s{P_CRE}, s{P_CIM}
    s_cselect_b32 s{P_CRE+1}, s{P_CRE+1}, s{P_CIM+1}""")
    srd(a, SS, P_BRE, 512 * 1024)
    srd(a, SM, P_WG, 512 * 2752)
    srd(a, SWS, P_WS, WS_SIZE)
    a(f"""s_add_u32 s{P_BIM}, s{P_WS}, {WS_EPOCH}
    s_addc_u32 s{P_BIM+1}, s{P_WS+1}, 0
    s_load_dword s{sTAG}, s[{P_BIM}:{P_BIM+1}], 0""")
    srd(a, SM2, P_WU, 512 * 2752)
    lab0, lab1 = a.newlab("D0"), a.newlab("D1")
    a(f"s_cmp_lt_u32 s{sW}, 4\ns_cbranch_scc1 {lab0}")
    for s_ in range(4):
        for code, tag in dma_p0(s_)[:4]:
            a(code)
    a(f"s_branch {lab1}")
    a.label(lab0)
    a(f"""s_lshl_b32 s{sT2}, s2, 3
    s_lshl_b32 s{sT3}, s{sRG}, 1
    s_add_u32 s{sT5}, s{sT2}, s{sT3}
    s_lshl_b32 s{sT5}, s{sT5}, 10
    buffer_load_dwordx4 v[{vACC}:{vACC+3}], v{vT+3}, s[{SX}:{SX+3}], s{sT5} offen
    buffer_load_dwordx4 v[{vACC+4}:{vACC+7}], v{vT+3}, s[{SX}:{SX+3}], s{sT5} offen offset:1024""")
    for s_ in range(4):
        items = dma_p0(s_)
        a(items[0][0].split("s_add_u32 m0")[0])
        for code, tag in items[4:]:
            a(code)
    a.label(lab1)
    srd(a, SWD, P_WD, 1376 * 1024)
    srd(a, SC, P_CRE, 512 * 1024)
    if W2_PREFETCH:
        l1, l2 = a.newlab("WP"), a.newlab("WP")
        a(f"""v_lshlrev_b32 v{vT+2}, 7, v{vLANE}
        s_cmp_lt_u32 s{sW}, 6
        s_cbranch_scc0 {l1}
        s_mul_i32 s{sT4}, s{sIDX}, 44032
        s_lshl_b32 s{sT3}, s{sW}, 13
        s_add_u32 s{sT4}, s{sT4}, s{sT3}
        buffer_load_dword v{JUNK}, v{vT+2}, s[{SWD}:{SWD+3}], s{sT4} offen""")
        a.label(l1)
        a(f"""s_cmp_ge_u32 s{sW}, 4
        s_cbranch_scc0 {l2}
        s_lshl_b32 s{sT4}, s{sIDX}, 14
        s_and_b32 s{sT3}, s{sW}, 1
        s_lshl_b32 s{sT3}, s{sT3}, 13
        s_add_u32 s{sT4}, s{sT4}, s{sT3}
        buffer_load_dword v{JUNK}, v{vT+2}, s[{SC}:{SC+3}], s{sT4} offen""")
        a.label(l2)
    a(f"""v_and_b32 v{vT+2}, 31, v{vLANE}
    s_lshl_b32 s{sT4}, s{sCG}, 5
    v_add_u32 v{vT+2}, s{sT4}, v{vT+2}
    v_lshlrev_b32 v{vT+2}, 1, v{vT+2}""")
    srd(a, ST, P_LRE, 1024)
    a.vmop(f"buffer_load_ushort v{vA16r}, v{vT+2}, s[{ST}:{ST+3}], 0 offen", "par")
    srd(a, ST, P_LIM, 1024)
    a.vmop(f"buffer_load_ushort v{vA16i}, v{vT+2}, s[{ST}:{ST+3}], 0 offen", "par")
    srd(a, ST, P_LDT, 1024)
    a.vmop(f"buffer_load_ushort v{vA128r}, v{vT+2}, s[{ST}:{ST+3}], 0 offen", "par")
    srd(a, SO, P_OUT, 2048 * 2048)
    srd(a, ST, P_DSK, 1024)
    if CODE_PREFETCH:
        lab = a.newlab("CP")
        a(f"""s_cmp_eq_u32 s{sW}, 3
        s_cbranch_scc0 {lab}
        s_getpc_b64 s[{sT2}:{sT3}]""")
        a.label("L_PC")
        a(f"v_lshlrev_b32 v{vT+2}, 7, v{vLANE}")
        for i in range(5):
            l2 = a.newlab("CPS")
            a(f"""v_cmp_gt_u32 vcc, L_CODE_END-L_PC, v{vT+2}
            s_and_saveexec_b64 s[{sEX}:{sEX+1}], vcc
            s_cbranch_execz {l2}
            global_load_dword v{JUNK}, v{vT+2}, s[{sT2}:{sT3}]""")
            a.label(l2)
            a(f"s_mov_b64 exec, s[{sEX}:{sEX+1}]\nv_add_u32 v{vT+2}, 8192, v{vT+2}")
        a.label(lab)
    a(f"""s_bfe_u32 s{sRT}, s{sW}, 0x10001
    s_and_b32 s{sCT}, s{sW}, 1
    s_lshr_b32 s{sT3}, s{sRG}, 1
    s_mul_i32 s{sAOFF}, s{sT3}, {RT_STRIDE}
    s_and_b32 s{sT4}, s{sRG}, 1
    s_lshl_b32 s{sXB}, s{sT4}, 15           ; (w'&1)*32768
    s_lshl_b32 s{sT4}, s{sT4}, 12
    s_add_u32 s{sAOFF}, s{sAOFF}, s{sT4}
    s_mul_i32 s{s3RG}, s{sRG}, {3*32768}
    s_lshl_b32 s{s2RG}, s{sRG}, 16
    s_lshl_b32 s{sT2}, s{sRB}, 2
    s_add_u32 s{sT2}, s{sT2}, s{sRG}
    s_mul_i32 s{sHPOS}, s{sT2}, {RT_STRIDE}
    s_lshl_b32 s{sT4}, s{sRB2}, 1
    s_mul_i32 s{sT4}, s{sT4}, {RT_STRIDE}
    v_lshlrev_b32 v{vDA}, 4, v{vLANE}
    v_add_u32 v{vDA}, s{sT4}, v{vDA}
    v_bfe_u32 v{vT+2}, v{vLANE}, 4, 1
    v_lshlrev_b32 v{vT+2}, 2, v{vT+2}
    v_xor_b32 v{vT+2}, v3, v{vT+2}
    v_lshlrev_b32 v{vT+4}, 10, v2
    v_lshl_add_u32 v{vT+2}, v{vT+2}, 4, v{vT+4}
    s_lshl_b32 s{sT4}, s{sCB}, 7
    v_add_u32 v{vDB}, s{sT4}, v{vT+2}
    s_lshl_b32 s{sT4}, s{sCB}, 6
    v_add_u32 v{vT+2}, s{sT4}, v2
    v_lshlrev_b32 v{vT+2}, 10, v{vT+2}
    v_lshl_add_u32 v{vDC0}, v{vT+1}, 4, v{vT+2}
    v_xor_b32 v{vDC1}, 64, v{vDC0}
    v_and_b32 v2, 31, v{vLANE}
    v_bfe_u32 v3, v2, 2, 1
    v_lshlrev_b32 v3, 4, v3
    v_lshrrev_b32 v{vT}, 3, v2
    v_lshl_add_u32 v3, v{vT}, 2, v3
    v_and_b32 v{vT+1}, 3, v2
    v_add_u32 v3, v3, v{vT+1}               ; tau
    v_bfe_u32 v{vT}, v3, 1, 3
    s_lshl_b32 s{sT4}, s{sRG}, 5
    v_add_u32 v3, s{sT4}, v3
    v_lshlrev_b32 v3, 7, v3
    v_lshrrev_b32 v{vT+1}, 5, v{vLANE}
    v_xor_b32 v{vT}, v{vT}, v{vT+1}
    v_lshl_add_u32 v{vXA}, v{vT}, 4, v3
    v_xor_b32 v{vXA+1}, 32, v{vXA}
    v_xor_b32 v{vXA+2}, 64, v{vXA}
    v_xor_b32 v{vXA+3}, 96, v{vXA}
    v_lshlrev_b32 v3, 3, v{vT+1}
    v_bfe_u32 v{vT}, v{vLANE}, 2, 2
    v_add_u32 v3, v3, v{vT}
    v_lshlrev_b32 v3, 6, v3
    v_bfe_u32 v{vT}, v{vLANE}, 4, 1
    v_lshl_add_u32 v3, v{vT}, 5, v3
    v_and_b32 v{vT}, 3, v{vLANE}
    v_lshl_add_u32 v{vTRL}, v{vT}, 3, v3
    s_lshr_b32 s{sT4}, s{sW}, 2
    s_lshl_b32 s{sT4}, s{sT4}, 13
    v_add_u32 v{vW1}, s{sT4}, v{vTRL}
    v_mov_b32 v{vRGV}, s{sRG}""")
    return_after = None
    a(f"""s_cmp_ge_u32 s{sW}, 4
    s_cbranch_scc1 L_STREAM_B""")
    save = (list(a.vm), list(a.lg), a.nvm)
    stream(a, 0)
    a.vm, a.lg, a.nvm = list(save[0]), list(save[1]), save[2]
    a.label("L_STREAM_B")
    stream(a, 1)
    a.label("L_END")
    a("s_endpgm")
    a.label("L_CODE_END")


def ln_stats(a, src, row_s):
    U = vACC2
    for i in range(4):
        a(f"v_lshlrev_b32 v{U+2*i}, 16, v{src+i}\nv_and_b32 v{U+2*i+1}, 0xffff0000, v{src+i}")
    a(f"""v_add_f32 v{vT}, v{U}, v{U+1}
    v_add_f32 v{vT+1}, v{U+2}, v{U+3}
    v_add_f32 v{vT+2}, v{U+4}, v{U+5}
    v_add_f32 v{vT+4}, v{U+6}, v{U+7}
    v_add_f32 v{vT}, v{vT}, v{vT+1}
    v_add_f32 v{vT+2}, v{vT+2}, v{vT+4}
    v_add_f32 v{vT}, v{vT}, v{vT+2}""")
    wave_sum(a, vT, sT4)
    a(f"""s_nop 1
    v_mov_b32 v{vT+1}, s{sT4}
    v_mul_f32 v{vT+1}, {f2u(1.0/512)}, v{vT+1}
    v_mov_b32 v{vT}, 0""")
    for i in range(8):
        a(f"v_sub_f32 v{vT+2}, v{U+i}, v{vT+1}\nv_fmac_f32 v{vT}, v{vT+2}, v{vT+2}")
    wave_sum(a, vT, sT4)
    a(f"""s_nop 1
    v_mov_b32 v{vT+2}, s{sT4}
    v_mul_f32 v{vT+2}, {f2u(1.0/512)}, v{vT+2}""")
    rne_bf16(a, vT + 1)
    rne_bf16(a, vT + 2)
    a(f"v_add_f32 v{vT+2}, {f2u(1e-5)}, v{vT+2}")
    rne_bf16(a, vT + 2)
    a(f"v_sqrt_f32 v{vT+2}, v{vT+2}\ns_nop 0")
    rne_bf16(a, vT + 2)
    a(f"""v_mov_b32 v{U}, v{vT+1}
    v_mov_b32 v{U+1}, s{sTAG}
    v_mov_b32 v{U+2}, v{vT+2}
    v_mov_b32 v{U+3}, s{sTAG}
    s_lshl_b32 s{sT4}, s{row_s}, 4
    s_add_u32 s{sT4}, s{sT4}, {WS_STAT}
    v_mov_b32 v{vT}, 0
    s_mov_b64 s[{sEX}:{sEX+1}], exec
    s_mov_b64 exec, 1""")
    a.vmop(f"buffer_store_dwordx4 v[{U}:{U+3}], v{vT}, s[{SWS}:{SWS+3}], s{sT4} offen sc0 sc1", "stat")
    a(f"s_mov_b64 exec, s[{sEX}:{sEX+1}]")


def stream(a, ch):
    a(f"s_waitcnt lgkmcnt(0)\ns_add_u32 s{sTAG}, s{sTAG}, 1")
    if ch == 0:
        a.vm = ["lnrow", "lnrow"] + [f"st{g}" for g in range(4) for _ in range(4)] + ["par"] * 3
        a(f"""v_and_b32 v3, 31, v{vLANE}
        v_bfe_u32 v{vT}, v3, 1, 3
        v_lshrrev_b32 v{vT+1}, 5, v{vLANE}
        v_xor_b32 v{vT}, v{vT}, v{vT+1}
        v_lshlrev_b32 v3, 7, v3
        v_lshl_add_u32 v3, v{vT}, 4, v3
        v_add_u32 v{vWS}, 16384, v3
        v_xor_b32 v{vWS+1}, 32, v{vWS}
        v_xor_b32 v{vWS+2}, 64, v{vWS}
        v_xor_b32 v{vWS+3}, 96, v{vWS}""")
        waddr0 = [vWS + i for i in range(4)]
        a.vmwait("lnrow")
        a(f"""s_lshl_b32 s{sT2}, s2, 3
        s_lshl_b32 s{sT3}, s{sRG}, 1
        s_add_u32 s{sT5}, s{sT2}, s{sT3}""")
        ln_stats(a, vACC, sT5)
        a(f"s_add_u32 s{sT5}, s{sT5}, 1")
        ln_stats(a, vACC + 4, sT5)
    else:
        a.vm = [f"st{g}" for g in range(4) for _ in range(4)] + ["par"] * 3
        a(f"v_add_u32 v{vWM}, 24576, v{vTRL}")
        waddr0 = [vWM]
    stamp(a, 0)
    a(f"""s_lshr_b32 s{sCSM}, s{sRB}, 3
    s_add_u32 s{sCSM}, s{sCSM}, 1
    s_cmp_eq_u32 s{sRG}, 0
    s_cselect_b32 s{sCSM}, s{sCSM}, 0""")
    for i in range(4):
        a(f"v_mov_b32 v{ONES+i}, 0x3f803f80")
    for i in range(64):
        a(f"v_mov_b32 v{vACC+i}, 0")
    xaddr = [vXA + i for i in range(4)]

    slots = []
    for g in range(8):
        for j in range(4):
            for t in range(2):
                slots.append((g, 0, j, t))
    for g in range(8, 12):
        for c2 in range(2):
            for j in range(4):
                for t in range(2):
                    slots.append((g, c2, j, t))
    NS = len(slots)
    first_of = {}
    last_of = {}
    for n, (g, c2, j, t) in enumerate(slots):
        first_of.setdefault(g, n)
        last_of[g] = n
    hi_state = {"x": 0, "w0": 0, "w1": 0}

    def set_hi(key, regs, g):
        hi = ((g % NSLOT) * SLOT) >> 16
        if hi_state[key] != hi:
            for r in regs:
                a(f"v_xor_b32 v{r}, 0x10000, v{r}")
            hi_state[key] = hi

    def frag_reg(n):
        return vFR + 4 * (n % 4)

    def issue_reads(n):
        g, c2, j, t = slots[n]
        lo = ((g % NSLOT) * SLOT) & 0xffff
        f = frag_reg(n)
        tag = f"w{n}"
        if g < 8:
            if j == 0 and t == 0:
                set_hi("x", xaddr, g)
                set_hi("w0", waddr0, g)
                for jj in range(4):
                    r = vXF + 4 * (4 * g + jj)
                    a.ldsop(f"ds_read_b128 v[{r}:{r+3}], v{vXA+jj} offset:{lo}", f"x{g}_{jj}")
            if ch == 0:
                a.ldsop(f"ds_read_b128 v[{f}:{f+3}], v{vWS+j} offset:{lo + t*4096}", tag)
            else:
                o = lo + t * 4096 + j * 1024
                a.ldsop(f"ds_read_b64_tr_b16 v[{f}:{f+1}], v{vWM} offset:{o}", tag)
                a.ldsop(f"ds_read_b64_tr_b16 v[{f+2}:{f+3}], v{vWM} offset:{o+256}", tag)
        else:
            if c2 == 0 and j == 0 and t == 0:
                set_hi("w1", [vW1], g)
            o = lo + c2 * 16384 + t * 4096 + j * 1024
            a.ldsop(f"ds_read_b64_tr_b16 v[{f}:{f+1}], v{vW1} offset:{o}", tag)
            a.ldsop(f"ds_read_b64_tr_b16 v[{f+2}:{f+3}], v{vW1} offset:{o+256}", tag)

    def mfma(n):
        g, c2, j, t = slots[n]
        f = frag_reg(n)
        if g < 8:
            xf = vXF + 4 * (4 * g + j)
            acc = vACC + 16 * t
            a.lgwait(f"x{g}_{j}")
        else:
            xf = vXF + 4 * (4 * (2 * (g - 8) + c2) + j)
            acc = vACC2 + 16 * t
        a.lgwait(f"w{n}")
        if ch == 0 and g < 8:
            a(f"v_mfma_f32_32x32x16_bf16 v[{acc}:{acc+15}], v[{xf}:{xf+3}], v[{f}:{f+3}], v[{acc}:{acc+15}]")
        else:
            a(f"v_mfma_f32_32x32x16_bf16 v[{acc}:{acc+15}], v[{f}:{f+3}], v[{xf}:{xf+3}], v[{acc}:{acc+15}]")

    def colsum_at(n):
        g, c2, j, t = slots[n]
        if (g == 0) or (g == 8 and c2 == 1):
            acc = CSACC if g == 0 else CS1ACC
            lab = a.newlab("CSK")
            f = frag_reg(n)
            c = "0" if j == 0 else f"v[{acc}:{acc+15}]"
            a(f"""s_cmp_eq_u32 s{sCSM}, {t+1}
            s_cbranch_scc0 {lab}
            v_mfma_f32_32x32x16_bf16 v[{acc}:{acc+15}], v[{ONES}:{ONES+3}], v[{f}:{f+3}], {c}""")
            a.label(lab)

    dmaq = []

    def stage_barrier(g):
        if ch == 0 and g == 7:
            gather_finish(a, 0, GATH0, a.nvm - marks["g0"], 3)
            for i in range(16):
                a(f"v_mov_b32 v{GATH0+i}, 0")
        if g == 10 and ch == 1:
            a.vmwait("u0")
            write_flag(a, 0, ch)
        a.vmwait(f"st{g+1}")
        a("s_barrier")
        if ch == 0 and g == 9 and marks.get("edone"):
            only_rg(a, 0, lambda: s_publish(a))
            marks["published"] = True
        if ch == 1:
            nxt = g + 3
            if g >= 1:
                if nxt < 8:
                    dmaq.extend(dma_p0(nxt))
                elif nxt < 12:
                    dmaq.extend(dma_p1(nxt - 8))
            if g == 9:
                dmaq.extend(p2_B(0))
            if g == 10:
                dmaq.extend(p2_B(1))

    marks = {}
    a.vmwait("st0")
    a("s_barrier")
    stamp(a, 1)
    for n in range(LOOK):
        issue_reads(n)
    for n in range(NS):
        g, c2, j, t = slots[n]
        mfma(n)
        colsum_at(n)
        nn = n + LOOK
        if nn < NS:
            if slots[nn][0] != slots[nn - 1][0]:
                stage_barrier(slots[nn - 1][0])
            issue_reads(nn)
        if dmaq:
            code, tag = dmaq.pop(0)
            a.vmop(code, tag)
        if g >= 8:
            a.fill(FILL0 if ch == 0 else FILL)
        if n == last_of[g]:
            if g == 0:
                colsum_store(a, CSACC, ch)
                a("s_nop 7")
                for i in range(16):
                    a(f"v_mov_b32 v{CSACC+i}, 0")
            if g == 5 and ch == 0:
                gather_loads(a, 0, GATH0, 3)
                marks["g0"] = a.nvm
            if g == 7:
                stamp(a, 2)
                q = Q()
                if ch == 1:
                    q(f"""s_lshl_b32 s{sT5}, s{sCG}, 11
                    s_add_u32 s{sT5}, s{sT5}, s{sHPOS}""")
                    row_stats_M(q, vT)
                    gelu_epi(q, vACC, sT5, 64 * 4, "u0", 4, vT)
                else:
                    s_epilogue1(q)
                    q.q.append(("call", lambda: marks.__setitem__("edone", True)))
                    row_stats_M(q, vT)
                a.fillq = q.q
            if g == 8:
                colsum_store(a, CS1ACC, 2 + ch, koff=1)
            if g == 9:
                a.fill_all()
                stamp(a, 3)
            if g == 10 and ch == 0 and not marks.get("published"):
                only_rg(a, 0, lambda: s_publish(a))
            if g == 10 and ch == 0:
                gather_loads(a, 1, GATH1, 3)
                marks["g1"] = a.nvm
    stamp(a, 4)
    while dmaq:
        code, tag = dmaq.pop(0)
        a.vmop(code, tag)
    if ch == 0:
        gather_finish(a, 1, GATH1, a.nvm - marks["g1"], 3)
        lookback_loads(a)
    a("s_barrier")
    stamp(a, 5)
    if ch == 1:
        lab = a.newlab("U2S")
        a(f"""s_cmp_ge_u32 s{sCG}, 11
        s_cbranch_scc1 {lab}
        s_lshl_b32 s{sT5}, s{sCG}, 11
        s_add_u32 s{sT5}, s{sT5}, s{sHPOS}
        s_add_u32 s{sT5}, s{sT5}, {64*1024}""")
        gelu_epi(a, vACC2, sT5, 192 * 4, "u12", 48, vT, maybe=True)
        a.label(lab)
        a.lg = []
        stamp(a, 6)
        for st in (2, 3):
            for code, tag in p2_B(st):
                a.vmop(code, tag)
        poll_flags(a, 0)
        write_flag(a, 1, ch)
        only_rg(a, 3, lambda: touch_A(a, 0))
        for st in range(4):
            for code, tag in p2_A(st):
                a.vmop(code, tag)
        stamp(a, 8)
    else:
        a(f"""s_lshl_b32 s{sT5}, s{sCG}, 11
        s_add_u32 s{sT5}, s{sT5}, s{sHPOS}
        s_add_u32 s{sT5}, s{sT5}, {32*1024}""")
        gelu_epi(a, vACC2, sT5, 128 * 4, "u12", 48, vT)
        stamp(a, 6)
        a(f"""s_lshl_b32 s{sT5}, s{sCG}, 12
        s_add_u32 s{sHPOS}, s{sHPOS}, s{sT5}
        s_add_u32 s{sHPOS}, s{sHPOS}, {86*1024}""")
        s_work(a)
        stamp(a, 8)
    phase2(a, ch)


def phase2(a, ch):
    kh = ch
    vAA0, vAA1, vB0, vC0, vC1, vXO, vDK, vSO, vDO = 4, 5, 6, 7, 8, 9, 10, 11, 12
    vF = 128
    vAC = 192
    vEX = 224
    a(f"""s_lshl_b32 s{sT0}, s{sRT}, 13
    v_lshlrev_b32 v{vAA0}, 4, v{vLANE}
    v_add_u32 v{vAA0}, s{sT0}, v{vAA0}
    v_add_u32 v{vAA0}, {kh*4096}, v{vAA0}
    v_lshrrev_b32 v{vT}, 5, v{vLANE}
    v_lshlrev_b32 v{vT}, 2, v{vT}
    v_bfe_u32 v3, v{vLANE}, 2, 2
    v_add_u32 v{vT}, v{vT}, v3
    v_lshlrev_b32 v{vT}, 7, v{vT}
    v_bfe_u32 v3, v{vLANE}, 3, 1
    v_xor_b32 v3, s{sCT}, v3
    v_lshl_add_u32 v{vT}, v3, 6, v{vT}
    v_bfe_u32 v3, v{vLANE}, 4, 1
    v_lshl_add_u32 v{vT}, v3, 5, v{vT}
    v_and_b32 v3, 3, v{vLANE}
    v_lshl_add_u32 v{vT}, v3, 3, v{vT}
    v_add_u32 v{vB0}, {16384 + kh*8192}, v{vT}
    v_and_b32 v{vT}, 31, v{vLANE}
    v_bfe_u32 v3, v{vT}, 1, 3
    v_lshrrev_b32 v{vT+1}, 5, v{vLANE}
    v_add_u32 v{vT+1}, {4*kh}, v{vT+1}
    v_xor_b32 v3, v3, v{vT+1}
    v_lshlrev_b32 v{vT}, 7, v{vT}
    v_lshl_add_u32 v{vT}, v3, 4, v{vT}
    s_lshl_b32 s{sT0}, s{sCT}, 12
    s_add_u32 s{sT0}, s{sT0}, 16384
    v_add_u32 v{vC0}, s{sT0}, v{vT}
    v_xor_b32 v{vC1}, 32, v{vC0}
    v_lshrrev_b32 v{vT}, 5, v{vLANE}
    v_lshlrev_b32 v{vT}, 4, v{vT}
    s_lshl_b32 s{sT0}, s{sRB2}, 6
    s_lshl_b32 s{sT1}, s{sRT}, 5
    s_add_u32 s{sT0}, s{sT0}, s{sT1}
    s_add_u32 s{sT0}, s{sT0}, {8*kh}
    v_add_u32 v{vT}, s{sT0}, v{vT}
    v_lshlrev_b32 v{vSO}, 4, v{vT}
    v_lshlrev_b32 v{vT}, 9, v{vT}
    v_and_b32 v3, 31, v{vLANE}
    s_lshl_b32 s{sT0}, s{sCB}, 6
    s_lshl_b32 s{sT1}, s{sCT}, 5
    s_add_u32 s{sT0}, s{sT0}, s{sT1}
    v_add_u32 v3, s{sT0}, v3
    v_add_u32 v{vT}, v{vT}, v3
    v_lshlrev_b32 v{vXO}, 1, v{vT}
    v_lshlrev_b32 v{vDO}, 1, v3""")

    def epi_loads():
        a.vmop(f"buffer_load_ushort v{vDK}, v{vDO}, s[{ST}:{ST+3}], 0 offen", "epi")
        for k in range(8):
            ro = k * 1024
            so, io = (ro // 4096) * 4096, ro % 4096
            a(f"s_mov_b32 s{sT0}, {so}")
            a.vmop(f"buffer_load_ushort v{vEX+k}, v{vXO}, s[{SX}:{SX+3}], s{sT0} offen offset:{io}", "epi")
        a(f"s_mov_b32 s{sT0}, {WS_STAT}")
        for k in range(8):
            a.vmop(f"buffer_load_dword v{vEX+8+k}, v{vSO}, s[{SWS}:{SWS+3}], s{sT0} offen offset:{k*16} sc0 sc1", "epi")
            a.vmop(f"buffer_load_dword v{vEX+16+k}, v{vSO}, s[{SWS}:{SWS+3}], s{sT0} offen offset:{k*16+8} sc0 sc1", "epi")
    for i in range(16):
        a(f"v_mov_b32 v{vAC+i}, 0")
    hi2 = {"v": 0}

    def nvalid(st):
        return 2 if (st == 10 and kh == 1) else 4

    def p2_reads(st, s):
        g = 12 + st
        slot = (g % NSLOT) * SLOT
        hi, lo = slot >> 16, slot & 0xffff
        if s == 0 and hi != hi2["v"]:
            for r in (vAA0, vB0, vC0, vC1):
                a(f"v_xor_b32 v{r}, 0x10000, v{r}")
            hi2["v"] = hi
        f = vF + 8 * ((4 * st + s) % 8)
        tag = f"r{st}_{s}"
        a.ldsop(f"ds_read_b128 v[{f}:{f+3}], v{vAA0} offset:{lo + s*1024}", tag)
        if st < 11:
            a.ldsop(f"ds_read_b64_tr_b16 v[{f+4}:{f+5}], v{vB0} offset:{lo + s*2048}", tag)
            a.ldsop(f"ds_read_b64_tr_b16 v[{f+6}:{f+7}], v{vB0} offset:{lo + s*2048+1024}", tag)
        else:
            part, s2 = s >> 1, s & 1
            a.ldsop(f"ds_read_b128 v[{f+4}:{f+7}], v{vC0+s2} offset:{lo + part*8192}", tag)

    def p2_barrier(st):
        if ch == 1:
            a.vmwait(f"A{st}")
            a.vmwait(f"B{st}")
        a("s_barrier")

    p2_barrier(0)
    stamp(a, 7)
    for s in range(nvalid(0)):
        p2_reads(0, s)
    dq = []
    for st in range(NST2):
        if st == 4:
            stamp(a, 9)
        if st == 11:
            stamp(a, 13)
        if st + 1 < NST2:
            if ch == 0:
                if st + 1 == 1:
                    a.vmwait("h")
                    write_flag(a, 2, 0)
                if st + 1 == E1_ST:
                    only_rg(a, 3, lambda: (poll_flags(a, 1), touch_A(a, 1)))
                if st + 1 == E2_ST:
                    only_rg(a, 3, lambda: (poll_flags(a, 2), touch_A(a, 2)))
            p2_barrier(st + 1)
            if ch == 1 and st >= 1 and st + 3 < NST2:
                dq.extend(p2_B(st + 3)); dq.extend(p2_A(st + 3))
        for s in range(4):
            if s < nvalid(st):
                f = vF + 8 * ((4 * st + s) % 8)
                a.lgwait(f"r{st}_{s}")
                a(f"v_mfma_f32_32x32x16_bf16 v[{vAC}:{vAC+15}], v[{f}:{f+3}], v[{f+4}:{f+7}], v[{vAC}:{vAC+15}]")
            if st + 1 < NST2 and s < nvalid(st + 1):
                p2_reads(st + 1, s)
            for _ in range(2):
                if dq:
                    code, tag = dq.pop(0)
                    a.vmop(code, tag)
        if st == 3:
            epi_loads()
    stamp(a, 10)
    a(f"""s_nop 15
    s_barrier
    s_lshl_b32 s{sT0}, s{sRG}, 12
    v_lshlrev_b32 v{vT}, 4, v{vLANE}
    v_add_u32 v{vT}, s{sT0}, v{vT}""")
    R = vF
    if kh == 0:
        a(f"""ds_write_b128 v{vT}, v[{vAC+8}:{vAC+11}] offset:2048
        ds_write_b128 v{vT}, v[{vAC+12}:{vAC+15}] offset:3072
        s_waitcnt lgkmcnt(0)
        s_barrier
        ds_read_b128 v[{R}:{R+3}], v{vT}
        ds_read_b128 v[{R+4}:{R+7}], v{vT} offset:1024""")
    else:
        a(f"""ds_write_b128 v{vT}, v[{vAC}:{vAC+3}]
        ds_write_b128 v{vT}, v[{vAC+4}:{vAC+7}] offset:1024
        s_waitcnt lgkmcnt(0)
        s_barrier
        ds_read_b128 v[{R}:{R+3}], v{vT} offset:2048
        ds_read_b128 v[{R+4}:{R+7}], v{vT} offset:3072""")
    a("s_waitcnt vmcnt(0)")
    a.vm = []
    a(f"v_lshlrev_b32 v{vDK}, 16, v{vDK}\nv_lshlrev_b32 v{vT}, 1, v{vXO}")
    for k in range(8):
        a(f"v_lshlrev_b32 v{vEX+k}, 16, v{vEX+k}\nv_rcp_f32 v{vEX+16+k}, v{vEX+16+k}")
    for k in range(8):
        a(f"v_sub_f32 v{vEX+8+k}, v{vEX+k}, v{vEX+8+k}")
    for k in range(0, 8, 2):
        a(f"v_cvt_pk_bf16_f32 v{vT+1}, v{vEX+8+k}, v{vEX+9+k}")
        a(f"v_lshlrev_b32 v{vEX+8+k}, 16, v{vT+1}\nv_and_b32 v{vEX+9+k}, 0xffff0000, v{vT+1}")
    for k in range(8):
        a(f"v_mul_f32 v{vEX+8+k}, v{vEX+8+k}, v{vEX+16+k}")
    for k in range(0, 8, 2):
        a(f"v_cvt_pk_bf16_f32 v{vT+1}, v{vEX+8+k}, v{vEX+9+k}")
        a(f"v_lshlrev_b32 v{vEX+8+k}, 16, v{vT+1}\nv_and_b32 v{vEX+9+k}, 0xffff0000, v{vT+1}")
    for k in range(8):
        a(f"v_mul_f32 v{vEX+8+k}, v{vEX+8+k}, v{vDK}")
    for k in range(0, 8, 2):
        a(f"v_cvt_pk_bf16_f32 v{vT+1}, v{vEX+8+k}, v{vEX+9+k}")
        a(f"v_lshlrev_b32 v{vEX+8+k}, 16, v{vT+1}\nv_and_b32 v{vEX+9+k}, 0xffff0000, v{vT+1}")
    for k in range(8):
        a(f"v_add_f32 v{vEX+8+k}, v{vEX+8+k}, v{vEX+k}")
    a("s_waitcnt lgkmcnt(0)")
    off = 0 if kh == 0 else 8
    for k in range(8):
        a(f"v_add_f32 v{R+k}, v{R+k}, v{vAC+off+k}")
    for k in range(8):
        a(f"v_add_f32 v{R+k}, v{R+k}, v{vEX+8+k}")
    for k in range(8):
        ro = k * 2048
        so, io = (ro // 4096) * 4096, ro % 4096
        a(f"s_mov_b32 s{sT0}, {so}")
        a(f"buffer_store_dword v{R+k}, v{vT}, s[{SO}:{SO+3}], s{sT0} offen offset:{io}")
    if ch == 0:
        lab = a.newlab("EP")
        a(f"""s_cmp_eq_u32 s{sRB2}, 31
        s_cbranch_scc0 {lab}
        s_cmp_eq_u32 s{sCB}, 0
        s_cbranch_scc0 {lab}
        s_cmp_eq_u32 s{sW}, 0
        s_cbranch_scc0 {lab}
        v_mov_b32 v4, s{sTAG}
        v_mov_b32 v3, 0
        s_mov_b32 s{sT0}, {WS_EPOCH}
        s_mov_b64 exec, 1
        buffer_store_dword v4, v3, s[{SWS}:{SWS+3}], s{sT0} offen sc0 sc1
        s_mov_b64 exec, -1""")
        a.label(lab)
    stamp(a, 11)
    if STAMPS:
        a("s_waitcnt vmcnt(0)")
        stamp(a, 12)
    stamp_flush(a, 14)
    a("s_endpgm")


if __name__ == "__main__":
    main(sys.argv[1] if len(sys.argv) > 1 else "cdna_kernels/" + NAME + ".s")
```

```python
import sys, math, struct, os

NAME = "parallel_sum__ssm_conv_s5__glu_gated_geglu__prompt"
KNAME = NAME + "_kernel"

E = lambda k, d: int(os.environ.get(k, str(d)))
STAMPS = E("STAMPS", 0)
SPIN_MAX = E("SPIN_MAX", 200000)
CODE_PREFETCH = E("CODE_PREFETCH", 1)
W2_PREFETCH = E("W2_PREFETCH", 1)
FILL = E("FILL", 7)
FILL0 = E("FILL0", 14)
SW_DELAY = E("SW_DELAY", 8)
LOOK = E("LOOK", 3)
A_TOUCH = E("A_TOUCH", 1)
E2_ST = E("E2_ST", 2)
E1_ST = E("E1_ST", 8)
X_NOMFMA = E("X_NOMFMA", 0)
X_NOREAD = E("X_NOREAD", 0)

NKS = 150
RT_STRIDE = NKS * 1024
WS_AGG = 0xA00000
WS_STAT = 0xA40000
WS_CS = 0xA80000
WS_FLG = 0xB00000
WS_EPOCH = 0xB10000
WS_DBG = 0xF00000
WS_SIZE = 0x10000000

LOG2E = 1.4426950408889634
SLOT = 32768
NSLOT = 4
SCR = NSLOT * SLOT
SCR_T = SCR
SCR_CS = 16384
SCR_ST = 17408
SCR_ES = 18432
LDS_BYTES = 163840
NST2 = 19
NBS, NAS = 3, 5
B_BASE, A_BASE = 0, 49152


def f2u(x):
    return struct.unpack("<I", struct.pack("<f", x))[0]


class A:
    def __init__(self):
        self.l = []
        self.nlab = 0
        self.vm = []
        self.nvm = 0
        self.lg = []
        self.fillq = []

    def __call__(self, s):
        for line in s.strip("\n").split("\n"):
            line = line.strip()
            if not line:
                continue
            if X_NOMFMA and line.startswith("v_mfma"):
                continue
            self.l.append("  " + line)

    def label(self, name):
        self.l.append(name + ":")

    def newlab(self, p="L"):
        self.nlab += 1
        return f"{p}_{self.nlab}"

    def vmop(self, s, tag, maybe=False):
        self(s)
        if not maybe:
            self.vm.append(tag)
            self.nvm += 1

    def vmwait(self, tag):
        idx = [i for i, t in enumerate(self.vm) if t == tag]
        if not idx:
            return
        n = len(self.vm) - 1 - idx[-1]
        assert n <= 63, n
        self(f"s_waitcnt vmcnt({n})")
        self.vm = self.vm[idx[-1] + 1:]

    def vmwait_all(self):
        self("s_waitcnt vmcnt(0)")
        self.vm = []

    def ldsop(self, s, tag):
        if X_NOREAD and tag[0] in "xwr":
            return
        self(s)
        self.lg.append(tag)
        assert len(self.lg) <= 30

    def lgwait(self, tag):
        idx = [i for i, t in enumerate(self.lg) if t == tag]
        if not idx:
            return
        n = len(self.lg) - 1 - idx[-1]
        n = min(n, 15)
        self(f"s_waitcnt lgkmcnt({n})")
        self.lg = self.lg[len(self.lg) - n:] if n else []

    def lgwait_all(self):
        self("s_waitcnt lgkmcnt(0)")
        self.lg = []

    def fill(self, n):
        while n > 0 and self.fillq:
            at = self.fillq.pop(0)
            k = at[0]
            if k == "v":
                self(at[1]); n -= 1
            elif k == "lds":
                self.ldsop(at[1], at[2]); n -= 1
            elif k == "lgw":
                self.lgwait(at[1])
            elif k == "vm":
                self.vmop(at[1], at[2], at[3]); n -= 1
            elif k == "call":
                at[1]()
            elif k == "calln":
                at[1](); n -= at[2]

    def fill_all(self):
        self.fill(10 ** 9)

    def text(self):
        return "\n".join(self.l) + "\n"


class Q:
    def __init__(self):
        self.q = []

    def __call__(self, s):
        for line in s.strip("\n").split("\n"):
            line = line.strip()
            if line:
                self.q.append(("v", line))

    def ldsop(self, s, tag):
        self.q.append(("lds", s, tag))

    def lgwait(self, tag):
        self.q.append(("lgw", tag))

    def vmop(self, s, tag, maybe=False):
        self.q.append(("vm", s, tag, maybe))


def srd(a, s, ptr_lo, nbytes):
    a(f"""s_mov_b32 s{s}, s{ptr_lo}
    s_and_b32 s{s+1}, s{ptr_lo+1}, 0xffff
    s_mov_b32 s{s+2}, {nbytes}
    s_mov_b32 s{s+3}, 0x20000""")


def rne_bf16(a, v):
    a(f"v_cvt_pk_bf16_f32 v{v}, v{v}, v{v}\nv_lshlrev_b32 v{v}, 16, v{v}")


def wave_sum(a, v, tmp_s):
    for ctrl in ("row_shr:1", "row_shr:2", "row_shr:4", "row_shr:8"):
        a(f"s_nop 1\nv_add_f32_dpp v{v}, v{v}, v{v} {ctrl} row_mask:0xf bank_mask:0xf")
    a(f"s_nop 1\nv_add_f32_dpp v{v}, v{v}, v{v} row_bcast:15 row_mask:0xa bank_mask:0xf")
    a(f"s_nop 1\nv_add_f32_dpp v{v}, v{v}, v{v} row_bcast:31 row_mask:0xc bank_mask:0xf")
    a(f"s_nop 1\nv_readlane_b32 s{tmp_s}, v{v}, 63")


SX, SS, SM, SWS, SWD, SC, SO, ST = 4, 8, 12, 16, 20, 24, 28, 32
sW, sRG, sRB, sCG = 36, 37, 38, 39
sKC0, sU0B, sDUM, sTAG = 72, 73, 74, 75
sT0, sT1, sT2, sT3, sT4, sT5 = 76, 77, 78, 79, 80, 81
sMX, sMS, sMU, sM1 = 82, 83, 84, 85
sCSM = 86
sRB2, sCB, sRT, sCT = 87, 88, 89, 90
sSPIN = 91
sEX = 92
sMASK = 94
sAOFF, sLW, s3RG, s2RG = 96, 97, 98, 99
sXB, sHPOS = 100, 101
SM2 = 68
STAMP0 = 40
P_X, P_LRE, P_LIM, P_BRE, P_BIM, P_CRE, P_CIM, P_LDT = 40, 42, 44, 46, 48, 50, 52, 54
P_DSK, P_BX, P_WG, P_WU, P_WD, P_OUT, P_DBG, P_WS = 56, 58, 60, 62, 64, 66, 68, 70

vLANE = 1
vXA = 4
vWS = 8
vWM = 8
vW1 = 12
vDX0, vDX1, vDS, vDM = 13, 14, 15, 16
vDS1 = 47
vT = 17
ONES = 28
vAr, vAi, vKr, vKi, vA16r, vA16i, vA128r, vA128i = 32, 33, 34, 35, 36, 37, 38, 39
vRINV, vNM = 40, 41
vDA, vDB, vDC0, vDC1 = 42, 43, 44, 45
vK1, vCA = 46, 47
vFR = 48
vACC = 64
vACC2 = 96
vXF = 128
CSACC = 96
GATH0 = 112
CS1ACC = 128
GATH1 = 144
JUNK = 255


DBGD = E("DBGD", -1)


def stamp(a, i):
    if STAMPS:
        if i == 3:
            return
        a(f"s_memrealtime s[{STAMP0+2*i}:{STAMP0+2*i+1}]")
        if i == 0:
            a(f"s_mov_b32 s{STAMP0+6}, s{sMASK}\ns_mov_b32 s{STAMP0+7}, s{sMASK+1}")


def stamp_flush(a, n):
    if not STAMPS:
        return
    a("s_waitcnt lgkmcnt(0)")
    a(f"s_lshl_b32 s{sT0}, s2, 3\ns_add_u32 s{sT0}, s{sT0}, s{sW}\ns_lshl_b32 s{sT0}, s{sT0}, 6\ns_add_u32 s{sT0}, s{sT0}, {WS_DBG}")
    a("v_mov_b32 v3, 0")
    for i in range(n):
        a(f"v_mov_b32 v2, s{STAMP0+2*i}")
        a(f"buffer_store_dword v2, v3, s[{SWS}:{SWS+3}], s{sT0} offen offset:{4*i}")
    if DBGD >= 0:
        lab = a.newlab("DD")
        a(f"""s_cmp_eq_u32 s2, {DBGD}
        s_cbranch_scc0 {lab}
        s_cmp_eq_u32 s{sW}, {E("DBGW", 0)}
        s_cbranch_scc0 {lab}
        s_load_dwordx2 s[{sT2}:{sT3}], s[0:1], 112
        s_waitcnt lgkmcnt(0)
        s_mov_b32 s{ST}, s{sT2}
        s_and_b32 s{ST+1}, s{sT3}, 0xffff
        s_mov_b32 s{ST+2}, 256
        s_mov_b32 s{ST+3}, 0x20000
        v_mov_b32 v3, 0""")
        for i in range(n):
            a(f"v_mov_b32 v2, s{STAMP0+2*i}")
            a(f"buffer_store_dword v2, v3, s[{ST}:{ST+3}], 0 offen offset:{4*i}")
        a.label(lab)


def dma_p0(s):
    slot = (s % NSLOT) * SLOT
    it = []
    pre = f"""s_add_u32 s{sT0}, s{sKC0}, {s}
    s_and_b32 s{sT0}, s{sT0}, 7
    s_lshl_b32 s{sT3}, s{sT0}, 7
    s_mul_i32 s{sT2}, s{sT0}, {64*2752}
    s_add_u32 s{sT2}, s{sT2}, s{sU0B}
    s_add_u32 s{sT4}, s{sT3}, 16384
    """
    for i in range(4):
        vd = vDX0 if i % 2 == 0 else vDX1
        so = sT3 if i < 2 else sT4
        it.append(((pre if i == 0 else "") + f"""s_add_u32 m0, s{sLW}, {slot + i*1024}
        s_nop 0
        buffer_load_dwordx4 v{vd}, s[{SX}:{SX+3}], s{so} offen lds""", f"st{s}"))
    for i in range(2):
        vd = vDS if i == 0 else vDS1
        it.append((f"""s_add_u32 m0, s{sMS}, {slot + i*1024}
        s_nop 0
        buffer_load_dwordx4 v{vd}, s[{SS}:{SS+3}], s{sT3} offen lds""", f"st{s}"))
    for mat in range(2):
        sr = SM if mat == 0 else SM2
        it.append((f"""s_add_u32 m0, s{sM1}, {slot + 24576 + mat*4096}
        s_nop 0
        buffer_load_dwordx4 v{vDM}, s[{sr}:{sr+3}], s{sT2} offen lds""", f"st{s}"))
    return it


def dma_p1(t):
    g = 8 + t
    slot = (g % NSLOT) * SLOT
    it = []
    for c2 in range(2):
        pre = f"""s_add_u32 s{sT0}, s{sKC0}, {2*t+c2}
        s_and_b32 s{sT0}, s{sT0}, 7
        s_mul_i32 s{sT2}, s{sT0}, {64*2752}
        s_add_u32 s{sT2}, s{sT2}, s{sU0B}
        s_add_u32 s{sT2}, s{sT2}, 64
        s_add_u32 s{sT3}, s{sT2}, s{sDUM}
        """
        for mat in range(2):
            sr = SM if mat == 0 else SM2
            for j in range(2):
                so = sT2 if j == 0 else sT3
                it.append(((pre if (mat == 0 and j == 0) else "") + f"""s_add_u32 m0, s{sM1}, {slot + c2*16384 + j*8192 + mat*4096}
                s_nop 0
                buffer_load_dwordx4 v{vDM}, s[{sr}:{sr+3}], s{so} offen lds""", f"st{g}"))
    return it


ORDER = [("M", i) for i in range(4)] + [("S", j) for j in range(8)] + [("M", i) for i in range(4, 11)]


def p2_A(st):
    slot = ((12 + st) % NSLOT) * SLOT
    kind, ix = ORDER[st]
    ks0 = 8 * ix if kind == "M" else 86 + 8 * ix
    if E("X_AFIX", 0):
        ks0 = 0
    it = []
    for i in range(4):
        it.append((f"""s_add_u32 s{sT1}, s{sAOFF}, {(ks0+i)*1024}
        s_add_u32 m0, s{sLW}, {slot + i*1024}
        s_nop 0
        buffer_load_dwordx4 v{vDA}, s[{SWS}:{SWS+3}], s{sT1} offen sc0 sc1 lds""", f"A{st}"))
    return it


def p2_B(st):
    slot = ((12 + st) % NSLOT) * SLOT + 16384
    kind, ix = ORDER[st]
    if E("X_BFIX", 0):
        kind, ix = "M", 0
    it = []
    if kind == "M":
        if ix < 3:
            reg, c = s3RG, 3 * 4 * ix
        elif ix == 3:
            reg, c = s2RG, 2 * 12 + 11
        elif ix < 7:
            reg, c = s3RG, 3 * 4 * (ix - 4) + 1
        elif ix == 7:
            reg, c = s2RG, 2 * 12 + 11 + 1
        else:
            reg, c = s3RG, 3 * 4 * (ix - 8) + 2
        for i in range(4):
            it.append((f"""s_add_u32 s{sT1}, s{reg}, {c*32768 + i*8192}
            s_add_u32 m0, s{sLW}, {slot + i*1024}
            s_nop 0
            buffer_load_dwordx4 v{vDB}, s[{SWD}:{SWD+3}], s{sT1} offen lds""", f"B{st}"))
    else:
        j = ix
        for i in range(4):
            vd = vDC0 if i % 2 == 0 else vDC1
            it.append((f"""s_add_u32 s{sT1}, s{sXB}, {j*128 + i*8192}
            s_add_u32 m0, s{sLW}, {slot + i*1024}
            s_nop 0
            buffer_load_dwordx4 v{vd}, s[{SC}:{SC+3}], s{sT1} offen lds""", f"B{st}"))
    return it


def main(out_path):
    a = A()
    gen(a)
    ref = open("cdna_kernels/" + NAME + ".s.ref").read()
    head = []
    for line in ref.splitlines():
        if line.startswith(";") and "@launch" not in line and "Override" not in line and "grid=ceil" not in line:
            head.append(line)
        elif not line.startswith(";"):
            break
    txt = "\n".join(head) + "\n"
    txt += f"; @launch grid=(256,1,1) block=(512,1,1) lds={LDS_BYTES}\n"
    txt += '.amdgcn_target "amdgcn-amd-amdhsa--gfx950"\n.text\n'
    txt += f".globl {KNAME}\n.p2align 8\n.type {KNAME},@function\n{KNAME}:\n"
    txt += a.text()
    txt += f""".section .rodata,"a"
.p2align 6
.amdhsa_kernel {KNAME}
  .amdhsa_next_free_vgpr 256
  .amdhsa_next_free_sgpr 102
  .amdhsa_accum_offset 256
  .amdhsa_group_segment_fixed_size 0
  .amdhsa_kernarg_size 128
  .amdhsa_user_sgpr_count 2
  .amdhsa_user_sgpr_kernarg_segment_ptr 1
  .amdhsa_system_sgpr_workgroup_id_x 1
.end_amdhsa_kernel
"""
    open(out_path, "w").write(txt)


def flag_load(a, ev, rb_s, vdst, tag):
    a(f"""s_lshl_b32 s{sT0}, s{rb_s}, 8
    s_add_u32 s{sT0}, s{sT0}, {WS_FLG + ev*64}
    v_and_b32 v{vdst}, 15, v{vLANE}
    v_lshlrev_b32 v{vdst}, 2, v{vdst}""")
    a.vmop(f"buffer_load_dword v{vdst}, v{vdst}, s[{SWS}:{SWS+3}], s{sT0} offen sc0 sc1", tag)


PRG = (252, 253, 254)


FLG_OFF = {0: 0, 1: 512, 2: 1024}


def poll_flags(a, ev):
    lp, ok = a.newlab("PF"), a.newlab("PFOK")
    wide = (ev == 1)
    a(f"""s_lshr_b32 s{sT0}, s{sRB2}, 1
    s_lshl_b32 s{sT0}, s{sT0}, 11
    s_add_u32 s{sT0}, s{sT0}, {WS_FLG + FLG_OFF[ev]}
    v_lshlrev_b32 v{vT}, {3 if wide else 2}, v{vLANE}
    s_mov_b32 s{sSPIN}, 0""")
    regs = [(248, 249), (250, 251), (252, 253)]
    ld = (lambda r: f"buffer_load_dwordx2 v[{r[0]}:{r[1]}], v{vT}, s[{SWS}:{SWS+3}], s{sT0} offen sc0 sc1") if wide else \
         (lambda r: f"buffer_load_dword v{r[0]}, v{vT}, s[{SWS}:{SWS+3}], s{sT0} offen sc0 sc1")
    for r in regs:
        a(ld(r) + "\ns_sleep 2")
    a.label(lp)
    for r in regs:
        nx = a.newlab("PFN")
        a(f"""s_waitcnt vmcnt(2)
        v_cmp_ne_u32 vcc, s{sTAG}, v{r[0]}
        s_add_u32 s{sSPIN}, s{sSPIN}, 1""")
        if wide:
            a(f"""s_cbranch_vccnz {nx}
            v_cmp_ne_u32 vcc, s{sTAG}, v{r[1]}
            s_nop 0
            s_cbranch_vccz {ok}""")
            a.label(nx)
        else:
            a(f"s_cbranch_vccz {ok}")
        a(ld(r))
    a(f"""s_cmp_gt_u32 s{sSPIN}, {SPIN_MAX}
    s_cbranch_scc0 {lp}""")
    a.label(ok)


def touch_A(a, ev):
    if not A_TOUCH:
        return
    k0, nl = {0: (0, 64), 1: (32, 108), 2: (86, 128)}[ev]
    a(f"""s_lshr_b32 s{sT0}, s{sCB}, 2
    s_lshl_b32 s{sT1}, s{sRB2}, 1
    s_add_u32 s{sT0}, s{sT0}, s{sT1}
    s_mul_i32 s{sT0}, s{sT0}, {RT_STRIDE}
    s_and_b32 s{sT1}, s{sCB}, 3
    s_mul_i32 s{sT1}, s{sT1}, {nl*128}
    s_add_u32 s{sT0}, s{sT0}, s{sT1}
    s_add_u32 s{sT0}, s{sT0}, {k0*1024}
    v_lshlrev_b32 v{vT+1}, 7, v{vLANE}
    buffer_load_dword v{JUNK}, v{vT+1}, s[{SWS}:{SWS+3}], s{sT0} offen sc1""")
    if nl > 64:
        a(f"s_add_u32 s{sT0}, s{sT0}, 8192")
        if nl < 128:
            a(f"""v_cmp_gt_u32 vcc, {nl-64}, v{vLANE}
            s_and_saveexec_b64 s[{sEX}:{sEX+1}], vcc
            buffer_load_dword v{JUNK}, v{vT+1}, s[{SWS}:{SWS+3}], s{sT0} offen sc1
            s_mov_b64 exec, s[{sEX}:{sEX+1}]""")
        else:
            a(f"buffer_load_dword v{JUNK}, v{vT+1}, s[{SWS}:{SWS+3}], s{sT0} offen sc1")


def write_flag(a, ev, ch):
    sh = 5 if ev == 1 else 4
    a(f"""s_lshl_b32 s{sT0}, s{sRB}, 11
    s_lshl_b32 s{sT1}, s{sCG}, {sh}
    s_add_u32 s{sT0}, s{sT0}, s{sT1}
    s_lshl_b32 s{sT1}, s{sW if ev == 1 else sRG}, 2
    s_add_u32 s{sT0}, s{sT0}, s{sT1}
    s_add_u32 s{sT0}, s{sT0}, {WS_FLG + FLG_OFF[ev]}
    v_mov_b32 v{vT+9}, 0
    v_mov_b32 v{vT+10}, s{sTAG}
    s_mov_b64 s[{sEX}:{sEX+1}], exec
    s_mov_b64 exec, 1""")
    a.vmop(f"buffer_store_dword v{vT+10}, v{vT+9}, s[{SWS}:{SWS+3}], s{sT0} offen sc0 sc1", "flag")
    a(f"s_mov_b64 exec, s[{sEX}:{sEX+1}]")


def only_rg(a, rg, fn):
    lab = a.newlab("RG")
    a(f"s_cmp_eq_u32 s{sRG}, {rg}\ns_cbranch_scc0 {lab}")
    lg = list(a.lg)
    fn()
    a.label(lab)
    a.lg = lg


def colsum_mfma(a, wf0, wf1, accreg, first=False):
    l1, l2 = a.newlab("CS"), a.newlab("CS")
    c = "0" if first else f"v[{accreg}:{accreg+15}]"
    a(f"""s_cmp_eq_u32 s{sCSM}, 0
    s_cbranch_scc1 {l2}
    s_cmp_eq_u32 s{sCSM}, 1
    s_cbranch_scc0 {l1}
    v_mfma_f32_32x32x16_bf16 v[{accreg}:{accreg+15}], v[{ONES}:{ONES+3}], v[{wf0}:{wf0+3}], {c}
    s_branch {l2}""")
    a.label(l1)
    a(f"v_mfma_f32_32x32x16_bf16 v[{accreg}:{accreg+15}], v[{ONES}:{ONES+3}], v[{wf1}:{wf1+3}], {c}")
    a.label(l2)


def colsum_store(a, accreg, unit, koff=0):
    l2 = a.newlab("CSS")
    a(f"""s_cmp_eq_u32 s{sCSM}, 0
    s_cbranch_scc1 {l2}
    s_nop 7
    s_nop 7
    s_add_u32 s{sT1}, s{sKC0}, {koff}
    s_and_b32 s{sT1}, s{sT1}, 7
    s_lshl_b32 s{sT0}, s{sCG}, 3
    s_add_u32 s{sT0}, s{sT0}, s{sT1}
    s_lshl_b32 s{sT0}, s{sT0}, 11
    s_sub_u32 s{sT1}, s{sCSM}, 1
    s_lshl_b32 s{sT1}, s{sT1}, 8
    s_add_u32 s{sT0}, s{sT0}, s{sT1}
    s_add_u32 s{sT0}, s{sT0}, {WS_CS + unit*512}
    v_mov_b32 v{accreg+1}, s{sTAG}
    v_lshlrev_b32 v{accreg+2}, 3, v{vLANE}
    v_cmp_gt_u32 vcc, 32, v{vLANE}
    s_and_saveexec_b64 s[{sEX}:{sEX+1}], vcc
    buffer_store_dwordx2 v[{accreg}:{accreg+1}], v{accreg+2}, s[{SWS}:{SWS+3}], s{sT0} offen sc0 sc1
    s_mov_b64 exec, s[{sEX}:{sEX+1}]""")
    a.label(l2)


def gather_loads(a, part, dst, atmp):
    l1, l2 = a.newlab("G"), a.newlab("G")
    a(f"""s_cmp_lt_u32 s{sRG}, 2
    s_cbranch_scc0 {l1}
    s_lshl_b32 s{sT0}, s{sCG}, 14
    s_add_u32 s{sT0}, s{sT0}, {WS_CS + part*1024}
    s_lshl_b32 s{sT1}, s{sRG}, 9
    s_add_u32 s{sT0}, s{sT0}, s{sT1}
    v_lshlrev_b32 v{atmp}, 3, v{vLANE}""")
    for j in range(8):
        so, io = (j * 2048 // 4096) * 4096, (j * 2048) % 4096
        a(f"s_add_u32 s{sT1}, s{sT0}, {so}")
        a(f"buffer_load_dwordx2 v[{dst+2*j}:{dst+2*j+1}], v{atmp}, s[{SWS}:{SWS+3}], s{sT1} offen offset:{io} sc0 sc1")
    a(f"s_branch {l2}")
    a.label(l1)
    if part == 0:
        a(f"""s_lshl_b32 s{sT0}, s{sRB}, 11
        s_sub_u32 s{sT1}, s{sRG}, 2
        s_lshl_b32 s{sT1}, s{sT1}, 10
        s_add_u32 s{sT0}, s{sT0}, s{sT1}
        s_add_u32 s{sT0}, s{sT0}, {WS_STAT}
        v_lshlrev_b32 v{atmp}, 4, v{vLANE}
        buffer_load_dwordx4 v[{dst}:{dst+3}], v{atmp}, s[{SWS}:{SWS+3}], s{sT0} offen sc0 sc1""")
    a.label(l2)


def gather_finish(a, part, dst, nyounger, atmp):
    lr, l1, l2, lok, lok2, l0 = [a.newlab("GF") for _ in range(6)]
    a(f"s_mov_b32 s{sSPIN}, 0")
    a(f"s_waitcnt vmcnt({nyounger})")
    a(f"s_branch {l0}")
    a.label(lr)
    a("s_waitcnt vmcnt(0)")
    a.label(l0)
    a(f"""s_cmp_lt_u32 s{sRG}, 2
    s_cbranch_scc0 {l1}
    s_mov_b64 s[{sMASK}:{sMASK+1}], 0""")
    for j in range(8):
        a(f"""v_cmp_ne_u32 vcc, s{sTAG}, v{dst+2*j+1}
        s_or_b64 s[{sMASK}:{sMASK+1}], s[{sMASK}:{sMASK+1}], vcc""")
    a(f"""s_cmp_eq_u64 s[{sMASK}:{sMASK+1}], 0
    s_cbranch_scc1 {lok}
    s_add_u32 s{sSPIN}, s{sSPIN}, 1
    s_cmp_gt_u32 s{sSPIN}, {SPIN_MAX}
    s_cbranch_scc1 {lok}""")
    gather_loads(a, part, dst, atmp)
    a(f"s_branch {lr}")
    a.label(lok)
    a(f"""v_add_f32 v{dst}, v{dst}, v{dst+2}
    v_add_f32 v{dst+4}, v{dst+4}, v{dst+6}
    v_add_f32 v{dst+8}, v{dst+8}, v{dst+10}
    v_add_f32 v{dst+12}, v{dst+12}, v{dst+14}
    v_add_f32 v{dst}, v{dst}, v{dst+4}
    v_add_f32 v{dst+8}, v{dst+8}, v{dst+12}
    v_add_f32 v{dst}, v{dst}, v{dst+8}
    s_lshl_b32 s{sT0}, s{sRG}, 8
    s_add_u32 s{sT0}, s{sT0}, {SCR}
    v_lshlrev_b32 v{atmp}, 2, v{vLANE}
    v_add_u32 v{atmp}, s{sT0}, v{atmp}
    ds_write_b32 v{atmp}, v{dst} offset:{SCR_CS + part*512}
    s_branch {l2}""")
    a.label(l1)
    if part == 0:
        a(f"""v_cmp_ne_u32 vcc, s{sTAG}, v{dst+1}
        s_mov_b64 s[{sMASK}:{sMASK+1}], vcc
        v_cmp_ne_u32 vcc, s{sTAG}, v{dst+3}
        s_or_b64 s[{sMASK}:{sMASK+1}], s[{sMASK}:{sMASK+1}], vcc
        s_cmp_eq_u64 s[{sMASK}:{sMASK+1}], 0
        s_cbranch_scc1 {lok2}
        s_add_u32 s{sSPIN}, s{sSPIN}, 1
        s_cmp_gt_u32 s{sSPIN}, {SPIN_MAX}
        s_cbranch_scc1 {lok2}""")
        gather_loads(a, part, dst, atmp)
        a(f"s_branch {lr}")
        a.label(lok2)
        a(f"""v_rcp_f32 v{dst+2}, v{dst+2}
        v_sub_f32 v{dst+3}, 0, v{dst}
        s_sub_u32 s{sT0}, s{sRG}, 2
        s_lshl_b32 s{sT0}, s{sT0}, 9
        s_add_u32 s{sT0}, s{sT0}, {SCR}
        v_lshlrev_b32 v{atmp}, 3, v{vLANE}
        v_add_u32 v{atmp}, s{sT0}, v{atmp}
        ds_write_b64 v{atmp}, v[{dst+2}:{dst+3}] offset:{SCR_ST}""")
    a.label(l2)
    a.lgwait_all()


def row_stats_M(q, tmp):
    q(f"""v_and_b32 v{tmp}, 31, v{vLANE}
    v_bfe_u32 v{tmp+1}, v{tmp}, 2, 1
    v_lshlrev_b32 v{tmp+1}, 4, v{tmp+1}
    v_lshrrev_b32 v{tmp+2}, 3, v{tmp}
    v_lshl_add_u32 v{tmp+1}, v{tmp+2}, 2, v{tmp+1}
    v_and_b32 v{tmp+2}, 3, v{tmp}
    v_add_u32 v{tmp+1}, v{tmp+1}, v{tmp+2}
    v_lshlrev_b32 v{tmp+2}, 5, v{vRGV}
    v_add_u32 v{tmp+1}, v{tmp+2}, v{tmp+1}
    v_lshlrev_b32 v{tmp+1}, 3, v{tmp+1}
    v_add_u32 v{tmp+1}, {SCR}, v{tmp+1}""")
    q.ldsop(f"ds_read_b64 v[{vRINV}:{vRINV+1}], v{tmp+1} offset:{SCR_ST}", "rs")
    q.lgwait("rs")


vRGV = 2


def gelu_epi(q, acc, pos_s, cs_off, tagname, csr, T, maybe=False):
    K0 = -2.0 * math.sqrt(2.0 / math.pi) * LOG2E
    K1c = K0 * 0.044715
    q(f"""v_mov_b32 v{vK1}, {f2u(K1c)}
    v_lshrrev_b32 v{vCA}, 5, v{vLANE}
    v_lshlrev_b32 v{vCA}, 4, v{vCA}
    v_add_u32 v{vCA}, {SCR + SCR_CS + cs_off}, v{vCA}""")
    cg_, cu_ = csr, csr + 4
    for qq in range(4):
        q.ldsop(f"ds_read_b128 v[{cg_}:{cg_+3}], v{vCA} offset:{qq*32}", "cs")
        q.ldsop(f"ds_read_b128 v[{cu_}:{cu_+3}], v{vCA} offset:{128 + qq*32}", "cs")
        q.lgwait("cs")
        rs = [4 * qq + i for i in range(4)]
        for i, r in enumerate(rs):
            q(f"v_fma_f32 v{acc+r}, v{vNM}, v{cg_+i}, v{acc+r}")
        for i, r in enumerate(rs):
            q(f"v_fma_f32 v{acc+16+r}, v{vNM}, v{cu_+i}, v{acc+16+r}")
        for i, r in enumerate(rs):
            q(f"v_mul_f32 v{acc+r}, v{acc+r}, v{vRINV}")
        for i, r in enumerate(rs):
            q(f"v_mul_f32 v{T+i}, v{acc+r}, v{acc+r}")
        for i, r in enumerate(rs):
            q(f"v_fmaak_f32 v{T+i}, v{vK1}, v{T+i}, {f2u(K0)}")
        for i, r in enumerate(rs):
            q(f"v_mul_f32 v{T+i}, v{T+i}, v{acc+r}")
        for i, r in enumerate(rs):
            q(f"v_exp_f32 v{T+i}, v{T+i}")
        for i, r in enumerate(rs):
            q(f"v_mul_f32 v{T+4+i}, v{acc+r}, v{acc+16+r}")
        for i, r in enumerate(rs):
            q(f"v_add_f32 v{T+i}, 1.0, v{T+i}")
        for i, r in enumerate(rs):
            q(f"v_rcp_f32 v{T+i}, v{T+i}")
        for i, r in enumerate(rs):
            q(f"v_mul_f32 v{T+4+i}, v{T+4+i}, v{vRINV}")
        for i, r in enumerate(rs):
            q(f"v_mul_f32 v{T+i}, v{T+i}, v{T+4+i}")
        q(f"v_cvt_pk_bf16_f32 v{acc+2*qq}, v{T}, v{T+1}\nv_cvt_pk_bf16_f32 v{acc+2*qq+1}, v{T+2}, v{T+3}")
    q(f"v_lshlrev_b32 v{T}, 4, v{vLANE}")
    q.vmop(f"buffer_store_dwordx4 v[{acc}:{acc+3}], v{T}, s[{SWS}:{SWS+3}], s{pos_s} offen sc0 sc1", tagname, maybe)
    q.vmop(f"buffer_store_dwordx4 v[{acc+4}:{acc+7}], v{T}, s[{SWS}:{SWS+3}], s{pos_s} offen offset:1024 sc0 sc1", tagname, maybe)


def s_params(q):
    vLre, vLim, vLdt = vT + 7, vT + 8, vT + 9
    t0, t1, t2, t3, t4, t5, t6 = [vT + i for i in range(7)]
    q(f"""v_lshlrev_b32 v{vLre}, 16, v{vA16r}
    v_lshlrev_b32 v{vLim}, 16, v{vA16i}
    v_lshlrev_b32 v{vLdt}, 16, v{vA128r}
    v_mul_f32 v{t0}, {f2u(LOG2E)}, v{vLdt}
    v_exp_f32 v{t0}, v{t0}
    s_nop 0""")
    rne_bf16(q, t0)
    q(f"""v_mul_f32 v{t1}, v{t0}, v{vLre}
    v_mul_f32 v{t2}, v{t0}, v{vLim}
    v_mul_f32 v{t1}, {f2u(LOG2E)}, v{t1}
    v_exp_f32 v{t1}, v{t1}
    v_mul_f32 v{t2}, {f2u(1.0/(2*math.pi))}, v{t2}
    v_rndne_f32 v{t3}, v{t2}
    v_sub_f32 v{t2}, v{t2}, v{t3}
    v_cos_f32 v{t3}, v{t2}
    v_sin_f32 v{t4}, v{t2}
    s_nop 0
    v_mul_f32 v{vAr}, v{t1}, v{t3}
    v_mul_f32 v{vAi}, v{t1}, v{t4}
    v_add_f32 v{t3}, -1.0, v{vAr}
    v_mul_f32 v{t4}, v{vLre}, v{vLre}
    v_fmac_f32 v{t4}, v{vLim}, v{vLim}
    v_rcp_f32 v{t4}, v{t4}
    v_mul_f32 v{t5}, v{t3}, v{vLre}
    v_fmac_f32 v{t5}, v{vAi}, v{vLim}
    v_mul_f32 v{t6}, v{vAi}, v{vLre}
    v_fma_f32 v{t6}, -v{t3}, v{vLim}, v{t6}
    v_add_f32 v{t4}, v{t4}, v{t4}
    v_mul_f32 v{vKr}, v{t5}, v{t4}
    v_mul_f32 v{vKi}, v{t6}, v{t4}
    v_mov_b32 v{vA16r}, v{vAr}
    v_mov_b32 v{vA16i}, v{vAi}""")

    def csq(r, i):
        q(f"""v_mul_f32 v{t0}, v{i}, v{i}
        v_mul_f32 v{t1}, v{r}, v{i}
        v_fma_f32 v{r}, v{r}, v{r}, -v{t0}
        v_add_f32 v{i}, v{t1}, v{t1}""")
    for _ in range(4):
        csq(vA16r, vA16i)
    q(f"v_mov_b32 v{vA128r}, v{vA16r}\nv_mov_b32 v{vA128i}, v{vA16i}")
    for _ in range(3):
        csq(vA128r, vA128i)


def s_epilogue1(q):
    zr = lambda j: vACC + j
    zi = lambda j: vACC + 16 + j
    T = vT
    CR, CI = T + 9, T + 10
    q(f"""v_and_b32 v{T}, 31, v{vLANE}
    v_lshlrev_b32 v{T+1}, 2, v{T}
    v_add_u32 v{T+1}, {SCR}, v{T+1}""")
    q.ldsop(f"ds_read_b32 v{CR}, v{T+1} offset:{SCR_CS}", "sc")
    q.ldsop(f"ds_read_b32 v{CI}, v{T+1} offset:{SCR_CS+128}", "sc")
    q(f"""v_lshrrev_b32 v{T+2}, 5, v{vLANE}
    v_lshlrev_b32 v{T+3}, 5, v{vRGV}
    v_lshl_add_u32 v{T+3}, v{T+2}, 4, v{T+3}
    v_lshlrev_b32 v{T+3}, 3, v{T+3}
    v_add_u32 v{T+3}, {SCR}, v{T+3}""")
    for qq in range(4):
        q.ldsop(f"ds_read_b128 v[4:7], v{T+3} offset:{SCR_ST + qq*32}", "sc")
        q.ldsop(f"ds_read_b128 v[8:11], v{T+3} offset:{SCR_ST + qq*32 + 16}", "sc")
        q.lgwait("sc")
        for i in range(4):
            j = 4 * qq + i
            ri, nm = 4 + 2 * i, 5 + 2 * i
            q(f"""v_fma_f32 v{zr(j)}, v{nm}, v{CR}, v{zr(j)}
            v_fma_f32 v{zi(j)}, v{nm}, v{CI}, v{zi(j)}
            v_mul_f32 v{zr(j)}, v{zr(j)}, v{ri}
            v_mul_f32 v{zi(j)}, v{zi(j)}, v{ri}""")
    cur, alt = (T + 4, T + 5), (T + 7, T + 8)
    q(f"v_mov_b32 v{cur[0]}, v{zr(0)}\nv_mov_b32 v{cur[1]}, v{zi(0)}")
    for j in range(1, 16):
        sr, si = cur
        nr, ni = alt
        q(f"""v_fma_f32 v{nr}, v{vAr}, v{sr}, v{zr(j)}
        v_fma_f32 v{ni}, v{vAr}, v{si}, v{zi(j)}
        v_fma_f32 v{nr}, -v{vAi}, v{si}, v{nr}
        v_fma_f32 v{ni}, v{vAi}, v{sr}, v{ni}""")
        cur, alt = alt, cur
    assert cur == (T + 7, T + 8) and (T + 7) % 2 == 0
    q(f"""v_lshlrev_b32 v{T+1}, 1, v{vRGV}
    v_add_u32 v{T+1}, v{T+1}, v{T+2}
    v_lshlrev_b32 v{T+1}, 8, v{T+1}
    v_lshl_add_u32 v{T+1}, v{T}, 3, v{T+1}
    v_add_u32 v{T+1}, {SCR}, v{T+1}""")
    q.ldsop(f"ds_write_b64 v{T+1}, v[{T+7}:{T+8}] offset:{SCR_ES}", "ew")


def s_publish(a):
    T = vT
    a(f"""s_waitcnt lgkmcnt(0)
    v_and_b32 v{T}, 31, v{vLANE}
    v_lshlrev_b32 v{T+1}, 3, v{T}
    v_add_u32 v{T+1}, {SCR}, v{T+1}
    ds_read_b64 v[4:5], v{T+1} offset:{SCR_ES}
    ds_read_b64 v[6:7], v{T+1} offset:{SCR_ES+256}
    ds_read_b64 v[8:9], v{T+1} offset:{SCR_ES+512}
    ds_read_b64 v[10:11], v{T+1} offset:{SCR_ES+768}
    s_waitcnt lgkmcnt(0)""")

    def step(er, ei):
        a(f"""v_fma_f32 v{T+2}, v{vA16r}, v4, v{er}
        v_fma_f32 v{T+3}, v{vA16r}, v5, v{ei}
        v_fma_f32 v{T+2}, -v{vA16i}, v5, v{T+2}
        v_fma_f32 v5, v{vA16i}, v4, v{T+3}
        v_mov_b32 v4, v{T+2}""")
    step(6, 7); step(8, 9); step(10, 11)
    a(f"""ds_read_b64 v[6:7], v{T+1} offset:{SCR_ES+1024}
    ds_read_b64 v[8:9], v{T+1} offset:{SCR_ES+1280}
    ds_read_b64 v[10:11], v{T+1} offset:{SCR_ES+1536}
    ds_read_b64 v[{T+5}:{T+6}], v{T+1} offset:{SCR_ES+1792}
    s_waitcnt lgkmcnt(0)""")
    assert (T + 5) % 2 == 0
    step(6, 7); step(8, 9); step(10, 11); step(T + 5, T + 6)
    a(f"""v_mov_b32 v6, v5
    v_mov_b32 v5, s{sTAG}
    v_mov_b32 v7, s{sTAG}
    s_lshl_b32 s{sT0}, s{sCG}, 5
    v_add_u32 v{T}, s{sT0}, v{T}
    v_lshlrev_b32 v{T}, 4, v{T}
    s_lshl_b32 s{sT0}, s{sRB}, 13
    s_add_u32 s{sT0}, s{sT0}, {WS_AGG}
    v_cmp_gt_u32 vcc, 32, v{vLANE}
    s_and_saveexec_b64 s[{sEX}:{sEX+1}], vcc
    buffer_store_dwordx4 v[4:7], v{T}, s[{SWS}:{SWS+3}], s{sT0} offen sc0 sc1
    s_mov_b64 exec, s[{sEX}:{sEX+1}]""")


LBG = 160
HG = 192


def lookback_loads(a, tracked=True):
    a(f"""v_and_b32 v{vT+9}, 31, v{vLANE}
    s_lshl_b32 s{sT0}, s{sCG}, 5
    v_add_u32 v{vT+9}, s{sT0}, v{vT+9}
    v_lshlrev_b32 v{vT+9}, 4, v{vT+9}           ; p*16
    v_lshrrev_b32 v3, 5, v{vLANE}
    s_sub_u32 s{sT0}, s{sRB}, 1
    v_sub_u32 v3, s{sT0}, v3                    ; rb-1-hf
    v_lshlrev_b32 v3, 13, v3
    v_add_u32 v3, v3, v{vT+9}
    s_mov_b32 s{sT0}, {WS_AGG}
    v_mov_b32 v{vT+10}, 0x7ff00000""")
    for i in range(8):
        a(f"""v_subrev_u32 v{vT+9}, {i*16384}, v3
        v_cmp_gt_i32 vcc, 0, v{vT+9}
        s_nop 1
        v_cndmask_b32 v{vT+9}, v{vT+9}, v{vT+10}, vcc""")
        code = f"buffer_load_dwordx4 v[{LBG+4*i}:{LBG+4*i+3}], v{vT+9}, s[{SWS}:{SWS+3}], s{sT0} offen sc0 sc1"
        if tracked:
            a.vmop(code, "lb")
        else:
            a(code)


def s_work_atoms(a, q):
    zr = lambda j: vACC + j
    zi = lambda j: vACC + 16 + j
    T = vT
    L = LBG
    G = LBG
    EB = 128
    q(f"""v_and_b32 v{T+8}, 31, v{vLANE}
    v_lshlrev_b32 v{T}, 3, v{T+8}
    v_add_u32 v{T}, {SCR}, v{T}""")
    for s in range(8):
        q.ldsop(f"ds_read_b64 v[{EB+2*s}:{EB+2*s+1}], v{T} offset:{SCR_ES + s*256}", "se")
    q(f"""v_mul_f32 v{T+5}, v{vA128i}, v{vA128i}
    v_mul_f32 v{T+6}, v{vA128r}, v{vA128i}
    v_fma_f32 v{T+5}, v{vA128r}, v{vA128r}, -v{T+5}
    v_add_f32 v{T+6}, v{T+6}, v{T+6}""")

    def check():
        lp, got = a.newlab("LB"), a.newlab("LBG")
        a(f"s_mov_b32 s{sSPIN}, 0")
        a.vmwait("lb")
        a.label(lp)
        a(f"""v_lshrrev_b32 v{T+1}, 5, v{vLANE}
        s_sub_u32 s{sT0}, s{sRB}, 1
        v_sub_u32 v{T+1}, s{sT0}, v{T+1}
        s_mov_b64 s[{sMASK}:{sMASK+1}], 0""")
        for i in range(8):
            a(f"""v_cmp_ne_u32 vcc, s{sTAG}, v{L+4*i+1}
            v_cmp_ne_u32 s[{sEX}:{sEX+1}], s{sTAG}, v{L+4*i+3}
            s_or_b64 s[{sEX}:{sEX+1}], s[{sEX}:{sEX+1}], vcc
            v_cmp_le_i32 vcc, {2*i}, v{T+1}
            s_and_b64 s[{sEX}:{sEX+1}], s[{sEX}:{sEX+1}], vcc
            s_or_b64 s[{sMASK}:{sMASK+1}], s[{sMASK}:{sMASK+1}], s[{sEX}:{sEX+1}]""")
        a(f"""s_cmp_eq_u64 s[{sMASK}:{sMASK+1}], 0
        s_cbranch_scc1 {got}
        s_add_u32 s{sSPIN}, s{sSPIN}, 1
        s_cmp_gt_u32 s{sSPIN}, {SPIN_MAX}
        s_cbranch_scc1 {got}""")
        lookback_loads(a, tracked=False)
        a(f"s_waitcnt vmcnt(0)\ns_branch {lp}")
        a.label(got)
    q.q.append(("call", check))
    cr, ci = T + 1, T + 2
    q(f"v_mov_b32 v{cr}, v{L+28}\nv_mov_b32 v{ci}, v{L+30}")
    for i in range(6, -1, -1):
        q(f"""v_fma_f32 v{T+3}, v{T+5}, v{cr}, v{L+4*i}
        v_fma_f32 v{T+4}, v{T+5}, v{ci}, v{L+4*i+2}
        v_fma_f32 v{T+3}, -v{T+6}, v{ci}, v{T+3}
        v_fma_f32 v{ci}, v{T+6}, v{cr}, v{T+4}
        v_mov_b32 v{cr}, v{T+3}""")
    q(f"""v_mov_b32 v{T+3}, v{cr}
    v_mov_b32 v{T+4}, v{ci}
    s_nop 1
    v_permlane32_swap_b32 v{cr}, v{T+3}
    v_permlane32_swap_b32 v{ci}, v{T+4}
    s_nop 1
    v_fma_f32 v{cr}, v{vA128r}, v{T+3}, v{cr}
    v_fma_f32 v{ci}, v{vA128r}, v{T+4}, v{ci}
    v_fma_f32 v{cr}, -v{vA128i}, v{T+4}, v{cr}
    v_fma_f32 v{ci}, v{vA128i}, v{T+3}, v{ci}
    v_lshrrev_b32 v{T+5}, 5, v{vLANE}
    v_lshl_add_u32 v{T+5}, v{vRGV}, 1, v{T+5}""")
    q.lgwait("se")
    for s in range(7):
        def seg(s=s):
            a(f"""v_fma_f32 v{T+3}, v{vA16r}, v{cr}, v{EB+2*s}
            v_fma_f32 v{T+4}, v{vA16r}, v{ci}, v{EB+2*s+1}
            v_cmp_lt_u32 vcc, {s}, v{T+5}
            v_fma_f32 v{T+3}, -v{vA16i}, v{ci}, v{T+3}
            v_fma_f32 v{T+4}, v{vA16i}, v{cr}, v{T+4}
            v_cndmask_b32 v{cr}, v{cr}, v{T+3}, vcc
            v_cndmask_b32 v{ci}, v{ci}, v{T+4}, vcc""")
        q.q.append(("calln", seg, 7))
    cur, alt = (cr, ci), (T + 3, T + 4)
    for j in range(16):
        sr, si = cur
        nr, ni = alt
        q(f"""v_fma_f32 v{nr}, v{vAr}, v{sr}, v{zr(j)}
        v_fma_f32 v{ni}, v{vAr}, v{si}, v{zi(j)}
        v_fma_f32 v{nr}, -v{vAi}, v{si}, v{nr}
        v_fma_f32 v{ni}, v{vAi}, v{sr}, v{ni}
        v_mul_f32 v{zr(j)}, v{vKr}, v{nr}
        v_mul_f32 v{zi(j)}, -v{vKr}, v{ni}
        v_fma_f32 v{zr(j)}, -v{vKi}, v{ni}, v{zr(j)}
        v_fma_f32 v{zi(j)}, -v{vKi}, v{nr}, v{zi(j)}""")
        cur, alt = alt, cur
    for j in range(0, 16, 2):
        q(f"v_cvt_pk_bf16_f32 v{G+j//2}, v{zr(j)}, v{zr(j+1)}")
        q(f"v_cvt_pk_bf16_f32 v{G+8+j//2}, v{zi(j)}, v{zi(j+1)}")
    q(f"""v_lshlrev_b32 v{T+6}, 12, v{vRGV}
    v_add_u32 v{T+6}, {SCR_T}, v{T+6}
    v_lshrrev_b32 v{T+5}, 5, v{vLANE}
    v_lshlrev_b32 v{T+5}, 3, v{T+5}
    v_lshl_add_u32 v{T+5}, v{T+8}, 6, v{T+5}
    v_add_u32 v{T+5}, v{T+6}, v{T+5}
    v_add_u32 v{T+6}, v{T+6}, v{vTRL}
    v_lshlrev_b32 v{T}, 4, v{vLANE}""")
    for part in range(2):
        for qq in range(4):
            r = G + 8 * part + 2 * qq
            q.ldsop(f"ds_write_b64 v{T+5}, v[{r}:{r+1}] offset:{part*2048 + qq*16}", "tw")
    q.lgwait("tw")
    R = G + 16
    for part in range(2):
        for s2 in range(2):
            r = R + 8 * part + 4 * s2
            o = part * 2048 + s2 * 1024
            q.ldsop(f"ds_read_b64_tr_b16 v[{r}:{r+1}], v{T+6} offset:{o}", "tr")
            q.ldsop(f"ds_read_b64_tr_b16 v[{r+2}:{r+3}], v{T+6} offset:{o+256}", "tr")
    q.lgwait("tr")
    for part in range(2):
        for s2 in range(2):
            r = R + 8 * part + 4 * s2
            q.vmop(f"buffer_store_dwordx4 v[{r}:{r+3}], v{T}, s[{SWS}:{SWS+3}], s{sXB} offen offset:{(2*part+s2)*1024} sc0 sc1", "h")


vTRL = 3


def gen(a):
    global vTRL
    vTRL = 0
    sIDX = sMX
    if STAMPS:
        a(f"s_memrealtime s[{sMASK}:{sMASK+1}]")
    a(f"""s_cmp_ge_u32 s2, 256
    s_cbranch_scc1 L_END
    s_load_dwordx16 s[40:55], s[0:1], 0
    s_load_dwordx16 s[56:71], s[0:1], 64
    v_and_b32 v{vLANE}, 63, v0
    v_lshrrev_b32 v2, 6, v0
    s_and_b32 s{sT0}, s2, 7            ; xcd
    v_readfirstlane_b32 s{sW}, v2
    s_lshr_b32 s{sIDX}, s2, 3          ; idx
    s_and_b32 s{sRB}, s{sT0}, 1
    s_lshl_b32 s{sRB}, s{sRB}, 3
    s_and_b32 s{sT2}, s{sIDX}, 7
    s_add_u32 s{sRB}, s{sRB}, s{sT2}   ; rb
    s_lshr_b32 s{sCG}, s{sT0}, 1
    s_lshl_b32 s{sCG}, s{sCG}, 2
    s_lshr_b32 s{sT2}, s{sIDX}, 3
    s_add_u32 s{sCG}, s{sCG}, s{sT2}   ; cg
    s_and_b32 s{sRG}, s{sW}, 3
    s_add_u32 s{sKC0}, s{sRB}, s{sCG}
    s_and_b32 s{sKC0}, s{sKC0}, 7
    s_lshl_b32 s{sRB2}, s{sT0}, 2
    s_and_b32 s{sT2}, s{sIDX}, 3
    s_add_u32 s{sRB2}, s{sRB2}, s{sT2}
    s_lshr_b32 s{sCB}, s{sIDX}, 2
    s_mul_i32 s{sT2}, s{sCG}, 3
    s_lshl_b32 s{sT3}, s{sCG}, 1
    s_add_u32 s{sT3}, s{sT3}, 11
    s_cmp_lt_u32 s{sCG}, 11
    s_cselect_b32 s{sU0B}, s{sT2}, s{sT3}
    s_cselect_b32 s{sDUM}, 64, 0x40000000
    s_lshl_b32 s{sU0B}, s{sU0B}, 6
    s_lshl_b32 s{sLW}, s{sRG}, 12           ; w'*4096
    s_lshl_b32 s{sMS}, s{sRG}, 11
    s_add_u32 s{sMS}, s{sMS}, 16384         ; S pieces: 16384 + w'*2048
    s_lshl_b32 s{sM1}, s{sRG}, 10           ; kstep*1024
    v_lshrrev_b32 v2, 3, v{vLANE}           ; lane>>3
    v_and_b32 v3, 7, v{vLANE}
    v_lshrrev_b32 v{vT}, 4, v{vLANE}        ; lane>>4
    v_xor_b32 v{vT+1}, v3, v{vT}            ; (lane&7)^(lane>>4)
    s_lshl_b32 s{sT2}, s{sRB}, 7
    s_lshl_b32 s{sT3}, s{sRG}, 5
    s_add_u32 s{sT2}, s{sT2}, s{sT3}
    v_add_u32 v{vT+2}, s{sT2}, v2
    v_lshlrev_b32 v{vT+2}, 10, v{vT+2}
    v_lshl_add_u32 v{vDX0}, v{vT+1}, 4, v{vT+2}
    v_xor_b32 v{vDX1}, 64, v{vDX0}
    v_add_u32 v{vDX1}, 8192, v{vDX1}
    s_and_b32 s{sT4}, s{sRG}, 1
    s_lshl_b32 s{sT4}, s{sT4}, 4
    s_lshl_b32 s{sT3}, s{sCG}, 5
    s_add_u32 s{sT4}, s{sT4}, s{sT3}
    v_add_u32 v{vT+2}, s{sT4}, v2
    v_lshlrev_b32 v{vT+2}, 10, v{vT+2}
    v_lshl_add_u32 v{vDS}, v{vT+1}, 4, v{vT+2}
    v_xor_b32 v{vDS1}, 64, v{vDS}
    v_add_u32 v{vDS1}, 8192, v{vDS1}
    v_lshrrev_b32 v{vT+2}, 2, v{vLANE}
    s_lshl_b32 s{sT4}, s{sRG}, 4
    v_add_u32 v{vT+2}, s{sT4}, v{vT+2}
    v_mul_u32_u24 v{vT+2}, 2752, v{vT+2}
    v_and_b32 v{vT+4}, 3, v{vLANE}
    v_lshl_add_u32 v{vDM}, v{vT+4}, 4, v{vT+2}
    s_lshl_b32 s{sT2}, s2, 3
    s_add_u32 s{sT2}, s{sT2}, s{sW}
    s_lshl_b32 s{sT5}, s{sT2}, 10
    v_lshlrev_b32 v{vT+3}, 4, v{vLANE}
    s_and_b32 s{sT4}, s{sW}, 2
    s_waitcnt lgkmcnt(0)""")
    srd(a, SX, P_X, 2048 * 1024)
    a(f"""s_cmp_eq_u32 s{sT4}, 0
    s_cselect_b32 s{P_BRE}, s{P_BRE}, s{P_BIM}
    s_cselect_b32 s{P_BRE+1}, s{P_BRE+1}, s{P_BIM+1}
    s_cselect_b32 s{P_CRE}, s{P_CRE}, s{P_CIM}
    s_cselect_b32 s{P_CRE+1}, s{P_CRE+1}, s{P_CIM+1}""")
    srd(a, SS, P_BRE, 512 * 1024)
    srd(a, SM, P_WG, 512 * 2752)
    srd(a, SWS, P_WS, WS_SIZE)
    a(f"""s_add_u32 s{P_BIM}, s{P_WS}, {WS_EPOCH}
    s_addc_u32 s{P_BIM+1}, s{P_WS+1}, 0
    s_load_dword s{sTAG}, s[{P_BIM}:{P_BIM+1}], 0""")
    srd(a, SM2, P_WU, 512 * 2752)
    lab0, lab1 = a.newlab("D0"), a.newlab("D1")
    a(f"s_cmp_lt_u32 s{sW}, 4\ns_cbranch_scc1 {lab0}")
    for s_ in range(4):
        for code, tag in dma_p0(s_)[:4]:
            a(code)
    a(f"s_branch {lab1}")
    a.label(lab0)
    a(f"""s_lshl_b32 s{sT2}, s2, 3
    s_lshl_b32 s{sT3}, s{sRG}, 1
    s_add_u32 s{sT5}, s{sT2}, s{sT3}
    s_lshl_b32 s{sT5}, s{sT5}, 10
    buffer_load_dwordx4 v[{vACC}:{vACC+3}], v{vT+3}, s[{SX}:{SX+3}], s{sT5} offen
    buffer_load_dwordx4 v[{vACC+4}:{vACC+7}], v{vT+3}, s[{SX}:{SX+3}], s{sT5} offen offset:1024""")
    for s_ in range(4):
        items = dma_p0(s_)
        a(items[0][0].split("s_add_u32 m0")[0])
        for code, tag in items[4:]:
            a(code)
    a.label(lab1)
    srd(a, SWD, P_WD, 1376 * 1024)
    srd(a, SC, P_CRE, 512 * 1024)
    if W2_PREFETCH:
        l1, l2 = a.newlab("WP"), a.newlab("WP")
        a(f"""v_lshlrev_b32 v{vT+2}, 7, v{vLANE}
        s_cmp_lt_u32 s{sW}, 6
        s_cbranch_scc0 {l1}
        s_mul_i32 s{sT4}, s{sIDX}, 44032
        s_lshl_b32 s{sT3}, s{sW}, 13
        s_add_u32 s{sT4}, s{sT4}, s{sT3}
        buffer_load_dword v{JUNK}, v{vT+2}, s[{SWD}:{SWD+3}], s{sT4} offen""")
        a.label(l1)
        a(f"""s_cmp_ge_u32 s{sW}, 4
        s_cbranch_scc0 {l2}
        s_lshl_b32 s{sT4}, s{sIDX}, 14
        s_and_b32 s{sT3}, s{sW}, 1
        s_lshl_b32 s{sT3}, s{sT3}, 13
        s_add_u32 s{sT4}, s{sT4}, s{sT3}
        buffer_load_dword v{JUNK}, v{vT+2}, s[{SC}:{SC+3}], s{sT4} offen""")
        a.label(l2)
    a(f"""v_and_b32 v{vT+2}, 31, v{vLANE}
    s_lshl_b32 s{sT4}, s{sCG}, 5
    v_add_u32 v{vT+2}, s{sT4}, v{vT+2}
    v_lshlrev_b32 v{vT+2}, 1, v{vT+2}""")
    srd(a, ST, P_LRE, 1024)
    a.vmop(f"buffer_load_ushort v{vA16r}, v{vT+2}, s[{ST}:{ST+3}], 0 offen", "par")
    srd(a, ST, P_LIM, 1024)
    a.vmop(f"buffer_load_ushort v{vA16i}, v{vT+2}, s[{ST}:{ST+3}], 0 offen", "par")
    srd(a, ST, P_LDT, 1024)
    a.vmop(f"buffer_load_ushort v{vA128r}, v{vT+2}, s[{ST}:{ST+3}], 0 offen", "par")
    srd(a, SO, P_OUT, 2048 * 2048)
    srd(a, ST, P_DSK, 1024)
    if CODE_PREFETCH:
        lab = a.newlab("CP")
        a(f"""s_cmp_eq_u32 s{sW}, 3
        s_cbranch_scc0 {lab}
        s_getpc_b64 s[{sT2}:{sT3}]""")
        a.label("L_PC")
        a(f"v_lshlrev_b32 v{vT+2}, 7, v{vLANE}")
        for i in range(5):
            l2 = a.newlab("CPS")
            a(f"""v_cmp_gt_u32 vcc, L_CODE_END-L_PC, v{vT+2}
            s_and_saveexec_b64 s[{sEX}:{sEX+1}], vcc
            s_cbranch_execz {l2}
            global_load_dword v{JUNK}, v{vT+2}, s[{sT2}:{sT3}]""")
            a.label(l2)
            a(f"s_mov_b64 exec, s[{sEX}:{sEX+1}]\nv_add_u32 v{vT+2}, 8192, v{vT+2}")
        a.label(lab)
    a(f"""s_bfe_u32 s{sRT}, s{sW}, 0x10001
    s_and_b32 s{sCT}, s{sW}, 1
    s_lshr_b32 s{sT3}, s{sRG}, 1
    s_mul_i32 s{sAOFF}, s{sT3}, {RT_STRIDE}
    s_and_b32 s{sT4}, s{sRG}, 1
    s_lshl_b32 s{sXB}, s{sT4}, 15           ; (w'&1)*32768
    s_lshl_b32 s{sT4}, s{sT4}, 12
    s_add_u32 s{sAOFF}, s{sAOFF}, s{sT4}
    s_mul_i32 s{s3RG}, s{sRG}, {3*32768}
    s_lshl_b32 s{s2RG}, s{sRG}, 16
    s_lshl_b32 s{sT2}, s{sRB}, 2
    s_add_u32 s{sT2}, s{sT2}, s{sRG}
    s_mul_i32 s{sHPOS}, s{sT2}, {RT_STRIDE}
    s_lshl_b32 s{sT4}, s{sRB2}, 1
    s_mul_i32 s{sT4}, s{sT4}, {RT_STRIDE}
    v_lshlrev_b32 v{vDA}, 4, v{vLANE}
    v_add_u32 v{vDA}, s{sT4}, v{vDA}
    v_bfe_u32 v{vT+2}, v{vLANE}, 4, 1
    v_lshlrev_b32 v{vT+2}, 2, v{vT+2}
    v_xor_b32 v{vT+2}, v3, v{vT+2}
    v_lshlrev_b32 v{vT+4}, 10, v2
    v_lshl_add_u32 v{vT+2}, v{vT+2}, 4, v{vT+4}
    s_lshl_b32 s{sT4}, s{sCB}, 7
    v_add_u32 v{vDB}, s{sT4}, v{vT+2}
    s_lshl_b32 s{sT4}, s{sCB}, 6
    v_add_u32 v{vT+2}, s{sT4}, v2
    v_lshlrev_b32 v{vT+2}, 10, v{vT+2}
    v_lshl_add_u32 v{vDC0}, v{vT+1}, 4, v{vT+2}
    v_xor_b32 v{vDC1}, 64, v{vDC0}
    v_and_b32 v2, 31, v{vLANE}
    v_bfe_u32 v3, v2, 2, 1
    v_lshlrev_b32 v3, 4, v3
    v_lshrrev_b32 v{vT}, 3, v2
    v_lshl_add_u32 v3, v{vT}, 2, v3
    v_and_b32 v{vT+1}, 3, v2
    v_add_u32 v3, v3, v{vT+1}               ; tau
    v_bfe_u32 v{vT}, v3, 1, 3
    s_lshl_b32 s{sT4}, s{sRG}, 5
    v_add_u32 v3, s{sT4}, v3
    v_lshlrev_b32 v3, 7, v3
    v_lshrrev_b32 v{vT+1}, 5, v{vLANE}
    v_xor_b32 v{vT}, v{vT}, v{vT+1}
    v_lshl_add_u32 v{vXA}, v{vT}, 4, v3
    v_xor_b32 v{vXA+1}, 32, v{vXA}
    v_xor_b32 v{vXA+2}, 64, v{vXA}
    v_xor_b32 v{vXA+3}, 96, v{vXA}
    v_lshlrev_b32 v3, 3, v{vT+1}
    v_bfe_u32 v{vT}, v{vLANE}, 2, 2
    v_add_u32 v3, v3, v{vT}
    v_lshlrev_b32 v3, 6, v3
    v_bfe_u32 v{vT}, v{vLANE}, 4, 1
    v_lshl_add_u32 v3, v{vT}, 5, v3
    v_and_b32 v{vT}, 3, v{vLANE}
    v_lshl_add_u32 v{vTRL}, v{vT}, 3, v3
    s_lshr_b32 s{sT4}, s{sW}, 2
    s_lshl_b32 s{sT4}, s{sT4}, 13
    v_add_u32 v{vW1}, s{sT4}, v{vTRL}
    v_mov_b32 v{vRGV}, s{sRG}""")
    return_after = None
    a(f"""s_cmp_ge_u32 s{sW}, 4
    s_cbranch_scc1 L_STREAM_B""")
    save = (list(a.vm), list(a.lg), a.nvm)
    stream(a, 0)
    a.vm, a.lg, a.nvm = list(save[0]), list(save[1]), save[2]
    a.label("L_STREAM_B")
    stream(a, 1)
    a.label("L_END")
    a("s_endpgm")
    a.label("L_CODE_END")


def ln_stats(a, src, row_s):
    U = vACC2
    for i in range(4):
        a(f"v_lshlrev_b32 v{U+2*i}, 16, v{src+i}\nv_and_b32 v{U+2*i+1}, 0xffff0000, v{src+i}")
    a(f"""v_add_f32 v{vT}, v{U}, v{U+1}
    v_add_f32 v{vT+1}, v{U+2}, v{U+3}
    v_add_f32 v{vT+2}, v{U+4}, v{U+5}
    v_add_f32 v{vT+4}, v{U+6}, v{U+7}
    v_add_f32 v{vT}, v{vT}, v{vT+1}
    v_add_f32 v{vT+2}, v{vT+2}, v{vT+4}
    v_add_f32 v{vT}, v{vT}, v{vT+2}""")
    wave_sum(a, vT, sT4)
    a(f"""s_nop 1
    v_mov_b32 v{vT+1}, s{sT4}
    v_mul_f32 v{vT+1}, {f2u(1.0/512)}, v{vT+1}
    v_mov_b32 v{vT}, 0""")
    for i in range(8):
        a(f"v_sub_f32 v{vT+2}, v{U+i}, v{vT+1}\nv_fmac_f32 v{vT}, v{vT+2}, v{vT+2}")
    wave_sum(a, vT, sT4)
    a(f"""s_nop 1
    v_mov_b32 v{vT+2}, s{sT4}
    v_mul_f32 v{vT+2}, {f2u(1.0/512)}, v{vT+2}""")
    rne_bf16(a, vT + 1)
    rne_bf16(a, vT + 2)
    a(f"v_add_f32 v{vT+2}, {f2u(1e-5)}, v{vT+2}")
    rne_bf16(a, vT + 2)
    a(f"v_sqrt_f32 v{vT+2}, v{vT+2}\ns_nop 0")
    rne_bf16(a, vT + 2)
    a(f"""v_mov_b32 v{U}, v{vT+1}
    v_mov_b32 v{U+1}, s{sTAG}
    v_mov_b32 v{U+2}, v{vT+2}
    v_mov_b32 v{U+3}, s{sTAG}
    s_lshl_b32 s{sT4}, s{row_s}, 4
    s_add_u32 s{sT4}, s{sT4}, {WS_STAT}
    v_mov_b32 v{vT}, 0
    s_mov_b64 s[{sEX}:{sEX+1}], exec
    s_mov_b64 exec, 1""")
    a.vmop(f"buffer_store_dwordx4 v[{U}:{U+3}], v{vT}, s[{SWS}:{SWS+3}], s{sT4} offen sc0 sc1", "stat")
    a(f"s_mov_b64 exec, s[{sEX}:{sEX+1}]")


def stream(a, ch):
    a(f"s_waitcnt lgkmcnt(0)\ns_add_u32 s{sTAG}, s{sTAG}, 1")
    if ch == 0:
        a.vm = ["lnrow", "lnrow"] + [f"st{g}" for g in range(4) for _ in range(4)] + ["par"] * 3
        a(f"""v_and_b32 v3, 31, v{vLANE}
        v_bfe_u32 v{vT}, v3, 1, 3
        v_lshrrev_b32 v{vT+1}, 5, v{vLANE}
        v_xor_b32 v{vT}, v{vT}, v{vT+1}
        v_lshlrev_b32 v3, 7, v3
        v_lshl_add_u32 v3, v{vT}, 4, v3
        v_add_u32 v{vWS}, 16384, v3
        v_xor_b32 v{vWS+1}, 32, v{vWS}
        v_xor_b32 v{vWS+2}, 64, v{vWS}
        v_xor_b32 v{vWS+3}, 96, v{vWS}""")
        waddr0 = [vWS + i for i in range(4)]
        a.vmwait("lnrow")
        a(f"""s_lshl_b32 s{sT2}, s2, 3
        s_lshl_b32 s{sT3}, s{sRG}, 1
        s_add_u32 s{sT5}, s{sT2}, s{sT3}""")
        ln_stats(a, vACC, sT5)
        a(f"s_add_u32 s{sT5}, s{sT5}, 1")
        ln_stats(a, vACC + 4, sT5)
    else:
        a.vm = [f"st{g}" for g in range(4) for _ in range(4)] + ["par"] * 3
        a(f"v_add_u32 v{vWM}, 24576, v{vTRL}")
        waddr0 = [vWM]
    stamp(a, 0)
    a(f"""s_lshr_b32 s{sCSM}, s{sRB}, 3
    s_add_u32 s{sCSM}, s{sCSM}, 1
    s_cmp_eq_u32 s{sRG}, 0
    s_cselect_b32 s{sCSM}, s{sCSM}, 0""")
    for i in range(4):
        a(f"v_mov_b32 v{ONES+i}, 0x3f803f80")
    for i in range(64):
        a(f"v_mov_b32 v{vACC+i}, 0")
    xaddr = [vXA + i for i in range(4)]

    slots = []
    for g in range(8):
        for j in range(4):
            for t in range(2):
                slots.append((g, 0, j, t))
    for g in range(8, 12):
        for c2 in range(2):
            for j in range(4):
                for t in range(2):
                    slots.append((g, c2, j, t))
    NS = len(slots)
    first_of = {}
    last_of = {}
    for n, (g, c2, j, t) in enumerate(slots):
        first_of.setdefault(g, n)
        last_of[g] = n
    hi_state = {"x": 0, "w0": 0, "w1": 0}

    def set_hi(key, regs, g):
        hi = ((g % NSLOT) * SLOT) >> 16
        if hi_state[key] != hi:
            for r in regs:
                a(f"v_xor_b32 v{r}, 0x10000, v{r}")
            hi_state[key] = hi

    def frag_reg(n):
        return vFR + 4 * (n % 4)

    def issue_reads(n):
        g, c2, j, t = slots[n]
        lo = ((g % NSLOT) * SLOT) & 0xffff
        f = frag_reg(n)
        tag = f"w{n}"
        if g < 8:
            if j == 0 and t == 0:
                set_hi("x", xaddr, g)
                set_hi("w0", waddr0, g)
                for jj in range(4):
                    r = vXF + 4 * (4 * g + jj)
                    a.ldsop(f"ds_read_b128 v[{r}:{r+3}], v{vXA+jj} offset:{lo}", f"x{g}_{jj}")
            if ch == 0:
                a.ldsop(f"ds_read_b128 v[{f}:{f+3}], v{vWS+j} offset:{lo + t*4096}", tag)
            else:
                o = lo + t * 4096 + j * 1024
                a.ldsop(f"ds_read_b64_tr_b16 v[{f}:{f+1}], v{vWM} offset:{o}", tag)
                a.ldsop(f"ds_read_b64_tr_b16 v[{f+2}:{f+3}], v{vWM} offset:{o+256}", tag)
        else:
            if c2 == 0 and j == 0 and t == 0:
                set_hi("w1", [vW1], g)
            o = lo + c2 * 16384 + t * 4096 + j * 1024
            a.ldsop(f"ds_read_b64_tr_b16 v[{f}:{f+1}], v{vW1} offset:{o}", tag)
            a.ldsop(f"ds_read_b64_tr_b16 v[{f+2}:{f+3}], v{vW1} offset:{o+256}", tag)

    def mfma(n):
        g, c2, j, t = slots[n]
        f = frag_reg(n)
        if g < 8:
            xf = vXF + 4 * (4 * g + j)
            acc = vACC + 16 * t
            a.lgwait(f"x{g}_{j}")
        else:
            xf = vXF + 4 * (4 * (2 * (g - 8) + c2) + j)
            acc = vACC2 + 16 * t
        a.lgwait(f"w{n}")
        if ch == 0 and g < 8:
            a(f"v_mfma_f32_32x32x16_bf16 v[{acc}:{acc+15}], v[{xf}:{xf+3}], v[{f}:{f+3}], v[{acc}:{acc+15}]")
        else:
            a(f"v_mfma_f32_32x32x16_bf16 v[{acc}:{acc+15}], v[{f}:{f+3}], v[{xf}:{xf+3}], v[{acc}:{acc+15}]")

    def colsum_at(n):
        g, c2, j, t = slots[n]
        if (g == 0) or (g == 8 and c2 == 1):
            acc = CSACC if g == 0 else CS1ACC
            lab = a.newlab("CSK")
            f = frag_reg(n)
            c = "0" if j == 0 else f"v[{acc}:{acc+15}]"
            a(f"""s_cmp_eq_u32 s{sCSM}, {t+1}
            s_cbranch_scc0 {lab}
            v_mfma_f32_32x32x16_bf16 v[{acc}:{acc+15}], v[{ONES}:{ONES+3}], v[{f}:{f+3}], {c}""")
            a.label(lab)

    dmaq = []

    def stage_barrier(g):
        if ch == 0 and g == 7:
            gather_finish(a, 0, GATH0, a.nvm - marks["g0"], 3)
            for i in range(16):
                a(f"v_mov_b32 v{GATH0+i}, 0")
        if g == 10 and ch == 1:
            a.vmwait("u0")
            write_flag(a, 0, ch)
        a.vmwait(f"st{g+1}")
        a("s_barrier")
        if ch == 0 and g in (8, 9) and marks.get("edone") and not marks.get("published"):
            only_rg(a, 0, lambda: s_publish(a))
            marks["published"] = True
        if ch == 1:
            nxt = g + 3
            if g >= 1:
                if nxt < 8:
                    dmaq.extend(dma_p0(nxt))
                elif nxt < 12:
                    dmaq.extend(dma_p1(nxt - 8))
            if g == 9:
                dmaq.extend(p2_B(0))
            if g == 10:
                dmaq.extend(p2_B(1))

    marks = {}
    a.vmwait("st0")
    a("s_barrier")
    stamp(a, 1)
    for n in range(LOOK):
        issue_reads(n)
    for n in range(NS):
        g, c2, j, t = slots[n]
        mfma(n)
        colsum_at(n)
        nn = n + LOOK
        if nn < NS:
            if slots[nn][0] != slots[nn - 1][0]:
                stage_barrier(slots[nn - 1][0])
            issue_reads(nn)
        if dmaq:
            code, tag = dmaq.pop(0)
            a.vmop(code, tag)
        if g >= 8:
            a.fill(FILL0 if ch == 0 else FILL)
        elif g >= 3:
            a.fill(3)
        if n == last_of[g]:
            if g == 0:
                colsum_store(a, CSACC, ch)
                a("s_nop 7")
                for i in range(16):
                    a(f"v_mov_b32 v{CSACC+i}, 0")
            if g == 2 and ch == 0:
                a.vmwait("par")
                q = Q()
                s_params(q)
                a.fillq = q.q
            if g == 5 and ch == 0:
                gather_loads(a, 0, GATH0, 3)
                marks["g0"] = a.nvm
            if g == 7:
                a.fill_all()
                stamp(a, 2)
                q = Q()
                if ch == 1:
                    q(f"""s_lshl_b32 s{sT5}, s{sCG}, 11
                    s_add_u32 s{sT5}, s{sT5}, s{sHPOS}""")
                    row_stats_M(q, vT)
                    gelu_epi(q, vACC, sT5, 64 * 4, "u0", 4, vT)
                else:
                    s_epilogue1(q)
                    q.q.append(("call", lambda: marks.__setitem__("edone", True)))
                    row_stats_M(q, vT)
                a.fillq = q.q
            if g == 8:
                colsum_store(a, CS1ACC, 2 + ch, koff=1)
            if g == 9:
                a.fill_all()
                stamp(a, 3)
                if ch == 0:
                    lookback_loads(a)
                    a(f"""s_lshl_b32 s{sT5}, s{sCG}, 12
                    s_add_u32 s{sXB}, s{sHPOS}, s{sT5}
                    s_add_u32 s{sXB}, s{sXB}, {86*1024}""")
                    q = Q()
                    for _ in range(SW_DELAY):
                        q.q.append(("calln", lambda: None, FILL0))
                    s_work_atoms(a, q)
                    a.fillq = q.q
            if g == 10 and ch == 0 and not marks.get("published"):
                only_rg(a, 0, lambda: s_publish(a))
            if g == 10 and ch == 0:
                gather_loads(a, 1, GATH1, 3)
                marks["g1"] = a.nvm
    stamp(a, 4)
    while dmaq:
        code, tag = dmaq.pop(0)
        a.vmop(code, tag)
    if ch == 0:
        a.fill_all()
        gather_finish(a, 1, GATH1, a.nvm - marks["g1"], 3)
    a("s_barrier")
    stamp(a, 5)
    if ch == 1:
        lab = a.newlab("U2S")
        a(f"""s_cmp_ge_u32 s{sCG}, 11
        s_cbranch_scc1 {lab}
        s_lshl_b32 s{sT5}, s{sCG}, 11
        s_add_u32 s{sT5}, s{sT5}, s{sHPOS}
        s_add_u32 s{sT5}, s{sT5}, {64*1024}""")
        a.label(lab + "_X")
        a.l.pop()
        a.l = a.l[:-5]
        for st in (2, 3):
            for code, tag in p2_B(st):
                a.vmop(code, tag)
        poll_flags(a, 0)
        only_rg(a, 3, lambda: touch_A(a, 0))
        for st in range(4):
            for code, tag in p2_A(st):
                a.vmop(code, tag)
        stamp(a, 6)
        a(f"""s_cmp_ge_u32 s{sCG}, 11
        s_cbranch_scc1 {lab}
        s_lshl_b32 s{sT5}, s{sCG}, 11
        s_add_u32 s{sT5}, s{sT5}, s{sHPOS}
        s_add_u32 s{sT5}, s{sT5}, {64*1024}""")
        gelu_epi(a, vACC2, sT5, 192 * 4, "u12", 48, vT, maybe=True)
        a.label(lab)
        a.lg = []
        marks["u12"] = a.nvm
        stamp(a, 8)
    else:
        a(f"""s_lshl_b32 s{sT5}, s{sCG}, 11
        s_add_u32 s{sT5}, s{sT5}, s{sHPOS}
        s_add_u32 s{sT5}, s{sT5}, {32*1024}""")
        gelu_epi(a, vACC2, sT5, 128 * 4, "u12", 48, vT)
        stamp(a, 8)
    a.marks = marks
    phase2(a, ch)


def phase2(a, ch):
    kh = ch
    vAA0, vAA1, vB0, vC0, vC1, vXO, vDK, vSO, vDO = 4, 5, 6, 7, 8, 9, 10, 11, 12
    vF = 128
    vAC = 224
    vEX = 96
    a(f"""s_lshl_b32 s{sT0}, s{sRT}, 13
    v_lshlrev_b32 v{vAA0}, 4, v{vLANE}
    v_add_u32 v{vAA0}, s{sT0}, v{vAA0}
    v_add_u32 v{vAA0}, {kh*4096}, v{vAA0}
    v_lshrrev_b32 v{vT}, 5, v{vLANE}
    v_lshlrev_b32 v{vT}, 2, v{vT}
    v_bfe_u32 v3, v{vLANE}, 2, 2
    v_add_u32 v{vT}, v{vT}, v3
    v_lshlrev_b32 v{vT}, 7, v{vT}
    v_bfe_u32 v3, v{vLANE}, 3, 1
    v_xor_b32 v3, s{sCT}, v3
    v_lshl_add_u32 v{vT}, v3, 6, v{vT}
    v_bfe_u32 v3, v{vLANE}, 4, 1
    v_lshl_add_u32 v{vT}, v3, 5, v{vT}
    v_and_b32 v3, 3, v{vLANE}
    v_lshl_add_u32 v{vT}, v3, 3, v{vT}
    v_add_u32 v{vB0}, {16384 + kh*8192}, v{vT}
    v_and_b32 v{vT}, 31, v{vLANE}
    v_bfe_u32 v3, v{vT}, 1, 3
    v_lshrrev_b32 v{vT+1}, 5, v{vLANE}
    v_add_u32 v{vT+1}, {4*kh}, v{vT+1}
    v_xor_b32 v3, v3, v{vT+1}
    v_lshlrev_b32 v{vT}, 7, v{vT}
    v_lshl_add_u32 v{vT}, v3, 4, v{vT}
    s_lshl_b32 s{sT0}, s{sCT}, 12
    s_add_u32 s{sT0}, s{sT0}, 16384
    v_add_u32 v{vC0}, s{sT0}, v{vT}
    v_xor_b32 v{vC1}, 32, v{vC0}
    v_lshrrev_b32 v{vT}, 5, v{vLANE}
    v_lshlrev_b32 v{vT}, 4, v{vT}
    s_lshl_b32 s{sT0}, s{sRB2}, 6
    s_lshl_b32 s{sT1}, s{sRT}, 5
    s_add_u32 s{sT0}, s{sT0}, s{sT1}
    s_add_u32 s{sT0}, s{sT0}, {8*kh}
    v_add_u32 v{vT}, s{sT0}, v{vT}
    v_lshlrev_b32 v{vSO}, 4, v{vT}
    v_lshlrev_b32 v{vT}, 9, v{vT}
    v_and_b32 v3, 31, v{vLANE}
    s_lshl_b32 s{sT0}, s{sCB}, 6
    s_lshl_b32 s{sT1}, s{sCT}, 5
    s_add_u32 s{sT0}, s{sT0}, s{sT1}
    v_add_u32 v3, s{sT0}, v3
    v_add_u32 v{vT}, v{vT}, v3
    v_lshlrev_b32 v{vXO}, 1, v{vT}
    v_lshlrev_b32 v{vDO}, 1, v3""")

    def epi_loads():
        a.vmop(f"buffer_load_ushort v{vDK}, v{vDO}, s[{ST}:{ST+3}], 0 offen", "epi")
        for k in range(8):
            ro = k * 1024
            so, io = (ro // 4096) * 4096, ro % 4096
            a(f"s_mov_b32 s{sT0}, {so}")
            a.vmop(f"buffer_load_ushort v{vEX+k}, v{vXO}, s[{SX}:{SX+3}], s{sT0} offen offset:{io}", "epi")
        a(f"s_mov_b32 s{sT0}, {WS_STAT}")
        for k in range(8):
            a.vmop(f"buffer_load_dword v{vEX+8+k}, v{vSO}, s[{SWS}:{SWS+3}], s{sT0} offen offset:{k*16} sc0 sc1", "epi")
            a.vmop(f"buffer_load_dword v{vEX+16+k}, v{vSO}, s[{SWS}:{SWS+3}], s{sT0} offen offset:{k*16+8} sc0 sc1", "epi")
    for i in range(16):
        a(f"v_mov_b32 v{vAC+i}, 0")
    hi2 = {"v": 0}

    def nvalid(st):
        return 2 if (ORDER[st] == ("M", 10) and kh == 1) else 4

    def p2_reads(st, s):
        g = 12 + st
        slot = (g % NSLOT) * SLOT
        hi, lo = slot >> 16, slot & 0xffff
        if s == 0 and hi != hi2["v"]:
            for r in (vAA0, vB0, vC0, vC1):
                a(f"v_xor_b32 v{r}, 0x10000, v{r}")
            hi2["v"] = hi
        f = vF + 8 * ((4 * st + s) % 8)
        tag = f"r{st}_{s}"
        a.ldsop(f"ds_read_b128 v[{f}:{f+3}], v{vAA0} offset:{lo + s*1024}", tag)
        if ORDER[st][0] == "M":
            a.ldsop(f"ds_read_b64_tr_b16 v[{f+4}:{f+5}], v{vB0} offset:{lo + s*2048}", tag)
            a.ldsop(f"ds_read_b64_tr_b16 v[{f+6}:{f+7}], v{vB0} offset:{lo + s*2048+1024}", tag)
        else:
            part, s2 = s >> 1, s & 1
            a.ldsop(f"ds_read_b128 v[{f+4}:{f+7}], v{vC0+s2} offset:{lo + part*8192}", tag)

    def p2_barrier(st):
        if ch == 1:
            a.vmwait(f"A{st}")
            a.vmwait(f"B{st}")
        a("s_barrier")

    if ch == 0:
        a.vmwait("h")
        write_flag(a, 2, 0)
    p2_barrier(0)
    stamp(a, 7)
    for s in range(nvalid(0)):
        p2_reads(0, s)
    dq = []
    for st in range(NST2):
        if st == 4:
            stamp(a, 9)
        if st == 11:
            stamp(a, 13)
        if st + 1 < NST2:
            if ch == 0:
                if st + 1 == 2:
                    a.vmwait("u12")
                    write_flag(a, 1, 0)
                if st + 1 == E2_ST:
                    only_rg(a, 3, lambda: (poll_flags(a, 2), touch_A(a, 2)))
                if st + 1 == E1_ST:
                    only_rg(a, 3, lambda: (poll_flags(a, 1), touch_A(a, 1)))
            else:
                if st + 1 == 2:
                    n = a.nvm - a.marks["u12"]
                    a(f"s_waitcnt vmcnt({n})")
                    write_flag(a, 1, 1)
            p2_barrier(st + 1)
            if ch == 1 and st >= 1 and st + 3 < NST2:
                dq.extend(p2_B(st + 3)); dq.extend(p2_A(st + 3))
        for s in range(4):
            if s < nvalid(st):
                f = vF + 8 * ((4 * st + s) % 8)
                a.lgwait(f"r{st}_{s}")
                a(f"v_mfma_f32_32x32x16_bf16 v[{vAC}:{vAC+15}], v[{f}:{f+3}], v[{f+4}:{f+7}], v[{vAC}:{vAC+15}]")
            if st + 1 < NST2 and s < nvalid(st + 1):
                p2_reads(st + 1, s)
            for _ in range(2):
                if dq:
                    code, tag = dq.pop(0)
                    a.vmop(code, tag)
        if st == 3:
            epi_loads()
    stamp(a, 10)
    a(f"""s_nop 15
    s_barrier
    s_lshl_b32 s{sT0}, s{sRG}, 12
    v_lshlrev_b32 v{vT}, 4, v{vLANE}
    v_add_u32 v{vT}, s{sT0}, v{vT}""")
    R = vF
    if kh == 0:
        a(f"""ds_write_b128 v{vT}, v[{vAC+8}:{vAC+11}] offset:2048
        ds_write_b128 v{vT}, v[{vAC+12}:{vAC+15}] offset:3072
        s_waitcnt lgkmcnt(0)
        s_barrier
        ds_read_b128 v[{R}:{R+3}], v{vT}
        ds_read_b128 v[{R+4}:{R+7}], v{vT} offset:1024""")
    else:
        a(f"""ds_write_b128 v{vT}, v[{vAC}:{vAC+3}]
        ds_write_b128 v{vT}, v[{vAC+4}:{vAC+7}] offset:1024
        s_waitcnt lgkmcnt(0)
        s_barrier
        ds_read_b128 v[{R}:{R+3}], v{vT} offset:2048
        ds_read_b128 v[{R+4}:{R+7}], v{vT} offset:3072""")
    a("s_waitcnt vmcnt(0)")
    a.vm = []
    a(f"v_lshlrev_b32 v{vDK}, 16, v{vDK}\nv_lshlrev_b32 v{vT}, 1, v{vXO}")
    for k in range(8):
        a(f"v_lshlrev_b32 v{vEX+k}, 16, v{vEX+k}\nv_rcp_f32 v{vEX+16+k}, v{vEX+16+k}")
    for k in range(8):
        a(f"v_sub_f32 v{vEX+8+k}, v{vEX+k}, v{vEX+8+k}")
    for k in range(0, 8, 2):
        a(f"v_cvt_pk_bf16_f32 v{vT+1}, v{vEX+8+k}, v{vEX+9+k}")
        a(f"v_lshlrev_b32 v{vEX+8+k}, 16, v{vT+1}\nv_and_b32 v{vEX+9+k}, 0xffff0000, v{vT+1}")
    for k in range(8):
        a(f"v_mul_f32 v{vEX+8+k}, v{vEX+8+k}, v{vEX+16+k}")
    for k in range(0, 8, 2):
        a(f"v_cvt_pk_bf16_f32 v{vT+1}, v{vEX+8+k}, v{vEX+9+k}")
        a(f"v_lshlrev_b32 v{vEX+8+k}, 16, v{vT+1}\nv_and_b32 v{vEX+9+k}, 0xffff0000, v{vT+1}")
    for k in range(8):
        a(f"v_mul_f32 v{vEX+8+k}, v{vEX+8+k}, v{vDK}")
    for k in range(0, 8, 2):
        a(f"v_cvt_pk_bf16_f32 v{vT+1}, v{vEX+8+k}, v{vEX+9+k}")
        a(f"v_lshlrev_b32 v{vEX+8+k}, 16, v{vT+1}\nv_and_b32 v{vEX+9+k}, 0xffff0000, v{vT+1}")
    for k in range(8):
        a(f"v_add_f32 v{vEX+8+k}, v{vEX+8+k}, v{vEX+k}")
    a("s_waitcnt lgkmcnt(0)")
    off = 0 if kh == 0 else 8
    for k in range(8):
        a(f"v_add_f32 v{R+k}, v{R+k}, v{vAC+off+k}")
    for k in range(8):
        a(f"v_add_f32 v{R+k}, v{R+k}, v{vEX+8+k}")
    for k in range(8):
        ro = k * 2048
        so, io = (ro // 4096) * 4096, ro % 4096
        a(f"s_mov_b32 s{sT0}, {so}")
        a(f"buffer_store_dword v{R+k}, v{vT}, s[{SO}:{SO+3}], s{sT0} offen offset:{io}")
    if ch == 0:
        lab = a.newlab("EP")
        a(f"""s_cmp_eq_u32 s{sRB2}, 31
        s_cbranch_scc0 {lab}
        s_cmp_eq_u32 s{sCB}, 0
        s_cbranch_scc0 {lab}
        s_cmp_eq_u32 s{sW}, 0
        s_cbranch_scc0 {lab}
        v_mov_b32 v4, s{sTAG}
        v_mov_b32 v3, 0
        s_mov_b32 s{sT0}, {WS_EPOCH}
        s_mov_b64 exec, 1
        buffer_store_dword v4, v3, s[{SWS}:{SWS+3}], s{sT0} offen sc0 sc1
        s_mov_b64 exec, -1""")
        a.label(lab)
    stamp(a, 11)
    if STAMPS:
        a("s_waitcnt vmcnt(0)")
        stamp(a, 12)
    stamp_flush(a, 14)
    a("s_endpgm")


if __name__ == "__main__":
    main(sys.argv[1] if len(sys.argv) > 1 else "cdna_kernels/" + NAME + ".s")
```

```python
import sys, math, struct, os

NAME = "parallel_sum__ssm_conv_s5__glu_gated_geglu__prompt"
KNAME = NAME + "_kernel"

E = lambda k, d: int(os.environ.get(k, str(d)))
STAMPS = E("STAMPS", 0)
SPIN_MAX = E("SPIN_MAX", 200000)
CODE_PREFETCH = E("CODE_PREFETCH", 1)
W2_PREFETCH = E("W2_PREFETCH", 1)
FILL = E("FILL", 7)
FILL0 = E("FILL0", 14)
SW_DELAY = E("SW_DELAY", 8)
NPRE = E("NPRE", 2)
W2_AT = E("W2_AT", 0)
LOOK = E("LOOK", 3)
A_TOUCH = E("A_TOUCH", 1)
E2_ST = E("E2_ST", 2)
E1_ST = E("E1_ST", 8)
X_NOMFMA = E("X_NOMFMA", 0)
X_NOREAD = E("X_NOREAD", 0)

NKS = 150
RT_STRIDE = NKS * 1024
WS_AGG = 0xA00000
WS_STAT = 0xA40000
WS_CS = 0xA80000
WS_FLG = 0xB00000
WS_EPOCH = 0xB10000
WS_DBG = 0xF00000
WS_SIZE = 0x10000000

LOG2E = 1.4426950408889634
SLOT = 32768
NSLOT = 4
SCR = NSLOT * SLOT
SCR_T = SCR
SCR_CS = 16384
SCR_ST = 17408
SCR_ES = 18432
LDS_BYTES = 163840
NST2 = 19
NBS, NAS = 3, 5
B_BASE, A_BASE = 0, 49152


def f2u(x):
    return struct.unpack("<I", struct.pack("<f", x))[0]


class A:
    def __init__(self):
        self.l = []
        self.nlab = 0
        self.vm = []
        self.nvm = 0
        self.lg = []
        self.fillq = []

    def __call__(self, s):
        for line in s.strip("\n").split("\n"):
            line = line.strip()
            if not line:
                continue
            if X_NOMFMA and line.startswith("v_mfma"):
                continue
            self.l.append("  " + line)

    def label(self, name):
        self.l.append(name + ":")

    def newlab(self, p="L"):
        self.nlab += 1
        return f"{p}_{self.nlab}"

    def vmop(self, s, tag, maybe=False):
        self(s)
        if not maybe:
            self.vm.append(tag)
            self.nvm += 1

    def vmwait(self, tag):
        idx = [i for i, t in enumerate(self.vm) if t == tag]
        if not idx:
            return
        n = len(self.vm) - 1 - idx[-1]
        assert n <= 63, n
        self(f"s_waitcnt vmcnt({n})")
        self.vm = self.vm[idx[-1] + 1:]

    def vmwait_all(self):
        self("s_waitcnt vmcnt(0)")
        self.vm = []

    def ldsop(self, s, tag):
        if X_NOREAD and tag[0] in "xwr":
            return
        self(s)
        self.lg.append(tag)
        assert len(self.lg) <= 30

    def lgwait(self, tag):
        idx = [i for i, t in enumerate(self.lg) if t == tag]
        if not idx:
            return
        n = len(self.lg) - 1 - idx[-1]
        n = min(n, 15)
        self(f"s_waitcnt lgkmcnt({n})")
        self.lg = self.lg[len(self.lg) - n:] if n else []

    def lgwait_all(self):
        self("s_waitcnt lgkmcnt(0)")
        self.lg = []

    def fill(self, n):
        while n > 0 and self.fillq:
            at = self.fillq.pop(0)
            k = at[0]
            if k == "v":
                self(at[1]); n -= 1
            elif k == "lds":
                self.ldsop(at[1], at[2]); n -= 1
            elif k == "lgw":
                self.lgwait(at[1])
            elif k == "vm":
                self.vmop(at[1], at[2], at[3]); n -= 1
            elif k == "call":
                at[1]()
            elif k == "calln":
                at[1](); n -= at[2]

    def fill_all(self):
        self.fill(10 ** 9)

    def text(self):
        return "\n".join(self.l) + "\n"


class Q:
    def __init__(self):
        self.q = []

    def __call__(self, s):
        for line in s.strip("\n").split("\n"):
            line = line.strip()
            if line:
                self.q.append(("v", line))

    def ldsop(self, s, tag):
        self.q.append(("lds", s, tag))

    def lgwait(self, tag):
        self.q.append(("lgw", tag))

    def vmop(self, s, tag, maybe=False):
        self.q.append(("vm", s, tag, maybe))


def srd(a, s, ptr_lo, nbytes):
    a(f"""s_mov_b32 s{s}, s{ptr_lo}
    s_and_b32 s{s+1}, s{ptr_lo+1}, 0xffff
    s_mov_b32 s{s+2}, {nbytes}
    s_mov_b32 s{s+3}, 0x20000""")


def rne_bf16(a, v):
    a(f"v_cvt_pk_bf16_f32 v{v}, v{v}, v{v}\nv_lshlrev_b32 v{v}, 16, v{v}")


def wave_sum(a, v, tmp_s):
    for ctrl in ("row_shr:1", "row_shr:2", "row_shr:4", "row_shr:8"):
        a(f"s_nop 1\nv_add_f32_dpp v{v}, v{v}, v{v} {ctrl} row_mask:0xf bank_mask:0xf")
    a(f"s_nop 1\nv_add_f32_dpp v{v}, v{v}, v{v} row_bcast:15 row_mask:0xa bank_mask:0xf")
    a(f"s_nop 1\nv_add_f32_dpp v{v}, v{v}, v{v} row_bcast:31 row_mask:0xc bank_mask:0xf")
    a(f"s_nop 1\nv_readlane_b32 s{tmp_s}, v{v}, 63")


SX, SS, SM, SWS, SWD, SC, SO, ST = 4, 8, 12, 16, 20, 24, 28, 32
sW, sRG, sRB, sCG = 36, 37, 38, 39
sKC0, sU0B, sDUM, sTAG = 72, 73, 74, 75
sT0, sT1, sT2, sT3, sT4, sT5 = 76, 77, 78, 79, 80, 81
sMX, sMS, sMU, sM1 = 82, 83, 84, 85
sCSM = 86
sRB2, sCB, sRT, sCT = 87, 88, 89, 90
sSPIN = 91
sEX = 92
sMASK = 94
sAOFF, sLW, s3RG, s2RG = 96, 97, 98, 99
sXB, sHPOS = 100, 101
SM2 = 68
STAMP0 = 40
P_X, P_LRE, P_LIM, P_BRE, P_BIM, P_CRE, P_CIM, P_LDT = 40, 42, 44, 46, 48, 50, 52, 54
P_DSK, P_BX, P_WG, P_WU, P_WD, P_OUT, P_DBG, P_WS = 56, 58, 60, 62, 64, 66, 68, 70

vLANE = 1
vXA = 4
vWS = 8
vWM = 8
vW1 = 12
vDX0, vDX1, vDS, vDM = 13, 14, 15, 16
vDS1 = 47
vT = 17
ONES = 28
vAr, vAi, vKr, vKi, vA16r, vA16i, vA128r, vA128i = 32, 33, 34, 35, 36, 37, 38, 39
vRINV, vNM = 40, 41
vDA, vDB, vDC0, vDC1 = 42, 43, 44, 45
vK1, vCA = 46, 47
vFR = 48
vACC = 64
vACC2 = 96
vXF = 128
CSACC = 96
GATH0 = 112
CS1ACC = 128
GATH1 = 144
JUNK = 255


PSTAMP = E("PSTAMP", 0)


def pstamp(a, i):
    if PSTAMP:
        a(f"s_memrealtime s[{sEX}:{sEX+1}]\ns_waitcnt lgkmcnt(0)\nv_mov_b32 v{232+i}, s{sEX}")


DBGD = E("DBGD", -1)


P1DBG = E("P1DBG", 0)


def stamp(a, i, force=False):
    if STAMPS:
        if i == 3:
            return
        if P1DBG and i in (6, 9, 13) and not force:
            return
        a(f"s_memrealtime s[{STAMP0+2*i}:{STAMP0+2*i+1}]")
        if i == 0:
            a(f"s_mov_b32 s{STAMP0+6}, s{sMASK}\ns_mov_b32 s{STAMP0+7}, s{sMASK+1}")


def stamp_flush(a, n):
    if not STAMPS:
        return
    a("s_waitcnt lgkmcnt(0)")
    a(f"s_lshl_b32 s{sT0}, s2, 3\ns_add_u32 s{sT0}, s{sT0}, s{sW}\ns_lshl_b32 s{sT0}, s{sT0}, 6\ns_add_u32 s{sT0}, s{sT0}, {WS_DBG}")
    a("v_mov_b32 v3, 0")
    for i in range(n):
        a(f"v_mov_b32 v2, s{STAMP0+2*i}")
        a(f"buffer_store_dword v2, v3, s[{SWS}:{SWS+3}], s{sT0} offen offset:{4*i}")
    if DBGD >= 0:
        lab = a.newlab("DD")
        a(f"""s_cmp_eq_u32 s2, {DBGD}
        s_cbranch_scc0 {lab}
        s_cmp_eq_u32 s{sW}, {E("DBGW", 0)}
        s_cbranch_scc0 {lab}
        s_load_dwordx2 s[{sT2}:{sT3}], s[0:1], 112
        s_waitcnt lgkmcnt(0)
        s_mov_b32 s{ST}, s{sT2}
        s_and_b32 s{ST+1}, s{sT3}, 0xffff
        s_mov_b32 s{ST+2}, 256
        s_mov_b32 s{ST+3}, 0x20000
        v_mov_b32 v3, 0""")
        for i in range(n):
            a(f"v_mov_b32 v2, s{STAMP0+2*i}")
            a(f"buffer_store_dword v2, v3, s[{ST}:{ST+3}], 0 offen offset:{4*i}")
        a.label(lab)


def dma_p0(s, ch):
    slot = (s % NSLOT) * SLOT
    it = []
    if ch == 1:
        pre = f"""s_add_u32 s{sT0}, s{sKC0}, {s}
        s_and_b32 s{sT0}, s{sT0}, 7
        s_lshl_b32 s{sT3}, s{sT0}, 7
        s_add_u32 s{sT4}, s{sT3}, 16384
        """
        for i in range(4):
            vd = vDX0 if i % 2 == 0 else vDX1
            so = sT3 if i < 2 else sT4
            it.append(((pre if i == 0 else "") + f"""s_add_u32 m0, s{sLW}, {slot + i*1024}
            s_nop 0
            buffer_load_dwordx4 v{vd}, s[{SX}:{SX+3}], s{so} offen lds""", f"st{s}"))
    else:
        pre = f"""s_add_u32 s{sT0}, s{sKC0}, {s}
        s_and_b32 s{sT0}, s{sT0}, 7
        s_lshl_b32 s{sT3}, s{sT0}, 7
        s_mul_i32 s{sT2}, s{sT0}, {64*2752}
        s_add_u32 s{sT2}, s{sT2}, s{sU0B}
        """
        for i in range(2):
            vd = vDS if i == 0 else vDS1
            it.append(((pre if i == 0 else "") + f"""s_add_u32 m0, s{sMS}, {slot + i*1024}
            s_nop 0
            buffer_load_dwordx4 v{vd}, s[{SS}:{SS+3}], s{sT3} offen lds""", f"st{s}"))
        for mat in range(2):
            sr = SM if mat == 0 else SM2
            it.append((f"""s_add_u32 m0, s{sM1}, {slot + 24576 + mat*4096}
            s_nop 0
            buffer_load_dwordx4 v{vDM}, s[{sr}:{sr+3}], s{sT2} offen lds""", f"st{s}"))
    return it


def dma_p1(t, ch):
    g = 8 + t
    slot = (g % NSLOT) * SLOT
    it = []
    c2 = ch
    pre = f"""s_add_u32 s{sT0}, s{sKC0}, {2*t+c2}
    s_and_b32 s{sT0}, s{sT0}, 7
    s_mul_i32 s{sT2}, s{sT0}, {64*2752}
    s_add_u32 s{sT2}, s{sT2}, s{sU0B}
    s_add_u32 s{sT2}, s{sT2}, 64
    s_add_u32 s{sT3}, s{sT2}, s{sDUM}
    """
    for mat in range(2):
        sr = SM if mat == 0 else SM2
        for j in range(2):
            so = sT2 if j == 0 else sT3
            it.append(((pre if (mat == 0 and j == 0) else "") + f"""s_add_u32 m0, s{sM1}, {slot + c2*16384 + j*8192 + mat*4096}
            s_nop 0
            buffer_load_dwordx4 v{vDM}, s[{sr}:{sr+3}], s{so} offen lds""", f"st{g}"))
    return it


ORDER = [("M", i) for i in range(4)] + [("S", j) for j in range(8)] + [("M", i) for i in range(4, 11)]


def p2_A(st):
    slot = ((12 + st) % NSLOT) * SLOT
    kind, ix = ORDER[st]
    ks0 = 8 * ix if kind == "M" else 86 + 8 * ix
    if E("X_AFIX", 0):
        ks0 = 0
    it = []
    for i in range(4):
        it.append((f"""s_add_u32 s{sT1}, s{sAOFF}, {(ks0+i)*1024}
        s_add_u32 m0, s{sLW}, {slot + i*1024}
        s_nop 0
        buffer_load_dwordx4 v{vDA}, s[{SWS}:{SWS+3}], s{sT1} offen sc1 lds""", f"A{st}"))
    return it


def p2_B(st):
    slot = ((12 + st) % NSLOT) * SLOT + 16384
    kind, ix = ORDER[st]
    if E("X_BFIX", 0):
        kind, ix = "M", 0
    it = []
    if kind == "M":
        if ix < 3:
            reg, c = s3RG, 3 * 4 * ix
        elif ix == 3:
            reg, c = s2RG, 2 * 12 + 11
        elif ix < 7:
            reg, c = s3RG, 3 * 4 * (ix - 4) + 1
        elif ix == 7:
            reg, c = s2RG, 2 * 12 + 11 + 1
        else:
            reg, c = s3RG, 3 * 4 * (ix - 8) + 2
        for i in range(4):
            it.append((f"""s_add_u32 s{sT1}, s{reg}, {c*32768 + i*8192}
            s_add_u32 m0, s{sLW}, {slot + i*1024}
            s_nop 0
            buffer_load_dwordx4 v{vDB}, s[{SWD}:{SWD+3}], s{sT1} offen lds""", f"B{st}"))
    else:
        j = ix
        for i in range(4):
            vd = vDC0 if i % 2 == 0 else vDC1
            it.append((f"""s_add_u32 s{sT1}, s{sXB}, {j*128 + i*8192}
            s_add_u32 m0, s{sLW}, {slot + i*1024}
            s_nop 0
            buffer_load_dwordx4 v{vd}, s[{SC}:{SC+3}], s{sT1} offen lds""", f"B{st}"))
    return it


def main(out_path):
    a = A()
    gen(a)
    ref = open("cdna_kernels/" + NAME + ".s.ref").read()
    head = []
    for line in ref.splitlines():
        if line.startswith(";") and "@launch" not in line and "Override" not in line and "grid=ceil" not in line:
            head.append(line)
        elif not line.startswith(";"):
            break
    txt = "\n".join(head) + "\n"
    txt += f"; @launch grid=(256,1,1) block=(512,1,1) lds={LDS_BYTES}\n"
    txt += '.amdgcn_target "amdgcn-amd-amdhsa--gfx950"\n.text\n'
    txt += f".globl {KNAME}\n.p2align 8\n.type {KNAME},@function\n{KNAME}:\n"
    txt += a.text()
    txt += f""".section .rodata,"a"
.p2align 6
.amdhsa_kernel {KNAME}
  .amdhsa_next_free_vgpr 256
  .amdhsa_next_free_sgpr 102
  .amdhsa_accum_offset 256
  .amdhsa_group_segment_fixed_size 0
  .amdhsa_kernarg_size 128
  .amdhsa_user_sgpr_count 2
  .amdhsa_user_sgpr_kernarg_segment_ptr 1
  .amdhsa_system_sgpr_workgroup_id_x 1
.end_amdhsa_kernel
"""
    open(out_path, "w").write(txt)


def flag_load(a, ev, rb_s, vdst, tag):
    a(f"""s_lshl_b32 s{sT0}, s{rb_s}, 8
    s_add_u32 s{sT0}, s{sT0}, {WS_FLG + ev*64}
    v_and_b32 v{vdst}, 15, v{vLANE}
    v_lshlrev_b32 v{vdst}, 2, v{vdst}""")
    a.vmop(f"buffer_load_dword v{vdst}, v{vdst}, s[{SWS}:{SWS+3}], s{sT0} offen sc1", tag)


PRG = (252, 253, 254)


FLG_OFF = {0: 0, 1: 512, 2: 1024}


def poll_flags(a, ev):
    lp, ok = a.newlab("PF"), a.newlab("PFOK")
    wide = (ev == 1)
    a(f"""s_lshr_b32 s{sT0}, s{sRB2}, 1
    s_lshl_b32 s{sT0}, s{sT0}, 11
    s_add_u32 s{sT0}, s{sT0}, {WS_FLG + FLG_OFF[ev]}
    v_lshlrev_b32 v{vT}, {3 if wide else 2}, v{vLANE}
    s_mov_b32 s{sSPIN}, 0""")
    regs = [(248, 249), (250, 251), (252, 253)]
    ld = (lambda r: f"buffer_load_dwordx2 v[{r[0]}:{r[1]}], v{vT}, s[{SWS}:{SWS+3}], s{sT0} offen sc1") if wide else \
         (lambda r: f"buffer_load_dword v{r[0]}, v{vT}, s[{SWS}:{SWS+3}], s{sT0} offen sc1")
    for r in regs:
        a(ld(r) + "\ns_sleep 2")
    a.label(lp)
    for r in regs:
        nx = a.newlab("PFN")
        a(f"""s_waitcnt vmcnt(2)
        v_cmp_ne_u32 vcc, s{sTAG}, v{r[0]}
        s_add_u32 s{sSPIN}, s{sSPIN}, 1""")
        if wide:
            a(f"""s_cbranch_vccnz {nx}
            v_cmp_ne_u32 vcc, s{sTAG}, v{r[1]}
            s_nop 0
            s_cbranch_vccz {ok}""")
            a.label(nx)
        else:
            a(f"s_cbranch_vccz {ok}")
        a(ld(r))
    a(f"""s_cmp_gt_u32 s{sSPIN}, {SPIN_MAX}
    s_cbranch_scc0 {lp}""")
    a.label(ok)


def touch_A(a, ev):
    if not A_TOUCH:
        return
    k0, nl = {0: (0, 64), 1: (32, 108), 2: (86, 128)}[ev]
    a(f"""s_lshr_b32 s{sT0}, s{sCB}, 2
    s_lshl_b32 s{sT1}, s{sRB2}, 1
    s_add_u32 s{sT0}, s{sT0}, s{sT1}
    s_mul_i32 s{sT0}, s{sT0}, {RT_STRIDE}
    s_and_b32 s{sT1}, s{sCB}, 3
    s_mul_i32 s{sT1}, s{sT1}, {nl*128}
    s_add_u32 s{sT0}, s{sT0}, s{sT1}
    s_add_u32 s{sT0}, s{sT0}, {k0*1024}
    v_lshlrev_b32 v{vT+1}, 7, v{vLANE}
    buffer_load_dword v{JUNK}, v{vT+1}, s[{SWS}:{SWS+3}], s{sT0} offen sc1""")
    if nl > 64:
        a(f"s_add_u32 s{sT0}, s{sT0}, 8192")
        if nl < 128:
            a(f"""v_cmp_gt_u32 vcc, {nl-64}, v{vLANE}
            s_and_saveexec_b64 s[{sEX}:{sEX+1}], vcc
            buffer_load_dword v{JUNK}, v{vT+1}, s[{SWS}:{SWS+3}], s{sT0} offen sc1
            s_mov_b64 exec, s[{sEX}:{sEX+1}]""")
        else:
            a(f"buffer_load_dword v{JUNK}, v{vT+1}, s[{SWS}:{SWS+3}], s{sT0} offen sc1")


def write_flag(a, ev, ch):
    sh = 5 if ev == 1 else 4
    a(f"""s_lshl_b32 s{sT0}, s{sRB}, 11
    s_lshl_b32 s{sT1}, s{sCG}, {sh}
    s_add_u32 s{sT0}, s{sT0}, s{sT1}
    s_lshl_b32 s{sT1}, s{sW if ev == 1 else sRG}, 2
    s_add_u32 s{sT0}, s{sT0}, s{sT1}
    s_add_u32 s{sT0}, s{sT0}, {WS_FLG + FLG_OFF[ev]}
    v_mov_b32 v{vT+9}, 0
    v_mov_b32 v{vT+10}, s{sTAG}
    s_mov_b64 s[{sEX}:{sEX+1}], exec
    s_mov_b64 exec, 1""")
    a.vmop(f"buffer_store_dword v{vT+10}, v{vT+9}, s[{SWS}:{SWS+3}], s{sT0} offen sc1", "flag")
    a(f"s_mov_b64 exec, s[{sEX}:{sEX+1}]")


def only_rg(a, rg, fn):
    lab = a.newlab("RG")
    a(f"s_cmp_eq_u32 s{sRG}, {rg}\ns_cbranch_scc0 {lab}")
    lg = list(a.lg)
    fn()
    a.label(lab)
    a.lg = lg


def colsum_mfma(a, wf0, wf1, accreg, first=False):
    l1, l2 = a.newlab("CS"), a.newlab("CS")
    c = "0" if first else f"v[{accreg}:{accreg+15}]"
    a(f"""s_cmp_eq_u32 s{sCSM}, 0
    s_cbranch_scc1 {l2}
    s_cmp_eq_u32 s{sCSM}, 1
    s_cbranch_scc0 {l1}
    v_mfma_f32_32x32x16_bf16 v[{accreg}:{accreg+15}], v[{ONES}:{ONES+3}], v[{wf0}:{wf0+3}], {c}
    s_branch {l2}""")
    a.label(l1)
    a(f"v_mfma_f32_32x32x16_bf16 v[{accreg}:{accreg+15}], v[{ONES}:{ONES+3}], v[{wf1}:{wf1+3}], {c}")
    a.label(l2)


def colsum_store(a, accreg, unit, koff=0):
    l2 = a.newlab("CSS")
    a(f"""s_cmp_eq_u32 s{sCSM}, 0
    s_cbranch_scc1 {l2}
    s_nop 7
    s_nop 7
    s_add_u32 s{sT1}, s{sKC0}, {koff}
    s_and_b32 s{sT1}, s{sT1}, 7
    s_lshl_b32 s{sT0}, s{sCG}, 3
    s_add_u32 s{sT0}, s{sT0}, s{sT1}
    s_lshl_b32 s{sT0}, s{sT0}, 11
    s_sub_u32 s{sT1}, s{sCSM}, 1
    s_lshl_b32 s{sT1}, s{sT1}, 8
    s_add_u32 s{sT0}, s{sT0}, s{sT1}
    s_add_u32 s{sT0}, s{sT0}, {WS_CS + unit*512}
    v_mov_b32 v{accreg+1}, s{sTAG}
    v_lshlrev_b32 v{accreg+2}, 3, v{vLANE}
    v_cmp_gt_u32 vcc, 32, v{vLANE}
    s_and_saveexec_b64 s[{sEX}:{sEX+1}], vcc
    buffer_store_dwordx2 v[{accreg}:{accreg+1}], v{accreg+2}, s[{SWS}:{SWS+3}], s{sT0} offen sc1
    s_mov_b64 exec, s[{sEX}:{sEX+1}]""")
    a.label(l2)


def gather_loads(a, part, dst, atmp):
    l1, l2 = a.newlab("G"), a.newlab("G")
    a(f"""s_cmp_lt_u32 s{sRG}, 2
    s_cbranch_scc0 {l1}
    s_lshl_b32 s{sT0}, s{sCG}, 14
    s_add_u32 s{sT0}, s{sT0}, {WS_CS + part*1024}
    s_lshl_b32 s{sT1}, s{sRG}, 9
    s_add_u32 s{sT0}, s{sT0}, s{sT1}
    v_lshlrev_b32 v{atmp}, 3, v{vLANE}""")
    for j in range(8):
        so, io = (j * 2048 // 4096) * 4096, (j * 2048) % 4096
        a(f"s_add_u32 s{sT1}, s{sT0}, {so}")
        a(f"buffer_load_dwordx2 v[{dst+2*j}:{dst+2*j+1}], v{atmp}, s[{SWS}:{SWS+3}], s{sT1} offen offset:{io} sc1")
    a(f"s_branch {l2}")
    a.label(l1)
    if part == 0:
        a(f"""s_lshl_b32 s{sT0}, s{sRB}, 11
        s_sub_u32 s{sT1}, s{sRG}, 2
        s_lshl_b32 s{sT1}, s{sT1}, 10
        s_add_u32 s{sT0}, s{sT0}, s{sT1}
        s_add_u32 s{sT0}, s{sT0}, {WS_STAT}
        v_lshlrev_b32 v{atmp}, 4, v{vLANE}
        buffer_load_dwordx4 v[{dst}:{dst+3}], v{atmp}, s[{SWS}:{SWS+3}], s{sT0} offen sc1""")
    a.label(l2)


def gather_finish(a, part, dst, nyounger, atmp):
    lr, l1, l2, lok, lok2, l0 = [a.newlab("GF") for _ in range(6)]
    a(f"s_mov_b32 s{sSPIN}, 0")
    a(f"s_waitcnt vmcnt({nyounger})")
    a(f"s_branch {l0}")
    a.label(lr)
    a("s_waitcnt vmcnt(0)")
    a.label(l0)
    a(f"""s_cmp_lt_u32 s{sRG}, 2
    s_cbranch_scc0 {l1}
    s_mov_b64 s[{sMASK}:{sMASK+1}], 0""")
    for j in range(8):
        a(f"""v_cmp_ne_u32 vcc, s{sTAG}, v{dst+2*j+1}
        s_or_b64 s[{sMASK}:{sMASK+1}], s[{sMASK}:{sMASK+1}], vcc""")
    a(f"""s_cmp_eq_u64 s[{sMASK}:{sMASK+1}], 0
    s_cbranch_scc1 {lok}
    s_add_u32 s{sSPIN}, s{sSPIN}, 1
    s_cmp_gt_u32 s{sSPIN}, {SPIN_MAX}
    s_cbranch_scc1 {lok}""")
    gather_loads(a, part, dst, atmp)
    a(f"s_branch {lr}")
    a.label(lok)
    a(f"""v_add_f32 v{dst}, v{dst}, v{dst+2}
    v_add_f32 v{dst+4}, v{dst+4}, v{dst+6}
    v_add_f32 v{dst+8}, v{dst+8}, v{dst+10}
    v_add_f32 v{dst+12}, v{dst+12}, v{dst+14}
    v_add_f32 v{dst}, v{dst}, v{dst+4}
    v_add_f32 v{dst+8}, v{dst+8}, v{dst+12}
    v_add_f32 v{dst}, v{dst}, v{dst+8}
    s_lshl_b32 s{sT0}, s{sRG}, 8
    s_add_u32 s{sT0}, s{sT0}, {SCR}
    v_lshlrev_b32 v{atmp}, 2, v{vLANE}
    v_add_u32 v{atmp}, s{sT0}, v{atmp}
    ds_write_b32 v{atmp}, v{dst} offset:{SCR_CS + part*512}
    s_branch {l2}""")
    a.label(l1)
    if part == 0:
        a(f"""v_cmp_ne_u32 vcc, s{sTAG}, v{dst+1}
        s_mov_b64 s[{sMASK}:{sMASK+1}], vcc
        v_cmp_ne_u32 vcc, s{sTAG}, v{dst+3}
        s_or_b64 s[{sMASK}:{sMASK+1}], s[{sMASK}:{sMASK+1}], vcc
        s_cmp_eq_u64 s[{sMASK}:{sMASK+1}], 0
        s_cbranch_scc1 {lok2}
        s_add_u32 s{sSPIN}, s{sSPIN}, 1
        s_cmp_gt_u32 s{sSPIN}, {SPIN_MAX}
        s_cbranch_scc1 {lok2}""")
        gather_loads(a, part, dst, atmp)
        a(f"s_branch {lr}")
        a.label(lok2)
        a(f"""v_rcp_f32 v{dst+2}, v{dst+2}
        v_sub_f32 v{dst+3}, 0, v{dst}
        s_sub_u32 s{sT0}, s{sRG}, 2
        s_lshl_b32 s{sT0}, s{sT0}, 9
        s_add_u32 s{sT0}, s{sT0}, {SCR}
        v_lshlrev_b32 v{atmp}, 3, v{vLANE}
        v_add_u32 v{atmp}, s{sT0}, v{atmp}
        ds_write_b64 v{atmp}, v[{dst+2}:{dst+3}] offset:{SCR_ST}""")
    a.label(l2)
    a.lgwait_all()


def row_stats_M(q, tmp):
    q(f"""v_and_b32 v{tmp}, 31, v{vLANE}
    v_bfe_u32 v{tmp+1}, v{tmp}, 2, 1
    v_lshlrev_b32 v{tmp+1}, 4, v{tmp+1}
    v_lshrrev_b32 v{tmp+2}, 3, v{tmp}
    v_lshl_add_u32 v{tmp+1}, v{tmp+2}, 2, v{tmp+1}
    v_and_b32 v{tmp+2}, 3, v{tmp}
    v_add_u32 v{tmp+1}, v{tmp+1}, v{tmp+2}
    v_lshlrev_b32 v{tmp+2}, 5, v{vRGV}
    v_add_u32 v{tmp+1}, v{tmp+2}, v{tmp+1}
    v_lshlrev_b32 v{tmp+1}, 3, v{tmp+1}
    v_add_u32 v{tmp+1}, {SCR}, v{tmp+1}""")
    q.ldsop(f"ds_read_b64 v[{vRINV}:{vRINV+1}], v{tmp+1} offset:{SCR_ST}", "rs")
    q.lgwait("rs")


vRGV = 2


def gelu_epi(q, acc, pos_s, cs_off, tagname, csr, T, maybe=False):
    K0 = -2.0 * math.sqrt(2.0 / math.pi) * LOG2E
    K1c = K0 * 0.044715
    q(f"""v_mov_b32 v{vK1}, {f2u(K1c)}
    v_lshrrev_b32 v{vCA}, 5, v{vLANE}
    v_lshlrev_b32 v{vCA}, 4, v{vCA}
    v_add_u32 v{vCA}, {SCR + SCR_CS + cs_off}, v{vCA}""")
    cg_, cu_ = csr, csr + 4
    for qq in range(4):
        q.ldsop(f"ds_read_b128 v[{cg_}:{cg_+3}], v{vCA} offset:{qq*32}", "cs")
        q.ldsop(f"ds_read_b128 v[{cu_}:{cu_+3}], v{vCA} offset:{128 + qq*32}", "cs")
        q.lgwait("cs")
        rs = [4 * qq + i for i in range(4)]
        for i, r in enumerate(rs):
            q(f"v_fma_f32 v{acc+r}, v{vNM}, v{cg_+i}, v{acc+r}")
        for i, r in enumerate(rs):
            q(f"v_fma_f32 v{acc+16+r}, v{vNM}, v{cu_+i}, v{acc+16+r}")
        for i, r in enumerate(rs):
            q(f"v_mul_f32 v{acc+r}, v{acc+r}, v{vRINV}")
        for i, r in enumerate(rs):
            q(f"v_mul_f32 v{T+i}, v{acc+r}, v{acc+r}")
        for i, r in enumerate(rs):
            q(f"v_fmaak_f32 v{T+i}, v{vK1}, v{T+i}, {f2u(K0)}")
        for i, r in enumerate(rs):
            q(f"v_mul_f32 v{T+i}, v{T+i}, v{acc+r}")
        for i, r in enumerate(rs):
            q(f"v_exp_f32 v{T+i}, v{T+i}")
        for i, r in enumerate(rs):
            q(f"v_mul_f32 v{T+4+i}, v{acc+r}, v{acc+16+r}")
        for i, r in enumerate(rs):
            q(f"v_add_f32 v{T+i}, 1.0, v{T+i}")
        for i, r in enumerate(rs):
            q(f"v_rcp_f32 v{T+i}, v{T+i}")
        for i, r in enumerate(rs):
            q(f"v_mul_f32 v{T+4+i}, v{T+4+i}, v{vRINV}")
        for i, r in enumerate(rs):
            q(f"v_mul_f32 v{T+i}, v{T+i}, v{T+4+i}")
        q(f"v_cvt_pk_bf16_f32 v{acc+2*qq}, v{T}, v{T+1}\nv_cvt_pk_bf16_f32 v{acc+2*qq+1}, v{T+2}, v{T+3}")
    q(f"v_lshlrev_b32 v{T}, 4, v{vLANE}")
    q.vmop(f"buffer_store_dwordx4 v[{acc}:{acc+3}], v{T}, s[{SWS}:{SWS+3}], s{pos_s} offen sc1", tagname, maybe)
    q.vmop(f"buffer_store_dwordx4 v[{acc+4}:{acc+7}], v{T}, s[{SWS}:{SWS+3}], s{pos_s} offen offset:1024 sc1", tagname, maybe)


def s_params(q):
    vLre, vLim, vLdt = vT + 7, vT + 8, vT + 9
    t0, t1, t2, t3, t4, t5, t6 = [vT + i for i in range(7)]
    q(f"""v_lshlrev_b32 v{vLre}, 16, v{vA16r}
    v_lshlrev_b32 v{vLim}, 16, v{vA16i}
    v_lshlrev_b32 v{vLdt}, 16, v{vA128r}
    v_mul_f32 v{t0}, {f2u(LOG2E)}, v{vLdt}
    v_exp_f32 v{t0}, v{t0}
    s_nop 0""")
    rne_bf16(q, t0)
    q(f"""v_mul_f32 v{t1}, v{t0}, v{vLre}
    v_mul_f32 v{t2}, v{t0}, v{vLim}
    v_mul_f32 v{t1}, {f2u(LOG2E)}, v{t1}
    v_exp_f32 v{t1}, v{t1}
    v_mul_f32 v{t2}, {f2u(1.0/(2*math.pi))}, v{t2}
    v_rndne_f32 v{t3}, v{t2}
    v_sub_f32 v{t2}, v{t2}, v{t3}
    v_cos_f32 v{t3}, v{t2}
    v_sin_f32 v{t4}, v{t2}
    s_nop 0
    v_mul_f32 v{vAr}, v{t1}, v{t3}
    v_mul_f32 v{vAi}, v{t1}, v{t4}
    v_add_f32 v{t3}, -1.0, v{vAr}
    v_mul_f32 v{t4}, v{vLre}, v{vLre}
    v_fmac_f32 v{t4}, v{vLim}, v{vLim}
    v_rcp_f32 v{t4}, v{t4}
    v_mul_f32 v{t5}, v{t3}, v{vLre}
    v_fmac_f32 v{t5}, v{vAi}, v{vLim}
    v_mul_f32 v{t6}, v{vAi}, v{vLre}
    v_fma_f32 v{t6}, -v{t3}, v{vLim}, v{t6}
    v_add_f32 v{t4}, v{t4}, v{t4}
    v_mul_f32 v{vKr}, v{t5}, v{t4}
    v_mul_f32 v{vKi}, v{t6}, v{t4}
    v_mov_b32 v{vA16r}, v{vAr}
    v_mov_b32 v{vA16i}, v{vAi}""")

    def csq(r, i):
        q(f"""v_mul_f32 v{t0}, v{i}, v{i}
        v_mul_f32 v{t1}, v{r}, v{i}
        v_fma_f32 v{r}, v{r}, v{r}, -v{t0}
        v_add_f32 v{i}, v{t1}, v{t1}""")
    for _ in range(4):
        csq(vA16r, vA16i)
    q(f"v_mov_b32 v{vA128r}, v{vA16r}\nv_mov_b32 v{vA128i}, v{vA16i}")
    for _ in range(3):
        csq(vA128r, vA128i)


def s_epilogue1(q):
    zr = lambda j: vACC + j
    zi = lambda j: vACC + 16 + j
    T = vT
    CR, CI = T + 9, T + 10
    q(f"""v_and_b32 v{T}, 31, v{vLANE}
    v_lshlrev_b32 v{T+1}, 2, v{T}
    v_add_u32 v{T+1}, {SCR}, v{T+1}""")
    q.ldsop(f"ds_read_b32 v{CR}, v{T+1} offset:{SCR_CS}", "sc")
    q.ldsop(f"ds_read_b32 v{CI}, v{T+1} offset:{SCR_CS+128}", "sc")
    q(f"""v_lshrrev_b32 v{T+2}, 5, v{vLANE}
    v_lshlrev_b32 v{T+3}, 5, v{vRGV}
    v_lshl_add_u32 v{T+3}, v{T+2}, 4, v{T+3}
    v_lshlrev_b32 v{T+3}, 3, v{T+3}
    v_add_u32 v{T+3}, {SCR}, v{T+3}""")
    for qq in range(4):
        q.ldsop(f"ds_read_b128 v[4:7], v{T+3} offset:{SCR_ST + qq*32}", "sc")
        q.ldsop(f"ds_read_b128 v[8:11], v{T+3} offset:{SCR_ST + qq*32 + 16}", "sc")
        q.lgwait("sc")
        for i in range(4):
            j = 4 * qq + i
            ri, nm = 4 + 2 * i, 5 + 2 * i
            q(f"""v_fma_f32 v{zr(j)}, v{nm}, v{CR}, v{zr(j)}
            v_fma_f32 v{zi(j)}, v{nm}, v{CI}, v{zi(j)}
            v_mul_f32 v{zr(j)}, v{zr(j)}, v{ri}
            v_mul_f32 v{zi(j)}, v{zi(j)}, v{ri}""")
    cur, alt = (T + 4, T + 5), (T + 7, T + 8)
    q(f"v_mov_b32 v{cur[0]}, v{zr(0)}\nv_mov_b32 v{cur[1]}, v{zi(0)}")
    for j in range(1, 16):
        sr, si = cur
        nr, ni = alt
        q(f"""v_fma_f32 v{nr}, v{vAr}, v{sr}, v{zr(j)}
        v_fma_f32 v{ni}, v{vAr}, v{si}, v{zi(j)}
        v_fma_f32 v{nr}, -v{vAi}, v{si}, v{nr}
        v_fma_f32 v{ni}, v{vAi}, v{sr}, v{ni}""")
        cur, alt = alt, cur
    assert cur == (T + 7, T + 8) and (T + 7) % 2 == 0
    q(f"""v_lshlrev_b32 v{T+1}, 1, v{vRGV}
    v_add_u32 v{T+1}, v{T+1}, v{T+2}
    v_lshlrev_b32 v{T+1}, 8, v{T+1}
    v_lshl_add_u32 v{T+1}, v{T}, 3, v{T+1}
    v_add_u32 v{T+1}, {SCR}, v{T+1}""")
    q.ldsop(f"ds_write_b64 v{T+1}, v[{T+7}:{T+8}] offset:{SCR_ES}", "ew")


def s_publish(a):
    T = vT
    a(f"""s_waitcnt lgkmcnt(0)
    v_and_b32 v{T}, 31, v{vLANE}
    v_lshlrev_b32 v{T+1}, 3, v{T}
    v_add_u32 v{T+1}, {SCR}, v{T+1}
    ds_read_b64 v[4:5], v{T+1} offset:{SCR_ES}
    ds_read_b64 v[6:7], v{T+1} offset:{SCR_ES+256}
    ds_read_b64 v[8:9], v{T+1} offset:{SCR_ES+512}
    ds_read_b64 v[10:11], v{T+1} offset:{SCR_ES+768}
    s_waitcnt lgkmcnt(0)""")

    def step(er, ei):
        a(f"""v_fma_f32 v{T+2}, v{vA16r}, v4, v{er}
        v_fma_f32 v{T+3}, v{vA16r}, v5, v{ei}
        v_fma_f32 v{T+2}, -v{vA16i}, v5, v{T+2}
        v_fma_f32 v5, v{vA16i}, v4, v{T+3}
        v_mov_b32 v4, v{T+2}""")
    step(6, 7); step(8, 9); step(10, 11)
    a(f"""ds_read_b64 v[6:7], v{T+1} offset:{SCR_ES+1024}
    ds_read_b64 v[8:9], v{T+1} offset:{SCR_ES+1280}
    ds_read_b64 v[10:11], v{T+1} offset:{SCR_ES+1536}
    ds_read_b64 v[{T+5}:{T+6}], v{T+1} offset:{SCR_ES+1792}
    s_waitcnt lgkmcnt(0)""")
    assert (T + 5) % 2 == 0
    step(6, 7); step(8, 9); step(10, 11); step(T + 5, T + 6)
    a(f"""v_mov_b32 v6, v5
    v_mov_b32 v5, s{sTAG}
    v_mov_b32 v7, s{sTAG}
    s_lshl_b32 s{sT0}, s{sCG}, 5
    v_add_u32 v{T}, s{sT0}, v{T}
    v_lshlrev_b32 v{T}, 4, v{T}
    s_lshl_b32 s{sT0}, s{sRB}, 13
    s_add_u32 s{sT0}, s{sT0}, {WS_AGG}
    v_cmp_gt_u32 vcc, 32, v{vLANE}
    s_and_saveexec_b64 s[{sEX}:{sEX+1}], vcc
    buffer_store_dwordx4 v[4:7], v{T}, s[{SWS}:{SWS+3}], s{sT0} offen sc1
    s_mov_b64 exec, s[{sEX}:{sEX+1}]""")


LBG = 160
HG = 192


def lookback_loads(a, tracked=True):
    a(f"""v_and_b32 v{vT+9}, 31, v{vLANE}
    s_lshl_b32 s{sT0}, s{sCG}, 5
    v_add_u32 v{vT+9}, s{sT0}, v{vT+9}
    v_lshlrev_b32 v{vT+9}, 4, v{vT+9}           ; p*16
    v_lshrrev_b32 v3, 5, v{vLANE}
    s_sub_u32 s{sT0}, s{sRB}, 1
    v_sub_u32 v3, s{sT0}, v3                    ; rb-1-hf
    v_lshlrev_b32 v3, 13, v3
    v_add_u32 v3, v3, v{vT+9}
    s_mov_b32 s{sT0}, {WS_AGG}
    v_mov_b32 v{vT+10}, 0x7ff00000""")
    for i in range(8):
        a(f"""v_subrev_u32 v{vT+9}, {i*16384}, v3
        v_cmp_gt_i32 vcc, 0, v{vT+9}
        s_nop 1
        v_cndmask_b32 v{vT+9}, v{vT+9}, v{vT+10}, vcc""")
        code = f"buffer_load_dwordx4 v[{LBG+4*i}:{LBG+4*i+3}], v{vT+9}, s[{SWS}:{SWS+3}], s{sT0} offen sc1"
        if tracked:
            a.vmop(code, "lb")
        else:
            a(code)


def s_work_atoms(a, q):
    zr = lambda j: vACC + j
    zi = lambda j: vACC + 16 + j
    T = vT
    L = LBG
    G = LBG
    EB = 128
    q(f"""v_and_b32 v{T+8}, 31, v{vLANE}
    v_lshlrev_b32 v{T}, 3, v{T+8}
    v_add_u32 v{T}, {SCR}, v{T}""")
    for s in range(8):
        q.ldsop(f"ds_read_b64 v[{EB+2*s}:{EB+2*s+1}], v{T} offset:{SCR_ES + s*256}", "se")
    q(f"""v_mul_f32 v{T+5}, v{vA128i}, v{vA128i}
    v_mul_f32 v{T+6}, v{vA128r}, v{vA128i}
    v_fma_f32 v{T+5}, v{vA128r}, v{vA128r}, -v{T+5}
    v_add_f32 v{T+6}, v{T+6}, v{T+6}""")

    def check():
        lp, got = a.newlab("LB"), a.newlab("LBG")
        a(f"s_mov_b32 s{sSPIN}, 0")
        a.vmwait("lb")
        a.label(lp)
        a(f"""v_lshrrev_b32 v{T+1}, 5, v{vLANE}
        s_sub_u32 s{sT0}, s{sRB}, 1
        v_sub_u32 v{T+1}, s{sT0}, v{T+1}
        s_mov_b64 s[{sMASK}:{sMASK+1}], 0""")
        for i in range(8):
            a(f"""v_cmp_ne_u32 vcc, s{sTAG}, v{L+4*i+1}
            v_cmp_ne_u32 s[{sEX}:{sEX+1}], s{sTAG}, v{L+4*i+3}
            s_or_b64 s[{sEX}:{sEX+1}], s[{sEX}:{sEX+1}], vcc
            v_cmp_le_i32 vcc, {2*i}, v{T+1}
            s_and_b64 s[{sEX}:{sEX+1}], s[{sEX}:{sEX+1}], vcc
            s_or_b64 s[{sMASK}:{sMASK+1}], s[{sMASK}:{sMASK+1}], s[{sEX}:{sEX+1}]""")
        a(f"""s_cmp_eq_u64 s[{sMASK}:{sMASK+1}], 0
        s_cbranch_scc1 {got}
        s_add_u32 s{sSPIN}, s{sSPIN}, 1
        s_cmp_gt_u32 s{sSPIN}, {SPIN_MAX}
        s_cbranch_scc1 {got}""")
        lookback_loads(a, tracked=False)
        a(f"s_waitcnt vmcnt(0)\ns_branch {lp}")
        a.label(got)
    q.q.append(("call", check))
    cr, ci = T + 1, T + 2
    q(f"v_mov_b32 v{cr}, v{L+28}\nv_mov_b32 v{ci}, v{L+30}")
    for i in range(6, -1, -1):
        q(f"""v_fma_f32 v{T+3}, v{T+5}, v{cr}, v{L+4*i}
        v_fma_f32 v{T+4}, v{T+5}, v{ci}, v{L+4*i+2}
        v_fma_f32 v{T+3}, -v{T+6}, v{ci}, v{T+3}
        v_fma_f32 v{ci}, v{T+6}, v{cr}, v{T+4}
        v_mov_b32 v{cr}, v{T+3}""")
    q(f"""v_mov_b32 v{T+3}, v{cr}
    v_mov_b32 v{T+4}, v{ci}
    s_nop 1
    v_permlane32_swap_b32 v{cr}, v{T+3}
    v_permlane32_swap_b32 v{ci}, v{T+4}
    s_nop 1
    v_fma_f32 v{cr}, v{vA128r}, v{T+3}, v{cr}
    v_fma_f32 v{ci}, v{vA128r}, v{T+4}, v{ci}
    v_fma_f32 v{cr}, -v{vA128i}, v{T+4}, v{cr}
    v_fma_f32 v{ci}, v{vA128i}, v{T+3}, v{ci}
    v_lshrrev_b32 v{T+5}, 5, v{vLANE}
    v_lshl_add_u32 v{T+5}, v{vRGV}, 1, v{T+5}""")
    q.lgwait("se")
    for s in range(7):
        def seg(s=s):
            a(f"""v_fma_f32 v{T+3}, v{vA16r}, v{cr}, v{EB+2*s}
            v_fma_f32 v{T+4}, v{vA16r}, v{ci}, v{EB+2*s+1}
            v_cmp_lt_u32 vcc, {s}, v{T+5}
            v_fma_f32 v{T+3}, -v{vA16i}, v{ci}, v{T+3}
            v_fma_f32 v{T+4}, v{vA16i}, v{cr}, v{T+4}
            v_cndmask_b32 v{cr}, v{cr}, v{T+3}, vcc
            v_cndmask_b32 v{ci}, v{ci}, v{T+4}, vcc""")
        q.q.append(("calln", seg, 7))
    cur, alt = (cr, ci), (T + 3, T + 4)
    for j in range(16):
        sr, si = cur
        nr, ni = alt
        q(f"""v_fma_f32 v{nr}, v{vAr}, v{sr}, v{zr(j)}
        v_fma_f32 v{ni}, v{vAr}, v{si}, v{zi(j)}
        v_fma_f32 v{nr}, -v{vAi}, v{si}, v{nr}
        v_fma_f32 v{ni}, v{vAi}, v{sr}, v{ni}
        v_mul_f32 v{zr(j)}, v{vKr}, v{nr}
        v_mul_f32 v{zi(j)}, -v{vKr}, v{ni}
        v_fma_f32 v{zr(j)}, -v{vKi}, v{ni}, v{zr(j)}
        v_fma_f32 v{zi(j)}, -v{vKi}, v{nr}, v{zi(j)}""")
        cur, alt = alt, cur
    for j in range(0, 16, 2):
        q(f"v_cvt_pk_bf16_f32 v{G+j//2}, v{zr(j)}, v{zr(j+1)}")
        q(f"v_cvt_pk_bf16_f32 v{G+8+j//2}, v{zi(j)}, v{zi(j+1)}")
    q(f"""v_lshlrev_b32 v{T+6}, 12, v{vRGV}
    v_add_u32 v{T+6}, {SCR_T}, v{T+6}
    v_lshrrev_b32 v{T+5}, 5, v{vLANE}
    v_lshlrev_b32 v{T+5}, 3, v{T+5}
    v_lshl_add_u32 v{T+5}, v{T+8}, 6, v{T+5}
    v_add_u32 v{T+5}, v{T+6}, v{T+5}
    v_add_u32 v{T+6}, v{T+6}, v{vTRL}
    v_lshlrev_b32 v{T}, 4, v{vLANE}""")
    for part in range(2):
        for qq in range(4):
            r = G + 8 * part + 2 * qq
            q.ldsop(f"ds_write_b64 v{T+5}, v[{r}:{r+1}] offset:{part*2048 + qq*16}", "tw")
    q.lgwait("tw")
    R = G + 16
    for part in range(2):
        for s2 in range(2):
            r = R + 8 * part + 4 * s2
            o = part * 2048 + s2 * 1024
            q.ldsop(f"ds_read_b64_tr_b16 v[{r}:{r+1}], v{T+6} offset:{o}", "tr")
            q.ldsop(f"ds_read_b64_tr_b16 v[{r+2}:{r+3}], v{T+6} offset:{o+256}", "tr")
    q.lgwait("tr")
    for part in range(2):
        for s2 in range(2):
            r = R + 8 * part + 4 * s2
            q.vmop(f"buffer_store_dwordx4 v[{r}:{r+3}], v{T}, s[{SWS}:{SWS+3}], s{sMU} offen offset:{(2*part+s2)*1024} sc1", "h")


vTRL = 3


def gen(a):
    global vTRL
    vTRL = 0
    sIDX = sMX
    if STAMPS:
        a(f"s_memrealtime s[{sMASK}:{sMASK+1}]")
    a(f"""s_cmp_ge_u32 s2, 256
    s_cbranch_scc1 L_END
    s_load_dwordx16 s[40:55], s[0:1], 0
    s_load_dwordx16 s[56:71], s[0:1], 64
    v_and_b32 v{vLANE}, 63, v0
    v_lshrrev_b32 v2, 6, v0
    s_and_b32 s{sT0}, s2, 7            ; xcd
    v_readfirstlane_b32 s{sW}, v2
    s_lshr_b32 s{sIDX}, s2, 3          ; idx
    s_and_b32 s{sRB}, s{sT0}, 1
    s_lshl_b32 s{sRB}, s{sRB}, 3
    s_and_b32 s{sT2}, s{sIDX}, 7
    s_add_u32 s{sRB}, s{sRB}, s{sT2}   ; rb
    s_lshr_b32 s{sCG}, s{sT0}, 1
    s_lshl_b32 s{sCG}, s{sCG}, 2
    s_lshr_b32 s{sT2}, s{sIDX}, 3
    s_add_u32 s{sCG}, s{sCG}, s{sT2}   ; cg
    s_and_b32 s{sRG}, s{sW}, 3
    s_lshl_b32 s{sKC0}, s{sCG}, 1
    s_add_u32 s{sKC0}, s{sKC0}, s{sRB}
    s_and_b32 s{sKC0}, s{sKC0}, 7
    s_lshl_b32 s{sRB2}, s{sT0}, 2
    s_and_b32 s{sT2}, s{sIDX}, 3
    s_add_u32 s{sRB2}, s{sRB2}, s{sT2}
    s_lshr_b32 s{sCB}, s{sIDX}, 2
    s_mul_i32 s{sT2}, s{sCG}, 3
    s_lshl_b32 s{sT3}, s{sCG}, 1
    s_add_u32 s{sT3}, s{sT3}, 11
    s_cmp_lt_u32 s{sCG}, 11
    s_cselect_b32 s{sU0B}, s{sT2}, s{sT3}
    s_cselect_b32 s{sDUM}, 64, 0x40000000
    s_lshl_b32 s{sU0B}, s{sU0B}, 6
    s_lshl_b32 s{sLW}, s{sRG}, 12           ; w'*4096
    s_lshl_b32 s{sMS}, s{sRG}, 11
    s_add_u32 s{sMS}, s{sMS}, 16384         ; S pieces: 16384 + w'*2048
    s_lshl_b32 s{sM1}, s{sRG}, 10           ; kstep*1024
    v_lshrrev_b32 v2, 3, v{vLANE}           ; lane>>3
    v_and_b32 v3, 7, v{vLANE}
    v_lshrrev_b32 v{vT}, 4, v{vLANE}        ; lane>>4
    v_xor_b32 v{vT+1}, v3, v{vT}            ; (lane&7)^(lane>>4)
    s_lshl_b32 s{sT2}, s{sRB}, 7
    s_lshl_b32 s{sT3}, s{sRG}, 5
    s_add_u32 s{sT2}, s{sT2}, s{sT3}
    v_add_u32 v{vT+2}, s{sT2}, v2
    v_lshlrev_b32 v{vT+2}, 10, v{vT+2}
    v_lshl_add_u32 v{vDX0}, v{vT+1}, 4, v{vT+2}
    v_xor_b32 v{vDX1}, 64, v{vDX0}
    v_add_u32 v{vDX1}, 8192, v{vDX1}
    s_and_b32 s{sT4}, s{sRG}, 1
    s_lshl_b32 s{sT4}, s{sT4}, 4
    s_lshl_b32 s{sT3}, s{sCG}, 5
    s_add_u32 s{sT4}, s{sT4}, s{sT3}
    v_add_u32 v{vT+2}, s{sT4}, v2
    v_lshlrev_b32 v{vT+2}, 10, v{vT+2}
    v_lshl_add_u32 v{vDS}, v{vT+1}, 4, v{vT+2}
    v_xor_b32 v{vDS1}, 64, v{vDS}
    v_add_u32 v{vDS1}, 8192, v{vDS1}
    v_lshrrev_b32 v{vT+2}, 2, v{vLANE}
    s_lshl_b32 s{sT4}, s{sRG}, 4
    v_add_u32 v{vT+2}, s{sT4}, v{vT+2}
    v_mul_u32_u24 v{vT+2}, 2752, v{vT+2}
    v_and_b32 v{vT+4}, 3, v{vLANE}
    v_lshl_add_u32 v{vDM}, v{vT+4}, 4, v{vT+2}
    v_lshlrev_b32 v{vT+3}, 4, v{vLANE}
    s_and_b32 s{sT4}, s{sW}, 2
    s_waitcnt lgkmcnt(0)""")
    pstamp(a, 0)
    srd(a, SX, P_X, 2048 * 1024)
    a(f"""s_cmp_eq_u32 s{sT4}, 0
    s_cselect_b32 s{P_BRE}, s{P_BRE}, s{P_BIM}
    s_cselect_b32 s{P_BRE+1}, s{P_BRE+1}, s{P_BIM+1}
    s_cselect_b32 s{P_CRE}, s{P_CRE}, s{P_CIM}
    s_cselect_b32 s{P_CRE+1}, s{P_CRE+1}, s{P_CIM+1}""")
    lab0, lab1 = a.newlab("D0"), a.newlab("D1")
    a(f"s_cmp_lt_u32 s{sW}, 4\ns_cbranch_scc1 {lab0}")
    for s_ in range(NPRE):
        for code, tag in dma_p0(s_, 1):
            a(code)
    srd(a, SS, P_BRE, 512 * 1024)
    srd(a, SM, P_WG, 512 * 2752)
    a(f"s_branch {lab1}")
    a.label(lab0)
    srd(a, SS, P_BRE, 512 * 1024)
    srd(a, SM, P_WG, 512 * 2752)
    a(f"s_mov_b32 s{sT4}, s{P_WU}\ns_mov_b32 s{sT5}, s{P_WU+1}")
    srd(a, 32, sT4, 512 * 2752)
    for s_ in range(NPRE):
        for code, tag in dma_p0(s_, 0):
            a(code.replace(f"s[{SM2}:{SM2+3}]", "s[32:35]"))
        if s_ == 0:
            a(f"""s_lshl_b32 s{sT2}, s2, 3
            s_lshl_b32 s{sT3}, s{sRG}, 1
            s_add_u32 s{sT5}, s{sT2}, s{sT3}
            s_lshl_b32 s{sT5}, s{sT5}, 10
            buffer_load_dwordx4 v[{vACC}:{vACC+3}], v{vT+3}, s[{SX}:{SX+3}], s{sT5} offen
            buffer_load_dwordx4 v[{vACC+4}:{vACC+7}], v{vT+3}, s[{SX}:{SX+3}], s{sT5} offen offset:1024""")
    a.label(lab1)
    srd(a, SWS, P_WS, WS_SIZE)
    a(f"""s_add_u32 s{P_BIM}, s{P_WS}, {WS_EPOCH}
    s_addc_u32 s{P_BIM+1}, s{P_WS+1}, 0
    s_load_dword s{sTAG}, s[{P_BIM}:{P_BIM+1}], 0""")
    srd(a, SM2, P_WU, 512 * 2752)
    pstamp(a, 1)
    srd(a, SWD, P_WD, 1376 * 1024)
    srd(a, SC, P_CRE, 512 * 1024)
    a(f"""v_and_b32 v{vT+2}, 31, v{vLANE}
    s_lshl_b32 s{sT4}, s{sCG}, 5
    v_add_u32 v{vT+2}, s{sT4}, v{vT+2}
    v_lshlrev_b32 v{vT+2}, 1, v{vT+2}""")
    srd(a, ST, P_LRE, 1024)
    a.vmop(f"buffer_load_ushort v{vA16r}, v{vT+2}, s[{ST}:{ST+3}], 0 offen", "par")
    srd(a, ST, P_LIM, 1024)
    a.vmop(f"buffer_load_ushort v{vA16i}, v{vT+2}, s[{ST}:{ST+3}], 0 offen", "par")
    srd(a, ST, P_LDT, 1024)
    a.vmop(f"buffer_load_ushort v{vA128r}, v{vT+2}, s[{ST}:{ST+3}], 0 offen", "par")
    pstamp(a, 2)
    srd(a, SO, P_OUT, 2048 * 2048)
    srd(a, ST, P_DSK, 1024)
    if CODE_PREFETCH:
        lab = a.newlab("CP")
        a(f"""s_cmp_eq_u32 s{sW}, 3
        s_cbranch_scc0 {lab}
        s_getpc_b64 s[{sT2}:{sT3}]""")
        a.label("L_PC")
        a(f"""s_mul_i32 s{sT4}, s{sIDX}, {10*128}
        v_lshlrev_b32 v{vT+2}, 7, v{vLANE}
        v_add_u32 v{vT+2}, s{sT4}, v{vT+2}
        v_cmp_gt_u32 vcc, L_CODE_END-L_PC, v{vT+2}
        s_and_saveexec_b64 s[{sEX}:{sEX+1}], vcc
        v_cmp_gt_u32 vcc, 10, v{vLANE}
        s_and_b64 exec, exec, vcc
        s_cbranch_execz {lab}_R
        global_load_dword v{vDA}, v{vT+2}, s[{sT2}:{sT3}]""")
        a.label(lab + "_R")
        a(f"s_mov_b64 exec, s[{sEX}:{sEX+1}]")
        a.label(lab)
    a(f"""s_bfe_u32 s{sRT}, s{sW}, 0x10001
    s_and_b32 s{sCT}, s{sW}, 1
    s_lshr_b32 s{sT3}, s{sRG}, 1
    s_mul_i32 s{sAOFF}, s{sT3}, {RT_STRIDE}
    s_and_b32 s{sT4}, s{sRG}, 1
    s_lshl_b32 s{sXB}, s{sT4}, 15           ; (w'&1)*32768
    s_lshl_b32 s{sT4}, s{sT4}, 12
    s_add_u32 s{sAOFF}, s{sAOFF}, s{sT4}
    s_mul_i32 s{s3RG}, s{sRG}, {3*32768}
    s_lshl_b32 s{s2RG}, s{sRG}, 16
    s_lshl_b32 s{sT2}, s{sRB}, 2
    s_add_u32 s{sT2}, s{sT2}, s{sRG}
    s_mul_i32 s{sHPOS}, s{sT2}, {RT_STRIDE}
    s_lshl_b32 s{sT4}, s{sRB2}, 1
    s_mul_i32 s{sT4}, s{sT4}, {RT_STRIDE}
    v_lshlrev_b32 v{vDA}, 4, v{vLANE}
    v_add_u32 v{vDA}, s{sT4}, v{vDA}
    v_bfe_u32 v{vT+2}, v{vLANE}, 4, 1
    v_lshlrev_b32 v{vT+2}, 2, v{vT+2}
    v_xor_b32 v{vT+2}, v3, v{vT+2}
    v_lshlrev_b32 v{vT+4}, 10, v2
    v_lshl_add_u32 v{vT+2}, v{vT+2}, 4, v{vT+4}
    s_lshl_b32 s{sT4}, s{sCB}, 7
    v_add_u32 v{vDB}, s{sT4}, v{vT+2}
    s_lshl_b32 s{sT4}, s{sCB}, 6
    v_add_u32 v{vT+2}, s{sT4}, v2
    v_lshlrev_b32 v{vT+2}, 10, v{vT+2}
    v_lshl_add_u32 v{vDC0}, v{vT+1}, 4, v{vT+2}
    v_xor_b32 v{vDC1}, 64, v{vDC0}
    v_and_b32 v2, 31, v{vLANE}
    v_bfe_u32 v3, v2, 2, 1
    v_lshlrev_b32 v3, 4, v3
    v_lshrrev_b32 v{vT}, 3, v2
    v_lshl_add_u32 v3, v{vT}, 2, v3
    v_and_b32 v{vT+1}, 3, v2
    v_add_u32 v3, v3, v{vT+1}               ; tau
    v_bfe_u32 v{vT}, v3, 1, 3
    s_lshl_b32 s{sT4}, s{sRG}, 5
    v_add_u32 v3, s{sT4}, v3
    v_lshlrev_b32 v3, 7, v3
    v_lshrrev_b32 v{vT+1}, 5, v{vLANE}
    v_xor_b32 v{vT}, v{vT}, v{vT+1}
    v_lshl_add_u32 v{vXA}, v{vT}, 4, v3
    v_xor_b32 v{vXA+1}, 32, v{vXA}
    v_xor_b32 v{vXA+2}, 64, v{vXA}
    v_xor_b32 v{vXA+3}, 96, v{vXA}
    v_lshlrev_b32 v3, 3, v{vT+1}
    v_bfe_u32 v{vT}, v{vLANE}, 2, 2
    v_add_u32 v3, v3, v{vT}
    v_lshlrev_b32 v3, 6, v3
    v_bfe_u32 v{vT}, v{vLANE}, 4, 1
    v_lshl_add_u32 v3, v{vT}, 5, v3
    v_and_b32 v{vT}, 3, v{vLANE}
    v_lshl_add_u32 v{vTRL}, v{vT}, 3, v3
    s_lshr_b32 s{sT4}, s{sW}, 2
    s_lshl_b32 s{sT4}, s{sT4}, 13
    v_add_u32 v{vW1}, s{sT4}, v{vTRL}
    v_mov_b32 v{vRGV}, s{sRG}""")
    pstamp(a, 3)
    a(f"""s_cmp_ge_u32 s{sW}, 4
    s_cbranch_scc1 L_STREAM_B""")
    save = (list(a.vm), list(a.lg), a.nvm)
    stream(a, 0)
    a.vm, a.lg, a.nvm = list(save[0]), list(save[1]), save[2]
    a.label("L_STREAM_B")
    stream(a, 1)
    a.label("L_END")
    a("s_endpgm")
    a.label("L_CODE_END")


def w2_touch(a, which, junk=None):
    if not W2_PREFETCH:
        return
    sIDX = sMX
    j = junk or vDA
    a(f"v_lshlrev_b32 v3, 7, v{vLANE}")
    if which in (0, 1):
        a(f"""s_mul_i32 s{sT4}, s{sIDX}, 44032
        s_lshl_b32 s{sT3}, s{sRG}, 13
        s_add_u32 s{sT4}, s{sT4}, s{sT3}
        s_add_u32 s{sT4}, s{sT4}, {32768*which}""")
        a.vmop(f"buffer_load_dword v{j}, v3, s[{SWD}:{SWD+3}], s{sT4} offen", "pf")
    else:
        a(f"""s_lshl_b32 s{sT4}, s{sIDX}, 14
        s_and_b32 s{sT3}, s{sRG}, 1
        s_lshl_b32 s{sT3}, s{sT3}, 13
        s_add_u32 s{sT4}, s{sT4}, s{sT3}""")
        a.vmop(f"buffer_load_dword v{j}, v3, s[{SC}:{SC+3}], s{sT4} offen", "pf")


def ln_stats(a, src, row_s):
    U = vACC2
    for i in range(4):
        a(f"v_lshlrev_b32 v{U+2*i}, 16, v{src+i}\nv_and_b32 v{U+2*i+1}, 0xffff0000, v{src+i}")
    a(f"""v_add_f32 v{vT}, v{U}, v{U+1}
    v_add_f32 v{vT+1}, v{U+2}, v{U+3}
    v_add_f32 v{vT+2}, v{U+4}, v{U+5}
    v_add_f32 v{vT+4}, v{U+6}, v{U+7}
    v_add_f32 v{vT}, v{vT}, v{vT+1}
    v_add_f32 v{vT+2}, v{vT+2}, v{vT+4}
    v_add_f32 v{vT}, v{vT}, v{vT+2}""")
    wave_sum(a, vT, sT4)
    a(f"""s_nop 1
    v_mov_b32 v{vT+1}, s{sT4}
    v_mul_f32 v{vT+1}, {f2u(1.0/512)}, v{vT+1}
    v_mov_b32 v{vT}, 0""")
    for i in range(8):
        a(f"v_sub_f32 v{vT+2}, v{U+i}, v{vT+1}\nv_fmac_f32 v{vT}, v{vT+2}, v{vT+2}")
    wave_sum(a, vT, sT4)
    a(f"""s_nop 1
    v_mov_b32 v{vT+2}, s{sT4}
    v_mul_f32 v{vT+2}, {f2u(1.0/512)}, v{vT+2}""")
    rne_bf16(a, vT + 1)
    rne_bf16(a, vT + 2)
    a(f"v_add_f32 v{vT+2}, {f2u(1e-5)}, v{vT+2}")
    rne_bf16(a, vT + 2)
    a(f"v_sqrt_f32 v{vT+2}, v{vT+2}\ns_nop 0")
    rne_bf16(a, vT + 2)
    a(f"""v_mov_b32 v{U}, v{vT+1}
    v_mov_b32 v{U+1}, s{sTAG}
    v_mov_b32 v{U+2}, v{vT+2}
    v_mov_b32 v{U+3}, s{sTAG}
    s_lshl_b32 s{sT4}, s{row_s}, 4
    s_add_u32 s{sT4}, s{sT4}, {WS_STAT}
    v_mov_b32 v{vT}, 0
    s_mov_b64 s[{sEX}:{sEX+1}], exec
    s_mov_b64 exec, 1""")
    a.vmop(f"buffer_store_dwordx4 v[{U}:{U+3}], v{vT}, s[{SWS}:{SWS+3}], s{sT4} offen sc1", "stat")
    a(f"s_mov_b64 exec, s[{sEX}:{sEX+1}]")


def stream(a, ch):
    a(f"s_waitcnt lgkmcnt(0)\ns_add_u32 s{sTAG}, s{sTAG}, 1")
    if ch == 0:
        a.vm = ["st0"] * 4 + ["lnrow", "lnrow"] + [f"st{g}" for g in range(1, NPRE) for _ in range(4)] + ["par"] * 3
        a(f"""v_and_b32 v3, 31, v{vLANE}
        v_bfe_u32 v{vT}, v3, 1, 3
        v_lshrrev_b32 v{vT+1}, 5, v{vLANE}
        v_xor_b32 v{vT}, v{vT}, v{vT+1}
        v_lshlrev_b32 v3, 7, v3
        v_lshl_add_u32 v3, v{vT}, 4, v3
        v_add_u32 v{vWS}, 16384, v3
        v_xor_b32 v{vWS+1}, 32, v{vWS}
        v_xor_b32 v{vWS+2}, 64, v{vWS}
        v_xor_b32 v{vWS+3}, 96, v{vWS}""")
        waddr0 = [vWS + i for i in range(4)]
        a.vmwait("lnrow")
        pstamp(a, 4)
        a(f"""s_lshl_b32 s{sT2}, s2, 3
        s_lshl_b32 s{sT3}, s{sRG}, 1
        s_add_u32 s{sT5}, s{sT2}, s{sT3}""")
        ln_stats(a, vACC, sT5)
        a(f"s_add_u32 s{sT5}, s{sT5}, 1")
        ln_stats(a, vACC + 4, sT5)
    else:
        a.vm = [f"st{g}" for g in range(NPRE) for _ in range(4)] + ["par"] * 3
        a(f"v_add_u32 v{vWM}, 24576, v{vTRL}")
        waddr0 = [vWM]
    if W2_AT == 0 and ch == 0:
        for wch in (0, 2, 1):
            w2_touch(a, wch)
    stamp(a, 0)
    if PSTAMP:
        a(f"s_lshl_b32 s{sT0}, s2, 3\ns_add_u32 s{sT0}, s{sT0}, s{sW}\ns_lshl_b32 s{sT0}, s{sT0}, 6\ns_add_u32 s{sT0}, s{sT0}, {WS_DBG + 0x40000}")
        a("v_mov_b32 v3, 0")
        for i in range(5):
            a(f"buffer_store_dword v{232+i}, v3, s[{SWS}:{SWS+3}], s{sT0} offen offset:{4*i}")
        a.vm += ["x"] * 5
    a(f"""s_lshr_b32 s{sCSM}, s{sRB}, 3
    s_add_u32 s{sCSM}, s{sCSM}, 1
    s_cmp_eq_u32 s{sRG}, 0
    s_cselect_b32 s{sCSM}, s{sCSM}, 0""")
    for i in range(4):
        a(f"v_mov_b32 v{ONES+i}, 0x3f803f80")
    for i in range(64):
        a(f"v_mov_b32 v{vACC+i}, 0")
    xaddr = [vXA + i for i in range(4)]

    slots = []
    for g in range(8):
        for j in range(4):
            for t in range(2):
                slots.append((g, 0, j, t))
    for g in range(8, 12):
        for c2 in range(2):
            for j in range(4):
                for t in range(2):
                    slots.append((g, c2, j, t))
    NS = len(slots)
    first_of = {}
    last_of = {}
    for n, (g, c2, j, t) in enumerate(slots):
        first_of.setdefault(g, n)
        last_of[g] = n
    hi_state = {"x": 0, "w0": 0, "w1": 0}

    def set_hi(key, regs, g):
        hi = ((g % NSLOT) * SLOT) >> 16
        if hi_state[key] != hi:
            for r in regs:
                a(f"v_xor_b32 v{r}, 0x10000, v{r}")
            hi_state[key] = hi

    def frag_reg(n):
        return vFR + 4 * (n % 4)

    def issue_reads(n):
        g, c2, j, t = slots[n]
        lo = ((g % NSLOT) * SLOT) & 0xffff
        f = frag_reg(n)
        tag = f"w{n}"
        if g < 8:
            if j == 0 and t == 0:
                set_hi("x", xaddr, g)
                set_hi("w0", waddr0, g)
                for jj in range(4):
                    r = vXF + 4 * (4 * g + jj)
                    a.ldsop(f"ds_read_b128 v[{r}:{r+3}], v{vXA+jj} offset:{lo}", f"x{g}_{jj}")
            if ch == 0:
                a.ldsop(f"ds_read_b128 v[{f}:{f+3}], v{vWS+j} offset:{lo + t*4096}", tag)
            else:
                o = lo + t * 4096 + j * 1024
                a.ldsop(f"ds_read_b64_tr_b16 v[{f}:{f+1}], v{vWM} offset:{o}", tag)
                a.ldsop(f"ds_read_b64_tr_b16 v[{f+2}:{f+3}], v{vWM} offset:{o+256}", tag)
        else:
            if c2 == 0 and j == 0 and t == 0:
                set_hi("w1", [vW1], g)
            o = lo + c2 * 16384 + t * 4096 + j * 1024
            a.ldsop(f"ds_read_b64_tr_b16 v[{f}:{f+1}], v{vW1} offset:{o}", tag)
            a.ldsop(f"ds_read_b64_tr_b16 v[{f+2}:{f+3}], v{vW1} offset:{o+256}", tag)

    def mfma(n):
        g, c2, j, t = slots[n]
        f = frag_reg(n)
        if g < 8:
            xf = vXF + 4 * (4 * g + j)
            acc = vACC + 16 * t
            a.lgwait(f"x{g}_{j}")
        else:
            xf = vXF + 4 * (4 * (2 * (g - 8) + c2) + j)
            acc = vACC2 + 16 * t
        a.lgwait(f"w{n}")
        if ch == 0 and g < 8:
            a(f"v_mfma_f32_32x32x16_bf16 v[{acc}:{acc+15}], v[{xf}:{xf+3}], v[{f}:{f+3}], v[{acc}:{acc+15}]")
        else:
            a(f"v_mfma_f32_32x32x16_bf16 v[{acc}:{acc+15}], v[{f}:{f+3}], v[{xf}:{xf+3}], v[{acc}:{acc+15}]")

    def colsum_at(n):
        g, c2, j, t = slots[n]
        if (g == 0) or (g == 8 and c2 == 1):
            acc = CSACC if g == 0 else CS1ACC
            lab = a.newlab("CSK")
            f = frag_reg(n)
            c = "0" if j == 0 else f"v[{acc}:{acc+15}]"
            a(f"""s_cmp_eq_u32 s{sCSM}, {t+1}
            s_cbranch_scc0 {lab}
            v_mfma_f32_32x32x16_bf16 v[{acc}:{acc+15}], v[{ONES}:{ONES+3}], v[{f}:{f+3}], {c}""")
            a.label(lab)

    dmaq = []

    def stage_barrier(g):
        if ch == 0 and g == 7:
            gather_finish(a, 0, GATH0, a.nvm - marks["g0"], 3)
            for i in range(16):
                a(f"v_mov_b32 v{GATH0+i}, 0")
        if g == 10 and ch == 1:
            a.vmwait("u0")
            write_flag(a, 0, ch)
        a.vmwait(f"st{g+1}")
        a("s_barrier")
        if ch == 0 and g in (8, 9) and marks.get("edone") and not marks.get("published"):
            only_rg(a, 0, lambda: s_publish(a))
            marks["published"] = True
        nxt = g + 3
        if nxt < 8:
            dmaq.extend(dma_p0(nxt, ch))
        elif nxt < 12:
            dmaq.extend(dma_p1(nxt - 8, ch))
        if ch == 0:
            if g == 9:
                dmaq.extend(p2_B(0))
            if g == 10:
                dmaq.extend(p2_B(1))

    marks = {}
    a.vmwait("st0")
    a("s_barrier")
    stamp(a, 1)
    for s_ in range(NPRE, 3):
        dmaq.extend(dma_p0(s_, ch))
    for n in range(LOOK):
        issue_reads(n)
    for n in range(NS):
        g, c2, j, t = slots[n]
        mfma(n)
        colsum_at(n)
        nn = n + LOOK
        if nn < NS:
            if slots[nn][0] != slots[nn - 1][0]:
                stage_barrier(slots[nn - 1][0])
            issue_reads(nn)
        for _ in range(2 if len(dmaq) > 4 else 1):
            if dmaq:
                code, tag = dmaq.pop(0)
                a.vmop(code, tag)
        if g >= 8:
            a.fill(FILL0 if ch == 0 else FILL)
        elif g >= 3:
            a.fill(3)
        if n == last_of[g]:
            if P1DBG == 1 and g in (8, 9, 10):
                stamp(a, {8: 9, 9: 13, 10: 6}[g], force=True)
            if P1DBG == 2 and g in (1, 3, 5):
                stamp(a, {1: 9, 3: 13, 5: 6}[g], force=True)
            if g == 0:
                colsum_store(a, CSACC, ch)
                a("s_nop 7")
                for i in range(16):
                    a(f"v_mov_b32 v{CSACC+i}, 0")
            if W2_AT == 1 and ch == 0 and g in (3, 4, 8):
                w2_touch(a, {3: 0, 4: 2, 8: 1}[g])
            if W2_AT == 2 and ch == 1 and g == 9:
                for wch in (0, 2, 1):
                    w2_touch(a, wch, junk=vDS)
            if g == 2 and ch == 0:
                a.vmwait("par")
                q = Q()
                s_params(q)
                a.fillq = q.q
            if g == 5 and ch == 0:
                gather_loads(a, 0, GATH0, 3)
                marks["g0"] = a.nvm
            if g == 7:
                a.fill_all()
                stamp(a, 2)
                q = Q()
                if ch == 1:
                    q(f"""s_lshl_b32 s{sT5}, s{sCG}, 11
                    s_add_u32 s{sT5}, s{sT5}, s{sHPOS}""")
                    row_stats_M(q, vT)
                    gelu_epi(q, vACC, sT5, 64 * 4, "u0", 4, vT)
                else:
                    s_epilogue1(q)
                    q.q.append(("call", lambda: marks.__setitem__("edone", True)))
                    row_stats_M(q, vT)
                a.fillq = q.q
            if g == 8:
                colsum_store(a, CS1ACC, 2 + ch, koff=1)
            if g == 9:
                a.fill_all()
                stamp(a, 3)
                if ch == 0:
                    lookback_loads(a)
                    a(f"""s_lshl_b32 s{sT5}, s{sCG}, 12
                    s_add_u32 s{sMU}, s{sHPOS}, s{sT5}
                    s_add_u32 s{sMU}, s{sMU}, {86*1024}""")
                    q = Q()
                    for _ in range(SW_DELAY):
                        q.q.append(("calln", lambda: None, FILL0))
                    s_work_atoms(a, q)
                    a.fillq = q.q
            if g == 10 and ch == 0 and not marks.get("published"):
                only_rg(a, 0, lambda: s_publish(a))
            if g == 10 and ch == 0:
                gather_loads(a, 1, GATH1, 3)
                marks["g1"] = a.nvm
    stamp(a, 4)
    while dmaq:
        code, tag = dmaq.pop(0)
        a.vmop(code, tag)
    if ch == 0:
        a.fill_all()
        gather_finish(a, 1, GATH1, a.nvm - marks["g1"], 3)
    a("s_barrier")
    stamp(a, 5)
    if ch == 1:
        lab = a.newlab("U2S")
        a(f"""s_cmp_ge_u32 s{sCG}, 11
        s_cbranch_scc1 {lab}
        s_lshl_b32 s{sT5}, s{sCG}, 11
        s_add_u32 s{sT5}, s{sT5}, s{sHPOS}
        s_add_u32 s{sT5}, s{sT5}, {64*1024}""")
        a.label(lab + "_X")
        a.l.pop()
        a.l = a.l[:-5]
        poll_flags(a, 0)
        only_rg(a, 3, lambda: touch_A(a, 0))
        for st in range(4):
            for code, tag in p2_A(st):
                a.vmop(code, tag)
        stamp(a, 6)
        a(f"""s_cmp_ge_u32 s{sCG}, 11
        s_cbranch_scc1 {lab}
        s_lshl_b32 s{sT5}, s{sCG}, 11
        s_add_u32 s{sT5}, s{sT5}, s{sHPOS}
        s_add_u32 s{sT5}, s{sT5}, {64*1024}""")
        gelu_epi(a, vACC2, sT5, 192 * 4, "u12", 48, vT, maybe=True)
        a.label(lab)
        a.lg = []
        marks["u12"] = a.nvm
        stamp(a, 8)
    else:
        a(f"""s_lshl_b32 s{sT5}, s{sCG}, 11
        s_add_u32 s{sT5}, s{sT5}, s{sHPOS}
        s_add_u32 s{sT5}, s{sT5}, {32*1024}""")
        for st in (2, 3):
            for code, tag in p2_B(st):
                a.vmop(code, tag)
        a(f"""s_lshl_b32 s{sT5}, s{sCG}, 11
        s_add_u32 s{sT5}, s{sT5}, s{sHPOS}
        s_add_u32 s{sT5}, s{sT5}, {32*1024}""")
        gelu_epi(a, vACC2, sT5, 128 * 4, "u12", 48, vT)
        stamp(a, 8)
    a.marks = marks
    phase2(a, ch)


def phase2(a, ch):
    kh = ch
    vAA0, vAA1, vB0, vC0, vC1, vXO, vDK, vSO, vDO = 4, 5, 6, 7, 8, 9, 10, 11, 12
    vF = 128
    vAC = 224
    vEX = 96
    a(f"""s_lshl_b32 s{sT0}, s{sRT}, 13
    v_lshlrev_b32 v{vAA0}, 4, v{vLANE}
    v_add_u32 v{vAA0}, s{sT0}, v{vAA0}
    v_add_u32 v{vAA0}, {kh*4096}, v{vAA0}
    v_lshrrev_b32 v{vT}, 5, v{vLANE}
    v_lshlrev_b32 v{vT}, 2, v{vT}
    v_bfe_u32 v3, v{vLANE}, 2, 2
    v_add_u32 v{vT}, v{vT}, v3
    v_lshlrev_b32 v{vT}, 7, v{vT}
    v_bfe_u32 v3, v{vLANE}, 3, 1
    v_xor_b32 v3, s{sCT}, v3
    v_lshl_add_u32 v{vT}, v3, 6, v{vT}
    v_bfe_u32 v3, v{vLANE}, 4, 1
    v_lshl_add_u32 v{vT}, v3, 5, v{vT}
    v_and_b32 v3, 3, v{vLANE}
    v_lshl_add_u32 v{vT}, v3, 3, v{vT}
    v_add_u32 v{vB0}, {16384 + kh*8192}, v{vT}
    v_and_b32 v{vT}, 31, v{vLANE}
    v_bfe_u32 v3, v{vT}, 1, 3
    v_lshrrev_b32 v{vT+1}, 5, v{vLANE}
    v_add_u32 v{vT+1}, {4*kh}, v{vT+1}
    v_xor_b32 v3, v3, v{vT+1}
    v_lshlrev_b32 v{vT}, 7, v{vT}
    v_lshl_add_u32 v{vT}, v3, 4, v{vT}
    s_lshl_b32 s{sT0}, s{sCT}, 12
    s_add_u32 s{sT0}, s{sT0}, 16384
    v_add_u32 v{vC0}, s{sT0}, v{vT}
    v_xor_b32 v{vC1}, 32, v{vC0}
    v_lshrrev_b32 v{vT}, 5, v{vLANE}
    v_lshlrev_b32 v{vT}, 4, v{vT}
    s_lshl_b32 s{sT0}, s{sRB2}, 6
    s_lshl_b32 s{sT1}, s{sRT}, 5
    s_add_u32 s{sT0}, s{sT0}, s{sT1}
    s_add_u32 s{sT0}, s{sT0}, {8*kh}
    v_add_u32 v{vT}, s{sT0}, v{vT}
    v_lshlrev_b32 v{vSO}, 4, v{vT}
    v_lshlrev_b32 v{vT}, 9, v{vT}
    v_and_b32 v3, 31, v{vLANE}
    s_lshl_b32 s{sT0}, s{sCB}, 6
    s_lshl_b32 s{sT1}, s{sCT}, 5
    s_add_u32 s{sT0}, s{sT0}, s{sT1}
    v_add_u32 v3, s{sT0}, v3
    v_add_u32 v{vT}, v{vT}, v3
    v_lshlrev_b32 v{vXO}, 1, v{vT}
    v_lshlrev_b32 v{vDO}, 1, v3""")

    def epi_loads():
        a.vmop(f"buffer_load_ushort v{vDK}, v{vDO}, s[{ST}:{ST+3}], 0 offen", "epi")
        for k in range(8):
            ro = k * 1024
            so, io = (ro // 4096) * 4096, ro % 4096
            a(f"s_mov_b32 s{sT0}, {so}")
            a.vmop(f"buffer_load_ushort v{vEX+k}, v{vXO}, s[{SX}:{SX+3}], s{sT0} offen offset:{io}", "epi")
        a(f"s_mov_b32 s{sT0}, {WS_STAT}")
        for k in range(8):
            a.vmop(f"buffer_load_dword v{vEX+8+k}, v{vSO}, s[{SWS}:{SWS+3}], s{sT0} offen offset:{k*16} sc1", "epi")
            a.vmop(f"buffer_load_dword v{vEX+16+k}, v{vSO}, s[{SWS}:{SWS+3}], s{sT0} offen offset:{k*16+8} sc1", "epi")
    for i in range(16):
        a(f"v_mov_b32 v{vAC+i}, 0")
    hi2 = {"v": 0}

    def nvalid(st):
        return 2 if (ORDER[st] == ("M", 10) and kh == 1) else 4

    def p2_reads(st, s):
        g = 12 + st
        slot = (g % NSLOT) * SLOT
        hi, lo = slot >> 16, slot & 0xffff
        if s == 0 and hi != hi2["v"]:
            for r in (vAA0, vB0, vC0, vC1):
                a(f"v_xor_b32 v{r}, 0x10000, v{r}")
            hi2["v"] = hi
        f = vF + 8 * ((4 * st + s) % 8)
        tag = f"r{st}_{s}"
        a.ldsop(f"ds_read_b128 v[{f}:{f+3}], v{vAA0} offset:{lo + s*1024}", tag)
        if ORDER[st][0] == "M":
            a.ldsop(f"ds_read_b64_tr_b16 v[{f+4}:{f+5}], v{vB0} offset:{lo + s*2048}", tag)
            a.ldsop(f"ds_read_b64_tr_b16 v[{f+6}:{f+7}], v{vB0} offset:{lo + s*2048+1024}", tag)
        else:
            part, s2 = s >> 1, s & 1
            a.ldsop(f"ds_read_b128 v[{f+4}:{f+7}], v{vC0+s2} offset:{lo + part*8192}", tag)

    def p2_barrier(st):
        a.vmwait(f"A{st}")
        a.vmwait(f"B{st}")
        a("s_barrier")

    if ch == 0:
        a.vmwait("h")
        write_flag(a, 2, 0)
    p2_barrier(0)
    stamp(a, 7)
    for s in range(nvalid(0)):
        p2_reads(0, s)
    dq = []
    for st in range(NST2):
        if st == 4:
            stamp(a, 9)
        if st == 11:
            stamp(a, 13)
        if st + 1 < NST2:
            if ch == 0:
                if st + 1 == 2:
                    a.vmwait("u12")
                    write_flag(a, 1, 0)
                if st + 1 == E2_ST:
                    only_rg(a, 3, lambda: (poll_flags(a, 2), touch_A(a, 2)))
                if st + 1 == E1_ST:
                    only_rg(a, 3, lambda: (poll_flags(a, 1), touch_A(a, 1)))
            else:
                if st + 1 == 2:
                    n = a.nvm - a.marks["u12"]
                    a(f"s_waitcnt vmcnt({n})")
                    write_flag(a, 1, 1)
            p2_barrier(st + 1)
            if st >= 1 and st + 3 < NST2:
                dq.extend(p2_A(st + 3) if ch == 1 else p2_B(st + 3))
        for s in range(4):
            if s < nvalid(st):
                f = vF + 8 * ((4 * st + s) % 8)
                a.lgwait(f"r{st}_{s}")
                a(f"v_mfma_f32_32x32x16_bf16 v[{vAC}:{vAC+15}], v[{f}:{f+3}], v[{f+4}:{f+7}], v[{vAC}:{vAC+15}]")
            if st + 1 < NST2 and s < nvalid(st + 1):
                p2_reads(st + 1, s)
            if dq:
                code, tag = dq.pop(0)
                a.vmop(code, tag)
        if st == 3:
            epi_loads()
    stamp(a, 10)
    a(f"""s_nop 15
    s_barrier
    s_lshl_b32 s{sT0}, s{sRG}, 12
    v_lshlrev_b32 v{vT}, 4, v{vLANE}
    v_add_u32 v{vT}, s{sT0}, v{vT}""")
    R = vF
    if kh == 0:
        a(f"""ds_write_b128 v{vT}, v[{vAC+8}:{vAC+11}] offset:2048
        ds_write_b128 v{vT}, v[{vAC+12}:{vAC+15}] offset:3072
        s_waitcnt lgkmcnt(0)
        s_barrier
        ds_read_b128 v[{R}:{R+3}], v{vT}
        ds_read_b128 v[{R+4}:{R+7}], v{vT} offset:1024""")
    else:
        a(f"""ds_write_b128 v{vT}, v[{vAC}:{vAC+3}]
        ds_write_b128 v{vT}, v[{vAC+4}:{vAC+7}] offset:1024
        s_waitcnt lgkmcnt(0)
        s_barrier
        ds_read_b128 v[{R}:{R+3}], v{vT} offset:2048
        ds_read_b128 v[{R+4}:{R+7}], v{vT} offset:3072""")
    a("s_waitcnt vmcnt(0)")
    a.vm = []
    a(f"v_lshlrev_b32 v{vDK}, 16, v{vDK}\nv_lshlrev_b32 v{vT}, 1, v{vXO}")
    for k in range(8):
        a(f"v_lshlrev_b32 v{vEX+k}, 16, v{vEX+k}\nv_rcp_f32 v{vEX+16+k}, v{vEX+16+k}")
    for k in range(8):
        a(f"v_sub_f32 v{vEX+8+k}, v{vEX+k}, v{vEX+8+k}")
    for k in range(0, 8, 2):
        a(f"v_cvt_pk_bf16_f32 v{vT+1}, v{vEX+8+k}, v{vEX+9+k}")
        a(f"v_lshlrev_b32 v{vEX+8+k}, 16, v{vT+1}\nv_and_b32 v{vEX+9+k}, 0xffff0000, v{vT+1}")
    for k in range(8):
        a(f"v_mul_f32 v{vEX+8+k}, v{vEX+8+k}, v{vEX+16+k}")
    for k in range(0, 8, 2):
        a(f"v_cvt_pk_bf16_f32 v{vT+1}, v{vEX+8+k}, v{vEX+9+k}")
        a(f"v_lshlrev_b32 v{vEX+8+k}, 16, v{vT+1}\nv_and_b32 v{vEX+9+k}, 0xffff0000, v{vT+1}")
    for k in range(8):
        a(f"v_mul_f32 v{vEX+8+k}, v{vEX+8+k}, v{vDK}")
    for k in range(0, 8, 2):
        a(f"v_cvt_pk_bf16_f32 v{vT+1}, v{vEX+8+k}, v{vEX+9+k}")
        a(f"v_lshlrev_b32 v{vEX+8+k}, 16, v{vT+1}\nv_and_b32 v{vEX+9+k}, 0xffff0000, v{vT+1}")
    for k in range(8):
        a(f"v_add_f32 v{vEX+8+k}, v{vEX+8+k}, v{vEX+k}")
    a("s_waitcnt lgkmcnt(0)")
    off = 0 if kh == 0 else 8
    for k in range(8):
        a(f"v_add_f32 v{R+k}, v{R+k}, v{vAC+off+k}")
    for k in range(8):
        a(f"v_add_f32 v{R+k}, v{R+k}, v{vEX+8+k}")
    for k in range(8):
        ro = k * 2048
        so, io = (ro // 4096) * 4096, ro % 4096
        a(f"s_mov_b32 s{sT0}, {so}")
        a(f"buffer_store_dword v{R+k}, v{vT}, s[{SO}:{SO+3}], s{sT0} offen offset:{io}")
    if ch == 0:
        lab = a.newlab("EP")
        a(f"""s_cmp_eq_u32 s{sRB2}, 31
        s_cbranch_scc0 {lab}
        s_cmp_eq_u32 s{sCB}, 0
        s_cbranch_scc0 {lab}
        s_cmp_eq_u32 s{sW}, 0
        s_cbranch_scc0 {lab}
        v_mov_b32 v4, s{sTAG}
        v_mov_b32 v3, 0
        s_mov_b32 s{sT0}, {WS_EPOCH}
        s_mov_b64 exec, 1
        buffer_store_dword v4, v3, s[{SWS}:{SWS+3}], s{sT0} offen sc1
        s_mov_b64 exec, -1""")
        a.label(lab)
    stamp(a, 11)
    if STAMPS:
        a("s_waitcnt vmcnt(0)")
        stamp(a, 12)
    stamp_flush(a, 14)
    a("s_endpgm")


if __name__ == "__main__":
    main(sys.argv[1] if len(sys.argv) > 1 else "cdna_kernels/" + NAME + ".s")
```

```python
import sys, math, struct, os

NAME = "parallel_sum__ssm_conv_s5__glu_gated_geglu__prompt"
KNAME = NAME + "_kernel"

E = lambda k, d: int(os.environ.get(k, str(d)))
STAMPS = E("STAMPS", 0)
SPIN_MAX = E("SPIN_MAX", 200000)
CODE_PREFETCH = E("CODE_PREFETCH", 1)
W2_PREFETCH = E("W2_PREFETCH", 1)
FILL = E("FILL", 7)
FILL0 = E("FILL0", 14)
SW_DELAY = E("SW_DELAY", 8)
NPRE = E("NPRE", 2)
DMA_RATE = E("DMA_RATE", 0)
PRIO = E("PRIO", 0)
W2_AT = E("W2_AT", 3)
W2_G0 = E("W2_G0", 1)
LOOK = E("LOOK", 3)
A_TOUCH = E("A_TOUCH", 1)
E2_ST = E("E2_ST", 2)
E1_ST = E("E1_ST", 8)
X_NOMFMA = E("X_NOMFMA", 0)
X_NOREAD = E("X_NOREAD", 0)

NKS = 150
RT_STRIDE = NKS * 1024
WS_AGG = 0xA00000
WS_STAT = 0xA40000
WS_CS = 0xA80000
WS_FLG = 0xB00000
WS_EPOCH = 0xB10000
WS_DBG = 0xF00000
WS_SIZE = 0x10000000

LOG2E = 1.4426950408889634
SLOT = 32768
NSLOT = 4
SCR = NSLOT * SLOT
SCR_T = SCR
SCR_CS = 16384
SCR_ST = 17408
SCR_ES = 18432
LDS_BYTES = 163840
NST2 = 19
NBS, NAS = 3, 5
B_BASE, A_BASE = 0, 49152


def f2u(x):
    return struct.unpack("<I", struct.pack("<f", x))[0]


class A:
    def __init__(self):
        self.l = []
        self.nlab = 0
        self.vm = []
        self.nvm = 0
        self.lg = []
        self.fillq = []

    def __call__(self, s):
        for line in s.strip("\n").split("\n"):
            line = line.strip()
            if not line:
                continue
            if X_NOMFMA and line.startswith("v_mfma"):
                continue
            self.l.append("  " + line)

    def label(self, name):
        self.l.append(name + ":")

    def newlab(self, p="L"):
        self.nlab += 1
        return f"{p}_{self.nlab}"

    def vmop(self, s, tag, maybe=False):
        self(s)
        if not maybe:
            self.vm.append(tag)
            self.nvm += 1

    def vmwait(self, tag):
        idx = [i for i, t in enumerate(self.vm) if t == tag]
        if not idx:
            return
        n = len(self.vm) - 1 - idx[-1]
        assert n <= 63, n
        self(f"s_waitcnt vmcnt({n})")
        self.vm = self.vm[idx[-1] + 1:]

    def vmwait_all(self):
        self("s_waitcnt vmcnt(0)")
        self.vm = []

    def ldsop(self, s, tag):
        if X_NOREAD and tag[0] in "xwr":
            return
        self(s)
        self.lg.append(tag)
        assert len(self.lg) <= 30

    def lgwait(self, tag):
        idx = [i for i, t in enumerate(self.lg) if t == tag]
        if not idx:
            return
        n = len(self.lg) - 1 - idx[-1]
        n = min(n, 15)
        self(f"s_waitcnt lgkmcnt({n})")
        self.lg = self.lg[len(self.lg) - n:] if n else []

    def lgwait_all(self):
        self("s_waitcnt lgkmcnt(0)")
        self.lg = []

    def fill(self, n):
        if E("X_NOFILL", 0):
            self.fillq = [at for at in self.fillq if at[0] in ("vm",) or (at[0] == "call" and False)]
        while n > 0 and self.fillq:
            at = self.fillq.pop(0)
            k = at[0]
            if k == "v":
                self(at[1]); n -= 1
            elif k == "lds":
                self.ldsop(at[1], at[2]); n -= 1
            elif k == "lgw":
                self.lgwait(at[1])
            elif k == "vm":
                self.vmop(at[1], at[2], at[3]); n -= 1
            elif k == "call":
                at[1]()
            elif k == "calln":
                at[1](); n -= at[2]

    def fill_all(self):
        self.fill(10 ** 9)

    def text(self):
        return "\n".join(self.l) + "\n"


class Q:
    def __init__(self):
        self.q = []

    def __call__(self, s):
        for line in s.strip("\n").split("\n"):
            line = line.strip()
            if line:
                self.q.append(("v", line))

    def ldsop(self, s, tag):
        self.q.append(("lds", s, tag))

    def lgwait(self, tag):
        self.q.append(("lgw", tag))

    def vmop(self, s, tag, maybe=False):
        self.q.append(("vm", s, tag, maybe))


def srd(a, s, ptr_lo, nbytes):
    a(f"""s_mov_b32 s{s}, s{ptr_lo}
    s_and_b32 s{s+1}, s{ptr_lo+1}, 0xffff
    s_mov_b32 s{s+2}, {nbytes}
    s_mov_b32 s{s+3}, 0x20000""")


def rne_bf16(a, v):
    a(f"v_cvt_pk_bf16_f32 v{v}, v{v}, v{v}\nv_lshlrev_b32 v{v}, 16, v{v}")


def wave_sum(a, v, tmp_s):
    for ctrl in ("row_shr:1", "row_shr:2", "row_shr:4", "row_shr:8"):
        a(f"s_nop 1\nv_add_f32_dpp v{v}, v{v}, v{v} {ctrl} row_mask:0xf bank_mask:0xf")
    a(f"s_nop 1\nv_add_f32_dpp v{v}, v{v}, v{v} row_bcast:15 row_mask:0xa bank_mask:0xf")
    a(f"s_nop 1\nv_add_f32_dpp v{v}, v{v}, v{v} row_bcast:31 row_mask:0xc bank_mask:0xf")
    a(f"s_nop 1\nv_readlane_b32 s{tmp_s}, v{v}, 63")


SX, SS, SM, SWS, SWD, SC, SO, ST = 4, 8, 12, 16, 20, 24, 28, 32
sW, sRG, sRB, sCG = 36, 37, 38, 39
sKC0, sU0B, sDUM, sTAG = 72, 73, 74, 75
sT0, sT1, sT2, sT3, sT4, sT5 = 76, 77, 78, 79, 80, 81
sMX, sMS, sMU, sM1 = 82, 83, 84, 85
sCSM = 86
sRB2, sCB, sRT, sCT = 87, 88, 89, 90
sSPIN = 91
sEX = 92
sMASK = 94
sAOFF, sLW, s3RG, s2RG = 96, 97, 98, 99
sXB, sHPOS = 100, 101
SM2 = 68
STAMP0 = 40
P_X, P_LRE, P_LIM, P_BRE, P_BIM, P_CRE, P_CIM, P_LDT = 40, 42, 44, 46, 48, 50, 52, 54
P_DSK, P_BX, P_WG, P_WU, P_WD, P_OUT, P_DBG, P_WS = 56, 58, 60, 62, 64, 66, 68, 70

vLANE = 1
vXA = 4
vWS = 8
vWM = 8
vW1 = 12
vDX0, vDX1, vDS, vDM = 13, 14, 15, 16
vDS1 = 47
vT = 17
ONES = 28
vAr, vAi, vKr, vKi, vA16r, vA16i, vA128r, vA128i = 32, 33, 34, 35, 36, 37, 38, 39
vRINV, vNM = 40, 41
vDA, vDB, vDC0, vDC1 = 42, 43, 44, 45
vK1, vCA = 46, 47
vFR = 48
vACC = 64
vACC2 = 96
vXF = 128
CSACC = 96
GATH0 = 112
CS1ACC = 128
GATH1 = 144
JUNK = 255


PSTAMP = E("PSTAMP", 0)


def pstamp(a, i):
    if PSTAMP:
        a(f"s_memrealtime s[{sEX}:{sEX+1}]\ns_waitcnt lgkmcnt(0)\nv_mov_b32 v{232+i}, s{sEX}")


DBGD = E("DBGD", -1)


P1DBG = E("P1DBG", 0)


def stamp(a, i, force=False):
    if STAMPS:
        if i == 3:
            return
        if P1DBG and i in (6, 9, 13) and not force:
            return
        a(f"s_memrealtime s[{STAMP0+2*i}:{STAMP0+2*i+1}]")
        if i == 0:
            a(f"s_mov_b32 s{STAMP0+6}, s{sMASK}\ns_mov_b32 s{STAMP0+7}, s{sMASK+1}")


def stamp_flush(a, n):
    if not STAMPS:
        return
    a("s_waitcnt lgkmcnt(0)")
    a(f"s_lshl_b32 s{sT0}, s2, 3\ns_add_u32 s{sT0}, s{sT0}, s{sW}\ns_lshl_b32 s{sT0}, s{sT0}, 6\ns_add_u32 s{sT0}, s{sT0}, {WS_DBG}")
    a("v_mov_b32 v3, 0")
    for i in range(n):
        a(f"v_mov_b32 v2, s{STAMP0+2*i}")
        a(f"buffer_store_dword v2, v3, s[{SWS}:{SWS+3}], s{sT0} offen offset:{4*i}")
    if DBGD >= 0:
        lab = a.newlab("DD")
        a(f"""s_cmp_eq_u32 s2, {DBGD}
        s_cbranch_scc0 {lab}
        s_cmp_eq_u32 s{sW}, {E("DBGW", 0)}
        s_cbranch_scc0 {lab}
        s_load_dwordx2 s[{sT2}:{sT3}], s[0:1], 112
        s_waitcnt lgkmcnt(0)
        s_mov_b32 s{ST}, s{sT2}
        s_and_b32 s{ST+1}, s{sT3}, 0xffff
        s_mov_b32 s{ST+2}, 256
        s_mov_b32 s{ST+3}, 0x20000
        v_mov_b32 v3, 0""")
        for i in range(n):
            a(f"v_mov_b32 v2, s{STAMP0+2*i}")
            a(f"buffer_store_dword v2, v3, s[{ST}:{ST+3}], 0 offen offset:{4*i}")
        a.label(lab)


def dma_p0(s, ch):
    slot = (s % NSLOT) * SLOT
    it = []
    if ch == 1:
        pre = f"""s_add_u32 s{sT0}, s{sKC0}, {s}
        s_and_b32 s{sT0}, s{sT0}, 7
        s_lshl_b32 s{sT3}, s{sT0}, 7
        s_add_u32 s{sT4}, s{sT3}, 16384
        """
        for i in range(4):
            vd = vDX0 if i % 2 == 0 else vDX1
            so = sT3 if i < 2 else sT4
            it.append(((pre if i == 0 else "") + f"""s_add_u32 m0, s{sLW}, {slot + i*1024}
            s_nop 0
            buffer_load_dwordx4 v{vd}, s[{SX}:{SX+3}], s{so} offen lds""", f"st{s}"))
    else:
        pre = f"""s_add_u32 s{sT0}, s{sKC0}, {s}
        s_and_b32 s{sT0}, s{sT0}, 7
        s_lshl_b32 s{sT3}, s{sT0}, 7
        s_mul_i32 s{sT2}, s{sT0}, {64*2752}
        s_add_u32 s{sT2}, s{sT2}, s{sU0B}
        """
        for i in range(2):
            vd = vDS if i == 0 else vDS1
            it.append(((pre if i == 0 else "") + f"""s_add_u32 m0, s{sMS}, {slot + i*1024}
            s_nop 0
            buffer_load_dwordx4 v{vd}, s[{SS}:{SS+3}], s{sT3} offen lds""", f"st{s}"))
        for mat in range(2):
            sr = SM if mat == 0 else SM2
            it.append((f"""s_add_u32 m0, s{sM1}, {slot + 24576 + mat*4096}
            s_nop 0
            buffer_load_dwordx4 v{vDM}, s[{sr}:{sr+3}], s{sT2} offen lds""", f"st{s}"))
    return it


def dma_p1(t, ch):
    g = 8 + t
    slot = (g % NSLOT) * SLOT
    it = []
    c2 = ch
    pre = f"""s_add_u32 s{sT0}, s{sKC0}, {2*t+c2}
    s_and_b32 s{sT0}, s{sT0}, 7
    s_mul_i32 s{sT2}, s{sT0}, {64*2752}
    s_add_u32 s{sT2}, s{sT2}, s{sU0B}
    s_add_u32 s{sT2}, s{sT2}, 64
    s_add_u32 s{sT3}, s{sT2}, s{sDUM}
    """
    for mat in range(2):
        sr = SM if mat == 0 else SM2
        for j in range(2):
            so = sT2 if j == 0 else sT3
            it.append(((pre if (mat == 0 and j == 0) else "") + f"""s_add_u32 m0, s{sM1}, {slot + c2*16384 + j*8192 + mat*4096}
            s_nop 0
            buffer_load_dwordx4 v{vDM}, s[{sr}:{sr+3}], s{so} offen lds""", f"st{g}"))
    return it


ORDER = [("M", i) for i in range(4)] + [("S", j) for j in range(8)] + [("M", i) for i in range(4, 11)]


def p2_A(st):
    slot = ((12 + st) % NSLOT) * SLOT
    kind, ix = ORDER[st]
    ks0 = 8 * ix if kind == "M" else 86 + 8 * ix
    if E("X_AFIX", 0):
        ks0 = 0
    it = []
    for i in range(4):
        it.append((f"""s_add_u32 s{sT1}, s{sAOFF}, {(ks0+i)*1024}
        s_add_u32 m0, s{sLW}, {slot + i*1024}
        s_nop 0
        buffer_load_dwordx4 v{vDA}, s[{SWS}:{SWS+3}], s{sT1} offen sc1 lds""", f"A{st}"))
    return it


def p2_B(st):
    slot = ((12 + st) % NSLOT) * SLOT + 16384
    kind, ix = ORDER[st]
    if E("X_BFIX", 0):
        kind, ix = "M", 0
    it = []
    if kind == "M":
        if ix < 3:
            reg, c = s3RG, 3 * 4 * ix
        elif ix == 3:
            reg, c = s2RG, 2 * 12 + 11
        elif ix < 7:
            reg, c = s3RG, 3 * 4 * (ix - 4) + 1
        elif ix == 7:
            reg, c = s2RG, 2 * 12 + 11 + 1
        else:
            reg, c = s3RG, 3 * 4 * (ix - 8) + 2
        for i in range(4):
            it.append((f"""s_add_u32 s{sT1}, s{reg}, {c*32768 + i*8192}
            s_add_u32 m0, s{sLW}, {slot + i*1024}
            s_nop 0
            buffer_load_dwordx4 v{vDB}, s[{SWD}:{SWD+3}], s{sT1} offen lds""", f"B{st}"))
    else:
        j = ix
        for i in range(4):
            vd = vDC0 if i % 2 == 0 else vDC1
            it.append((f"""s_add_u32 s{sT1}, s{sXB}, {j*128 + i*8192}
            s_add_u32 m0, s{sLW}, {slot + i*1024}
            s_nop 0
            buffer_load_dwordx4 v{vd}, s[{SC}:{SC+3}], s{sT1} offen lds""", f"B{st}"))
    return it


def main(out_path):
    a = A()
    gen(a)
    ref = open("cdna_kernels/" + NAME + ".s.ref").read()
    head = []
    for line in ref.splitlines():
        if line.startswith(";") and "@launch" not in line and "Override" not in line and "grid=ceil" not in line:
            head.append(line)
        elif not line.startswith(";"):
            break
    txt = "\n".join(head) + "\n"
    txt += f"; @launch grid=(256,1,1) block=(512,1,1) lds={LDS_BYTES}\n"
    txt += '.amdgcn_target "amdgcn-amd-amdhsa--gfx950"\n.text\n'
    txt += f".globl {KNAME}\n.p2align 8\n.type {KNAME},@function\n{KNAME}:\n"
    txt += a.text()
    txt += f""".section .rodata,"a"
.p2align 6
.amdhsa_kernel {KNAME}
  .amdhsa_next_free_vgpr 256
  .amdhsa_next_free_sgpr 102
  .amdhsa_accum_offset 256
  .amdhsa_group_segment_fixed_size 0
  .amdhsa_kernarg_size 128
  .amdhsa_user_sgpr_count 2
  .amdhsa_user_sgpr_kernarg_segment_ptr 1
  .amdhsa_system_sgpr_workgroup_id_x 1
.end_amdhsa_kernel
"""
    open(out_path, "w").write(txt)


def flag_load(a, ev, rb_s, vdst, tag):
    a(f"""s_lshl_b32 s{sT0}, s{rb_s}, 8
    s_add_u32 s{sT0}, s{sT0}, {WS_FLG + ev*64}
    v_and_b32 v{vdst}, 15, v{vLANE}
    v_lshlrev_b32 v{vdst}, 2, v{vdst}""")
    a.vmop(f"buffer_load_dword v{vdst}, v{vdst}, s[{SWS}:{SWS+3}], s{sT0} offen sc1", tag)


PRG = (252, 253, 254)


FLG_OFF = {0: 0, 1: 512, 2: 1024}


def poll_flags(a, ev):
    lp, ok = a.newlab("PF"), a.newlab("PFOK")
    wide = (ev == 1)
    a(f"""s_lshr_b32 s{sT0}, s{sRB2}, 1
    s_lshl_b32 s{sT0}, s{sT0}, 11
    s_add_u32 s{sT0}, s{sT0}, {WS_FLG + FLG_OFF[ev]}
    v_lshlrev_b32 v{vT}, {3 if wide else 2}, v{vLANE}
    s_mov_b32 s{sSPIN}, 0""")
    regs = [(248, 249), (250, 251), (252, 253)]
    ld = (lambda r: f"buffer_load_dwordx2 v[{r[0]}:{r[1]}], v{vT}, s[{SWS}:{SWS+3}], s{sT0} offen sc1") if wide else \
         (lambda r: f"buffer_load_dword v{r[0]}, v{vT}, s[{SWS}:{SWS+3}], s{sT0} offen sc1")
    for r in regs:
        a(ld(r) + "\ns_sleep 2")
    a.label(lp)
    for r in regs:
        nx = a.newlab("PFN")
        a(f"""s_waitcnt vmcnt(2)
        v_cmp_ne_u32 vcc, s{sTAG}, v{r[0]}
        s_add_u32 s{sSPIN}, s{sSPIN}, 1""")
        if wide:
            a(f"""s_cbranch_vccnz {nx}
            v_cmp_ne_u32 vcc, s{sTAG}, v{r[1]}
            s_nop 0
            s_cbranch_vccz {ok}""")
            a.label(nx)
        else:
            a(f"s_cbranch_vccz {ok}")
        a(ld(r))
    a(f"""s_cmp_gt_u32 s{sSPIN}, {SPIN_MAX}
    s_cbranch_scc0 {lp}""")
    a.label(ok)


def touch_A(a, ev):
    if not A_TOUCH:
        return
    k0, nl = {0: (0, 64), 1: (32, 108), 2: (86, 128)}[ev]
    a(f"""s_lshr_b32 s{sT0}, s{sCB}, 2
    s_lshl_b32 s{sT1}, s{sRB2}, 1
    s_add_u32 s{sT0}, s{sT0}, s{sT1}
    s_mul_i32 s{sT0}, s{sT0}, {RT_STRIDE}
    s_and_b32 s{sT1}, s{sCB}, 3
    s_mul_i32 s{sT1}, s{sT1}, {nl*128}
    s_add_u32 s{sT0}, s{sT0}, s{sT1}
    s_add_u32 s{sT0}, s{sT0}, {k0*1024}
    v_lshlrev_b32 v{vT+1}, 7, v{vLANE}
    buffer_load_dword v{JUNK}, v{vT+1}, s[{SWS}:{SWS+3}], s{sT0} offen sc1""")
    if nl > 64:
        a(f"s_add_u32 s{sT0}, s{sT0}, 8192")
        if nl < 128:
            a(f"""v_cmp_gt_u32 vcc, {nl-64}, v{vLANE}
            s_and_saveexec_b64 s[{sEX}:{sEX+1}], vcc
            buffer_load_dword v{JUNK}, v{vT+1}, s[{SWS}:{SWS+3}], s{sT0} offen sc1
            s_mov_b64 exec, s[{sEX}:{sEX+1}]""")
        else:
            a(f"buffer_load_dword v{JUNK}, v{vT+1}, s[{SWS}:{SWS+3}], s{sT0} offen sc1")


def write_flag(a, ev, ch):
    sh = 5 if ev == 1 else 4
    a(f"""s_lshl_b32 s{sT0}, s{sRB}, 11
    s_lshl_b32 s{sT1}, s{sCG}, {sh}
    s_add_u32 s{sT0}, s{sT0}, s{sT1}
    s_lshl_b32 s{sT1}, s{sW if ev == 1 else sRG}, 2
    s_add_u32 s{sT0}, s{sT0}, s{sT1}
    s_add_u32 s{sT0}, s{sT0}, {WS_FLG + FLG_OFF[ev]}
    v_mov_b32 v{vT+9}, 0
    v_mov_b32 v{vT+10}, s{sTAG}
    s_mov_b64 s[{sEX}:{sEX+1}], exec
    s_mov_b64 exec, 1""")
    a.vmop(f"buffer_store_dword v{vT+10}, v{vT+9}, s[{SWS}:{SWS+3}], s{sT0} offen sc1", "flag")
    a(f"s_mov_b64 exec, s[{sEX}:{sEX+1}]")


def only_rg(a, rg, fn):
    lab = a.newlab("RG")
    a(f"s_cmp_eq_u32 s{sRG}, {rg}\ns_cbranch_scc0 {lab}")
    lg = list(a.lg)
    fn()
    a.label(lab)
    a.lg = lg


def colsum_mfma(a, wf0, wf1, accreg, first=False):
    l1, l2 = a.newlab("CS"), a.newlab("CS")
    c = "0" if first else f"v[{accreg}:{accreg+15}]"
    a(f"""s_cmp_eq_u32 s{sCSM}, 0
    s_cbranch_scc1 {l2}
    s_cmp_eq_u32 s{sCSM}, 1
    s_cbranch_scc0 {l1}
    v_mfma_f32_32x32x16_bf16 v[{accreg}:{accreg+15}], v[{ONES}:{ONES+3}], v[{wf0}:{wf0+3}], {c}
    s_branch {l2}""")
    a.label(l1)
    a(f"v_mfma_f32_32x32x16_bf16 v[{accreg}:{accreg+15}], v[{ONES}:{ONES+3}], v[{wf1}:{wf1+3}], {c}")
    a.label(l2)


def colsum_store(a, accreg, unit, koff=0):
    l2 = a.newlab("CSS")
    a(f"""s_cmp_eq_u32 s{sCSM}, 0
    s_cbranch_scc1 {l2}
    s_nop 7
    s_nop 7
    s_add_u32 s{sT1}, s{sKC0}, {koff}
    s_and_b32 s{sT1}, s{sT1}, 7
    s_lshl_b32 s{sT0}, s{sCG}, 3
    s_add_u32 s{sT0}, s{sT0}, s{sT1}
    s_lshl_b32 s{sT0}, s{sT0}, 11
    s_sub_u32 s{sT1}, s{sCSM}, 1
    s_lshl_b32 s{sT1}, s{sT1}, 8
    s_add_u32 s{sT0}, s{sT0}, s{sT1}
    s_add_u32 s{sT0}, s{sT0}, {WS_CS + unit*512}
    v_mov_b32 v{accreg+1}, s{sTAG}
    v_lshlrev_b32 v{accreg+2}, 3, v{vLANE}
    v_cmp_gt_u32 vcc, 32, v{vLANE}
    s_and_saveexec_b64 s[{sEX}:{sEX+1}], vcc
    buffer_store_dwordx2 v[{accreg}:{accreg+1}], v{accreg+2}, s[{SWS}:{SWS+3}], s{sT0} offen sc1
    s_mov_b64 exec, s[{sEX}:{sEX+1}]""")
    a.label(l2)


def gather_loads(a, part, dst, atmp):
    l1, l2 = a.newlab("G"), a.newlab("G")
    a(f"""s_cmp_lt_u32 s{sRG}, 2
    s_cbranch_scc0 {l1}
    s_lshl_b32 s{sT0}, s{sCG}, 14
    s_add_u32 s{sT0}, s{sT0}, {WS_CS + part*1024}
    s_lshl_b32 s{sT1}, s{sRG}, 9
    s_add_u32 s{sT0}, s{sT0}, s{sT1}
    v_lshlrev_b32 v{atmp}, 3, v{vLANE}""")
    for j in range(8):
        so, io = (j * 2048 // 4096) * 4096, (j * 2048) % 4096
        a(f"s_add_u32 s{sT1}, s{sT0}, {so}")
        a(f"buffer_load_dwordx2 v[{dst+2*j}:{dst+2*j+1}], v{atmp}, s[{SWS}:{SWS+3}], s{sT1} offen offset:{io} sc1")
    a(f"s_branch {l2}")
    a.label(l1)
    if part == 0:
        a(f"""s_lshl_b32 s{sT0}, s{sRB}, 11
        s_sub_u32 s{sT1}, s{sRG}, 2
        s_lshl_b32 s{sT1}, s{sT1}, 10
        s_add_u32 s{sT0}, s{sT0}, s{sT1}
        s_add_u32 s{sT0}, s{sT0}, {WS_STAT}
        v_lshlrev_b32 v{atmp}, 4, v{vLANE}
        buffer_load_dwordx4 v[{dst}:{dst+3}], v{atmp}, s[{SWS}:{SWS+3}], s{sT0} offen sc1""")
    a.label(l2)


def gather_finish(a, part, dst, nyounger, atmp):
    lr, l1, l2, lok, lok2, l0 = [a.newlab("GF") for _ in range(6)]
    a(f"s_mov_b32 s{sSPIN}, 0")
    a(f"s_waitcnt vmcnt({nyounger})")
    a(f"s_branch {l0}")
    a.label(lr)
    a("s_waitcnt vmcnt(0)")
    a.label(l0)
    a(f"""s_cmp_lt_u32 s{sRG}, 2
    s_cbranch_scc0 {l1}
    s_mov_b64 s[{sMASK}:{sMASK+1}], 0""")
    for j in range(8):
        a(f"""v_cmp_ne_u32 vcc, s{sTAG}, v{dst+2*j+1}
        s_or_b64 s[{sMASK}:{sMASK+1}], s[{sMASK}:{sMASK+1}], vcc""")
    a(f"""s_cmp_eq_u64 s[{sMASK}:{sMASK+1}], 0
    s_cbranch_scc1 {lok}
    s_add_u32 s{sSPIN}, s{sSPIN}, 1
    s_cmp_gt_u32 s{sSPIN}, {SPIN_MAX}
    s_cbranch_scc1 {lok}""")
    gather_loads(a, part, dst, atmp)
    a(f"s_branch {lr}")
    a.label(lok)
    a(f"""v_add_f32 v{dst}, v{dst}, v{dst+2}
    v_add_f32 v{dst+4}, v{dst+4}, v{dst+6}
    v_add_f32 v{dst+8}, v{dst+8}, v{dst+10}
    v_add_f32 v{dst+12}, v{dst+12}, v{dst+14}
    v_add_f32 v{dst}, v{dst}, v{dst+4}
    v_add_f32 v{dst+8}, v{dst+8}, v{dst+12}
    v_add_f32 v{dst}, v{dst}, v{dst+8}
    s_lshl_b32 s{sT0}, s{sRG}, 8
    s_add_u32 s{sT0}, s{sT0}, {SCR}
    v_lshlrev_b32 v{atmp}, 2, v{vLANE}
    v_add_u32 v{atmp}, s{sT0}, v{atmp}
    ds_write_b32 v{atmp}, v{dst} offset:{SCR_CS + part*512}
    s_branch {l2}""")
    a.label(l1)
    if part == 0:
        a(f"""v_cmp_ne_u32 vcc, s{sTAG}, v{dst+1}
        s_mov_b64 s[{sMASK}:{sMASK+1}], vcc
        v_cmp_ne_u32 vcc, s{sTAG}, v{dst+3}
        s_or_b64 s[{sMASK}:{sMASK+1}], s[{sMASK}:{sMASK+1}], vcc
        s_cmp_eq_u64 s[{sMASK}:{sMASK+1}], 0
        s_cbranch_scc1 {lok2}
        s_add_u32 s{sSPIN}, s{sSPIN}, 1
        s_cmp_gt_u32 s{sSPIN}, {SPIN_MAX}
        s_cbranch_scc1 {lok2}""")
        gather_loads(a, part, dst, atmp)
        a(f"s_branch {lr}")
        a.label(lok2)
        a(f"""v_rcp_f32 v{dst+2}, v{dst+2}
        v_sub_f32 v{dst+3}, 0, v{dst}
        s_sub_u32 s{sT0}, s{sRG}, 2
        s_lshl_b32 s{sT0}, s{sT0}, 9
        s_add_u32 s{sT0}, s{sT0}, {SCR}
        v_lshlrev_b32 v{atmp}, 3, v{vLANE}
        v_add_u32 v{atmp}, s{sT0}, v{atmp}
        ds_write_b64 v{atmp}, v[{dst+2}:{dst+3}] offset:{SCR_ST}""")
    a.label(l2)
    a.lgwait_all()


def row_stats_M(q, tmp):
    q(f"""v_and_b32 v{tmp}, 31, v{vLANE}
    v_bfe_u32 v{tmp+1}, v{tmp}, 2, 1
    v_lshlrev_b32 v{tmp+1}, 4, v{tmp+1}
    v_lshrrev_b32 v{tmp+2}, 3, v{tmp}
    v_lshl_add_u32 v{tmp+1}, v{tmp+2}, 2, v{tmp+1}
    v_and_b32 v{tmp+2}, 3, v{tmp}
    v_add_u32 v{tmp+1}, v{tmp+1}, v{tmp+2}
    v_lshlrev_b32 v{tmp+2}, 5, v{vRGV}
    v_add_u32 v{tmp+1}, v{tmp+2}, v{tmp+1}
    v_lshlrev_b32 v{tmp+1}, 3, v{tmp+1}
    v_add_u32 v{tmp+1}, {SCR}, v{tmp+1}""")
    q.ldsop(f"ds_read_b64 v[{vRINV}:{vRINV+1}], v{tmp+1} offset:{SCR_ST}", "rs")
    q.lgwait("rs")


vRGV = 2


def gelu_epi(q, acc, pos_s, cs_off, tagname, csr, T, maybe=False):
    K0 = -2.0 * math.sqrt(2.0 / math.pi) * LOG2E
    K1c = K0 * 0.044715
    q(f"""v_mov_b32 v{vK1}, {f2u(K1c)}
    v_lshrrev_b32 v{vCA}, 5, v{vLANE}
    v_lshlrev_b32 v{vCA}, 4, v{vCA}
    v_add_u32 v{vCA}, {SCR + SCR_CS + cs_off}, v{vCA}""")
    cg_, cu_ = csr, csr + 4
    for qq in range(4):
        q.ldsop(f"ds_read_b128 v[{cg_}:{cg_+3}], v{vCA} offset:{qq*32}", "cs")
        q.ldsop(f"ds_read_b128 v[{cu_}:{cu_+3}], v{vCA} offset:{128 + qq*32}", "cs")
        q.lgwait("cs")
        rs = [4 * qq + i for i in range(4)]
        for i, r in enumerate(rs):
            q(f"v_fma_f32 v{acc+r}, v{vNM}, v{cg_+i}, v{acc+r}")
        for i, r in enumerate(rs):
            q(f"v_fma_f32 v{acc+16+r}, v{vNM}, v{cu_+i}, v{acc+16+r}")
        for i, r in enumerate(rs):
            q(f"v_mul_f32 v{acc+r}, v{acc+r}, v{vRINV}")
        for i, r in enumerate(rs):
            q(f"v_mul_f32 v{T+i}, v{acc+r}, v{acc+r}")
        for i, r in enumerate(rs):
            q(f"v_fmaak_f32 v{T+i}, v{vK1}, v{T+i}, {f2u(K0)}")
        for i, r in enumerate(rs):
            q(f"v_mul_f32 v{T+i}, v{T+i}, v{acc+r}")
        for i, r in enumerate(rs):
            q(f"v_exp_f32 v{T+i}, v{T+i}")
        for i, r in enumerate(rs):
            q(f"v_mul_f32 v{T+4+i}, v{acc+r}, v{acc+16+r}")
        for i, r in enumerate(rs):
            q(f"v_add_f32 v{T+i}, 1.0, v{T+i}")
        for i, r in enumerate(rs):
            q(f"v_rcp_f32 v{T+i}, v{T+i}")
        for i, r in enumerate(rs):
            q(f"v_mul_f32 v{T+4+i}, v{T+4+i}, v{vRINV}")
        for i, r in enumerate(rs):
            q(f"v_mul_f32 v{T+i}, v{T+i}, v{T+4+i}")
        q(f"v_cvt_pk_bf16_f32 v{acc+2*qq}, v{T}, v{T+1}\nv_cvt_pk_bf16_f32 v{acc+2*qq+1}, v{T+2}, v{T+3}")
    q(f"v_lshlrev_b32 v{T}, 4, v{vLANE}")
    q.vmop(f"buffer_store_dwordx4 v[{acc}:{acc+3}], v{T}, s[{SWS}:{SWS+3}], s{pos_s} offen sc1", tagname, maybe)
    q.vmop(f"buffer_store_dwordx4 v[{acc+4}:{acc+7}], v{T}, s[{SWS}:{SWS+3}], s{pos_s} offen offset:1024 sc1", tagname, maybe)


def s_params(q):
    vLre, vLim, vLdt = vT + 7, vT + 8, vT + 9
    t0, t1, t2, t3, t4, t5, t6 = [vT + i for i in range(7)]
    q(f"""v_lshlrev_b32 v{vLre}, 16, v{vA16r}
    v_lshlrev_b32 v{vLim}, 16, v{vA16i}
    v_lshlrev_b32 v{vLdt}, 16, v{vA128r}
    v_mul_f32 v{t0}, {f2u(LOG2E)}, v{vLdt}
    v_exp_f32 v{t0}, v{t0}
    s_nop 0""")
    rne_bf16(q, t0)
    q(f"""v_mul_f32 v{t1}, v{t0}, v{vLre}
    v_mul_f32 v{t2}, v{t0}, v{vLim}
    v_mul_f32 v{t1}, {f2u(LOG2E)}, v{t1}
    v_exp_f32 v{t1}, v{t1}
    v_mul_f32 v{t2}, {f2u(1.0/(2*math.pi))}, v{t2}
    v_rndne_f32 v{t3}, v{t2}
    v_sub_f32 v{t2}, v{t2}, v{t3}
    v_cos_f32 v{t3}, v{t2}
    v_sin_f32 v{t4}, v{t2}
    s_nop 0
    v_mul_f32 v{vAr}, v{t1}, v{t3}
    v_mul_f32 v{vAi}, v{t1}, v{t4}
    v_add_f32 v{t3}, -1.0, v{vAr}
    v_mul_f32 v{t4}, v{vLre}, v{vLre}
    v_fmac_f32 v{t4}, v{vLim}, v{vLim}
    v_rcp_f32 v{t4}, v{t4}
    v_mul_f32 v{t5}, v{t3}, v{vLre}
    v_fmac_f32 v{t5}, v{vAi}, v{vLim}
    v_mul_f32 v{t6}, v{vAi}, v{vLre}
    v_fma_f32 v{t6}, -v{t3}, v{vLim}, v{t6}
    v_add_f32 v{t4}, v{t4}, v{t4}
    v_mul_f32 v{vKr}, v{t5}, v{t4}
    v_mul_f32 v{vKi}, v{t6}, v{t4}
    v_mov_b32 v{vA16r}, v{vAr}
    v_mov_b32 v{vA16i}, v{vAi}""")

    def csq(r, i):
        q(f"""v_mul_f32 v{t0}, v{i}, v{i}
        v_mul_f32 v{t1}, v{r}, v{i}
        v_fma_f32 v{r}, v{r}, v{r}, -v{t0}
        v_add_f32 v{i}, v{t1}, v{t1}""")
    for _ in range(4):
        csq(vA16r, vA16i)
    q(f"v_mov_b32 v{vA128r}, v{vA16r}\nv_mov_b32 v{vA128i}, v{vA16i}")
    for _ in range(3):
        csq(vA128r, vA128i)


def s_epilogue1(q):
    zr = lambda j: vACC + j
    zi = lambda j: vACC + 16 + j
    T = vT
    CR, CI = T + 9, T + 10
    q(f"""v_and_b32 v{T}, 31, v{vLANE}
    v_lshlrev_b32 v{T+1}, 2, v{T}
    v_add_u32 v{T+1}, {SCR}, v{T+1}""")
    q.ldsop(f"ds_read_b32 v{CR}, v{T+1} offset:{SCR_CS}", "sc")
    q.ldsop(f"ds_read_b32 v{CI}, v{T+1} offset:{SCR_CS+128}", "sc")
    q(f"""v_lshrrev_b32 v{T+2}, 5, v{vLANE}
    v_lshlrev_b32 v{T+3}, 5, v{vRGV}
    v_lshl_add_u32 v{T+3}, v{T+2}, 4, v{T+3}
    v_lshlrev_b32 v{T+3}, 3, v{T+3}
    v_add_u32 v{T+3}, {SCR}, v{T+3}""")
    for qq in range(4):
        q.ldsop(f"ds_read_b128 v[4:7], v{T+3} offset:{SCR_ST + qq*32}", "sc")
        q.ldsop(f"ds_read_b128 v[8:11], v{T+3} offset:{SCR_ST + qq*32 + 16}", "sc")
        q.lgwait("sc")
        for i in range(4):
            j = 4 * qq + i
            ri, nm = 4 + 2 * i, 5 + 2 * i
            q(f"""v_fma_f32 v{zr(j)}, v{nm}, v{CR}, v{zr(j)}
            v_fma_f32 v{zi(j)}, v{nm}, v{CI}, v{zi(j)}
            v_mul_f32 v{zr(j)}, v{zr(j)}, v{ri}
            v_mul_f32 v{zi(j)}, v{zi(j)}, v{ri}""")
    cur, alt = (T + 4, T + 5), (T + 7, T + 8)
    q(f"v_mov_b32 v{cur[0]}, v{zr(0)}\nv_mov_b32 v{cur[1]}, v{zi(0)}")
    for j in range(1, 16):
        sr, si = cur
        nr, ni = alt
        q(f"""v_fma_f32 v{nr}, v{vAr}, v{sr}, v{zr(j)}
        v_fma_f32 v{ni}, v{vAr}, v{si}, v{zi(j)}
        v_fma_f32 v{nr}, -v{vAi}, v{si}, v{nr}
        v_fma_f32 v{ni}, v{vAi}, v{sr}, v{ni}""")
        cur, alt = alt, cur
    assert cur == (T + 7, T + 8) and (T + 7) % 2 == 0
    q(f"""v_lshlrev_b32 v{T+1}, 1, v{vRGV}
    v_add_u32 v{T+1}, v{T+1}, v{T+2}
    v_lshlrev_b32 v{T+1}, 8, v{T+1}
    v_lshl_add_u32 v{T+1}, v{T}, 3, v{T+1}
    v_add_u32 v{T+1}, {SCR}, v{T+1}""")
    q.ldsop(f"ds_write_b64 v{T+1}, v[{T+7}:{T+8}] offset:{SCR_ES}", "ew")


def s_publish(a):
    T = vT
    a(f"""s_waitcnt lgkmcnt(0)
    v_and_b32 v{T}, 31, v{vLANE}
    v_lshlrev_b32 v{T+1}, 3, v{T}
    v_add_u32 v{T+1}, {SCR}, v{T+1}
    ds_read_b64 v[4:5], v{T+1} offset:{SCR_ES}
    ds_read_b64 v[6:7], v{T+1} offset:{SCR_ES+256}
    ds_read_b64 v[8:9], v{T+1} offset:{SCR_ES+512}
    ds_read_b64 v[10:11], v{T+1} offset:{SCR_ES+768}
    s_waitcnt lgkmcnt(0)""")

    def step(er, ei):
        a(f"""v_fma_f32 v{T+2}, v{vA16r}, v4, v{er}
        v_fma_f32 v{T+3}, v{vA16r}, v5, v{ei}
        v_fma_f32 v{T+2}, -v{vA16i}, v5, v{T+2}
        v_fma_f32 v5, v{vA16i}, v4, v{T+3}
        v_mov_b32 v4, v{T+2}""")
    step(6, 7); step(8, 9); step(10, 11)
    a(f"""ds_read_b64 v[6:7], v{T+1} offset:{SCR_ES+1024}
    ds_read_b64 v[8:9], v{T+1} offset:{SCR_ES+1280}
    ds_read_b64 v[10:11], v{T+1} offset:{SCR_ES+1536}
    ds_read_b64 v[{T+5}:{T+6}], v{T+1} offset:{SCR_ES+1792}
    s_waitcnt lgkmcnt(0)""")
    assert (T + 5) % 2 == 0
    step(6, 7); step(8, 9); step(10, 11); step(T + 5, T + 6)
    a(f"""v_mov_b32 v6, v5
    v_mov_b32 v5, s{sTAG}
    v_mov_b32 v7, s{sTAG}
    s_lshl_b32 s{sT0}, s{sCG}, 5
    v_add_u32 v{T}, s{sT0}, v{T}
    v_lshlrev_b32 v{T}, 4, v{T}
    s_lshl_b32 s{sT0}, s{sRB}, 13
    s_add_u32 s{sT0}, s{sT0}, {WS_AGG}
    v_cmp_gt_u32 vcc, 32, v{vLANE}
    s_and_saveexec_b64 s[{sEX}:{sEX+1}], vcc
    buffer_store_dwordx4 v[4:7], v{T}, s[{SWS}:{SWS+3}], s{sT0} offen sc1
    s_mov_b64 exec, s[{sEX}:{sEX+1}]""")


LBG = 160
HG = 192


def lookback_loads(a, tracked=True):
    a(f"""v_and_b32 v{vT+9}, 31, v{vLANE}
    s_lshl_b32 s{sT0}, s{sCG}, 5
    v_add_u32 v{vT+9}, s{sT0}, v{vT+9}
    v_lshlrev_b32 v{vT+9}, 4, v{vT+9}           ; p*16
    v_lshrrev_b32 v3, 5, v{vLANE}
    s_sub_u32 s{sT0}, s{sRB}, 1
    v_sub_u32 v3, s{sT0}, v3                    ; rb-1-hf
    v_lshlrev_b32 v3, 13, v3
    v_add_u32 v3, v3, v{vT+9}
    s_mov_b32 s{sT0}, {WS_AGG}
    v_mov_b32 v{vT+10}, 0x7ff00000""")
    for i in range(8):
        a(f"""v_subrev_u32 v{vT+9}, {i*16384}, v3
        v_cmp_gt_i32 vcc, 0, v{vT+9}
        s_nop 1
        v_cndmask_b32 v{vT+9}, v{vT+9}, v{vT+10}, vcc""")
        code = f"buffer_load_dwordx4 v[{LBG+4*i}:{LBG+4*i+3}], v{vT+9}, s[{SWS}:{SWS+3}], s{sT0} offen sc1"
        if tracked:
            a.vmop(code, "lb")
        else:
            a(code)


def s_work_atoms(a, q):
    zr = lambda j: vACC + j
    zi = lambda j: vACC + 16 + j
    T = vT
    L = LBG
    G = LBG
    EB = 128
    q(f"""v_and_b32 v{T+8}, 31, v{vLANE}
    v_lshlrev_b32 v{T}, 3, v{T+8}
    v_add_u32 v{T}, {SCR}, v{T}""")
    for s in range(8):
        q.ldsop(f"ds_read_b64 v[{EB+2*s}:{EB+2*s+1}], v{T} offset:{SCR_ES + s*256}", "se")
    q(f"""v_mul_f32 v{T+5}, v{vA128i}, v{vA128i}
    v_mul_f32 v{T+6}, v{vA128r}, v{vA128i}
    v_fma_f32 v{T+5}, v{vA128r}, v{vA128r}, -v{T+5}
    v_add_f32 v{T+6}, v{T+6}, v{T+6}""")

    def check():
        lp, got = a.newlab("LB"), a.newlab("LBG")
        a(f"s_mov_b32 s{sSPIN}, 0")
        a.vmwait("lb")
        a.label(lp)
        a(f"""v_lshrrev_b32 v{T+1}, 5, v{vLANE}
        s_sub_u32 s{sT0}, s{sRB}, 1
        v_sub_u32 v{T+1}, s{sT0}, v{T+1}
        s_mov_b64 s[{sMASK}:{sMASK+1}], 0""")
        for i in range(8):
            a(f"""v_cmp_ne_u32 vcc, s{sTAG}, v{L+4*i+1}
            v_cmp_ne_u32 s[{sEX}:{sEX+1}], s{sTAG}, v{L+4*i+3}
            s_or_b64 s[{sEX}:{sEX+1}], s[{sEX}:{sEX+1}], vcc
            v_cmp_le_i32 vcc, {2*i}, v{T+1}
            s_and_b64 s[{sEX}:{sEX+1}], s[{sEX}:{sEX+1}], vcc
            s_or_b64 s[{sMASK}:{sMASK+1}], s[{sMASK}:{sMASK+1}], s[{sEX}:{sEX+1}]""")
        a(f"""s_cmp_eq_u64 s[{sMASK}:{sMASK+1}], 0
        s_cbranch_scc1 {got}
        s_add_u32 s{sSPIN}, s{sSPIN}, 1
        s_cmp_gt_u32 s{sSPIN}, {SPIN_MAX}
        s_cbranch_scc1 {got}""")
        lookback_loads(a, tracked=False)
        a(f"s_waitcnt vmcnt(0)\ns_branch {lp}")
        a.label(got)
    q.q.append(("call", check))
    cr, ci = T + 1, T + 2
    q(f"v_mov_b32 v{cr}, v{L+28}\nv_mov_b32 v{ci}, v{L+30}")
    for i in range(6, -1, -1):
        q(f"""v_fma_f32 v{T+3}, v{T+5}, v{cr}, v{L+4*i}
        v_fma_f32 v{T+4}, v{T+5}, v{ci}, v{L+4*i+2}
        v_fma_f32 v{T+3}, -v{T+6}, v{ci}, v{T+3}
        v_fma_f32 v{ci}, v{T+6}, v{cr}, v{T+4}
        v_mov_b32 v{cr}, v{T+3}""")
    q(f"""v_mov_b32 v{T+3}, v{cr}
    v_mov_b32 v{T+4}, v{ci}
    s_nop 1
    v_permlane32_swap_b32 v{cr}, v{T+3}
    v_permlane32_swap_b32 v{ci}, v{T+4}
    s_nop 1
    v_fma_f32 v{cr}, v{vA128r}, v{T+3}, v{cr}
    v_fma_f32 v{ci}, v{vA128r}, v{T+4}, v{ci}
    v_fma_f32 v{cr}, -v{vA128i}, v{T+4}, v{cr}
    v_fma_f32 v{ci}, v{vA128i}, v{T+3}, v{ci}
    v_lshrrev_b32 v{T+5}, 5, v{vLANE}
    v_lshl_add_u32 v{T+5}, v{vRGV}, 1, v{T+5}""")
    q.lgwait("se")
    for s in range(7):
        def seg(s=s):
            a(f"""v_fma_f32 v{T+3}, v{vA16r}, v{cr}, v{EB+2*s}
            v_fma_f32 v{T+4}, v{vA16r}, v{ci}, v{EB+2*s+1}
            v_cmp_lt_u32 vcc, {s}, v{T+5}
            v_fma_f32 v{T+3}, -v{vA16i}, v{ci}, v{T+3}
            v_fma_f32 v{T+4}, v{vA16i}, v{cr}, v{T+4}
            v_cndmask_b32 v{cr}, v{cr}, v{T+3}, vcc
            v_cndmask_b32 v{ci}, v{ci}, v{T+4}, vcc""")
        q.q.append(("calln", seg, 7))
    cur, alt = (cr, ci), (T + 3, T + 4)
    for j in range(16):
        sr, si = cur
        nr, ni = alt
        q(f"""v_fma_f32 v{nr}, v{vAr}, v{sr}, v{zr(j)}
        v_fma_f32 v{ni}, v{vAr}, v{si}, v{zi(j)}
        v_fma_f32 v{nr}, -v{vAi}, v{si}, v{nr}
        v_fma_f32 v{ni}, v{vAi}, v{sr}, v{ni}
        v_mul_f32 v{zr(j)}, v{vKr}, v{nr}
        v_mul_f32 v{zi(j)}, -v{vKr}, v{ni}
        v_fma_f32 v{zr(j)}, -v{vKi}, v{ni}, v{zr(j)}
        v_fma_f32 v{zi(j)}, -v{vKi}, v{nr}, v{zi(j)}""")
        cur, alt = alt, cur
    for j in range(0, 16, 2):
        q(f"v_cvt_pk_bf16_f32 v{G+j//2}, v{zr(j)}, v{zr(j+1)}")
        q(f"v_cvt_pk_bf16_f32 v{G+8+j//2}, v{zi(j)}, v{zi(j+1)}")
    q(f"""v_lshlrev_b32 v{T+6}, 12, v{vRGV}
    v_add_u32 v{T+6}, {SCR_T}, v{T+6}
    v_lshrrev_b32 v{T+5}, 5, v{vLANE}
    v_lshlrev_b32 v{T+5}, 3, v{T+5}
    v_lshl_add_u32 v{T+5}, v{T+8}, 6, v{T+5}
    v_add_u32 v{T+5}, v{T+6}, v{T+5}
    v_add_u32 v{T+6}, v{T+6}, v{vTRL}
    v_lshlrev_b32 v{T}, 4, v{vLANE}""")
    for part in range(2):
        for qq in range(4):
            r = G + 8 * part + 2 * qq
            q.ldsop(f"ds_write_b64 v{T+5}, v[{r}:{r+1}] offset:{part*2048 + qq*16}", "tw")
    q.lgwait("tw")
    R = G + 16
    for part in range(2):
        for s2 in range(2):
            r = R + 8 * part + 4 * s2
            o = part * 2048 + s2 * 1024
            q.ldsop(f"ds_read_b64_tr_b16 v[{r}:{r+1}], v{T+6} offset:{o}", "tr")
            q.ldsop(f"ds_read_b64_tr_b16 v[{r+2}:{r+3}], v{T+6} offset:{o+256}", "tr")
    q.lgwait("tr")
    for part in range(2):
        for s2 in range(2):
            r = R + 8 * part + 4 * s2
            q.vmop(f"buffer_store_dwordx4 v[{r}:{r+3}], v{T}, s[{SWS}:{SWS+3}], s{sMU} offen offset:{(2*part+s2)*1024} sc1", "h")


vTRL = 3


def gen(a):
    global vTRL
    vTRL = 0
    sIDX = sMX
    if STAMPS:
        a(f"s_memrealtime s[{sMASK}:{sMASK+1}]")
    a(f"""s_cmp_ge_u32 s2, 256
    s_cbranch_scc1 L_END
    s_load_dwordx16 s[40:55], s[0:1], 0
    s_load_dwordx16 s[56:71], s[0:1], 64
    v_and_b32 v{vLANE}, 63, v0
    v_lshrrev_b32 v2, 6, v0
    s_and_b32 s{sT0}, s2, 7            ; xcd
    v_readfirstlane_b32 s{sW}, v2
    s_lshr_b32 s{sIDX}, s2, 3          ; idx
    s_and_b32 s{sRB}, s{sT0}, 1
    s_lshl_b32 s{sRB}, s{sRB}, 3
    s_and_b32 s{sT2}, s{sIDX}, 7
    s_add_u32 s{sRB}, s{sRB}, s{sT2}   ; rb
    s_lshr_b32 s{sCG}, s{sT0}, 1
    s_lshl_b32 s{sCG}, s{sCG}, 2
    s_lshr_b32 s{sT2}, s{sIDX}, 3
    s_add_u32 s{sCG}, s{sCG}, s{sT2}   ; cg
    s_and_b32 s{sRG}, s{sW}, 3
    s_lshl_b32 s{sKC0}, s{sCG}, 1
    s_add_u32 s{sKC0}, s{sKC0}, s{sRB}
    s_and_b32 s{sKC0}, s{sKC0}, 7
    s_lshl_b32 s{sRB2}, s{sT0}, 2
    s_and_b32 s{sT2}, s{sIDX}, 3
    s_add_u32 s{sRB2}, s{sRB2}, s{sT2}
    s_lshr_b32 s{sCB}, s{sIDX}, 2
    s_mul_i32 s{sT2}, s{sCG}, 3
    s_lshl_b32 s{sT3}, s{sCG}, 1
    s_add_u32 s{sT3}, s{sT3}, 11
    s_cmp_lt_u32 s{sCG}, 11
    s_cselect_b32 s{sU0B}, s{sT2}, s{sT3}
    s_cselect_b32 s{sDUM}, 64, 0x40000000
    s_lshl_b32 s{sU0B}, s{sU0B}, 6
    s_lshl_b32 s{sLW}, s{sRG}, 12           ; w'*4096
    s_lshl_b32 s{sMS}, s{sRG}, 11
    s_add_u32 s{sMS}, s{sMS}, 16384         ; S pieces: 16384 + w'*2048
    s_lshl_b32 s{sM1}, s{sRG}, 10           ; kstep*1024
    v_lshrrev_b32 v2, 3, v{vLANE}           ; lane>>3
    v_and_b32 v3, 7, v{vLANE}
    v_lshrrev_b32 v{vT}, 4, v{vLANE}        ; lane>>4
    v_xor_b32 v{vT+1}, v3, v{vT}            ; (lane&7)^(lane>>4)
    s_lshl_b32 s{sT2}, s{sRB}, 7
    s_lshl_b32 s{sT3}, s{sRG}, 5
    s_add_u32 s{sT2}, s{sT2}, s{sT3}
    v_add_u32 v{vT+2}, s{sT2}, v2
    v_lshlrev_b32 v{vT+2}, 10, v{vT+2}
    v_lshl_add_u32 v{vDX0}, v{vT+1}, 4, v{vT+2}
    v_xor_b32 v{vDX1}, 64, v{vDX0}
    v_add_u32 v{vDX1}, 8192, v{vDX1}
    s_and_b32 s{sT4}, s{sRG}, 1
    s_lshl_b32 s{sT4}, s{sT4}, 4
    s_lshl_b32 s{sT3}, s{sCG}, 5
    s_add_u32 s{sT4}, s{sT4}, s{sT3}
    v_add_u32 v{vT+2}, s{sT4}, v2
    v_lshlrev_b32 v{vT+2}, 10, v{vT+2}
    v_lshl_add_u32 v{vDS}, v{vT+1}, 4, v{vT+2}
    v_xor_b32 v{vDS1}, 64, v{vDS}
    v_add_u32 v{vDS1}, 8192, v{vDS1}
    v_lshrrev_b32 v{vT+2}, 2, v{vLANE}
    s_lshl_b32 s{sT4}, s{sRG}, 4
    v_add_u32 v{vT+2}, s{sT4}, v{vT+2}
    v_mul_u32_u24 v{vT+2}, 2752, v{vT+2}
    v_and_b32 v{vT+4}, 3, v{vLANE}
    v_lshl_add_u32 v{vDM}, v{vT+4}, 4, v{vT+2}
    v_lshlrev_b32 v{vT+3}, 4, v{vLANE}
    s_and_b32 s{sT4}, s{sW}, 2
    s_waitcnt lgkmcnt(0)""")
    pstamp(a, 0)
    srd(a, SX, P_X, 2048 * 1024)
    a(f"""s_cmp_eq_u32 s{sT4}, 0
    s_cselect_b32 s{P_BRE}, s{P_BRE}, s{P_BIM}
    s_cselect_b32 s{P_BRE+1}, s{P_BRE+1}, s{P_BIM+1}
    s_cselect_b32 s{P_CRE}, s{P_CRE}, s{P_CIM}
    s_cselect_b32 s{P_CRE+1}, s{P_CRE+1}, s{P_CIM+1}""")
    lab0, lab1 = a.newlab("D0"), a.newlab("D1")
    a(f"s_cmp_lt_u32 s{sW}, 4\ns_cbranch_scc1 {lab0}")
    for s_ in range(NPRE):
        for code, tag in dma_p0(s_, 1):
            a(code)
    srd(a, SS, P_BRE, 512 * 1024)
    srd(a, SM, P_WG, 512 * 2752)
    a(f"s_branch {lab1}")
    a.label(lab0)
    srd(a, SS, P_BRE, 512 * 1024)
    srd(a, SM, P_WG, 512 * 2752)
    a(f"s_mov_b32 s{sT4}, s{P_WU}\ns_mov_b32 s{sT5}, s{P_WU+1}")
    srd(a, 32, sT4, 512 * 2752)
    for s_ in range(NPRE):
        for code, tag in dma_p0(s_, 0):
            a(code.replace(f"s[{SM2}:{SM2+3}]", "s[32:35]"))
        if s_ == 0:
            a(f"""s_lshl_b32 s{sT2}, s2, 3
            s_lshl_b32 s{sT3}, s{sRG}, 1
            s_add_u32 s{sT5}, s{sT2}, s{sT3}
            s_lshl_b32 s{sT5}, s{sT5}, 10
            buffer_load_dwordx4 v[{vACC}:{vACC+3}], v{vT+3}, s[{SX}:{SX+3}], s{sT5} offen
            buffer_load_dwordx4 v[{vACC+4}:{vACC+7}], v{vT+3}, s[{SX}:{SX+3}], s{sT5} offen offset:1024""")
    a.label(lab1)
    srd(a, SWS, P_WS, WS_SIZE)
    a(f"""s_add_u32 s{P_BIM}, s{P_WS}, {WS_EPOCH}
    s_addc_u32 s{P_BIM+1}, s{P_WS+1}, 0
    s_load_dword s{sTAG}, s[{P_BIM}:{P_BIM+1}], 0""")
    srd(a, SM2, P_WU, 512 * 2752)
    pstamp(a, 1)
    srd(a, SWD, P_WD, 1376 * 1024)
    srd(a, SC, P_CRE, 512 * 1024)
    a(f"""v_and_b32 v{vT+2}, 31, v{vLANE}
    s_lshl_b32 s{sT4}, s{sCG}, 5
    v_add_u32 v{vT+2}, s{sT4}, v{vT+2}
    v_lshlrev_b32 v{vT+2}, 1, v{vT+2}""")
    srd(a, ST, P_LRE, 1024)
    a.vmop(f"buffer_load_ushort v{vA16r}, v{vT+2}, s[{ST}:{ST+3}], 0 offen", "par")
    srd(a, ST, P_LIM, 1024)
    a.vmop(f"buffer_load_ushort v{vA16i}, v{vT+2}, s[{ST}:{ST+3}], 0 offen", "par")
    srd(a, ST, P_LDT, 1024)
    a.vmop(f"buffer_load_ushort v{vA128r}, v{vT+2}, s[{ST}:{ST+3}], 0 offen", "par")
    pstamp(a, 2)
    srd(a, SO, P_OUT, 2048 * 2048)
    srd(a, ST, P_DSK, 1024)
    if CODE_PREFETCH:
        lab = a.newlab("CP")
        a(f"""s_cmp_eq_u32 s{sW}, 3
        s_cbranch_scc0 {lab}
        s_getpc_b64 s[{sT2}:{sT3}]""")
        a.label("L_PC")
        a(f"""s_mul_i32 s{sT4}, s{sIDX}, {10*128}
        v_lshlrev_b32 v{vT+2}, 7, v{vLANE}
        v_add_u32 v{vT+2}, s{sT4}, v{vT+2}
        v_cmp_gt_u32 vcc, L_CODE_END-L_PC, v{vT+2}
        s_and_saveexec_b64 s[{sEX}:{sEX+1}], vcc
        v_cmp_gt_u32 vcc, 10, v{vLANE}
        s_and_b64 exec, exec, vcc
        s_cbranch_execz {lab}_R
        global_load_dword v{vDA}, v{vT+2}, s[{sT2}:{sT3}]""")
        a.label(lab + "_R")
        a(f"s_mov_b64 exec, s[{sEX}:{sEX+1}]")
        a.label(lab)
    a(f"""s_bfe_u32 s{sRT}, s{sW}, 0x10001
    s_and_b32 s{sCT}, s{sW}, 1
    s_lshr_b32 s{sT3}, s{sRG}, 1
    s_mul_i32 s{sAOFF}, s{sT3}, {RT_STRIDE}
    s_and_b32 s{sT4}, s{sRG}, 1
    s_lshl_b32 s{sXB}, s{sT4}, 15           ; (w'&1)*32768
    s_lshl_b32 s{sT4}, s{sT4}, 12
    s_add_u32 s{sAOFF}, s{sAOFF}, s{sT4}
    s_mul_i32 s{s3RG}, s{sRG}, {3*32768}
    s_lshl_b32 s{s2RG}, s{sRG}, 16
    s_lshl_b32 s{sT2}, s{sRB}, 2
    s_add_u32 s{sT2}, s{sT2}, s{sRG}
    s_mul_i32 s{sHPOS}, s{sT2}, {RT_STRIDE}
    s_lshl_b32 s{sT4}, s{sRB2}, 1
    s_mul_i32 s{sT4}, s{sT4}, {RT_STRIDE}
    v_lshlrev_b32 v{vDA}, 4, v{vLANE}
    v_add_u32 v{vDA}, s{sT4}, v{vDA}
    v_bfe_u32 v{vT+2}, v{vLANE}, 4, 1
    v_lshlrev_b32 v{vT+2}, 2, v{vT+2}
    v_xor_b32 v{vT+2}, v3, v{vT+2}
    v_lshlrev_b32 v{vT+4}, 10, v2
    v_lshl_add_u32 v{vT+2}, v{vT+2}, 4, v{vT+4}
    s_lshl_b32 s{sT4}, s{sCB}, 7
    v_add_u32 v{vDB}, s{sT4}, v{vT+2}
    s_lshl_b32 s{sT4}, s{sCB}, 6
    v_add_u32 v{vT+2}, s{sT4}, v2
    v_lshlrev_b32 v{vT+2}, 10, v{vT+2}
    v_lshl_add_u32 v{vDC0}, v{vT+1}, 4, v{vT+2}
    v_xor_b32 v{vDC1}, 64, v{vDC0}
    v_and_b32 v2, 31, v{vLANE}
    v_bfe_u32 v3, v2, 2, 1
    v_lshlrev_b32 v3, 4, v3
    v_lshrrev_b32 v{vT}, 3, v2
    v_lshl_add_u32 v3, v{vT}, 2, v3
    v_and_b32 v{vT+1}, 3, v2
    v_add_u32 v3, v3, v{vT+1}               ; tau
    v_bfe_u32 v{vT}, v3, 1, 3
    s_lshl_b32 s{sT4}, s{sRG}, 5
    v_add_u32 v3, s{sT4}, v3
    v_lshlrev_b32 v3, 7, v3
    v_lshrrev_b32 v{vT+1}, 5, v{vLANE}
    v_xor_b32 v{vT}, v{vT}, v{vT+1}
    v_lshl_add_u32 v{vXA}, v{vT}, 4, v3
    v_xor_b32 v{vXA+1}, 32, v{vXA}
    v_xor_b32 v{vXA+2}, 64, v{vXA}
    v_xor_b32 v{vXA+3}, 96, v{vXA}
    v_lshlrev_b32 v3, 3, v{vT+1}
    v_bfe_u32 v{vT}, v{vLANE}, 2, 2
    v_add_u32 v3, v3, v{vT}
    v_lshlrev_b32 v3, 6, v3
    v_bfe_u32 v{vT}, v{vLANE}, 4, 1
    v_lshl_add_u32 v3, v{vT}, 5, v3
    v_and_b32 v{vT}, 3, v{vLANE}
    v_lshl_add_u32 v{vTRL}, v{vT}, 3, v3
    s_lshr_b32 s{sT4}, s{sW}, 2
    s_lshl_b32 s{sT4}, s{sT4}, 13
    v_add_u32 v{vW1}, s{sT4}, v{vTRL}
    v_mov_b32 v{vRGV}, s{sRG}""")
    pstamp(a, 3)
    a(f"""s_cmp_ge_u32 s{sW}, 4
    s_cbranch_scc1 L_STREAM_B""")
    save = (list(a.vm), list(a.lg), a.nvm)
    stream(a, 0)
    a.vm, a.lg, a.nvm = list(save[0]), list(save[1]), save[2]
    a.label("L_STREAM_B")
    stream(a, 1)
    a.label("L_END")
    a("s_endpgm")
    a.label("L_CODE_END")


def w2_touch(a, which, junk=None):
    if not W2_PREFETCH:
        return
    sIDX = sMX
    j = junk or vDA
    a(f"v_lshlrev_b32 v3, 7, v{vLANE}")
    if which in (0, 1):
        a(f"""s_mul_i32 s{sT0}, s{sIDX}, 44032
        s_lshl_b32 s{sT1}, s{sRG}, 13
        s_add_u32 s{sT0}, s{sT0}, s{sT1}
        s_add_u32 s{sT0}, s{sT0}, {32768*which}""")
        a.vmop(f"buffer_load_dword v{j}, v3, s[{SWD}:{SWD+3}], s{sT0} offen", "pf")
    else:
        a(f"""s_lshl_b32 s{sT0}, s{sIDX}, 14
        s_and_b32 s{sT1}, s{sRG}, 1
        s_lshl_b32 s{sT1}, s{sT1}, 13
        s_add_u32 s{sT0}, s{sT0}, s{sT1}""")
        a.vmop(f"buffer_load_dword v{j}, v3, s[{SC}:{SC+3}], s{sT0} offen", "pf")


def w2_touch16(a, piece, junk):
    if not W2_PREFETCH:
        return
    sIDX = sMX
    a(f"v_lshlrev_b32 v3, 7, v{vLANE}")
    if piece < 6:
        a(f"""s_mul_i32 s{sT0}, s{sIDX}, 44032
        s_lshl_b32 s{sT1}, s{sRG}, 11
        s_add_u32 s{sT0}, s{sT0}, s{sT1}
        s_add_u32 s{sT0}, s{sT0}, {piece*8192}
        s_mov_b64 s[{sEX}:{sEX+1}], exec
        s_mov_b64 exec, 0xffff""")
        a.vmop(f"buffer_load_dword v{junk}, v3, s[{SWD}:{SWD+3}], s{sT0} offen", "pf")
    else:
        a(f"""s_lshl_b32 s{sT0}, s{sIDX}, 14
        s_and_b32 s{sT1}, s{sRG}, 1
        s_lshl_b32 s{sT1}, s{sT1}, 13
        s_add_u32 s{sT0}, s{sT0}, s{sT1}
        s_add_u32 s{sT0}, s{sT0}, {(piece-6)*2048}
        s_mov_b64 s[{sEX}:{sEX+1}], exec
        s_mov_b64 exec, 0xffff""")
        a.vmop(f"buffer_load_dword v{junk}, v3, s[{SC}:{SC+3}], s{sT0} offen", "pf")
    a(f"s_mov_b64 exec, s[{sEX}:{sEX+1}]")


def ln_stats(a, src, row_s):
    U = vACC2
    for i in range(4):
        a(f"v_lshlrev_b32 v{U+2*i}, 16, v{src+i}\nv_and_b32 v{U+2*i+1}, 0xffff0000, v{src+i}")
    a(f"""v_add_f32 v{vT}, v{U}, v{U+1}
    v_add_f32 v{vT+1}, v{U+2}, v{U+3}
    v_add_f32 v{vT+2}, v{U+4}, v{U+5}
    v_add_f32 v{vT+4}, v{U+6}, v{U+7}
    v_add_f32 v{vT}, v{vT}, v{vT+1}
    v_add_f32 v{vT+2}, v{vT+2}, v{vT+4}
    v_add_f32 v{vT}, v{vT}, v{vT+2}""")
    wave_sum(a, vT, sT4)
    a(f"""s_nop 1
    v_mov_b32 v{vT+1}, s{sT4}
    v_mul_f32 v{vT+1}, {f2u(1.0/512)}, v{vT+1}
    v_mov_b32 v{vT}, 0""")
    for i in range(8):
        a(f"v_sub_f32 v{vT+2}, v{U+i}, v{vT+1}\nv_fmac_f32 v{vT}, v{vT+2}, v{vT+2}")
    wave_sum(a, vT, sT4)
    a(f"""s_nop 1
    v_mov_b32 v{vT+2}, s{sT4}
    v_mul_f32 v{vT+2}, {f2u(1.0/512)}, v{vT+2}""")
    rne_bf16(a, vT + 1)
    rne_bf16(a, vT + 2)
    a(f"v_add_f32 v{vT+2}, {f2u(1e-5)}, v{vT+2}")
    rne_bf16(a, vT + 2)
    a(f"v_sqrt_f32 v{vT+2}, v{vT+2}\ns_nop 0")
    rne_bf16(a, vT + 2)
    a(f"""v_mov_b32 v{U}, v{vT+1}
    v_mov_b32 v{U+1}, s{sTAG}
    v_mov_b32 v{U+2}, v{vT+2}
    v_mov_b32 v{U+3}, s{sTAG}
    s_lshl_b32 s{sT4}, s{row_s}, 4
    s_add_u32 s{sT4}, s{sT4}, {WS_STAT}
    v_mov_b32 v{vT}, 0
    s_mov_b64 s[{sEX}:{sEX+1}], exec
    s_mov_b64 exec, 1""")
    a.vmop(f"buffer_store_dwordx4 v[{U}:{U+3}], v{vT}, s[{SWS}:{SWS+3}], s{sT4} offen sc1", "stat")
    a(f"s_mov_b64 exec, s[{sEX}:{sEX+1}]")


def stream(a, ch):
    a(f"s_waitcnt lgkmcnt(0)\ns_add_u32 s{sTAG}, s{sTAG}, 1")
    if ch == 0:
        a.vm = ["st0"] * 4 + ["lnrow", "lnrow"] + [f"st{g}" for g in range(1, NPRE) for _ in range(4)] + ["par"] * 3
        a(f"""v_and_b32 v3, 31, v{vLANE}
        v_bfe_u32 v{vT}, v3, 1, 3
        v_lshrrev_b32 v{vT+1}, 5, v{vLANE}
        v_xor_b32 v{vT}, v{vT}, v{vT+1}
        v_lshlrev_b32 v3, 7, v3
        v_lshl_add_u32 v3, v{vT}, 4, v3
        v_add_u32 v{vWS}, 16384, v3
        v_xor_b32 v{vWS+1}, 32, v{vWS}
        v_xor_b32 v{vWS+2}, 64, v{vWS}
        v_xor_b32 v{vWS+3}, 96, v{vWS}""")
        waddr0 = [vWS + i for i in range(4)]
        a.vmwait("lnrow")
        pstamp(a, 4)
        a(f"""s_lshl_b32 s{sT2}, s2, 3
        s_lshl_b32 s{sT3}, s{sRG}, 1
        s_add_u32 s{sT5}, s{sT2}, s{sT3}""")
        ln_stats(a, vACC, sT5)
        a(f"s_add_u32 s{sT5}, s{sT5}, 1")
        ln_stats(a, vACC + 4, sT5)
    else:
        a.vm = [f"st{g}" for g in range(NPRE) for _ in range(4)] + ["par"] * 3
        a(f"v_add_u32 v{vWM}, 24576, v{vTRL}")
        waddr0 = [vWM]
    if W2_AT == 0 and ch == 0:
        for wch in (0, 2, 1):
            w2_touch(a, wch)
    stamp(a, 0)
    if PSTAMP:
        a(f"s_lshl_b32 s{sT0}, s2, 3\ns_add_u32 s{sT0}, s{sT0}, s{sW}\ns_lshl_b32 s{sT0}, s{sT0}, 6\ns_add_u32 s{sT0}, s{sT0}, {WS_DBG + 0x40000}")
        a("v_mov_b32 v3, 0")
        for i in range(5):
            a(f"buffer_store_dword v{232+i}, v3, s[{SWS}:{SWS+3}], s{sT0} offen offset:{4*i}")
        a.vm += ["x"] * 5
    a(f"""s_lshr_b32 s{sCSM}, s{sRB}, 3
    s_add_u32 s{sCSM}, s{sCSM}, 1
    s_cmp_eq_u32 s{sRG}, 0
    s_cselect_b32 s{sCSM}, s{sCSM}, 0""")
    for i in range(4):
        a(f"v_mov_b32 v{ONES+i}, 0x3f803f80")
    for i in range(64):
        a(f"v_mov_b32 v{vACC+i}, 0")
    xaddr = [vXA + i for i in range(4)]

    slots = []
    for g in range(8):
        for j in range(4):
            for t in range(2):
                slots.append((g, 0, j, t))
    for g in range(8, 12):
        for c2 in range(2):
            for j in range(4):
                for t in range(2):
                    slots.append((g, c2, j, t))
    NS = len(slots)
    first_of = {}
    last_of = {}
    for n, (g, c2, j, t) in enumerate(slots):
        first_of.setdefault(g, n)
        last_of[g] = n
    hi_state = {"x": 0, "w0": 0, "w1": 0}

    def set_hi(key, regs, g):
        hi = ((g % NSLOT) * SLOT) >> 16
        if hi_state[key] != hi:
            for r in regs:
                a(f"v_xor_b32 v{r}, 0x10000, v{r}")
            hi_state[key] = hi

    def frag_reg(n):
        return vFR + 4 * (n % 4)

    def issue_reads(n):
        g, c2, j, t = slots[n]
        lo = ((g % NSLOT) * SLOT) & 0xffff
        f = frag_reg(n)
        tag = f"w{n}"
        if g < 8:
            if j == 0 and t == 0:
                set_hi("x", xaddr, g)
                set_hi("w0", waddr0, g)
                for jj in range(4):
                    r = vXF + 4 * (4 * g + jj)
                    a.ldsop(f"ds_read_b128 v[{r}:{r+3}], v{vXA+jj} offset:{lo}", f"x{g}_{jj}")
            if ch == 0:
                a.ldsop(f"ds_read_b128 v[{f}:{f+3}], v{vWS+j} offset:{lo + t*4096}", tag)
            else:
                o = lo + t * 4096 + j * 1024
                a.ldsop(f"ds_read_b64_tr_b16 v[{f}:{f+1}], v{vWM} offset:{o}", tag)
                a.ldsop(f"ds_read_b64_tr_b16 v[{f+2}:{f+3}], v{vWM} offset:{o+256}", tag)
        else:
            if c2 == 0 and j == 0 and t == 0:
                set_hi("w1", [vW1], g)
            o = lo + c2 * 16384 + t * 4096 + j * 1024
            a.ldsop(f"ds_read_b64_tr_b16 v[{f}:{f+1}], v{vW1} offset:{o}", tag)
            a.ldsop(f"ds_read_b64_tr_b16 v[{f+2}:{f+3}], v{vW1} offset:{o+256}", tag)

    def mfma(n):
        g, c2, j, t = slots[n]
        f = frag_reg(n)
        if g < 8:
            xf = vXF + 4 * (4 * g + j)
            acc = vACC + 16 * t
            a.lgwait(f"x{g}_{j}")
        else:
            xf = vXF + 4 * (4 * (2 * (g - 8) + c2) + j)
            acc = vACC2 + 16 * t
        a.lgwait(f"w{n}")
        if ch == 0 and g < 8:
            a(f"v_mfma_f32_32x32x16_bf16 v[{acc}:{acc+15}], v[{xf}:{xf+3}], v[{f}:{f+3}], v[{acc}:{acc+15}]")
        else:
            a(f"v_mfma_f32_32x32x16_bf16 v[{acc}:{acc+15}], v[{f}:{f+3}], v[{xf}:{xf+3}], v[{acc}:{acc+15}]")

    def colsum_at(n):
        g, c2, j, t = slots[n]
        if (g == 0) or (g == 8 and c2 == 1):
            acc = CSACC if g == 0 else CS1ACC
            lab = a.newlab("CSK")
            f = frag_reg(n)
            c = "0" if j == 0 else f"v[{acc}:{acc+15}]"
            a(f"""s_cmp_eq_u32 s{sCSM}, {t+1}
            s_cbranch_scc0 {lab}
            v_mfma_f32_32x32x16_bf16 v[{acc}:{acc+15}], v[{ONES}:{ONES+3}], v[{f}:{f+3}], {c}""")
            a.label(lab)

    dmaq = []

    def stage_barrier(g):
        if ch == 0 and g == 7:
            gather_finish(a, 0, GATH0, a.nvm - marks["g0"], 3)
            for i in range(16):
                a(f"v_mov_b32 v{GATH0+i}, 0")
        if g == 10 and ch == 1:
            a.vmwait("u0")
            write_flag(a, 0, ch)
        a.vmwait(f"st{g+1}")
        a("s_barrier")
        if ch == 0 and g in (8, 9) and marks.get("edone") and not marks.get("published"):
            only_rg(a, 0, lambda: s_publish(a))
            marks["published"] = True
        nxt = g + 3
        if nxt < 8:
            dmaq.extend(dma_p0(nxt, ch))
        elif nxt < 12:
            dmaq.extend(dma_p1(nxt - 8, ch))
        if ch == 0:
            if g == 9:
                dmaq.extend(p2_B(0))
            if g == 10:
                dmaq.extend(p2_B(1))

    marks = {}
    if (PRIO == 2 and ch == 1) or (PRIO == 3 and ch == 0):
        a("s_setprio 1")
    a.vmwait("st0")
    a("s_barrier")
    stamp(a, 1)
    for s_ in range(NPRE, 3):
        dmaq.extend(dma_p0(s_, ch))
    for n in range(LOOK):
        issue_reads(n)
    for n in range(NS):
        g, c2, j, t = slots[n]
        mfma(n)
        colsum_at(n)
        nn = n + LOOK
        if nn < NS:
            if slots[nn][0] != slots[nn - 1][0]:
                stage_barrier(slots[nn - 1][0])
            issue_reads(nn)
        for _ in range(DMA_RATE if DMA_RATE else (2 if len(dmaq) > 4 else 1)):
            if dmaq:
                code, tag = dmaq.pop(0)
                a.vmop(code, tag)
        if g >= 8:
            a.fill(FILL0 if ch == 0 else FILL)
        elif g >= 3:
            a.fill(3)
        if n == last_of[g]:
            if P1DBG == 1 and g in (8, 9, 10):
                stamp(a, {8: 9, 9: 13, 10: 6}[g], force=True)
            if P1DBG == 2 and g in (1, 3, 5):
                stamp(a, {1: 9, 3: 13, 5: 6}[g], force=True)
            if g == 0:
                colsum_store(a, CSACC, ch)
                a("s_nop 7")
                for i in range(16):
                    a(f"v_mov_b32 v{CSACC+i}, 0")
            if W2_AT == 1 and ch == 0 and g in (3, 4, 8):
                w2_touch(a, {3: 0, 4: 2, 8: 1}[g])
            if W2_AT == 3 and ch == 1 and W2_G0 <= g < W2_G0 + 10:
                w2_touch16(a, g - W2_G0, vDS)
            if W2_AT == 2 and ch == 1 and g == 9:
                for wch in (0, 2, 1):
                    w2_touch(a, wch, junk=vDS)
            if g == 2 and ch == 0:
                a.vmwait("par")
                q = Q()
                s_params(q)
                a.fillq = q.q
            if g == 5 and ch == 0:
                gather_loads(a, 0, GATH0, 3)
                marks["g0"] = a.nvm
            if g == 7:
                a.fill_all()
                stamp(a, 2)
                if PRIO == 1 and ch == 0:
                    a("s_setprio 1")
                q = Q()
                if ch == 1:
                    q(f"""s_lshl_b32 s{sT5}, s{sCG}, 11
                    s_add_u32 s{sT5}, s{sT5}, s{sHPOS}""")
                    row_stats_M(q, vT)
                    gelu_epi(q, vACC, sT5, 64 * 4, "u0", 4, vT)
                else:
                    s_epilogue1(q)
                    q.q.append(("call", lambda: marks.__setitem__("edone", True)))
                    row_stats_M(q, vT)
                a.fillq = q.q
            if g == 8:
                colsum_store(a, CS1ACC, 2 + ch, koff=1)
            if g == 9:
                a.fill_all()
                stamp(a, 3)
                if ch == 0:
                    lookback_loads(a)
                    a(f"""s_lshl_b32 s{sT5}, s{sCG}, 12
                    s_add_u32 s{sMU}, s{sHPOS}, s{sT5}
                    s_add_u32 s{sMU}, s{sMU}, {86*1024}""")
                    q = Q()
                    for _ in range(SW_DELAY):
                        q.q.append(("calln", lambda: None, FILL0))
                    s_work_atoms(a, q)
                    a.fillq = q.q
            if g == 10 and ch == 0 and not marks.get("published"):
                only_rg(a, 0, lambda: s_publish(a))
            if g == 10 and ch == 1:
                gather_loads(a, 1, GATH1, 3)
                marks["g1"] = a.nvm
    stamp(a, 4)
    while dmaq:
        code, tag = dmaq.pop(0)
        a.vmop(code, tag)
    if ch == 0:
        a.fill_all()
    else:
        gather_finish(a, 1, GATH1, a.nvm - marks["g1"], 3)
        poll_flags(a, 0)
        only_rg(a, 3, lambda: touch_A(a, 0))
        for st in range(2):
            for code, tag in p2_A(st):
                a.vmop(code, tag)
    a("s_barrier")
    stamp(a, 5)
    if ch == 1:
        lab = a.newlab("U2S")
        for st in range(2, 4):
            for code, tag in p2_A(st):
                a.vmop(code, tag)
        stamp(a, 6)
        a(f"""s_cmp_ge_u32 s{sCG}, 11
        s_cbranch_scc1 {lab}
        s_lshl_b32 s{sT5}, s{sCG}, 11
        s_add_u32 s{sT5}, s{sT5}, s{sHPOS}
        s_add_u32 s{sT5}, s{sT5}, {64*1024}""")
        gelu_epi(a, vACC2, sT5, 192 * 4, "u12", 48, vT, maybe=True)
        a.label(lab)
        a.lg = []
        marks["u12"] = a.nvm
        stamp(a, 8)
    else:
        a(f"""s_lshl_b32 s{sT5}, s{sCG}, 11
        s_add_u32 s{sT5}, s{sT5}, s{sHPOS}
        s_add_u32 s{sT5}, s{sT5}, {32*1024}""")
        for st in (2, 3):
            for code, tag in p2_B(st):
                a.vmop(code, tag)
        a(f"""s_lshl_b32 s{sT5}, s{sCG}, 11
        s_add_u32 s{sT5}, s{sT5}, s{sHPOS}
        s_add_u32 s{sT5}, s{sT5}, {32*1024}""")
        gelu_epi(a, vACC2, sT5, 128 * 4, "u12", 48, vT)
        a.vmwait("h")
        write_flag(a, 2, 0)
        stamp(a, 8)
    a.marks = marks
    phase2(a, ch)


def phase2(a, ch):
    kh = ch
    vAA0, vAA1, vB0, vC0, vC1, vXO, vDK, vSO, vDO = 4, 5, 6, 7, 8, 9, 10, 11, 12
    vF = 128
    vAC = 224
    vEX = 96
    a(f"""s_lshl_b32 s{sT0}, s{sRT}, 13
    v_lshlrev_b32 v{vAA0}, 4, v{vLANE}
    v_add_u32 v{vAA0}, s{sT0}, v{vAA0}
    v_add_u32 v{vAA0}, {kh*4096}, v{vAA0}
    v_lshrrev_b32 v{vT}, 5, v{vLANE}
    v_lshlrev_b32 v{vT}, 2, v{vT}
    v_bfe_u32 v3, v{vLANE}, 2, 2
    v_add_u32 v{vT}, v{vT}, v3
    v_lshlrev_b32 v{vT}, 7, v{vT}
    v_bfe_u32 v3, v{vLANE}, 3, 1
    v_xor_b32 v3, s{sCT}, v3
    v_lshl_add_u32 v{vT}, v3, 6, v{vT}
    v_bfe_u32 v3, v{vLANE}, 4, 1
    v_lshl_add_u32 v{vT}, v3, 5, v{vT}
    v_and_b32 v3, 3, v{vLANE}
    v_lshl_add_u32 v{vT}, v3, 3, v{vT}
    v_add_u32 v{vB0}, {16384 + kh*8192}, v{vT}
    v_and_b32 v{vT}, 31, v{vLANE}
    v_bfe_u32 v3, v{vT}, 1, 3
    v_lshrrev_b32 v{vT+1}, 5, v{vLANE}
    v_add_u32 v{vT+1}, {4*kh}, v{vT+1}
    v_xor_b32 v3, v3, v{vT+1}
    v_lshlrev_b32 v{vT}, 7, v{vT}
    v_lshl_add_u32 v{vT}, v3, 4, v{vT}
    s_lshl_b32 s{sT0}, s{sCT}, 12
    s_add_u32 s{sT0}, s{sT0}, 16384
    v_add_u32 v{vC0}, s{sT0}, v{vT}
    v_xor_b32 v{vC1}, 32, v{vC0}
    v_lshrrev_b32 v{vT}, 5, v{vLANE}
    v_lshlrev_b32 v{vT}, 4, v{vT}
    s_lshl_b32 s{sT0}, s{sRB2}, 6
    s_lshl_b32 s{sT1}, s{sRT}, 5
    s_add_u32 s{sT0}, s{sT0}, s{sT1}
    s_add_u32 s{sT0}, s{sT0}, {8*kh}
    v_add_u32 v{vT}, s{sT0}, v{vT}
    v_lshlrev_b32 v{vSO}, 4, v{vT}
    v_lshlrev_b32 v{vT}, 9, v{vT}
    v_and_b32 v3, 31, v{vLANE}
    s_lshl_b32 s{sT0}, s{sCB}, 6
    s_lshl_b32 s{sT1}, s{sCT}, 5
    s_add_u32 s{sT0}, s{sT0}, s{sT1}
    v_add_u32 v3, s{sT0}, v3
    v_add_u32 v{vT}, v{vT}, v3
    v_lshlrev_b32 v{vXO}, 1, v{vT}
    v_lshlrev_b32 v{vDO}, 1, v3""")

    def epi_loads():
        a.vmop(f"buffer_load_ushort v{vDK}, v{vDO}, s[{ST}:{ST+3}], 0 offen", "epi")
        for k in range(8):
            ro = k * 1024
            so, io = (ro // 4096) * 4096, ro % 4096
            a(f"s_mov_b32 s{sT0}, {so}")
            a.vmop(f"buffer_load_ushort v{vEX+k}, v{vXO}, s[{SX}:{SX+3}], s{sT0} offen offset:{io}", "epi")
        a(f"s_mov_b32 s{sT0}, {WS_STAT}")
        for k in range(8):
            a.vmop(f"buffer_load_dword v{vEX+8+k}, v{vSO}, s[{SWS}:{SWS+3}], s{sT0} offen offset:{k*16} sc1", "epi")
            a.vmop(f"buffer_load_dword v{vEX+16+k}, v{vSO}, s[{SWS}:{SWS+3}], s{sT0} offen offset:{k*16+8} sc1", "epi")
    for i in range(16):
        a(f"v_mov_b32 v{vAC+i}, 0")
    hi2 = {"v": 0}

    def nvalid(st):
        return 2 if (ORDER[st] == ("M", 10) and kh == 1) else 4

    def p2_reads(st, s):
        g = 12 + st
        slot = (g % NSLOT) * SLOT
        hi, lo = slot >> 16, slot & 0xffff
        if s == 0 and hi != hi2["v"]:
            for r in (vAA0, vB0, vC0, vC1):
                a(f"v_xor_b32 v{r}, 0x10000, v{r}")
            hi2["v"] = hi
        f = vF + 8 * ((4 * st + s) % 8)
        tag = f"r{st}_{s}"
        a.ldsop(f"ds_read_b128 v[{f}:{f+3}], v{vAA0} offset:{lo + s*1024}", tag)
        if ORDER[st][0] == "M":
            a.ldsop(f"ds_read_b64_tr_b16 v[{f+4}:{f+5}], v{vB0} offset:{lo + s*2048}", tag)
            a.ldsop(f"ds_read_b64_tr_b16 v[{f+6}:{f+7}], v{vB0} offset:{lo + s*2048+1024}", tag)
        else:
            part, s2 = s >> 1, s & 1
            a.ldsop(f"ds_read_b128 v[{f+4}:{f+7}], v{vC0+s2} offset:{lo + part*8192}", tag)

    def p2_barrier(st):
        a.vmwait(f"A{st}")
        a.vmwait(f"B{st}")
        a("s_barrier")

    p2_barrier(0)
    stamp(a, 7)
    for s in range(nvalid(0)):
        p2_reads(0, s)
    dq = []
    for st in range(NST2):
        if st == 4:
            stamp(a, 9)
        if st == 11:
            stamp(a, 13)
        if st + 1 < NST2:
            if ch == 0:
                if st + 1 == 2:
                    a.vmwait("u12")
                    write_flag(a, 1, 0)
                if st + 1 == E2_ST:
                    only_rg(a, 3, lambda: (poll_flags(a, 2), touch_A(a, 2)))
                if st + 1 == E1_ST:
                    only_rg(a, 3, lambda: (poll_flags(a, 1), touch_A(a, 1)))
            else:
                if st + 1 == 2:
                    n = a.nvm - a.marks["u12"]
                    a(f"s_waitcnt vmcnt({n})")
                    write_flag(a, 1, 1)
            p2_barrier(st + 1)
            if st >= 1 and st + 3 < NST2:
                dq.extend(p2_A(st + 3) if ch == 1 else p2_B(st + 3))
        for s in range(4):
            if s < nvalid(st):
                f = vF + 8 * ((4 * st + s) % 8)
                a.lgwait(f"r{st}_{s}")
                a(f"v_mfma_f32_32x32x16_bf16 v[{vAC}:{vAC+15}], v[{f}:{f+3}], v[{f+4}:{f+7}], v[{vAC}:{vAC+15}]")
            if st + 1 < NST2 and s < nvalid(st + 1):
                p2_reads(st + 1, s)
            if dq:
                code, tag = dq.pop(0)
                a.vmop(code, tag)
        if st == 3:
            epi_loads()
    stamp(a, 10)
    a(f"""s_nop 15
    s_barrier
    s_lshl_b32 s{sT0}, s{sRG}, 12
    v_lshlrev_b32 v{vT}, 4, v{vLANE}
    v_add_u32 v{vT}, s{sT0}, v{vT}""")
    R = vF
    if kh == 0:
        a(f"""ds_write_b128 v{vT}, v[{vAC+8}:{vAC+11}] offset:2048
        ds_write_b128 v{vT}, v[{vAC+12}:{vAC+15}] offset:3072
        s_waitcnt lgkmcnt(0)
        s_barrier
        ds_read_b128 v[{R}:{R+3}], v{vT}
        ds_read_b128 v[{R+4}:{R+7}], v{vT} offset:1024""")
    else:
        a(f"""ds_write_b128 v{vT}, v[{vAC}:{vAC+3}]
        ds_write_b128 v{vT}, v[{vAC+4}:{vAC+7}] offset:1024
        s_waitcnt lgkmcnt(0)
        s_barrier
        ds_read_b128 v[{R}:{R+3}], v{vT} offset:2048
        ds_read_b128 v[{R+4}:{R+7}], v{vT} offset:3072""")
    a("s_waitcnt vmcnt(0)")
    a.vm = []
    a(f"v_lshlrev_b32 v{vDK}, 16, v{vDK}\nv_lshlrev_b32 v{vT}, 1, v{vXO}")
    for k in range(8):
        a(f"v_lshlrev_b32 v{vEX+k}, 16, v{vEX+k}\nv_rcp_f32 v{vEX+16+k}, v{vEX+16+k}")
    for k in range(8):
        a(f"v_sub_f32 v{vEX+8+k}, v{vEX+k}, v{vEX+8+k}")
    for k in range(0, 8, 2):
        a(f"v_cvt_pk_bf16_f32 v{vT+1}, v{vEX+8+k}, v{vEX+9+k}")
        a(f"v_lshlrev_b32 v{vEX+8+k}, 16, v{vT+1}\nv_and_b32 v{vEX+9+k}, 0xffff0000, v{vT+1}")
    for k in range(8):
        a(f"v_mul_f32 v{vEX+8+k}, v{vEX+8+k}, v{vEX+16+k}")
    for k in range(0, 8, 2):
        a(f"v_cvt_pk_bf16_f32 v{vT+1}, v{vEX+8+k}, v{vEX+9+k}")
        a(f"v_lshlrev_b32 v{vEX+8+k}, 16, v{vT+1}\nv_and_b32 v{vEX+9+k}, 0xffff0000, v{vT+1}")
    for k in range(8):
        a(f"v_mul_f32 v{vEX+8+k}, v{vEX+8+k}, v{vDK}")
    for k in range(0, 8, 2):
        a(f"v_cvt_pk_bf16_f32 v{vT+1}, v{vEX+8+k}, v{vEX+9+k}")
        a(f"v_lshlrev_b32 v{vEX+8+k}, 16, v{vT+1}\nv_and_b32 v{vEX+9+k}, 0xffff0000, v{vT+1}")
    for k in range(8):
        a(f"v_add_f32 v{vEX+8+k}, v{vEX+8+k}, v{vEX+k}")
    a("s_waitcnt lgkmcnt(0)")
    off = 0 if kh == 0 else 8
    for k in range(8):
        a(f"v_add_f32 v{R+k}, v{R+k}, v{vAC+off+k}")
    for k in range(8):
        a(f"v_add_f32 v{R+k}, v{R+k}, v{vEX+8+k}")
    for k in range(8):
        ro = k * 2048
        so, io = (ro // 4096) * 4096, ro % 4096
        a(f"s_mov_b32 s{sT0}, {so}")
        a(f"buffer_store_dword v{R+k}, v{vT}, s[{SO}:{SO+3}], s{sT0} offen offset:{io}")
    if ch == 0:
        lab = a.newlab("EP")
        a(f"""s_cmp_eq_u32 s{sRB2}, 31
        s_cbranch_scc0 {lab}
        s_cmp_eq_u32 s{sCB}, 0
        s_cbranch_scc0 {lab}
        s_cmp_eq_u32 s{sW}, 0
        s_cbranch_scc0 {lab}
        v_mov_b32 v4, s{sTAG}
        v_mov_b32 v3, 0
        s_mov_b32 s{sT0}, {WS_EPOCH}
        s_mov_b64 exec, 1
        buffer_store_dword v4, v3, s[{SWS}:{SWS+3}], s{sT0} offen sc1
        s_mov_b64 exec, -1""")
        a.label(lab)
    stamp(a, 11)
    if STAMPS:
        a("s_waitcnt vmcnt(0)")
        stamp(a, 12)
    stamp_flush(a, 14)
    a("s_endpgm")


if __name__ == "__main__":
    main(sys.argv[1] if len(sys.argv) > 1 else "cdna_kernels/" + NAME + ".s")
```

```python
import sys, math, struct, os

NAME = "parallel_sum__ssm_conv_s5__glu_gated_geglu__prompt"
KNAME = NAME + "_kernel"

E = lambda k, d: int(os.environ.get(k, str(d)))
STAMPS = E("STAMPS", 0)
SPIN_MAX = E("SPIN_MAX", 200000)
CODE_PREFETCH = E("CODE_PREFETCH", 1)
W2_PREFETCH = E("W2_PREFETCH", 1)
FILL = E("FILL", 7)
FILL0 = E("FILL0", 14)
SW_DELAY = E("SW_DELAY", 8)
NPRE = E("NPRE", 2)
DMA_RATE = E("DMA_RATE", 0)
PACE0 = E("PACE0", 2)
PACE1 = E("PACE1", 3)
PRIO = E("PRIO", 0)
W2_AT = E("W2_AT", 4)
W2_G0 = E("W2_G0", 8)
W2_P1 = E("W2_P1", 2)
W2_P2 = E("W2_P2", 9)
LOOK = E("LOOK", 3)
A_TOUCH = E("A_TOUCH", 1)
E2_ST = E("E2_ST", 9)
E1_ST = E("E1_ST", 3)
H_ST = E("H_ST", 3)
X_NOMFMA = E("X_NOMFMA", 0)
X_NOREAD = E("X_NOREAD", 0)

NKS = 150
RT_STRIDE = NKS * 1024
WS_AGG = 0xA00000
WS_STAT = 0xA40000
WS_CS = 0xA80000
WS_FLG = 0xB00000
WS_EPOCH = 0xB10000
WS_DUMMY = 0xB20000
WS_DBG = 0xF00000
WS_SIZE = 0x10000000

LOG2E = 1.4426950408889634
SLOT = 32768
NSLOT = 4
SCR = NSLOT * SLOT
SCR_T = SCR
SCR_CS = 16384
SCR_ST = 17408
SCR_ES = 18432
LDS_BYTES = 163840
NST2 = 19
NBS, NAS = 3, 5
B_BASE, A_BASE = 0, 49152


def f2u(x):
    return struct.unpack("<I", struct.pack("<f", x))[0]


class A:
    def __init__(self):
        self.l = []
        self.nlab = 0
        self.vm = []
        self.nvm = 0
        self.lg = []
        self.fillq = []

    def __call__(self, s):
        for line in s.strip("\n").split("\n"):
            line = line.strip()
            if not line:
                continue
            if X_NOMFMA and line.startswith("v_mfma"):
                continue
            self.l.append("  " + line)

    def label(self, name):
        self.l.append(name + ":")

    def newlab(self, p="L"):
        self.nlab += 1
        return f"{p}_{self.nlab}"

    def vmop(self, s, tag, maybe=False):
        self(s)
        if not maybe:
            self.vm.append(tag)
            self.nvm += 1

    def vmwait(self, tag):
        idx = [i for i, t in enumerate(self.vm) if t == tag]
        if not idx:
            return
        n = len(self.vm) - 1 - idx[-1]
        assert n <= 63, n
        self(f"s_waitcnt vmcnt({n})")
        self.vm = self.vm[idx[-1] + 1:]

    def vmwait_all(self):
        self("s_waitcnt vmcnt(0)")
        self.vm = []

    def ldsop(self, s, tag):
        if X_NOREAD and tag[0] in "xwr":
            return
        self(s)
        self.lg.append(tag)
        assert len(self.lg) <= 30

    def lgwait(self, tag):
        idx = [i for i, t in enumerate(self.lg) if t == tag]
        if not idx:
            return
        n = len(self.lg) - 1 - idx[-1]
        n = min(n, 15)
        self(f"s_waitcnt lgkmcnt({n})")
        self.lg = self.lg[len(self.lg) - n:] if n else []

    def lgwait_all(self):
        self("s_waitcnt lgkmcnt(0)")
        self.lg = []

    def fill(self, n):
        if E("X_NOFILL", 0):
            self.fillq = [at for at in self.fillq if at[0] in ("vm",) or (at[0] == "call" and False)]
        while n > 0 and self.fillq:
            at = self.fillq.pop(0)
            k = at[0]
            if k == "v":
                self(at[1]); n -= 1
            elif k == "lds":
                self.ldsop(at[1], at[2]); n -= 1
            elif k == "lgw":
                self.lgwait(at[1])
            elif k == "vm":
                self.vmop(at[1], at[2], at[3]); n -= 1
            elif k == "call":
                at[1]()
            elif k == "calln":
                at[1](); n -= at[2]

    def fill_all(self):
        self.fill(10 ** 9)

    def text(self):
        return "\n".join(self.l) + "\n"


class Q:
    def __init__(self):
        self.q = []

    def __call__(self, s):
        for line in s.strip("\n").split("\n"):
            line = line.strip()
            if line:
                self.q.append(("v", line))

    def ldsop(self, s, tag):
        self.q.append(("lds", s, tag))

    def lgwait(self, tag):
        self.q.append(("lgw", tag))

    def vmop(self, s, tag, maybe=False):
        self.q.append(("vm", s, tag, maybe))


def srd(a, s, ptr_lo, nbytes):
    a(f"""s_mov_b32 s{s}, s{ptr_lo}
    s_and_b32 s{s+1}, s{ptr_lo+1}, 0xffff
    s_mov_b32 s{s+2}, {nbytes}
    s_mov_b32 s{s+3}, 0x20000""")


def rne_bf16(a, v):
    a(f"v_cvt_pk_bf16_f32 v{v}, v{v}, v{v}\nv_lshlrev_b32 v{v}, 16, v{v}")


def wave_sum(a, v, tmp_s):
    for ctrl in ("row_shr:1", "row_shr:2", "row_shr:4", "row_shr:8"):
        a(f"s_nop 1\nv_add_f32_dpp v{v}, v{v}, v{v} {ctrl} row_mask:0xf bank_mask:0xf")
    a(f"s_nop 1\nv_add_f32_dpp v{v}, v{v}, v{v} row_bcast:15 row_mask:0xa bank_mask:0xf")
    a(f"s_nop 1\nv_add_f32_dpp v{v}, v{v}, v{v} row_bcast:31 row_mask:0xc bank_mask:0xf")
    a(f"s_nop 1\nv_readlane_b32 s{tmp_s}, v{v}, 63")


SX, SS, SM, SWS, SWD, SC, SO, ST = 4, 8, 12, 16, 20, 24, 28, 32
sW, sRG, sRB, sCG = 36, 37, 38, 39
sKC0, sU0B, sDUM, sTAG = 72, 73, 74, 75
sT0, sT1, sT2, sT3, sT4, sT5 = 76, 77, 78, 79, 80, 81
sMX, sMS, sMU, sM1 = 82, 83, 84, 85
sCSM = 86
sRB2, sCB, sRT, sCT = 87, 88, 89, 90
sSPIN = 91
sEX = 92
sMASK = 94
sAOFF, sLW, s3RG, s2RG = 96, 97, 98, 99
sXB, sHPOS = 100, 101
SM2 = 68
STAMP0 = 40
P_X, P_LRE, P_LIM, P_BRE, P_BIM, P_CRE, P_CIM, P_LDT = 40, 42, 44, 46, 48, 50, 52, 54
P_DSK, P_BX, P_WG, P_WU, P_WD, P_OUT, P_DBG, P_WS = 56, 58, 60, 62, 64, 66, 68, 70

vLANE = 1
vXA = 4
vWS = 8
vWM = 8
vW1 = 12
vDX0, vDX1, vDS, vDM = 13, 14, 15, 16
vDS1 = 47
vT = 17
ONES = 28
vAr, vAi, vKr, vKi, vA16r, vA16i, vA128r, vA128i = 32, 33, 34, 35, 36, 37, 38, 39
vRINV, vNM = 40, 41
vDA, vDB, vDC0, vDC1 = 42, 43, 44, 45
vK1, vCA = 46, 47
vFR = 48
vACC = 64
vACC2 = 96
vXF = 128
CSACC = 96
GATH0 = 112
CS1ACC = 128
GATH1 = 144
JUNK = 255


PSTAMP = E("PSTAMP", 0)


def pstamp(a, i):
    if PSTAMP:
        a(f"s_memrealtime s[{sEX}:{sEX+1}]\ns_waitcnt lgkmcnt(0)\nv_mov_b32 v{232+i}, s{sEX}")


DBGD = E("DBGD", -1)


P1DBG = E("P1DBG", 0)


def stamp(a, i, force=False):
    if STAMPS and P1DBG in (4, 5) and i >= 4:
        if i == 4 and False:
            pass
        return
    if STAMPS and P1DBG in (4, 5) and i == 1:
        a(f"s_memtime s[{STAMP0+2*4}:{STAMP0+2*4+1}]")
    if STAMPS and P1DBG == 3 and i in (1, 2, 4):
        j = {1: 9, 2: 13, 4: 6}[i]
        a(f"s_memtime s[{STAMP0+2*j}:{STAMP0+2*j+1}]")
    if STAMPS:
        if i == 3:
            return
        if P1DBG and i in (6, 9, 13) and not force:
            return
        a(f"s_memrealtime s[{STAMP0+2*i}:{STAMP0+2*i+1}]")
        if i == 0:
            a(f"s_mov_b32 s{STAMP0+6}, s{sMASK}\ns_mov_b32 s{STAMP0+7}, s{sMASK+1}")


def stamp_flush(a, n):
    if not STAMPS:
        return
    a("s_waitcnt lgkmcnt(0)")
    a(f"s_lshl_b32 s{sT0}, s2, 3\ns_add_u32 s{sT0}, s{sT0}, s{sW}\ns_lshl_b32 s{sT0}, s{sT0}, 6\ns_add_u32 s{sT0}, s{sT0}, {WS_DBG}")
    a("v_mov_b32 v3, 0")
    for i in range(n):
        a(f"v_mov_b32 v2, s{STAMP0+2*i}")
        a(f"buffer_store_dword v2, v3, s[{SWS}:{SWS+3}], s{sT0} offen offset:{4*i}")
    if DBGD >= 0:
        lab = a.newlab("DD")
        a(f"""s_cmp_eq_u32 s2, {DBGD}
        s_cbranch_scc0 {lab}
        s_cmp_eq_u32 s{sW}, {E("DBGW", 0)}
        s_cbranch_scc0 {lab}
        s_load_dwordx2 s[{sT2}:{sT3}], s[0:1], 112
        s_waitcnt lgkmcnt(0)
        s_mov_b32 s{ST}, s{sT2}
        s_and_b32 s{ST+1}, s{sT3}, 0xffff
        s_mov_b32 s{ST+2}, 256
        s_mov_b32 s{ST+3}, 0x20000
        v_mov_b32 v3, 0""")
        for i in range(n):
            a(f"v_mov_b32 v2, s{STAMP0+2*i}")
            a(f"buffer_store_dword v2, v3, s[{ST}:{ST+3}], 0 offen offset:{4*i}")
        a.label(lab)


def dma_p0(s, ch):
    slot = (s % NSLOT) * SLOT
    it = []
    if ch == 1:
        pre = f"""s_add_u32 s{sT0}, s{sKC0}, {s}
        s_and_b32 s{sT0}, s{sT0}, 7
        s_lshl_b32 s{sT3}, s{sT0}, 7
        s_add_u32 s{sT4}, s{sT3}, 16384
        """
        for i in range(4):
            vd = vDX0 if i % 2 == 0 else vDX1
            so = sT3 if i < 2 else sT4
            it.append(((pre if i == 0 else "") + f"""s_add_u32 m0, s{sLW}, {slot + i*1024}
            s_nop 0
            buffer_load_dwordx4 v{vd}, s[{SX}:{SX+3}], s{so} offen lds""", f"st{s}"))
    else:
        pre = f"""s_add_u32 s{sT0}, s{sKC0}, {s}
        s_and_b32 s{sT0}, s{sT0}, 7
        s_lshl_b32 s{sT3}, s{sT0}, 7
        s_mul_i32 s{sT2}, s{sT0}, {64*2752}
        s_add_u32 s{sT2}, s{sT2}, s{sU0B}
        """
        for i in range(2):
            vd = vDS if i == 0 else vDS1
            it.append(((pre if i == 0 else "") + f"""s_add_u32 m0, s{sMS}, {slot + i*1024}
            s_nop 0
            buffer_load_dwordx4 v{vd}, s[{SS}:{SS+3}], s{sT3} offen lds""", f"st{s}"))
        for mat in range(2):
            sr = SM if mat == 0 else SM2
            it.append((f"""s_add_u32 m0, s{sM1}, {slot + 24576 + mat*4096}
            s_nop 0
            buffer_load_dwordx4 v{vDM}, s[{sr}:{sr+3}], s{sT2} offen lds""", f"st{s}"))
    return it


def dma_p1(t, ch):
    g = 8 + t
    slot = (g % NSLOT) * SLOT
    it = []
    c2 = ch
    pre = f"""s_add_u32 s{sT0}, s{sKC0}, {2*t+c2}
    s_and_b32 s{sT0}, s{sT0}, 7
    s_mul_i32 s{sT2}, s{sT0}, {64*2752}
    s_add_u32 s{sT2}, s{sT2}, s{sU0B}
    s_add_u32 s{sT2}, s{sT2}, 64
    s_add_u32 s{sT3}, s{sT2}, s{sDUM}
    """
    for mat in range(2):
        sr = SM if mat == 0 else SM2
        for j in range(2):
            so = sT2 if j == 0 else sT3
            it.append(((pre if (mat == 0 and j == 0) else "") + f"""s_add_u32 m0, s{sM1}, {slot + c2*16384 + j*8192 + mat*4096}
            s_nop 0
            buffer_load_dwordx4 v{vDM}, s[{sr}:{sr+3}], s{so} offen lds""", f"st{g}"))
    return it


ORDER = [("M", i) for i in range(11)] + [("S", j) for j in range(8)]


NA = 6
vAR = 128
vAG = 42


def p2_A(st):
    kind, ix = ORDER[st]
    ks0 = 8 * ix if kind == "M" else 86 + 8 * ix
    r = vAR + 8 * (st % NA)
    it = []
    if (kind, ix) == ("M", 10):
        first = f"""s_mov_b32 s{sT1}, {ks0*1024}
        s_cmp_eq_u32 s{sRG}, 3
        s_cselect_b32 s{sT1}, {(ks0-2)*1024}, s{sT1}"""
    else:
        first = f"s_mov_b32 s{sT1}, {ks0*1024}"
    it.append((first + f"""
    buffer_load_dwordx4 v[{r}:{r+3}], v{vDA}, s[{SWS}:{SWS+3}], s{sT1} offen sc1""", f"A{st}"))
    it.append((f"""buffer_load_dwordx4 v[{r+4}:{r+7}], v{vDA}, s[{SWS}:{SWS+3}], s{sT1} offen offset:1024 sc1""", f"A{st}"))
    return it


def p2_B(st):
    slot = (st % 8) * 16384
    kind, ix = ORDER[st]
    it = []
    if kind == "M":
        if ix < 3:
            reg, c = s3RG, 3 * 4 * ix
        elif ix == 3:
            reg, c = s2RG, 2 * 12 + 11
        elif ix < 7:
            reg, c = s3RG, 3 * 4 * (ix - 4) + 1
        elif ix == 7:
            reg, c = s2RG, 2 * 12 + 11 + 1
        elif ix < 10:
            reg, c = s3RG, 3 * 4 * (ix - 8) + 2
        else:
            reg, c = sAOFF, 3 * 4 * (ix - 8) + 2
        for i in range(2):
            it.append((f"""s_add_u32 s{sT1}, s{reg}, {c*32768 + i*8192}
            s_add_u32 m0, s{sRT}, {slot + i*1024}
            s_nop 0
            buffer_load_dwordx4 v{vDB}, s[{SWD}:{SWD+3}], s{sT1} offen lds""", f"B{st}"))
    else:
        j = ix
        for i in range(2):
            vd = vDC0 if i % 2 == 0 else vDC1
            it.append((f"""s_add_u32 s{sT1}, s{sXB}, {j*128 + i*8192}
            s_add_u32 m0, s{sRT}, {slot + i*1024}
            s_nop 0
            buffer_load_dwordx4 v{vd}, s[{SC}:{SC+3}], s{sT1} offen lds""", f"B{st}"))
    return it


def main(out_path):
    a = A()
    gen(a)
    ref = open("cdna_kernels/" + NAME + ".s.ref").read()
    head = []
    for line in ref.splitlines():
        if line.startswith(";") and "@launch" not in line and "Override" not in line and "grid=ceil" not in line:
            head.append(line)
        elif not line.startswith(";"):
            break
    txt = "\n".join(head) + "\n"
    txt += f"; @launch grid=(256,1,1) block=(512,1,1) lds={LDS_BYTES}\n"
    txt += '.amdgcn_target "amdgcn-amd-amdhsa--gfx950"\n.text\n'
    txt += f".globl {KNAME}\n.p2align 8\n.type {KNAME},@function\n{KNAME}:\n"
    txt += a.text()
    txt += f""".section .rodata,"a"
.p2align 6
.amdhsa_kernel {KNAME}
  .amdhsa_next_free_vgpr 256
  .amdhsa_next_free_sgpr 102
  .amdhsa_accum_offset 256
  .amdhsa_group_segment_fixed_size 0
  .amdhsa_kernarg_size 128
  .amdhsa_user_sgpr_count 2
  .amdhsa_user_sgpr_kernarg_segment_ptr 1
  .amdhsa_system_sgpr_workgroup_id_x 1
.end_amdhsa_kernel
"""
    open(out_path, "w").write(txt)


def flag_load(a, ev, rb_s, vdst, tag):
    a(f"""s_lshl_b32 s{sT0}, s{rb_s}, 8
    s_add_u32 s{sT0}, s{sT0}, {WS_FLG + ev*64}
    v_and_b32 v{vdst}, 15, v{vLANE}
    v_lshlrev_b32 v{vdst}, 2, v{vdst}""")
    a.vmop(f"buffer_load_dword v{vdst}, v{vdst}, s[{SWS}:{SWS+3}], s{sT0} offen sc1", tag)


PRG = (252, 253, 254)


FLG_OFF = {0: 0, 1: 512, 2: 1024}


def poll_flags(a, ev):
    lp, ok = a.newlab("PF"), a.newlab("PFOK")
    wide = (ev == 1)
    a(f"""s_lshr_b32 s{sT0}, s{sRB2}, 1
    s_lshl_b32 s{sT0}, s{sT0}, 11
    s_add_u32 s{sT0}, s{sT0}, {WS_FLG + FLG_OFF[ev]}
    v_lshlrev_b32 v{vT}, {3 if wide else 2}, v{vLANE}
    s_mov_b32 s{sSPIN}, 0""")
    regs = [(248, 249), (250, 251), (252, 253)]
    ld = (lambda r: f"buffer_load_dwordx2 v[{r[0]}:{r[1]}], v{vT}, s[{SWS}:{SWS+3}], s{sT0} offen sc1") if wide else \
         (lambda r: f"buffer_load_dword v{r[0]}, v{vT}, s[{SWS}:{SWS+3}], s{sT0} offen sc1")
    for r in regs:
        a(ld(r) + "\ns_sleep 2")
    a.label(lp)
    for r in regs:
        nx = a.newlab("PFN")
        a(f"""s_waitcnt vmcnt(2)
        v_cmp_ne_u32 vcc, s{sTAG}, v{r[0]}
        s_add_u32 s{sSPIN}, s{sSPIN}, 1""")
        if wide:
            a(f"""s_cbranch_vccnz {nx}
            v_cmp_ne_u32 vcc, s{sTAG}, v{r[1]}
            s_nop 0
            s_cbranch_vccz {ok}""")
            a.label(nx)
        else:
            a(f"s_cbranch_vccz {ok}")
        a(ld(r))
    a(f"""s_cmp_gt_u32 s{sSPIN}, {SPIN_MAX}
    s_cbranch_scc0 {lp}""")
    a.label(ok)


def touch_A(a, ev):
    if not A_TOUCH:
        return
    k0, nl = {0: (0, 64), 1: (32, 108), 2: (86, 128)}[ev]
    a(f"""s_lshr_b32 s{sT0}, s{sCB}, 2
    s_lshl_b32 s{sT1}, s{sRB2}, 1
    s_add_u32 s{sT0}, s{sT0}, s{sT1}
    s_mul_i32 s{sT0}, s{sT0}, {RT_STRIDE}
    s_and_b32 s{sT1}, s{sCB}, 3
    s_mul_i32 s{sT1}, s{sT1}, {nl*128}
    s_add_u32 s{sT0}, s{sT0}, s{sT1}
    s_add_u32 s{sT0}, s{sT0}, {k0*1024}
    v_lshlrev_b32 v{vT+1}, 7, v{vLANE}
    buffer_load_dword v{JUNK}, v{vT+1}, s[{SWS}:{SWS+3}], s{sT0} offen sc1""")
    if nl > 64:
        a(f"s_add_u32 s{sT0}, s{sT0}, 8192")
        if nl < 128:
            a(f"""v_cmp_gt_u32 vcc, {nl-64}, v{vLANE}
            s_and_saveexec_b64 s[{sEX}:{sEX+1}], vcc
            buffer_load_dword v{JUNK}, v{vT+1}, s[{SWS}:{SWS+3}], s{sT0} offen sc1
            s_mov_b64 exec, s[{sEX}:{sEX+1}]""")
        else:
            a(f"buffer_load_dword v{JUNK}, v{vT+1}, s[{SWS}:{SWS+3}], s{sT0} offen sc1")


def write_flag(a, ev, ch):
    sh = 5 if ev == 1 else 4
    a(f"""s_lshl_b32 s{sT0}, s{sRB}, 11
    s_lshl_b32 s{sT1}, s{sCG}, {sh}
    s_add_u32 s{sT0}, s{sT0}, s{sT1}
    s_lshl_b32 s{sT1}, s{sW if ev == 1 else sRG}, 2
    s_add_u32 s{sT0}, s{sT0}, s{sT1}
    s_add_u32 s{sT0}, s{sT0}, {WS_FLG + FLG_OFF[ev]}
    v_mov_b32 v{vT+9}, 0
    v_mov_b32 v{vT+10}, s{sTAG}
    s_mov_b64 s[{sEX}:{sEX+1}], exec
    s_mov_b64 exec, 1""")
    a.vmop(f"buffer_store_dword v{vT+10}, v{vT+9}, s[{SWS}:{SWS+3}], s{sT0} offen sc1", "flag")
    a(f"s_mov_b64 exec, s[{sEX}:{sEX+1}]")


def only_rg(a, rg, fn):
    lab = a.newlab("RG")
    a(f"s_cmp_eq_u32 s{sRG}, {rg}\ns_cbranch_scc0 {lab}")
    lg = list(a.lg)
    fn()
    a.label(lab)
    a.lg = lg


def colsum_mfma(a, wf0, wf1, accreg, first=False):
    l1, l2 = a.newlab("CS"), a.newlab("CS")
    c = "0" if first else f"v[{accreg}:{accreg+15}]"
    a(f"""s_cmp_eq_u32 s{sCSM}, 0
    s_cbranch_scc1 {l2}
    s_cmp_eq_u32 s{sCSM}, 1
    s_cbranch_scc0 {l1}
    v_mfma_f32_32x32x16_bf16 v[{accreg}:{accreg+15}], v[{ONES}:{ONES+3}], v[{wf0}:{wf0+3}], {c}
    s_branch {l2}""")
    a.label(l1)
    a(f"v_mfma_f32_32x32x16_bf16 v[{accreg}:{accreg+15}], v[{ONES}:{ONES+3}], v[{wf1}:{wf1+3}], {c}")
    a.label(l2)


def colsum_store(a, accreg, unit, koff=0):
    a(f"""s_nop 7
    s_nop 7
    s_add_u32 s{sT1}, s{sKC0}, {koff}
    s_and_b32 s{sT1}, s{sT1}, 7
    s_lshl_b32 s{sT0}, s{sCG}, 3
    s_add_u32 s{sT0}, s{sT0}, s{sT1}
    s_lshl_b32 s{sT0}, s{sT0}, 11
    s_sub_u32 s{sT1}, s{sCSM}, 1
    s_lshl_b32 s{sT1}, s{sT1}, 8
    s_add_u32 s{sT0}, s{sT0}, s{sT1}
    s_add_u32 s{sT0}, s{sT0}, {WS_CS + unit*512}
    s_lshl_b32 s{sT1}, s2, 11
    s_add_u32 s{sT1}, s{sT1}, {WS_DUMMY}
    s_cmp_eq_u32 s{sCSM}, 0
    s_cselect_b32 s{sT0}, s{sT1}, s{sT0}
    v_mov_b32 v{accreg+1}, s{sTAG}
    v_lshlrev_b32 v{accreg+2}, 3, v{vLANE}
    s_mov_b64 s[{sEX}:{sEX+1}], exec
    s_mov_b64 exec, 0xffffffff""")
    a.vmop(f"buffer_store_dwordx2 v[{accreg}:{accreg+1}], v{accreg+2}, s[{SWS}:{SWS+3}], s{sT0} offen sc1", "cs")
    a(f"s_mov_b64 exec, s[{sEX}:{sEX+1}]")


def gather_loads(a, part, dst, atmp, tracked=False):
    l1, l2 = a.newlab("G"), a.newlab("G")
    a(f"""s_cmp_lt_u32 s{sRG}, 2
    s_cbranch_scc0 {l1}
    s_lshl_b32 s{sT0}, s{sCG}, 14
    s_add_u32 s{sT0}, s{sT0}, {WS_CS + part*1024}
    s_lshl_b32 s{sT1}, s{sRG}, 9
    s_add_u32 s{sT0}, s{sT0}, s{sT1}
    v_lshlrev_b32 v{atmp}, 3, v{vLANE}""")
    for j in range(8):
        so, io = (j * 2048 // 4096) * 4096, (j * 2048) % 4096
        a(f"s_add_u32 s{sT1}, s{sT0}, {so}")
        a(f"buffer_load_dwordx2 v[{dst+2*j}:{dst+2*j+1}], v{atmp}, s[{SWS}:{SWS+3}], s{sT1} offen offset:{io} sc1")
    a(f"s_branch {l2}")
    a.label(l1)
    nd = 8
    if part == 0:
        a(f"""s_lshl_b32 s{sT0}, s{sRB}, 11
        s_sub_u32 s{sT1}, s{sRG}, 2
        s_lshl_b32 s{sT1}, s{sT1}, 10
        s_add_u32 s{sT0}, s{sT0}, s{sT1}
        s_add_u32 s{sT0}, s{sT0}, {WS_STAT}
        v_lshlrev_b32 v{atmp}, 4, v{vLANE}
        buffer_load_dwordx4 v[{dst}:{dst+3}], v{atmp}, s[{SWS}:{SWS+3}], s{sT0} offen sc1""")
        nd = 7
    a(f"s_mov_b32 s{sT0}, 0x40000000")
    for j in range(nd):
        a(f"buffer_load_dword v{dst+8+j}, v{vLANE}, s[{SWS}:{SWS+3}], s{sT0} offen")
    a.label(l2)
    if tracked:
        a.vm += ["g"] * 8
        a.nvm += 8


def gather_finish(a, part, dst, nyounger, atmp):
    lr, l1, l2, lok, lok2, l0 = [a.newlab("GF") for _ in range(6)]
    a(f"s_mov_b32 s{sSPIN}, 0")
    a(f"s_waitcnt vmcnt({nyounger})")
    a(f"s_branch {l0}")
    a.label(lr)
    a("s_waitcnt vmcnt(0)")
    a.label(l0)
    a(f"""s_cmp_lt_u32 s{sRG}, 2
    s_cbranch_scc0 {l1}
    s_mov_b64 s[{sMASK}:{sMASK+1}], 0""")
    for j in range(8):
        a(f"""v_cmp_ne_u32 vcc, s{sTAG}, v{dst+2*j+1}
        s_or_b64 s[{sMASK}:{sMASK+1}], s[{sMASK}:{sMASK+1}], vcc""")
    a(f"""s_cmp_eq_u64 s[{sMASK}:{sMASK+1}], 0
    s_cbranch_scc1 {lok}
    s_add_u32 s{sSPIN}, s{sSPIN}, 1
    s_cmp_gt_u32 s{sSPIN}, {SPIN_MAX}
    s_cbranch_scc1 {lok}""")
    gather_loads(a, part, dst, atmp)
    a(f"s_branch {lr}")
    a.label(lok)
    a(f"""v_add_f32 v{dst}, v{dst}, v{dst+2}
    v_add_f32 v{dst+4}, v{dst+4}, v{dst+6}
    v_add_f32 v{dst+8}, v{dst+8}, v{dst+10}
    v_add_f32 v{dst+12}, v{dst+12}, v{dst+14}
    v_add_f32 v{dst}, v{dst}, v{dst+4}
    v_add_f32 v{dst+8}, v{dst+8}, v{dst+12}
    v_add_f32 v{dst}, v{dst}, v{dst+8}
    s_lshl_b32 s{sT0}, s{sRG}, 8
    s_add_u32 s{sT0}, s{sT0}, {SCR}
    v_lshlrev_b32 v{atmp}, 2, v{vLANE}
    v_add_u32 v{atmp}, s{sT0}, v{atmp}
    ds_write_b32 v{atmp}, v{dst} offset:{SCR_CS + part*512}
    s_branch {l2}""")
    a.label(l1)
    if part == 0:
        a(f"""v_cmp_ne_u32 vcc, s{sTAG}, v{dst+1}
        s_mov_b64 s[{sMASK}:{sMASK+1}], vcc
        v_cmp_ne_u32 vcc, s{sTAG}, v{dst+3}
        s_or_b64 s[{sMASK}:{sMASK+1}], s[{sMASK}:{sMASK+1}], vcc
        s_cmp_eq_u64 s[{sMASK}:{sMASK+1}], 0
        s_cbranch_scc1 {lok2}
        s_add_u32 s{sSPIN}, s{sSPIN}, 1
        s_cmp_gt_u32 s{sSPIN}, {SPIN_MAX}
        s_cbranch_scc1 {lok2}""")
        gather_loads(a, part, dst, atmp)
        a(f"s_branch {lr}")
        a.label(lok2)
        a(f"""v_rcp_f32 v{dst+2}, v{dst+2}
        v_sub_f32 v{dst+3}, 0, v{dst}
        s_sub_u32 s{sT0}, s{sRG}, 2
        s_lshl_b32 s{sT0}, s{sT0}, 9
        s_add_u32 s{sT0}, s{sT0}, {SCR}
        v_lshlrev_b32 v{atmp}, 3, v{vLANE}
        v_add_u32 v{atmp}, s{sT0}, v{atmp}
        ds_write_b64 v{atmp}, v[{dst+2}:{dst+3}] offset:{SCR_ST}""")
    a.label(l2)
    a.lgwait_all()


def row_stats_M(q, tmp):
    q(f"""v_and_b32 v{tmp}, 31, v{vLANE}
    v_bfe_u32 v{tmp+1}, v{tmp}, 2, 1
    v_lshlrev_b32 v{tmp+1}, 4, v{tmp+1}
    v_lshrrev_b32 v{tmp+2}, 3, v{tmp}
    v_lshl_add_u32 v{tmp+1}, v{tmp+2}, 2, v{tmp+1}
    v_and_b32 v{tmp+2}, 3, v{tmp}
    v_add_u32 v{tmp+1}, v{tmp+1}, v{tmp+2}
    v_lshlrev_b32 v{tmp+2}, 5, v{vRGV}
    v_add_u32 v{tmp+1}, v{tmp+2}, v{tmp+1}
    v_lshlrev_b32 v{tmp+1}, 3, v{tmp+1}
    v_add_u32 v{tmp+1}, {SCR}, v{tmp+1}""")
    q.ldsop(f"ds_read_b64 v[{vRINV}:{vRINV+1}], v{tmp+1} offset:{SCR_ST}", "rs")
    q.lgwait("rs")


vRGV = 2


def gelu_epi(q, acc, pos_s, cs_off, tagname, csr, T, maybe=False):
    K0 = -2.0 * math.sqrt(2.0 / math.pi) * LOG2E
    K1c = K0 * 0.044715
    q(f"""v_mov_b32 v{vK1}, {f2u(K1c)}
    v_lshrrev_b32 v{vCA}, 5, v{vLANE}
    v_lshlrev_b32 v{vCA}, 4, v{vCA}
    v_add_u32 v{vCA}, {SCR + SCR_CS + cs_off}, v{vCA}""")
    cg_, cu_ = csr, csr + 4
    for qq in range(4):
        q.ldsop(f"ds_read_b128 v[{cg_}:{cg_+3}], v{vCA} offset:{qq*32}", "cs")
        q.ldsop(f"ds_read_b128 v[{cu_}:{cu_+3}], v{vCA} offset:{128 + qq*32}", "cs")
        q.lgwait("cs")
        rs = [4 * qq + i for i in range(4)]
        for i, r in enumerate(rs):
            q(f"v_fma_f32 v{acc+r}, v{vNM}, v{cg_+i}, v{acc+r}")
        for i, r in enumerate(rs):
            q(f"v_fma_f32 v{acc+16+r}, v{vNM}, v{cu_+i}, v{acc+16+r}")
        for i, r in enumerate(rs):
            q(f"v_mul_f32 v{acc+r}, v{acc+r}, v{vRINV}")
        for i, r in enumerate(rs):
            q(f"v_mul_f32 v{T+i}, v{acc+r}, v{acc+r}")
        for i, r in enumerate(rs):
            q(f"v_fmaak_f32 v{T+i}, v{vK1}, v{T+i}, {f2u(K0)}")
        for i, r in enumerate(rs):
            q(f"v_mul_f32 v{T+i}, v{T+i}, v{acc+r}")
        for i, r in enumerate(rs):
            q(f"v_exp_f32 v{T+i}, v{T+i}")
        for i, r in enumerate(rs):
            q(f"v_mul_f32 v{T+4+i}, v{acc+r}, v{acc+16+r}")
        for i, r in enumerate(rs):
            q(f"v_add_f32 v{T+i}, 1.0, v{T+i}")
        for i, r in enumerate(rs):
            q(f"v_rcp_f32 v{T+i}, v{T+i}")
        for i, r in enumerate(rs):
            q(f"v_mul_f32 v{T+4+i}, v{T+4+i}, v{vRINV}")
        for i, r in enumerate(rs):
            q(f"v_mul_f32 v{T+i}, v{T+i}, v{T+4+i}")
        q(f"v_cvt_pk_bf16_f32 v{acc+2*qq}, v{T}, v{T+1}\nv_cvt_pk_bf16_f32 v{acc+2*qq+1}, v{T+2}, v{T+3}")
    q(f"v_lshlrev_b32 v{T}, 4, v{vLANE}")
    q.vmop(f"buffer_store_dwordx4 v[{acc}:{acc+3}], v{T}, s[{SWS}:{SWS+3}], s{pos_s} offen sc1", tagname, maybe)
    q.vmop(f"buffer_store_dwordx4 v[{acc+4}:{acc+7}], v{T}, s[{SWS}:{SWS+3}], s{pos_s} offen offset:1024 sc1", tagname, maybe)


def s_params(q):
    vLre, vLim, vLdt = vT + 7, vT + 8, vT + 9
    t0, t1, t2, t3, t4, t5, t6 = [vT + i for i in range(7)]
    q(f"""v_lshlrev_b32 v{vLre}, 16, v{vA16r}
    v_lshlrev_b32 v{vLim}, 16, v{vA16i}
    v_lshlrev_b32 v{vLdt}, 16, v{vA128r}
    v_mul_f32 v{t0}, {f2u(LOG2E)}, v{vLdt}
    v_exp_f32 v{t0}, v{t0}
    s_nop 0""")
    rne_bf16(q, t0)
    q(f"""v_mul_f32 v{t1}, v{t0}, v{vLre}
    v_mul_f32 v{t2}, v{t0}, v{vLim}
    v_mul_f32 v{t1}, {f2u(LOG2E)}, v{t1}
    v_exp_f32 v{t1}, v{t1}
    v_mul_f32 v{t2}, {f2u(1.0/(2*math.pi))}, v{t2}
    v_rndne_f32 v{t3}, v{t2}
    v_sub_f32 v{t2}, v{t2}, v{t3}
    v_cos_f32 v{t3}, v{t2}
    v_sin_f32 v{t4}, v{t2}
    s_nop 0
    v_mul_f32 v{vAr}, v{t1}, v{t3}
    v_mul_f32 v{vAi}, v{t1}, v{t4}
    v_add_f32 v{t3}, -1.0, v{vAr}
    v_mul_f32 v{t4}, v{vLre}, v{vLre}
    v_fmac_f32 v{t4}, v{vLim}, v{vLim}
    v_rcp_f32 v{t4}, v{t4}
    v_mul_f32 v{t5}, v{t3}, v{vLre}
    v_fmac_f32 v{t5}, v{vAi}, v{vLim}
    v_mul_f32 v{t6}, v{vAi}, v{vLre}
    v_fma_f32 v{t6}, -v{t3}, v{vLim}, v{t6}
    v_add_f32 v{t4}, v{t4}, v{t4}
    v_mul_f32 v{vKr}, v{t5}, v{t4}
    v_mul_f32 v{vKi}, v{t6}, v{t4}
    v_mov_b32 v{vA16r}, v{vAr}
    v_mov_b32 v{vA16i}, v{vAi}""")

    def csq(r, i):
        q(f"""v_mul_f32 v{t0}, v{i}, v{i}
        v_mul_f32 v{t1}, v{r}, v{i}
        v_fma_f32 v{r}, v{r}, v{r}, -v{t0}
        v_add_f32 v{i}, v{t1}, v{t1}""")
    for _ in range(4):
        csq(vA16r, vA16i)
    q(f"v_mov_b32 v{vA128r}, v{vA16r}\nv_mov_b32 v{vA128i}, v{vA16i}")
    for _ in range(3):
        csq(vA128r, vA128i)


def s_epilogue1(q):
    zr = lambda j: vACC + j
    zi = lambda j: vACC + 16 + j
    T = vT
    CR, CI = T + 9, T + 10
    q(f"""v_and_b32 v{T}, 31, v{vLANE}
    v_lshlrev_b32 v{T+1}, 2, v{T}
    v_add_u32 v{T+1}, {SCR}, v{T+1}""")
    q.ldsop(f"ds_read_b32 v{CR}, v{T+1} offset:{SCR_CS}", "sc")
    q.ldsop(f"ds_read_b32 v{CI}, v{T+1} offset:{SCR_CS+128}", "sc")
    q(f"""v_lshrrev_b32 v{T+2}, 5, v{vLANE}
    v_lshlrev_b32 v{T+3}, 5, v{vRGV}
    v_lshl_add_u32 v{T+3}, v{T+2}, 4, v{T+3}
    v_lshlrev_b32 v{T+3}, 3, v{T+3}
    v_add_u32 v{T+3}, {SCR}, v{T+3}""")
    for qq in range(4):
        q.ldsop(f"ds_read_b128 v[4:7], v{T+3} offset:{SCR_ST + qq*32}", "sc")
        q.ldsop(f"ds_read_b128 v[8:11], v{T+3} offset:{SCR_ST + qq*32 + 16}", "sc")
        q.lgwait("sc")
        for i in range(4):
            j = 4 * qq + i
            ri, nm = 4 + 2 * i, 5 + 2 * i
            q(f"""v_fma_f32 v{zr(j)}, v{nm}, v{CR}, v{zr(j)}
            v_fma_f32 v{zi(j)}, v{nm}, v{CI}, v{zi(j)}
            v_mul_f32 v{zr(j)}, v{zr(j)}, v{ri}
            v_mul_f32 v{zi(j)}, v{zi(j)}, v{ri}""")
    cur, alt = (T + 4, T + 5), (T + 7, T + 8)
    q(f"v_mov_b32 v{cur[0]}, v{zr(0)}\nv_mov_b32 v{cur[1]}, v{zi(0)}")
    for j in range(1, 16):
        sr, si = cur
        nr, ni = alt
        q(f"""v_fma_f32 v{nr}, v{vAr}, v{sr}, v{zr(j)}
        v_fma_f32 v{ni}, v{vAr}, v{si}, v{zi(j)}
        v_fma_f32 v{nr}, -v{vAi}, v{si}, v{nr}
        v_fma_f32 v{ni}, v{vAi}, v{sr}, v{ni}""")
        cur, alt = alt, cur
    assert cur == (T + 7, T + 8) and (T + 7) % 2 == 0
    q(f"""v_lshlrev_b32 v{T+1}, 1, v{vRGV}
    v_add_u32 v{T+1}, v{T+1}, v{T+2}
    v_lshlrev_b32 v{T+1}, 8, v{T+1}
    v_lshl_add_u32 v{T+1}, v{T}, 3, v{T+1}
    v_add_u32 v{T+1}, {SCR}, v{T+1}""")
    q.ldsop(f"ds_write_b64 v{T+1}, v[{T+7}:{T+8}] offset:{SCR_ES}", "ew")


def s_publish(a):
    T = vT
    a(f"""s_waitcnt lgkmcnt(0)
    v_and_b32 v{T}, 31, v{vLANE}
    v_lshlrev_b32 v{T+1}, 3, v{T}
    v_add_u32 v{T+1}, {SCR}, v{T+1}
    ds_read_b64 v[4:5], v{T+1} offset:{SCR_ES}
    ds_read_b64 v[6:7], v{T+1} offset:{SCR_ES+256}
    ds_read_b64 v[8:9], v{T+1} offset:{SCR_ES+512}
    ds_read_b64 v[10:11], v{T+1} offset:{SCR_ES+768}
    s_waitcnt lgkmcnt(0)""")

    def step(er, ei):
        a(f"""v_fma_f32 v{T+2}, v{vA16r}, v4, v{er}
        v_fma_f32 v{T+3}, v{vA16r}, v5, v{ei}
        v_fma_f32 v{T+2}, -v{vA16i}, v5, v{T+2}
        v_fma_f32 v5, v{vA16i}, v4, v{T+3}
        v_mov_b32 v4, v{T+2}""")
    step(6, 7); step(8, 9); step(10, 11)
    a(f"""ds_read_b64 v[6:7], v{T+1} offset:{SCR_ES+1024}
    ds_read_b64 v[8:9], v{T+1} offset:{SCR_ES+1280}
    ds_read_b64 v[10:11], v{T+1} offset:{SCR_ES+1536}
    ds_read_b64 v[{T+5}:{T+6}], v{T+1} offset:{SCR_ES+1792}
    s_waitcnt lgkmcnt(0)""")
    assert (T + 5) % 2 == 0
    step(6, 7); step(8, 9); step(10, 11); step(T + 5, T + 6)
    a(f"""v_mov_b32 v6, v5
    v_mov_b32 v5, s{sTAG}
    v_mov_b32 v7, s{sTAG}
    s_lshl_b32 s{sT0}, s{sCG}, 5
    v_add_u32 v{T}, s{sT0}, v{T}
    v_lshlrev_b32 v{T}, 4, v{T}
    s_lshl_b32 s{sT0}, s{sRB}, 13
    s_add_u32 s{sT0}, s{sT0}, {WS_AGG}
    v_cmp_gt_u32 vcc, 32, v{vLANE}
    s_and_saveexec_b64 s[{sEX}:{sEX+1}], vcc
    buffer_store_dwordx4 v[4:7], v{T}, s[{SWS}:{SWS+3}], s{sT0} offen sc1
    s_mov_b64 exec, s[{sEX}:{sEX+1}]""")
    a.vm.append("pub"); a.nvm += 1


LBG = 160
HG = 192


def lookback_loads(a, tracked=True):
    a(f"""v_and_b32 v{vT+9}, 31, v{vLANE}
    s_lshl_b32 s{sT0}, s{sCG}, 5
    v_add_u32 v{vT+9}, s{sT0}, v{vT+9}
    v_lshlrev_b32 v{vT+9}, 4, v{vT+9}           ; p*16
    v_lshrrev_b32 v3, 5, v{vLANE}
    s_sub_u32 s{sT0}, s{sRB}, 1
    v_sub_u32 v3, s{sT0}, v3                    ; rb-1-hf
    v_lshlrev_b32 v3, 13, v3
    v_add_u32 v3, v3, v{vT+9}
    s_mov_b32 s{sT0}, {WS_AGG}
    v_mov_b32 v{vT+10}, 0x7ff00000""")
    for i in range(8):
        a(f"""v_subrev_u32 v{vT+9}, {i*16384}, v3
        v_cmp_gt_i32 vcc, 0, v{vT+9}
        s_nop 1
        v_cndmask_b32 v{vT+9}, v{vT+9}, v{vT+10}, vcc""")
        code = f"buffer_load_dwordx4 v[{LBG+4*i}:{LBG+4*i+3}], v{vT+9}, s[{SWS}:{SWS+3}], s{sT0} offen sc1"
        if tracked:
            a.vmop(code, "lb")
        else:
            a(code)


def s_work_atoms(a, q):
    zr = lambda j: vACC + j
    zi = lambda j: vACC + 16 + j
    T = vT
    L = LBG
    G = LBG
    EB = 192
    q(f"""v_and_b32 v{T+8}, 31, v{vLANE}
    v_lshlrev_b32 v{T}, 3, v{T+8}
    v_add_u32 v{T}, {SCR}, v{T}""")
    for s in range(8):
        q.ldsop(f"ds_read_b64 v[{EB+2*s}:{EB+2*s+1}], v{T} offset:{SCR_ES + s*256}", "se")
    q(f"""v_mul_f32 v{T+5}, v{vA128i}, v{vA128i}
    v_mul_f32 v{T+6}, v{vA128r}, v{vA128i}
    v_fma_f32 v{T+5}, v{vA128r}, v{vA128r}, -v{T+5}
    v_add_f32 v{T+6}, v{T+6}, v{T+6}""")

    def check():
        lp, got = a.newlab("LB"), a.newlab("LBG")
        a(f"s_mov_b32 s{sSPIN}, 0")
        a.vmwait("lb")
        a.label(lp)
        a(f"""v_lshrrev_b32 v{T+1}, 5, v{vLANE}
        s_sub_u32 s{sT0}, s{sRB}, 1
        v_sub_u32 v{T+1}, s{sT0}, v{T+1}
        s_mov_b64 s[{sMASK}:{sMASK+1}], 0""")
        for i in range(8):
            a(f"""v_cmp_ne_u32 vcc, s{sTAG}, v{L+4*i+1}
            v_cmp_ne_u32 s[{sEX}:{sEX+1}], s{sTAG}, v{L+4*i+3}
            s_or_b64 s[{sEX}:{sEX+1}], s[{sEX}:{sEX+1}], vcc
            v_cmp_le_i32 vcc, {2*i}, v{T+1}
            s_and_b64 s[{sEX}:{sEX+1}], s[{sEX}:{sEX+1}], vcc
            s_or_b64 s[{sMASK}:{sMASK+1}], s[{sMASK}:{sMASK+1}], s[{sEX}:{sEX+1}]""")
        a(f"""s_cmp_eq_u64 s[{sMASK}:{sMASK+1}], 0
        s_cbranch_scc1 {got}
        s_add_u32 s{sSPIN}, s{sSPIN}, 1
        s_cmp_gt_u32 s{sSPIN}, {SPIN_MAX}
        s_cbranch_scc1 {got}""")
        lookback_loads(a, tracked=False)
        a(f"s_waitcnt vmcnt(0)\ns_branch {lp}")
        a.label(got)
    q.q.append(("call", check))
    cr, ci = T + 1, T + 2
    q(f"v_mov_b32 v{cr}, v{L+28}\nv_mov_b32 v{ci}, v{L+30}")
    for i in range(6, -1, -1):
        q(f"""v_fma_f32 v{T+3}, v{T+5}, v{cr}, v{L+4*i}
        v_fma_f32 v{T+4}, v{T+5}, v{ci}, v{L+4*i+2}
        v_fma_f32 v{T+3}, -v{T+6}, v{ci}, v{T+3}
        v_fma_f32 v{ci}, v{T+6}, v{cr}, v{T+4}
        v_mov_b32 v{cr}, v{T+3}""")
    q(f"""v_mov_b32 v{T+3}, v{cr}
    v_mov_b32 v{T+4}, v{ci}
    s_nop 1
    v_permlane32_swap_b32 v{cr}, v{T+3}
    v_permlane32_swap_b32 v{ci}, v{T+4}
    s_nop 1
    v_fma_f32 v{cr}, v{vA128r}, v{T+3}, v{cr}
    v_fma_f32 v{ci}, v{vA128r}, v{T+4}, v{ci}
    v_fma_f32 v{cr}, -v{vA128i}, v{T+4}, v{cr}
    v_fma_f32 v{ci}, v{vA128i}, v{T+3}, v{ci}
    v_lshrrev_b32 v{T+5}, 5, v{vLANE}
    v_lshl_add_u32 v{T+5}, v{vRGV}, 1, v{T+5}""")
    q.lgwait("se")
    for s in range(7):
        def seg(s=s):
            a(f"""v_fma_f32 v{T+3}, v{vA16r}, v{cr}, v{EB+2*s}
            v_fma_f32 v{T+4}, v{vA16r}, v{ci}, v{EB+2*s+1}
            v_cmp_lt_u32 vcc, {s}, v{T+5}
            v_fma_f32 v{T+3}, -v{vA16i}, v{ci}, v{T+3}
            v_fma_f32 v{T+4}, v{vA16i}, v{cr}, v{T+4}
            v_cndmask_b32 v{cr}, v{cr}, v{T+3}, vcc
            v_cndmask_b32 v{ci}, v{ci}, v{T+4}, vcc""")
        q.q.append(("calln", seg, 7))
    cur, alt = (cr, ci), (T + 3, T + 4)
    for j in range(16):
        sr, si = cur
        nr, ni = alt
        q(f"""v_fma_f32 v{nr}, v{vAr}, v{sr}, v{zr(j)}
        v_fma_f32 v{ni}, v{vAr}, v{si}, v{zi(j)}
        v_fma_f32 v{nr}, -v{vAi}, v{si}, v{nr}
        v_fma_f32 v{ni}, v{vAi}, v{sr}, v{ni}
        v_mul_f32 v{zr(j)}, v{vKr}, v{nr}
        v_mul_f32 v{zi(j)}, -v{vKr}, v{ni}
        v_fma_f32 v{zr(j)}, -v{vKi}, v{ni}, v{zr(j)}
        v_fma_f32 v{zi(j)}, -v{vKi}, v{nr}, v{zi(j)}""")
        cur, alt = alt, cur
    for j in range(0, 16, 2):
        q(f"v_cvt_pk_bf16_f32 v{G+j//2}, v{zr(j)}, v{zr(j+1)}")
        q(f"v_cvt_pk_bf16_f32 v{G+8+j//2}, v{zi(j)}, v{zi(j+1)}")
    q(f"""v_lshlrev_b32 v{T+6}, 12, v{vRGV}
    v_add_u32 v{T+6}, {SCR_T}, v{T+6}
    v_lshrrev_b32 v{T+5}, 5, v{vLANE}
    v_lshlrev_b32 v{T+5}, 3, v{T+5}
    v_lshl_add_u32 v{T+5}, v{T+8}, 6, v{T+5}
    v_add_u32 v{T+5}, v{T+6}, v{T+5}
    v_add_u32 v{T+6}, v{T+6}, v{vTRL}
    v_lshlrev_b32 v{T}, 4, v{vLANE}""")
    for part in range(2):
        for qq in range(4):
            r = G + 8 * part + 2 * qq
            q.ldsop(f"ds_write_b64 v{T+5}, v[{r}:{r+1}] offset:{part*2048 + qq*16}", "tw")
    q.lgwait("tw")
    R = G + 16
    for part in range(2):
        for s2 in range(2):
            r = R + 8 * part + 4 * s2
            o = part * 2048 + s2 * 1024
            q.ldsop(f"ds_read_b64_tr_b16 v[{r}:{r+1}], v{T+6} offset:{o}", "tr")
            q.ldsop(f"ds_read_b64_tr_b16 v[{r+2}:{r+3}], v{T+6} offset:{o+256}", "tr")
    q.lgwait("tr")
    for part in range(2):
        for s2 in range(2):
            r = R + 8 * part + 4 * s2
            q.vmop(f"buffer_store_dwordx4 v[{r}:{r+3}], v{T}, s[{SWS}:{SWS+3}], s{sMU} offen offset:{(2*part+s2)*1024} sc1", "h")


vTRL = 3


def gen(a):
    global vTRL
    vTRL = 0
    sIDX = sMX
    if STAMPS:
        a(f"s_memrealtime s[{sMASK}:{sMASK+1}]")
    a(f"""s_cmp_ge_u32 s2, 256
    s_cbranch_scc1 L_END
    s_load_dwordx16 s[40:55], s[0:1], 0
    s_load_dwordx16 s[56:71], s[0:1], 64
    v_and_b32 v{vLANE}, 63, v0
    v_lshrrev_b32 v2, 6, v0
    s_and_b32 s{sT0}, s2, 7            ; xcd
    v_readfirstlane_b32 s{sW}, v2
    s_lshr_b32 s{sIDX}, s2, 3          ; idx
    s_and_b32 s{sRB}, s{sT0}, 1
    s_lshl_b32 s{sRB}, s{sRB}, 3
    s_and_b32 s{sT2}, s{sIDX}, 7
    s_add_u32 s{sRB}, s{sRB}, s{sT2}   ; rb
    s_lshr_b32 s{sCG}, s{sT0}, 1
    s_lshl_b32 s{sCG}, s{sCG}, 2
    s_lshr_b32 s{sT2}, s{sIDX}, 3
    s_add_u32 s{sCG}, s{sCG}, s{sT2}   ; cg
    s_and_b32 s{sRG}, s{sW}, 3
    s_lshl_b32 s{sKC0}, s{sCG}, 1
    s_add_u32 s{sKC0}, s{sKC0}, s{sRB}
    s_and_b32 s{sKC0}, s{sKC0}, 7
    s_lshl_b32 s{sRB2}, s{sT0}, 2
    s_and_b32 s{sT2}, s{sIDX}, 3
    s_add_u32 s{sRB2}, s{sRB2}, s{sT2}
    s_lshr_b32 s{sCB}, s{sIDX}, 2
    s_mul_i32 s{sT2}, s{sCG}, 3
    s_lshl_b32 s{sT3}, s{sCG}, 1
    s_add_u32 s{sT3}, s{sT3}, 11
    s_cmp_lt_u32 s{sCG}, 11
    s_cselect_b32 s{sU0B}, s{sT2}, s{sT3}
    s_cselect_b32 s{sDUM}, 64, 0x40000000
    s_lshl_b32 s{sU0B}, s{sU0B}, 6
    s_lshl_b32 s{sLW}, s{sRG}, 12           ; w'*4096
    s_lshl_b32 s{sMS}, s{sRG}, 11
    s_add_u32 s{sMS}, s{sMS}, 16384         ; S pieces: 16384 + w'*2048
    s_lshl_b32 s{sM1}, s{sRG}, 10           ; kstep*1024
    v_lshrrev_b32 v2, 3, v{vLANE}           ; lane>>3
    v_and_b32 v3, 7, v{vLANE}
    v_lshrrev_b32 v{vT}, 4, v{vLANE}        ; lane>>4
    v_xor_b32 v{vT+1}, v3, v{vT}            ; (lane&7)^(lane>>4)
    s_lshl_b32 s{sT2}, s{sRB}, 7
    s_lshl_b32 s{sT3}, s{sRG}, 5
    s_add_u32 s{sT2}, s{sT2}, s{sT3}
    v_add_u32 v{vT+2}, s{sT2}, v2
    v_lshlrev_b32 v{vT+2}, 10, v{vT+2}
    v_lshl_add_u32 v{vDX0}, v{vT+1}, 4, v{vT+2}
    v_xor_b32 v{vDX1}, 64, v{vDX0}
    v_add_u32 v{vDX1}, 8192, v{vDX1}
    s_and_b32 s{sT4}, s{sRG}, 1
    s_lshl_b32 s{sT4}, s{sT4}, 4
    s_lshl_b32 s{sT3}, s{sCG}, 5
    s_add_u32 s{sT4}, s{sT4}, s{sT3}
    v_add_u32 v{vT+2}, s{sT4}, v2
    v_lshlrev_b32 v{vT+2}, 10, v{vT+2}
    v_lshl_add_u32 v{vDS}, v{vT+1}, 4, v{vT+2}
    v_xor_b32 v{vDS1}, 64, v{vDS}
    v_add_u32 v{vDS1}, 8192, v{vDS1}
    v_lshrrev_b32 v{vT+2}, 2, v{vLANE}
    s_lshl_b32 s{sT4}, s{sRG}, 4
    v_add_u32 v{vT+2}, s{sT4}, v{vT+2}
    v_mul_u32_u24 v{vT+2}, 2752, v{vT+2}
    v_and_b32 v{vT+4}, 3, v{vLANE}
    v_lshl_add_u32 v{vDM}, v{vT+4}, 4, v{vT+2}
    v_lshlrev_b32 v{vT+3}, 4, v{vLANE}
    s_and_b32 s{sT4}, s{sW}, 2
    s_waitcnt lgkmcnt(0)""")
    pstamp(a, 0)
    srd(a, SX, P_X, 2048 * 1024)
    a(f"""s_cmp_eq_u32 s{sT4}, 0
    s_cselect_b32 s{P_BRE}, s{P_BRE}, s{P_BIM}
    s_cselect_b32 s{P_BRE+1}, s{P_BRE+1}, s{P_BIM+1}
    s_cmp_lt_u32 s{sW}, 4
    s_cselect_b32 s{P_CRE}, s{P_CRE}, s{P_CIM}
    s_cselect_b32 s{P_CRE+1}, s{P_CRE+1}, s{P_CIM+1}""")
    lab0, lab1 = a.newlab("D0"), a.newlab("D1")
    a(f"s_cmp_lt_u32 s{sW}, 4\ns_cbranch_scc1 {lab0}")
    for s_ in range(NPRE):
        for code, tag in dma_p0(s_, 1):
            a(code)
    srd(a, SS, P_BRE, 512 * 1024)
    srd(a, SM, P_WG, 512 * 2752)
    a(f"s_branch {lab1}")
    a.label(lab0)
    srd(a, SS, P_BRE, 512 * 1024)
    srd(a, SM, P_WG, 512 * 2752)
    a(f"s_mov_b32 s{sT4}, s{P_WU}\ns_mov_b32 s{sT5}, s{P_WU+1}")
    srd(a, 32, sT4, 512 * 2752)
    for s_ in range(NPRE):
        for code, tag in dma_p0(s_, 0):
            a(code.replace(f"s[{SM2}:{SM2+3}]", "s[32:35]"))
        if s_ == 0:
            a(f"""s_lshl_b32 s{sT2}, s2, 3
            s_lshl_b32 s{sT3}, s{sRG}, 1
            s_add_u32 s{sT5}, s{sT2}, s{sT3}
            s_lshl_b32 s{sT5}, s{sT5}, 10
            buffer_load_dwordx4 v[{vACC}:{vACC+3}], v{vT+3}, s[{SX}:{SX+3}], s{sT5} offen
            buffer_load_dwordx4 v[{vACC+4}:{vACC+7}], v{vT+3}, s[{SX}:{SX+3}], s{sT5} offen offset:1024""")
    a.label(lab1)
    srd(a, SWS, P_WS, WS_SIZE)
    a(f"""s_add_u32 s{P_BIM}, s{P_WS}, {WS_EPOCH}
    s_addc_u32 s{P_BIM+1}, s{P_WS+1}, 0
    s_load_dword s{sTAG}, s[{P_BIM}:{P_BIM+1}], 0""")
    srd(a, SM2, P_WU, 512 * 2752)
    pstamp(a, 1)
    srd(a, SWD, P_WD, 1376 * 1024)
    srd(a, SC, P_CRE, 512 * 1024)
    a(f"""v_and_b32 v{vT+2}, 31, v{vLANE}
    s_lshl_b32 s{sT4}, s{sCG}, 5
    v_add_u32 v{vT+2}, s{sT4}, v{vT+2}
    v_lshlrev_b32 v{vT+2}, 1, v{vT+2}""")
    srd(a, ST, P_LRE, 1024)
    a.vmop(f"buffer_load_ushort v{vA16r}, v{vT+2}, s[{ST}:{ST+3}], 0 offen", "par")
    srd(a, ST, P_LIM, 1024)
    a.vmop(f"buffer_load_ushort v{vA16i}, v{vT+2}, s[{ST}:{ST+3}], 0 offen", "par")
    srd(a, ST, P_LDT, 1024)
    a.vmop(f"buffer_load_ushort v{vA128r}, v{vT+2}, s[{ST}:{ST+3}], 0 offen", "par")
    pstamp(a, 2)
    srd(a, SO, P_OUT, 2048 * 2048)
    srd(a, ST, P_DSK, 1024)
    if CODE_PREFETCH:
        lab = a.newlab("CP")
        a(f"""s_cmp_eq_u32 s{sW}, 3
        s_cbranch_scc0 {lab}
        s_getpc_b64 s[{sT2}:{sT3}]""")
        a.label("L_PC")
        a(f"""s_mul_i32 s{sT4}, s{sIDX}, {10*128}
        v_lshlrev_b32 v{vT+2}, 7, v{vLANE}
        v_add_u32 v{vT+2}, s{sT4}, v{vT+2}
        v_cmp_gt_u32 vcc, L_CODE_END-L_PC, v{vT+2}
        s_and_saveexec_b64 s[{sEX}:{sEX+1}], vcc
        v_cmp_gt_u32 vcc, 10, v{vLANE}
        s_and_b64 exec, exec, vcc
        s_cbranch_execz {lab}_R
        global_load_dword v{vK1}, v{vT+2}, s[{sT2}:{sT3}]""")
        a.label(lab + "_R")
        a(f"s_mov_b64 exec, s[{sEX}:{sEX+1}]")
        a.label(lab)
    a(f"""s_lshr_b32 s{sT3}, s{sW}, 1                ; w>>1
    s_and_b32 s{sT4}, s{sW}, 1
    s_lshl_b32 s{sT4}, s{sT4}, 14            ; (w&1)*16384
    s_mul_i32 s{s3RG}, s{sT3}, {3*32768}
    s_add_u32 s{s3RG}, s{s3RG}, s{sT4}
    s_lshl_b32 s{s2RG}, s{sT3}, 16
    s_add_u32 s{s2RG}, s{s2RG}, s{sT4}
    s_cmp_eq_u32 s{sT3}, 3
    s_cselect_b32 s{sAOFF}, 0x40000000, s{s3RG}
    s_lshl_b32 s{sXB}, s{sRG}, 14
    s_lshl_b32 s{sRT}, s{sW}, 11
    s_lshl_b32 s{sT2}, s{sRB}, 2
    s_add_u32 s{sT2}, s{sT2}, s{sRG}
    s_mul_i32 s{sHPOS}, s{sT2}, {RT_STRIDE}
    s_lshl_b32 s{sT4}, s{sRB2}, 1
    s_lshr_b32 s{sT3}, s{sW}, 2
    s_add_u32 s{sT4}, s{sT4}, s{sT3}
    s_mul_i32 s{sT4}, s{sT4}, {RT_STRIDE}
    s_lshl_b32 s{sT3}, s{sRG}, 11
    s_add_u32 s{sT4}, s{sT4}, s{sT3}
    v_lshlrev_b32 v{vDA}, 4, v{vLANE}
    v_add_u32 v{vDA}, s{sT4}, v{vDA}
    v_bfe_u32 v{vT+2}, v{vLANE}, 4, 1
    v_lshlrev_b32 v{vT+2}, 2, v{vT+2}
    v_xor_b32 v{vT+2}, v3, v{vT+2}
    v_lshlrev_b32 v{vT+4}, 10, v2
    v_lshl_add_u32 v{vT+2}, v{vT+2}, 4, v{vT+4}
    s_lshl_b32 s{sT4}, s{sCB}, 7
    v_add_u32 v{vDB}, s{sT4}, v{vT+2}
    s_lshl_b32 s{sT4}, s{sCB}, 6
    v_add_u32 v{vT+2}, s{sT4}, v2
    v_lshlrev_b32 v{vT+2}, 10, v{vT+2}
    v_lshl_add_u32 v{vDC0}, v{vT+1}, 4, v{vT+2}
    v_xor_b32 v{vDC1}, 64, v{vDC0}
    v_and_b32 v2, 31, v{vLANE}
    v_bfe_u32 v3, v2, 2, 1
    v_lshlrev_b32 v3, 4, v3
    v_lshrrev_b32 v{vT}, 3, v2
    v_lshl_add_u32 v3, v{vT}, 2, v3
    v_and_b32 v{vT+1}, 3, v2
    v_add_u32 v3, v3, v{vT+1}               ; tau
    v_bfe_u32 v{vT}, v3, 1, 3
    s_lshl_b32 s{sT4}, s{sRG}, 5
    v_add_u32 v3, s{sT4}, v3
    v_lshlrev_b32 v3, 7, v3
    v_lshrrev_b32 v{vT+1}, 5, v{vLANE}
    v_xor_b32 v{vT}, v{vT}, v{vT+1}
    v_lshl_add_u32 v{vXA}, v{vT}, 4, v3
    v_xor_b32 v{vXA+1}, 32, v{vXA}
    v_xor_b32 v{vXA+2}, 64, v{vXA}
    v_xor_b32 v{vXA+3}, 96, v{vXA}
    v_lshlrev_b32 v3, 3, v{vT+1}
    v_bfe_u32 v{vT}, v{vLANE}, 2, 2
    v_add_u32 v3, v3, v{vT}
    v_lshlrev_b32 v3, 6, v3
    v_bfe_u32 v{vT}, v{vLANE}, 4, 1
    v_lshl_add_u32 v3, v{vT}, 5, v3
    v_and_b32 v{vT}, 3, v{vLANE}
    v_lshl_add_u32 v{vTRL}, v{vT}, 3, v3
    s_lshr_b32 s{sT4}, s{sW}, 2
    s_lshl_b32 s{sT4}, s{sT4}, 13
    v_add_u32 v{vW1}, s{sT4}, v{vTRL}
    v_mov_b32 v{vRGV}, s{sRG}""")
    pstamp(a, 3)
    a(f"""s_cmp_ge_u32 s{sW}, 4
    s_cbranch_scc1 L_STREAM_B""")
    save = (list(a.vm), list(a.lg), a.nvm)
    stream(a, 0)
    a.vm, a.lg, a.nvm = list(save[0]), list(save[1]), save[2]
    a.label("L_STREAM_B")
    stream(a, 1)
    a.label("L_END")
    a("s_endpgm")
    a.label("L_CODE_END")


def w2_touch(a, which, junk=None):
    if not W2_PREFETCH:
        return
    sIDX = sMX
    j = junk or vDA
    a(f"v_lshlrev_b32 v3, 7, v{vLANE}")
    if which in (0, 1):
        a(f"""s_mul_i32 s{sT0}, s{sIDX}, 44032
        s_lshl_b32 s{sT1}, s{sRG}, 13
        s_add_u32 s{sT0}, s{sT0}, s{sT1}
        s_add_u32 s{sT0}, s{sT0}, {32768*which}""")
        a.vmop(f"buffer_load_dword v{j}, v3, s[{SWD}:{SWD+3}], s{sT0} offen", "pf")
    else:
        a(f"""s_lshl_b32 s{sT0}, s{sIDX}, 14
        s_and_b32 s{sT1}, s{sRG}, 1
        s_lshl_b32 s{sT1}, s{sT1}, 13
        s_add_u32 s{sT0}, s{sT0}, s{sT1}""")
        a.vmop(f"buffer_load_dword v{j}, v3, s[{SC}:{SC+3}], s{sT0} offen", "pf")


def w2_touch16(a, piece, junk):
    if not W2_PREFETCH:
        return
    sIDX = sMX
    a(f"v_lshlrev_b32 v3, 7, v{vLANE}")
    if piece < 6:
        a(f"""s_mul_i32 s{sT0}, s{sIDX}, 44032
        s_lshl_b32 s{sT1}, s{sRG}, 11
        s_add_u32 s{sT0}, s{sT0}, s{sT1}
        s_add_u32 s{sT0}, s{sT0}, {piece*8192}
        s_mov_b64 s[{sEX}:{sEX+1}], exec
        s_mov_b64 exec, 0xffff""")
        a.vmop(f"buffer_load_dword v{junk}, v3, s[{SWD}:{SWD+3}], s{sT0} offen", "pf")
    else:
        a(f"""s_lshl_b32 s{sT0}, s{sIDX}, 14
        s_lshl_b32 s{sT1}, s{sRG}, 11
        s_add_u32 s{sT0}, s{sT0}, s{sT1}
        s_add_u32 s{sT0}, s{sT0}, {(piece-6)*8192}
        s_mov_b64 s[{sEX}:{sEX+1}], exec
        s_mov_b64 exec, 0xffff""")
        a.vmop(f"buffer_load_dword v{junk}, v3, s[{SC}:{SC+3}], s{sT0} offen", "pf")
    a(f"s_mov_b64 exec, s[{sEX}:{sEX+1}]")


def ln_stats(a, src, row_s):
    U = vACC2
    for i in range(4):
        a(f"v_lshlrev_b32 v{U+2*i}, 16, v{src+i}\nv_and_b32 v{U+2*i+1}, 0xffff0000, v{src+i}")
    a(f"""v_add_f32 v{vT}, v{U}, v{U+1}
    v_add_f32 v{vT+1}, v{U+2}, v{U+3}
    v_add_f32 v{vT+2}, v{U+4}, v{U+5}
    v_add_f32 v{vT+4}, v{U+6}, v{U+7}
    v_add_f32 v{vT}, v{vT}, v{vT+1}
    v_add_f32 v{vT+2}, v{vT+2}, v{vT+4}
    v_add_f32 v{vT}, v{vT}, v{vT+2}""")
    wave_sum(a, vT, sT4)
    a(f"""s_nop 1
    v_mov_b32 v{vT+1}, s{sT4}
    v_mul_f32 v{vT+1}, {f2u(1.0/512)}, v{vT+1}
    v_mov_b32 v{vT}, 0""")
    for i in range(8):
        a(f"v_sub_f32 v{vT+2}, v{U+i}, v{vT+1}\nv_fmac_f32 v{vT}, v{vT+2}, v{vT+2}")
    wave_sum(a, vT, sT4)
    a(f"""s_nop 1
    v_mov_b32 v{vT+2}, s{sT4}
    v_mul_f32 v{vT+2}, {f2u(1.0/512)}, v{vT+2}""")
    rne_bf16(a, vT + 1)
    rne_bf16(a, vT + 2)
    a(f"v_add_f32 v{vT+2}, {f2u(1e-5)}, v{vT+2}")
    rne_bf16(a, vT + 2)
    a(f"v_sqrt_f32 v{vT+2}, v{vT+2}\ns_nop 0")
    rne_bf16(a, vT + 2)
    a(f"""v_mov_b32 v{U}, v{vT+1}
    v_mov_b32 v{U+1}, s{sTAG}
    v_mov_b32 v{U+2}, v{vT+2}
    v_mov_b32 v{U+3}, s{sTAG}
    s_lshl_b32 s{sT4}, s{row_s}, 4
    s_add_u32 s{sT4}, s{sT4}, {WS_STAT}
    v_mov_b32 v{vT}, 0
    s_mov_b64 s[{sEX}:{sEX+1}], exec
    s_mov_b64 exec, 1""")
    a.vmop(f"buffer_store_dwordx4 v[{U}:{U+3}], v{vT}, s[{SWS}:{SWS+3}], s{sT4} offen sc1", "stat")
    a(f"s_mov_b64 exec, s[{sEX}:{sEX+1}]")


def stream(a, ch):
    a(f"s_waitcnt lgkmcnt(0)\ns_add_u32 s{sTAG}, s{sTAG}, 1")
    if ch == 0:
        a.vm = ["st0"] * 4 + ["lnrow", "lnrow"] + [f"st{g}" for g in range(1, NPRE) for _ in range(4)] + ["par"] * 3
        a(f"""v_and_b32 v3, 31, v{vLANE}
        v_bfe_u32 v{vT}, v3, 1, 3
        v_lshrrev_b32 v{vT+1}, 5, v{vLANE}
        v_xor_b32 v{vT}, v{vT}, v{vT+1}
        v_lshlrev_b32 v3, 7, v3
        v_lshl_add_u32 v3, v{vT}, 4, v3
        v_add_u32 v{vWS}, 16384, v3
        v_xor_b32 v{vWS+1}, 32, v{vWS}
        v_xor_b32 v{vWS+2}, 64, v{vWS}
        v_xor_b32 v{vWS+3}, 96, v{vWS}""")
        waddr0 = [vWS + i for i in range(4)]
        a.vmwait("lnrow")
        pstamp(a, 4)
        a(f"""s_lshl_b32 s{sT2}, s2, 3
        s_lshl_b32 s{sT3}, s{sRG}, 1
        s_add_u32 s{sT5}, s{sT2}, s{sT3}""")
        ln_stats(a, vACC, sT5)
        a(f"s_add_u32 s{sT5}, s{sT5}, 1")
        ln_stats(a, vACC + 4, sT5)
    else:
        a.vm = [f"st{g}" for g in range(NPRE) for _ in range(4)] + ["par"] * 3
        a(f"v_add_u32 v{vWM}, 24576, v{vTRL}")
        waddr0 = [vWM]
    if W2_AT == 0 and ch == 0:
        for wch in (0, 2, 1):
            w2_touch(a, wch)
    stamp(a, 0)
    if PSTAMP:
        a(f"s_lshl_b32 s{sT0}, s2, 3\ns_add_u32 s{sT0}, s{sT0}, s{sW}\ns_lshl_b32 s{sT0}, s{sT0}, 6\ns_add_u32 s{sT0}, s{sT0}, {WS_DBG + 0x40000}")
        a("v_mov_b32 v3, 0")
        for i in range(5):
            a(f"buffer_store_dword v{232+i}, v3, s[{SWS}:{SWS+3}], s{sT0} offen offset:{4*i}")
        a.vm += ["x"] * 5
    a(f"""s_lshr_b32 s{sCSM}, s{sRB}, 3
    s_add_u32 s{sCSM}, s{sCSM}, 1
    s_cmp_eq_u32 s{sRG}, 0
    s_cselect_b32 s{sCSM}, s{sCSM}, 0""")
    for i in range(4):
        a(f"v_mov_b32 v{ONES+i}, 0x3f803f80")
    for i in range(64):
        a(f"v_mov_b32 v{vACC+i}, 0")
    xaddr = [vXA + i for i in range(4)]

    slots = []
    for g in range(8):
        for j in range(4):
            for t in range(2):
                slots.append((g, 0, j, t))
    for g in range(8, 12):
        for c2 in range(2):
            for j in range(4):
                for t in range(2):
                    slots.append((g, c2, j, t))
    NS = len(slots)
    first_of = {}
    last_of = {}
    for n, (g, c2, j, t) in enumerate(slots):
        first_of.setdefault(g, n)
        last_of[g] = n
    hi_state = {"x": 0, "w0": 0, "w1": 0}

    def set_hi(key, regs, g):
        hi = ((g % NSLOT) * SLOT) >> 16
        if hi_state[key] != hi:
            for r in regs:
                a(f"v_xor_b32 v{r}, 0x10000, v{r}")
            hi_state[key] = hi

    def frag_reg(n):
        return vFR + 4 * (n % 4)

    def issue_reads(n):
        g, c2, j, t = slots[n]
        lo = ((g % NSLOT) * SLOT) & 0xffff
        f = frag_reg(n)
        tag = f"w{n}"
        if g < 8:
            if j == 0 and t == 0:
                set_hi("x", xaddr, g)
                set_hi("w0", waddr0, g)
                for jj in range(4):
                    r = vXF + 4 * (4 * g + jj)
                    a.ldsop(f"ds_read_b128 v[{r}:{r+3}], v{vXA+jj} offset:{lo}", f"x{g}_{jj}")
            if ch == 0:
                a.ldsop(f"ds_read_b128 v[{f}:{f+3}], v{vWS+j} offset:{lo + t*4096}", tag)
            else:
                o = lo + t * 4096 + j * 1024
                a.ldsop(f"ds_read_b64_tr_b16 v[{f}:{f+1}], v{vWM} offset:{o}", tag)
                a.ldsop(f"ds_read_b64_tr_b16 v[{f+2}:{f+3}], v{vWM} offset:{o+256}", tag)
        else:
            if c2 == 0 and j == 0 and t == 0:
                set_hi("w1", [vW1], g)
            o = lo + c2 * 16384 + t * 4096 + j * 1024
            a.ldsop(f"ds_read_b64_tr_b16 v[{f}:{f+1}], v{vW1} offset:{o}", tag)
            a.ldsop(f"ds_read_b64_tr_b16 v[{f+2}:{f+3}], v{vW1} offset:{o+256}", tag)

    def mfma(n):
        g, c2, j, t = slots[n]
        f = frag_reg(n)
        if g < 8:
            xf = vXF + 4 * (4 * g + j)
            acc = vACC + 16 * t
            a.lgwait(f"x{g}_{j}")
        else:
            xf = vXF + 4 * (4 * (2 * (g - 8) + c2) + j)
            acc = vACC2 + 16 * t
        a.lgwait(f"w{n}")
        if ch == 0 and g < 8:
            a(f"v_mfma_f32_32x32x16_bf16 v[{acc}:{acc+15}], v[{xf}:{xf+3}], v[{f}:{f+3}], v[{acc}:{acc+15}]")
        else:
            a(f"v_mfma_f32_32x32x16_bf16 v[{acc}:{acc+15}], v[{f}:{f+3}], v[{xf}:{xf+3}], v[{acc}:{acc+15}]")

    def colsum_at(n):
        g, c2, j, t = slots[n]
        if (g == 0) or (g == 8 and c2 == 1):
            acc = CSACC if g == 0 else CS1ACC
            lab = a.newlab("CSK")
            f = frag_reg(n)
            c = "0" if j == 0 else f"v[{acc}:{acc+15}]"
            a(f"""s_cmp_eq_u32 s{sCSM}, {t+1}
            s_cbranch_scc0 {lab}
            v_mfma_f32_32x32x16_bf16 v[{acc}:{acc+15}], v[{ONES}:{ONES+3}], v[{f}:{f+3}], {c}""")
            a.label(lab)

    dmaq = []

    def stage_barrier(g):
        if ch == 0 and g == 7:
            gather_finish(a, 0, GATH0, a.nvm - marks["g0"], 3)
            for i in range(16):
                a(f"v_mov_b32 v{GATH0+i}, 0")
        if g == 10 and ch == 1:
            a.vmwait("u0")
            write_flag(a, 0, ch)
        a.vmwait(f"st{g+1}")
        a("s_barrier")
        if ch == 0 and g in (8, 9) and marks.get("edone") and not marks.get("published"):
            a.fill_all(); s_publish(a); a.lg = []
            marks["published"] = True
        nxt = g + 3
        if E("X_NODMA", 0):
            pass
        elif nxt < 8:
            dmaq.extend(dma_p0(nxt, ch))
        elif nxt < 12:
            dmaq.extend(dma_p1(nxt - 8, ch))
        if g == 9:
            dmaq.extend(p2_B(0)); dmaq.extend(p2_B(1))
        if g == 10:
            dmaq.extend(p2_B(2)); dmaq.extend(p2_B(3))

    marks = {}
    if (PRIO == 2 and ch == 1) or (PRIO == 3 and ch == 0):
        a("s_setprio 1")
    a.vmwait("st0")
    a("s_barrier")
    stamp(a, 1)
    for s_ in range(NPRE, 3):
        dmaq.extend(dma_p0(s_, ch))
    for n in range(LOOK):
        issue_reads(n)
    for n in range(NS):
        g, c2, j, t = slots[n]
        mfma(n)
        colsum_at(n)
        nn = n + LOOK
        if nn < NS:
            if slots[nn][0] != slots[nn - 1][0]:
                stage_barrier(slots[nn - 1][0])
            issue_reads(nn)
        every = (PACE0 if g < 8 else PACE1)
        npop = 2 if len(dmaq) > 4 else (1 if (n % every == 0) else 0)
        for _ in range(DMA_RATE if DMA_RATE else npop):
            if dmaq:
                code, tag = dmaq.pop(0)
                a.vmop(code, tag)
        if g >= 8:
            a.fill(FILL0 if ch == 0 else FILL)
        elif g >= 3:
            a.fill(3)
        if W2_AT == 4 and g >= W2_G0 and (n - first_of[g]) in (W2_P1, W2_P2):
            k = 2 * (g - W2_G0) + (0 if (n - first_of[g]) == W2_P1 else 1)
            if ch == 1 and k < 8:
                w2_touch16(a, k, vDS)
            if ch == 0 and k in (1, 3):
                w2_touch16(a, 6 + (k // 2), vDX0)
        if n == last_of[g]:
            if P1DBG == 4 and g < 9:
                a(f"s_memtime s[{STAMP0+2*(5+g)}:{STAMP0+2*(5+g)+1}]")
            if P1DBG == 5 and g >= 7:
                a(f"s_memtime s[{STAMP0+2*(g-2)}:{STAMP0+2*(g-2)+1}]")
            if P1DBG == 1 and g in (8, 9, 10):
                stamp(a, {8: 9, 9: 13, 10: 6}[g], force=True)
            if P1DBG == 2 and g in (1, 3, 5):
                stamp(a, {1: 9, 3: 13, 5: 6}[g], force=True)
            if g == 0:
                colsum_store(a, CSACC, ch)
                a("s_nop 7")
                for i in range(16):
                    a(f"v_mov_b32 v{CSACC+i}, 0")
            if W2_AT == 1 and ch == 0 and g in (3, 4, 8):
                w2_touch(a, {3: 0, 4: 2, 8: 1}[g])
            if W2_AT == 3 and ch == 1 and W2_G0 <= g < W2_G0 + 8:
                w2_touch16(a, g - W2_G0, vDS)
            if W2_AT == 3 and ch == 0 and g in (W2_G0 + 1, W2_G0 + 3):
                w2_touch16(a, 6 + (g - W2_G0) // 2, vDX0)
            if W2_AT == 2 and ch == 1 and g == 9:
                for wch in (0, 2, 1):
                    w2_touch(a, wch, junk=vDS)
            if g == 2 and ch == 0:
                a.vmwait("par")
                q = Q()
                s_params(q)
                a.fillq = q.q
            if g == 5 and ch == 0:
                gather_loads(a, 0, GATH0, 3, tracked=True)
                marks["g0"] = a.nvm
            if g == 7:
                a.fill_all()
                stamp(a, 2)
                if PRIO == 1 and ch == 0:
                    a("s_setprio 1")
                q = Q()
                if ch == 1:
                    q(f"""s_lshl_b32 s{sT5}, s{sCG}, 11
                    s_add_u32 s{sT5}, s{sT5}, s{sHPOS}""")
                    row_stats_M(q, vT)
                    gelu_epi(q, vACC, sT5, 64 * 4, "u0", 4, vT)
                else:
                    s_epilogue1(q)
                    q.q.append(("call", lambda: marks.__setitem__("edone", True)))
                    row_stats_M(q, vT)
                a.fillq = q.q
            if g == 8:
                colsum_store(a, CS1ACC, 2 + ch, koff=1)
            if g == 9:
                a.fill_all()
                stamp(a, 3)
            if g == 10 and ch == 0:
                lookback_loads(a)
                a(f"""s_lshl_b32 s{sT5}, s{sCG}, 12
                s_add_u32 s{sMU}, s{sHPOS}, s{sT5}
                s_add_u32 s{sMU}, s{sMU}, {86*1024}""")
            if g == 10 and ch == 0 and not marks.get("published"):
                s_publish(a); a.lg = []
            if g == 10 and ch == 1:
                gather_loads(a, 1, GATH1, 3, tracked=True)
                marks["g1"] = a.nvm
    stamp(a, 4)
    while dmaq:
        code, tag = dmaq.pop(0)
        a.vmop(code, tag)
    if ch == 0:
        a.fill_all()
    else:
        gather_finish(a, 1, GATH1, a.nvm - marks["g1"], 3)
        poll_flags(a, 0)
        only_rg(a, 3, lambda: touch_A(a, 0))
    a("s_barrier")
    stamp(a, 5)
    for st in range(4):
        for code, tag in p2_A(st):
            a.vmop(code, tag)
    for st in range(4, 8):
        for code, tag in p2_B(st):
            a.vmop(code, tag)
    if ch == 1:
        lab = a.newlab("U2S")
        stamp(a, 6)
        a(f"""s_cmp_ge_u32 s{sCG}, 11
        s_cbranch_scc1 {lab}
        s_lshl_b32 s{sT5}, s{sCG}, 11
        s_add_u32 s{sT5}, s{sT5}, s{sHPOS}
        s_add_u32 s{sT5}, s{sT5}, {64*1024}""")
        gelu_epi(a, vACC2, sT5, 192 * 4, "u12", 48, vT, maybe=True)
        a.label(lab)
        a.lg = []
        marks["u12"] = a.nvm
        a.vmwait_all()
        write_flag(a, 1, 1)
        stamp(a, 8)
    else:
        a(f"""s_lshl_b32 s{sT5}, s{sCG}, 11
        s_add_u32 s{sT5}, s{sT5}, s{sHPOS}
        s_add_u32 s{sT5}, s{sT5}, {32*1024}""")
        a(f"""s_lshl_b32 s{sT5}, s{sCG}, 11
        s_add_u32 s{sT5}, s{sT5}, s{sHPOS}
        s_add_u32 s{sT5}, s{sT5}, {32*1024}""")
        gelu_epi(a, vACC2, sT5, 128 * 4, "u12", 48, vT)
        stamp(a, 6)
        q = Q()
        s_work_atoms(a, q)
        k = (2 * len(q.q)) // 3
        q.q.insert(k, ("call", lambda: (a.vmwait("u12"), write_flag(a, 1, 0))))
        a.fillq = q.q
        a.fill_all()
        stamp(a, 8)
    a.marks = marks
    phase2(a, ch)


def phase2(a, ch):
    rt = ch
    vB0, vB1, vC0, vC1, vXO, vSO, vDO = 4, 5, 6, 7, 9, 11, 12
    vDK = 8
    vBF = 176
    vAC = 208
    vEX = 96
    a(f"""v_lshrrev_b32 v{vT}, 5, v{vLANE}
    v_lshlrev_b32 v{vT}, 2, v{vT}
    v_bfe_u32 v3, v{vLANE}, 2, 2
    v_add_u32 v{vT}, v{vT}, v3
    v_lshlrev_b32 v{vT}, 7, v{vT}
    v_bfe_u32 v3, v{vLANE}, 3, 1
    v_lshl_add_u32 v{vT}, v3, 6, v{vT}
    v_bfe_u32 v3, v{vLANE}, 4, 1
    v_lshl_add_u32 v{vT}, v3, 5, v{vT}
    v_and_b32 v3, 3, v{vLANE}
    v_lshl_add_u32 v{vT}, v3, 3, v{vT}
    s_lshl_b32 s{sT0}, s{sRG}, 12
    v_add_u32 v{vB0}, s{sT0}, v{vT}
    v_xor_b32 v{vB1}, 64, v{vB0}
    v_and_b32 v{vT}, 31, v{vLANE}
    v_bfe_u32 v3, v{vT}, 1, 3
    v_lshrrev_b32 v{vT+1}, 5, v{vLANE}
    s_lshr_b32 s{sT0}, s{sRG}, 1
    s_lshl_b32 s{sT0}, s{sT0}, 2
    v_add_u32 v{vT+1}, s{sT0}, v{vT+1}
    v_xor_b32 v3, v3, v{vT+1}
    v_lshlrev_b32 v{vT}, 7, v{vT}
    v_lshl_add_u32 v{vT}, v3, 4, v{vT}
    s_and_b32 s{sT0}, s{sRG}, 1
    s_lshl_b32 s{sT0}, s{sT0}, 13
    v_add_u32 v{vC0}, s{sT0}, v{vT}
    v_xor_b32 v{vC1}, 32, v{vC0}
    v_lshrrev_b32 v{vT}, 5, v{vLANE}
    v_lshlrev_b32 v{vT}, 4, v{vT}
    s_lshl_b32 s{sT0}, s{sRB2}, 6
    s_lshl_b32 s{sT1}, s{sRG}, 2
    s_add_u32 s{sT0}, s{sT0}, s{sT1}
    s_add_u32 s{sT0}, s{sT0}, {32*rt}
    v_add_u32 v{vT}, s{sT0}, v{vT}
    v_lshlrev_b32 v{vSO}, 4, v{vT}
    v_lshlrev_b32 v{vT}, 9, v{vT}
    v_and_b32 v3, 31, v{vLANE}
    s_lshl_b32 s{sT0}, s{sCB}, 6
    v_add_u32 v3, s{sT0}, v3
    v_add_u32 v{vT}, v{vT}, v3
    v_lshlrev_b32 v{vXO}, 1, v{vT}
    v_lshlrev_b32 v{vDO}, 1, v3""")

    def epi_loads():
        a.vmop(f"buffer_load_ushort v{vDK}, v{vDO}, s[{ST}:{ST+3}], 0 offen", "epi")
        a.vmop(f"buffer_load_ushort v{vDK+2}, v{vDO}, s[{ST}:{ST+3}], 0 offen offset:64", "epi")
        for ct in range(2):
            for i in range(4):
                a.vmop(f"buffer_load_ushort v{vEX+4*ct+i}, v{vXO}, s[{SX}:{SX+3}], 0 offen offset:{i*1024 + ct*64}", "epi")
        a(f"s_mov_b32 s{sT0}, {WS_STAT}")
        for i in range(4):
            a.vmop(f"buffer_load_dword v{vEX+8+i}, v{vSO}, s[{SWS}:{SWS+3}], s{sT0} offen offset:{i*16} sc1", "epi")
            a.vmop(f"buffer_load_dword v{vEX+12+i}, v{vSO}, s[{SWS}:{SWS+3}], s{sT0} offen offset:{i*16+8} sc1", "epi")
    for i in range(32):
        a(f"v_mov_b32 v{vAC+i}, 0")
    hi2 = {"v": 0}

    def p2_reads(st, n):
        slot = (st % 8) * 16384
        hi, lo = slot >> 16, slot & 0xffff
        if n == 0 and hi != hi2["v"]:
            for r in (vB0, vB1, vC0, vC1):
                a(f"v_xor_b32 v{r}, 0x10000, v{r}")
            hi2["v"] = hi
        s_, ct = n >> 1, n & 1
        f = vBF + 16 * (st % 2) + 4 * n
        tag = f"r{st}_{n}"
        if ORDER[st][0] == "M":
            vb = vB0 if ct == 0 else vB1
            a.ldsop(f"ds_read_b64_tr_b16 v[{f}:{f+1}], v{vb} offset:{lo + s_*2048}", tag)
            a.ldsop(f"ds_read_b64_tr_b16 v[{f+2}:{f+3}], v{vb} offset:{lo + s_*2048 + 1024}", tag)
        else:
            a.ldsop(f"ds_read_b128 v[{f}:{f+3}], v{vC0+s_} offset:{lo + ct*4096}", tag)

    def p2_barrier(st):
        a.vmwait(f"B{st}")
        a("s_barrier")

    p2_barrier(0)
    stamp(a, 7)
    for n in range(4):
        p2_reads(0, n)
    dq = []
    a_next = 4
    allowed = 3
    for st in range(NST2):
        if st == 4:
            stamp(a, 9)
        if st == 11:
            stamp(a, 13)
        if st + 1 < NST2:
            if ch == 0:
                if st + 1 == H_ST:
                    a.vmwait("h")
                    write_flag(a, 2, 0)
                if st + 1 == E1_ST:
                    only_rg(a, 3, lambda: (poll_flags(a, 1), touch_A(a, 1)))
                if st + 1 == E2_ST:
                    only_rg(a, 3, lambda: (poll_flags(a, 2), touch_A(a, 2)))
            p2_barrier(st + 1)
            if st + 1 == E1_ST:
                allowed = 10
            if st + 1 == E2_ST:
                allowed = NST2 - 1
            while a_next <= min(allowed, st + NA - 1, NST2 - 1):
                dq.extend(p2_A(a_next)); a_next += 1
            if st >= 1 and st + 7 < NST2:
                dq.extend(p2_B(st + 7))
        g = sum(1 for x in dq if x[1] == f"A{st}")
        while any(x[1] == f"A{st}" for x in dq):
            code, tag = dq.pop(0); a.vmop(code, tag)
        a.vmwait(f"A{st}")
        per = (len(dq) + 3) // 4
        for n in range(4):
            s_, ct = n >> 1, n & 1
            f = vBF + 16 * (st % 2) + 4 * n
            ar = vAR + 8 * (st % NA) + 4 * s_
            ac = vAC + 16 * ct
            a.lgwait(f"r{st}_{n}")
            a(f"v_mfma_f32_32x32x16_bf16 v[{ac}:{ac+15}], v[{ar}:{ar+3}], v[{f}:{f+3}], v[{ac}:{ac+15}]")
            if st + 1 < NST2:
                p2_reads(st + 1, n)
            for _ in range(per):
                if dq:
                    code, tag = dq.pop(0)
                    a.vmop(code, tag)
        if st == 3:
            epi_loads()
    stamp(a, 10)
    a(f"""s_nop 15
    s_barrier
    s_lshl_b32 s{sT0}, s{sRG}, 11
    v_lshlrev_b32 v{vT}, 4, v{vLANE}
    v_add_u32 v{vT+1}, s{sT0}, v{vT}
    v_add_u32 v{vT+1}, {rt*32768}, v{vT+1}""")
    for q in range(4):
        for ct in range(2):
            r = vAC + 16 * ct + 4 * q
            a(f"ds_write_b128 v{vT+1}, v[{r}:{r+3}] offset:{q*8192 + ct*1024}")
    a(f"""s_lshl_b32 s{sT0}, s{sRG}, 13
    v_add_u32 v{vT+1}, s{sT0}, v{vT}
    v_add_u32 v{vT+1}, {rt*32768}, v{vT+1}
    s_waitcnt lgkmcnt(0)
    s_barrier""")
    R = vAR
    for src in range(4):
        for ct in range(2):
            r = R + 8 * src + 4 * ct
            a(f"ds_read_b128 v[{r}:{r+3}], v{vT+1} offset:{src*2048 + ct*1024}")
    a("s_waitcnt vmcnt(0)")
    a.vm = []
    D0, D1 = vDK, vDK + 2
    X = vEX; M_ = vEX + 8; S_ = vEX + 12; Y = vEX + 16
    a(f"v_lshlrev_b32 v{D0}, 16, v{D0}\nv_lshlrev_b32 v{D1}, 16, v{D1}\nv_lshlrev_b32 v{vT}, 1, v{vXO}")
    for i in range(4):
        a(f"v_rcp_f32 v{S_+i}, v{S_+i}")
    for k in range(8):
        a(f"v_lshlrev_b32 v{X+k}, 16, v{X+k}")
    for k in range(8):
        a(f"v_sub_f32 v{Y+k}, v{X+k}, v{M_+(k&3)}")

    def rnd():
        for k in range(0, 8, 2):
            a(f"v_cvt_pk_bf16_f32 v{vT+1}, v{Y+k}, v{Y+k+1}")
            a(f"v_lshlrev_b32 v{Y+k}, 16, v{vT+1}\nv_and_b32 v{Y+k+1}, 0xffff0000, v{vT+1}")
    rnd()
    for k in range(8):
        a(f"v_mul_f32 v{Y+k}, v{Y+k}, v{S_+(k&3)}")
    rnd()
    for k in range(8):
        a(f"v_mul_f32 v{Y+k}, v{Y+k}, v{D0 if k < 4 else D1}")
    rnd()
    for k in range(8):
        a(f"v_add_f32 v{Y+k}, v{Y+k}, v{X+k}")
    a("s_waitcnt lgkmcnt(0)")
    for k in range(8):
        a(f"v_add_f32 v{R+k}, v{R+k}, v{R+8+k}")
        a(f"v_add_f32 v{R+16+k}, v{R+16+k}, v{R+24+k}")
    for k in range(8):
        a(f"v_add_f32 v{R+k}, v{R+k}, v{R+16+k}")
    for k in range(8):
        a(f"v_add_f32 v{R+k}, v{R+k}, v{Y+k}")
    for ct in range(2):
        for i in range(4):
            ro = i * 2048 + ct * 128
            so, io = (ro // 4096) * 4096, ro % 4096
            a(f"s_mov_b32 s{sT0}, {so}")
            a(f"buffer_store_dword v{R+4*ct+i}, v{vT}, s[{SO}:{SO+3}], s{sT0} offen offset:{io}")
    if ch == 0:
        lab = a.newlab("EP")
        a(f"""s_cmp_eq_u32 s{sRB2}, 31
        s_cbranch_scc0 {lab}
        s_cmp_eq_u32 s{sCB}, 0
        s_cbranch_scc0 {lab}
        s_cmp_eq_u32 s{sW}, 0
        s_cbranch_scc0 {lab}
        v_mov_b32 v4, s{sTAG}
        v_mov_b32 v3, 0
        s_mov_b32 s{sT0}, {WS_EPOCH}
        s_mov_b64 exec, 1
        buffer_store_dword v4, v3, s[{SWS}:{SWS+3}], s{sT0} offen sc1
        s_mov_b64 exec, -1""")
        a.label(lab)
    stamp(a, 11)
    if STAMPS:
        a("s_waitcnt vmcnt(0)")
        stamp(a, 12)
    stamp_flush(a, 14)
    a("s_endpgm")


if __name__ == "__main__":
    main(sys.argv[1] if len(sys.argv) > 1 else "cdna_kernels/" + NAME + ".s")
```

```python
import sys, math, struct, os

NAME = "parallel_sum__ssm_conv_s5__glu_gated_geglu__prompt"
KNAME = NAME + "_kernel"

E = lambda k, d: int(os.environ.get(k, str(d)))
STAMPS = E("STAMPS", 0)
SPIN_MAX = E("SPIN_MAX", 200000)
CODE_PREFETCH = E("CODE_PREFETCH", 1)
W2_PREFETCH = E("W2_PREFETCH", 1)
FILL = E("FILL", 7)
FILL0 = E("FILL0", 14)
SW_DELAY = E("SW_DELAY", 8)
NPRE = E("NPRE", 2)
DMA_RATE = E("DMA_RATE", 0)
PACE0 = E("PACE0", 2)
PACE1 = E("PACE1", 3)
PRIO = E("PRIO", 0)
W2_AT = E("W2_AT", 4)
W2_G0 = E("W2_G0", 8)
W2_P1 = E("W2_P1", 2)
W2_P2 = E("W2_P2", 9)
LOOK = E("LOOK", 3)
A_TOUCH = E("A_TOUCH", 1)
E2_ST = E("E2_ST", 9)
E1_ST = E("E1_ST", 3)
H_ST = E("H_ST", 3)
X_NOMFMA = E("X_NOMFMA", 0)
X_NOREAD = E("X_NOREAD", 0)

NKS = 150
RT_STRIDE = NKS * 1024
WS_AGG = 0xA00000
WS_STAT = 0xA40000
WS_CS = 0xA80000
WS_FLG = 0xB00000
WS_EPOCH = 0xB10000
WS_DUMMY = 0xB20000
WS_DBG = 0xF00000
WS_SIZE = 0x10000000

LOG2E = 1.4426950408889634
SLOT = 32768
NSLOT = 4
SCR = NSLOT * SLOT
SCR_T = SCR
SCR_CS = 16384
SCR_ST = 17408
SCR_ES = 18432
LDS_BYTES = 163840
NST2 = 19
NBS, NAS = 3, 5
B_BASE, A_BASE = 0, 49152


def f2u(x):
    return struct.unpack("<I", struct.pack("<f", x))[0]


class A:
    def __init__(self):
        self.l = []
        self.nlab = 0
        self.vm = []
        self.nvm = 0
        self.lg = []
        self.fillq = []

    def __call__(self, s):
        for line in s.strip("\n").split("\n"):
            line = line.strip()
            if not line:
                continue
            if X_NOMFMA and line.startswith("v_mfma"):
                continue
            self.l.append("  " + line)

    def label(self, name):
        self.l.append(name + ":")

    def newlab(self, p="L"):
        self.nlab += 1
        return f"{p}_{self.nlab}"

    def vmop(self, s, tag, maybe=False):
        self(s)
        if not maybe:
            self.vm.append(tag)
            self.nvm += 1

    def vmwait(self, tag):
        idx = [i for i, t in enumerate(self.vm) if t == tag]
        if not idx:
            return
        n = len(self.vm) - 1 - idx[-1]
        assert n <= 63, n
        self(f"s_waitcnt vmcnt({n})")
        self.vm = self.vm[idx[-1] + 1:]

    def vmwait_all(self):
        self("s_waitcnt vmcnt(0)")
        self.vm = []

    def ldsop(self, s, tag):
        if X_NOREAD and tag[0] in "xwr":
            return
        self(s)
        self.lg.append(tag)
        assert len(self.lg) <= 30

    def lgwait(self, tag):
        idx = [i for i, t in enumerate(self.lg) if t == tag]
        if not idx:
            return
        n = len(self.lg) - 1 - idx[-1]
        n = min(n, 15)
        self(f"s_waitcnt lgkmcnt({n})")
        self.lg = self.lg[len(self.lg) - n:] if n else []

    def lgwait_all(self):
        self("s_waitcnt lgkmcnt(0)")
        self.lg = []

    def fill(self, n):
        if E("X_NOFILL", 0):
            self.fillq = [at for at in self.fillq if at[0] in ("vm",) or (at[0] == "call" and False)]
        while n > 0 and self.fillq:
            at = self.fillq.pop(0)
            k = at[0]
            if k == "v":
                self(at[1]); n -= 1
            elif k == "lds":
                self.ldsop(at[1], at[2]); n -= 1
            elif k == "lgw":
                self.lgwait(at[1])
            elif k == "vm":
                self.vmop(at[1], at[2], at[3]); n -= 1
            elif k == "call":
                at[1]()
            elif k == "calln":
                at[1](); n -= at[2]

    def fill_all(self):
        self.fill(10 ** 9)

    def text(self):
        return "\n".join(self.l) + "\n"


class Q:
    def __init__(self):
        self.q = []

    def __call__(self, s):
        for line in s.strip("\n").split("\n"):
            line = line.strip()
            if line:
                self.q.append(("v", line))

    def ldsop(self, s, tag):
        self.q.append(("lds", s, tag))

    def lgwait(self, tag):
        self.q.append(("lgw", tag))

    def vmop(self, s, tag, maybe=False):
        self.q.append(("vm", s, tag, maybe))


def srd(a, s, ptr_lo, nbytes):
    a(f"""s_mov_b32 s{s}, s{ptr_lo}
    s_and_b32 s{s+1}, s{ptr_lo+1}, 0xffff
    s_mov_b32 s{s+2}, {nbytes}
    s_mov_b32 s{s+3}, 0x20000""")


def rne_bf16(a, v):
    a(f"v_cvt_pk_bf16_f32 v{v}, v{v}, v{v}\nv_lshlrev_b32 v{v}, 16, v{v}")


def wave_sum(a, v, tmp_s):
    for ctrl in ("row_shr:1", "row_shr:2", "row_shr:4", "row_shr:8"):
        a(f"s_nop 1\nv_add_f32_dpp v{v}, v{v}, v{v} {ctrl} row_mask:0xf bank_mask:0xf")
    a(f"s_nop 1\nv_add_f32_dpp v{v}, v{v}, v{v} row_bcast:15 row_mask:0xa bank_mask:0xf")
    a(f"s_nop 1\nv_add_f32_dpp v{v}, v{v}, v{v} row_bcast:31 row_mask:0xc bank_mask:0xf")
    a(f"s_nop 1\nv_readlane_b32 s{tmp_s}, v{v}, 63")


SX, SS, SM, SWS, SWD, SC, SO, ST = 4, 8, 12, 16, 20, 24, 28, 32
sW, sRG, sRB, sCG = 36, 37, 38, 39
sKC0, sU0B, sDUM, sTAG = 72, 73, 74, 75
sT0, sT1, sT2, sT3, sT4, sT5 = 76, 77, 78, 79, 80, 81
sMX, sMS, sMU, sM1 = 82, 83, 84, 85
sCSM = 86
sRB2, sCB, sRT, sCT = 87, 88, 89, 90
sSPIN = 91
sEX = 92
sMASK = 94
sAOFF, sLW, s3RG, s2RG = 96, 97, 98, 99
sXB, sHPOS = 100, 101
SM2 = 68
STAMP0 = 40
P_X, P_LRE, P_LIM, P_BRE, P_BIM, P_CRE, P_CIM, P_LDT = 40, 42, 44, 46, 48, 50, 52, 54
P_DSK, P_BX, P_WG, P_WU, P_WD, P_OUT, P_DBG, P_WS = 56, 58, 60, 62, 64, 66, 68, 70

vLANE = 1
vXA = 4
vWS = 8
vWM = 8
vW1 = 12
vDX0, vDX1, vDS, vDM = 13, 14, 15, 16
vDS1 = 47
vT = 17
ONES = 28
vAr, vAi, vKr, vKi, vA16r, vA16i, vA128r, vA128i = 32, 33, 34, 35, 36, 37, 38, 39
vRINV, vNM = 40, 41
vDA, vDB, vDC0, vDC1 = 42, 43, 44, 45
vK1, vCA = 46, 47
vFR = 48
vACC = 64
vACC2 = 96
vXF = 128
CSACC = 96
GATH0 = 112
CS1ACC = 128
GATH1 = 144
JUNK = 255


PSTAMP = E("PSTAMP", 0)


def pstamp(a, i):
    if PSTAMP:
        a(f"s_memrealtime s[{sEX}:{sEX+1}]\ns_waitcnt lgkmcnt(0)\nv_mov_b32 v{232+i}, s{sEX}")


DBGD = E("DBGD", -1)


P1DBG = E("P1DBG", 0)


def stamp(a, i, force=False):
    if STAMPS and P1DBG in (4, 5) and i >= 4:
        if i == 4 and False:
            pass
        return
    if STAMPS and P1DBG in (4, 5) and i == 1:
        a(f"s_memtime s[{STAMP0+2*4}:{STAMP0+2*4+1}]")
    if STAMPS and P1DBG == 3 and i in (1, 2, 4):
        j = {1: 9, 2: 13, 4: 6}[i]
        a(f"s_memtime s[{STAMP0+2*j}:{STAMP0+2*j+1}]")
    if STAMPS:
        if i == 3:
            return
        if P1DBG and i in (6, 9, 13) and not force:
            return
        a(f"s_memrealtime s[{STAMP0+2*i}:{STAMP0+2*i+1}]")
        if i == 0:
            a(f"s_mov_b32 s{STAMP0+6}, s{sMASK}\ns_mov_b32 s{STAMP0+7}, s{sMASK+1}")


def stamp_flush(a, n):
    if not STAMPS:
        return
    a("s_waitcnt lgkmcnt(0)")
    a(f"s_lshl_b32 s{sT0}, s2, 3\ns_add_u32 s{sT0}, s{sT0}, s{sW}\ns_lshl_b32 s{sT0}, s{sT0}, 6\ns_add_u32 s{sT0}, s{sT0}, {WS_DBG}")
    a("v_mov_b32 v3, 0")
    for i in range(n):
        a(f"v_mov_b32 v2, s{STAMP0+2*i}")
        a(f"buffer_store_dword v2, v3, s[{SWS}:{SWS+3}], s{sT0} offen offset:{4*i}")
    if DBGD >= 0:
        lab = a.newlab("DD")
        a(f"""s_cmp_eq_u32 s2, {DBGD}
        s_cbranch_scc0 {lab}
        s_cmp_eq_u32 s{sW}, {E("DBGW", 0)}
        s_cbranch_scc0 {lab}
        s_load_dwordx2 s[{sT2}:{sT3}], s[0:1], 112
        s_waitcnt lgkmcnt(0)
        s_mov_b32 s{ST}, s{sT2}
        s_and_b32 s{ST+1}, s{sT3}, 0xffff
        s_mov_b32 s{ST+2}, 256
        s_mov_b32 s{ST+3}, 0x20000
        v_mov_b32 v3, 0""")
        for i in range(n):
            a(f"v_mov_b32 v2, s{STAMP0+2*i}")
            a(f"buffer_store_dword v2, v3, s[{ST}:{ST+3}], 0 offen offset:{4*i}")
        a.label(lab)


def dma_p0(s, ch):
    slot = (s % NSLOT) * SLOT
    it = []
    if ch == 1:
        pre = f"""s_add_u32 s{sT0}, s{sKC0}, {s}
        s_and_b32 s{sT0}, s{sT0}, 7
        s_lshl_b32 s{sT3}, s{sT0}, 7
        s_add_u32 s{sT4}, s{sT3}, 16384
        """
        for i in range(4):
            vd = vDX0 if i % 2 == 0 else vDX1
            so = sT3 if i < 2 else sT4
            it.append(((pre if i == 0 else "") + f"""s_add_u32 m0, s{sLW}, {slot + i*1024}
            s_nop 0
            buffer_load_dwordx4 v{vd}, s[{SX}:{SX+3}], s{so} offen lds""", f"st{s}"))
    else:
        pre = f"""s_add_u32 s{sT0}, s{sKC0}, {s}
        s_and_b32 s{sT0}, s{sT0}, 7
        s_lshl_b32 s{sT3}, s{sT0}, 7
        s_mul_i32 s{sT2}, s{sT0}, {64*2752}
        s_add_u32 s{sT2}, s{sT2}, s{sU0B}
        """
        for i in range(2):
            vd = vDS if i == 0 else vDS1
            it.append(((pre if i == 0 else "") + f"""s_add_u32 m0, s{sMS}, {slot + i*1024}
            s_nop 0
            buffer_load_dwordx4 v{vd}, s[{SS}:{SS+3}], s{sT3} offen lds""", f"st{s}"))
        for mat in range(2):
            sr = SM if mat == 0 else SM2
            it.append((f"""s_add_u32 m0, s{sM1}, {slot + 24576 + mat*4096}
            s_nop 0
            buffer_load_dwordx4 v{vDM}, s[{sr}:{sr+3}], s{sT2} offen lds""", f"st{s}"))
    return it


def dma_p1(t, ch):
    g = 8 + t
    slot = (g % NSLOT) * SLOT
    it = []
    c2 = ch
    pre = f"""s_add_u32 s{sT0}, s{sKC0}, {2*t+c2}
    s_and_b32 s{sT0}, s{sT0}, 7
    s_mul_i32 s{sT2}, s{sT0}, {64*2752}
    s_add_u32 s{sT2}, s{sT2}, s{sU0B}
    s_add_u32 s{sT2}, s{sT2}, 64
    s_add_u32 s{sT3}, s{sT2}, s{sDUM}
    """
    for mat in range(2):
        sr = SM if mat == 0 else SM2
        for j in range(2):
            so = sT2 if j == 0 else sT3
            it.append(((pre if (mat == 0 and j == 0) else "") + f"""s_add_u32 m0, s{sM1}, {slot + c2*16384 + j*8192 + mat*4096}
            s_nop 0
            buffer_load_dwordx4 v{vDM}, s[{sr}:{sr+3}], s{so} offen lds""", f"st{g}"))
    return it


ORDER = [("M", i) for i in range(11)] + [("S", j) for j in range(8)]


NA = 6
vAR = 128
vAG = 42


def p2_A(st):
    kind, ix = ORDER[st]
    ks0 = 8 * ix if kind == "M" else 86 + 8 * ix
    r = vAR + 8 * (st % NA)
    it = []
    if (kind, ix) == ("M", 10):
        first = f"""s_mov_b32 s{sT1}, {ks0*1024}
        s_cmp_eq_u32 s{sRG}, 3
        s_cselect_b32 s{sT1}, {(ks0-2)*1024}, s{sT1}"""
    else:
        first = f"s_mov_b32 s{sT1}, {ks0*1024}"
    it.append((first + f"""
    buffer_load_dwordx4 v[{r}:{r+3}], v{vDA}, s[{SWS}:{SWS+3}], s{sT1} offen sc1""", f"A{st}"))
    it.append((f"""buffer_load_dwordx4 v[{r+4}:{r+7}], v{vDA}, s[{SWS}:{SWS+3}], s{sT1} offen offset:1024 sc1""", f"A{st}"))
    return it


def p2_B(st):
    slot = (st % 8) * 16384
    kind, ix = ORDER[st]
    it = []
    if kind == "M":
        if ix < 3:
            reg, c = s3RG, 3 * 4 * ix
        elif ix == 3:
            reg, c = s2RG, 2 * 12 + 11
        elif ix < 7:
            reg, c = s3RG, 3 * 4 * (ix - 4) + 1
        elif ix == 7:
            reg, c = s2RG, 2 * 12 + 11 + 1
        elif ix < 10:
            reg, c = s3RG, 3 * 4 * (ix - 8) + 2
        else:
            reg, c = sAOFF, 3 * 4 * (ix - 8) + 2
        for i in range(2):
            it.append((f"""s_add_u32 s{sT1}, s{reg}, {c*32768 + i*8192}
            s_add_u32 m0, s{sRT}, {slot + i*1024}
            s_nop 0
            buffer_load_dwordx4 v{vDB}, s[{SWD}:{SWD+3}], s{sT1} offen lds""", f"B{st}"))
    else:
        j = ix
        for i in range(2):
            vd = vDC0 if i % 2 == 0 else vDC1
            it.append((f"""s_add_u32 s{sT1}, s{sXB}, {j*128 + i*8192}
            s_add_u32 m0, s{sRT}, {slot + i*1024}
            s_nop 0
            buffer_load_dwordx4 v{vd}, s[{SC}:{SC+3}], s{sT1} offen lds""", f"B{st}"))
    return it


def main(out_path):
    a = A()
    gen(a)
    ref = open("cdna_kernels/" + NAME + ".s.ref").read()
    head = []
    for line in ref.splitlines():
        if line.startswith(";") and "@launch" not in line and "Override" not in line and "grid=ceil" not in line:
            head.append(line)
        elif not line.startswith(";"):
            break
    txt = "\n".join(head) + "\n"
    txt += f"; @launch grid=(256,1,1) block=(512,1,1) lds={LDS_BYTES}\n"
    txt += '.amdgcn_target "amdgcn-amd-amdhsa--gfx950"\n.text\n'
    txt += f".globl {KNAME}\n.p2align 8\n.type {KNAME},@function\n{KNAME}:\n"
    txt += a.text()
    txt += f""".section .rodata,"a"
.p2align 6
.amdhsa_kernel {KNAME}
  .amdhsa_next_free_vgpr 256
  .amdhsa_next_free_sgpr 102
  .amdhsa_accum_offset 256
  .amdhsa_group_segment_fixed_size 0
  .amdhsa_kernarg_size 128
  .amdhsa_user_sgpr_count 2
  .amdhsa_user_sgpr_kernarg_segment_ptr 1
  .amdhsa_system_sgpr_workgroup_id_x 1
.end_amdhsa_kernel
"""
    open(out_path, "w").write(txt)


def flag_load(a, ev, rb_s, vdst, tag):
    a(f"""s_lshl_b32 s{sT0}, s{rb_s}, 8
    s_add_u32 s{sT0}, s{sT0}, {WS_FLG + ev*64}
    v_and_b32 v{vdst}, 15, v{vLANE}
    v_lshlrev_b32 v{vdst}, 2, v{vdst}""")
    a.vmop(f"buffer_load_dword v{vdst}, v{vdst}, s[{SWS}:{SWS+3}], s{sT0} offen sc1", tag)


PRG = (252, 253, 254)


FLG_OFF = {0: 0, 1: 512, 2: 1024}


def poll_flags(a, ev, tracked=False):
    lp, ok = a.newlab("PF"), a.newlab("PFOK")
    wide = (ev == 1)
    a(f"""s_lshr_b32 s{sT0}, s{sRB2}, 1
    s_lshl_b32 s{sT0}, s{sT0}, 11
    s_add_u32 s{sT0}, s{sT0}, {WS_FLG + FLG_OFF[ev]}
    v_lshlrev_b32 v{vT}, {3 if wide else 2}, v{vLANE}
    s_mov_b32 s{sSPIN}, 0""")
    regs = [(248, 249), (250, 251), (252, 253)]
    ld = (lambda r: f"buffer_load_dwordx2 v[{r[0]}:{r[1]}], v{vT}, s[{SWS}:{SWS+3}], s{sT0} offen sc1") if wide else \
         (lambda r: f"buffer_load_dword v{r[0]}, v{vT}, s[{SWS}:{SWS+3}], s{sT0} offen sc1")
    for r in regs:
        a(ld(r) + "\ns_sleep 2")
    a.label(lp)
    for r in regs:
        nx = a.newlab("PFN")
        a(f"""s_waitcnt vmcnt(2)
        v_cmp_ne_u32 vcc, s{sTAG}, v{r[0]}
        s_add_u32 s{sSPIN}, s{sSPIN}, 1""")
        if wide:
            a(f"""s_cbranch_vccnz {nx}
            v_cmp_ne_u32 vcc, s{sTAG}, v{r[1]}
            s_nop 0
            s_cbranch_vccz {ok}""")
            a.label(nx)
        else:
            a(f"s_cbranch_vccz {ok}")
        a(ld(r))
    a(f"""s_cmp_gt_u32 s{sSPIN}, {SPIN_MAX}
    s_cbranch_scc0 {lp}""")
    a.label(ok)
    if tracked:
        a.vm = ["poll", "poll"]
        a.nvm += 2


def touch_A(a, ev):
    if not A_TOUCH:
        return
    k0, nl = {0: (0, 64), 1: (32, 108), 2: (86, 128)}[ev]
    a(f"""s_lshr_b32 s{sT0}, s{sCB}, 2
    s_lshl_b32 s{sT1}, s{sRB2}, 1
    s_add_u32 s{sT0}, s{sT0}, s{sT1}
    s_mul_i32 s{sT0}, s{sT0}, {RT_STRIDE}
    s_and_b32 s{sT1}, s{sCB}, 3
    s_mul_i32 s{sT1}, s{sT1}, {nl*128}
    s_add_u32 s{sT0}, s{sT0}, s{sT1}
    s_add_u32 s{sT0}, s{sT0}, {k0*1024}
    v_lshlrev_b32 v{vT+1}, 7, v{vLANE}
    buffer_load_dword v{JUNK}, v{vT+1}, s[{SWS}:{SWS+3}], s{sT0} offen sc1""")
    if nl > 64:
        a(f"s_add_u32 s{sT0}, s{sT0}, 8192")
        if nl < 128:
            a(f"""v_cmp_gt_u32 vcc, {nl-64}, v{vLANE}
            s_and_saveexec_b64 s[{sEX}:{sEX+1}], vcc
            buffer_load_dword v{JUNK}, v{vT+1}, s[{SWS}:{SWS+3}], s{sT0} offen sc1
            s_mov_b64 exec, s[{sEX}:{sEX+1}]""")
        else:
            a(f"buffer_load_dword v{JUNK}, v{vT+1}, s[{SWS}:{SWS+3}], s{sT0} offen sc1")


def write_flag(a, ev, ch):
    sh = 5 if ev == 1 else 4
    a(f"""s_lshl_b32 s{sT0}, s{sRB}, 11
    s_lshl_b32 s{sT1}, s{sCG}, {sh}
    s_add_u32 s{sT0}, s{sT0}, s{sT1}
    s_lshl_b32 s{sT1}, s{sW if ev == 1 else sRG}, 2
    s_add_u32 s{sT0}, s{sT0}, s{sT1}
    s_add_u32 s{sT0}, s{sT0}, {WS_FLG + FLG_OFF[ev]}
    v_mov_b32 v{vT+9}, 0
    v_mov_b32 v{vT+10}, s{sTAG}
    s_mov_b64 s[{sEX}:{sEX+1}], exec
    s_mov_b64 exec, 1""")
    a.vmop(f"buffer_store_dword v{vT+10}, v{vT+9}, s[{SWS}:{SWS+3}], s{sT0} offen sc1", "flag")
    a(f"s_mov_b64 exec, s[{sEX}:{sEX+1}]")


def only_rg(a, rg, fn):
    lab = a.newlab("RG")
    a(f"s_cmp_eq_u32 s{sRG}, {rg}\ns_cbranch_scc0 {lab}")
    lg = list(a.lg)
    fn()
    a.label(lab)
    a.lg = lg


def colsum_mfma(a, wf0, wf1, accreg, first=False):
    l1, l2 = a.newlab("CS"), a.newlab("CS")
    c = "0" if first else f"v[{accreg}:{accreg+15}]"
    a(f"""s_cmp_eq_u32 s{sCSM}, 0
    s_cbranch_scc1 {l2}
    s_cmp_eq_u32 s{sCSM}, 1
    s_cbranch_scc0 {l1}
    v_mfma_f32_32x32x16_bf16 v[{accreg}:{accreg+15}], v[{ONES}:{ONES+3}], v[{wf0}:{wf0+3}], {c}
    s_branch {l2}""")
    a.label(l1)
    a(f"v_mfma_f32_32x32x16_bf16 v[{accreg}:{accreg+15}], v[{ONES}:{ONES+3}], v[{wf1}:{wf1+3}], {c}")
    a.label(l2)


def colsum_store(a, accreg, unit, koff=0):
    a(f"""s_nop 7
    s_nop 7
    s_add_u32 s{sT1}, s{sKC0}, {koff}
    s_and_b32 s{sT1}, s{sT1}, 7
    s_lshl_b32 s{sT0}, s{sCG}, 3
    s_add_u32 s{sT0}, s{sT0}, s{sT1}
    s_lshl_b32 s{sT0}, s{sT0}, 11
    s_sub_u32 s{sT1}, s{sCSM}, 1
    s_lshl_b32 s{sT1}, s{sT1}, 8
    s_add_u32 s{sT0}, s{sT0}, s{sT1}
    s_add_u32 s{sT0}, s{sT0}, {WS_CS + unit*512}
    s_lshl_b32 s{sT1}, s2, 11
    s_add_u32 s{sT1}, s{sT1}, {WS_DUMMY}
    s_cmp_eq_u32 s{sCSM}, 0
    s_cselect_b32 s{sT0}, s{sT1}, s{sT0}
    v_mov_b32 v{accreg+1}, s{sTAG}
    v_lshlrev_b32 v{accreg+2}, 3, v{vLANE}
    s_mov_b64 s[{sEX}:{sEX+1}], exec
    s_mov_b64 exec, 0xffffffff""")
    a.vmop(f"buffer_store_dwordx2 v[{accreg}:{accreg+1}], v{accreg+2}, s[{SWS}:{SWS+3}], s{sT0} offen sc1", "cs")
    a(f"s_mov_b64 exec, s[{sEX}:{sEX+1}]")


def gather_loads(a, part, dst, atmp, tracked=False):
    l1, l2 = a.newlab("G"), a.newlab("G")
    a(f"""s_cmp_lt_u32 s{sRG}, 2
    s_cbranch_scc0 {l1}
    s_lshl_b32 s{sT0}, s{sCG}, 14
    s_add_u32 s{sT0}, s{sT0}, {WS_CS + part*1024}
    s_lshl_b32 s{sT1}, s{sRG}, 9
    s_add_u32 s{sT0}, s{sT0}, s{sT1}
    v_lshlrev_b32 v{atmp}, 3, v{vLANE}""")
    for j in range(8):
        so, io = (j * 2048 // 4096) * 4096, (j * 2048) % 4096
        a(f"s_add_u32 s{sT1}, s{sT0}, {so}")
        a(f"buffer_load_dwordx2 v[{dst+2*j}:{dst+2*j+1}], v{atmp}, s[{SWS}:{SWS+3}], s{sT1} offen offset:{io} sc1")
    a(f"s_branch {l2}")
    a.label(l1)
    nd = 8
    if part == 0:
        a(f"""s_lshl_b32 s{sT0}, s{sRB}, 11
        s_sub_u32 s{sT1}, s{sRG}, 2
        s_lshl_b32 s{sT1}, s{sT1}, 10
        s_add_u32 s{sT0}, s{sT0}, s{sT1}
        s_add_u32 s{sT0}, s{sT0}, {WS_STAT}
        v_lshlrev_b32 v{atmp}, 4, v{vLANE}
        buffer_load_dwordx4 v[{dst}:{dst+3}], v{atmp}, s[{SWS}:{SWS+3}], s{sT0} offen sc1""")
        nd = 7
    a(f"s_mov_b32 s{sT0}, 0x40000000")
    for j in range(nd):
        a(f"buffer_load_dword v{dst+8+j}, v{vLANE}, s[{SWS}:{SWS+3}], s{sT0} offen")
    a.label(l2)
    if tracked:
        a.vm += ["g"] * 8
        a.nvm += 8


def gather_finish(a, part, dst, nyounger, atmp):
    lr, l1, l2, lok, lok2, l0 = [a.newlab("GF") for _ in range(6)]
    a(f"s_mov_b32 s{sSPIN}, 0")
    a(f"s_waitcnt vmcnt({nyounger})")
    a(f"s_branch {l0}")
    a.label(lr)
    a("s_waitcnt vmcnt(0)")
    a.label(l0)
    a(f"""s_cmp_lt_u32 s{sRG}, 2
    s_cbranch_scc0 {l1}
    s_mov_b64 s[{sMASK}:{sMASK+1}], 0""")
    for j in range(8):
        a(f"""v_cmp_ne_u32 vcc, s{sTAG}, v{dst+2*j+1}
        s_or_b64 s[{sMASK}:{sMASK+1}], s[{sMASK}:{sMASK+1}], vcc""")
    a(f"""s_cmp_eq_u64 s[{sMASK}:{sMASK+1}], 0
    s_cbranch_scc1 {lok}
    s_add_u32 s{sSPIN}, s{sSPIN}, 1
    s_cmp_gt_u32 s{sSPIN}, {SPIN_MAX}
    s_cbranch_scc1 {lok}""")
    gather_loads(a, part, dst, atmp)
    a(f"s_branch {lr}")
    a.label(lok)
    a(f"""v_add_f32 v{dst}, v{dst}, v{dst+2}
    v_add_f32 v{dst+4}, v{dst+4}, v{dst+6}
    v_add_f32 v{dst+8}, v{dst+8}, v{dst+10}
    v_add_f32 v{dst+12}, v{dst+12}, v{dst+14}
    v_add_f32 v{dst}, v{dst}, v{dst+4}
    v_add_f32 v{dst+8}, v{dst+8}, v{dst+12}
    v_add_f32 v{dst}, v{dst}, v{dst+8}
    s_lshl_b32 s{sT0}, s{sRG}, 8
    s_add_u32 s{sT0}, s{sT0}, {SCR}
    v_lshlrev_b32 v{atmp}, 2, v{vLANE}
    v_add_u32 v{atmp}, s{sT0}, v{atmp}
    ds_write_b32 v{atmp}, v{dst} offset:{SCR_CS + part*512}
    s_branch {l2}""")
    a.label(l1)
    if part == 0:
        a(f"""v_cmp_ne_u32 vcc, s{sTAG}, v{dst+1}
        s_mov_b64 s[{sMASK}:{sMASK+1}], vcc
        v_cmp_ne_u32 vcc, s{sTAG}, v{dst+3}
        s_or_b64 s[{sMASK}:{sMASK+1}], s[{sMASK}:{sMASK+1}], vcc
        s_cmp_eq_u64 s[{sMASK}:{sMASK+1}], 0
        s_cbranch_scc1 {lok2}
        s_add_u32 s{sSPIN}, s{sSPIN}, 1
        s_cmp_gt_u32 s{sSPIN}, {SPIN_MAX}
        s_cbranch_scc1 {lok2}""")
        gather_loads(a, part, dst, atmp)
        a(f"s_branch {lr}")
        a.label(lok2)
        a(f"""v_rcp_f32 v{dst+2}, v{dst+2}
        v_sub_f32 v{dst+3}, 0, v{dst}
        s_sub_u32 s{sT0}, s{sRG}, 2
        s_lshl_b32 s{sT0}, s{sT0}, 9
        s_add_u32 s{sT0}, s{sT0}, {SCR}
        v_lshlrev_b32 v{atmp}, 3, v{vLANE}
        v_add_u32 v{atmp}, s{sT0}, v{atmp}
        ds_write_b64 v{atmp}, v[{dst+2}:{dst+3}] offset:{SCR_ST}""")
    a.label(l2)
    a.lgwait_all()


def row_stats_M(q, tmp):
    q(f"""v_and_b32 v{tmp}, 31, v{vLANE}
    v_bfe_u32 v{tmp+1}, v{tmp}, 2, 1
    v_lshlrev_b32 v{tmp+1}, 4, v{tmp+1}
    v_lshrrev_b32 v{tmp+2}, 3, v{tmp}
    v_lshl_add_u32 v{tmp+1}, v{tmp+2}, 2, v{tmp+1}
    v_and_b32 v{tmp+2}, 3, v{tmp}
    v_add_u32 v{tmp+1}, v{tmp+1}, v{tmp+2}
    v_lshlrev_b32 v{tmp+2}, 5, v{vRGV}
    v_add_u32 v{tmp+1}, v{tmp+2}, v{tmp+1}
    v_lshlrev_b32 v{tmp+1}, 3, v{tmp+1}
    v_add_u32 v{tmp+1}, {SCR}, v{tmp+1}""")
    q.ldsop(f"ds_read_b64 v[{vRINV}:{vRINV+1}], v{tmp+1} offset:{SCR_ST}", "rs")
    q.lgwait("rs")


vRGV = 2


def gelu_epi(q, acc, pos_s, cs_off, tagname, csr, T, maybe=False):
    K0 = -2.0 * math.sqrt(2.0 / math.pi) * LOG2E
    K1c = K0 * 0.044715
    q(f"""v_mov_b32 v{vK1}, {f2u(K1c)}
    v_lshrrev_b32 v{vCA}, 5, v{vLANE}
    v_lshlrev_b32 v{vCA}, 4, v{vCA}
    v_add_u32 v{vCA}, {SCR + SCR_CS + cs_off}, v{vCA}""")
    cg_, cu_ = csr, csr + 4
    for qq in range(4):
        q.ldsop(f"ds_read_b128 v[{cg_}:{cg_+3}], v{vCA} offset:{qq*32}", "cs")
        q.ldsop(f"ds_read_b128 v[{cu_}:{cu_+3}], v{vCA} offset:{128 + qq*32}", "cs")
        q.lgwait("cs")
        rs = [4 * qq + i for i in range(4)]
        for i, r in enumerate(rs):
            q(f"v_fma_f32 v{acc+r}, v{vNM}, v{cg_+i}, v{acc+r}")
        for i, r in enumerate(rs):
            q(f"v_fma_f32 v{acc+16+r}, v{vNM}, v{cu_+i}, v{acc+16+r}")
        for i, r in enumerate(rs):
            q(f"v_mul_f32 v{acc+r}, v{acc+r}, v{vRINV}")
        for i, r in enumerate(rs):
            q(f"v_mul_f32 v{T+i}, v{acc+r}, v{acc+r}")
        for i, r in enumerate(rs):
            q(f"v_fmaak_f32 v{T+i}, v{vK1}, v{T+i}, {f2u(K0)}")
        for i, r in enumerate(rs):
            q(f"v_mul_f32 v{T+i}, v{T+i}, v{acc+r}")
        for i, r in enumerate(rs):
            q(f"v_exp_f32 v{T+i}, v{T+i}")
        for i, r in enumerate(rs):
            q(f"v_mul_f32 v{T+4+i}, v{acc+r}, v{acc+16+r}")
        for i, r in enumerate(rs):
            q(f"v_add_f32 v{T+i}, 1.0, v{T+i}")
        for i, r in enumerate(rs):
            q(f"v_rcp_f32 v{T+i}, v{T+i}")
        for i, r in enumerate(rs):
            q(f"v_mul_f32 v{T+4+i}, v{T+4+i}, v{vRINV}")
        for i, r in enumerate(rs):
            q(f"v_mul_f32 v{T+i}, v{T+i}, v{T+4+i}")
        q(f"v_cvt_pk_bf16_f32 v{acc+2*qq}, v{T}, v{T+1}\nv_cvt_pk_bf16_f32 v{acc+2*qq+1}, v{T+2}, v{T+3}")
    q(f"v_lshlrev_b32 v{T}, 4, v{vLANE}")
    q.vmop(f"buffer_store_dwordx4 v[{acc}:{acc+3}], v{T}, s[{SWS}:{SWS+3}], s{pos_s} offen sc1", tagname, maybe)
    q.vmop(f"buffer_store_dwordx4 v[{acc+4}:{acc+7}], v{T}, s[{SWS}:{SWS+3}], s{pos_s} offen offset:1024 sc1", tagname, maybe)


def s_params(q):
    vLre, vLim, vLdt = vT + 7, vT + 8, vT + 9
    t0, t1, t2, t3, t4, t5, t6 = [vT + i for i in range(7)]
    q(f"""v_lshlrev_b32 v{vLre}, 16, v{vA16r}
    v_lshlrev_b32 v{vLim}, 16, v{vA16i}
    v_lshlrev_b32 v{vLdt}, 16, v{vA128r}
    v_mul_f32 v{t0}, {f2u(LOG2E)}, v{vLdt}
    v_exp_f32 v{t0}, v{t0}
    s_nop 0""")
    rne_bf16(q, t0)
    q(f"""v_mul_f32 v{t1}, v{t0}, v{vLre}
    v_mul_f32 v{t2}, v{t0}, v{vLim}
    v_mul_f32 v{t1}, {f2u(LOG2E)}, v{t1}
    v_exp_f32 v{t1}, v{t1}
    v_mul_f32 v{t2}, {f2u(1.0/(2*math.pi))}, v{t2}
    v_rndne_f32 v{t3}, v{t2}
    v_sub_f32 v{t2}, v{t2}, v{t3}
    v_cos_f32 v{t3}, v{t2}
    v_sin_f32 v{t4}, v{t2}
    s_nop 0
    v_mul_f32 v{vAr}, v{t1}, v{t3}
    v_mul_f32 v{vAi}, v{t1}, v{t4}
    v_add_f32 v{t3}, -1.0, v{vAr}
    v_mul_f32 v{t4}, v{vLre}, v{vLre}
    v_fmac_f32 v{t4}, v{vLim}, v{vLim}
    v_rcp_f32 v{t4}, v{t4}
    v_mul_f32 v{t5}, v{t3}, v{vLre}
    v_fmac_f32 v{t5}, v{vAi}, v{vLim}
    v_mul_f32 v{t6}, v{vAi}, v{vLre}
    v_fma_f32 v{t6}, -v{t3}, v{vLim}, v{t6}
    v_add_f32 v{t4}, v{t4}, v{t4}
    v_mul_f32 v{vKr}, v{t5}, v{t4}
    v_mul_f32 v{vKi}, v{t6}, v{t4}
    v_mov_b32 v{vA16r}, v{vAr}
    v_mov_b32 v{vA16i}, v{vAi}""")

    def csq(r, i):
        q(f"""v_mul_f32 v{t0}, v{i}, v{i}
        v_mul_f32 v{t1}, v{r}, v{i}
        v_fma_f32 v{r}, v{r}, v{r}, -v{t0}
        v_add_f32 v{i}, v{t1}, v{t1}""")
    for _ in range(4):
        csq(vA16r, vA16i)
    q(f"v_mov_b32 v{vA128r}, v{vA16r}\nv_mov_b32 v{vA128i}, v{vA16i}")
    for _ in range(3):
        csq(vA128r, vA128i)


def s_epilogue1(q):
    zr = lambda j: vACC + j
    zi = lambda j: vACC + 16 + j
    T = vT
    CR, CI = T + 9, T + 10
    q(f"""v_and_b32 v{T}, 31, v{vLANE}
    v_lshlrev_b32 v{T+1}, 2, v{T}
    v_add_u32 v{T+1}, {SCR}, v{T+1}""")
    q.ldsop(f"ds_read_b32 v{CR}, v{T+1} offset:{SCR_CS}", "sc")
    q.ldsop(f"ds_read_b32 v{CI}, v{T+1} offset:{SCR_CS+128}", "sc")
    q(f"""v_lshrrev_b32 v{T+2}, 5, v{vLANE}
    v_lshlrev_b32 v{T+3}, 5, v{vRGV}
    v_lshl_add_u32 v{T+3}, v{T+2}, 4, v{T+3}
    v_lshlrev_b32 v{T+3}, 3, v{T+3}
    v_add_u32 v{T+3}, {SCR}, v{T+3}""")
    for qq in range(4):
        q.ldsop(f"ds_read_b128 v[4:7], v{T+3} offset:{SCR_ST + qq*32}", "sc")
        q.ldsop(f"ds_read_b128 v[8:11], v{T+3} offset:{SCR_ST + qq*32 + 16}", "sc")
        q.lgwait("sc")
        for i in range(4):
            j = 4 * qq + i
            ri, nm = 4 + 2 * i, 5 + 2 * i
            q(f"""v_fma_f32 v{zr(j)}, v{nm}, v{CR}, v{zr(j)}
            v_fma_f32 v{zi(j)}, v{nm}, v{CI}, v{zi(j)}
            v_mul_f32 v{zr(j)}, v{zr(j)}, v{ri}
            v_mul_f32 v{zi(j)}, v{zi(j)}, v{ri}""")
    cur, alt = (T + 4, T + 5), (T + 7, T + 8)
    q(f"v_mov_b32 v{cur[0]}, v{zr(0)}\nv_mov_b32 v{cur[1]}, v{zi(0)}")
    for j in range(1, 16):
        sr, si = cur
        nr, ni = alt
        q(f"""v_fma_f32 v{nr}, v{vAr}, v{sr}, v{zr(j)}
        v_fma_f32 v{ni}, v{vAr}, v{si}, v{zi(j)}
        v_fma_f32 v{nr}, -v{vAi}, v{si}, v{nr}
        v_fma_f32 v{ni}, v{vAi}, v{sr}, v{ni}""")
        cur, alt = alt, cur
    assert cur == (T + 7, T + 8) and (T + 7) % 2 == 0
    q(f"""v_lshlrev_b32 v{T+1}, 1, v{vRGV}
    v_add_u32 v{T+1}, v{T+1}, v{T+2}
    v_lshlrev_b32 v{T+1}, 8, v{T+1}
    v_lshl_add_u32 v{T+1}, v{T}, 3, v{T+1}
    v_add_u32 v{T+1}, {SCR}, v{T+1}""")
    q.ldsop(f"ds_write_b64 v{T+1}, v[{T+7}:{T+8}] offset:{SCR_ES}", "ew")


def s_publish(a):
    T = vT
    a(f"""s_waitcnt lgkmcnt(0)
    v_and_b32 v{T}, 31, v{vLANE}
    v_lshlrev_b32 v{T+1}, 3, v{T}
    v_add_u32 v{T+1}, {SCR}, v{T+1}
    ds_read_b64 v[4:5], v{T+1} offset:{SCR_ES}
    ds_read_b64 v[6:7], v{T+1} offset:{SCR_ES+256}
    ds_read_b64 v[8:9], v{T+1} offset:{SCR_ES+512}
    ds_read_b64 v[10:11], v{T+1} offset:{SCR_ES+768}
    s_waitcnt lgkmcnt(0)""")

    def step(er, ei):
        a(f"""v_fma_f32 v{T+2}, v{vA16r}, v4, v{er}
        v_fma_f32 v{T+3}, v{vA16r}, v5, v{ei}
        v_fma_f32 v{T+2}, -v{vA16i}, v5, v{T+2}
        v_fma_f32 v5, v{vA16i}, v4, v{T+3}
        v_mov_b32 v4, v{T+2}""")
    step(6, 7); step(8, 9); step(10, 11)
    a(f"""ds_read_b64 v[6:7], v{T+1} offset:{SCR_ES+1024}
    ds_read_b64 v[8:9], v{T+1} offset:{SCR_ES+1280}
    ds_read_b64 v[10:11], v{T+1} offset:{SCR_ES+1536}
    ds_read_b64 v[{T+5}:{T+6}], v{T+1} offset:{SCR_ES+1792}
    s_waitcnt lgkmcnt(0)""")
    assert (T + 5) % 2 == 0
    step(6, 7); step(8, 9); step(10, 11); step(T + 5, T + 6)
    a(f"""v_mov_b32 v6, v5
    v_mov_b32 v5, s{sTAG}
    v_mov_b32 v7, s{sTAG}
    s_lshl_b32 s{sT0}, s{sCG}, 5
    v_add_u32 v{T}, s{sT0}, v{T}
    v_lshlrev_b32 v{T}, 4, v{T}
    s_lshl_b32 s{sT0}, s{sRB}, 13
    s_add_u32 s{sT0}, s{sT0}, {WS_AGG}
    v_cmp_gt_u32 vcc, 32, v{vLANE}
    s_and_saveexec_b64 s[{sEX}:{sEX+1}], vcc
    buffer_store_dwordx4 v[4:7], v{T}, s[{SWS}:{SWS+3}], s{sT0} offen sc1
    s_mov_b64 exec, s[{sEX}:{sEX+1}]""")
    a.vm.append("pub"); a.nvm += 1


LBG = 160
HG = 192


def lookback_loads(a, tracked=True):
    a(f"""v_and_b32 v{vT+9}, 31, v{vLANE}
    s_lshl_b32 s{sT0}, s{sCG}, 5
    v_add_u32 v{vT+9}, s{sT0}, v{vT+9}
    v_lshlrev_b32 v{vT+9}, 4, v{vT+9}           ; p*16
    v_lshrrev_b32 v3, 5, v{vLANE}
    s_sub_u32 s{sT0}, s{sRB}, 1
    v_sub_u32 v3, s{sT0}, v3                    ; rb-1-hf
    v_lshlrev_b32 v3, 13, v3
    v_add_u32 v3, v3, v{vT+9}
    s_mov_b32 s{sT0}, {WS_AGG}
    v_mov_b32 v{vT+10}, 0x7ff00000""")
    for i in range(8):
        a(f"""v_subrev_u32 v{vT+9}, {i*16384}, v3
        v_cmp_gt_i32 vcc, 0, v{vT+9}
        s_nop 1
        v_cndmask_b32 v{vT+9}, v{vT+9}, v{vT+10}, vcc""")
        code = f"buffer_load_dwordx4 v[{LBG+4*i}:{LBG+4*i+3}], v{vT+9}, s[{SWS}:{SWS+3}], s{sT0} offen sc1"
        if tracked:
            a.vmop(code, "lb")
        else:
            a(code)


def s_work_atoms(a, q):
    zr = lambda j: vACC + j
    zi = lambda j: vACC + 16 + j
    T = vT
    L = LBG
    G = LBG
    EB = 192
    q(f"""v_and_b32 v{T+8}, 31, v{vLANE}
    v_lshlrev_b32 v{T}, 3, v{T+8}
    v_add_u32 v{T}, {SCR}, v{T}""")
    for s in range(8):
        q.ldsop(f"ds_read_b64 v[{EB+2*s}:{EB+2*s+1}], v{T} offset:{SCR_ES + s*256}", "se")
    q(f"""v_mul_f32 v{T+5}, v{vA128i}, v{vA128i}
    v_mul_f32 v{T+6}, v{vA128r}, v{vA128i}
    v_fma_f32 v{T+5}, v{vA128r}, v{vA128r}, -v{T+5}
    v_add_f32 v{T+6}, v{T+6}, v{T+6}""")

    def check():
        lp, got = a.newlab("LB"), a.newlab("LBG")
        a(f"s_mov_b32 s{sSPIN}, 0")
        a.vmwait("lb")
        a.label(lp)
        a(f"""v_lshrrev_b32 v{T+1}, 5, v{vLANE}
        s_sub_u32 s{sT0}, s{sRB}, 1
        v_sub_u32 v{T+1}, s{sT0}, v{T+1}
        s_mov_b64 s[{sMASK}:{sMASK+1}], 0""")
        for i in range(8):
            a(f"""v_cmp_ne_u32 vcc, s{sTAG}, v{L+4*i+1}
            v_cmp_ne_u32 s[{sEX}:{sEX+1}], s{sTAG}, v{L+4*i+3}
            s_or_b64 s[{sEX}:{sEX+1}], s[{sEX}:{sEX+1}], vcc
            v_cmp_le_i32 vcc, {2*i}, v{T+1}
            s_and_b64 s[{sEX}:{sEX+1}], s[{sEX}:{sEX+1}], vcc
            s_or_b64 s[{sMASK}:{sMASK+1}], s[{sMASK}:{sMASK+1}], s[{sEX}:{sEX+1}]""")
        a(f"""s_cmp_eq_u64 s[{sMASK}:{sMASK+1}], 0
        s_cbranch_scc1 {got}
        s_add_u32 s{sSPIN}, s{sSPIN}, 1
        s_cmp_gt_u32 s{sSPIN}, {SPIN_MAX}
        s_cbranch_scc1 {got}""")
        lookback_loads(a, tracked=False)
        a(f"s_waitcnt vmcnt(0)\ns_branch {lp}")
        a.label(got)
    q.q.append(("call", check))
    cr, ci = T + 1, T + 2
    q(f"v_mov_b32 v{cr}, v{L+28}\nv_mov_b32 v{ci}, v{L+30}")
    for i in range(6, -1, -1):
        q(f"""v_fma_f32 v{T+3}, v{T+5}, v{cr}, v{L+4*i}
        v_fma_f32 v{T+4}, v{T+5}, v{ci}, v{L+4*i+2}
        v_fma_f32 v{T+3}, -v{T+6}, v{ci}, v{T+3}
        v_fma_f32 v{ci}, v{T+6}, v{cr}, v{T+4}
        v_mov_b32 v{cr}, v{T+3}""")
    q(f"""v_mov_b32 v{T+3}, v{cr}
    v_mov_b32 v{T+4}, v{ci}
    s_nop 1
    v_permlane32_swap_b32 v{cr}, v{T+3}
    v_permlane32_swap_b32 v{ci}, v{T+4}
    s_nop 1
    v_fma_f32 v{cr}, v{vA128r}, v{T+3}, v{cr}
    v_fma_f32 v{ci}, v{vA128r}, v{T+4}, v{ci}
    v_fma_f32 v{cr}, -v{vA128i}, v{T+4}, v{cr}
    v_fma_f32 v{ci}, v{vA128i}, v{T+3}, v{ci}
    v_lshrrev_b32 v{T+5}, 5, v{vLANE}
    v_lshl_add_u32 v{T+5}, v{vRGV}, 1, v{T+5}""")
    q.lgwait("se")
    for s in range(7):
        def seg(s=s):
            a(f"""v_fma_f32 v{T+3}, v{vA16r}, v{cr}, v{EB+2*s}
            v_fma_f32 v{T+4}, v{vA16r}, v{ci}, v{EB+2*s+1}
            v_cmp_lt_u32 vcc, {s}, v{T+5}
            v_fma_f32 v{T+3}, -v{vA16i}, v{ci}, v{T+3}
            v_fma_f32 v{T+4}, v{vA16i}, v{cr}, v{T+4}
            v_cndmask_b32 v{cr}, v{cr}, v{T+3}, vcc
            v_cndmask_b32 v{ci}, v{ci}, v{T+4}, vcc""")
        q.q.append(("calln", seg, 7))
    cur, alt = (cr, ci), (T + 3, T + 4)
    for j in range(16):
        sr, si = cur
        nr, ni = alt
        q(f"""v_fma_f32 v{nr}, v{vAr}, v{sr}, v{zr(j)}
        v_fma_f32 v{ni}, v{vAr}, v{si}, v{zi(j)}
        v_fma_f32 v{nr}, -v{vAi}, v{si}, v{nr}
        v_fma_f32 v{ni}, v{vAi}, v{sr}, v{ni}
        v_mul_f32 v{zr(j)}, v{vKr}, v{nr}
        v_mul_f32 v{zi(j)}, -v{vKr}, v{ni}
        v_fma_f32 v{zr(j)}, -v{vKi}, v{ni}, v{zr(j)}
        v_fma_f32 v{zi(j)}, -v{vKi}, v{nr}, v{zi(j)}""")
        cur, alt = alt, cur
    for j in range(0, 16, 2):
        q(f"v_cvt_pk_bf16_f32 v{G+j//2}, v{zr(j)}, v{zr(j+1)}")
        q(f"v_cvt_pk_bf16_f32 v{G+8+j//2}, v{zi(j)}, v{zi(j+1)}")
    q(f"""v_lshlrev_b32 v{T+6}, 12, v{vRGV}
    v_add_u32 v{T+6}, {SCR_T}, v{T+6}
    v_lshrrev_b32 v{T+5}, 5, v{vLANE}
    v_lshlrev_b32 v{T+5}, 3, v{T+5}
    v_lshl_add_u32 v{T+5}, v{T+8}, 6, v{T+5}
    v_add_u32 v{T+5}, v{T+6}, v{T+5}
    v_add_u32 v{T+6}, v{T+6}, v{vTRL}
    v_lshlrev_b32 v{T}, 4, v{vLANE}""")
    for part in range(2):
        for qq in range(4):
            r = G + 8 * part + 2 * qq
            q.ldsop(f"ds_write_b64 v{T+5}, v[{r}:{r+1}] offset:{part*2048 + qq*16}", "tw")
    q.lgwait("tw")
    R = G + 16
    for part in range(2):
        for s2 in range(2):
            r = R + 8 * part + 4 * s2
            o = part * 2048 + s2 * 1024
            q.ldsop(f"ds_read_b64_tr_b16 v[{r}:{r+1}], v{T+6} offset:{o}", "tr")
            q.ldsop(f"ds_read_b64_tr_b16 v[{r+2}:{r+3}], v{T+6} offset:{o+256}", "tr")
    q.lgwait("tr")
    for part in range(2):
        for s2 in range(2):
            r = R + 8 * part + 4 * s2
            q.vmop(f"buffer_store_dwordx4 v[{r}:{r+3}], v{T}, s[{SWS}:{SWS+3}], s{sMU} offen offset:{(2*part+s2)*1024} sc1", "h")


vTRL = 3


def gen(a):
    global vTRL
    vTRL = 0
    sIDX = sMX
    if STAMPS:
        a(f"s_memrealtime s[{sMASK}:{sMASK+1}]")
    a(f"""s_cmp_ge_u32 s2, 256
    s_cbranch_scc1 L_END
    s_load_dwordx16 s[40:55], s[0:1], 0
    s_load_dwordx16 s[56:71], s[0:1], 64
    v_and_b32 v{vLANE}, 63, v0
    v_lshrrev_b32 v2, 6, v0
    s_and_b32 s{sT0}, s2, 7            ; xcd
    v_readfirstlane_b32 s{sW}, v2
    s_lshr_b32 s{sIDX}, s2, 3          ; idx
    s_and_b32 s{sRB}, s{sT0}, 1
    s_lshl_b32 s{sRB}, s{sRB}, 3
    s_and_b32 s{sT2}, s{sIDX}, 7
    s_add_u32 s{sRB}, s{sRB}, s{sT2}   ; rb
    s_lshr_b32 s{sCG}, s{sT0}, 1
    s_lshl_b32 s{sCG}, s{sCG}, 2
    s_lshr_b32 s{sT2}, s{sIDX}, 3
    s_add_u32 s{sCG}, s{sCG}, s{sT2}   ; cg
    s_and_b32 s{sRG}, s{sW}, 3
    s_lshl_b32 s{sKC0}, s{sCG}, 1
    s_add_u32 s{sKC0}, s{sKC0}, s{sRB}
    s_and_b32 s{sKC0}, s{sKC0}, 7
    s_lshl_b32 s{sRB2}, s{sT0}, 2
    s_and_b32 s{sT2}, s{sIDX}, 3
    s_add_u32 s{sRB2}, s{sRB2}, s{sT2}
    s_lshr_b32 s{sCB}, s{sIDX}, 2
    s_mul_i32 s{sT2}, s{sCG}, 3
    s_lshl_b32 s{sT3}, s{sCG}, 1
    s_add_u32 s{sT3}, s{sT3}, 11
    s_cmp_lt_u32 s{sCG}, 11
    s_cselect_b32 s{sU0B}, s{sT2}, s{sT3}
    s_cselect_b32 s{sDUM}, 64, 0x40000000
    s_lshl_b32 s{sU0B}, s{sU0B}, 6
    s_lshl_b32 s{sLW}, s{sRG}, 12           ; w'*4096
    s_lshl_b32 s{sMS}, s{sRG}, 11
    s_add_u32 s{sMS}, s{sMS}, 16384         ; S pieces: 16384 + w'*2048
    s_lshl_b32 s{sM1}, s{sRG}, 10           ; kstep*1024
    v_lshrrev_b32 v2, 3, v{vLANE}           ; lane>>3
    v_and_b32 v3, 7, v{vLANE}
    v_lshrrev_b32 v{vT}, 4, v{vLANE}        ; lane>>4
    v_xor_b32 v{vT+1}, v3, v{vT}            ; (lane&7)^(lane>>4)
    s_lshl_b32 s{sT2}, s{sRB}, 7
    s_lshl_b32 s{sT3}, s{sRG}, 5
    s_add_u32 s{sT2}, s{sT2}, s{sT3}
    v_add_u32 v{vT+2}, s{sT2}, v2
    v_lshlrev_b32 v{vT+2}, 10, v{vT+2}
    v_lshl_add_u32 v{vDX0}, v{vT+1}, 4, v{vT+2}
    v_xor_b32 v{vDX1}, 64, v{vDX0}
    v_add_u32 v{vDX1}, 8192, v{vDX1}
    s_and_b32 s{sT4}, s{sRG}, 1
    s_lshl_b32 s{sT4}, s{sT4}, 4
    s_lshl_b32 s{sT3}, s{sCG}, 5
    s_add_u32 s{sT4}, s{sT4}, s{sT3}
    v_add_u32 v{vT+2}, s{sT4}, v2
    v_lshlrev_b32 v{vT+2}, 10, v{vT+2}
    v_lshl_add_u32 v{vDS}, v{vT+1}, 4, v{vT+2}
    v_xor_b32 v{vDS1}, 64, v{vDS}
    v_add_u32 v{vDS1}, 8192, v{vDS1}
    v_lshrrev_b32 v{vT+2}, 2, v{vLANE}
    s_lshl_b32 s{sT4}, s{sRG}, 4
    v_add_u32 v{vT+2}, s{sT4}, v{vT+2}
    v_mul_u32_u24 v{vT+2}, 2752, v{vT+2}
    v_and_b32 v{vT+4}, 3, v{vLANE}
    v_lshl_add_u32 v{vDM}, v{vT+4}, 4, v{vT+2}
    v_lshlrev_b32 v{vT+3}, 4, v{vLANE}
    s_and_b32 s{sT4}, s{sW}, 2
    s_waitcnt lgkmcnt(0)""")
    pstamp(a, 0)
    srd(a, SX, P_X, 2048 * 1024)
    a(f"""s_cmp_eq_u32 s{sT4}, 0
    s_cselect_b32 s{P_BRE}, s{P_BRE}, s{P_BIM}
    s_cselect_b32 s{P_BRE+1}, s{P_BRE+1}, s{P_BIM+1}
    s_cmp_lt_u32 s{sW}, 4
    s_cselect_b32 s{P_CRE}, s{P_CRE}, s{P_CIM}
    s_cselect_b32 s{P_CRE+1}, s{P_CRE+1}, s{P_CIM+1}""")
    lab0, lab1 = a.newlab("D0"), a.newlab("D1")
    a(f"s_cmp_lt_u32 s{sW}, 4\ns_cbranch_scc1 {lab0}")
    for s_ in range(NPRE):
        for code, tag in dma_p0(s_, 1):
            a(code)
    srd(a, SS, P_BRE, 512 * 1024)
    srd(a, SM, P_WG, 512 * 2752)
    a(f"s_branch {lab1}")
    a.label(lab0)
    srd(a, SS, P_BRE, 512 * 1024)
    srd(a, SM, P_WG, 512 * 2752)
    a(f"s_mov_b32 s{sT4}, s{P_WU}\ns_mov_b32 s{sT5}, s{P_WU+1}")
    srd(a, 32, sT4, 512 * 2752)
    for s_ in range(NPRE):
        for code, tag in dma_p0(s_, 0):
            a(code.replace(f"s[{SM2}:{SM2+3}]", "s[32:35]"))
        if s_ == 0:
            a(f"""s_lshl_b32 s{sT2}, s2, 3
            s_lshl_b32 s{sT3}, s{sRG}, 1
            s_add_u32 s{sT5}, s{sT2}, s{sT3}
            s_lshl_b32 s{sT5}, s{sT5}, 10
            buffer_load_dwordx4 v[{vACC}:{vACC+3}], v{vT+3}, s[{SX}:{SX+3}], s{sT5} offen
            buffer_load_dwordx4 v[{vACC+4}:{vACC+7}], v{vT+3}, s[{SX}:{SX+3}], s{sT5} offen offset:1024""")
    a.label(lab1)
    srd(a, SWS, P_WS, WS_SIZE)
    a(f"""s_add_u32 s{P_BIM}, s{P_WS}, {WS_EPOCH}
    s_addc_u32 s{P_BIM+1}, s{P_WS+1}, 0
    s_load_dword s{sTAG}, s[{P_BIM}:{P_BIM+1}], 0""")
    srd(a, SM2, P_WU, 512 * 2752)
    pstamp(a, 1)
    srd(a, SWD, P_WD, 1376 * 1024)
    srd(a, SC, P_CRE, 512 * 1024)
    a(f"""v_and_b32 v{vT+2}, 31, v{vLANE}
    s_lshl_b32 s{sT4}, s{sCG}, 5
    v_add_u32 v{vT+2}, s{sT4}, v{vT+2}
    v_lshlrev_b32 v{vT+2}, 1, v{vT+2}""")
    srd(a, ST, P_LRE, 1024)
    a.vmop(f"buffer_load_ushort v{vA16r}, v{vT+2}, s[{ST}:{ST+3}], 0 offen", "par")
    srd(a, ST, P_LIM, 1024)
    a.vmop(f"buffer_load_ushort v{vA16i}, v{vT+2}, s[{ST}:{ST+3}], 0 offen", "par")
    srd(a, ST, P_LDT, 1024)
    a.vmop(f"buffer_load_ushort v{vA128r}, v{vT+2}, s[{ST}:{ST+3}], 0 offen", "par")
    pstamp(a, 2)
    srd(a, SO, P_OUT, 2048 * 2048)
    srd(a, ST, P_DSK, 1024)
    if CODE_PREFETCH:
        lab = a.newlab("CP")
        a(f"""s_cmp_eq_u32 s{sW}, 3
        s_cbranch_scc0 {lab}
        s_getpc_b64 s[{sT2}:{sT3}]""")
        a.label("L_PC")
        a(f"""s_mul_i32 s{sT4}, s{sIDX}, {10*128}
        v_lshlrev_b32 v{vT+2}, 7, v{vLANE}
        v_add_u32 v{vT+2}, s{sT4}, v{vT+2}
        v_cmp_gt_u32 vcc, L_CODE_END-L_PC, v{vT+2}
        s_and_saveexec_b64 s[{sEX}:{sEX+1}], vcc
        v_cmp_gt_u32 vcc, 10, v{vLANE}
        s_and_b64 exec, exec, vcc
        s_cbranch_execz {lab}_R
        global_load_dword v{vK1}, v{vT+2}, s[{sT2}:{sT3}]""")
        a.label(lab + "_R")
        a(f"s_mov_b64 exec, s[{sEX}:{sEX+1}]")
        a.label(lab)
    a(f"""s_lshr_b32 s{sT3}, s{sW}, 1                ; w>>1
    s_and_b32 s{sT4}, s{sW}, 1
    s_lshl_b32 s{sT4}, s{sT4}, 14            ; (w&1)*16384
    s_mul_i32 s{s3RG}, s{sT3}, {3*32768}
    s_add_u32 s{s3RG}, s{s3RG}, s{sT4}
    s_lshl_b32 s{s2RG}, s{sT3}, 16
    s_add_u32 s{s2RG}, s{s2RG}, s{sT4}
    s_cmp_eq_u32 s{sT3}, 3
    s_cselect_b32 s{sAOFF}, 0x40000000, s{s3RG}
    s_lshl_b32 s{sXB}, s{sRG}, 14
    s_lshl_b32 s{sRT}, s{sW}, 11
    s_lshl_b32 s{sT2}, s{sRB}, 2
    s_add_u32 s{sT2}, s{sT2}, s{sRG}
    s_mul_i32 s{sHPOS}, s{sT2}, {RT_STRIDE}
    s_lshl_b32 s{sT4}, s{sRB2}, 1
    s_lshr_b32 s{sT3}, s{sW}, 2
    s_add_u32 s{sT4}, s{sT4}, s{sT3}
    s_mul_i32 s{sT4}, s{sT4}, {RT_STRIDE}
    s_lshl_b32 s{sT3}, s{sRG}, 11
    s_add_u32 s{sT4}, s{sT4}, s{sT3}
    v_lshlrev_b32 v{vDA}, 4, v{vLANE}
    v_add_u32 v{vDA}, s{sT4}, v{vDA}
    v_bfe_u32 v{vT+2}, v{vLANE}, 4, 1
    v_lshlrev_b32 v{vT+2}, 2, v{vT+2}
    v_xor_b32 v{vT+2}, v3, v{vT+2}
    v_lshlrev_b32 v{vT+4}, 10, v2
    v_lshl_add_u32 v{vT+2}, v{vT+2}, 4, v{vT+4}
    s_lshl_b32 s{sT4}, s{sCB}, 7
    v_add_u32 v{vDB}, s{sT4}, v{vT+2}
    s_lshl_b32 s{sT4}, s{sCB}, 6
    v_add_u32 v{vT+2}, s{sT4}, v2
    v_lshlrev_b32 v{vT+2}, 10, v{vT+2}
    v_lshl_add_u32 v{vDC0}, v{vT+1}, 4, v{vT+2}
    v_xor_b32 v{vDC1}, 64, v{vDC0}
    v_and_b32 v2, 31, v{vLANE}
    v_bfe_u32 v3, v2, 2, 1
    v_lshlrev_b32 v3, 4, v3
    v_lshrrev_b32 v{vT}, 3, v2
    v_lshl_add_u32 v3, v{vT}, 2, v3
    v_and_b32 v{vT+1}, 3, v2
    v_add_u32 v3, v3, v{vT+1}               ; tau
    v_bfe_u32 v{vT}, v3, 1, 3
    s_lshl_b32 s{sT4}, s{sRG}, 5
    v_add_u32 v3, s{sT4}, v3
    v_lshlrev_b32 v3, 7, v3
    v_lshrrev_b32 v{vT+1}, 5, v{vLANE}
    v_xor_b32 v{vT}, v{vT}, v{vT+1}
    v_lshl_add_u32 v{vXA}, v{vT}, 4, v3
    v_xor_b32 v{vXA+1}, 32, v{vXA}
    v_xor_b32 v{vXA+2}, 64, v{vXA}
    v_xor_b32 v{vXA+3}, 96, v{vXA}
    v_lshlrev_b32 v3, 3, v{vT+1}
    v_bfe_u32 v{vT}, v{vLANE}, 2, 2
    v_add_u32 v3, v3, v{vT}
    v_lshlrev_b32 v3, 6, v3
    v_bfe_u32 v{vT}, v{vLANE}, 4, 1
    v_lshl_add_u32 v3, v{vT}, 5, v3
    v_and_b32 v{vT}, 3, v{vLANE}
    v_lshl_add_u32 v{vTRL}, v{vT}, 3, v3
    s_lshr_b32 s{sT4}, s{sW}, 2
    s_lshl_b32 s{sT4}, s{sT4}, 13
    v_add_u32 v{vW1}, s{sT4}, v{vTRL}
    v_mov_b32 v{vRGV}, s{sRG}""")
    pstamp(a, 3)
    a(f"""s_cmp_ge_u32 s{sW}, 4
    s_cbranch_scc1 L_STREAM_B""")
    save = (list(a.vm), list(a.lg), a.nvm)
    stream(a, 0)
    a.vm, a.lg, a.nvm = list(save[0]), list(save[1]), save[2]
    a.label("L_STREAM_B")
    stream(a, 1)
    a.label("L_END")
    a("s_endpgm")
    a.label("L_CODE_END")


def w2_touch(a, which, junk=None):
    if not W2_PREFETCH:
        return
    sIDX = sMX
    j = junk or vDA
    a(f"v_lshlrev_b32 v3, 7, v{vLANE}")
    if which in (0, 1):
        a(f"""s_mul_i32 s{sT0}, s{sIDX}, 44032
        s_lshl_b32 s{sT1}, s{sRG}, 13
        s_add_u32 s{sT0}, s{sT0}, s{sT1}
        s_add_u32 s{sT0}, s{sT0}, {32768*which}""")
        a.vmop(f"buffer_load_dword v{j}, v3, s[{SWD}:{SWD+3}], s{sT0} offen", "pf")
    else:
        a(f"""s_lshl_b32 s{sT0}, s{sIDX}, 14
        s_and_b32 s{sT1}, s{sRG}, 1
        s_lshl_b32 s{sT1}, s{sT1}, 13
        s_add_u32 s{sT0}, s{sT0}, s{sT1}""")
        a.vmop(f"buffer_load_dword v{j}, v3, s[{SC}:{SC+3}], s{sT0} offen", "pf")


def w2_touch16(a, piece, junk):
    if not W2_PREFETCH:
        return
    sIDX = sMX
    a(f"v_lshlrev_b32 v3, 7, v{vLANE}")
    if piece < 6:
        a(f"""s_mul_i32 s{sT0}, s{sIDX}, 44032
        s_lshl_b32 s{sT1}, s{sRG}, 11
        s_add_u32 s{sT0}, s{sT0}, s{sT1}
        s_add_u32 s{sT0}, s{sT0}, {piece*8192}
        s_mov_b64 s[{sEX}:{sEX+1}], exec
        s_mov_b64 exec, 0xffff""")
        a.vmop(f"buffer_load_dword v{junk}, v3, s[{SWD}:{SWD+3}], s{sT0} offen", "pf")
    else:
        a(f"""s_lshl_b32 s{sT0}, s{sIDX}, 14
        s_lshl_b32 s{sT1}, s{sRG}, 11
        s_add_u32 s{sT0}, s{sT0}, s{sT1}
        s_add_u32 s{sT0}, s{sT0}, {(piece-6)*8192}
        s_mov_b64 s[{sEX}:{sEX+1}], exec
        s_mov_b64 exec, 0xffff""")
        a.vmop(f"buffer_load_dword v{junk}, v3, s[{SC}:{SC+3}], s{sT0} offen", "pf")
    a(f"s_mov_b64 exec, s[{sEX}:{sEX+1}]")


def ln_stats(a, src, row_s):
    U = vACC2
    for i in range(4):
        a(f"v_lshlrev_b32 v{U+2*i}, 16, v{src+i}\nv_and_b32 v{U+2*i+1}, 0xffff0000, v{src+i}")
    a(f"""v_add_f32 v{vT}, v{U}, v{U+1}
    v_add_f32 v{vT+1}, v{U+2}, v{U+3}
    v_add_f32 v{vT+2}, v{U+4}, v{U+5}
    v_add_f32 v{vT+4}, v{U+6}, v{U+7}
    v_add_f32 v{vT}, v{vT}, v{vT+1}
    v_add_f32 v{vT+2}, v{vT+2}, v{vT+4}
    v_add_f32 v{vT}, v{vT}, v{vT+2}""")
    wave_sum(a, vT, sT4)
    a(f"""s_nop 1
    v_mov_b32 v{vT+1}, s{sT4}
    v_mul_f32 v{vT+1}, {f2u(1.0/512)}, v{vT+1}
    v_mov_b32 v{vT}, 0""")
    for i in range(8):
        a(f"v_sub_f32 v{vT+2}, v{U+i}, v{vT+1}\nv_fmac_f32 v{vT}, v{vT+2}, v{vT+2}")
    wave_sum(a, vT, sT4)
    a(f"""s_nop 1
    v_mov_b32 v{vT+2}, s{sT4}
    v_mul_f32 v{vT+2}, {f2u(1.0/512)}, v{vT+2}""")
    rne_bf16(a, vT + 1)
    rne_bf16(a, vT + 2)
    a(f"v_add_f32 v{vT+2}, {f2u(1e-5)}, v{vT+2}")
    rne_bf16(a, vT + 2)
    a(f"v_sqrt_f32 v{vT+2}, v{vT+2}\ns_nop 0")
    rne_bf16(a, vT + 2)
    a(f"""v_mov_b32 v{U}, v{vT+1}
    v_mov_b32 v{U+1}, s{sTAG}
    v_mov_b32 v{U+2}, v{vT+2}
    v_mov_b32 v{U+3}, s{sTAG}
    s_lshl_b32 s{sT4}, s{row_s}, 4
    s_add_u32 s{sT4}, s{sT4}, {WS_STAT}
    v_mov_b32 v{vT}, 0
    s_mov_b64 s[{sEX}:{sEX+1}], exec
    s_mov_b64 exec, 1""")
    a.vmop(f"buffer_store_dwordx4 v[{U}:{U+3}], v{vT}, s[{SWS}:{SWS+3}], s{sT4} offen sc1", "stat")
    a(f"s_mov_b64 exec, s[{sEX}:{sEX+1}]")


def stream(a, ch):
    a(f"s_waitcnt lgkmcnt(0)\ns_add_u32 s{sTAG}, s{sTAG}, 1")
    if ch == 0:
        a.vm = ["st0"] * 4 + ["lnrow", "lnrow"] + [f"st{g}" for g in range(1, NPRE) for _ in range(4)] + ["par"] * 3
        a(f"""v_and_b32 v3, 31, v{vLANE}
        v_bfe_u32 v{vT}, v3, 1, 3
        v_lshrrev_b32 v{vT+1}, 5, v{vLANE}
        v_xor_b32 v{vT}, v{vT}, v{vT+1}
        v_lshlrev_b32 v3, 7, v3
        v_lshl_add_u32 v3, v{vT}, 4, v3
        v_add_u32 v{vWS}, 16384, v3
        v_xor_b32 v{vWS+1}, 32, v{vWS}
        v_xor_b32 v{vWS+2}, 64, v{vWS}
        v_xor_b32 v{vWS+3}, 96, v{vWS}""")
        waddr0 = [vWS + i for i in range(4)]
        a.vmwait("lnrow")
        pstamp(a, 4)
        a(f"""s_lshl_b32 s{sT2}, s2, 3
        s_lshl_b32 s{sT3}, s{sRG}, 1
        s_add_u32 s{sT5}, s{sT2}, s{sT3}""")
        ln_stats(a, vACC, sT5)
        a(f"s_add_u32 s{sT5}, s{sT5}, 1")
        ln_stats(a, vACC + 4, sT5)
    else:
        a.vm = [f"st{g}" for g in range(NPRE) for _ in range(4)] + ["par"] * 3
        a(f"v_add_u32 v{vWM}, 24576, v{vTRL}")
        waddr0 = [vWM]
    if W2_AT == 0 and ch == 0:
        for wch in (0, 2, 1):
            w2_touch(a, wch)
    stamp(a, 0)
    if PSTAMP:
        a(f"s_lshl_b32 s{sT0}, s2, 3\ns_add_u32 s{sT0}, s{sT0}, s{sW}\ns_lshl_b32 s{sT0}, s{sT0}, 6\ns_add_u32 s{sT0}, s{sT0}, {WS_DBG + 0x40000}")
        a("v_mov_b32 v3, 0")
        for i in range(5):
            a(f"buffer_store_dword v{232+i}, v3, s[{SWS}:{SWS+3}], s{sT0} offen offset:{4*i}")
        a.vm += ["x"] * 5
    a(f"""s_lshr_b32 s{sCSM}, s{sRB}, 3
    s_add_u32 s{sCSM}, s{sCSM}, 1
    s_cmp_eq_u32 s{sRG}, 0
    s_cselect_b32 s{sCSM}, s{sCSM}, 0""")
    for i in range(4):
        a(f"v_mov_b32 v{ONES+i}, 0x3f803f80")
    for i in range(64):
        a(f"v_mov_b32 v{vACC+i}, 0")
    xaddr = [vXA + i for i in range(4)]

    slots = []
    for g in range(8):
        for j in range(4):
            for t in range(2):
                slots.append((g, 0, j, t))
    for g in range(8, 12):
        for c2 in range(2):
            for j in range(4):
                for t in range(2):
                    slots.append((g, c2, j, t))
    NS = len(slots)
    first_of = {}
    last_of = {}
    for n, (g, c2, j, t) in enumerate(slots):
        first_of.setdefault(g, n)
        last_of[g] = n
    hi_state = {"x": 0, "w0": 0, "w1": 0}

    def set_hi(key, regs, g):
        hi = ((g % NSLOT) * SLOT) >> 16
        if hi_state[key] != hi:
            for r in regs:
                a(f"v_xor_b32 v{r}, 0x10000, v{r}")
            hi_state[key] = hi

    def frag_reg(n):
        return vFR + 4 * (n % 4)

    def issue_reads(n):
        g, c2, j, t = slots[n]
        lo = ((g % NSLOT) * SLOT) & 0xffff
        f = frag_reg(n)
        tag = f"w{n}"
        if g < 8:
            if j == 0 and t == 0:
                set_hi("x", xaddr, g)
                set_hi("w0", waddr0, g)
                for jj in range(4):
                    r = vXF + 4 * (4 * g + jj)
                    a.ldsop(f"ds_read_b128 v[{r}:{r+3}], v{vXA+jj} offset:{lo}", f"x{g}_{jj}")
            if ch == 0:
                a.ldsop(f"ds_read_b128 v[{f}:{f+3}], v{vWS+j} offset:{lo + t*4096}", tag)
            else:
                o = lo + t * 4096 + j * 1024
                a.ldsop(f"ds_read_b64_tr_b16 v[{f}:{f+1}], v{vWM} offset:{o}", tag)
                a.ldsop(f"ds_read_b64_tr_b16 v[{f+2}:{f+3}], v{vWM} offset:{o+256}", tag)
        else:
            if c2 == 0 and j == 0 and t == 0:
                set_hi("w1", [vW1], g)
            o = lo + c2 * 16384 + t * 4096 + j * 1024
            a.ldsop(f"ds_read_b64_tr_b16 v[{f}:{f+1}], v{vW1} offset:{o}", tag)
            a.ldsop(f"ds_read_b64_tr_b16 v[{f+2}:{f+3}], v{vW1} offset:{o+256}", tag)

    def mfma(n):
        g, c2, j, t = slots[n]
        f = frag_reg(n)
        if g < 8:
            xf = vXF + 4 * (4 * g + j)
            acc = vACC + 16 * t
            a.lgwait(f"x{g}_{j}")
        else:
            xf = vXF + 4 * (4 * (2 * (g - 8) + c2) + j)
            acc = vACC2 + 16 * t
        a.lgwait(f"w{n}")
        if ch == 0 and g < 8:
            a(f"v_mfma_f32_32x32x16_bf16 v[{acc}:{acc+15}], v[{xf}:{xf+3}], v[{f}:{f+3}], v[{acc}:{acc+15}]")
        else:
            a(f"v_mfma_f32_32x32x16_bf16 v[{acc}:{acc+15}], v[{f}:{f+3}], v[{xf}:{xf+3}], v[{acc}:{acc+15}]")

    def colsum_at(n):
        g, c2, j, t = slots[n]
        if (g == 0) or (g == 8 and c2 == 1):
            acc = CSACC if g == 0 else CS1ACC
            lab = a.newlab("CSK")
            f = frag_reg(n)
            c = "0" if j == 0 else f"v[{acc}:{acc+15}]"
            a(f"""s_cmp_eq_u32 s{sCSM}, {t+1}
            s_cbranch_scc0 {lab}
            v_mfma_f32_32x32x16_bf16 v[{acc}:{acc+15}], v[{ONES}:{ONES+3}], v[{f}:{f+3}], {c}""")
            a.label(lab)

    dmaq = []

    def stage_barrier(g):
        if ch == 0 and g == 7:
            gather_finish(a, 0, GATH0, a.nvm - marks["g0"], 3)
            for i in range(16):
                a(f"v_mov_b32 v{GATH0+i}, 0")
        if g == 10 and ch == 1:
            a.vmwait("u0")
            write_flag(a, 0, ch)
        a.vmwait(f"st{g+1}")
        a("s_barrier")
        if ch == 0 and g in (8, 9) and marks.get("edone") and not marks.get("published"):
            a.fill_all(); s_publish(a); a.lg = []
            marks["published"] = True
        nxt = g + 3
        if E("X_NODMA", 0):
            pass
        elif nxt < 8:
            dmaq.extend(dma_p0(nxt, ch))
        elif nxt < 12:
            dmaq.extend(dma_p1(nxt - 8, ch))
        if g == 9:
            dmaq.extend(p2_B(0)); dmaq.extend(p2_B(1))
        if g == 10:
            dmaq.extend(p2_B(2)); dmaq.extend(p2_B(3))

    marks = {}
    if (PRIO == 2 and ch == 1) or (PRIO == 3 and ch == 0):
        a("s_setprio 1")
    a.vmwait("st0")
    a("s_barrier")
    stamp(a, 1)
    for s_ in range(NPRE, 3):
        dmaq.extend(dma_p0(s_, ch))
    for n in range(LOOK):
        issue_reads(n)
    for n in range(NS):
        g, c2, j, t = slots[n]
        mfma(n)
        colsum_at(n)
        nn = n + LOOK
        if nn < NS:
            if slots[nn][0] != slots[nn - 1][0]:
                stage_barrier(slots[nn - 1][0])
            issue_reads(nn)
        every = (PACE0 if g < 8 else PACE1)
        npop = 2 if len(dmaq) > 4 else (1 if (n % every == 0) else 0)
        for _ in range(DMA_RATE if DMA_RATE else npop):
            if dmaq:
                code, tag = dmaq.pop(0)
                a.vmop(code, tag)
        if g >= 8:
            a.fill(FILL0 if ch == 0 else FILL)
        elif g >= 3:
            a.fill(3)
        if W2_AT == 4 and g >= W2_G0 and (n - first_of[g]) in (W2_P1, W2_P2):
            k = 2 * (g - W2_G0) + (0 if (n - first_of[g]) == W2_P1 else 1)
            if ch == 1 and k < 8:
                w2_touch16(a, k, vDS)
            if ch == 0 and k in (1, 3):
                w2_touch16(a, 6 + (k // 2), vDX0)
        if n == last_of[g]:
            if P1DBG == 4 and g < 9:
                a(f"s_memtime s[{STAMP0+2*(5+g)}:{STAMP0+2*(5+g)+1}]")
            if P1DBG == 5 and g >= 7:
                a(f"s_memtime s[{STAMP0+2*(g-2)}:{STAMP0+2*(g-2)+1}]")
            if P1DBG == 1 and g in (8, 9, 10):
                stamp(a, {8: 9, 9: 13, 10: 6}[g], force=True)
            if P1DBG == 2 and g in (1, 3, 5):
                stamp(a, {1: 9, 3: 13, 5: 6}[g], force=True)
            if g == 0:
                colsum_store(a, CSACC, ch)
                a("s_nop 7")
                for i in range(16):
                    a(f"v_mov_b32 v{CSACC+i}, 0")
            if W2_AT == 1 and ch == 0 and g in (3, 4, 8):
                w2_touch(a, {3: 0, 4: 2, 8: 1}[g])
            if W2_AT == 3 and ch == 1 and W2_G0 <= g < W2_G0 + 8:
                w2_touch16(a, g - W2_G0, vDS)
            if W2_AT == 3 and ch == 0 and g in (W2_G0 + 1, W2_G0 + 3):
                w2_touch16(a, 6 + (g - W2_G0) // 2, vDX0)
            if W2_AT == 2 and ch == 1 and g == 9:
                for wch in (0, 2, 1):
                    w2_touch(a, wch, junk=vDS)
            if g == 2 and ch == 0:
                a.vmwait("par")
                q = Q()
                s_params(q)
                a.fillq = q.q
            if g == 5 and ch == 0:
                gather_loads(a, 0, GATH0, 3, tracked=True)
                marks["g0"] = a.nvm
            if g == 7:
                a.fill_all()
                stamp(a, 2)
                if PRIO == 1 and ch == 0:
                    a("s_setprio 1")
                q = Q()
                if ch == 1:
                    q(f"""s_lshl_b32 s{sT5}, s{sCG}, 11
                    s_add_u32 s{sT5}, s{sT5}, s{sHPOS}""")
                    row_stats_M(q, vT)
                    gelu_epi(q, vACC, sT5, 64 * 4, "u0", 4, vT)
                else:
                    s_epilogue1(q)
                    q.q.append(("call", lambda: marks.__setitem__("edone", True)))
                    row_stats_M(q, vT)
                a.fillq = q.q
            if g == 8:
                colsum_store(a, CS1ACC, 2 + ch, koff=1)
            if g == 9:
                a.fill_all()
                stamp(a, 3)
            if g == 10 and ch == 0:
                lookback_loads(a)
                a(f"""s_lshl_b32 s{sT5}, s{sCG}, 12
                s_add_u32 s{sMU}, s{sHPOS}, s{sT5}
                s_add_u32 s{sMU}, s{sMU}, {86*1024}""")
            if g == 10 and ch == 0 and not marks.get("published"):
                s_publish(a); a.lg = []
            if g == 10 and ch == 1:
                gather_loads(a, 1, GATH1, 3, tracked=True)
                marks["g1"] = a.nvm
    stamp(a, 4)
    while dmaq:
        code, tag = dmaq.pop(0)
        a.vmop(code, tag)
    if ch == 0:
        a.fill_all()
    else:
        gather_finish(a, 1, GATH1, a.nvm - marks["g1"], 3)
        poll_flags(a, 0, tracked=True)
        if A_TOUCH:
            only_rg(a, 3, lambda: touch_A(a, 0))
    a("s_barrier")
    stamp(a, 5)
    for st in range(4):
        for code, tag in p2_A(st):
            a.vmop(code, tag)
    for st in range(4, 8):
        for code, tag in p2_B(st):
            a.vmop(code, tag)
    if ch == 1:
        lab = a.newlab("U2S")
        stamp(a, 6)
        a(f"""s_cmp_ge_u32 s{sCG}, 11
        s_cbranch_scc1 {lab}
        s_lshl_b32 s{sT5}, s{sCG}, 11
        s_add_u32 s{sT5}, s{sT5}, s{sHPOS}
        s_add_u32 s{sT5}, s{sT5}, {64*1024}""")
        gelu_epi(a, vACC2, sT5, 192 * 4, "u12", 48, vT, maybe=True)
        a.label(lab)
        a.lg = []
        marks["u12"] = a.nvm
        a.vmwait_all()
        write_flag(a, 1, 1)
        stamp(a, 8)
    else:
        a(f"""s_lshl_b32 s{sT5}, s{sCG}, 11
        s_add_u32 s{sT5}, s{sT5}, s{sHPOS}
        s_add_u32 s{sT5}, s{sT5}, {32*1024}""")
        a(f"""s_lshl_b32 s{sT5}, s{sCG}, 11
        s_add_u32 s{sT5}, s{sT5}, s{sHPOS}
        s_add_u32 s{sT5}, s{sT5}, {32*1024}""")
        gelu_epi(a, vACC2, sT5, 128 * 4, "u12", 48, vT)
        stamp(a, 6)
        q = Q()
        s_work_atoms(a, q)
        k = (2 * len(q.q)) // 3
        q.q.insert(k, ("call", lambda: (a.vmwait("u12"), write_flag(a, 1, 0))))
        a.fillq = q.q
        a.fill_all()
        stamp(a, 8)
    a.marks = marks
    phase2(a, ch)


def phase2(a, ch):
    rt = ch
    vB0, vB1, vC0, vC1, vXO, vSO, vDO = 4, 5, 6, 7, 9, 11, 12
    vDK = 8
    vBF = 176
    vAC = 208
    vEX = 96
    a(f"""v_lshrrev_b32 v{vT}, 5, v{vLANE}
    v_lshlrev_b32 v{vT}, 2, v{vT}
    v_bfe_u32 v3, v{vLANE}, 2, 2
    v_add_u32 v{vT}, v{vT}, v3
    v_lshlrev_b32 v{vT}, 7, v{vT}
    v_bfe_u32 v3, v{vLANE}, 3, 1
    v_lshl_add_u32 v{vT}, v3, 6, v{vT}
    v_bfe_u32 v3, v{vLANE}, 4, 1
    v_lshl_add_u32 v{vT}, v3, 5, v{vT}
    v_and_b32 v3, 3, v{vLANE}
    v_lshl_add_u32 v{vT}, v3, 3, v{vT}
    s_lshl_b32 s{sT0}, s{sRG}, 12
    v_add_u32 v{vB0}, s{sT0}, v{vT}
    v_xor_b32 v{vB1}, 64, v{vB0}
    v_and_b32 v{vT}, 31, v{vLANE}
    v_bfe_u32 v3, v{vT}, 1, 3
    v_lshrrev_b32 v{vT+1}, 5, v{vLANE}
    s_lshr_b32 s{sT0}, s{sRG}, 1
    s_lshl_b32 s{sT0}, s{sT0}, 2
    v_add_u32 v{vT+1}, s{sT0}, v{vT+1}
    v_xor_b32 v3, v3, v{vT+1}
    v_lshlrev_b32 v{vT}, 7, v{vT}
    v_lshl_add_u32 v{vT}, v3, 4, v{vT}
    s_and_b32 s{sT0}, s{sRG}, 1
    s_lshl_b32 s{sT0}, s{sT0}, 13
    v_add_u32 v{vC0}, s{sT0}, v{vT}
    v_xor_b32 v{vC1}, 32, v{vC0}
    v_lshrrev_b32 v{vT}, 5, v{vLANE}
    v_lshlrev_b32 v{vT}, 4, v{vT}
    s_lshl_b32 s{sT0}, s{sRB2}, 6
    s_lshl_b32 s{sT1}, s{sRG}, 2
    s_add_u32 s{sT0}, s{sT0}, s{sT1}
    s_add_u32 s{sT0}, s{sT0}, {32*rt}
    v_add_u32 v{vT}, s{sT0}, v{vT}
    v_lshlrev_b32 v{vSO}, 4, v{vT}
    v_lshlrev_b32 v{vT}, 9, v{vT}
    v_and_b32 v3, 31, v{vLANE}
    s_lshl_b32 s{sT0}, s{sCB}, 6
    v_add_u32 v3, s{sT0}, v3
    v_add_u32 v{vT}, v{vT}, v3
    v_lshlrev_b32 v{vXO}, 1, v{vT}
    v_lshlrev_b32 v{vDO}, 1, v3""")

    def epi_loads():
        a.vmop(f"buffer_load_ushort v{vDK}, v{vDO}, s[{ST}:{ST+3}], 0 offen", "epi")
        a.vmop(f"buffer_load_ushort v{vDK+2}, v{vDO}, s[{ST}:{ST+3}], 0 offen offset:64", "epi")
        for ct in range(2):
            for i in range(4):
                a.vmop(f"buffer_load_ushort v{vEX+4*ct+i}, v{vXO}, s[{SX}:{SX+3}], 0 offen offset:{i*1024 + ct*64}", "epi")
        a(f"s_mov_b32 s{sT0}, {WS_STAT}")
        for i in range(4):
            a.vmop(f"buffer_load_dword v{vEX+8+i}, v{vSO}, s[{SWS}:{SWS+3}], s{sT0} offen offset:{i*16} sc1", "epi")
            a.vmop(f"buffer_load_dword v{vEX+12+i}, v{vSO}, s[{SWS}:{SWS+3}], s{sT0} offen offset:{i*16+8} sc1", "epi")
    for i in range(32):
        a(f"v_mov_b32 v{vAC+i}, 0")
    hi2 = {"v": 0}

    def p2_reads(st, n):
        slot = (st % 8) * 16384
        hi, lo = slot >> 16, slot & 0xffff
        if n == 0 and hi != hi2["v"]:
            for r in (vB0, vB1, vC0, vC1):
                a(f"v_xor_b32 v{r}, 0x10000, v{r}")
            hi2["v"] = hi
        s_, ct = n >> 1, n & 1
        f = vBF + 16 * (st % 2) + 4 * n
        tag = f"r{st}_{n}"
        if ORDER[st][0] == "M":
            vb = vB0 if ct == 0 else vB1
            a.ldsop(f"ds_read_b64_tr_b16 v[{f}:{f+1}], v{vb} offset:{lo + s_*2048}", tag)
            a.ldsop(f"ds_read_b64_tr_b16 v[{f+2}:{f+3}], v{vb} offset:{lo + s_*2048 + 1024}", tag)
        else:
            a.ldsop(f"ds_read_b128 v[{f}:{f+3}], v{vC0+s_} offset:{lo + ct*4096}", tag)

    def p2_barrier(st):
        a.vmwait(f"B{st}")
        a("s_barrier")

    p2_barrier(0)
    stamp(a, 7)
    for n in range(4):
        p2_reads(0, n)
    dq = []
    a_next = 4
    allowed = 3
    for st in range(NST2):
        if st == 4:
            stamp(a, 9)
        if st == 11:
            stamp(a, 13)
        if st + 1 < NST2:
            if ch == 0:
                if st + 1 == H_ST:
                    a.vmwait("h")
                    write_flag(a, 2, 0)
                if st + 1 == E1_ST:
                    poll_flags(a, 1, tracked=True)
                    if A_TOUCH:
                        only_rg(a, 3, lambda: touch_A(a, 1))
                if st + 1 == E2_ST:
                    poll_flags(a, 2, tracked=True)
                    if A_TOUCH:
                        only_rg(a, 3, lambda: touch_A(a, 2))
            p2_barrier(st + 1)
            if st + 1 == E1_ST:
                allowed = 10
            if st + 1 == E2_ST:
                allowed = NST2 - 1
            while a_next <= min(allowed, st + NA - 1, NST2 - 1):
                dq.extend(p2_A(a_next)); a_next += 1
            if st >= 1 and st + 7 < NST2:
                dq.extend(p2_B(st + 7))
        g = sum(1 for x in dq if x[1] == f"A{st}")
        while any(x[1] == f"A{st}" for x in dq):
            code, tag = dq.pop(0); a.vmop(code, tag)
        a.vmwait(f"A{st}")
        per = (len(dq) + 3) // 4
        for n in range(4):
            s_, ct = n >> 1, n & 1
            f = vBF + 16 * (st % 2) + 4 * n
            ar = vAR + 8 * (st % NA) + 4 * s_
            ac = vAC + 16 * ct
            a.lgwait(f"r{st}_{n}")
            a(f"v_mfma_f32_32x32x16_bf16 v[{ac}:{ac+15}], v[{ar}:{ar+3}], v[{f}:{f+3}], v[{ac}:{ac+15}]")
            if st + 1 < NST2:
                p2_reads(st + 1, n)
            for _ in range(per):
                if dq:
                    code, tag = dq.pop(0)
                    a.vmop(code, tag)
        if st == 3:
            epi_loads()
    stamp(a, 10)
    a(f"""s_nop 15
    s_barrier
    s_lshl_b32 s{sT0}, s{sRG}, 11
    v_lshlrev_b32 v{vT}, 4, v{vLANE}
    v_add_u32 v{vT+1}, s{sT0}, v{vT}
    v_add_u32 v{vT+1}, {rt*32768}, v{vT+1}""")
    for q in range(4):
        for ct in range(2):
            r = vAC + 16 * ct + 4 * q
            a(f"ds_write_b128 v{vT+1}, v[{r}:{r+3}] offset:{q*8192 + ct*1024}")
    a(f"""s_lshl_b32 s{sT0}, s{sRG}, 13
    v_add_u32 v{vT+1}, s{sT0}, v{vT}
    v_add_u32 v{vT+1}, {rt*32768}, v{vT+1}
    s_waitcnt lgkmcnt(0)
    s_barrier""")
    R = vAR
    for src in range(4):
        for ct in range(2):
            r = R + 8 * src + 4 * ct
            a(f"ds_read_b128 v[{r}:{r+3}], v{vT+1} offset:{src*2048 + ct*1024}")
    a("s_waitcnt vmcnt(0)")
    a.vm = []
    D0, D1 = vDK, vDK + 2
    X = vEX; M_ = vEX + 8; S_ = vEX + 12; Y = vEX + 16
    a(f"v_lshlrev_b32 v{D0}, 16, v{D0}\nv_lshlrev_b32 v{D1}, 16, v{D1}\nv_lshlrev_b32 v{vT}, 1, v{vXO}")
    for i in range(4):
        a(f"v_rcp_f32 v{S_+i}, v{S_+i}")
    for k in range(8):
        a(f"v_lshlrev_b32 v{X+k}, 16, v{X+k}")
    for k in range(8):
        a(f"v_sub_f32 v{Y+k}, v{X+k}, v{M_+(k&3)}")

    def rnd():
        for k in range(0, 8, 2):
            a(f"v_cvt_pk_bf16_f32 v{vT+1}, v{Y+k}, v{Y+k+1}")
            a(f"v_lshlrev_b32 v{Y+k}, 16, v{vT+1}\nv_and_b32 v{Y+k+1}, 0xffff0000, v{vT+1}")
    rnd()
    for k in range(8):
        a(f"v_mul_f32 v{Y+k}, v{Y+k}, v{S_+(k&3)}")
    rnd()
    for k in range(8):
        a(f"v_mul_f32 v{Y+k}, v{Y+k}, v{D0 if k < 4 else D1}")
    rnd()
    for k in range(8):
        a(f"v_add_f32 v{Y+k}, v{Y+k}, v{X+k}")
    a("s_waitcnt lgkmcnt(0)")
    for k in range(8):
        a(f"v_add_f32 v{R+k}, v{R+k}, v{R+8+k}")
        a(f"v_add_f32 v{R+16+k}, v{R+16+k}, v{R+24+k}")
    for k in range(8):
        a(f"v_add_f32 v{R+k}, v{R+k}, v{R+16+k}")
    for k in range(8):
        a(f"v_add_f32 v{R+k}, v{R+k}, v{Y+k}")
    for ct in range(2):
        for i in range(4):
            ro = i * 2048 + ct * 128
            so, io = (ro // 4096) * 4096, ro % 4096
            a(f"s_mov_b32 s{sT0}, {so}")
            a(f"buffer_store_dword v{R+4*ct+i}, v{vT}, s[{SO}:{SO+3}], s{sT0} offen offset:{io}")
    if ch == 0:
        lab = a.newlab("EP")
        a(f"""s_cmp_eq_u32 s{sRB2}, 31
        s_cbranch_scc0 {lab}
        s_cmp_eq_u32 s{sCB}, 0
        s_cbranch_scc0 {lab}
        s_cmp_eq_u32 s{sW}, 0
        s_cbranch_scc0 {lab}
        v_mov_b32 v4, s{sTAG}
        v_mov_b32 v3, 0
        s_mov_b32 s{sT0}, {WS_EPOCH}
        s_mov_b64 exec, 1
        buffer_store_dword v4, v3, s[{SWS}:{SWS+3}], s{sT0} offen sc1
        s_mov_b64 exec, -1""")
        a.label(lab)
    stamp(a, 11)
    if STAMPS:
        a("s_waitcnt vmcnt(0)")
        stamp(a, 12)
    stamp_flush(a, 14)
    a("s_endpgm")


if __name__ == "__main__":
    main(sys.argv[1] if len(sys.argv) > 1 else "cdna_kernels/" + NAME + ".s")
```

```python
import sys, math, struct, os

NAME = "parallel_sum__ssm_conv_s5__glu_gated_geglu__prompt"
KNAME = NAME + "_kernel"

E = lambda k, d: int(os.environ.get(k, str(d)))
STAMPS = E("STAMPS", 0)
SPIN_MAX = E("SPIN_MAX", 200000)
CODE_PREFETCH = E("CODE_PREFETCH", 1)
W2_PREFETCH = E("W2_PREFETCH", 1)
FILL = E("FILL", 7)
FILL0 = E("FILL0", 14)
SW_DELAY = E("SW_DELAY", 8)
NPRE = E("NPRE", 2)
DMA_RATE = E("DMA_RATE", 0)
PACE0 = E("PACE0", 2)
PACE1 = E("PACE1", 3)
PRIO = E("PRIO", 0)
W2_AT = E("W2_AT", 4)
W2_G0 = E("W2_G0", 8)
W2_P1 = E("W2_P1", 2)
W2_P2 = E("W2_P2", 9)
LOOK = E("LOOK", 3)
A_TOUCH = E("A_TOUCH", 0)
E2_ST = E("E2_ST", 6)
E1_ST = E("E1_ST", 3)
H_ST = E("H_ST", 3)
X_NOMFMA = E("X_NOMFMA", 0)
X_NOREAD = E("X_NOREAD", 0)

NKS = 150
RT_STRIDE = NKS * 1024
WS_AGG = 0xA00000
WS_STAT = 0xA40000
WS_CS = 0xA80000
WS_FLG = 0xB00000
WS_EPOCH = 0xB10000
WS_DUMMY = 0xB20000
WS_DBG = 0xF00000
WS_SIZE = 0x10000000

LOG2E = 1.4426950408889634
SLOT = 32768
NSLOT = 4
SCR = NSLOT * SLOT
SCR_T = SCR
SCR_CS = 16384
SCR_ST = 17408
SCR_ES = 18432
LDS_BYTES = 163840
NST2 = 19
NBS, NAS = 3, 5
B_BASE, A_BASE = 0, 49152


def f2u(x):
    return struct.unpack("<I", struct.pack("<f", x))[0]


class A:
    def __init__(self):
        self.l = []
        self.nlab = 0
        self.vm = []
        self.nvm = 0
        self.lg = []
        self.fillq = []

    def __call__(self, s):
        for line in s.strip("\n").split("\n"):
            line = line.strip()
            if not line:
                continue
            if X_NOMFMA and line.startswith("v_mfma"):
                continue
            self.l.append("  " + line)

    def label(self, name):
        self.l.append(name + ":")

    def newlab(self, p="L"):
        self.nlab += 1
        return f"{p}_{self.nlab}"

    def vmop(self, s, tag, maybe=False):
        self(s)
        if not maybe:
            self.vm.append(tag)
            self.nvm += 1

    def vmwait(self, tag):
        idx = [i for i, t in enumerate(self.vm) if t == tag]
        if not idx:
            return
        n = len(self.vm) - 1 - idx[-1]
        assert n <= 63, n
        self(f"s_waitcnt vmcnt({n})")
        self.vm = self.vm[idx[-1] + 1:]

    def vmwait_all(self):
        self("s_waitcnt vmcnt(0)")
        self.vm = []

    def ldsop(self, s, tag):
        if X_NOREAD and tag[0] in "xwr":
            return
        self(s)
        self.lg.append(tag)
        assert len(self.lg) <= 30

    def lgwait(self, tag):
        idx = [i for i, t in enumerate(self.lg) if t == tag]
        if not idx:
            return
        n = len(self.lg) - 1 - idx[-1]
        n = min(n, 15)
        self(f"s_waitcnt lgkmcnt({n})")
        self.lg = self.lg[len(self.lg) - n:] if n else []

    def lgwait_all(self):
        self("s_waitcnt lgkmcnt(0)")
        self.lg = []

    def fill(self, n):
        if E("X_NOFILL", 0):
            self.fillq = [at for at in self.fillq if at[0] in ("vm",) or (at[0] == "call" and False)]
        while n > 0 and self.fillq:
            at = self.fillq.pop(0)
            k = at[0]
            if k == "v":
                self(at[1]); n -= 1
            elif k == "lds":
                self.ldsop(at[1], at[2]); n -= 1
            elif k == "lgw":
                self.lgwait(at[1])
            elif k == "vm":
                self.vmop(at[1], at[2], at[3]); n -= 1
            elif k == "call":
                at[1]()
            elif k == "calln":
                at[1](); n -= at[2]

    def fill_all(self):
        self.fill(10 ** 9)

    def text(self):
        return "\n".join(self.l) + "\n"


class Q:
    def __init__(self):
        self.q = []

    def __call__(self, s):
        for line in s.strip("\n").split("\n"):
            line = line.strip()
            if line:
                self.q.append(("v", line))

    def ldsop(self, s, tag):
        self.q.append(("lds", s, tag))

    def lgwait(self, tag):
        self.q.append(("lgw", tag))

    def vmop(self, s, tag, maybe=False):
        self.q.append(("vm", s, tag, maybe))


def srd(a, s, ptr_lo, nbytes):
    a(f"""s_mov_b32 s{s}, s{ptr_lo}
    s_and_b32 s{s+1}, s{ptr_lo+1}, 0xffff
    s_mov_b32 s{s+2}, {nbytes}
    s_mov_b32 s{s+3}, 0x20000""")


def rne_bf16(a, v):
    a(f"v_cvt_pk_bf16_f32 v{v}, v{v}, v{v}\nv_lshlrev_b32 v{v}, 16, v{v}")


def wave_sum(a, v, tmp_s):
    for ctrl in ("row_shr:1", "row_shr:2", "row_shr:4", "row_shr:8"):
        a(f"s_nop 1\nv_add_f32_dpp v{v}, v{v}, v{v} {ctrl} row_mask:0xf bank_mask:0xf")
    a(f"s_nop 1\nv_add_f32_dpp v{v}, v{v}, v{v} row_bcast:15 row_mask:0xa bank_mask:0xf")
    a(f"s_nop 1\nv_add_f32_dpp v{v}, v{v}, v{v} row_bcast:31 row_mask:0xc bank_mask:0xf")
    a(f"s_nop 1\nv_readlane_b32 s{tmp_s}, v{v}, 63")


SX, SS, SM, SWS, SWD, SC, SO, ST = 4, 8, 12, 16, 20, 24, 28, 32
sW, sRG, sRB, sCG = 36, 37, 38, 39
sKC0, sU0B, sDUM, sTAG = 72, 73, 74, 75
sT0, sT1, sT2, sT3, sT4, sT5 = 76, 77, 78, 79, 80, 81
sMX, sMS, sMU, sM1 = 82, 83, 84, 85
sCSM = 86
sRB2, sCB, sRT, sCT = 87, 88, 89, 90
sSPIN = 91
sEX = 92
sMASK = 94
sAOFF, sLW, s3RG, s2RG = 96, 97, 98, 99
sXB, sHPOS = 100, 101
SM2 = 68
STAMP0 = 40
P_X, P_LRE, P_LIM, P_BRE, P_BIM, P_CRE, P_CIM, P_LDT = 40, 42, 44, 46, 48, 50, 52, 54
P_DSK, P_BX, P_WG, P_WU, P_WD, P_OUT, P_DBG, P_WS = 56, 58, 60, 62, 64, 66, 68, 70

vLANE = 1
vXA = 4
vWS = 8
vWM = 8
vW1 = 12
vDX0, vDX1, vDS, vDM = 13, 14, 15, 16
vDS1 = 47
vT = 17
ONES = 28
vAr, vAi, vKr, vKi, vA16r, vA16i, vA128r, vA128i = 32, 33, 34, 35, 36, 37, 38, 39
vRINV, vNM = 40, 41
vDA, vDB, vDC0, vDC1 = 42, 43, 44, 45
vK1, vCA = 46, 47
vFR = 48
vACC = 64
vACC2 = 96
vXF = 128
CSACC = 96
GATH0 = 112
CS1ACC = 128
GATH1 = 144
JUNK = 255


PSTAMP = E("PSTAMP", 0)


def pstamp(a, i):
    if PSTAMP:
        a(f"s_memrealtime s[{sEX}:{sEX+1}]\ns_waitcnt lgkmcnt(0)\nv_mov_b32 v{232+i}, s{sEX}")


DBGD = E("DBGD", -1)


P1DBG = E("P1DBG", 0)


def stamp(a, i, force=False):
    if STAMPS and P1DBG in (4, 5) and i >= 4:
        if i == 4 and False:
            pass
        return
    if STAMPS and P1DBG in (4, 5) and i == 1:
        a(f"s_memtime s[{STAMP0+2*4}:{STAMP0+2*4+1}]")
    if STAMPS and P1DBG == 3 and i in (1, 2, 4):
        j = {1: 9, 2: 13, 4: 6}[i]
        a(f"s_memtime s[{STAMP0+2*j}:{STAMP0+2*j+1}]")
    if STAMPS:
        if i == 3:
            return
        if P1DBG and i in (6, 9, 13) and not force:
            return
        a(f"s_memrealtime s[{STAMP0+2*i}:{STAMP0+2*i+1}]")
        if i == 0:
            a(f"s_mov_b32 s{STAMP0+6}, s{sMASK}\ns_mov_b32 s{STAMP0+7}, s{sMASK+1}")


def stamp_flush(a, n):
    if not STAMPS:
        return
    a("s_waitcnt lgkmcnt(0)")
    a(f"s_lshl_b32 s{sT0}, s2, 3\ns_add_u32 s{sT0}, s{sT0}, s{sW}\ns_lshl_b32 s{sT0}, s{sT0}, 6\ns_add_u32 s{sT0}, s{sT0}, {WS_DBG}")
    a("v_mov_b32 v3, 0")
    for i in range(n):
        a(f"v_mov_b32 v2, s{STAMP0+2*i}")
        a(f"buffer_store_dword v2, v3, s[{SWS}:{SWS+3}], s{sT0} offen offset:{4*i}")
    if DBGD >= 0:
        lab = a.newlab("DD")
        a(f"""s_cmp_eq_u32 s2, {DBGD}
        s_cbranch_scc0 {lab}
        s_cmp_eq_u32 s{sW}, {E("DBGW", 0)}
        s_cbranch_scc0 {lab}
        s_load_dwordx2 s[{sT2}:{sT3}], s[0:1], 112
        s_waitcnt lgkmcnt(0)
        s_mov_b32 s{ST}, s{sT2}
        s_and_b32 s{ST+1}, s{sT3}, 0xffff
        s_mov_b32 s{ST+2}, 256
        s_mov_b32 s{ST+3}, 0x20000
        v_mov_b32 v3, 0""")
        for i in range(n):
            a(f"v_mov_b32 v2, s{STAMP0+2*i}")
            a(f"buffer_store_dword v2, v3, s[{ST}:{ST+3}], 0 offen offset:{4*i}")
        a.label(lab)


def dma_p0(s, ch):
    slot = (s % NSLOT) * SLOT
    it = []
    if ch == 1:
        pre = f"""s_add_u32 s{sT0}, s{sKC0}, {s}
        s_and_b32 s{sT0}, s{sT0}, 7
        s_lshl_b32 s{sT3}, s{sT0}, 7
        s_add_u32 s{sT4}, s{sT3}, 16384
        """
        for i in range(4):
            vd = vDX0 if i % 2 == 0 else vDX1
            so = sT3 if i < 2 else sT4
            it.append(((pre if i == 0 else "") + f"""s_add_u32 m0, s{sLW}, {slot + i*1024}
            s_nop 0
            buffer_load_dwordx4 v{vd}, s[{SX}:{SX+3}], s{so} offen lds""", f"st{s}"))
    else:
        pre = f"""s_add_u32 s{sT0}, s{sKC0}, {s}
        s_and_b32 s{sT0}, s{sT0}, 7
        s_lshl_b32 s{sT3}, s{sT0}, 7
        s_mul_i32 s{sT2}, s{sT0}, {64*2752}
        s_add_u32 s{sT2}, s{sT2}, s{sU0B}
        """
        for i in range(2):
            vd = vDS if i == 0 else vDS1
            it.append(((pre if i == 0 else "") + f"""s_add_u32 m0, s{sMS}, {slot + i*1024}
            s_nop 0
            buffer_load_dwordx4 v{vd}, s[{SS}:{SS+3}], s{sT3} offen lds""", f"st{s}"))
        for mat in range(2):
            sr = SM if mat == 0 else SM2
            it.append((f"""s_add_u32 m0, s{sM1}, {slot + 24576 + mat*4096}
            s_nop 0
            buffer_load_dwordx4 v{vDM}, s[{sr}:{sr+3}], s{sT2} offen lds""", f"st{s}"))
    return it


def dma_p1(t, ch):
    g = 8 + t
    slot = (g % NSLOT) * SLOT
    it = []
    c2 = ch
    pre = f"""s_add_u32 s{sT0}, s{sKC0}, {2*t+c2}
    s_and_b32 s{sT0}, s{sT0}, 7
    s_mul_i32 s{sT2}, s{sT0}, {64*2752}
    s_add_u32 s{sT2}, s{sT2}, s{sU0B}
    s_add_u32 s{sT2}, s{sT2}, 64
    s_add_u32 s{sT3}, s{sT2}, s{sDUM}
    """
    for mat in range(2):
        sr = SM if mat == 0 else SM2
        for j in range(2):
            so = sT2 if j == 0 else sT3
            it.append(((pre if (mat == 0 and j == 0) else "") + f"""s_add_u32 m0, s{sM1}, {slot + c2*16384 + j*8192 + mat*4096}
            s_nop 0
            buffer_load_dwordx4 v{vDM}, s[{sr}:{sr+3}], s{so} offen lds""", f"st{g}"))
    return it


ORDER = [("M", i) for i in range(11)] + [("S", j) for j in range(8)]


NA = E("NA", 10)
vAR = 128
ARING = [128, 136, 144, 152, 160, 168, 64, 72, 80, 88]
vAG = 42


def p2_A(st):
    kind, ix = ORDER[st]
    ks0 = 8 * ix if kind == "M" else 86 + 8 * ix
    r = ARING[st % NA]
    it = []
    if (kind, ix) == ("M", 10):
        first = f"""s_mov_b32 s{sT1}, {ks0*1024}
        s_cmp_eq_u32 s{sRG}, 3
        s_cselect_b32 s{sT1}, {(ks0-2)*1024}, s{sT1}"""
    else:
        first = f"s_mov_b32 s{sT1}, {ks0*1024}"
    it.append((first + f"""
    buffer_load_dwordx4 v[{r}:{r+3}], v{vDA}, s[{SWS}:{SWS+3}], s{sT1} offen sc1""", f"A{st}"))
    it.append((f"""buffer_load_dwordx4 v[{r+4}:{r+7}], v{vDA}, s[{SWS}:{SWS+3}], s{sT1} offen offset:1024 sc1""", f"A{st}"))
    return it


def p2_B(st):
    slot = (st % 8) * 16384
    kind, ix = ORDER[st]
    it = []
    if kind == "M":
        if ix < 3:
            reg, c = s3RG, 3 * 4 * ix
        elif ix == 3:
            reg, c = s2RG, 2 * 12 + 11
        elif ix < 7:
            reg, c = s3RG, 3 * 4 * (ix - 4) + 1
        elif ix == 7:
            reg, c = s2RG, 2 * 12 + 11 + 1
        elif ix < 10:
            reg, c = s3RG, 3 * 4 * (ix - 8) + 2
        else:
            reg, c = sAOFF, 3 * 4 * (ix - 8) + 2
        for i in range(2):
            it.append((f"""s_add_u32 s{sT1}, s{reg}, {c*32768 + i*8192}
            s_add_u32 m0, s{sRT}, {slot + i*1024}
            s_nop 0
            buffer_load_dwordx4 v{vDB}, s[{SWD}:{SWD+3}], s{sT1} offen lds""", f"B{st}"))
    else:
        j = ix
        for i in range(2):
            vd = vDC0 if i % 2 == 0 else vDC1
            it.append((f"""s_add_u32 s{sT1}, s{sXB}, {j*128 + i*8192}
            s_add_u32 m0, s{sRT}, {slot + i*1024}
            s_nop 0
            buffer_load_dwordx4 v{vd}, s[{SC}:{SC+3}], s{sT1} offen lds""", f"B{st}"))
    return it


def main(out_path):
    a = A()
    gen(a)
    ref = open("cdna_kernels/" + NAME + ".s.ref").read()
    head = []
    for line in ref.splitlines():
        if line.startswith(";") and "@launch" not in line and "Override" not in line and "grid=ceil" not in line:
            head.append(line)
        elif not line.startswith(";"):
            break
    txt = "\n".join(head) + "\n"
    txt += f"; @launch grid=(256,1,1) block=(512,1,1) lds={LDS_BYTES}\n"
    txt += '.amdgcn_target "amdgcn-amd-amdhsa--gfx950"\n.text\n'
    txt += f".globl {KNAME}\n.p2align 8\n.type {KNAME},@function\n{KNAME}:\n"
    txt += a.text()
    txt += f""".section .rodata,"a"
.p2align 6
.amdhsa_kernel {KNAME}
  .amdhsa_next_free_vgpr 256
  .amdhsa_next_free_sgpr 102
  .amdhsa_accum_offset 256
  .amdhsa_group_segment_fixed_size 0
  .amdhsa_kernarg_size 128
  .amdhsa_user_sgpr_count 2
  .amdhsa_user_sgpr_kernarg_segment_ptr 1
  .amdhsa_system_sgpr_workgroup_id_x 1
.end_amdhsa_kernel
"""
    open(out_path, "w").write(txt)


def flag_load(a, ev, rb_s, vdst, tag):
    a(f"""s_lshl_b32 s{sT0}, s{rb_s}, 8
    s_add_u32 s{sT0}, s{sT0}, {WS_FLG + ev*64}
    v_and_b32 v{vdst}, 15, v{vLANE}
    v_lshlrev_b32 v{vdst}, 2, v{vdst}""")
    a.vmop(f"buffer_load_dword v{vdst}, v{vdst}, s[{SWS}:{SWS+3}], s{sT0} offen sc1", tag)


PRG = (252, 253, 254)


FLG_OFF = {0: 0, 1: 512, 2: 1024}


def poll_flags(a, ev, tracked=False):
    lp, ok = a.newlab("PF"), a.newlab("PFOK")
    wide = (ev == 1)
    a(f"""s_lshr_b32 s{sT0}, s{sRB2}, 1
    s_lshl_b32 s{sT0}, s{sT0}, 11
    s_add_u32 s{sT0}, s{sT0}, {WS_FLG + FLG_OFF[ev]}
    v_lshlrev_b32 v{vT}, {3 if wide else 2}, v{vLANE}
    s_mov_b32 s{sSPIN}, 0""")
    regs = [(248, 249), (250, 251), (252, 253)]
    ld = (lambda r: f"buffer_load_dwordx2 v[{r[0]}:{r[1]}], v{vT}, s[{SWS}:{SWS+3}], s{sT0} offen sc1") if wide else \
         (lambda r: f"buffer_load_dword v{r[0]}, v{vT}, s[{SWS}:{SWS+3}], s{sT0} offen sc1")
    for r in regs:
        a(ld(r) + "\ns_sleep 2")
    a.label(lp)
    for r in regs:
        nx = a.newlab("PFN")
        a(f"""s_waitcnt vmcnt(2)
        v_cmp_ne_u32 vcc, s{sTAG}, v{r[0]}
        s_add_u32 s{sSPIN}, s{sSPIN}, 1""")
        if wide:
            a(f"""s_cbranch_vccnz {nx}
            v_cmp_ne_u32 vcc, s{sTAG}, v{r[1]}
            s_nop 0
            s_cbranch_vccz {ok}""")
            a.label(nx)
        else:
            a(f"s_cbranch_vccz {ok}")
        a(ld(r))
    a(f"""s_cmp_gt_u32 s{sSPIN}, {SPIN_MAX}
    s_cbranch_scc0 {lp}""")
    a.label(ok)
    if tracked:
        a.vm = ["poll", "poll"]
        a.nvm += 2


def touch_A(a, ev):
    if not A_TOUCH:
        return
    k0, nl = {0: (0, 64), 1: (32, 108), 2: (86, 128)}[ev]
    a(f"""s_lshr_b32 s{sT0}, s{sCB}, 2
    s_lshl_b32 s{sT1}, s{sRB2}, 1
    s_add_u32 s{sT0}, s{sT0}, s{sT1}
    s_mul_i32 s{sT0}, s{sT0}, {RT_STRIDE}
    s_and_b32 s{sT1}, s{sCB}, 3
    s_mul_i32 s{sT1}, s{sT1}, {nl*128}
    s_add_u32 s{sT0}, s{sT0}, s{sT1}
    s_add_u32 s{sT0}, s{sT0}, {k0*1024}
    v_lshlrev_b32 v{vT+1}, 7, v{vLANE}
    buffer_load_dword v{JUNK}, v{vT+1}, s[{SWS}:{SWS+3}], s{sT0} offen sc1""")
    if nl > 64:
        a(f"s_add_u32 s{sT0}, s{sT0}, 8192")
        if nl < 128:
            a(f"""v_cmp_gt_u32 vcc, {nl-64}, v{vLANE}
            s_and_saveexec_b64 s[{sEX}:{sEX+1}], vcc
            buffer_load_dword v{JUNK}, v{vT+1}, s[{SWS}:{SWS+3}], s{sT0} offen sc1
            s_mov_b64 exec, s[{sEX}:{sEX+1}]""")
        else:
            a(f"buffer_load_dword v{JUNK}, v{vT+1}, s[{SWS}:{SWS+3}], s{sT0} offen sc1")


def write_flag(a, ev, ch):
    sh = 5 if ev == 1 else 4
    a(f"""s_lshl_b32 s{sT0}, s{sRB}, 11
    s_lshl_b32 s{sT1}, s{sCG}, {sh}
    s_add_u32 s{sT0}, s{sT0}, s{sT1}
    s_lshl_b32 s{sT1}, s{sW if ev == 1 else sRG}, 2
    s_add_u32 s{sT0}, s{sT0}, s{sT1}
    s_add_u32 s{sT0}, s{sT0}, {WS_FLG + FLG_OFF[ev]}
    v_mov_b32 v{vT+9}, 0
    v_mov_b32 v{vT+10}, s{sTAG}
    s_mov_b64 s[{sEX}:{sEX+1}], exec
    s_mov_b64 exec, 1""")
    a.vmop(f"buffer_store_dword v{vT+10}, v{vT+9}, s[{SWS}:{SWS+3}], s{sT0} offen sc1", "flag")
    a(f"s_mov_b64 exec, s[{sEX}:{sEX+1}]")


def only_rg(a, rg, fn):
    lab = a.newlab("RG")
    a(f"s_cmp_eq_u32 s{sRG}, {rg}\ns_cbranch_scc0 {lab}")
    lg = list(a.lg)
    fn()
    a.label(lab)
    a.lg = lg


def colsum_mfma(a, wf0, wf1, accreg, first=False):
    l1, l2 = a.newlab("CS"), a.newlab("CS")
    c = "0" if first else f"v[{accreg}:{accreg+15}]"
    a(f"""s_cmp_eq_u32 s{sCSM}, 0
    s_cbranch_scc1 {l2}
    s_cmp_eq_u32 s{sCSM}, 1
    s_cbranch_scc0 {l1}
    v_mfma_f32_32x32x16_bf16 v[{accreg}:{accreg+15}], v[{ONES}:{ONES+3}], v[{wf0}:{wf0+3}], {c}
    s_branch {l2}""")
    a.label(l1)
    a(f"v_mfma_f32_32x32x16_bf16 v[{accreg}:{accreg+15}], v[{ONES}:{ONES+3}], v[{wf1}:{wf1+3}], {c}")
    a.label(l2)


def colsum_store(a, accreg, unit, koff=0):
    a(f"""s_nop 7
    s_nop 7
    s_add_u32 s{sT1}, s{sKC0}, {koff}
    s_and_b32 s{sT1}, s{sT1}, 7
    s_lshl_b32 s{sT0}, s{sCG}, 3
    s_add_u32 s{sT0}, s{sT0}, s{sT1}
    s_lshl_b32 s{sT0}, s{sT0}, 11
    s_sub_u32 s{sT1}, s{sCSM}, 1
    s_lshl_b32 s{sT1}, s{sT1}, 8
    s_add_u32 s{sT0}, s{sT0}, s{sT1}
    s_add_u32 s{sT0}, s{sT0}, {WS_CS + unit*512}
    s_lshl_b32 s{sT1}, s2, 11
    s_add_u32 s{sT1}, s{sT1}, {WS_DUMMY}
    s_cmp_eq_u32 s{sCSM}, 0
    s_cselect_b32 s{sT0}, s{sT1}, s{sT0}
    v_mov_b32 v{accreg+1}, s{sTAG}
    v_lshlrev_b32 v{accreg+2}, 3, v{vLANE}
    s_mov_b64 s[{sEX}:{sEX+1}], exec
    s_mov_b64 exec, 0xffffffff""")
    a.vmop(f"buffer_store_dwordx2 v[{accreg}:{accreg+1}], v{accreg+2}, s[{SWS}:{SWS+3}], s{sT0} offen sc1", "cs")
    a(f"s_mov_b64 exec, s[{sEX}:{sEX+1}]")


def gather_loads(a, part, dst, atmp, tracked=False):
    l1, l2 = a.newlab("G"), a.newlab("G")
    a(f"""s_cmp_lt_u32 s{sRG}, 2
    s_cbranch_scc0 {l1}
    s_lshl_b32 s{sT0}, s{sCG}, 14
    s_add_u32 s{sT0}, s{sT0}, {WS_CS + part*1024}
    s_lshl_b32 s{sT1}, s{sRG}, 9
    s_add_u32 s{sT0}, s{sT0}, s{sT1}
    v_lshlrev_b32 v{atmp}, 3, v{vLANE}""")
    for j in range(8):
        so, io = (j * 2048 // 4096) * 4096, (j * 2048) % 4096
        a(f"s_add_u32 s{sT1}, s{sT0}, {so}")
        a(f"buffer_load_dwordx2 v[{dst+2*j}:{dst+2*j+1}], v{atmp}, s[{SWS}:{SWS+3}], s{sT1} offen offset:{io} sc1")
    a(f"s_branch {l2}")
    a.label(l1)
    nd = 8
    if part == 0:
        a(f"""s_lshl_b32 s{sT0}, s{sRB}, 11
        s_sub_u32 s{sT1}, s{sRG}, 2
        s_lshl_b32 s{sT1}, s{sT1}, 10
        s_add_u32 s{sT0}, s{sT0}, s{sT1}
        s_add_u32 s{sT0}, s{sT0}, {WS_STAT}
        v_lshlrev_b32 v{atmp}, 4, v{vLANE}
        buffer_load_dwordx4 v[{dst}:{dst+3}], v{atmp}, s[{SWS}:{SWS+3}], s{sT0} offen sc1""")
        nd = 7
    a(f"s_mov_b32 s{sT0}, 0x40000000")
    for j in range(nd):
        a(f"buffer_load_dword v{dst+8+j}, v{vLANE}, s[{SWS}:{SWS+3}], s{sT0} offen")
    a.label(l2)
    if tracked:
        a.vm += ["g"] * 8
        a.nvm += 8


def gather_finish(a, part, dst, nyounger, atmp):
    lr, l1, l2, lok, lok2, l0 = [a.newlab("GF") for _ in range(6)]
    a(f"s_mov_b32 s{sSPIN}, 0")
    a(f"s_waitcnt vmcnt({nyounger})")
    a(f"s_branch {l0}")
    a.label(lr)
    a("s_waitcnt vmcnt(0)")
    a.label(l0)
    a(f"""s_cmp_lt_u32 s{sRG}, 2
    s_cbranch_scc0 {l1}
    s_mov_b64 s[{sMASK}:{sMASK+1}], 0""")
    for j in range(8):
        a(f"""v_cmp_ne_u32 vcc, s{sTAG}, v{dst+2*j+1}
        s_or_b64 s[{sMASK}:{sMASK+1}], s[{sMASK}:{sMASK+1}], vcc""")
    a(f"""s_cmp_eq_u64 s[{sMASK}:{sMASK+1}], 0
    s_cbranch_scc1 {lok}
    s_add_u32 s{sSPIN}, s{sSPIN}, 1
    s_cmp_gt_u32 s{sSPIN}, {SPIN_MAX}
    s_cbranch_scc1 {lok}""")
    gather_loads(a, part, dst, atmp)
    a(f"s_branch {lr}")
    a.label(lok)
    a(f"""v_add_f32 v{dst}, v{dst}, v{dst+2}
    v_add_f32 v{dst+4}, v{dst+4}, v{dst+6}
    v_add_f32 v{dst+8}, v{dst+8}, v{dst+10}
    v_add_f32 v{dst+12}, v{dst+12}, v{dst+14}
    v_add_f32 v{dst}, v{dst}, v{dst+4}
    v_add_f32 v{dst+8}, v{dst+8}, v{dst+12}
    v_add_f32 v{dst}, v{dst}, v{dst+8}
    s_lshl_b32 s{sT0}, s{sRG}, 8
    s_add_u32 s{sT0}, s{sT0}, {SCR}
    v_lshlrev_b32 v{atmp}, 2, v{vLANE}
    v_add_u32 v{atmp}, s{sT0}, v{atmp}
    ds_write_b32 v{atmp}, v{dst} offset:{SCR_CS + part*512}
    s_branch {l2}""")
    a.label(l1)
    if part == 0:
        a(f"""v_cmp_ne_u32 vcc, s{sTAG}, v{dst+1}
        s_mov_b64 s[{sMASK}:{sMASK+1}], vcc
        v_cmp_ne_u32 vcc, s{sTAG}, v{dst+3}
        s_or_b64 s[{sMASK}:{sMASK+1}], s[{sMASK}:{sMASK+1}], vcc
        s_cmp_eq_u64 s[{sMASK}:{sMASK+1}], 0
        s_cbranch_scc1 {lok2}
        s_add_u32 s{sSPIN}, s{sSPIN}, 1
        s_cmp_gt_u32 s{sSPIN}, {SPIN_MAX}
        s_cbranch_scc1 {lok2}""")
        gather_loads(a, part, dst, atmp)
        a(f"s_branch {lr}")
        a.label(lok2)
        a(f"""v_rcp_f32 v{dst+2}, v{dst+2}
        v_sub_f32 v{dst+3}, 0, v{dst}
        s_sub_u32 s{sT0}, s{sRG}, 2
        s_lshl_b32 s{sT0}, s{sT0}, 9
        s_add_u32 s{sT0}, s{sT0}, {SCR}
        v_lshlrev_b32 v{atmp}, 3, v{vLANE}
        v_add_u32 v{atmp}, s{sT0}, v{atmp}
        ds_write_b64 v{atmp}, v[{dst+2}:{dst+3}] offset:{SCR_ST}""")
    a.label(l2)
    a.lgwait_all()


def row_stats_M(q, tmp):
    q(f"""v_and_b32 v{tmp}, 31, v{vLANE}
    v_bfe_u32 v{tmp+1}, v{tmp}, 2, 1
    v_lshlrev_b32 v{tmp+1}, 4, v{tmp+1}
    v_lshrrev_b32 v{tmp+2}, 3, v{tmp}
    v_lshl_add_u32 v{tmp+1}, v{tmp+2}, 2, v{tmp+1}
    v_and_b32 v{tmp+2}, 3, v{tmp}
    v_add_u32 v{tmp+1}, v{tmp+1}, v{tmp+2}
    v_lshlrev_b32 v{tmp+2}, 5, v{vRGV}
    v_add_u32 v{tmp+1}, v{tmp+2}, v{tmp+1}
    v_lshlrev_b32 v{tmp+1}, 3, v{tmp+1}
    v_add_u32 v{tmp+1}, {SCR}, v{tmp+1}""")
    q.ldsop(f"ds_read_b64 v[{vRINV}:{vRINV+1}], v{tmp+1} offset:{SCR_ST}", "rs")
    q.lgwait("rs")


vRGV = 2


def gelu_epi(q, acc, pos_s, cs_off, tagname, csr, T, maybe=False):
    K0 = -2.0 * math.sqrt(2.0 / math.pi) * LOG2E
    K1c = K0 * 0.044715
    q(f"""v_mov_b32 v{vK1}, {f2u(K1c)}
    v_lshrrev_b32 v{vCA}, 5, v{vLANE}
    v_lshlrev_b32 v{vCA}, 4, v{vCA}
    v_add_u32 v{vCA}, {SCR + SCR_CS + cs_off}, v{vCA}""")
    cg_, cu_ = csr, csr + 4
    for qq in range(4):
        q.ldsop(f"ds_read_b128 v[{cg_}:{cg_+3}], v{vCA} offset:{qq*32}", "cs")
        q.ldsop(f"ds_read_b128 v[{cu_}:{cu_+3}], v{vCA} offset:{128 + qq*32}", "cs")
        q.lgwait("cs")
        rs = [4 * qq + i for i in range(4)]
        for i, r in enumerate(rs):
            q(f"v_fma_f32 v{acc+r}, v{vNM}, v{cg_+i}, v{acc+r}")
        for i, r in enumerate(rs):
            q(f"v_fma_f32 v{acc+16+r}, v{vNM}, v{cu_+i}, v{acc+16+r}")
        for i, r in enumerate(rs):
            q(f"v_mul_f32 v{acc+r}, v{acc+r}, v{vRINV}")
        for i, r in enumerate(rs):
            q(f"v_mul_f32 v{T+i}, v{acc+r}, v{acc+r}")
        for i, r in enumerate(rs):
            q(f"v_fmaak_f32 v{T+i}, v{vK1}, v{T+i}, {f2u(K0)}")
        for i, r in enumerate(rs):
            q(f"v_mul_f32 v{T+i}, v{T+i}, v{acc+r}")
        for i, r in enumerate(rs):
            q(f"v_exp_f32 v{T+i}, v{T+i}")
        for i, r in enumerate(rs):
            q(f"v_mul_f32 v{T+4+i}, v{acc+r}, v{acc+16+r}")
        for i, r in enumerate(rs):
            q(f"v_add_f32 v{T+i}, 1.0, v{T+i}")
        for i, r in enumerate(rs):
            q(f"v_rcp_f32 v{T+i}, v{T+i}")
        for i, r in enumerate(rs):
            q(f"v_mul_f32 v{T+4+i}, v{T+4+i}, v{vRINV}")
        for i, r in enumerate(rs):
            q(f"v_mul_f32 v{T+i}, v{T+i}, v{T+4+i}")
        q(f"v_cvt_pk_bf16_f32 v{acc+2*qq}, v{T}, v{T+1}\nv_cvt_pk_bf16_f32 v{acc+2*qq+1}, v{T+2}, v{T+3}")
    q(f"v_lshlrev_b32 v{T}, 4, v{vLANE}")
    q.vmop(f"buffer_store_dwordx4 v[{acc}:{acc+3}], v{T}, s[{SWS}:{SWS+3}], s{pos_s} offen sc1", tagname, maybe)
    q.vmop(f"buffer_store_dwordx4 v[{acc+4}:{acc+7}], v{T}, s[{SWS}:{SWS+3}], s{pos_s} offen offset:1024 sc1", tagname, maybe)


def s_params(q):
    vLre, vLim, vLdt = vT + 7, vT + 8, vT + 9
    t0, t1, t2, t3, t4, t5, t6 = [vT + i for i in range(7)]
    q(f"""v_lshlrev_b32 v{vLre}, 16, v{vA16r}
    v_lshlrev_b32 v{vLim}, 16, v{vA16i}
    v_lshlrev_b32 v{vLdt}, 16, v{vA128r}
    v_mul_f32 v{t0}, {f2u(LOG2E)}, v{vLdt}
    v_exp_f32 v{t0}, v{t0}
    s_nop 0""")
    rne_bf16(q, t0)
    q(f"""v_mul_f32 v{t1}, v{t0}, v{vLre}
    v_mul_f32 v{t2}, v{t0}, v{vLim}
    v_mul_f32 v{t1}, {f2u(LOG2E)}, v{t1}
    v_exp_f32 v{t1}, v{t1}
    v_mul_f32 v{t2}, {f2u(1.0/(2*math.pi))}, v{t2}
    v_rndne_f32 v{t3}, v{t2}
    v_sub_f32 v{t2}, v{t2}, v{t3}
    v_cos_f32 v{t3}, v{t2}
    v_sin_f32 v{t4}, v{t2}
    s_nop 0
    v_mul_f32 v{vAr}, v{t1}, v{t3}
    v_mul_f32 v{vAi}, v{t1}, v{t4}
    v_add_f32 v{t3}, -1.0, v{vAr}
    v_mul_f32 v{t4}, v{vLre}, v{vLre}
    v_fmac_f32 v{t4}, v{vLim}, v{vLim}
    v_rcp_f32 v{t4}, v{t4}
    v_mul_f32 v{t5}, v{t3}, v{vLre}
    v_fmac_f32 v{t5}, v{vAi}, v{vLim}
    v_mul_f32 v{t6}, v{vAi}, v{vLre}
    v_fma_f32 v{t6}, -v{t3}, v{vLim}, v{t6}
    v_add_f32 v{t4}, v{t4}, v{t4}
    v_mul_f32 v{vKr}, v{t5}, v{t4}
    v_mul_f32 v{vKi}, v{t6}, v{t4}
    v_mov_b32 v{vA16r}, v{vAr}
    v_mov_b32 v{vA16i}, v{vAi}""")

    def csq(r, i):
        q(f"""v_mul_f32 v{t0}, v{i}, v{i}
        v_mul_f32 v{t1}, v{r}, v{i}
        v_fma_f32 v{r}, v{r}, v{r}, -v{t0}
        v_add_f32 v{i}, v{t1}, v{t1}""")
    for _ in range(4):
        csq(vA16r, vA16i)
    q(f"v_mov_b32 v{vA128r}, v{vA16r}\nv_mov_b32 v{vA128i}, v{vA16i}")
    for _ in range(3):
        csq(vA128r, vA128i)


def s_epilogue1(q):
    zr = lambda j: vACC + j
    zi = lambda j: vACC + 16 + j
    T = vT
    CR, CI = T + 9, T + 10
    q(f"""v_and_b32 v{T}, 31, v{vLANE}
    v_lshlrev_b32 v{T+1}, 2, v{T}
    v_add_u32 v{T+1}, {SCR}, v{T+1}""")
    q.ldsop(f"ds_read_b32 v{CR}, v{T+1} offset:{SCR_CS}", "sc")
    q.ldsop(f"ds_read_b32 v{CI}, v{T+1} offset:{SCR_CS+128}", "sc")
    q(f"""v_lshrrev_b32 v{T+2}, 5, v{vLANE}
    v_lshlrev_b32 v{T+3}, 5, v{vRGV}
    v_lshl_add_u32 v{T+3}, v{T+2}, 4, v{T+3}
    v_lshlrev_b32 v{T+3}, 3, v{T+3}
    v_add_u32 v{T+3}, {SCR}, v{T+3}""")
    for qq in range(4):
        q.ldsop(f"ds_read_b128 v[4:7], v{T+3} offset:{SCR_ST + qq*32}", "sc")
        q.ldsop(f"ds_read_b128 v[8:11], v{T+3} offset:{SCR_ST + qq*32 + 16}", "sc")
        q.lgwait("sc")
        for i in range(4):
            j = 4 * qq + i
            ri, nm = 4 + 2 * i, 5 + 2 * i
            q(f"""v_fma_f32 v{zr(j)}, v{nm}, v{CR}, v{zr(j)}
            v_fma_f32 v{zi(j)}, v{nm}, v{CI}, v{zi(j)}
            v_mul_f32 v{zr(j)}, v{zr(j)}, v{ri}
            v_mul_f32 v{zi(j)}, v{zi(j)}, v{ri}""")
    cur, alt = (T + 4, T + 5), (T + 7, T + 8)
    q(f"v_mov_b32 v{cur[0]}, v{zr(0)}\nv_mov_b32 v{cur[1]}, v{zi(0)}")
    for j in range(1, 16):
        sr, si = cur
        nr, ni = alt
        q(f"""v_fma_f32 v{nr}, v{vAr}, v{sr}, v{zr(j)}
        v_fma_f32 v{ni}, v{vAr}, v{si}, v{zi(j)}
        v_fma_f32 v{nr}, -v{vAi}, v{si}, v{nr}
        v_fma_f32 v{ni}, v{vAi}, v{sr}, v{ni}""")
        cur, alt = alt, cur
    assert cur == (T + 7, T + 8) and (T + 7) % 2 == 0
    q(f"""v_lshlrev_b32 v{T+1}, 1, v{vRGV}
    v_add_u32 v{T+1}, v{T+1}, v{T+2}
    v_lshlrev_b32 v{T+1}, 8, v{T+1}
    v_lshl_add_u32 v{T+1}, v{T}, 3, v{T+1}
    v_add_u32 v{T+1}, {SCR}, v{T+1}""")
    q.ldsop(f"ds_write_b64 v{T+1}, v[{T+7}:{T+8}] offset:{SCR_ES}", "ew")


def s_publish(a):
    T = vT
    a(f"""s_waitcnt lgkmcnt(0)
    v_and_b32 v{T}, 31, v{vLANE}
    v_lshlrev_b32 v{T+1}, 3, v{T}
    v_add_u32 v{T+1}, {SCR}, v{T+1}
    ds_read_b64 v[4:5], v{T+1} offset:{SCR_ES}
    ds_read_b64 v[6:7], v{T+1} offset:{SCR_ES+256}
    ds_read_b64 v[8:9], v{T+1} offset:{SCR_ES+512}
    ds_read_b64 v[10:11], v{T+1} offset:{SCR_ES+768}
    s_waitcnt lgkmcnt(0)""")

    def step(er, ei):
        a(f"""v_fma_f32 v{T+2}, v{vA16r}, v4, v{er}
        v_fma_f32 v{T+3}, v{vA16r}, v5, v{ei}
        v_fma_f32 v{T+2}, -v{vA16i}, v5, v{T+2}
        v_fma_f32 v5, v{vA16i}, v4, v{T+3}
        v_mov_b32 v4, v{T+2}""")
    step(6, 7); step(8, 9); step(10, 11)
    a(f"""ds_read_b64 v[6:7], v{T+1} offset:{SCR_ES+1024}
    ds_read_b64 v[8:9], v{T+1} offset:{SCR_ES+1280}
    ds_read_b64 v[10:11], v{T+1} offset:{SCR_ES+1536}
    ds_read_b64 v[{T+5}:{T+6}], v{T+1} offset:{SCR_ES+1792}
    s_waitcnt lgkmcnt(0)""")
    assert (T + 5) % 2 == 0
    step(6, 7); step(8, 9); step(10, 11); step(T + 5, T + 6)
    a(f"""v_mov_b32 v6, v5
    v_mov_b32 v5, s{sTAG}
    v_mov_b32 v7, s{sTAG}
    s_lshl_b32 s{sT0}, s{sCG}, 5
    v_add_u32 v{T}, s{sT0}, v{T}
    v_lshlrev_b32 v{T}, 4, v{T}
    s_lshl_b32 s{sT0}, s{sRB}, 13
    s_add_u32 s{sT0}, s{sT0}, {WS_AGG}
    v_cmp_gt_u32 vcc, 32, v{vLANE}
    s_and_saveexec_b64 s[{sEX}:{sEX+1}], vcc
    buffer_store_dwordx4 v[4:7], v{T}, s[{SWS}:{SWS+3}], s{sT0} offen sc1
    s_mov_b64 exec, s[{sEX}:{sEX+1}]""")
    a.vm.append("pub"); a.nvm += 1


LBG = 160
HG = 192


def lookback_loads(a, tracked=True):
    a(f"""v_and_b32 v{vT+9}, 31, v{vLANE}
    s_lshl_b32 s{sT0}, s{sCG}, 5
    v_add_u32 v{vT+9}, s{sT0}, v{vT+9}
    v_lshlrev_b32 v{vT+9}, 4, v{vT+9}           ; p*16
    v_lshrrev_b32 v3, 5, v{vLANE}
    s_sub_u32 s{sT0}, s{sRB}, 1
    v_sub_u32 v3, s{sT0}, v3                    ; rb-1-hf
    v_lshlrev_b32 v3, 13, v3
    v_add_u32 v3, v3, v{vT+9}
    s_mov_b32 s{sT0}, {WS_AGG}
    v_mov_b32 v{vT+10}, 0x7ff00000""")
    for i in range(8):
        a(f"""v_subrev_u32 v{vT+9}, {i*16384}, v3
        v_cmp_gt_i32 vcc, 0, v{vT+9}
        s_nop 1
        v_cndmask_b32 v{vT+9}, v{vT+9}, v{vT+10}, vcc""")
        code = f"buffer_load_dwordx4 v[{LBG+4*i}:{LBG+4*i+3}], v{vT+9}, s[{SWS}:{SWS+3}], s{sT0} offen sc1"
        if tracked:
            a.vmop(code, "lb")
        else:
            a(code)


def s_work_atoms(a, q):
    zr = lambda j: vACC + j
    zi = lambda j: vACC + 16 + j
    T = vT
    L = LBG
    G = LBG
    EB = 192
    q(f"""v_and_b32 v{T+8}, 31, v{vLANE}
    v_lshlrev_b32 v{T}, 3, v{T+8}
    v_add_u32 v{T}, {SCR}, v{T}""")
    for s in range(8):
        q.ldsop(f"ds_read_b64 v[{EB+2*s}:{EB+2*s+1}], v{T} offset:{SCR_ES + s*256}", "se")
    q(f"""v_mul_f32 v{T+5}, v{vA128i}, v{vA128i}
    v_mul_f32 v{T+6}, v{vA128r}, v{vA128i}
    v_fma_f32 v{T+5}, v{vA128r}, v{vA128r}, -v{T+5}
    v_add_f32 v{T+6}, v{T+6}, v{T+6}""")

    def check():
        lp, got = a.newlab("LB"), a.newlab("LBG")
        a(f"s_mov_b32 s{sSPIN}, 0")
        a.vmwait("lb")
        a.label(lp)
        a(f"""v_lshrrev_b32 v{T+1}, 5, v{vLANE}
        s_sub_u32 s{sT0}, s{sRB}, 1
        v_sub_u32 v{T+1}, s{sT0}, v{T+1}
        s_mov_b64 s[{sMASK}:{sMASK+1}], 0""")
        for i in range(8):
            a(f"""v_cmp_ne_u32 vcc, s{sTAG}, v{L+4*i+1}
            v_cmp_ne_u32 s[{sEX}:{sEX+1}], s{sTAG}, v{L+4*i+3}
            s_or_b64 s[{sEX}:{sEX+1}], s[{sEX}:{sEX+1}], vcc
            v_cmp_le_i32 vcc, {2*i}, v{T+1}
            s_and_b64 s[{sEX}:{sEX+1}], s[{sEX}:{sEX+1}], vcc
            s_or_b64 s[{sMASK}:{sMASK+1}], s[{sMASK}:{sMASK+1}], s[{sEX}:{sEX+1}]""")
        a(f"""s_cmp_eq_u64 s[{sMASK}:{sMASK+1}], 0
        s_cbranch_scc1 {got}
        s_add_u32 s{sSPIN}, s{sSPIN}, 1
        s_cmp_gt_u32 s{sSPIN}, {SPIN_MAX}
        s_cbranch_scc1 {got}""")
        lookback_loads(a, tracked=False)
        a(f"s_waitcnt vmcnt(0)\ns_branch {lp}")
        a.label(got)
    q.q.append(("call", check))
    cr, ci = T + 1, T + 2
    q(f"v_mov_b32 v{cr}, v{L+28}\nv_mov_b32 v{ci}, v{L+30}")
    for i in range(6, -1, -1):
        q(f"""v_fma_f32 v{T+3}, v{T+5}, v{cr}, v{L+4*i}
        v_fma_f32 v{T+4}, v{T+5}, v{ci}, v{L+4*i+2}
        v_fma_f32 v{T+3}, -v{T+6}, v{ci}, v{T+3}
        v_fma_f32 v{ci}, v{T+6}, v{cr}, v{T+4}
        v_mov_b32 v{cr}, v{T+3}""")
    q(f"""v_mov_b32 v{T+3}, v{cr}
    v_mov_b32 v{T+4}, v{ci}
    s_nop 1
    v_permlane32_swap_b32 v{cr}, v{T+3}
    v_permlane32_swap_b32 v{ci}, v{T+4}
    s_nop 1
    v_fma_f32 v{cr}, v{vA128r}, v{T+3}, v{cr}
    v_fma_f32 v{ci}, v{vA128r}, v{T+4}, v{ci}
    v_fma_f32 v{cr}, -v{vA128i}, v{T+4}, v{cr}
    v_fma_f32 v{ci}, v{vA128i}, v{T+3}, v{ci}
    v_lshrrev_b32 v{T+5}, 5, v{vLANE}
    v_lshl_add_u32 v{T+5}, v{vRGV}, 1, v{T+5}""")
    q.lgwait("se")
    for s in range(7):
        def seg(s=s):
            a(f"""v_fma_f32 v{T+3}, v{vA16r}, v{cr}, v{EB+2*s}
            v_fma_f32 v{T+4}, v{vA16r}, v{ci}, v{EB+2*s+1}
            v_cmp_lt_u32 vcc, {s}, v{T+5}
            v_fma_f32 v{T+3}, -v{vA16i}, v{ci}, v{T+3}
            v_fma_f32 v{T+4}, v{vA16i}, v{cr}, v{T+4}
            v_cndmask_b32 v{cr}, v{cr}, v{T+3}, vcc
            v_cndmask_b32 v{ci}, v{ci}, v{T+4}, vcc""")
        q.q.append(("calln", seg, 7))
    cur, alt = (cr, ci), (T + 3, T + 4)
    for j in range(16):
        sr, si = cur
        nr, ni = alt
        q(f"""v_fma_f32 v{nr}, v{vAr}, v{sr}, v{zr(j)}
        v_fma_f32 v{ni}, v{vAr}, v{si}, v{zi(j)}
        v_fma_f32 v{nr}, -v{vAi}, v{si}, v{nr}
        v_fma_f32 v{ni}, v{vAi}, v{sr}, v{ni}
        v_mul_f32 v{zr(j)}, v{vKr}, v{nr}
        v_mul_f32 v{zi(j)}, -v{vKr}, v{ni}
        v_fma_f32 v{zr(j)}, -v{vKi}, v{ni}, v{zr(j)}
        v_fma_f32 v{zi(j)}, -v{vKi}, v{nr}, v{zi(j)}""")
        cur, alt = alt, cur
    for j in range(0, 16, 2):
        q(f"v_cvt_pk_bf16_f32 v{G+j//2}, v{zr(j)}, v{zr(j+1)}")
        q(f"v_cvt_pk_bf16_f32 v{G+8+j//2}, v{zi(j)}, v{zi(j+1)}")
    q(f"""v_lshlrev_b32 v{T+6}, 12, v{vRGV}
    v_add_u32 v{T+6}, {SCR_T}, v{T+6}
    v_lshrrev_b32 v{T+5}, 5, v{vLANE}
    v_lshlrev_b32 v{T+5}, 3, v{T+5}
    v_lshl_add_u32 v{T+5}, v{T+8}, 6, v{T+5}
    v_add_u32 v{T+5}, v{T+6}, v{T+5}
    v_add_u32 v{T+6}, v{T+6}, v{vTRL}
    v_lshlrev_b32 v{T}, 4, v{vLANE}""")
    for part in range(2):
        for qq in range(4):
            r = G + 8 * part + 2 * qq
            q.ldsop(f"ds_write_b64 v{T+5}, v[{r}:{r+1}] offset:{part*2048 + qq*16}", "tw")
    q.lgwait("tw")
    R = G + 16
    for part in range(2):
        for s2 in range(2):
            r = R + 8 * part + 4 * s2
            o = part * 2048 + s2 * 1024
            q.ldsop(f"ds_read_b64_tr_b16 v[{r}:{r+1}], v{T+6} offset:{o}", "tr")
            q.ldsop(f"ds_read_b64_tr_b16 v[{r+2}:{r+3}], v{T+6} offset:{o+256}", "tr")
    q.lgwait("tr")
    for part in range(2):
        for s2 in range(2):
            r = R + 8 * part + 4 * s2
            q.vmop(f"buffer_store_dwordx4 v[{r}:{r+3}], v{T}, s[{SWS}:{SWS+3}], s{sMU} offen offset:{(2*part+s2)*1024} sc1", "h")


vTRL = 3


def gen(a):
    global vTRL
    vTRL = 0
    sIDX = sMX
    if STAMPS:
        a(f"s_memrealtime s[{sMASK}:{sMASK+1}]")
    a(f"""s_cmp_ge_u32 s2, 256
    s_cbranch_scc1 L_END
    s_load_dwordx16 s[40:55], s[0:1], 0
    s_load_dwordx16 s[56:71], s[0:1], 64
    v_and_b32 v{vLANE}, 63, v0
    v_lshrrev_b32 v2, 6, v0
    s_and_b32 s{sT0}, s2, 7            ; xcd
    v_readfirstlane_b32 s{sW}, v2
    s_lshr_b32 s{sIDX}, s2, 3          ; idx
    s_and_b32 s{sRB}, s{sT0}, 1
    s_lshl_b32 s{sRB}, s{sRB}, 3
    s_and_b32 s{sT2}, s{sIDX}, 7
    s_add_u32 s{sRB}, s{sRB}, s{sT2}   ; rb
    s_lshr_b32 s{sCG}, s{sT0}, 1
    s_lshl_b32 s{sCG}, s{sCG}, 2
    s_lshr_b32 s{sT2}, s{sIDX}, 3
    s_add_u32 s{sCG}, s{sCG}, s{sT2}   ; cg
    s_and_b32 s{sRG}, s{sW}, 3
    s_lshl_b32 s{sKC0}, s{sCG}, 1
    s_add_u32 s{sKC0}, s{sKC0}, s{sRB}
    s_and_b32 s{sKC0}, s{sKC0}, 7
    s_lshl_b32 s{sRB2}, s{sT0}, 2
    s_and_b32 s{sT2}, s{sIDX}, 3
    s_add_u32 s{sRB2}, s{sRB2}, s{sT2}
    s_lshr_b32 s{sCB}, s{sIDX}, 2
    s_mul_i32 s{sT2}, s{sCG}, 3
    s_lshl_b32 s{sT3}, s{sCG}, 1
    s_add_u32 s{sT3}, s{sT3}, 11
    s_cmp_lt_u32 s{sCG}, 11
    s_cselect_b32 s{sU0B}, s{sT2}, s{sT3}
    s_cselect_b32 s{sDUM}, 64, 0x40000000
    s_lshl_b32 s{sU0B}, s{sU0B}, 6
    s_lshl_b32 s{sLW}, s{sRG}, 12           ; w'*4096
    s_lshl_b32 s{sMS}, s{sRG}, 11
    s_add_u32 s{sMS}, s{sMS}, 16384         ; S pieces: 16384 + w'*2048
    s_lshl_b32 s{sM1}, s{sRG}, 10           ; kstep*1024
    v_lshrrev_b32 v2, 3, v{vLANE}           ; lane>>3
    v_and_b32 v3, 7, v{vLANE}
    v_lshrrev_b32 v{vT}, 4, v{vLANE}        ; lane>>4
    v_xor_b32 v{vT+1}, v3, v{vT}            ; (lane&7)^(lane>>4)
    s_lshl_b32 s{sT2}, s{sRB}, 7
    s_lshl_b32 s{sT3}, s{sRG}, 5
    s_add_u32 s{sT2}, s{sT2}, s{sT3}
    v_add_u32 v{vT+2}, s{sT2}, v2
    v_lshlrev_b32 v{vT+2}, 10, v{vT+2}
    v_lshl_add_u32 v{vDX0}, v{vT+1}, 4, v{vT+2}
    v_xor_b32 v{vDX1}, 64, v{vDX0}
    v_add_u32 v{vDX1}, 8192, v{vDX1}
    s_and_b32 s{sT4}, s{sRG}, 1
    s_lshl_b32 s{sT4}, s{sT4}, 4
    s_lshl_b32 s{sT3}, s{sCG}, 5
    s_add_u32 s{sT4}, s{sT4}, s{sT3}
    v_add_u32 v{vT+2}, s{sT4}, v2
    v_lshlrev_b32 v{vT+2}, 10, v{vT+2}
    v_lshl_add_u32 v{vDS}, v{vT+1}, 4, v{vT+2}
    v_xor_b32 v{vDS1}, 64, v{vDS}
    v_add_u32 v{vDS1}, 8192, v{vDS1}
    v_lshrrev_b32 v{vT+2}, 2, v{vLANE}
    s_lshl_b32 s{sT4}, s{sRG}, 4
    v_add_u32 v{vT+2}, s{sT4}, v{vT+2}
    v_mul_u32_u24 v{vT+2}, 2752, v{vT+2}
    v_and_b32 v{vT+4}, 3, v{vLANE}
    v_lshl_add_u32 v{vDM}, v{vT+4}, 4, v{vT+2}
    v_lshlrev_b32 v{vT+3}, 4, v{vLANE}
    s_and_b32 s{sT4}, s{sW}, 2
    s_waitcnt lgkmcnt(0)""")
    pstamp(a, 0)
    srd(a, SX, P_X, 2048 * 1024)
    a(f"""s_cmp_eq_u32 s{sT4}, 0
    s_cselect_b32 s{P_BRE}, s{P_BRE}, s{P_BIM}
    s_cselect_b32 s{P_BRE+1}, s{P_BRE+1}, s{P_BIM+1}
    s_cmp_lt_u32 s{sW}, 4
    s_cselect_b32 s{P_CRE}, s{P_CRE}, s{P_CIM}
    s_cselect_b32 s{P_CRE+1}, s{P_CRE+1}, s{P_CIM+1}""")
    lab0, lab1 = a.newlab("D0"), a.newlab("D1")
    a(f"s_cmp_lt_u32 s{sW}, 4\ns_cbranch_scc1 {lab0}")
    for s_ in range(NPRE):
        for code, tag in dma_p0(s_, 1):
            a(code)
    srd(a, SS, P_BRE, 512 * 1024)
    srd(a, SM, P_WG, 512 * 2752)
    a(f"s_branch {lab1}")
    a.label(lab0)
    srd(a, SS, P_BRE, 512 * 1024)
    srd(a, SM, P_WG, 512 * 2752)
    a(f"s_mov_b32 s{sT4}, s{P_WU}\ns_mov_b32 s{sT5}, s{P_WU+1}")
    srd(a, 32, sT4, 512 * 2752)
    for s_ in range(NPRE):
        for code, tag in dma_p0(s_, 0):
            a(code.replace(f"s[{SM2}:{SM2+3}]", "s[32:35]"))
        if s_ == 0:
            a(f"""s_lshl_b32 s{sT2}, s2, 3
            s_lshl_b32 s{sT3}, s{sRG}, 1
            s_add_u32 s{sT5}, s{sT2}, s{sT3}
            s_lshl_b32 s{sT5}, s{sT5}, 10
            buffer_load_dwordx4 v[{vACC}:{vACC+3}], v{vT+3}, s[{SX}:{SX+3}], s{sT5} offen
            buffer_load_dwordx4 v[{vACC+4}:{vACC+7}], v{vT+3}, s[{SX}:{SX+3}], s{sT5} offen offset:1024""")
    a.label(lab1)
    srd(a, SWS, P_WS, WS_SIZE)
    a(f"""s_add_u32 s{P_BIM}, s{P_WS}, {WS_EPOCH}
    s_addc_u32 s{P_BIM+1}, s{P_WS+1}, 0
    s_load_dword s{sTAG}, s[{P_BIM}:{P_BIM+1}], 0""")
    srd(a, SM2, P_WU, 512 * 2752)
    pstamp(a, 1)
    srd(a, SWD, P_WD, 1376 * 1024)
    srd(a, SC, P_CRE, 512 * 1024)
    a(f"""v_and_b32 v{vT+2}, 31, v{vLANE}
    s_lshl_b32 s{sT4}, s{sCG}, 5
    v_add_u32 v{vT+2}, s{sT4}, v{vT+2}
    v_lshlrev_b32 v{vT+2}, 1, v{vT+2}""")
    srd(a, ST, P_LRE, 1024)
    a.vmop(f"buffer_load_ushort v{vA16r}, v{vT+2}, s[{ST}:{ST+3}], 0 offen", "par")
    srd(a, ST, P_LIM, 1024)
    a.vmop(f"buffer_load_ushort v{vA16i}, v{vT+2}, s[{ST}:{ST+3}], 0 offen", "par")
    srd(a, ST, P_LDT, 1024)
    a.vmop(f"buffer_load_ushort v{vA128r}, v{vT+2}, s[{ST}:{ST+3}], 0 offen", "par")
    pstamp(a, 2)
    srd(a, SO, P_OUT, 2048 * 2048)
    srd(a, ST, P_DSK, 1024)
    if CODE_PREFETCH:
        lab = a.newlab("CP")
        a(f"""s_cmp_eq_u32 s{sW}, 3
        s_cbranch_scc0 {lab}
        s_getpc_b64 s[{sT2}:{sT3}]""")
        a.label("L_PC")
        a(f"""s_mul_i32 s{sT4}, s{sIDX}, {10*128}
        v_lshlrev_b32 v{vT+2}, 7, v{vLANE}
        v_add_u32 v{vT+2}, s{sT4}, v{vT+2}
        v_cmp_gt_u32 vcc, L_CODE_END-L_PC, v{vT+2}
        s_and_saveexec_b64 s[{sEX}:{sEX+1}], vcc
        v_cmp_gt_u32 vcc, 10, v{vLANE}
        s_and_b64 exec, exec, vcc
        s_cbranch_execz {lab}_R
        global_load_dword v{vK1}, v{vT+2}, s[{sT2}:{sT3}]""")
        a.label(lab + "_R")
        a(f"s_mov_b64 exec, s[{sEX}:{sEX+1}]")
        a.label(lab)
    a(f"""s_lshr_b32 s{sT3}, s{sW}, 1                ; w>>1
    s_and_b32 s{sT4}, s{sW}, 1
    s_lshl_b32 s{sT4}, s{sT4}, 14            ; (w&1)*16384
    s_mul_i32 s{s3RG}, s{sT3}, {3*32768}
    s_add_u32 s{s3RG}, s{s3RG}, s{sT4}
    s_lshl_b32 s{s2RG}, s{sT3}, 16
    s_add_u32 s{s2RG}, s{s2RG}, s{sT4}
    s_cmp_eq_u32 s{sT3}, 3
    s_cselect_b32 s{sAOFF}, 0x40000000, s{s3RG}
    s_lshl_b32 s{sXB}, s{sRG}, 14
    s_lshl_b32 s{sRT}, s{sW}, 11
    s_lshl_b32 s{sT2}, s{sRB}, 2
    s_add_u32 s{sT2}, s{sT2}, s{sRG}
    s_mul_i32 s{sHPOS}, s{sT2}, {RT_STRIDE}
    s_lshl_b32 s{sT4}, s{sRB2}, 1
    s_lshr_b32 s{sT3}, s{sW}, 2
    s_add_u32 s{sT4}, s{sT4}, s{sT3}
    s_mul_i32 s{sT4}, s{sT4}, {RT_STRIDE}
    s_lshl_b32 s{sT3}, s{sRG}, 11
    s_add_u32 s{sT4}, s{sT4}, s{sT3}
    v_lshlrev_b32 v{vDA}, 4, v{vLANE}
    v_add_u32 v{vDA}, s{sT4}, v{vDA}
    v_bfe_u32 v{vT+2}, v{vLANE}, 4, 1
    v_lshlrev_b32 v{vT+2}, 2, v{vT+2}
    v_xor_b32 v{vT+2}, v3, v{vT+2}
    v_lshlrev_b32 v{vT+4}, 10, v2
    v_lshl_add_u32 v{vT+2}, v{vT+2}, 4, v{vT+4}
    s_lshl_b32 s{sT4}, s{sCB}, 7
    v_add_u32 v{vDB}, s{sT4}, v{vT+2}
    s_lshl_b32 s{sT4}, s{sCB}, 6
    v_add_u32 v{vT+2}, s{sT4}, v2
    v_lshlrev_b32 v{vT+2}, 10, v{vT+2}
    v_lshl_add_u32 v{vDC0}, v{vT+1}, 4, v{vT+2}
    v_xor_b32 v{vDC1}, 64, v{vDC0}
    v_and_b32 v2, 31, v{vLANE}
    v_bfe_u32 v3, v2, 2, 1
    v_lshlrev_b32 v3, 4, v3
    v_lshrrev_b32 v{vT}, 3, v2
    v_lshl_add_u32 v3, v{vT}, 2, v3
    v_and_b32 v{vT+1}, 3, v2
    v_add_u32 v3, v3, v{vT+1}               ; tau
    v_bfe_u32 v{vT}, v3, 1, 3
    s_lshl_b32 s{sT4}, s{sRG}, 5
    v_add_u32 v3, s{sT4}, v3
    v_lshlrev_b32 v3, 7, v3
    v_lshrrev_b32 v{vT+1}, 5, v{vLANE}
    v_xor_b32 v{vT}, v{vT}, v{vT+1}
    v_lshl_add_u32 v{vXA}, v{vT}, 4, v3
    v_xor_b32 v{vXA+1}, 32, v{vXA}
    v_xor_b32 v{vXA+2}, 64, v{vXA}
    v_xor_b32 v{vXA+3}, 96, v{vXA}
    v_lshlrev_b32 v3, 3, v{vT+1}
    v_bfe_u32 v{vT}, v{vLANE}, 2, 2
    v_add_u32 v3, v3, v{vT}
    v_lshlrev_b32 v3, 6, v3
    v_bfe_u32 v{vT}, v{vLANE}, 4, 1
    v_lshl_add_u32 v3, v{vT}, 5, v3
    v_and_b32 v{vT}, 3, v{vLANE}
    v_lshl_add_u32 v{vTRL}, v{vT}, 3, v3
    s_lshr_b32 s{sT4}, s{sW}, 2
    s_lshl_b32 s{sT4}, s{sT4}, 13
    v_add_u32 v{vW1}, s{sT4}, v{vTRL}
    v_mov_b32 v{vRGV}, s{sRG}""")
    pstamp(a, 3)
    a(f"""s_cmp_ge_u32 s{sW}, 4
    s_cbranch_scc1 L_STREAM_B""")
    save = (list(a.vm), list(a.lg), a.nvm)
    stream(a, 0)
    a.vm, a.lg, a.nvm = list(save[0]), list(save[1]), save[2]
    a.label("L_STREAM_B")
    stream(a, 1)
    a.label("L_END")
    a("s_endpgm")
    a.label("L_CODE_END")


def w2_touch(a, which, junk=None):
    if not W2_PREFETCH:
        return
    sIDX = sMX
    j = junk or vDA
    a(f"v_lshlrev_b32 v3, 7, v{vLANE}")
    if which in (0, 1):
        a(f"""s_mul_i32 s{sT0}, s{sIDX}, 44032
        s_lshl_b32 s{sT1}, s{sRG}, 13
        s_add_u32 s{sT0}, s{sT0}, s{sT1}
        s_add_u32 s{sT0}, s{sT0}, {32768*which}""")
        a.vmop(f"buffer_load_dword v{j}, v3, s[{SWD}:{SWD+3}], s{sT0} offen", "pf")
    else:
        a(f"""s_lshl_b32 s{sT0}, s{sIDX}, 14
        s_and_b32 s{sT1}, s{sRG}, 1
        s_lshl_b32 s{sT1}, s{sT1}, 13
        s_add_u32 s{sT0}, s{sT0}, s{sT1}""")
        a.vmop(f"buffer_load_dword v{j}, v3, s[{SC}:{SC+3}], s{sT0} offen", "pf")


def w2_touch16(a, piece, junk):
    if not W2_PREFETCH:
        return
    sIDX = sMX
    a(f"v_lshlrev_b32 v3, 7, v{vLANE}")
    if piece < 6:
        a(f"""s_mul_i32 s{sT0}, s{sIDX}, 44032
        s_lshl_b32 s{sT1}, s{sRG}, 11
        s_add_u32 s{sT0}, s{sT0}, s{sT1}
        s_add_u32 s{sT0}, s{sT0}, {piece*8192}
        s_mov_b64 s[{sEX}:{sEX+1}], exec
        s_mov_b64 exec, 0xffff""")
        a.vmop(f"buffer_load_dword v{junk}, v3, s[{SWD}:{SWD+3}], s{sT0} offen", "pf")
    else:
        a(f"""s_lshl_b32 s{sT0}, s{sIDX}, 14
        s_lshl_b32 s{sT1}, s{sRG}, 11
        s_add_u32 s{sT0}, s{sT0}, s{sT1}
        s_add_u32 s{sT0}, s{sT0}, {(piece-6)*8192}
        s_mov_b64 s[{sEX}:{sEX+1}], exec
        s_mov_b64 exec, 0xffff""")
        a.vmop(f"buffer_load_dword v{junk}, v3, s[{SC}:{SC+3}], s{sT0} offen", "pf")
    a(f"s_mov_b64 exec, s[{sEX}:{sEX+1}]")


def ln_stats(a, src, row_s):
    U = vACC2
    for i in range(4):
        a(f"v_lshlrev_b32 v{U+2*i}, 16, v{src+i}\nv_and_b32 v{U+2*i+1}, 0xffff0000, v{src+i}")
    a(f"""v_add_f32 v{vT}, v{U}, v{U+1}
    v_add_f32 v{vT+1}, v{U+2}, v{U+3}
    v_add_f32 v{vT+2}, v{U+4}, v{U+5}
    v_add_f32 v{vT+4}, v{U+6}, v{U+7}
    v_add_f32 v{vT}, v{vT}, v{vT+1}
    v_add_f32 v{vT+2}, v{vT+2}, v{vT+4}
    v_add_f32 v{vT}, v{vT}, v{vT+2}""")
    wave_sum(a, vT, sT4)
    a(f"""s_nop 1
    v_mov_b32 v{vT+1}, s{sT4}
    v_mul_f32 v{vT+1}, {f2u(1.0/512)}, v{vT+1}
    v_mov_b32 v{vT}, 0""")
    for i in range(8):
        a(f"v_sub_f32 v{vT+2}, v{U+i}, v{vT+1}\nv_fmac_f32 v{vT}, v{vT+2}, v{vT+2}")
    wave_sum(a, vT, sT4)
    a(f"""s_nop 1
    v_mov_b32 v{vT+2}, s{sT4}
    v_mul_f32 v{vT+2}, {f2u(1.0/512)}, v{vT+2}""")
    rne_bf16(a, vT + 1)
    rne_bf16(a, vT + 2)
    a(f"v_add_f32 v{vT+2}, {f2u(1e-5)}, v{vT+2}")
    rne_bf16(a, vT + 2)
    a(f"v_sqrt_f32 v{vT+2}, v{vT+2}\ns_nop 0")
    rne_bf16(a, vT + 2)
    a(f"""v_mov_b32 v{U}, v{vT+1}
    v_mov_b32 v{U+1}, s{sTAG}
    v_mov_b32 v{U+2}, v{vT+2}
    v_mov_b32 v{U+3}, s{sTAG}
    s_lshl_b32 s{sT4}, s{row_s}, 4
    s_add_u32 s{sT4}, s{sT4}, {WS_STAT}
    v_mov_b32 v{vT}, 0
    s_mov_b64 s[{sEX}:{sEX+1}], exec
    s_mov_b64 exec, 1""")
    a.vmop(f"buffer_store_dwordx4 v[{U}:{U+3}], v{vT}, s[{SWS}:{SWS+3}], s{sT4} offen sc1", "stat")
    a(f"s_mov_b64 exec, s[{sEX}:{sEX+1}]")


def stream(a, ch):
    a(f"s_waitcnt lgkmcnt(0)\ns_add_u32 s{sTAG}, s{sTAG}, 1")
    if ch == 0:
        a.vm = ["st0"] * 4 + ["lnrow", "lnrow"] + [f"st{g}" for g in range(1, NPRE) for _ in range(4)] + ["par"] * 3
        a(f"""v_and_b32 v3, 31, v{vLANE}
        v_bfe_u32 v{vT}, v3, 1, 3
        v_lshrrev_b32 v{vT+1}, 5, v{vLANE}
        v_xor_b32 v{vT}, v{vT}, v{vT+1}
        v_lshlrev_b32 v3, 7, v3
        v_lshl_add_u32 v3, v{vT}, 4, v3
        v_add_u32 v{vWS}, 16384, v3
        v_xor_b32 v{vWS+1}, 32, v{vWS}
        v_xor_b32 v{vWS+2}, 64, v{vWS}
        v_xor_b32 v{vWS+3}, 96, v{vWS}""")
        waddr0 = [vWS + i for i in range(4)]
        a.vmwait("lnrow")
        pstamp(a, 4)
        a(f"""s_lshl_b32 s{sT2}, s2, 3
        s_lshl_b32 s{sT3}, s{sRG}, 1
        s_add_u32 s{sT5}, s{sT2}, s{sT3}""")
        ln_stats(a, vACC, sT5)
        a(f"s_add_u32 s{sT5}, s{sT5}, 1")
        ln_stats(a, vACC + 4, sT5)
    else:
        a.vm = [f"st{g}" for g in range(NPRE) for _ in range(4)] + ["par"] * 3
        a(f"v_add_u32 v{vWM}, 24576, v{vTRL}")
        waddr0 = [vWM]
    if W2_AT == 0 and ch == 0:
        for wch in (0, 2, 1):
            w2_touch(a, wch)
    stamp(a, 0)
    if PSTAMP:
        a(f"s_lshl_b32 s{sT0}, s2, 3\ns_add_u32 s{sT0}, s{sT0}, s{sW}\ns_lshl_b32 s{sT0}, s{sT0}, 6\ns_add_u32 s{sT0}, s{sT0}, {WS_DBG + 0x40000}")
        a("v_mov_b32 v3, 0")
        for i in range(5):
            a(f"buffer_store_dword v{232+i}, v3, s[{SWS}:{SWS+3}], s{sT0} offen offset:{4*i}")
        a.vm += ["x"] * 5
    a(f"""s_lshr_b32 s{sCSM}, s{sRB}, 3
    s_add_u32 s{sCSM}, s{sCSM}, 1
    s_cmp_eq_u32 s{sRG}, 0
    s_cselect_b32 s{sCSM}, s{sCSM}, 0""")
    for i in range(4):
        a(f"v_mov_b32 v{ONES+i}, 0x3f803f80")
    for i in range(64):
        a(f"v_mov_b32 v{vACC+i}, 0")
    xaddr = [vXA + i for i in range(4)]

    slots = []
    for g in range(8):
        for j in range(4):
            for t in range(2):
                slots.append((g, 0, j, t))
    for g in range(8, 12):
        for c2 in range(2):
            for j in range(4):
                for t in range(2):
                    slots.append((g, c2, j, t))
    NS = len(slots)
    first_of = {}
    last_of = {}
    for n, (g, c2, j, t) in enumerate(slots):
        first_of.setdefault(g, n)
        last_of[g] = n
    hi_state = {"x": 0, "w0": 0, "w1": 0}

    def set_hi(key, regs, g):
        hi = ((g % NSLOT) * SLOT) >> 16
        if hi_state[key] != hi:
            for r in regs:
                a(f"v_xor_b32 v{r}, 0x10000, v{r}")
            hi_state[key] = hi

    def frag_reg(n):
        return vFR + 4 * (n % 4)

    def issue_reads(n):
        g, c2, j, t = slots[n]
        lo = ((g % NSLOT) * SLOT) & 0xffff
        f = frag_reg(n)
        tag = f"w{n}"
        if g < 8:
            if j == 0 and t == 0:
                set_hi("x", xaddr, g)
                set_hi("w0", waddr0, g)
                for jj in range(4):
                    r = vXF + 4 * (4 * g + jj)
                    a.ldsop(f"ds_read_b128 v[{r}:{r+3}], v{vXA+jj} offset:{lo}", f"x{g}_{jj}")
            if ch == 0:
                a.ldsop(f"ds_read_b128 v[{f}:{f+3}], v{vWS+j} offset:{lo + t*4096}", tag)
            else:
                o = lo + t * 4096 + j * 1024
                a.ldsop(f"ds_read_b64_tr_b16 v[{f}:{f+1}], v{vWM} offset:{o}", tag)
                a.ldsop(f"ds_read_b64_tr_b16 v[{f+2}:{f+3}], v{vWM} offset:{o+256}", tag)
        else:
            if c2 == 0 and j == 0 and t == 0:
                set_hi("w1", [vW1], g)
            o = lo + c2 * 16384 + t * 4096 + j * 1024
            a.ldsop(f"ds_read_b64_tr_b16 v[{f}:{f+1}], v{vW1} offset:{o}", tag)
            a.ldsop(f"ds_read_b64_tr_b16 v[{f+2}:{f+3}], v{vW1} offset:{o+256}", tag)

    def mfma(n):
        g, c2, j, t = slots[n]
        f = frag_reg(n)
        if g < 8:
            xf = vXF + 4 * (4 * g + j)
            acc = vACC + 16 * t
            a.lgwait(f"x{g}_{j}")
        else:
            xf = vXF + 4 * (4 * (2 * (g - 8) + c2) + j)
            acc = vACC2 + 16 * t
        a.lgwait(f"w{n}")
        if ch == 0 and g < 8:
            a(f"v_mfma_f32_32x32x16_bf16 v[{acc}:{acc+15}], v[{xf}:{xf+3}], v[{f}:{f+3}], v[{acc}:{acc+15}]")
        else:
            a(f"v_mfma_f32_32x32x16_bf16 v[{acc}:{acc+15}], v[{f}:{f+3}], v[{xf}:{xf+3}], v[{acc}:{acc+15}]")

    def colsum_at(n):
        g, c2, j, t = slots[n]
        if (g == 0) or (g == 8 and c2 == 1):
            acc = CSACC if g == 0 else CS1ACC
            lab = a.newlab("CSK")
            f = frag_reg(n)
            c = "0" if j == 0 else f"v[{acc}:{acc+15}]"
            a(f"""s_cmp_eq_u32 s{sCSM}, {t+1}
            s_cbranch_scc0 {lab}
            v_mfma_f32_32x32x16_bf16 v[{acc}:{acc+15}], v[{ONES}:{ONES+3}], v[{f}:{f+3}], {c}""")
            a.label(lab)

    dmaq = []

    def stage_barrier(g):
        if ch == 0 and g == 7:
            gather_finish(a, 0, GATH0, a.nvm - marks["g0"], 3)
            for i in range(16):
                a(f"v_mov_b32 v{GATH0+i}, 0")
        if g == 10 and ch == 1:
            a.vmwait("u0")
            write_flag(a, 0, ch)
        a.vmwait(f"st{g+1}")
        a("s_barrier")
        if ch == 0 and g in (8, 9) and marks.get("edone") and not marks.get("published"):
            a.fill_all(); s_publish(a); a.lg = []
            marks["published"] = True
        nxt = g + 3
        if E("X_NODMA", 0):
            pass
        elif nxt < 8:
            dmaq.extend(dma_p0(nxt, ch))
        elif nxt < 12:
            dmaq.extend(dma_p1(nxt - 8, ch))
        if g == 9:
            dmaq.extend(p2_B(0)); dmaq.extend(p2_B(1))
        if g == 10:
            dmaq.extend(p2_B(2)); dmaq.extend(p2_B(3))

    marks = {}
    if (PRIO == 2 and ch == 1) or (PRIO == 3 and ch == 0):
        a("s_setprio 1")
    a.vmwait("st0")
    a("s_barrier")
    stamp(a, 1)
    for s_ in range(NPRE, 3):
        dmaq.extend(dma_p0(s_, ch))
    for n in range(LOOK):
        issue_reads(n)
    for n in range(NS):
        g, c2, j, t = slots[n]
        mfma(n)
        colsum_at(n)
        nn = n + LOOK
        if nn < NS:
            if slots[nn][0] != slots[nn - 1][0]:
                stage_barrier(slots[nn - 1][0])
            issue_reads(nn)
        every = (PACE0 if g < 8 else PACE1)
        npop = 2 if len(dmaq) > 4 else (1 if (n % every == 0) else 0)
        for _ in range(DMA_RATE if DMA_RATE else npop):
            if dmaq:
                code, tag = dmaq.pop(0)
                a.vmop(code, tag)
        if g >= 8:
            a.fill(FILL0 if ch == 0 else FILL)
        elif g >= 3:
            a.fill(3)
        if W2_AT == 4 and g >= W2_G0 and (n - first_of[g]) in (W2_P1, W2_P2):
            k = 2 * (g - W2_G0) + (0 if (n - first_of[g]) == W2_P1 else 1)
            if ch == 1 and k < 8:
                w2_touch16(a, k, vDS)
            if ch == 0 and k in (1, 3):
                w2_touch16(a, 6 + (k // 2), vDX0)
        if n == last_of[g]:
            if P1DBG == 4 and g < 9:
                a(f"s_memtime s[{STAMP0+2*(5+g)}:{STAMP0+2*(5+g)+1}]")
            if P1DBG == 5 and g >= 7:
                a(f"s_memtime s[{STAMP0+2*(g-2)}:{STAMP0+2*(g-2)+1}]")
            if P1DBG == 1 and g in (8, 9, 10):
                stamp(a, {8: 9, 9: 13, 10: 6}[g], force=True)
            if P1DBG == 2 and g in (1, 3, 5):
                stamp(a, {1: 9, 3: 13, 5: 6}[g], force=True)
            if g == 0:
                colsum_store(a, CSACC, ch)
                a("s_nop 7")
                for i in range(16):
                    a(f"v_mov_b32 v{CSACC+i}, 0")
            if W2_AT == 1 and ch == 0 and g in (3, 4, 8):
                w2_touch(a, {3: 0, 4: 2, 8: 1}[g])
            if W2_AT == 3 and ch == 1 and W2_G0 <= g < W2_G0 + 8:
                w2_touch16(a, g - W2_G0, vDS)
            if W2_AT == 3 and ch == 0 and g in (W2_G0 + 1, W2_G0 + 3):
                w2_touch16(a, 6 + (g - W2_G0) // 2, vDX0)
            if W2_AT == 2 and ch == 1 and g == 9:
                for wch in (0, 2, 1):
                    w2_touch(a, wch, junk=vDS)
            if g == 2 and ch == 0:
                a.vmwait("par")
                q = Q()
                s_params(q)
                a.fillq = q.q
            if g == 5 and ch == 0:
                gather_loads(a, 0, GATH0, 3, tracked=True)
                marks["g0"] = a.nvm
            if g == 7:
                a.fill_all()
                stamp(a, 2)
                if PRIO == 1 and ch == 0:
                    a("s_setprio 1")
                q = Q()
                if ch == 1:
                    q(f"""s_lshl_b32 s{sT5}, s{sCG}, 11
                    s_add_u32 s{sT5}, s{sT5}, s{sHPOS}""")
                    row_stats_M(q, vT)
                    gelu_epi(q, vACC, sT5, 64 * 4, "u0", 4, vT)
                else:
                    s_epilogue1(q)
                    q.q.append(("call", lambda: marks.__setitem__("edone", True)))
                    row_stats_M(q, vT)
                a.fillq = q.q
            if g == 8:
                colsum_store(a, CS1ACC, 2 + ch, koff=1)
            if g == 9:
                a.fill_all()
                stamp(a, 3)
            if g == 10 and ch == 0:
                lookback_loads(a)
                a(f"""s_lshl_b32 s{sT5}, s{sCG}, 12
                s_add_u32 s{sMU}, s{sHPOS}, s{sT5}
                s_add_u32 s{sMU}, s{sMU}, {86*1024}""")
            if g == 10 and ch == 0 and not marks.get("published"):
                s_publish(a); a.lg = []
            if g == 10 and ch == 1:
                gather_loads(a, 1, GATH1, 3, tracked=True)
                marks["g1"] = a.nvm
    stamp(a, 4)
    while dmaq:
        code, tag = dmaq.pop(0)
        a.vmop(code, tag)
    if ch == 0:
        a.fill_all()
    else:
        gather_finish(a, 1, GATH1, a.nvm - marks["g1"], 3)
        poll_flags(a, 0, tracked=True)
        if A_TOUCH:
            only_rg(a, 3, lambda: touch_A(a, 0))
    a("s_barrier")
    stamp(a, 5)
    for st in range(4):
        for code, tag in p2_A(st):
            a.vmop(code, tag)
    for st in range(4, 8):
        for code, tag in p2_B(st):
            a.vmop(code, tag)
    if ch == 1:
        lab = a.newlab("U2S")
        stamp(a, 6)
        a(f"""s_cmp_ge_u32 s{sCG}, 11
        s_cbranch_scc1 {lab}
        s_lshl_b32 s{sT5}, s{sCG}, 11
        s_add_u32 s{sT5}, s{sT5}, s{sHPOS}
        s_add_u32 s{sT5}, s{sT5}, {64*1024}""")
        gelu_epi(a, vACC2, sT5, 192 * 4, "u12", 48, vT, maybe=True)
        a.label(lab)
        a.lg = []
        marks["u12"] = a.nvm
        a.vmwait_all()
        write_flag(a, 1, 1)
        stamp(a, 8)
    else:
        a(f"""s_lshl_b32 s{sT5}, s{sCG}, 11
        s_add_u32 s{sT5}, s{sT5}, s{sHPOS}
        s_add_u32 s{sT5}, s{sT5}, {32*1024}""")
        a(f"""s_lshl_b32 s{sT5}, s{sCG}, 11
        s_add_u32 s{sT5}, s{sT5}, s{sHPOS}
        s_add_u32 s{sT5}, s{sT5}, {32*1024}""")
        gelu_epi(a, vACC2, sT5, 128 * 4, "u12", 48, vT)
        stamp(a, 6)
        q = Q()
        s_work_atoms(a, q)
        k = (2 * len(q.q)) // 3
        q.q.insert(k, ("call", lambda: (a.vmwait("u12"), write_flag(a, 1, 0))))
        a.fillq = q.q
        a.fill_all()
        stamp(a, 8)
    a.marks = marks
    phase2(a, ch)


def phase2(a, ch):
    rt = ch
    vB0, vB1, vC0, vC1, vXO, vSO, vDO = 4, 5, 6, 7, 9, 11, 12
    vDK = 8
    vBF = 176
    vAC = 208
    vEX = 96
    a(f"""v_lshrrev_b32 v{vT}, 5, v{vLANE}
    v_lshlrev_b32 v{vT}, 2, v{vT}
    v_bfe_u32 v3, v{vLANE}, 2, 2
    v_add_u32 v{vT}, v{vT}, v3
    v_lshlrev_b32 v{vT}, 7, v{vT}
    v_bfe_u32 v3, v{vLANE}, 3, 1
    v_lshl_add_u32 v{vT}, v3, 6, v{vT}
    v_bfe_u32 v3, v{vLANE}, 4, 1
    v_lshl_add_u32 v{vT}, v3, 5, v{vT}
    v_and_b32 v3, 3, v{vLANE}
    v_lshl_add_u32 v{vT}, v3, 3, v{vT}
    s_lshl_b32 s{sT0}, s{sRG}, 12
    v_add_u32 v{vB0}, s{sT0}, v{vT}
    v_xor_b32 v{vB1}, 64, v{vB0}
    v_and_b32 v{vT}, 31, v{vLANE}
    v_bfe_u32 v3, v{vT}, 1, 3
    v_lshrrev_b32 v{vT+1}, 5, v{vLANE}
    s_lshr_b32 s{sT0}, s{sRG}, 1
    s_lshl_b32 s{sT0}, s{sT0}, 2
    v_add_u32 v{vT+1}, s{sT0}, v{vT+1}
    v_xor_b32 v3, v3, v{vT+1}
    v_lshlrev_b32 v{vT}, 7, v{vT}
    v_lshl_add_u32 v{vT}, v3, 4, v{vT}
    s_and_b32 s{sT0}, s{sRG}, 1
    s_lshl_b32 s{sT0}, s{sT0}, 13
    v_add_u32 v{vC0}, s{sT0}, v{vT}
    v_xor_b32 v{vC1}, 32, v{vC0}
    v_lshrrev_b32 v{vT}, 5, v{vLANE}
    v_lshlrev_b32 v{vT}, 4, v{vT}
    s_lshl_b32 s{sT0}, s{sRB2}, 6
    s_lshl_b32 s{sT1}, s{sRG}, 2
    s_add_u32 s{sT0}, s{sT0}, s{sT1}
    s_add_u32 s{sT0}, s{sT0}, {32*rt}
    v_add_u32 v{vT}, s{sT0}, v{vT}
    v_lshlrev_b32 v{vSO}, 4, v{vT}
    v_lshlrev_b32 v{vT}, 9, v{vT}
    v_and_b32 v3, 31, v{vLANE}
    s_lshl_b32 s{sT0}, s{sCB}, 6
    v_add_u32 v3, s{sT0}, v3
    v_add_u32 v{vT}, v{vT}, v3
    v_lshlrev_b32 v{vXO}, 1, v{vT}
    v_lshlrev_b32 v{vDO}, 1, v3""")

    def epi_loads():
        a.vmop(f"buffer_load_ushort v{vDK}, v{vDO}, s[{ST}:{ST+3}], 0 offen", "epi")
        a.vmop(f"buffer_load_ushort v{vDK+2}, v{vDO}, s[{ST}:{ST+3}], 0 offen offset:64", "epi")
        for ct in range(2):
            for i in range(4):
                a.vmop(f"buffer_load_ushort v{vEX+4*ct+i}, v{vXO}, s[{SX}:{SX+3}], 0 offen offset:{i*1024 + ct*64}", "epi")
        a(f"s_mov_b32 s{sT0}, {WS_STAT}")
        for i in range(4):
            a.vmop(f"buffer_load_dword v{vEX+8+i}, v{vSO}, s[{SWS}:{SWS+3}], s{sT0} offen offset:{i*16} sc1", "epi")
            a.vmop(f"buffer_load_dword v{vEX+12+i}, v{vSO}, s[{SWS}:{SWS+3}], s{sT0} offen offset:{i*16+8} sc1", "epi")
    for i in range(32):
        a(f"v_mov_b32 v{vAC+i}, 0")
    hi2 = {"v": 0}

    def p2_reads(st, n):
        slot = (st % 8) * 16384
        hi, lo = slot >> 16, slot & 0xffff
        if n == 0 and hi != hi2["v"]:
            for r in (vB0, vB1, vC0, vC1):
                a(f"v_xor_b32 v{r}, 0x10000, v{r}")
            hi2["v"] = hi
        s_, ct = n >> 1, n & 1
        f = vBF + 16 * (st % 2) + 4 * n
        tag = f"r{st}_{n}"
        if ORDER[st][0] == "M":
            vb = vB0 if ct == 0 else vB1
            a.ldsop(f"ds_read_b64_tr_b16 v[{f}:{f+1}], v{vb} offset:{lo + s_*2048}", tag)
            a.ldsop(f"ds_read_b64_tr_b16 v[{f+2}:{f+3}], v{vb} offset:{lo + s_*2048 + 1024}", tag)
        else:
            a.ldsop(f"ds_read_b128 v[{f}:{f+3}], v{vC0+s_} offset:{lo + ct*4096}", tag)

    def p2_barrier(st):
        a.vmwait(f"B{st}")
        a("s_barrier")

    p2_barrier(0)
    stamp(a, 7)
    for n in range(4):
        p2_reads(0, n)
    dq = []
    a_next = 4
    allowed = 3
    for st in range(NST2):
        if st == 4:
            stamp(a, 9)
        if st == 11:
            stamp(a, 13)
        if st + 1 < NST2:
            if ch == 0:
                if st + 1 == H_ST:
                    a.vmwait("h")
                    write_flag(a, 2, 0)
                if st + 1 == E1_ST:
                    poll_flags(a, 1, tracked=True)
                    if A_TOUCH:
                        only_rg(a, 3, lambda: touch_A(a, 1))
                if st + 1 == E2_ST:
                    poll_flags(a, 2, tracked=True)
                    if A_TOUCH:
                        only_rg(a, 3, lambda: touch_A(a, 2))
            p2_barrier(st + 1)
            if st + 1 == E1_ST:
                allowed = 10
            if st + 1 == E2_ST:
                allowed = NST2 - 1
            while a_next <= min(allowed, st + NA - 1, NST2 - 1):
                dq.extend(p2_A(a_next)); a_next += 1
            if st >= 1 and st + 7 < NST2:
                dq.extend(p2_B(st + 7))
        g = sum(1 for x in dq if x[1] == f"A{st}")
        while any(x[1] == f"A{st}" for x in dq):
            code, tag = dq.pop(0); a.vmop(code, tag)
        a.vmwait(f"A{st}")
        per = (len(dq) + 3) // 4
        for n in range(4):
            s_, ct = n >> 1, n & 1
            f = vBF + 16 * (st % 2) + 4 * n
            ar = ARING[st % NA] + 4 * s_
            ac = vAC + 16 * ct
            a.lgwait(f"r{st}_{n}")
            a(f"v_mfma_f32_32x32x16_bf16 v[{ac}:{ac+15}], v[{ar}:{ar+3}], v[{f}:{f+3}], v[{ac}:{ac+15}]")
            if st + 1 < NST2:
                p2_reads(st + 1, n)
            for _ in range(per):
                if dq:
                    code, tag = dq.pop(0)
                    a.vmop(code, tag)
        if st == 3:
            epi_loads()
    stamp(a, 10)
    a(f"""s_nop 15
    s_barrier
    s_lshl_b32 s{sT0}, s{sRG}, 11
    v_lshlrev_b32 v{vT}, 4, v{vLANE}
    v_add_u32 v{vT+1}, s{sT0}, v{vT}
    v_add_u32 v{vT+1}, {rt*32768}, v{vT+1}""")
    for q in range(4):
        for ct in range(2):
            r = vAC + 16 * ct + 4 * q
            a(f"ds_write_b128 v{vT+1}, v[{r}:{r+3}] offset:{q*8192 + ct*1024}")
    a(f"""s_lshl_b32 s{sT0}, s{sRG}, 13
    v_add_u32 v{vT+1}, s{sT0}, v{vT}
    v_add_u32 v{vT+1}, {rt*32768}, v{vT+1}
    s_waitcnt lgkmcnt(0)
    s_barrier""")
    R = vAR
    for src in range(4):
        for ct in range(2):
            r = R + 8 * src + 4 * ct
            a(f"ds_read_b128 v[{r}:{r+3}], v{vT+1} offset:{src*2048 + ct*1024}")
    a("s_waitcnt vmcnt(0)")
    a.vm = []
    D0, D1 = vDK, vDK + 2
    X = vEX; M_ = vEX + 8; S_ = vEX + 12; Y = vEX + 16
    a(f"v_lshlrev_b32 v{D0}, 16, v{D0}\nv_lshlrev_b32 v{D1}, 16, v{D1}\nv_lshlrev_b32 v{vT}, 1, v{vXO}")
    for i in range(4):
        a(f"v_rcp_f32 v{S_+i}, v{S_+i}")
    for k in range(8):
        a(f"v_lshlrev_b32 v{X+k}, 16, v{X+k}")
    for k in range(8):
        a(f"v_sub_f32 v{Y+k}, v{X+k}, v{M_+(k&3)}")

    def rnd():
        for k in range(0, 8, 2):
            a(f"v_cvt_pk_bf16_f32 v{vT+1}, v{Y+k}, v{Y+k+1}")
            a(f"v_lshlrev_b32 v{Y+k}, 16, v{vT+1}\nv_and_b32 v{Y+k+1}, 0xffff0000, v{vT+1}")
    rnd()
    for k in range(8):
        a(f"v_mul_f32 v{Y+k}, v{Y+k}, v{S_+(k&3)}")
    rnd()
    for k in range(8):
        a(f"v_mul_f32 v{Y+k}, v{Y+k}, v{D0 if k < 4 else D1}")
    rnd()
    for k in range(8):
        a(f"v_add_f32 v{Y+k}, v{Y+k}, v{X+k}")
    a("s_waitcnt lgkmcnt(0)")
    for k in range(8):
        a(f"v_add_f32 v{R+k}, v{R+k}, v{R+8+k}")
        a(f"v_add_f32 v{R+16+k}, v{R+16+k}, v{R+24+k}")
    for k in range(8):
        a(f"v_add_f32 v{R+k}, v{R+k}, v{R+16+k}")
    for k in range(8):
        a(f"v_add_f32 v{R+k}, v{R+k}, v{Y+k}")
    for ct in range(2):
        for i in range(4):
            ro = i * 2048 + ct * 128
            so, io = (ro // 4096) * 4096, ro % 4096
            a(f"s_mov_b32 s{sT0}, {so}")
            a(f"buffer_store_dword v{R+4*ct+i}, v{vT}, s[{SO}:{SO+3}], s{sT0} offen offset:{io}")
    if ch == 0:
        lab = a.newlab("EP")
        a(f"""s_cmp_eq_u32 s{sRB2}, 31
        s_cbranch_scc0 {lab}
        s_cmp_eq_u32 s{sCB}, 0
        s_cbranch_scc0 {lab}
        s_cmp_eq_u32 s{sW}, 0
        s_cbranch_scc0 {lab}
        v_mov_b32 v4, s{sTAG}
        v_mov_b32 v3, 0
        s_mov_b32 s{sT0}, {WS_EPOCH}
        s_mov_b64 exec, 1
        buffer_store_dword v4, v3, s[{SWS}:{SWS+3}], s{sT0} offen sc1
        s_mov_b64 exec, -1""")
        a.label(lab)
    stamp(a, 11)
    if STAMPS:
        a("s_waitcnt vmcnt(0)")
        stamp(a, 12)
    stamp_flush(a, 14)
    a("s_endpgm")


if __name__ == "__main__":
    main(sys.argv[1] if len(sys.argv) > 1 else "cdna_kernels/" + NAME + ".s")
```

```python
import sys, math, struct, os

NAME = "parallel_sum__ssm_conv_s5__glu_gated_geglu__prompt"
KNAME = NAME + "_kernel"

E = lambda k, d: int(os.environ.get(k, str(d)))
STAMPS = E("STAMPS", 0)
SPIN_MAX = E("SPIN_MAX", 200000)
CODE_PREFETCH = E("CODE_PREFETCH", 1)
W2_PREFETCH = E("W2_PREFETCH", 1)
FILL = E("FILL", 7)
FILL0 = E("FILL0", 14)
SW_DELAY = E("SW_DELAY", 8)
NPRE = E("NPRE", 2)
V17 = E("V17", 1)
DMA_RATE = E("DMA_RATE", 0)
PACE0 = E("PACE0", 2)
PACE1 = E("PACE1", 3)
PRIO = E("PRIO", 0)
W2_AT = E("W2_AT", 4)
W2_G0 = E("W2_G0", 8)
W2_P1 = E("W2_P1", 2)
W2_P2 = E("W2_P2", 9)
LOOK = E("LOOK", 3)
A_TOUCH = E("A_TOUCH", 0)
E2_ST = E("E2_ST", 3)
E1_ST = E("E1_ST", 8)
H_ST = E("H_ST", 2)
X_NOMFMA = E("X_NOMFMA", 0)
X_NOREAD = E("X_NOREAD", 0)

NKS = 150
RT_STRIDE = NKS * 1024
WS_AGG = 0xA00000
WS_STAT = 0xA40000
WS_CS = 0xA80000
WS_FLG = 0xB00000
WS_EPOCH = 0xB10000
WS_DUMMY = 0xB20000
WS_DBG = 0xF00000
WS_SIZE = 0x10000000

LOG2E = 1.4426950408889634
SLOT = 32768
NSLOT = 4
SCR = NSLOT * SLOT
SCR_T = SCR
SCR_CS = 16384
SCR_ST = 17408
SCR_ES = 18432
LDS_BYTES = 163840
NST2 = 19
NBS, NAS = 3, 5
B_BASE, A_BASE = 0, 49152


def f2u(x):
    return struct.unpack("<I", struct.pack("<f", x))[0]


class A:
    def __init__(self):
        self.l = []
        self.nlab = 0
        self.vm = []
        self.nvm = 0
        self.lg = []
        self.fillq = []

    def __call__(self, s):
        for line in s.strip("\n").split("\n"):
            line = line.strip()
            if not line:
                continue
            if X_NOMFMA and line.startswith("v_mfma"):
                continue
            self.l.append("  " + line)

    def label(self, name):
        self.l.append(name + ":")

    def newlab(self, p="L"):
        self.nlab += 1
        return f"{p}_{self.nlab}"

    def vmop(self, s, tag, maybe=False):
        self(s)
        if not maybe:
            self.vm.append(tag)
            self.nvm += 1

    def vmwait(self, tag):
        idx = [i for i, t in enumerate(self.vm) if t == tag]
        if not idx:
            return
        n = len(self.vm) - 1 - idx[-1]
        assert n <= 63, n
        self(f"s_waitcnt vmcnt({n})")
        self.vm = self.vm[idx[-1] + 1:]

    def vmwait_all(self):
        self("s_waitcnt vmcnt(0)")
        self.vm = []

    def ldsop(self, s, tag):
        if X_NOREAD and tag[0] in "xwr":
            return
        self(s)
        self.lg.append(tag)
        assert len(self.lg) <= 30

    def lgwait(self, tag):
        idx = [i for i, t in enumerate(self.lg) if t == tag]
        if not idx:
            return
        n = len(self.lg) - 1 - idx[-1]
        n = min(n, 15)
        self(f"s_waitcnt lgkmcnt({n})")
        self.lg = self.lg[len(self.lg) - n:] if n else []

    def lgwait_all(self):
        self("s_waitcnt lgkmcnt(0)")
        self.lg = []

    def fill(self, n):
        if E("X_NOFILL", 0):
            self.fillq = [at for at in self.fillq if at[0] in ("vm",) or (at[0] == "call" and False)]
        while n > 0 and self.fillq:
            at = self.fillq.pop(0)
            k = at[0]
            if k == "v":
                self(at[1]); n -= 1
            elif k == "lds":
                self.ldsop(at[1], at[2]); n -= 1
            elif k == "lgw":
                self.lgwait(at[1])
            elif k == "vm":
                self.vmop(at[1], at[2], at[3]); n -= 1
            elif k == "call":
                at[1]()
            elif k == "calln":
                at[1](); n -= at[2]

    def fill_all(self):
        self.fill(10 ** 9)

    def text(self):
        return "\n".join(self.l) + "\n"


class Q:
    def __init__(self):
        self.q = []

    def __call__(self, s):
        for line in s.strip("\n").split("\n"):
            line = line.strip()
            if line:
                self.q.append(("v", line))

    def ldsop(self, s, tag):
        self.q.append(("lds", s, tag))

    def lgwait(self, tag):
        self.q.append(("lgw", tag))

    def vmop(self, s, tag, maybe=False):
        self.q.append(("vm", s, tag, maybe))


def srd(a, s, ptr_lo, nbytes):
    a(f"""s_mov_b32 s{s}, s{ptr_lo}
    s_and_b32 s{s+1}, s{ptr_lo+1}, 0xffff
    s_mov_b32 s{s+2}, {nbytes}
    s_mov_b32 s{s+3}, 0x20000""")


def rne_bf16(a, v):
    a(f"v_cvt_pk_bf16_f32 v{v}, v{v}, v{v}\nv_lshlrev_b32 v{v}, 16, v{v}")


def wave_sum(a, v, tmp_s):
    for ctrl in ("row_shr:1", "row_shr:2", "row_shr:4", "row_shr:8"):
        a(f"s_nop 1\nv_add_f32_dpp v{v}, v{v}, v{v} {ctrl} row_mask:0xf bank_mask:0xf")
    a(f"s_nop 1\nv_add_f32_dpp v{v}, v{v}, v{v} row_bcast:15 row_mask:0xa bank_mask:0xf")
    a(f"s_nop 1\nv_add_f32_dpp v{v}, v{v}, v{v} row_bcast:31 row_mask:0xc bank_mask:0xf")
    a(f"s_nop 1\nv_readlane_b32 s{tmp_s}, v{v}, 63")


SX, SS, SM, SWS, SWD, SC, SO, ST = 4, 8, 12, 16, 20, 24, 28, 32
sW, sRG, sRB, sCG = 36, 37, 38, 39
sKC0, sU0B, sDUM, sTAG = 72, 73, 74, 75
sT0, sT1, sT2, sT3, sT4, sT5 = 76, 77, 78, 79, 80, 81
sMX, sMS, sMU, sM1 = 82, 83, 84, 85
sCSM = 86
sRB2, sCB, sRT, sCT = 87, 88, 89, 90
sSPIN = 91
sEX = 92
sMASK = 94
sAOFF, sLW, s3RG, s2RG = 96, 97, 98, 99
sXB, sHPOS = 100, 101
SM2 = 68
STAMP0 = 40
P_X, P_LRE, P_LIM, P_BRE, P_BIM, P_CRE, P_CIM, P_LDT = 40, 42, 44, 46, 48, 50, 52, 54
P_DSK, P_BX, P_WG, P_WU, P_WD, P_OUT, P_DBG, P_WS = 56, 58, 60, 62, 64, 66, 68, 70

vLANE = 1
vXA = 4
vWS = 8
vWM = 8
vW1 = 12
vDX0, vDX1, vDS, vDM = 13, 14, 15, 16
vDS1 = 47
vT = 17
ONES = 28
vAr, vAi, vKr, vKi, vA16r, vA16i, vA128r, vA128i = 32, 33, 34, 35, 36, 37, 38, 39
vRINV, vNM = 40, 41
vDA, vDB, vDC0, vDC1 = 42, 43, 44, 45
vK1, vCA = 46, 47
vFR = 48
vACC = 64
vACC2 = 96
vXF = 128
CSACC = 96
GATH0 = 112
CS1ACC = 128
GATH1 = 144
JUNK = 255


PSTAMP = E("PSTAMP", 0)


def pstamp(a, i):
    if PSTAMP:
        a(f"s_memrealtime s[{sEX}:{sEX+1}]\ns_waitcnt lgkmcnt(0)\nv_mov_b32 v{232+i}, s{sEX}")


DBGD = E("DBGD", -1)


P1DBG = E("P1DBG", 0)


def stamp(a, i, force=False):
    if STAMPS and P1DBG in (4, 5) and i >= 4:
        if i == 4 and False:
            pass
        return
    if STAMPS and P1DBG in (4, 5) and i == 1:
        a(f"s_memtime s[{STAMP0+2*4}:{STAMP0+2*4+1}]")
    if STAMPS and P1DBG == 3 and i in (1, 2, 4):
        j = {1: 9, 2: 13, 4: 6}[i]
        a(f"s_memtime s[{STAMP0+2*j}:{STAMP0+2*j+1}]")
    if STAMPS:
        if i == 3:
            return
        if P1DBG and i in (6, 9, 13) and not force:
            return
        a(f"s_memrealtime s[{STAMP0+2*i}:{STAMP0+2*i+1}]")
        if i == 0:
            a(f"s_mov_b32 s{STAMP0+6}, s{sMASK}\ns_mov_b32 s{STAMP0+7}, s{sMASK+1}")


def stamp_flush(a, n):
    if not STAMPS:
        return
    a("s_waitcnt lgkmcnt(0)")
    a(f"s_lshl_b32 s{sT0}, s2, 3\ns_add_u32 s{sT0}, s{sT0}, s{sW}\ns_lshl_b32 s{sT0}, s{sT0}, 6\ns_add_u32 s{sT0}, s{sT0}, {WS_DBG}")
    a("v_mov_b32 v3, 0")
    for i in range(n):
        a(f"v_mov_b32 v2, s{STAMP0+2*i}")
        a(f"buffer_store_dword v2, v3, s[{SWS}:{SWS+3}], s{sT0} offen offset:{4*i}")
    if DBGD >= 0:
        lab = a.newlab("DD")
        a(f"""s_cmp_eq_u32 s2, {DBGD}
        s_cbranch_scc0 {lab}
        s_cmp_eq_u32 s{sW}, {E("DBGW", 0)}
        s_cbranch_scc0 {lab}
        s_load_dwordx2 s[{sT2}:{sT3}], s[0:1], 112
        s_waitcnt lgkmcnt(0)
        s_mov_b32 s{ST}, s{sT2}
        s_and_b32 s{ST+1}, s{sT3}, 0xffff
        s_mov_b32 s{ST+2}, 256
        s_mov_b32 s{ST+3}, 0x20000
        v_mov_b32 v3, 0""")
        for i in range(n):
            a(f"v_mov_b32 v2, s{STAMP0+2*i}")
            a(f"buffer_store_dword v2, v3, s[{ST}:{ST+3}], 0 offen offset:{4*i}")
        a.label(lab)


def dma_p0(s, ch):
    slot = (s % NSLOT) * SLOT
    it = []
    if ch == 1:
        pre = f"""s_add_u32 s{sT0}, s{sKC0}, {s}
        s_and_b32 s{sT0}, s{sT0}, 7
        s_lshl_b32 s{sT3}, s{sT0}, 7
        s_add_u32 s{sT4}, s{sT3}, 16384
        """
        for i in range(4):
            vd = vDX0 if i % 2 == 0 else vDX1
            so = sT3 if i < 2 else sT4
            it.append(((pre if i == 0 else "") + f"""s_add_u32 m0, s{sLW}, {slot + i*1024}
            s_nop 0
            buffer_load_dwordx4 v{vd}, s[{SX}:{SX+3}], s{so} offen lds""", f"st{s}"))
    else:
        pre = f"""s_add_u32 s{sT0}, s{sKC0}, {s}
        s_and_b32 s{sT0}, s{sT0}, 7
        s_lshl_b32 s{sT3}, s{sT0}, 7
        s_mul_i32 s{sT2}, s{sT0}, {64*2752}
        s_add_u32 s{sT2}, s{sT2}, s{sU0B}
        """
        for i in range(2):
            vd = vDS if i == 0 else vDS1
            it.append(((pre if i == 0 else "") + f"""s_add_u32 m0, s{sMS}, {slot + i*1024}
            s_nop 0
            buffer_load_dwordx4 v{vd}, s[{SS}:{SS+3}], s{sT3} offen lds""", f"st{s}"))
        for mat in range(2):
            sr = SM if mat == 0 else SM2
            it.append((f"""s_add_u32 m0, s{sM1}, {slot + 24576 + mat*4096}
            s_nop 0
            buffer_load_dwordx4 v{vDM}, s[{sr}:{sr+3}], s{sT2} offen lds""", f"st{s}"))
    return it


def dma_p1(t, ch):
    g = 8 + t
    slot = (g % NSLOT) * SLOT
    it = []
    c2 = ch
    pre = f"""s_add_u32 s{sT0}, s{sKC0}, {2*t+c2}
    s_and_b32 s{sT0}, s{sT0}, 7
    s_mul_i32 s{sT2}, s{sT0}, {64*2752}
    s_add_u32 s{sT2}, s{sT2}, s{sU0B}
    s_add_u32 s{sT2}, s{sT2}, 64
    s_add_u32 s{sT3}, s{sT2}, s{sDUM}
    """
    for mat in range(2):
        sr = SM if mat == 0 else SM2
        for j in range(2):
            so = sT2 if j == 0 else sT3
            it.append(((pre if (mat == 0 and j == 0) else "") + f"""s_add_u32 m0, s{sM1}, {slot + c2*16384 + j*8192 + mat*4096}
            s_nop 0
            buffer_load_dwordx4 v{vDM}, s[{sr}:{sr+3}], s{so} offen lds""", f"st{g}"))
    return it


ORDER = [("M", i) for i in range(4)] + [("S", j) for j in range(8)] + [("M", i) for i in range(4, 11)]


NA = E("NA", 10)
vAR = 128
ARING = [128, 136, 144, 152, 160, 168, 64, 72, 80, 88]
vAG = 42


def p2_A(st):
    kind, ix = ORDER[st]
    ks0 = 8 * ix if kind == "M" else 86 + 8 * ix
    r = ARING[st % NA]
    it = []
    if (kind, ix) == ("M", 10):
        first = f"""s_mov_b32 s{sT1}, {ks0*1024}
        s_cmp_eq_u32 s{sRG}, 3
        s_cselect_b32 s{sT1}, {(ks0-2)*1024}, s{sT1}"""
    else:
        first = f"s_mov_b32 s{sT1}, {ks0*1024}"
    it.append((first + f"""
    buffer_load_dwordx4 v[{r}:{r+3}], v{vDA}, s[{SWS}:{SWS+3}], s{sT1} offen sc1""", f"A{st}"))
    it.append((f"""buffer_load_dwordx4 v[{r+4}:{r+7}], v{vDA}, s[{SWS}:{SWS+3}], s{sT1} offen offset:1024 sc1""", f"A{st}"))
    return it


def p2_B(st):
    slot = (st % 8) * 16384
    kind, ix = ORDER[st]
    it = []
    if kind == "M":
        if ix < 3:
            reg, c = s3RG, 3 * 4 * ix
        elif ix == 3:
            reg, c = s2RG, 2 * 12 + 11
        elif ix < 7:
            reg, c = s3RG, 3 * 4 * (ix - 4) + 1
        elif ix == 7:
            reg, c = s2RG, 2 * 12 + 11 + 1
        elif ix < 10:
            reg, c = s3RG, 3 * 4 * (ix - 8) + 2
        else:
            reg, c = sAOFF, 3 * 4 * (ix - 8) + 2
        for i in range(2):
            it.append((f"""s_add_u32 s{sT1}, s{reg}, {c*32768 + i*8192}
            s_add_u32 m0, s{sRT}, {slot + i*1024}
            s_nop 0
            buffer_load_dwordx4 v{vDB}, s[{SWD}:{SWD+3}], s{sT1} offen lds""", f"B{st}"))
    else:
        j = ix
        for i in range(2):
            vd = vDC0 if i % 2 == 0 else vDC1
            it.append((f"""s_add_u32 s{sT1}, s{sXB}, {j*128 + i*8192}
            s_add_u32 m0, s{sRT}, {slot + i*1024}
            s_nop 0
            buffer_load_dwordx4 v{vd}, s[{SC}:{SC+3}], s{sT1} offen lds""", f"B{st}"))
    return it


def main(out_path):
    a = A()
    gen(a)
    ref = open("cdna_kernels/" + NAME + ".s.ref").read()
    head = []
    for line in ref.splitlines():
        if line.startswith(";") and "@launch" not in line and "Override" not in line and "grid=ceil" not in line:
            head.append(line)
        elif not line.startswith(";"):
            break
    txt = "\n".join(head) + "\n"
    txt += f"; @launch grid=(256,1,1) block=(512,1,1) lds={LDS_BYTES}\n"
    txt += '.amdgcn_target "amdgcn-amd-amdhsa--gfx950"\n.text\n'
    txt += f".globl {KNAME}\n.p2align 8\n.type {KNAME},@function\n{KNAME}:\n"
    txt += a.text()
    txt += f""".section .rodata,"a"
.p2align 6
.amdhsa_kernel {KNAME}
  .amdhsa_next_free_vgpr 256
  .amdhsa_next_free_sgpr 102
  .amdhsa_accum_offset 256
  .amdhsa_group_segment_fixed_size 0
  .amdhsa_kernarg_size 128
  .amdhsa_user_sgpr_count 2
  .amdhsa_user_sgpr_kernarg_segment_ptr 1
  .amdhsa_system_sgpr_workgroup_id_x 1
.end_amdhsa_kernel
"""
    open(out_path, "w").write(txt)


def flag_load(a, ev, rb_s, vdst, tag):
    a(f"""s_lshl_b32 s{sT0}, s{rb_s}, 8
    s_add_u32 s{sT0}, s{sT0}, {WS_FLG + ev*64}
    v_and_b32 v{vdst}, 15, v{vLANE}
    v_lshlrev_b32 v{vdst}, 2, v{vdst}""")
    a.vmop(f"buffer_load_dword v{vdst}, v{vdst}, s[{SWS}:{SWS+3}], s{sT0} offen sc1", tag)


PRG = (252, 253, 254)


FLG_OFF = {0: 0, 1: 512, 2: 1024}


def poll_flags(a, ev, tracked=False):
    lp, ok = a.newlab("PF"), a.newlab("PFOK")
    wide = (ev == 1)
    a(f"""s_lshr_b32 s{sT0}, s{sRB2}, 1
    s_lshl_b32 s{sT0}, s{sT0}, 11
    s_add_u32 s{sT0}, s{sT0}, {WS_FLG + FLG_OFF[ev]}
    v_lshlrev_b32 v{vT}, {3 if wide else 2}, v{vLANE}
    s_mov_b32 s{sSPIN}, 0""")
    regs = [(248, 249), (250, 251), (252, 253)]
    ld = (lambda r: f"buffer_load_dwordx2 v[{r[0]}:{r[1]}], v{vT}, s[{SWS}:{SWS+3}], s{sT0} offen sc1") if wide else \
         (lambda r: f"buffer_load_dword v{r[0]}, v{vT}, s[{SWS}:{SWS+3}], s{sT0} offen sc1")
    for r in regs:
        a(ld(r) + "\ns_sleep 2")
    a.label(lp)
    for r in regs:
        nx = a.newlab("PFN")
        a(f"""s_waitcnt vmcnt(2)
        v_cmp_ne_u32 vcc, s{sTAG}, v{r[0]}
        s_add_u32 s{sSPIN}, s{sSPIN}, 1""")
        if wide:
            a(f"""s_cbranch_vccnz {nx}
            v_cmp_ne_u32 vcc, s{sTAG}, v{r[1]}
            s_nop 0
            s_cbranch_vccz {ok}""")
            a.label(nx)
        else:
            a(f"s_cbranch_vccz {ok}")
        a(ld(r))
    a(f"""s_cmp_gt_u32 s{sSPIN}, {SPIN_MAX}
    s_cbranch_scc0 {lp}""")
    a.label(ok)
    if tracked:
        a.vm = ["poll", "poll"]
        a.nvm += 2


def touch_A(a, ev):
    if not A_TOUCH:
        return
    k0, nl = {0: (0, 64), 1: (32, 108), 2: (86, 128)}[ev]
    a(f"""s_lshr_b32 s{sT0}, s{sCB}, 2
    s_lshl_b32 s{sT1}, s{sRB2}, 1
    s_add_u32 s{sT0}, s{sT0}, s{sT1}
    s_mul_i32 s{sT0}, s{sT0}, {RT_STRIDE}
    s_and_b32 s{sT1}, s{sCB}, 3
    s_mul_i32 s{sT1}, s{sT1}, {nl*128}
    s_add_u32 s{sT0}, s{sT0}, s{sT1}
    s_add_u32 s{sT0}, s{sT0}, {k0*1024}
    v_lshlrev_b32 v{vT+1}, 7, v{vLANE}
    buffer_load_dword v{JUNK}, v{vT+1}, s[{SWS}:{SWS+3}], s{sT0} offen sc1""")
    if nl > 64:
        a(f"s_add_u32 s{sT0}, s{sT0}, 8192")
        if nl < 128:
            a(f"""v_cmp_gt_u32 vcc, {nl-64}, v{vLANE}
            s_and_saveexec_b64 s[{sEX}:{sEX+1}], vcc
            buffer_load_dword v{JUNK}, v{vT+1}, s[{SWS}:{SWS+3}], s{sT0} offen sc1
            s_mov_b64 exec, s[{sEX}:{sEX+1}]""")
        else:
            a(f"buffer_load_dword v{JUNK}, v{vT+1}, s[{SWS}:{SWS+3}], s{sT0} offen sc1")


def write_flag(a, ev, ch):
    sh = 5 if ev == 1 else 4
    a(f"""s_lshl_b32 s{sT0}, s{sRB}, 11
    s_lshl_b32 s{sT1}, s{sCG}, {sh}
    s_add_u32 s{sT0}, s{sT0}, s{sT1}
    s_lshl_b32 s{sT1}, s{sW if ev == 1 else sRG}, 2
    s_add_u32 s{sT0}, s{sT0}, s{sT1}
    s_add_u32 s{sT0}, s{sT0}, {WS_FLG + FLG_OFF[ev]}
    v_mov_b32 v{vT+9}, 0
    v_mov_b32 v{vT+10}, s{sTAG}
    s_mov_b64 s[{sEX}:{sEX+1}], exec
    s_mov_b64 exec, 1""")
    a.vmop(f"buffer_store_dword v{vT+10}, v{vT+9}, s[{SWS}:{SWS+3}], s{sT0} offen sc1", "flag")
    a(f"s_mov_b64 exec, s[{sEX}:{sEX+1}]")


def only_rg(a, rg, fn):
    lab = a.newlab("RG")
    a(f"s_cmp_eq_u32 s{sRG}, {rg}\ns_cbranch_scc0 {lab}")
    lg = list(a.lg)
    fn()
    a.label(lab)
    a.lg = lg


def colsum_mfma(a, wf0, wf1, accreg, first=False):
    l1, l2 = a.newlab("CS"), a.newlab("CS")
    c = "0" if first else f"v[{accreg}:{accreg+15}]"
    a(f"""s_cmp_eq_u32 s{sCSM}, 0
    s_cbranch_scc1 {l2}
    s_cmp_eq_u32 s{sCSM}, 1
    s_cbranch_scc0 {l1}
    v_mfma_f32_32x32x16_bf16 v[{accreg}:{accreg+15}], v[{ONES}:{ONES+3}], v[{wf0}:{wf0+3}], {c}
    s_branch {l2}""")
    a.label(l1)
    a(f"v_mfma_f32_32x32x16_bf16 v[{accreg}:{accreg+15}], v[{ONES}:{ONES+3}], v[{wf1}:{wf1+3}], {c}")
    a.label(l2)


def colsum_store(a, accreg, unit, koff=0):
    a(f"""s_nop 7
    s_nop 7
    s_add_u32 s{sT1}, s{sKC0}, {koff}
    s_and_b32 s{sT1}, s{sT1}, 7
    s_lshl_b32 s{sT0}, s{sCG}, 3
    s_add_u32 s{sT0}, s{sT0}, s{sT1}
    s_lshl_b32 s{sT0}, s{sT0}, 11
    s_sub_u32 s{sT1}, s{sCSM}, 1
    s_lshl_b32 s{sT1}, s{sT1}, 8
    s_add_u32 s{sT0}, s{sT0}, s{sT1}
    s_add_u32 s{sT0}, s{sT0}, {WS_CS + unit*512}
    s_lshl_b32 s{sT1}, s2, 11
    s_add_u32 s{sT1}, s{sT1}, {WS_DUMMY}
    s_cmp_eq_u32 s{sCSM}, 0
    s_cselect_b32 s{sT0}, s{sT1}, s{sT0}
    v_mov_b32 v{accreg+1}, s{sTAG}
    v_lshlrev_b32 v{accreg+2}, 3, v{vLANE}
    s_mov_b64 s[{sEX}:{sEX+1}], exec
    s_mov_b64 exec, 0xffffffff""")
    a.vmop(f"buffer_store_dwordx2 v[{accreg}:{accreg+1}], v{accreg+2}, s[{SWS}:{SWS+3}], s{sT0} offen sc1", "cs")
    a(f"s_mov_b64 exec, s[{sEX}:{sEX+1}]")


def gather_loads(a, part, dst, atmp, tracked=False):
    l1, l2 = a.newlab("G"), a.newlab("G")
    a(f"""s_cmp_lt_u32 s{sRG}, 2
    s_cbranch_scc0 {l1}
    s_lshl_b32 s{sT0}, s{sCG}, 14
    s_add_u32 s{sT0}, s{sT0}, {WS_CS + part*1024}
    s_lshl_b32 s{sT1}, s{sRG}, 9
    s_add_u32 s{sT0}, s{sT0}, s{sT1}
    v_lshlrev_b32 v{atmp}, 3, v{vLANE}""")
    for j in range(8):
        so, io = (j * 2048 // 4096) * 4096, (j * 2048) % 4096
        a(f"s_add_u32 s{sT1}, s{sT0}, {so}")
        a(f"buffer_load_dwordx2 v[{dst+2*j}:{dst+2*j+1}], v{atmp}, s[{SWS}:{SWS+3}], s{sT1} offen offset:{io} sc1")
    a(f"s_branch {l2}")
    a.label(l1)
    nd = 8
    if part == 0:
        a(f"""s_lshl_b32 s{sT0}, s{sRB}, 11
        s_sub_u32 s{sT1}, s{sRG}, 2
        s_lshl_b32 s{sT1}, s{sT1}, 10
        s_add_u32 s{sT0}, s{sT0}, s{sT1}
        s_add_u32 s{sT0}, s{sT0}, {WS_STAT}
        v_lshlrev_b32 v{atmp}, 4, v{vLANE}
        buffer_load_dwordx4 v[{dst}:{dst+3}], v{atmp}, s[{SWS}:{SWS+3}], s{sT0} offen sc1""")
        nd = 7
    a(f"s_mov_b32 s{sT0}, 0x40000000")
    for j in range(nd):
        a(f"buffer_load_dword v{dst+8+j}, v{vLANE}, s[{SWS}:{SWS+3}], s{sT0} offen")
    a.label(l2)
    if tracked:
        a.vm += ["g"] * 8
        a.nvm += 8


def gather_finish(a, part, dst, nyounger, atmp):
    lr, l1, l2, lok, lok2, l0 = [a.newlab("GF") for _ in range(6)]
    a(f"s_mov_b32 s{sSPIN}, 0")
    a(f"s_waitcnt vmcnt({nyounger})")
    a(f"s_branch {l0}")
    a.label(lr)
    a("s_waitcnt vmcnt(0)")
    a.label(l0)
    a(f"""s_cmp_lt_u32 s{sRG}, 2
    s_cbranch_scc0 {l1}
    s_mov_b64 s[{sMASK}:{sMASK+1}], 0""")
    for j in range(8):
        a(f"""v_cmp_ne_u32 vcc, s{sTAG}, v{dst+2*j+1}
        s_or_b64 s[{sMASK}:{sMASK+1}], s[{sMASK}:{sMASK+1}], vcc""")
    a(f"""s_cmp_eq_u64 s[{sMASK}:{sMASK+1}], 0
    s_cbranch_scc1 {lok}
    s_add_u32 s{sSPIN}, s{sSPIN}, 1
    s_cmp_gt_u32 s{sSPIN}, {SPIN_MAX}
    s_cbranch_scc1 {lok}""")
    gather_loads(a, part, dst, atmp)
    a(f"s_branch {lr}")
    a.label(lok)
    a(f"""v_add_f32 v{dst}, v{dst}, v{dst+2}
    v_add_f32 v{dst+4}, v{dst+4}, v{dst+6}
    v_add_f32 v{dst+8}, v{dst+8}, v{dst+10}
    v_add_f32 v{dst+12}, v{dst+12}, v{dst+14}
    v_add_f32 v{dst}, v{dst}, v{dst+4}
    v_add_f32 v{dst+8}, v{dst+8}, v{dst+12}
    v_add_f32 v{dst}, v{dst}, v{dst+8}
    s_lshl_b32 s{sT0}, s{sRG}, 8
    s_add_u32 s{sT0}, s{sT0}, {SCR}
    v_lshlrev_b32 v{atmp}, 2, v{vLANE}
    v_add_u32 v{atmp}, s{sT0}, v{atmp}
    ds_write_b32 v{atmp}, v{dst} offset:{SCR_CS + part*512}
    s_branch {l2}""")
    a.label(l1)
    if part == 0:
        a(f"""v_cmp_ne_u32 vcc, s{sTAG}, v{dst+1}
        s_mov_b64 s[{sMASK}:{sMASK+1}], vcc
        v_cmp_ne_u32 vcc, s{sTAG}, v{dst+3}
        s_or_b64 s[{sMASK}:{sMASK+1}], s[{sMASK}:{sMASK+1}], vcc
        s_cmp_eq_u64 s[{sMASK}:{sMASK+1}], 0
        s_cbranch_scc1 {lok2}
        s_add_u32 s{sSPIN}, s{sSPIN}, 1
        s_cmp_gt_u32 s{sSPIN}, {SPIN_MAX}
        s_cbranch_scc1 {lok2}""")
        gather_loads(a, part, dst, atmp)
        a(f"s_branch {lr}")
        a.label(lok2)
        a(f"""v_rcp_f32 v{dst+2}, v{dst+2}
        v_sub_f32 v{dst+3}, 0, v{dst}
        s_sub_u32 s{sT0}, s{sRG}, 2
        s_lshl_b32 s{sT0}, s{sT0}, 9
        s_add_u32 s{sT0}, s{sT0}, {SCR}
        v_lshlrev_b32 v{atmp}, 3, v{vLANE}
        v_add_u32 v{atmp}, s{sT0}, v{atmp}
        ds_write_b64 v{atmp}, v[{dst+2}:{dst+3}] offset:{SCR_ST}""")
    a.label(l2)
    a.lgwait_all()


def row_stats_M(q, tmp):
    q(f"""v_and_b32 v{tmp}, 31, v{vLANE}
    v_bfe_u32 v{tmp+1}, v{tmp}, 2, 1
    v_lshlrev_b32 v{tmp+1}, 4, v{tmp+1}
    v_lshrrev_b32 v{tmp+2}, 3, v{tmp}
    v_lshl_add_u32 v{tmp+1}, v{tmp+2}, 2, v{tmp+1}
    v_and_b32 v{tmp+2}, 3, v{tmp}
    v_add_u32 v{tmp+1}, v{tmp+1}, v{tmp+2}
    v_lshlrev_b32 v{tmp+2}, 5, v{vRGV}
    v_add_u32 v{tmp+1}, v{tmp+2}, v{tmp+1}
    v_lshlrev_b32 v{tmp+1}, 3, v{tmp+1}
    v_add_u32 v{tmp+1}, {SCR}, v{tmp+1}""")
    q.ldsop(f"ds_read_b64 v[{vRINV}:{vRINV+1}], v{tmp+1} offset:{SCR_ST}", "rs")
    q.lgwait("rs")


vRGV = 2


def gelu_epi(q, acc, pos_s, cs_off, tagname, csr, T, maybe=False):
    K0 = -2.0 * math.sqrt(2.0 / math.pi) * LOG2E
    K1c = K0 * 0.044715
    q(f"""v_mov_b32 v{vK1}, {f2u(K1c)}
    v_lshrrev_b32 v{vCA}, 5, v{vLANE}
    v_lshlrev_b32 v{vCA}, 4, v{vCA}
    v_add_u32 v{vCA}, {SCR + SCR_CS + cs_off}, v{vCA}""")
    cg_, cu_ = csr, csr + 4
    for qq in range(4):
        q.ldsop(f"ds_read_b128 v[{cg_}:{cg_+3}], v{vCA} offset:{qq*32}", "cs")
        q.ldsop(f"ds_read_b128 v[{cu_}:{cu_+3}], v{vCA} offset:{128 + qq*32}", "cs")
        q.lgwait("cs")
        rs = [4 * qq + i for i in range(4)]
        for i, r in enumerate(rs):
            q(f"v_fma_f32 v{acc+r}, v{vNM}, v{cg_+i}, v{acc+r}")
        for i, r in enumerate(rs):
            q(f"v_fma_f32 v{acc+16+r}, v{vNM}, v{cu_+i}, v{acc+16+r}")
        for i, r in enumerate(rs):
            q(f"v_mul_f32 v{acc+r}, v{acc+r}, v{vRINV}")
        for i, r in enumerate(rs):
            q(f"v_mul_f32 v{T+i}, v{acc+r}, v{acc+r}")
        for i, r in enumerate(rs):
            q(f"v_fmaak_f32 v{T+i}, v{vK1}, v{T+i}, {f2u(K0)}")
        for i, r in enumerate(rs):
            q(f"v_mul_f32 v{T+i}, v{T+i}, v{acc+r}")
        for i, r in enumerate(rs):
            q(f"v_exp_f32 v{T+i}, v{T+i}")
        for i, r in enumerate(rs):
            q(f"v_mul_f32 v{T+4+i}, v{acc+r}, v{acc+16+r}")
        for i, r in enumerate(rs):
            q(f"v_add_f32 v{T+i}, 1.0, v{T+i}")
        for i, r in enumerate(rs):
            q(f"v_rcp_f32 v{T+i}, v{T+i}")
        for i, r in enumerate(rs):
            q(f"v_mul_f32 v{T+4+i}, v{T+4+i}, v{vRINV}")
        for i, r in enumerate(rs):
            q(f"v_mul_f32 v{T+i}, v{T+i}, v{T+4+i}")
        q(f"v_cvt_pk_bf16_f32 v{acc+2*qq}, v{T}, v{T+1}\nv_cvt_pk_bf16_f32 v{acc+2*qq+1}, v{T+2}, v{T+3}")
    q(f"v_lshlrev_b32 v{T}, 4, v{vLANE}")
    q.vmop(f"buffer_store_dwordx4 v[{acc}:{acc+3}], v{T}, s[{SWS}:{SWS+3}], s{pos_s} offen sc1", tagname, maybe)
    q.vmop(f"buffer_store_dwordx4 v[{acc+4}:{acc+7}], v{T}, s[{SWS}:{SWS+3}], s{pos_s} offen offset:1024 sc1", tagname, maybe)


def s_params(q):
    vLre, vLim, vLdt = vT + 7, vT + 8, vT + 9
    t0, t1, t2, t3, t4, t5, t6 = [vT + i for i in range(7)]
    q(f"""v_lshlrev_b32 v{vLre}, 16, v{vA16r}
    v_lshlrev_b32 v{vLim}, 16, v{vA16i}
    v_lshlrev_b32 v{vLdt}, 16, v{vA128r}
    v_mul_f32 v{t0}, {f2u(LOG2E)}, v{vLdt}
    v_exp_f32 v{t0}, v{t0}
    s_nop 0""")
    rne_bf16(q, t0)
    q(f"""v_mul_f32 v{t1}, v{t0}, v{vLre}
    v_mul_f32 v{t2}, v{t0}, v{vLim}
    v_mul_f32 v{t1}, {f2u(LOG2E)}, v{t1}
    v_exp_f32 v{t1}, v{t1}
    v_mul_f32 v{t2}, {f2u(1.0/(2*math.pi))}, v{t2}
    v_rndne_f32 v{t3}, v{t2}
    v_sub_f32 v{t2}, v{t2}, v{t3}
    v_cos_f32 v{t3}, v{t2}
    v_sin_f32 v{t4}, v{t2}
    s_nop 0
    v_mul_f32 v{vAr}, v{t1}, v{t3}
    v_mul_f32 v{vAi}, v{t1}, v{t4}
    v_add_f32 v{t3}, -1.0, v{vAr}
    v_mul_f32 v{t4}, v{vLre}, v{vLre}
    v_fmac_f32 v{t4}, v{vLim}, v{vLim}
    v_rcp_f32 v{t4}, v{t4}
    v_mul_f32 v{t5}, v{t3}, v{vLre}
    v_fmac_f32 v{t5}, v{vAi}, v{vLim}
    v_mul_f32 v{t6}, v{vAi}, v{vLre}
    v_fma_f32 v{t6}, -v{t3}, v{vLim}, v{t6}
    v_add_f32 v{t4}, v{t4}, v{t4}
    v_mul_f32 v{vKr}, v{t5}, v{t4}
    v_mul_f32 v{vKi}, v{t6}, v{t4}
    v_mov_b32 v{vA16r}, v{vAr}
    v_mov_b32 v{vA16i}, v{vAi}""")

    def csq(r, i):
        q(f"""v_mul_f32 v{t0}, v{i}, v{i}
        v_mul_f32 v{t1}, v{r}, v{i}
        v_fma_f32 v{r}, v{r}, v{r}, -v{t0}
        v_add_f32 v{i}, v{t1}, v{t1}""")
    for _ in range(4):
        csq(vA16r, vA16i)
    q(f"v_mov_b32 v{vA128r}, v{vA16r}\nv_mov_b32 v{vA128i}, v{vA16i}")
    for _ in range(3):
        csq(vA128r, vA128i)


def s_epilogue1(q):
    zr = lambda j: vACC + j
    zi = lambda j: vACC + 16 + j
    T = vT
    CR, CI = T + 9, T + 10
    q(f"""v_and_b32 v{T}, 31, v{vLANE}
    v_lshlrev_b32 v{T+1}, 2, v{T}
    v_add_u32 v{T+1}, {SCR}, v{T+1}""")
    q.ldsop(f"ds_read_b32 v{CR}, v{T+1} offset:{SCR_CS}", "sc")
    q.ldsop(f"ds_read_b32 v{CI}, v{T+1} offset:{SCR_CS+128}", "sc")
    q(f"""v_lshrrev_b32 v{T+2}, 5, v{vLANE}
    v_lshlrev_b32 v{T+3}, 5, v{vRGV}
    v_lshl_add_u32 v{T+3}, v{T+2}, 4, v{T+3}
    v_lshlrev_b32 v{T+3}, 3, v{T+3}
    v_add_u32 v{T+3}, {SCR}, v{T+3}""")
    for qq in range(4):
        q.ldsop(f"ds_read_b128 v[4:7], v{T+3} offset:{SCR_ST + qq*32}", "sc")
        q.ldsop(f"ds_read_b128 v[8:11], v{T+3} offset:{SCR_ST + qq*32 + 16}", "sc")
        q.lgwait("sc")
        for i in range(4):
            j = 4 * qq + i
            ri, nm = 4 + 2 * i, 5 + 2 * i
            q(f"""v_fma_f32 v{zr(j)}, v{nm}, v{CR}, v{zr(j)}
            v_fma_f32 v{zi(j)}, v{nm}, v{CI}, v{zi(j)}
            v_mul_f32 v{zr(j)}, v{zr(j)}, v{ri}
            v_mul_f32 v{zi(j)}, v{zi(j)}, v{ri}""")
    cur, alt = (T + 4, T + 5), (T + 7, T + 8)
    q(f"v_mov_b32 v{cur[0]}, v{zr(0)}\nv_mov_b32 v{cur[1]}, v{zi(0)}")
    for j in range(1, 16):
        sr, si = cur
        nr, ni = alt
        q(f"""v_fma_f32 v{nr}, v{vAr}, v{sr}, v{zr(j)}
        v_fma_f32 v{ni}, v{vAr}, v{si}, v{zi(j)}
        v_fma_f32 v{nr}, -v{vAi}, v{si}, v{nr}
        v_fma_f32 v{ni}, v{vAi}, v{sr}, v{ni}""")
        cur, alt = alt, cur
    assert cur == (T + 7, T + 8) and (T + 7) % 2 == 0
    q(f"""v_lshlrev_b32 v{T+1}, 1, v{vRGV}
    v_add_u32 v{T+1}, v{T+1}, v{T+2}
    v_lshlrev_b32 v{T+1}, 8, v{T+1}
    v_lshl_add_u32 v{T+1}, v{T}, 3, v{T+1}
    v_add_u32 v{T+1}, {SCR}, v{T+1}""")
    q.ldsop(f"ds_write_b64 v{T+1}, v[{T+7}:{T+8}] offset:{SCR_ES}", "ew")


def s_publish(a):
    T = vT
    a(f"""s_waitcnt lgkmcnt(0)
    v_and_b32 v{T}, 31, v{vLANE}
    v_lshlrev_b32 v{T+1}, 3, v{T}
    v_add_u32 v{T+1}, {SCR}, v{T+1}
    ds_read_b64 v[4:5], v{T+1} offset:{SCR_ES}
    ds_read_b64 v[6:7], v{T+1} offset:{SCR_ES+256}
    ds_read_b64 v[8:9], v{T+1} offset:{SCR_ES+512}
    ds_read_b64 v[10:11], v{T+1} offset:{SCR_ES+768}
    s_waitcnt lgkmcnt(0)""")

    def step(er, ei):
        a(f"""v_fma_f32 v{T+2}, v{vA16r}, v4, v{er}
        v_fma_f32 v{T+3}, v{vA16r}, v5, v{ei}
        v_fma_f32 v{T+2}, -v{vA16i}, v5, v{T+2}
        v_fma_f32 v5, v{vA16i}, v4, v{T+3}
        v_mov_b32 v4, v{T+2}""")
    step(6, 7); step(8, 9); step(10, 11)
    a(f"""ds_read_b64 v[6:7], v{T+1} offset:{SCR_ES+1024}
    ds_read_b64 v[8:9], v{T+1} offset:{SCR_ES+1280}
    ds_read_b64 v[10:11], v{T+1} offset:{SCR_ES+1536}
    ds_read_b64 v[{T+5}:{T+6}], v{T+1} offset:{SCR_ES+1792}
    s_waitcnt lgkmcnt(0)""")
    assert (T + 5) % 2 == 0
    step(6, 7); step(8, 9); step(10, 11); step(T + 5, T + 6)
    a(f"""v_mov_b32 v6, v5
    v_mov_b32 v5, s{sTAG}
    v_mov_b32 v7, s{sTAG}
    s_lshl_b32 s{sT0}, s{sCG}, 5
    v_add_u32 v{T}, s{sT0}, v{T}
    v_lshlrev_b32 v{T}, 4, v{T}
    s_lshl_b32 s{sT0}, s{sRB}, 13
    s_add_u32 s{sT0}, s{sT0}, {WS_AGG}
    v_cmp_gt_u32 vcc, 32, v{vLANE}
    s_and_saveexec_b64 s[{sEX}:{sEX+1}], vcc
    buffer_store_dwordx4 v[4:7], v{T}, s[{SWS}:{SWS+3}], s{sT0} offen sc1
    s_mov_b64 exec, s[{sEX}:{sEX+1}]""")
    a.vm.append("pub"); a.nvm += 1


LBG = 160
HG = 192


def lookback_loads(a, tracked=True):
    a(f"""v_and_b32 v{vT+9}, 31, v{vLANE}
    s_lshl_b32 s{sT0}, s{sCG}, 5
    v_add_u32 v{vT+9}, s{sT0}, v{vT+9}
    v_lshlrev_b32 v{vT+9}, 4, v{vT+9}           ; p*16
    v_lshrrev_b32 v3, 5, v{vLANE}
    s_sub_u32 s{sT0}, s{sRB}, 1
    v_sub_u32 v3, s{sT0}, v3                    ; rb-1-hf
    v_lshlrev_b32 v3, 13, v3
    v_add_u32 v3, v3, v{vT+9}
    s_mov_b32 s{sT0}, {WS_AGG}
    v_mov_b32 v{vT+10}, 0x7ff00000""")
    for i in range(8):
        a(f"""v_subrev_u32 v{vT+9}, {i*16384}, v3
        v_cmp_gt_i32 vcc, 0, v{vT+9}
        s_nop 1
        v_cndmask_b32 v{vT+9}, v{vT+9}, v{vT+10}, vcc""")
        code = f"buffer_load_dwordx4 v[{LBG+4*i}:{LBG+4*i+3}], v{vT+9}, s[{SWS}:{SWS+3}], s{sT0} offen sc1"
        if tracked:
            a.vmop(code, "lb")
        else:
            a(code)


def s_work_atoms(a, q):
    zr = lambda j: vACC + j
    zi = lambda j: vACC + 16 + j
    T = vT
    L = LBG
    G = LBG
    EB = 192
    q(f"""v_and_b32 v{T+8}, 31, v{vLANE}
    v_lshlrev_b32 v{T}, 3, v{T+8}
    v_add_u32 v{T}, {SCR}, v{T}""")
    for s in range(8):
        q.ldsop(f"ds_read_b64 v[{EB+2*s}:{EB+2*s+1}], v{T} offset:{SCR_ES + s*256}", "se")
    q(f"""v_mul_f32 v{T+5}, v{vA128i}, v{vA128i}
    v_mul_f32 v{T+6}, v{vA128r}, v{vA128i}
    v_fma_f32 v{T+5}, v{vA128r}, v{vA128r}, -v{T+5}
    v_add_f32 v{T+6}, v{T+6}, v{T+6}""")

    def check():
        lp, got = a.newlab("LB"), a.newlab("LBG")
        a(f"s_mov_b32 s{sSPIN}, 0")
        a.vmwait("lb")
        a.label(lp)
        a(f"""v_lshrrev_b32 v{T+1}, 5, v{vLANE}
        s_sub_u32 s{sT0}, s{sRB}, 1
        v_sub_u32 v{T+1}, s{sT0}, v{T+1}
        s_mov_b64 s[{sMASK}:{sMASK+1}], 0""")
        for i in range(8):
            a(f"""v_cmp_ne_u32 vcc, s{sTAG}, v{L+4*i+1}
            v_cmp_ne_u32 s[{sEX}:{sEX+1}], s{sTAG}, v{L+4*i+3}
            s_or_b64 s[{sEX}:{sEX+1}], s[{sEX}:{sEX+1}], vcc
            v_cmp_le_i32 vcc, {2*i}, v{T+1}
            s_and_b64 s[{sEX}:{sEX+1}], s[{sEX}:{sEX+1}], vcc
            s_or_b64 s[{sMASK}:{sMASK+1}], s[{sMASK}:{sMASK+1}], s[{sEX}:{sEX+1}]""")
        a(f"""s_cmp_eq_u64 s[{sMASK}:{sMASK+1}], 0
        s_cbranch_scc1 {got}
        s_add_u32 s{sSPIN}, s{sSPIN}, 1
        s_cmp_gt_u32 s{sSPIN}, {SPIN_MAX}
        s_cbranch_scc1 {got}""")
        lookback_loads(a, tracked=False)
        a(f"s_waitcnt vmcnt(0)\ns_branch {lp}")
        a.label(got)
    q.q.append(("call", check))
    cr, ci = T + 1, T + 2
    q(f"v_mov_b32 v{cr}, v{L+28}\nv_mov_b32 v{ci}, v{L+30}")
    for i in range(6, -1, -1):
        q(f"""v_fma_f32 v{T+3}, v{T+5}, v{cr}, v{L+4*i}
        v_fma_f32 v{T+4}, v{T+5}, v{ci}, v{L+4*i+2}
        v_fma_f32 v{T+3}, -v{T+6}, v{ci}, v{T+3}
        v_fma_f32 v{ci}, v{T+6}, v{cr}, v{T+4}
        v_mov_b32 v{cr}, v{T+3}""")
    q(f"""v_mov_b32 v{T+3}, v{cr}
    v_mov_b32 v{T+4}, v{ci}
    s_nop 1
    v_permlane32_swap_b32 v{cr}, v{T+3}
    v_permlane32_swap_b32 v{ci}, v{T+4}
    s_nop 1
    v_fma_f32 v{cr}, v{vA128r}, v{T+3}, v{cr}
    v_fma_f32 v{ci}, v{vA128r}, v{T+4}, v{ci}
    v_fma_f32 v{cr}, -v{vA128i}, v{T+4}, v{cr}
    v_fma_f32 v{ci}, v{vA128i}, v{T+3}, v{ci}
    v_lshrrev_b32 v{T+5}, 5, v{vLANE}
    v_lshl_add_u32 v{T+5}, v{vRGV}, 1, v{T+5}""")
    q.lgwait("se")
    for s in range(7):
        def seg(s=s):
            a(f"""v_fma_f32 v{T+3}, v{vA16r}, v{cr}, v{EB+2*s}
            v_fma_f32 v{T+4}, v{vA16r}, v{ci}, v{EB+2*s+1}
            v_cmp_lt_u32 vcc, {s}, v{T+5}
            v_fma_f32 v{T+3}, -v{vA16i}, v{ci}, v{T+3}
            v_fma_f32 v{T+4}, v{vA16i}, v{cr}, v{T+4}
            v_cndmask_b32 v{cr}, v{cr}, v{T+3}, vcc
            v_cndmask_b32 v{ci}, v{ci}, v{T+4}, vcc""")
        q.q.append(("calln", seg, 7))
    cur, alt = (cr, ci), (T + 3, T + 4)
    for j in range(16):
        sr, si = cur
        nr, ni = alt
        q(f"""v_fma_f32 v{nr}, v{vAr}, v{sr}, v{zr(j)}
        v_fma_f32 v{ni}, v{vAr}, v{si}, v{zi(j)}
        v_fma_f32 v{nr}, -v{vAi}, v{si}, v{nr}
        v_fma_f32 v{ni}, v{vAi}, v{sr}, v{ni}
        v_mul_f32 v{zr(j)}, v{vKr}, v{nr}
        v_mul_f32 v{zi(j)}, -v{vKr}, v{ni}
        v_fma_f32 v{zr(j)}, -v{vKi}, v{ni}, v{zr(j)}
        v_fma_f32 v{zi(j)}, -v{vKi}, v{nr}, v{zi(j)}""")
        cur, alt = alt, cur
    for j in range(0, 16, 2):
        q(f"v_cvt_pk_bf16_f32 v{G+j//2}, v{zr(j)}, v{zr(j+1)}")
        q(f"v_cvt_pk_bf16_f32 v{G+8+j//2}, v{zi(j)}, v{zi(j+1)}")
    q(f"""v_lshlrev_b32 v{T+6}, 12, v{vRGV}
    v_add_u32 v{T+6}, {SCR_T}, v{T+6}
    v_lshrrev_b32 v{T+5}, 5, v{vLANE}
    v_lshlrev_b32 v{T+5}, 3, v{T+5}
    v_lshl_add_u32 v{T+5}, v{T+8}, 6, v{T+5}
    v_add_u32 v{T+5}, v{T+6}, v{T+5}
    v_add_u32 v{T+6}, v{T+6}, v{vTRL}
    v_lshlrev_b32 v{T}, 4, v{vLANE}""")
    for part in range(2):
        for qq in range(4):
            r = G + 8 * part + 2 * qq
            q.ldsop(f"ds_write_b64 v{T+5}, v[{r}:{r+1}] offset:{part*2048 + qq*16}", "tw")
    q.lgwait("tw")
    R = G + 16
    for part in range(2):
        for s2 in range(2):
            r = R + 8 * part + 4 * s2
            o = part * 2048 + s2 * 1024
            q.ldsop(f"ds_read_b64_tr_b16 v[{r}:{r+1}], v{T+6} offset:{o}", "tr")
            q.ldsop(f"ds_read_b64_tr_b16 v[{r+2}:{r+3}], v{T+6} offset:{o+256}", "tr")
    q.lgwait("tr")
    for part in range(2):
        for s2 in range(2):
            r = R + 8 * part + 4 * s2
            q.vmop(f"buffer_store_dwordx4 v[{r}:{r+3}], v{T}, s[{SWS}:{SWS+3}], s{sMU} offen offset:{(2*part+s2)*1024} sc1", "h")


vTRL = 3


def gen(a):
    global vTRL
    vTRL = 0
    sIDX = sMX
    if STAMPS:
        a(f"s_memrealtime s[{sMASK}:{sMASK+1}]")
    a(f"""s_cmp_ge_u32 s2, 256
    s_cbranch_scc1 L_END
    s_load_dwordx16 s[40:55], s[0:1], 0
    s_load_dwordx16 s[56:71], s[0:1], 64
    v_and_b32 v{vLANE}, 63, v0
    v_lshrrev_b32 v2, 6, v0
    s_and_b32 s{sT0}, s2, 7            ; xcd
    v_readfirstlane_b32 s{sW}, v2
    s_lshr_b32 s{sIDX}, s2, 3          ; idx
    s_and_b32 s{sRB}, s{sT0}, 1
    s_lshl_b32 s{sRB}, s{sRB}, 3
    s_and_b32 s{sT2}, s{sIDX}, 7
    s_add_u32 s{sRB}, s{sRB}, s{sT2}   ; rb
    s_lshr_b32 s{sCG}, s{sT0}, 1
    s_lshl_b32 s{sCG}, s{sCG}, 2
    s_lshr_b32 s{sT2}, s{sIDX}, 3
    s_add_u32 s{sCG}, s{sCG}, s{sT2}   ; cg
    s_and_b32 s{sRG}, s{sW}, 3
    s_lshl_b32 s{sKC0}, s{sCG}, 1
    s_add_u32 s{sKC0}, s{sKC0}, s{sRB}
    s_and_b32 s{sKC0}, s{sKC0}, 7
    s_lshl_b32 s{sRB2}, s{sT0}, 2
    s_and_b32 s{sT2}, s{sIDX}, 3
    s_add_u32 s{sRB2}, s{sRB2}, s{sT2}
    s_lshr_b32 s{sCB}, s{sIDX}, 2
    s_mul_i32 s{sT2}, s{sCG}, 3
    s_lshl_b32 s{sT3}, s{sCG}, 1
    s_add_u32 s{sT3}, s{sT3}, 11
    s_cmp_lt_u32 s{sCG}, 11
    s_cselect_b32 s{sU0B}, s{sT2}, s{sT3}
    s_cselect_b32 s{sDUM}, 64, 0x40000000
    s_lshl_b32 s{sU0B}, s{sU0B}, 6
    s_lshl_b32 s{sLW}, s{sRG}, 12           ; w'*4096
    s_lshl_b32 s{sMS}, s{sRG}, 11
    s_add_u32 s{sMS}, s{sMS}, 16384         ; S pieces: 16384 + w'*2048
    s_lshl_b32 s{sM1}, s{sRG}, 10           ; kstep*1024
    v_lshrrev_b32 v2, 3, v{vLANE}           ; lane>>3
    v_and_b32 v3, 7, v{vLANE}
    v_lshrrev_b32 v{vT}, 4, v{vLANE}        ; lane>>4
    v_xor_b32 v{vT+1}, v3, v{vT}            ; (lane&7)^(lane>>4)
    s_lshl_b32 s{sT2}, s{sRB}, 7
    s_lshl_b32 s{sT3}, s{sRG}, 5
    s_add_u32 s{sT2}, s{sT2}, s{sT3}
    v_add_u32 v{vT+2}, s{sT2}, v2
    v_lshlrev_b32 v{vT+2}, 10, v{vT+2}
    v_lshl_add_u32 v{vDX0}, v{vT+1}, 4, v{vT+2}
    v_xor_b32 v{vDX1}, 64, v{vDX0}
    v_add_u32 v{vDX1}, 8192, v{vDX1}
    s_and_b32 s{sT4}, s{sRG}, 1
    s_lshl_b32 s{sT4}, s{sT4}, 4
    s_lshl_b32 s{sT3}, s{sCG}, 5
    s_add_u32 s{sT4}, s{sT4}, s{sT3}
    v_add_u32 v{vT+2}, s{sT4}, v2
    v_lshlrev_b32 v{vT+2}, 10, v{vT+2}
    v_lshl_add_u32 v{vDS}, v{vT+1}, 4, v{vT+2}
    v_xor_b32 v{vDS1}, 64, v{vDS}
    v_add_u32 v{vDS1}, 8192, v{vDS1}
    v_lshrrev_b32 v{vT+2}, 2, v{vLANE}
    s_lshl_b32 s{sT4}, s{sRG}, 4
    v_add_u32 v{vT+2}, s{sT4}, v{vT+2}
    v_mul_u32_u24 v{vT+2}, 2752, v{vT+2}
    v_and_b32 v{vT+4}, 3, v{vLANE}
    v_lshl_add_u32 v{vDM}, v{vT+4}, 4, v{vT+2}
    v_lshlrev_b32 v{vT+3}, 4, v{vLANE}
    s_and_b32 s{sT4}, s{sW}, 2
    s_waitcnt lgkmcnt(0)""")
    pstamp(a, 0)
    srd(a, SX, P_X, 2048 * 1024)
    a(f"""s_cmp_eq_u32 s{sT4}, 0
    s_cselect_b32 s{P_BRE}, s{P_BRE}, s{P_BIM}
    s_cselect_b32 s{P_BRE+1}, s{P_BRE+1}, s{P_BIM+1}
    s_cmp_lt_u32 s{sW}, 4
    s_cselect_b32 s{P_CRE}, s{P_CRE}, s{P_CIM}
    s_cselect_b32 s{P_CRE+1}, s{P_CRE+1}, s{P_CIM+1}""")
    lab0, lab1 = a.newlab("D0"), a.newlab("D1")
    a(f"s_cmp_lt_u32 s{sW}, 4\ns_cbranch_scc1 {lab0}")
    for s_ in range(NPRE):
        for code, tag in dma_p0(s_, 1):
            a(code)
    srd(a, SS, P_BRE, 512 * 1024)
    srd(a, SM, P_WG, 512 * 2752)
    a(f"s_branch {lab1}")
    a.label(lab0)
    srd(a, SS, P_BRE, 512 * 1024)
    srd(a, SM, P_WG, 512 * 2752)
    a(f"s_mov_b32 s{sT4}, s{P_WU}\ns_mov_b32 s{sT5}, s{P_WU+1}")
    srd(a, 32, sT4, 512 * 2752)
    for s_ in range(NPRE):
        for code, tag in dma_p0(s_, 0):
            a(code.replace(f"s[{SM2}:{SM2+3}]", "s[32:35]"))
        if s_ == 0:
            a(f"""s_lshl_b32 s{sT2}, s2, 3
            s_lshl_b32 s{sT3}, s{sRG}, 1
            s_add_u32 s{sT5}, s{sT2}, s{sT3}
            s_lshl_b32 s{sT5}, s{sT5}, 10
            buffer_load_dwordx4 v[{vACC}:{vACC+3}], v{vT+3}, s[{SX}:{SX+3}], s{sT5} offen
            buffer_load_dwordx4 v[{vACC+4}:{vACC+7}], v{vT+3}, s[{SX}:{SX+3}], s{sT5} offen offset:1024""")
    a.label(lab1)
    srd(a, SWS, P_WS, WS_SIZE)
    a(f"""s_add_u32 s{P_BIM}, s{P_WS}, {WS_EPOCH}
    s_addc_u32 s{P_BIM+1}, s{P_WS+1}, 0
    s_load_dword s{sTAG}, s[{P_BIM}:{P_BIM+1}], 0""")
    srd(a, SM2, P_WU, 512 * 2752)
    pstamp(a, 1)
    srd(a, SWD, P_WD, 1376 * 1024)
    srd(a, SC, P_CRE, 512 * 1024)
    a(f"""v_and_b32 v{vT+2}, 31, v{vLANE}
    s_lshl_b32 s{sT4}, s{sCG}, 5
    v_add_u32 v{vT+2}, s{sT4}, v{vT+2}
    v_lshlrev_b32 v{vT+2}, 1, v{vT+2}""")
    srd(a, ST, P_LRE, 1024)
    a.vmop(f"buffer_load_ushort v{vA16r}, v{vT+2}, s[{ST}:{ST+3}], 0 offen", "par")
    srd(a, ST, P_LIM, 1024)
    a.vmop(f"buffer_load_ushort v{vA16i}, v{vT+2}, s[{ST}:{ST+3}], 0 offen", "par")
    srd(a, ST, P_LDT, 1024)
    a.vmop(f"buffer_load_ushort v{vA128r}, v{vT+2}, s[{ST}:{ST+3}], 0 offen", "par")
    pstamp(a, 2)
    srd(a, SO, P_OUT, 2048 * 2048)
    srd(a, ST, P_DSK, 1024)
    if CODE_PREFETCH:
        lab = a.newlab("CP")
        a(f"""s_cmp_eq_u32 s{sW}, 3
        s_cbranch_scc0 {lab}
        s_getpc_b64 s[{sT2}:{sT3}]""")
        a.label("L_PC")
        a(f"""s_mul_i32 s{sT4}, s{sIDX}, {10*128}
        v_lshlrev_b32 v{vT+2}, 7, v{vLANE}
        v_add_u32 v{vT+2}, s{sT4}, v{vT+2}
        v_cmp_gt_u32 vcc, L_CODE_END-L_PC, v{vT+2}
        s_and_saveexec_b64 s[{sEX}:{sEX+1}], vcc
        v_cmp_gt_u32 vcc, 10, v{vLANE}
        s_and_b64 exec, exec, vcc
        s_cbranch_execz {lab}_R
        global_load_dword v{vK1}, v{vT+2}, s[{sT2}:{sT3}]""")
        a.label(lab + "_R")
        a(f"s_mov_b64 exec, s[{sEX}:{sEX+1}]")
        a.label(lab)
    a(f"""s_lshr_b32 s{sT3}, s{sW}, 1                ; w>>1
    s_and_b32 s{sT4}, s{sW}, 1
    s_lshl_b32 s{sT4}, s{sT4}, 14            ; (w&1)*16384
    s_mul_i32 s{s3RG}, s{sT3}, {3*32768}
    s_add_u32 s{s3RG}, s{s3RG}, s{sT4}
    s_lshl_b32 s{s2RG}, s{sT3}, 16
    s_add_u32 s{s2RG}, s{s2RG}, s{sT4}
    s_cmp_eq_u32 s{sT3}, 3
    s_cselect_b32 s{sAOFF}, 0x40000000, s{s3RG}
    s_lshl_b32 s{sXB}, s{sRG}, 14
    s_lshl_b32 s{sRT}, s{sW}, 11
    s_lshl_b32 s{sT2}, s{sRB}, 2
    s_add_u32 s{sT2}, s{sT2}, s{sRG}
    s_mul_i32 s{sHPOS}, s{sT2}, {RT_STRIDE}
    s_lshl_b32 s{sT4}, s{sRB2}, 1
    s_lshr_b32 s{sT3}, s{sW}, 2
    s_add_u32 s{sT4}, s{sT4}, s{sT3}
    s_mul_i32 s{sT4}, s{sT4}, {RT_STRIDE}
    s_lshl_b32 s{sT3}, s{sRG}, 11
    s_add_u32 s{sT4}, s{sT4}, s{sT3}
    v_lshlrev_b32 v{vDA}, 4, v{vLANE}
    v_add_u32 v{vDA}, s{sT4}, v{vDA}
    v_bfe_u32 v{vT+2}, v{vLANE}, 4, 1
    v_lshlrev_b32 v{vT+2}, 2, v{vT+2}
    v_xor_b32 v{vT+2}, v3, v{vT+2}
    v_lshlrev_b32 v{vT+4}, 10, v2
    v_lshl_add_u32 v{vT+2}, v{vT+2}, 4, v{vT+4}
    s_lshl_b32 s{sT4}, s{sCB}, 7
    v_add_u32 v{vDB}, s{sT4}, v{vT+2}
    s_lshl_b32 s{sT4}, s{sCB}, 6
    v_add_u32 v{vT+2}, s{sT4}, v2
    v_lshlrev_b32 v{vT+2}, 10, v{vT+2}
    v_lshl_add_u32 v{vDC0}, v{vT+1}, 4, v{vT+2}
    v_xor_b32 v{vDC1}, 64, v{vDC0}
    v_and_b32 v2, 31, v{vLANE}
    v_bfe_u32 v3, v2, 2, 1
    v_lshlrev_b32 v3, 4, v3
    v_lshrrev_b32 v{vT}, 3, v2
    v_lshl_add_u32 v3, v{vT}, 2, v3
    v_and_b32 v{vT+1}, 3, v2
    v_add_u32 v3, v3, v{vT+1}               ; tau
    v_bfe_u32 v{vT}, v3, 1, 3
    s_lshl_b32 s{sT4}, s{sRG}, 5
    v_add_u32 v3, s{sT4}, v3
    v_lshlrev_b32 v3, 7, v3
    v_lshrrev_b32 v{vT+1}, 5, v{vLANE}
    v_xor_b32 v{vT}, v{vT}, v{vT+1}
    v_lshl_add_u32 v{vXA}, v{vT}, 4, v3
    v_xor_b32 v{vXA+1}, 32, v{vXA}
    v_xor_b32 v{vXA+2}, 64, v{vXA}
    v_xor_b32 v{vXA+3}, 96, v{vXA}
    v_lshlrev_b32 v3, 3, v{vT+1}
    v_bfe_u32 v{vT}, v{vLANE}, 2, 2
    v_add_u32 v3, v3, v{vT}
    v_lshlrev_b32 v3, 6, v3
    v_bfe_u32 v{vT}, v{vLANE}, 4, 1
    v_lshl_add_u32 v3, v{vT}, 5, v3
    v_and_b32 v{vT}, 3, v{vLANE}
    v_lshl_add_u32 v{vTRL}, v{vT}, 3, v3
    s_lshr_b32 s{sT4}, s{sW}, 2
    s_lshl_b32 s{sT4}, s{sT4}, 13
    v_add_u32 v{vW1}, s{sT4}, v{vTRL}
    v_mov_b32 v{vRGV}, s{sRG}""")
    pstamp(a, 3)
    a(f"""s_cmp_ge_u32 s{sW}, 4
    s_cbranch_scc1 L_STREAM_B""")
    save = (list(a.vm), list(a.lg), a.nvm)
    stream(a, 0)
    a.vm, a.lg, a.nvm = list(save[0]), list(save[1]), save[2]
    a.label("L_STREAM_B")
    stream(a, 1)
    a.label("L_END")
    a("s_endpgm")
    a.label("L_CODE_END")


def w2_touch(a, which, junk=None):
    if not W2_PREFETCH:
        return
    sIDX = sMX
    j = junk or vDA
    a(f"v_lshlrev_b32 v3, 7, v{vLANE}")
    if which in (0, 1):
        a(f"""s_mul_i32 s{sT0}, s{sIDX}, 44032
        s_lshl_b32 s{sT1}, s{sRG}, 13
        s_add_u32 s{sT0}, s{sT0}, s{sT1}
        s_add_u32 s{sT0}, s{sT0}, {32768*which}""")
        a.vmop(f"buffer_load_dword v{j}, v3, s[{SWD}:{SWD+3}], s{sT0} offen", "pf")
    else:
        a(f"""s_lshl_b32 s{sT0}, s{sIDX}, 14
        s_and_b32 s{sT1}, s{sRG}, 1
        s_lshl_b32 s{sT1}, s{sT1}, 13
        s_add_u32 s{sT0}, s{sT0}, s{sT1}""")
        a.vmop(f"buffer_load_dword v{j}, v3, s[{SC}:{SC+3}], s{sT0} offen", "pf")


def w2_touch16(a, piece, junk):
    if not W2_PREFETCH:
        return
    sIDX = sMX
    a(f"v_lshlrev_b32 v3, 7, v{vLANE}")
    if piece < 6:
        a(f"""s_mul_i32 s{sT0}, s{sIDX}, 44032
        s_lshl_b32 s{sT1}, s{sRG}, 11
        s_add_u32 s{sT0}, s{sT0}, s{sT1}
        s_add_u32 s{sT0}, s{sT0}, {piece*8192}
        s_mov_b64 s[{sEX}:{sEX+1}], exec
        s_mov_b64 exec, 0xffff""")
        a.vmop(f"buffer_load_dword v{junk}, v3, s[{SWD}:{SWD+3}], s{sT0} offen", "pf")
    else:
        a(f"""s_lshl_b32 s{sT0}, s{sIDX}, 14
        s_lshl_b32 s{sT1}, s{sRG}, 11
        s_add_u32 s{sT0}, s{sT0}, s{sT1}
        s_add_u32 s{sT0}, s{sT0}, {(piece-6)*8192}
        s_mov_b64 s[{sEX}:{sEX+1}], exec
        s_mov_b64 exec, 0xffff""")
        a.vmop(f"buffer_load_dword v{junk}, v3, s[{SC}:{SC+3}], s{sT0} offen", "pf")
    a(f"s_mov_b64 exec, s[{sEX}:{sEX+1}]")


def ln_stats(a, src, row_s):
    U = vACC2
    for i in range(4):
        a(f"v_lshlrev_b32 v{U+2*i}, 16, v{src+i}\nv_and_b32 v{U+2*i+1}, 0xffff0000, v{src+i}")
    a(f"""v_add_f32 v{vT}, v{U}, v{U+1}
    v_add_f32 v{vT+1}, v{U+2}, v{U+3}
    v_add_f32 v{vT+2}, v{U+4}, v{U+5}
    v_add_f32 v{vT+4}, v{U+6}, v{U+7}
    v_add_f32 v{vT}, v{vT}, v{vT+1}
    v_add_f32 v{vT+2}, v{vT+2}, v{vT+4}
    v_add_f32 v{vT}, v{vT}, v{vT+2}""")
    wave_sum(a, vT, sT4)
    a(f"""s_nop 1
    v_mov_b32 v{vT+1}, s{sT4}
    v_mul_f32 v{vT+1}, {f2u(1.0/512)}, v{vT+1}
    v_mov_b32 v{vT}, 0""")
    for i in range(8):
        a(f"v_sub_f32 v{vT+2}, v{U+i}, v{vT+1}\nv_fmac_f32 v{vT}, v{vT+2}, v{vT+2}")
    wave_sum(a, vT, sT4)
    a(f"""s_nop 1
    v_mov_b32 v{vT+2}, s{sT4}
    v_mul_f32 v{vT+2}, {f2u(1.0/512)}, v{vT+2}""")
    rne_bf16(a, vT + 1)
    rne_bf16(a, vT + 2)
    a(f"v_add_f32 v{vT+2}, {f2u(1e-5)}, v{vT+2}")
    rne_bf16(a, vT + 2)
    a(f"v_sqrt_f32 v{vT+2}, v{vT+2}\ns_nop 0")
    rne_bf16(a, vT + 2)
    a(f"""v_mov_b32 v{U}, v{vT+1}
    v_mov_b32 v{U+1}, s{sTAG}
    v_mov_b32 v{U+2}, v{vT+2}
    v_mov_b32 v{U+3}, s{sTAG}
    s_lshl_b32 s{sT4}, s{row_s}, 4
    s_add_u32 s{sT4}, s{sT4}, {WS_STAT}
    v_mov_b32 v{vT}, 0
    s_mov_b64 s[{sEX}:{sEX+1}], exec
    s_mov_b64 exec, 1""")
    a.vmop(f"buffer_store_dwordx4 v[{U}:{U+3}], v{vT}, s[{SWS}:{SWS+3}], s{sT4} offen sc1", "stat")
    a(f"s_mov_b64 exec, s[{sEX}:{sEX+1}]")


def stream(a, ch):
    a(f"s_waitcnt lgkmcnt(0)\ns_add_u32 s{sTAG}, s{sTAG}, 1")
    if ch == 0:
        a.vm = ["st0"] * 4 + ["lnrow", "lnrow"] + [f"st{g}" for g in range(1, NPRE) for _ in range(4)] + ["par"] * 3
        a(f"""v_and_b32 v3, 31, v{vLANE}
        v_bfe_u32 v{vT}, v3, 1, 3
        v_lshrrev_b32 v{vT+1}, 5, v{vLANE}
        v_xor_b32 v{vT}, v{vT}, v{vT+1}
        v_lshlrev_b32 v3, 7, v3
        v_lshl_add_u32 v3, v{vT}, 4, v3
        v_add_u32 v{vWS}, 16384, v3
        v_xor_b32 v{vWS+1}, 32, v{vWS}
        v_xor_b32 v{vWS+2}, 64, v{vWS}
        v_xor_b32 v{vWS+3}, 96, v{vWS}""")
        waddr0 = [vWS + i for i in range(4)]
        a.vmwait("lnrow")
        pstamp(a, 4)
        a(f"""s_lshl_b32 s{sT2}, s2, 3
        s_lshl_b32 s{sT3}, s{sRG}, 1
        s_add_u32 s{sT5}, s{sT2}, s{sT3}""")
        ln_stats(a, vACC, sT5)
        a(f"s_add_u32 s{sT5}, s{sT5}, 1")
        ln_stats(a, vACC + 4, sT5)
    else:
        a.vm = [f"st{g}" for g in range(NPRE) for _ in range(4)] + ["par"] * 3
        a(f"v_add_u32 v{vWM}, 24576, v{vTRL}")
        waddr0 = [vWM]
    if W2_AT == 0 and ch == 0:
        for wch in (0, 2, 1):
            w2_touch(a, wch)
    stamp(a, 0)
    if PSTAMP:
        a(f"s_lshl_b32 s{sT0}, s2, 3\ns_add_u32 s{sT0}, s{sT0}, s{sW}\ns_lshl_b32 s{sT0}, s{sT0}, 6\ns_add_u32 s{sT0}, s{sT0}, {WS_DBG + 0x40000}")
        a("v_mov_b32 v3, 0")
        for i in range(5):
            a(f"buffer_store_dword v{232+i}, v3, s[{SWS}:{SWS+3}], s{sT0} offen offset:{4*i}")
        a.vm += ["x"] * 5
    a(f"""s_lshr_b32 s{sCSM}, s{sRB}, 3
    s_add_u32 s{sCSM}, s{sCSM}, 1
    s_cmp_eq_u32 s{sRG}, 0
    s_cselect_b32 s{sCSM}, s{sCSM}, 0""")
    for i in range(4):
        a(f"v_mov_b32 v{ONES+i}, 0x3f803f80")
    for i in range(64):
        a(f"v_mov_b32 v{vACC+i}, 0")
    xaddr = [vXA + i for i in range(4)]

    slots = []
    for g in range(8):
        for j in range(4):
            for t in range(2):
                slots.append((g, 0, j, t))
    for g in range(8, 12):
        for c2 in range(2):
            for j in range(4):
                for t in range(2):
                    slots.append((g, c2, j, t))
    NS = len(slots)
    first_of = {}
    last_of = {}
    for n, (g, c2, j, t) in enumerate(slots):
        first_of.setdefault(g, n)
        last_of[g] = n
    hi_state = {"x": 0, "w0": 0, "w1": 0}

    def set_hi(key, regs, g):
        hi = ((g % NSLOT) * SLOT) >> 16
        if hi_state[key] != hi:
            for r in regs:
                a(f"v_xor_b32 v{r}, 0x10000, v{r}")
            hi_state[key] = hi

    def frag_reg(n):
        return vFR + 4 * (n % 4)

    def issue_reads(n):
        g, c2, j, t = slots[n]
        lo = ((g % NSLOT) * SLOT) & 0xffff
        f = frag_reg(n)
        tag = f"w{n}"
        if g < 8:
            if j == 0 and t == 0:
                set_hi("x", xaddr, g)
                set_hi("w0", waddr0, g)
                for jj in range(4):
                    r = vXF + 4 * (4 * g + jj)
                    a.ldsop(f"ds_read_b128 v[{r}:{r+3}], v{vXA+jj} offset:{lo}", f"x{g}_{jj}")
            if ch == 0:
                a.ldsop(f"ds_read_b128 v[{f}:{f+3}], v{vWS+j} offset:{lo + t*4096}", tag)
            else:
                o = lo + t * 4096 + j * 1024
                a.ldsop(f"ds_read_b64_tr_b16 v[{f}:{f+1}], v{vWM} offset:{o}", tag)
                a.ldsop(f"ds_read_b64_tr_b16 v[{f+2}:{f+3}], v{vWM} offset:{o+256}", tag)
        else:
            if c2 == 0 and j == 0 and t == 0:
                set_hi("w1", [vW1], g)
            o = lo + c2 * 16384 + t * 4096 + j * 1024
            a.ldsop(f"ds_read_b64_tr_b16 v[{f}:{f+1}], v{vW1} offset:{o}", tag)
            a.ldsop(f"ds_read_b64_tr_b16 v[{f+2}:{f+3}], v{vW1} offset:{o+256}", tag)

    def mfma(n):
        g, c2, j, t = slots[n]
        f = frag_reg(n)
        if g < 8:
            xf = vXF + 4 * (4 * g + j)
            acc = vACC + 16 * t
            a.lgwait(f"x{g}_{j}")
        else:
            xf = vXF + 4 * (4 * (2 * (g - 8) + c2) + j)
            acc = vACC2 + 16 * t
        a.lgwait(f"w{n}")
        if ch == 0 and g < 8:
            a(f"v_mfma_f32_32x32x16_bf16 v[{acc}:{acc+15}], v[{xf}:{xf+3}], v[{f}:{f+3}], v[{acc}:{acc+15}]")
        else:
            a(f"v_mfma_f32_32x32x16_bf16 v[{acc}:{acc+15}], v[{f}:{f+3}], v[{xf}:{xf+3}], v[{acc}:{acc+15}]")

    def colsum_at(n):
        g, c2, j, t = slots[n]
        if (g == 0) or (g == 8 and c2 == 1):
            acc = CSACC if g == 0 else CS1ACC
            lab = a.newlab("CSK")
            f = frag_reg(n)
            c = "0" if j == 0 else f"v[{acc}:{acc+15}]"
            a(f"""s_cmp_eq_u32 s{sCSM}, {t+1}
            s_cbranch_scc0 {lab}
            v_mfma_f32_32x32x16_bf16 v[{acc}:{acc+15}], v[{ONES}:{ONES+3}], v[{f}:{f+3}], {c}""")
            a.label(lab)

    dmaq = []

    def stage_barrier(g):
        if ch == 0 and g == 7:
            gather_finish(a, 0, GATH0, a.nvm - marks["g0"], 3)
            for i in range(16):
                a(f"v_mov_b32 v{GATH0+i}, 0")
        if g == 10 and ch == 1:
            a.vmwait("u0")
            write_flag(a, 0, ch)
        a.vmwait(f"st{g+1}")
        a("s_barrier")
        if ch == 0 and g in (8, 9) and marks.get("edone") and not marks.get("published"):
            a.fill_all(); s_publish(a); a.lg = []
            marks["published"] = True
        nxt = g + 3
        if E("X_NODMA", 0):
            pass
        elif nxt < 8:
            dmaq.extend(dma_p0(nxt, ch))
        elif nxt < 12:
            dmaq.extend(dma_p1(nxt - 8, ch))
        if g == 9:
            dmaq.extend(p2_B(0)); dmaq.extend(p2_B(1))
        if g == 10:
            dmaq.extend(p2_B(2)); dmaq.extend(p2_B(3))

    marks = {}
    if (PRIO == 2 and ch == 1) or (PRIO == 3 and ch == 0):
        a("s_setprio 1")
    a.vmwait("st0")
    a("s_barrier")
    stamp(a, 1)
    for s_ in range(NPRE, 3):
        dmaq.extend(dma_p0(s_, ch))
    for n in range(LOOK):
        issue_reads(n)
    for n in range(NS):
        g, c2, j, t = slots[n]
        mfma(n)
        colsum_at(n)
        nn = n + LOOK
        if nn < NS:
            if slots[nn][0] != slots[nn - 1][0]:
                stage_barrier(slots[nn - 1][0])
            issue_reads(nn)
        every = (PACE0 if g < 8 else PACE1)
        npop = 2 if len(dmaq) > 4 else (1 if (n % every == 0) else 0)
        for _ in range(DMA_RATE if DMA_RATE else npop):
            if dmaq:
                code, tag = dmaq.pop(0)
                a.vmop(code, tag)
        if g >= 8:
            a.fill(FILL0 if ch == 0 else FILL)
        elif g >= 3:
            a.fill(3)
        if W2_AT == 4 and g >= W2_G0 and (n - first_of[g]) in (W2_P1, W2_P2):
            k = 2 * (g - W2_G0) + (0 if (n - first_of[g]) == W2_P1 else 1)
            if ch == 1 and k < 8:
                w2_touch16(a, k, vDS)
            if ch == 0 and k in (1, 3):
                w2_touch16(a, 6 + (k // 2), vDX0)
        if n == last_of[g]:
            if P1DBG == 4 and g < 9:
                a(f"s_memtime s[{STAMP0+2*(5+g)}:{STAMP0+2*(5+g)+1}]")
            if P1DBG == 5 and g >= 7:
                a(f"s_memtime s[{STAMP0+2*(g-2)}:{STAMP0+2*(g-2)+1}]")
            if P1DBG == 1 and g in (8, 9, 10):
                stamp(a, {8: 9, 9: 13, 10: 6}[g], force=True)
            if P1DBG == 2 and g in (1, 3, 5):
                stamp(a, {1: 9, 3: 13, 5: 6}[g], force=True)
            if g == 0:
                colsum_store(a, CSACC, ch)
                a("s_nop 7")
                for i in range(16):
                    a(f"v_mov_b32 v{CSACC+i}, 0")
            if W2_AT == 1 and ch == 0 and g in (3, 4, 8):
                w2_touch(a, {3: 0, 4: 2, 8: 1}[g])
            if W2_AT == 3 and ch == 1 and W2_G0 <= g < W2_G0 + 8:
                w2_touch16(a, g - W2_G0, vDS)
            if W2_AT == 3 and ch == 0 and g in (W2_G0 + 1, W2_G0 + 3):
                w2_touch16(a, 6 + (g - W2_G0) // 2, vDX0)
            if W2_AT == 2 and ch == 1 and g == 9:
                for wch in (0, 2, 1):
                    w2_touch(a, wch, junk=vDS)
            if g == 2 and ch == 0:
                a.vmwait("par")
                q = Q()
                s_params(q)
                a.fillq = q.q
            if g == 5 and ch == 0:
                gather_loads(a, 0, GATH0, 3, tracked=True)
                marks["g0"] = a.nvm
            if g == 7:
                a.fill_all()
                stamp(a, 2)
                if PRIO == 1 and ch == 0:
                    a("s_setprio 1")
                q = Q()
                if ch == 1:
                    q(f"""s_lshl_b32 s{sT5}, s{sCG}, 11
                    s_add_u32 s{sT5}, s{sT5}, s{sHPOS}""")
                    row_stats_M(q, vT)
                    gelu_epi(q, vACC, sT5, 64 * 4, "u0", 4, vT)
                else:
                    s_epilogue1(q)
                    q.q.append(("call", lambda: marks.__setitem__("edone", True)))
                    row_stats_M(q, vT)
                a.fillq = q.q
            if g == 8:
                colsum_store(a, CS1ACC, 2 + ch, koff=1)
            if g == 9:
                a.fill_all()
                stamp(a, 3)
            if g == 10 and ch == 0:
                lookback_loads(a)
                a(f"""s_lshl_b32 s{sT5}, s{sCG}, 12
                s_add_u32 s{sMU}, s{sHPOS}, s{sT5}
                s_add_u32 s{sMU}, s{sMU}, {86*1024}""")
            if g == 10 and ch == 0 and not marks.get("published"):
                s_publish(a); a.lg = []
            if g == 10 and ch == 1:
                gather_loads(a, 1, GATH1, 3, tracked=True)
                marks["g1"] = a.nvm
    stamp(a, 4)
    while dmaq:
        code, tag = dmaq.pop(0)
        a.vmop(code, tag)
    a.fill_all()
    if ch == 0:
        q = Q()
        s_work_atoms(a, q)
        a.fillq = q.q
        a.fill_all()
        stamp(a, 6)
    else:
        gather_finish(a, 1, GATH1, a.nvm - marks["g1"], 3)
        poll_flags(a, 0, tracked=True)
        for st in range(4):
            for code, tag in p2_A(st):
                a.vmop(code, tag)
    a("s_barrier")
    stamp(a, 5)
    if ch == 0:
        for st in range(4):
            for code, tag in p2_A(st):
                a.vmop(code, tag)
    if ch == 1:
        lab = a.newlab("U2S")
        stamp(a, 6)
        a(f"""s_cmp_ge_u32 s{sCG}, 11
        s_cbranch_scc1 {lab}
        s_lshl_b32 s{sT5}, s{sCG}, 11
        s_add_u32 s{sT5}, s{sT5}, s{sHPOS}
        s_add_u32 s{sT5}, s{sT5}, {64*1024}""")
        gelu_epi(a, vACC2, sT5, 192 * 4, "u12", 48, vT, maybe=True)
        a.label(lab)
        a.lg = []
        marks["u12"] = a.nvm
        for st in range(4, 8):
            for code, tag in p2_B(st):
                a.vmop(code, tag)
        a(f"s_waitcnt vmcnt({a.nvm - marks['u12']})")
        write_flag(a, 1, 1)
        stamp(a, 8)
    else:
        a(f"""s_lshl_b32 s{sT5}, s{sCG}, 11
        s_add_u32 s{sT5}, s{sT5}, s{sHPOS}
        s_add_u32 s{sT5}, s{sT5}, {32*1024}""")
        a(f"""s_lshl_b32 s{sT5}, s{sCG}, 11
        s_add_u32 s{sT5}, s{sT5}, s{sHPOS}
        s_add_u32 s{sT5}, s{sT5}, {32*1024}""")
        gelu_epi(a, vACC2, sT5, 128 * 4, "u12", 48, vT)
        for st in range(4, 8):
            for code, tag in p2_B(st):
                a.vmop(code, tag)
        a.vmwait("h")
        write_flag(a, 2, 0)
        stamp(a, 8)
    a.marks = marks
    phase2(a, ch)


def phase2(a, ch):
    rt = ch
    vB0, vB1, vC0, vC1, vXO, vSO, vDO = 4, 5, 6, 7, 9, 11, 12
    vDK = 8
    vBF = 176
    vAC = 208
    vEX = 96
    a(f"""v_lshrrev_b32 v{vT}, 5, v{vLANE}
    v_lshlrev_b32 v{vT}, 2, v{vT}
    v_bfe_u32 v3, v{vLANE}, 2, 2
    v_add_u32 v{vT}, v{vT}, v3
    v_lshlrev_b32 v{vT}, 7, v{vT}
    v_bfe_u32 v3, v{vLANE}, 3, 1
    v_lshl_add_u32 v{vT}, v3, 6, v{vT}
    v_bfe_u32 v3, v{vLANE}, 4, 1
    v_lshl_add_u32 v{vT}, v3, 5, v{vT}
    v_and_b32 v3, 3, v{vLANE}
    v_lshl_add_u32 v{vT}, v3, 3, v{vT}
    s_lshl_b32 s{sT0}, s{sRG}, 12
    v_add_u32 v{vB0}, s{sT0}, v{vT}
    v_xor_b32 v{vB1}, 64, v{vB0}
    v_and_b32 v{vT}, 31, v{vLANE}
    v_bfe_u32 v3, v{vT}, 1, 3
    v_lshrrev_b32 v{vT+1}, 5, v{vLANE}
    s_lshr_b32 s{sT0}, s{sRG}, 1
    s_lshl_b32 s{sT0}, s{sT0}, 2
    v_add_u32 v{vT+1}, s{sT0}, v{vT+1}
    v_xor_b32 v3, v3, v{vT+1}
    v_lshlrev_b32 v{vT}, 7, v{vT}
    v_lshl_add_u32 v{vT}, v3, 4, v{vT}
    s_and_b32 s{sT0}, s{sRG}, 1
    s_lshl_b32 s{sT0}, s{sT0}, 13
    v_add_u32 v{vC0}, s{sT0}, v{vT}
    v_xor_b32 v{vC1}, 32, v{vC0}
    v_lshrrev_b32 v{vT}, 5, v{vLANE}
    v_lshlrev_b32 v{vT}, 4, v{vT}
    s_lshl_b32 s{sT0}, s{sRB2}, 6
    s_lshl_b32 s{sT1}, s{sRG}, 2
    s_add_u32 s{sT0}, s{sT0}, s{sT1}
    s_add_u32 s{sT0}, s{sT0}, {32*rt}
    v_add_u32 v{vT}, s{sT0}, v{vT}
    v_lshlrev_b32 v{vSO}, 4, v{vT}
    v_lshlrev_b32 v{vT}, 9, v{vT}
    v_and_b32 v3, 31, v{vLANE}
    s_lshl_b32 s{sT0}, s{sCB}, 6
    v_add_u32 v3, s{sT0}, v3
    v_add_u32 v{vT}, v{vT}, v3
    v_lshlrev_b32 v{vXO}, 1, v{vT}
    v_lshlrev_b32 v{vDO}, 1, v3""")

    def epi_loads():
        a.vmop(f"buffer_load_ushort v{vDK}, v{vDO}, s[{ST}:{ST+3}], 0 offen", "epi")
        a.vmop(f"buffer_load_ushort v{vDK+2}, v{vDO}, s[{ST}:{ST+3}], 0 offen offset:64", "epi")
        for ct in range(2):
            for i in range(4):
                a.vmop(f"buffer_load_ushort v{vEX+4*ct+i}, v{vXO}, s[{SX}:{SX+3}], 0 offen offset:{i*1024 + ct*64}", "epi")
        a(f"s_mov_b32 s{sT0}, {WS_STAT}")
        for i in range(4):
            a.vmop(f"buffer_load_dword v{vEX+8+i}, v{vSO}, s[{SWS}:{SWS+3}], s{sT0} offen offset:{i*16} sc1", "epi")
            a.vmop(f"buffer_load_dword v{vEX+12+i}, v{vSO}, s[{SWS}:{SWS+3}], s{sT0} offen offset:{i*16+8} sc1", "epi")
    for i in range(32):
        a(f"v_mov_b32 v{vAC+i}, 0")
    hi2 = {"v": 0}

    def p2_reads(st, n):
        slot = (st % 8) * 16384
        hi, lo = slot >> 16, slot & 0xffff
        if n == 0 and hi != hi2["v"]:
            for r in (vB0, vB1, vC0, vC1):
                a(f"v_xor_b32 v{r}, 0x10000, v{r}")
            hi2["v"] = hi
        s_, ct = n >> 1, n & 1
        f = vBF + 16 * (st % 2) + 4 * n
        tag = f"r{st}_{n}"
        if ORDER[st][0] == "M":
            vb = vB0 if ct == 0 else vB1
            a.ldsop(f"ds_read_b64_tr_b16 v[{f}:{f+1}], v{vb} offset:{lo + s_*2048}", tag)
            a.ldsop(f"ds_read_b64_tr_b16 v[{f+2}:{f+3}], v{vb} offset:{lo + s_*2048 + 1024}", tag)
        else:
            a.ldsop(f"ds_read_b128 v[{f}:{f+3}], v{vC0+s_} offset:{lo + ct*4096}", tag)

    def p2_barrier(st):
        a.vmwait(f"B{st}")
        a("s_barrier")

    p2_barrier(0)
    stamp(a, 7)
    for n in range(4):
        p2_reads(0, n)
    dq = []
    a_next = 4
    allowed = 3
    for st in range(NST2):
        if st == 4:
            stamp(a, 9)
        if st == 11:
            stamp(a, 13)
        if st + 1 < NST2:
            if ch == 0:
                if st + 1 == H_ST:
                    a.vmwait("u12")
                    write_flag(a, 1, 0)
                if st + 1 == E2_ST:
                    poll_flags(a, 2, tracked=True)
                if st + 1 == E1_ST:
                    poll_flags(a, 1, tracked=True)
            p2_barrier(st + 1)
            if st + 1 == E2_ST:
                allowed = 11
            if st + 1 == E1_ST:
                allowed = NST2 - 1
            while a_next <= min(allowed, st + NA - 1, NST2 - 1):
                dq.extend(p2_A(a_next)); a_next += 1
            if st >= 1 and st + 7 < NST2:
                dq.extend(p2_B(st + 7))
        g = sum(1 for x in dq if x[1] == f"A{st}")
        while any(x[1] == f"A{st}" for x in dq):
            code, tag = dq.pop(0); a.vmop(code, tag)
        a.vmwait(f"A{st}")
        per = (len(dq) + 3) // 4
        for n in range(4):
            s_, ct = n >> 1, n & 1
            f = vBF + 16 * (st % 2) + 4 * n
            ar = ARING[st % NA] + 4 * s_
            ac = vAC + 16 * ct
            a.lgwait(f"r{st}_{n}")
            a(f"v_mfma_f32_32x32x16_bf16 v[{ac}:{ac+15}], v[{ar}:{ar+3}], v[{f}:{f+3}], v[{ac}:{ac+15}]")
            if st + 1 < NST2:
                p2_reads(st + 1, n)
            for _ in range(per):
                if dq:
                    code, tag = dq.pop(0)
                    a.vmop(code, tag)
        if st == 3:
            epi_loads()
    stamp(a, 10)
    a(f"""s_nop 15
    s_barrier
    s_lshl_b32 s{sT0}, s{sRG}, 11
    v_lshlrev_b32 v{vT}, 4, v{vLANE}
    v_add_u32 v{vT+1}, s{sT0}, v{vT}
    v_add_u32 v{vT+1}, {rt*32768}, v{vT+1}""")
    for q in range(4):
        for ct in range(2):
            r = vAC + 16 * ct + 4 * q
            a(f"ds_write_b128 v{vT+1}, v[{r}:{r+3}] offset:{q*8192 + ct*1024}")
    a(f"""s_lshl_b32 s{sT0}, s{sRG}, 13
    v_add_u32 v{vT+1}, s{sT0}, v{vT}
    v_add_u32 v{vT+1}, {rt*32768}, v{vT+1}
    s_waitcnt lgkmcnt(0)
    s_barrier""")
    R = vAR
    for src in range(4):
        for ct in range(2):
            r = R + 8 * src + 4 * ct
            a(f"ds_read_b128 v[{r}:{r+3}], v{vT+1} offset:{src*2048 + ct*1024}")
    a("s_waitcnt vmcnt(0)")
    a.vm = []
    D0, D1 = vDK, vDK + 2
    X = vEX; M_ = vEX + 8; S_ = vEX + 12; Y = vEX + 16
    a(f"v_lshlrev_b32 v{D0}, 16, v{D0}\nv_lshlrev_b32 v{D1}, 16, v{D1}\nv_lshlrev_b32 v{vT}, 1, v{vXO}")
    for i in range(4):
        a(f"v_rcp_f32 v{S_+i}, v{S_+i}")
    for k in range(8):
        a(f"v_lshlrev_b32 v{X+k}, 16, v{X+k}")
    for k in range(8):
        a(f"v_sub_f32 v{Y+k}, v{X+k}, v{M_+(k&3)}")

    def rnd():
        for k in range(0, 8, 2):
            a(f"v_cvt_pk_bf16_f32 v{vT+1}, v{Y+k}, v{Y+k+1}")
            a(f"v_lshlrev_b32 v{Y+k}, 16, v{vT+1}\nv_and_b32 v{Y+k+1}, 0xffff0000, v{vT+1}")
    rnd()
    for k in range(8):
        a(f"v_mul_f32 v{Y+k}, v{Y+k}, v{S_+(k&3)}")
    rnd()
    for k in range(8):
        a(f"v_mul_f32 v{Y+k}, v{Y+k}, v{D0 if k < 4 else D1}")
    rnd()
    for k in range(8):
        a(f"v_add_f32 v{Y+k}, v{Y+k}, v{X+k}")
    a("s_waitcnt lgkmcnt(0)")
    for k in range(8):
        a(f"v_add_f32 v{R+k}, v{R+k}, v{R+8+k}")
        a(f"v_add_f32 v{R+16+k}, v{R+16+k}, v{R+24+k}")
    for k in range(8):
        a(f"v_add_f32 v{R+k}, v{R+k}, v{R+16+k}")
    for k in range(8):
        a(f"v_add_f32 v{R+k}, v{R+k}, v{Y+k}")
    for ct in range(2):
        for i in range(4):
            ro = i * 2048 + ct * 128
            so, io = (ro // 4096) * 4096, ro % 4096
            a(f"s_mov_b32 s{sT0}, {so}")
            a(f"buffer_store_dword v{R+4*ct+i}, v{vT}, s[{SO}:{SO+3}], s{sT0} offen offset:{io}")
    if ch == 0:
        lab = a.newlab("EP")
        a(f"""s_cmp_eq_u32 s{sRB2}, 31
        s_cbranch_scc0 {lab}
        s_cmp_eq_u32 s{sCB}, 0
        s_cbranch_scc0 {lab}
        s_cmp_eq_u32 s{sW}, 0
        s_cbranch_scc0 {lab}
        v_mov_b32 v4, s{sTAG}
        v_mov_b32 v3, 0
        s_mov_b32 s{sT0}, {WS_EPOCH}
        s_mov_b64 exec, 1
        buffer_store_dword v4, v3, s[{SWS}:{SWS+3}], s{sT0} offen sc1
        s_mov_b64 exec, -1""")
        a.label(lab)
    stamp(a, 11)
    if STAMPS:
        a("s_waitcnt vmcnt(0)")
        stamp(a, 12)
    stamp_flush(a, 14)
    a("s_endpgm")


if __name__ == "__main__":
    main(sys.argv[1] if len(sys.argv) > 1 else "cdna_kernels/" + NAME + ".s")
```

```python
import sys, math, struct, os

NAME = "parallel_sum__ssm_conv_s5__glu_gated_geglu__prompt"
KNAME = NAME + "_kernel"

E = lambda k, d: int(os.environ.get(k, str(d)))
STAMPS = E("STAMPS", 0)
SPIN_MAX = E("SPIN_MAX", 200000)
CODE_PREFETCH = E("CODE_PREFETCH", 1)
W2_PREFETCH = E("W2_PREFETCH", 1)
FILL = E("FILL", 7)
FILL0 = E("FILL0", 14)
SW_DELAY = E("SW_DELAY", 8)
NPRE = E("NPRE", 2)
OUTF = os.environ.get("OUTF", "")
V17 = E("V17", 1)
DMA_RATE = E("DMA_RATE", 0)
PACE0 = E("PACE0", 2)
PACE1 = E("PACE1", 3)
PRIO = E("PRIO", 0)
W2_AT = E("W2_AT", 4)
W2_G0 = E("W2_G0", 8)
W2_P1 = E("W2_P1", 2)
W2_P2 = E("W2_P2", 9)
LOOK = E("LOOK", 3)
A_TOUCH = E("A_TOUCH", 0)
E2_ST = E("E2_ST", 3)
E1_ST = E("E1_ST", 8)
H_ST = E("H_ST", 2)
X_NOMFMA = E("X_NOMFMA", 0)
X_NOREAD = E("X_NOREAD", 0)

NKS = 150
RT_STRIDE = NKS * 1024
WS_AGG = 0xA00000
WS_STAT = 0xA40000
WS_CS = 0xA80000
WS_FLG = 0xB00000
WS_EPOCH = 0xB10000
WS_DUMMY = 0xB20000
WS_DBG = 0xF00000
WS_SIZE = 0x10000000

LOG2E = 1.4426950408889634
SLOT = 32768
NSLOT = 4
SCR = NSLOT * SLOT
SCR_T = SCR
SCR_CS = 16384
SCR_ST = 17408
SCR_ES = 18432
SCR_RV = 20480
LDS_BYTES = 163840
NST2 = 19
NBS, NAS = 3, 5
B_BASE, A_BASE = 0, 49152


def f2u(x):
    return struct.unpack("<I", struct.pack("<f", x))[0]


class A:
    def __init__(self):
        self.l = []
        self.nlab = 0
        self.vm = []
        self.nvm = 0
        self.lg = []
        self.fillq = []

    def __call__(self, s):
        for line in s.strip("\n").split("\n"):
            line = line.strip()
            if not line:
                continue
            if X_NOMFMA and line.startswith("v_mfma"):
                continue
            self.l.append("  " + line)

    def label(self, name):
        self.l.append(name + ":")

    def newlab(self, p="L"):
        self.nlab += 1
        return f"{p}_{self.nlab}"

    def vmop(self, s, tag, maybe=False):
        self(s)
        if not maybe:
            self.vm.append(tag)
            self.nvm += 1

    def vmwait(self, tag):
        idx = [i for i, t in enumerate(self.vm) if t == tag]
        if not idx:
            return
        n = len(self.vm) - 1 - idx[-1]
        assert n <= 63, n
        self(f"s_waitcnt vmcnt({n})")
        self.vm = self.vm[idx[-1] + 1:]

    def vmwait_all(self):
        self("s_waitcnt vmcnt(0)")
        self.vm = []

    def ldsop(self, s, tag):
        if X_NOREAD and tag[0] in "xwr":
            return
        self(s)
        self.lg.append(tag)
        assert len(self.lg) <= 30

    def lgwait(self, tag):
        idx = [i for i, t in enumerate(self.lg) if t == tag]
        if not idx:
            return
        n = len(self.lg) - 1 - idx[-1]
        n = min(n, 15)
        self(f"s_waitcnt lgkmcnt({n})")
        self.lg = self.lg[len(self.lg) - n:] if n else []

    def lgwait_all(self):
        self("s_waitcnt lgkmcnt(0)")
        self.lg = []

    def fill(self, n):
        if E("X_NOFILL", 0):
            self.fillq = [at for at in self.fillq if at[0] in ("vm",) or (at[0] == "call" and False)]
        while n > 0 and self.fillq:
            at = self.fillq.pop(0)
            k = at[0]
            if k == "v":
                self(at[1]); n -= 1
            elif k == "lds":
                self.ldsop(at[1], at[2]); n -= 1
            elif k == "lgw":
                self.lgwait(at[1])
            elif k == "vm":
                self.vmop(at[1], at[2], at[3]); n -= 1
            elif k == "call":
                at[1]()
            elif k == "calln":
                at[1](); n -= at[2]

    def fill_all(self):
        self.fill(10 ** 9)

    def text(self):
        return "\n".join(self.l) + "\n"


class Q:
    def __init__(self):
        self.q = []

    def __call__(self, s):
        for line in s.strip("\n").split("\n"):
            line = line.strip()
            if line:
                self.q.append(("v", line))

    def ldsop(self, s, tag):
        self.q.append(("lds", s, tag))

    def lgwait(self, tag):
        self.q.append(("lgw", tag))

    def vmop(self, s, tag, maybe=False):
        self.q.append(("vm", s, tag, maybe))


def srd(a, s, ptr_lo, nbytes):
    a(f"""s_mov_b32 s{s}, s{ptr_lo}
    s_and_b32 s{s+1}, s{ptr_lo+1}, 0xffff
    s_mov_b32 s{s+2}, {nbytes}
    s_mov_b32 s{s+3}, 0x20000""")


def rne_bf16(a, v):
    a(f"v_cvt_pk_bf16_f32 v{v}, v{v}, v{v}\nv_lshlrev_b32 v{v}, 16, v{v}")


def wave_sum(a, v, tmp_s):
    for ctrl in ("row_shr:1", "row_shr:2", "row_shr:4", "row_shr:8"):
        a(f"s_nop 1\nv_add_f32_dpp v{v}, v{v}, v{v} {ctrl} row_mask:0xf bank_mask:0xf")
    a(f"s_nop 1\nv_add_f32_dpp v{v}, v{v}, v{v} row_bcast:15 row_mask:0xa bank_mask:0xf")
    a(f"s_nop 1\nv_add_f32_dpp v{v}, v{v}, v{v} row_bcast:31 row_mask:0xc bank_mask:0xf")
    a(f"s_nop 1\nv_readlane_b32 s{tmp_s}, v{v}, 63")


SX, SS, SM, SWS, SWD, SC, SO, ST = 4, 8, 12, 16, 20, 24, 28, 32
sW, sRG, sRB, sCG = 36, 37, 38, 39
sKC0, sU0B, sDUM, sTAG = 72, 73, 74, 75
sT0, sT1, sT2, sT3, sT4, sT5 = 76, 77, 78, 79, 80, 81
sMX, sMS, sMU, sM1 = 82, 83, 84, 85
sCSM = 86
sRB2, sCB, sRT, sCT = 87, 88, 89, 90
sSPIN = 91
sEX = 92
sMASK = 94
sAOFF, sLW, s3RG, s2RG = 96, 97, 98, 99
sXB, sHPOS = 100, 101
SM2 = 68
STAMP0 = 40
P_X, P_LRE, P_LIM, P_BRE, P_BIM, P_CRE, P_CIM, P_LDT = 40, 42, 44, 46, 48, 50, 52, 54
P_DSK, P_BX, P_WG, P_WU, P_WD, P_OUT, P_DBG, P_WS = 56, 58, 60, 62, 64, 66, 68, 70

vLANE = 1
vXA = 4
vWS = 8
vWM = 8
vW1 = 12
vDX0, vDX1, vDS, vDM = 13, 14, 15, 16
vDS1 = 47
vT = 17
ONES = 28
vAr, vAi, vKr, vKi, vA16r, vA16i, vA128r, vA128i = 32, 33, 34, 35, 36, 37, 38, 39
vRINV, vNM = 40, 41
vDA, vDB, vDC0, vDC1 = 42, 43, 44, 45
vK1, vCA = 46, 47
vFR = 48
vACC = 64
vACC2 = 96
vXF = 128
CSACC = 96
GATH0 = 112
CS1ACC = 128
GATH1 = 144
JUNK = 255


PSTAMP = E("PSTAMP", 0)


def pstamp(a, i):
    if PSTAMP:
        a(f"s_memrealtime s[{sEX}:{sEX+1}]\ns_waitcnt lgkmcnt(0)\nv_mov_b32 v{232+i}, s{sEX}")


DBGD = E("DBGD", -1)


P1DBG = E("P1DBG", 0)


def stamp(a, i, force=False):
    if STAMPS and P1DBG in (4, 5) and i >= 4:
        if i == 4 and False:
            pass
        return
    if STAMPS and P1DBG in (4, 5) and i == 1:
        a(f"s_memtime s[{STAMP0+2*4}:{STAMP0+2*4+1}]")
    if STAMPS and P1DBG == 3 and i in (1, 2, 4):
        j = {1: 9, 2: 13, 4: 6}[i]
        a(f"s_memtime s[{STAMP0+2*j}:{STAMP0+2*j+1}]")
    if STAMPS:
        if i == 3:
            return
        if P1DBG and i in (6, 9, 13) and not force:
            return
        a(f"s_memrealtime s[{STAMP0+2*i}:{STAMP0+2*i+1}]")
        if i == 0:
            a(f"s_mov_b32 s{STAMP0+6}, s{sMASK}\ns_mov_b32 s{STAMP0+7}, s{sMASK+1}")


def stamp_flush(a, n):
    if not STAMPS:
        return
    a("s_waitcnt lgkmcnt(0)")
    a(f"s_lshl_b32 s{sT0}, s2, 3\ns_add_u32 s{sT0}, s{sT0}, s{sW}\ns_lshl_b32 s{sT0}, s{sT0}, 6\ns_add_u32 s{sT0}, s{sT0}, {WS_DBG}")
    a("v_mov_b32 v3, 0")
    for i in range(n):
        a(f"v_mov_b32 v2, s{STAMP0+2*i}")
        a(f"buffer_store_dword v2, v3, s[{SWS}:{SWS+3}], s{sT0} offen offset:{4*i}")
    if DBGD >= 0:
        lab = a.newlab("DD")
        a(f"""s_cmp_eq_u32 s2, {DBGD}
        s_cbranch_scc0 {lab}
        s_cmp_eq_u32 s{sW}, {E("DBGW", 0)}
        s_cbranch_scc0 {lab}
        s_load_dwordx2 s[{sT2}:{sT3}], s[0:1], 112
        s_waitcnt lgkmcnt(0)
        s_mov_b32 s{ST}, s{sT2}
        s_and_b32 s{ST+1}, s{sT3}, 0xffff
        s_mov_b32 s{ST+2}, 256
        s_mov_b32 s{ST+3}, 0x20000
        v_mov_b32 v3, 0""")
        for i in range(n):
            a(f"v_mov_b32 v2, s{STAMP0+2*i}")
            a(f"buffer_store_dword v2, v3, s[{ST}:{ST+3}], 0 offen offset:{4*i}")
        a.label(lab)


def dma_p0(s, ch):
    slot = (s % NSLOT) * SLOT
    it = []
    if ch == 1:
        pre = f"""s_add_u32 s{sT0}, s{sKC0}, {s}
        s_and_b32 s{sT0}, s{sT0}, 7
        s_lshl_b32 s{sT3}, s{sT0}, 7
        s_add_u32 s{sT4}, s{sT3}, 16384
        """
        for i in range(4):
            vd = vDX0 if i % 2 == 0 else vDX1
            so = sT3 if i < 2 else sT4
            it.append(((pre if i == 0 else "") + f"""s_add_u32 m0, s{sLW}, {slot + i*1024}
            s_nop 0
            buffer_load_dwordx4 v{vd}, s[{SX}:{SX+3}], s{so} offen lds""", f"st{s}"))
    else:
        pre = f"""s_add_u32 s{sT0}, s{sKC0}, {s}
        s_and_b32 s{sT0}, s{sT0}, 7
        s_lshl_b32 s{sT3}, s{sT0}, 7
        s_mul_i32 s{sT2}, s{sT0}, {64*2752}
        s_add_u32 s{sT2}, s{sT2}, s{sU0B}
        """
        for i in range(2):
            vd = vDS if i == 0 else vDS1
            it.append(((pre if i == 0 else "") + f"""s_add_u32 m0, s{sMS}, {slot + i*1024}
            s_nop 0
            buffer_load_dwordx4 v{vd}, s[{SS}:{SS+3}], s{sT3} offen lds""", f"st{s}"))
        for mat in range(2):
            sr = SM if mat == 0 else SM2
            it.append((f"""s_add_u32 m0, s{sM1}, {slot + 24576 + mat*4096}
            s_nop 0
            buffer_load_dwordx4 v{vDM}, s[{sr}:{sr+3}], s{sT2} offen lds""", f"st{s}"))
    return it


def dma_p1(t, ch):
    g = 8 + t
    slot = (g % NSLOT) * SLOT
    it = []
    c2 = ch
    pre = f"""s_add_u32 s{sT0}, s{sKC0}, {2*t+c2}
    s_and_b32 s{sT0}, s{sT0}, 7
    s_mul_i32 s{sT2}, s{sT0}, {64*2752}
    s_add_u32 s{sT2}, s{sT2}, s{sU0B}
    s_add_u32 s{sT2}, s{sT2}, 64
    s_add_u32 s{sT3}, s{sT2}, s{sDUM}
    """
    for mat in range(2):
        sr = SM if mat == 0 else SM2
        for j in range(2):
            so = sT2 if j == 0 else sT3
            it.append(((pre if (mat == 0 and j == 0) else "") + f"""s_add_u32 m0, s{sM1}, {slot + c2*16384 + j*8192 + mat*4096}
            s_nop 0
            buffer_load_dwordx4 v{vDM}, s[{sr}:{sr+3}], s{so} offen lds""", f"st{g}"))
    return it


ORDER = [("M", i) for i in range(4)] + [("S", j) for j in range(8)] + [("M", i) for i in range(4, 11)]


NA = E("NA", 10)
vAR = 128
ARING = [128, 136, 144, 152, 160, 168, 64, 72, 80, 88]
vAG = 42


def p2_A(st):
    kind, ix = ORDER[st]
    ks0 = 8 * ix if kind == "M" else 86 + 8 * ix
    r = ARING[st % NA]
    it = []
    if (kind, ix) == ("M", 10):
        first = f"""s_mov_b32 s{sT1}, {ks0*1024}
        s_cmp_eq_u32 s{sRG}, 3
        s_cselect_b32 s{sT1}, {(ks0-2)*1024}, s{sT1}"""
    else:
        first = f"s_mov_b32 s{sT1}, {ks0*1024}"
    it.append((first + f"""
    buffer_load_dwordx4 v[{r}:{r+3}], v{vDA}, s[{SWS}:{SWS+3}], s{sT1} offen sc1""", f"A{st}"))
    it.append((f"""buffer_load_dwordx4 v[{r+4}:{r+7}], v{vDA}, s[{SWS}:{SWS+3}], s{sT1} offen offset:1024 sc1""", f"A{st}"))
    return it


def p2_B(st):
    slot = (st % 8) * 16384
    kind, ix = ORDER[st]
    it = []
    if kind == "M":
        if ix < 3:
            reg, c = s3RG, 3 * 4 * ix
        elif ix == 3:
            reg, c = s2RG, 2 * 12 + 11
        elif ix < 7:
            reg, c = s3RG, 3 * 4 * (ix - 4) + 1
        elif ix == 7:
            reg, c = s2RG, 2 * 12 + 11 + 1
        elif ix < 10:
            reg, c = s3RG, 3 * 4 * (ix - 8) + 2
        else:
            reg, c = sAOFF, 3 * 4 * (ix - 8) + 2
        for i in range(2):
            it.append((f"""s_add_u32 s{sT1}, s{reg}, {c*32768 + i*8192}
            s_add_u32 m0, s{sRT}, {slot + i*1024}
            s_nop 0
            buffer_load_dwordx4 v{vDB}, s[{SWD}:{SWD+3}], s{sT1} offen lds""", f"B{st}"))
    else:
        j = ix
        for i in range(2):
            vd = vDC0 if i % 2 == 0 else vDC1
            it.append((f"""s_add_u32 s{sT1}, s{sXB}, {j*128 + i*8192}
            s_add_u32 m0, s{sRT}, {slot + i*1024}
            s_nop 0
            buffer_load_dwordx4 v{vd}, s[{SC}:{SC+3}], s{sT1} offen lds""", f"B{st}"))
    return it


def main(out_path):
    a = A()
    gen(a)
    ref = open("cdna_kernels/" + NAME + ".s.ref").read()
    head = []
    for line in ref.splitlines():
        if line.startswith(";") and "@launch" not in line and "Override" not in line and "grid=ceil" not in line:
            head.append(line)
        elif not line.startswith(";"):
            break
    txt = "\n".join(head) + "\n"
    txt += f"; @launch grid=(256,1,1) block=(512,1,1) lds={LDS_BYTES}\n"
    txt += '.amdgcn_target "amdgcn-amd-amdhsa--gfx950"\n.text\n'
    txt += f".globl {KNAME}\n.p2align 8\n.type {KNAME},@function\n{KNAME}:\n"
    txt += a.text()
    txt += f""".section .rodata,"a"
.p2align 6
.amdhsa_kernel {KNAME}
  .amdhsa_next_free_vgpr 256
  .amdhsa_next_free_sgpr 102
  .amdhsa_accum_offset 256
  .amdhsa_group_segment_fixed_size 0
  .amdhsa_kernarg_size 128
  .amdhsa_user_sgpr_count 2
  .amdhsa_user_sgpr_kernarg_segment_ptr 1
  .amdhsa_system_sgpr_workgroup_id_x 1
.end_amdhsa_kernel
"""
    open(out_path, "w").write(txt)


def flag_load(a, ev, rb_s, vdst, tag):
    a(f"""s_lshl_b32 s{sT0}, s{rb_s}, 8
    s_add_u32 s{sT0}, s{sT0}, {WS_FLG + ev*64}
    v_and_b32 v{vdst}, 15, v{vLANE}
    v_lshlrev_b32 v{vdst}, 2, v{vdst}""")
    a.vmop(f"buffer_load_dword v{vdst}, v{vdst}, s[{SWS}:{SWS+3}], s{sT0} offen sc1", tag)


PRG = (252, 253, 254)


FLG_OFF = {0: 0, 1: 512, 2: 1024}


def poll_flags(a, ev, tracked=False):
    lp, ok = a.newlab("PF"), a.newlab("PFOK")
    wide = (ev == 1)
    a(f"""s_lshr_b32 s{sT0}, s{sRB2}, 1
    s_lshl_b32 s{sT0}, s{sT0}, 11
    s_add_u32 s{sT0}, s{sT0}, {WS_FLG + FLG_OFF[ev]}
    v_lshlrev_b32 v{vT}, {3 if wide else 2}, v{vLANE}
    s_mov_b32 s{sSPIN}, 0""")
    regs = [(248, 249), (250, 251), (252, 253)]
    ld = (lambda r: f"buffer_load_dwordx2 v[{r[0]}:{r[1]}], v{vT}, s[{SWS}:{SWS+3}], s{sT0} offen sc1") if wide else \
         (lambda r: f"buffer_load_dword v{r[0]}, v{vT}, s[{SWS}:{SWS+3}], s{sT0} offen sc1")
    for r in regs:
        a(ld(r) + "\ns_sleep 2")
    a.label(lp)
    for r in regs:
        nx = a.newlab("PFN")
        a(f"""s_waitcnt vmcnt(2)
        v_cmp_ne_u32 vcc, s{sTAG}, v{r[0]}
        s_add_u32 s{sSPIN}, s{sSPIN}, 1""")
        if wide:
            a(f"""s_cbranch_vccnz {nx}
            v_cmp_ne_u32 vcc, s{sTAG}, v{r[1]}
            s_nop 0
            s_cbranch_vccz {ok}""")
            a.label(nx)
        else:
            a(f"s_cbranch_vccz {ok}")
        a(ld(r))
    a(f"""s_cmp_gt_u32 s{sSPIN}, {SPIN_MAX}
    s_cbranch_scc0 {lp}""")
    a.label(ok)
    if tracked:
        a.vm = ["poll", "poll"]
        a.nvm += 2


def touch_A(a, ev):
    if not A_TOUCH:
        return
    k0, nl = {0: (0, 64), 1: (32, 108), 2: (86, 128)}[ev]
    a(f"""s_lshr_b32 s{sT0}, s{sCB}, 2
    s_lshl_b32 s{sT1}, s{sRB2}, 1
    s_add_u32 s{sT0}, s{sT0}, s{sT1}
    s_mul_i32 s{sT0}, s{sT0}, {RT_STRIDE}
    s_and_b32 s{sT1}, s{sCB}, 3
    s_mul_i32 s{sT1}, s{sT1}, {nl*128}
    s_add_u32 s{sT0}, s{sT0}, s{sT1}
    s_add_u32 s{sT0}, s{sT0}, {k0*1024}
    v_lshlrev_b32 v{vT+1}, 7, v{vLANE}
    buffer_load_dword v{JUNK}, v{vT+1}, s[{SWS}:{SWS+3}], s{sT0} offen sc1""")
    if nl > 64:
        a(f"s_add_u32 s{sT0}, s{sT0}, 8192")
        if nl < 128:
            a(f"""v_cmp_gt_u32 vcc, {nl-64}, v{vLANE}
            s_and_saveexec_b64 s[{sEX}:{sEX+1}], vcc
            buffer_load_dword v{JUNK}, v{vT+1}, s[{SWS}:{SWS+3}], s{sT0} offen sc1
            s_mov_b64 exec, s[{sEX}:{sEX+1}]""")
        else:
            a(f"buffer_load_dword v{JUNK}, v{vT+1}, s[{SWS}:{SWS+3}], s{sT0} offen sc1")


def write_flag(a, ev, ch):
    sh = 5 if ev == 1 else 4
    a(f"""s_lshl_b32 s{sT0}, s{sRB}, 11
    s_lshl_b32 s{sT1}, s{sCG}, {sh}
    s_add_u32 s{sT0}, s{sT0}, s{sT1}
    s_lshl_b32 s{sT1}, s{sW if ev == 1 else sRG}, 2
    s_add_u32 s{sT0}, s{sT0}, s{sT1}
    s_add_u32 s{sT0}, s{sT0}, {WS_FLG + FLG_OFF[ev]}
    v_mov_b32 v{vT+9}, 0
    v_mov_b32 v{vT+10}, s{sTAG}
    s_mov_b64 s[{sEX}:{sEX+1}], exec
    s_mov_b64 exec, 1""")
    a.vmop(f"buffer_store_dword v{vT+10}, v{vT+9}, s[{SWS}:{SWS+3}], s{sT0} offen sc1", "flag")
    a(f"s_mov_b64 exec, s[{sEX}:{sEX+1}]")


def only_rg(a, rg, fn):
    lab = a.newlab("RG")
    a(f"s_cmp_eq_u32 s{sRG}, {rg}\ns_cbranch_scc0 {lab}")
    lg = list(a.lg)
    fn()
    a.label(lab)
    a.lg = lg


def colsum_mfma(a, wf0, wf1, accreg, first=False):
    l1, l2 = a.newlab("CS"), a.newlab("CS")
    c = "0" if first else f"v[{accreg}:{accreg+15}]"
    a(f"""s_cmp_eq_u32 s{sCSM}, 0
    s_cbranch_scc1 {l2}
    s_cmp_eq_u32 s{sCSM}, 1
    s_cbranch_scc0 {l1}
    v_mfma_f32_32x32x16_bf16 v[{accreg}:{accreg+15}], v[{ONES}:{ONES+3}], v[{wf0}:{wf0+3}], {c}
    s_branch {l2}""")
    a.label(l1)
    a(f"v_mfma_f32_32x32x16_bf16 v[{accreg}:{accreg+15}], v[{ONES}:{ONES+3}], v[{wf1}:{wf1+3}], {c}")
    a.label(l2)


def colsum_store(a, accreg, unit, koff=0):
    a(f"""s_nop 7
    s_nop 7
    s_add_u32 s{sT1}, s{sKC0}, {koff}
    s_and_b32 s{sT1}, s{sT1}, 7
    s_lshl_b32 s{sT0}, s{sCG}, 3
    s_add_u32 s{sT0}, s{sT0}, s{sT1}
    s_lshl_b32 s{sT0}, s{sT0}, 11
    s_sub_u32 s{sT1}, s{sCSM}, 1
    s_lshl_b32 s{sT1}, s{sT1}, 8
    s_add_u32 s{sT0}, s{sT0}, s{sT1}
    s_add_u32 s{sT0}, s{sT0}, {WS_CS + unit*512}
    s_lshl_b32 s{sT1}, s2, 11
    s_add_u32 s{sT1}, s{sT1}, {WS_DUMMY}
    s_cmp_eq_u32 s{sCSM}, 0
    s_cselect_b32 s{sT0}, s{sT1}, s{sT0}
    v_mov_b32 v{accreg+1}, s{sTAG}
    v_lshlrev_b32 v{accreg+2}, 3, v{vLANE}
    s_mov_b64 s[{sEX}:{sEX+1}], exec
    s_mov_b64 exec, 0xffffffff""")
    a.vmop(f"buffer_store_dwordx2 v[{accreg}:{accreg+1}], v{accreg+2}, s[{SWS}:{SWS+3}], s{sT0} offen sc1", "cs")
    a(f"s_mov_b64 exec, s[{sEX}:{sEX+1}]")


def gather_loads(a, part, dst, atmp, tracked=False):
    l1, l2 = a.newlab("G"), a.newlab("G")
    a(f"""s_cmp_lt_u32 s{sRG}, 2
    s_cbranch_scc0 {l1}
    s_lshl_b32 s{sT0}, s{sCG}, 14
    s_add_u32 s{sT0}, s{sT0}, {WS_CS + part*1024}
    s_lshl_b32 s{sT1}, s{sRG}, 9
    s_add_u32 s{sT0}, s{sT0}, s{sT1}
    v_lshlrev_b32 v{atmp}, 3, v{vLANE}""")
    for j in range(8):
        so, io = (j * 2048 // 4096) * 4096, (j * 2048) % 4096
        a(f"s_add_u32 s{sT1}, s{sT0}, {so}")
        a(f"buffer_load_dwordx2 v[{dst+2*j}:{dst+2*j+1}], v{atmp}, s[{SWS}:{SWS+3}], s{sT1} offen offset:{io} sc1")
    a(f"s_branch {l2}")
    a.label(l1)
    nd = 8
    if part == 0:
        a(f"""s_lshl_b32 s{sT0}, s{sRB}, 11
        s_sub_u32 s{sT1}, s{sRG}, 2
        s_lshl_b32 s{sT1}, s{sT1}, 10
        s_add_u32 s{sT0}, s{sT0}, s{sT1}
        s_add_u32 s{sT0}, s{sT0}, {WS_STAT}
        v_lshlrev_b32 v{atmp}, 4, v{vLANE}
        buffer_load_dwordx4 v[{dst}:{dst+3}], v{atmp}, s[{SWS}:{SWS+3}], s{sT0} offen sc1""")
        nd = 7
    a(f"s_mov_b32 s{sT0}, 0x40000000")
    for j in range(nd):
        a(f"buffer_load_dword v{dst+8+j}, v{vLANE}, s[{SWS}:{SWS+3}], s{sT0} offen")
    a.label(l2)
    if tracked:
        a.vm += ["g"] * 8
        a.nvm += 8


def gather_finish(a, part, dst, nyounger, atmp):
    lr, l1, l2, lok, lok2, l0 = [a.newlab("GF") for _ in range(6)]
    a(f"s_mov_b32 s{sSPIN}, 0")
    a(f"s_waitcnt vmcnt({nyounger})")
    a(f"s_branch {l0}")
    a.label(lr)
    a("s_waitcnt vmcnt(0)")
    a.label(l0)
    a(f"""s_cmp_lt_u32 s{sRG}, 2
    s_cbranch_scc0 {l1}
    s_mov_b64 s[{sMASK}:{sMASK+1}], 0""")
    for j in range(8):
        a(f"""v_cmp_ne_u32 vcc, s{sTAG}, v{dst+2*j+1}
        s_or_b64 s[{sMASK}:{sMASK+1}], s[{sMASK}:{sMASK+1}], vcc""")
    a(f"""s_cmp_eq_u64 s[{sMASK}:{sMASK+1}], 0
    s_cbranch_scc1 {lok}
    s_add_u32 s{sSPIN}, s{sSPIN}, 1
    s_cmp_gt_u32 s{sSPIN}, {SPIN_MAX}
    s_cbranch_scc1 {lok}""")
    gather_loads(a, part, dst, atmp)
    a(f"s_branch {lr}")
    a.label(lok)
    a(f"""v_add_f32 v{dst}, v{dst}, v{dst+2}
    v_add_f32 v{dst+4}, v{dst+4}, v{dst+6}
    v_add_f32 v{dst+8}, v{dst+8}, v{dst+10}
    v_add_f32 v{dst+12}, v{dst+12}, v{dst+14}
    v_add_f32 v{dst}, v{dst}, v{dst+4}
    v_add_f32 v{dst+8}, v{dst+8}, v{dst+12}
    v_add_f32 v{dst}, v{dst}, v{dst+8}
    s_lshl_b32 s{sT0}, s{sRG}, 8
    s_add_u32 s{sT0}, s{sT0}, {SCR}
    v_lshlrev_b32 v{atmp}, 2, v{vLANE}
    v_add_u32 v{atmp}, s{sT0}, v{atmp}
    ds_write_b32 v{atmp}, v{dst} offset:{SCR_CS + part*512}
    s_branch {l2}""")
    a.label(l1)
    if part == 0:
        a(f"""v_cmp_ne_u32 vcc, s{sTAG}, v{dst+1}
        s_mov_b64 s[{sMASK}:{sMASK+1}], vcc
        v_cmp_ne_u32 vcc, s{sTAG}, v{dst+3}
        s_or_b64 s[{sMASK}:{sMASK+1}], s[{sMASK}:{sMASK+1}], vcc
        s_cmp_eq_u64 s[{sMASK}:{sMASK+1}], 0
        s_cbranch_scc1 {lok2}
        s_add_u32 s{sSPIN}, s{sSPIN}, 1
        s_cmp_gt_u32 s{sSPIN}, {SPIN_MAX}
        s_cbranch_scc1 {lok2}""")
        gather_loads(a, part, dst, atmp)
        a(f"s_branch {lr}")
        a.label(lok2)
        a(f"""v_rcp_f32 v{dst+2}, v{dst+2}
        v_sub_f32 v{dst+3}, 0, v{dst}
        s_sub_u32 s{sT0}, s{sRG}, 2
        s_lshl_b32 s{sT0}, s{sT0}, 9
        s_add_u32 s{sT0}, s{sT0}, {SCR}
        v_lshlrev_b32 v{atmp}, 3, v{vLANE}
        v_add_u32 v{atmp}, s{sT0}, v{atmp}
        ds_write_b64 v{atmp}, v[{dst+2}:{dst+3}] offset:{SCR_ST}
        v_lshrrev_b32 v{atmp}, 1, v{atmp}
        v_add_u32 v{atmp}, {SCR//2}, v{atmp}
        ds_write_b32 v{atmp}, v{dst+2} offset:{SCR_RV}""")
    a.label(l2)
    a.lgwait_all()


def row_stats_M(q, tmp):
    q(f"""v_and_b32 v{tmp}, 31, v{vLANE}
    v_bfe_u32 v{tmp+1}, v{tmp}, 2, 1
    v_lshlrev_b32 v{tmp+1}, 4, v{tmp+1}
    v_lshrrev_b32 v{tmp+2}, 3, v{tmp}
    v_lshl_add_u32 v{tmp+1}, v{tmp+2}, 2, v{tmp+1}
    v_and_b32 v{tmp+2}, 3, v{tmp}
    v_add_u32 v{tmp+1}, v{tmp+1}, v{tmp+2}
    v_lshlrev_b32 v{tmp+2}, 5, v{vRGV}
    v_add_u32 v{tmp+1}, v{tmp+2}, v{tmp+1}
    v_lshlrev_b32 v{tmp+1}, 3, v{tmp+1}
    v_add_u32 v{tmp+1}, {SCR}, v{tmp+1}""")
    q.ldsop(f"ds_read_b64 v[{vRINV}:{vRINV+1}], v{tmp+1} offset:{SCR_ST}", "rs")
    q.lgwait("rs")


vRGV = 2


def aug_mfma(q, acc, cs_off, R, T, sform=False):
    X, W = R, R + 4
    q(f"""v_and_b32 v{T}, 31, v{vLANE}
    v_lshlrev_b32 v{T}, 2, v{T}
    v_add_u32 v{T}, {SCR + SCR_CS + cs_off}, v{T}""")
    q.ldsop(f"ds_read_b32 v{T+1}, v{T} offset:0", "ac")
    q.ldsop(f"ds_read_b32 v{T+2}, v{T} offset:128", "ac")
    q(f"""v_cmp_gt_u32 vcc, 32, v{vLANE}
    v_mov_b32 v{X+2}, 0
    v_mov_b32 v{X+3}, 0
    v_cndmask_b32 v{X}, 0, v{vNM}, vcc
    v_mov_b32 v{W+2}, 0
    v_lshrrev_b32 v{X+1}, 16, v{X}
    v_mov_b32 v{W+3}, 0
    v_or_b32 v{X}, v{X}, v{X+1}""")
    q.lgwait("ac")
    for t in range(2):
        cs = T + 1 + t
        q(f"""v_cvt_pk_bf16_f32 v{T+3}, v{cs}, v{cs}
        v_lshlrev_b32 v{T+3}, 16, v{T+3}
        v_sub_f32 v{T+3}, v{cs}, v{T+3}
        v_cvt_pk_bf16_f32 v{W}, v{cs}, v{T+3}
        v_and_b32 v{W+1}, 0xffff0000, v{W}
        v_sub_f32 v{T+3}, v{T+3}, v{W+1}
        v_cvt_pk_bf16_f32 v{W+1}, v{T+3}, v{W+2}
        s_nop 1""")
        ac = acc + 16 * t
        if sform:
            q(f"v_mfma_f32_32x32x16_bf16 v[{ac}:{ac+15}], v[{X}:{X+3}], v[{W}:{W+3}], v[{ac}:{ac+15}]")
        else:
            q(f"v_mfma_f32_32x32x16_bf16 v[{ac}:{ac+15}], v[{W}:{W+3}], v[{X}:{X+3}], v[{ac}:{ac+15}]")
    q("s_nop 15\ns_nop 3")


def gelu_epi(q, acc, pos_s, cs_off, tagname, csr, T, maybe=False):
    K0 = -2.0 * math.sqrt(2.0 / math.pi) * LOG2E
    K1c = K0 * 0.044715
    q(f"v_mov_b32 v{vK1}, {f2u(K1c)}")
    aug_mfma(q, acc, cs_off, csr, T)
    for qq in range(4):
        rs = [4 * qq + i for i in range(4)]
        for i, r in enumerate(rs):
            q(f"v_mul_f32 v{acc+r}, v{acc+r}, v{vRINV}")
        for i, r in enumerate(rs):
            q(f"v_mul_f32 v{T+i}, v{acc+r}, v{acc+r}")
        for i, r in enumerate(rs):
            q(f"v_fmaak_f32 v{T+i}, v{vK1}, v{T+i}, {f2u(K0)}")
        for i, r in enumerate(rs):
            q(f"v_mul_f32 v{T+i}, v{T+i}, v{acc+r}")
        for i, r in enumerate(rs):
            q(f"v_exp_f32 v{T+i}, v{T+i}")
        for i, r in enumerate(rs):
            q(f"v_mul_f32 v{T+4+i}, v{acc+r}, v{acc+16+r}")
        for i, r in enumerate(rs):
            q(f"v_add_f32 v{T+i}, 1.0, v{T+i}")
        for i, r in enumerate(rs):
            q(f"v_rcp_f32 v{T+i}, v{T+i}")
        for i, r in enumerate(rs):
            q(f"v_mul_f32 v{T+4+i}, v{T+4+i}, v{vRINV}")
        for i, r in enumerate(rs):
            q(f"v_mul_f32 v{T+i}, v{T+i}, v{T+4+i}")
        q(f"v_cvt_pk_bf16_f32 v{acc+2*qq}, v{T}, v{T+1}\nv_cvt_pk_bf16_f32 v{acc+2*qq+1}, v{T+2}, v{T+3}")
    q(f"v_lshlrev_b32 v{T}, 4, v{vLANE}")
    q.vmop(f"buffer_store_dwordx4 v[{acc}:{acc+3}], v{T}, s[{SWS}:{SWS+3}], s{pos_s} offen sc1", tagname, maybe)
    q.vmop(f"buffer_store_dwordx4 v[{acc+4}:{acc+7}], v{T}, s[{SWS}:{SWS+3}], s{pos_s} offen offset:1024 sc1", tagname, maybe)


def s_params(q):
    vLre, vLim, vLdt = vT + 7, vT + 8, vT + 9
    t0, t1, t2, t3, t4, t5, t6 = [vT + i for i in range(7)]
    q(f"""v_lshlrev_b32 v{vLre}, 16, v{vA16r}
    v_lshlrev_b32 v{vLim}, 16, v{vA16i}
    v_lshlrev_b32 v{vLdt}, 16, v{vA128r}
    v_mul_f32 v{t0}, {f2u(LOG2E)}, v{vLdt}
    v_exp_f32 v{t0}, v{t0}
    s_nop 0""")
    rne_bf16(q, t0)
    q(f"""v_mul_f32 v{t1}, v{t0}, v{vLre}
    v_mul_f32 v{t2}, v{t0}, v{vLim}
    v_mul_f32 v{t1}, {f2u(LOG2E)}, v{t1}
    v_exp_f32 v{t1}, v{t1}
    v_mul_f32 v{t2}, {f2u(1.0/(2*math.pi))}, v{t2}
    v_rndne_f32 v{t3}, v{t2}
    v_sub_f32 v{t2}, v{t2}, v{t3}
    v_cos_f32 v{t3}, v{t2}
    v_sin_f32 v{t4}, v{t2}
    s_nop 0
    v_mul_f32 v{vAr}, v{t1}, v{t3}
    v_mul_f32 v{vAi}, v{t1}, v{t4}
    v_add_f32 v{t3}, -1.0, v{vAr}
    v_mul_f32 v{t4}, v{vLre}, v{vLre}
    v_fmac_f32 v{t4}, v{vLim}, v{vLim}
    v_rcp_f32 v{t4}, v{t4}
    v_mul_f32 v{t5}, v{t3}, v{vLre}
    v_fmac_f32 v{t5}, v{vAi}, v{vLim}
    v_mul_f32 v{t6}, v{vAi}, v{vLre}
    v_fma_f32 v{t6}, -v{t3}, v{vLim}, v{t6}
    v_add_f32 v{t4}, v{t4}, v{t4}
    v_mul_f32 v{vKr}, v{t5}, v{t4}
    v_mul_f32 v{vKi}, v{t6}, v{t4}
    v_mov_b32 v{vA16r}, v{vAr}
    v_mov_b32 v{vA16i}, v{vAi}""")

    def csq(r, i):
        q(f"""v_mul_f32 v{t0}, v{i}, v{i}
        v_mul_f32 v{t1}, v{r}, v{i}
        v_fma_f32 v{r}, v{r}, v{r}, -v{t0}
        v_add_f32 v{i}, v{t1}, v{t1}""")
    for _ in range(4):
        csq(vA16r, vA16i)
    q(f"v_mov_b32 v{vA128r}, v{vA16r}\nv_mov_b32 v{vA128i}, v{vA16i}")
    for _ in range(3):
        csq(vA128r, vA128i)


def s_epilogue1(q):
    zr = lambda j: vACC + j
    zi = lambda j: vACC + 16 + j
    T = vT
    row_stats_M(q, T)
    aug_mfma(q, vACC, 0, 4, T, sform=True)
    q(f"""v_and_b32 v{T}, 31, v{vLANE}
    v_lshrrev_b32 v{T+2}, 5, v{vLANE}
    v_lshlrev_b32 v{T+3}, 5, v{vRGV}
    v_lshl_add_u32 v{T+3}, v{T+2}, 4, v{T+3}
    v_lshlrev_b32 v{T+3}, 2, v{T+3}
    v_add_u32 v{T+3}, {SCR}, v{T+3}""")
    q.ldsop(f"ds_read_b128 v[4:7], v{T+3} offset:{SCR_RV}", "s0")
    q.ldsop(f"ds_read_b128 v[8:11], v{T+3} offset:{SCR_RV + 16}", "s1")
    for qq in range(4):
        base = 4 if qq % 2 == 0 else 8
        q.lgwait(f"s{qq}")
        for i in range(4):
            j = 4 * qq + i
            q(f"""v_mul_f32 v{zr(j)}, v{zr(j)}, v{base+i}
            v_mul_f32 v{zi(j)}, v{zi(j)}, v{base+i}""")
        if qq + 2 < 4:
            q.ldsop(f"ds_read_b128 v[{base}:{base+3}], v{T+3} offset:{SCR_RV + (qq+2)*16}", f"s{qq+2}")
    cur, alt = (T + 4, T + 5), (T + 7, T + 8)
    q(f"v_mov_b32 v{cur[0]}, v{zr(0)}\nv_mov_b32 v{cur[1]}, v{zi(0)}")
    for j in range(1, 16):
        sr, si = cur
        nr, ni = alt
        q(f"""v_fma_f32 v{nr}, v{vAr}, v{sr}, v{zr(j)}
        v_fma_f32 v{ni}, v{vAr}, v{si}, v{zi(j)}
        v_fma_f32 v{nr}, -v{vAi}, v{si}, v{nr}
        v_fma_f32 v{ni}, v{vAi}, v{sr}, v{ni}""")
        cur, alt = alt, cur
    assert cur == (T + 7, T + 8) and (T + 7) % 2 == 0
    q(f"""v_lshlrev_b32 v{T+1}, 1, v{vRGV}
    v_add_u32 v{T+1}, v{T+1}, v{T+2}
    v_lshlrev_b32 v{T+1}, 8, v{T+1}
    v_lshl_add_u32 v{T+1}, v{T}, 3, v{T+1}
    v_add_u32 v{T+1}, {SCR}, v{T+1}""")
    q.ldsop(f"ds_write_b64 v{T+1}, v[{T+7}:{T+8}] offset:{SCR_ES}", "ew")


def s_publish(a):
    T = vT
    a(f"""s_waitcnt lgkmcnt(0)
    v_and_b32 v{T}, 31, v{vLANE}
    v_lshlrev_b32 v{T+1}, 3, v{T}
    v_add_u32 v{T+1}, {SCR}, v{T+1}
    ds_read_b64 v[4:5], v{T+1} offset:{SCR_ES}
    ds_read_b64 v[6:7], v{T+1} offset:{SCR_ES+256}
    ds_read_b64 v[8:9], v{T+1} offset:{SCR_ES+512}
    ds_read_b64 v[10:11], v{T+1} offset:{SCR_ES+768}
    s_waitcnt lgkmcnt(0)""")

    def step(er, ei):
        a(f"""v_fma_f32 v{T+2}, v{vA16r}, v4, v{er}
        v_fma_f32 v{T+3}, v{vA16r}, v5, v{ei}
        v_fma_f32 v{T+2}, -v{vA16i}, v5, v{T+2}
        v_fma_f32 v5, v{vA16i}, v4, v{T+3}
        v_mov_b32 v4, v{T+2}""")
    step(6, 7); step(8, 9); step(10, 11)
    a(f"""ds_read_b64 v[6:7], v{T+1} offset:{SCR_ES+1024}
    ds_read_b64 v[8:9], v{T+1} offset:{SCR_ES+1280}
    ds_read_b64 v[10:11], v{T+1} offset:{SCR_ES+1536}
    ds_read_b64 v[{T+5}:{T+6}], v{T+1} offset:{SCR_ES+1792}
    s_waitcnt lgkmcnt(0)""")
    assert (T + 5) % 2 == 0
    step(6, 7); step(8, 9); step(10, 11); step(T + 5, T + 6)
    a(f"""v_mov_b32 v6, v5
    v_mov_b32 v5, s{sTAG}
    v_mov_b32 v7, s{sTAG}
    s_lshl_b32 s{sT0}, s{sCG}, 5
    v_add_u32 v{T}, s{sT0}, v{T}
    v_lshlrev_b32 v{T}, 4, v{T}
    s_lshl_b32 s{sT0}, s{sRB}, 13
    s_add_u32 s{sT0}, s{sT0}, {WS_AGG}
    v_cmp_gt_u32 vcc, 32, v{vLANE}
    s_and_saveexec_b64 s[{sEX}:{sEX+1}], vcc
    buffer_store_dwordx4 v[4:7], v{T}, s[{SWS}:{SWS+3}], s{sT0} offen sc1
    s_mov_b64 exec, s[{sEX}:{sEX+1}]""")
    a.vm.append("pub"); a.nvm += 1


LBG = 160
HG = 192


def lookback_loads(a, tracked=True):
    a(f"""v_and_b32 v{vT+9}, 31, v{vLANE}
    s_lshl_b32 s{sT0}, s{sCG}, 5
    v_add_u32 v{vT+9}, s{sT0}, v{vT+9}
    v_lshlrev_b32 v{vT+9}, 4, v{vT+9}           ; p*16
    v_lshrrev_b32 v3, 5, v{vLANE}
    s_sub_u32 s{sT0}, s{sRB}, 1
    v_sub_u32 v3, s{sT0}, v3                    ; rb-1-hf
    v_lshlrev_b32 v3, 13, v3
    v_add_u32 v3, v3, v{vT+9}
    s_mov_b32 s{sT0}, {WS_AGG}
    v_mov_b32 v{vT+10}, 0x7ff00000""")
    for i in range(8):
        a(f"""v_subrev_u32 v{vT+9}, {i*16384}, v3
        v_cmp_gt_i32 vcc, 0, v{vT+9}
        s_nop 1
        v_cndmask_b32 v{vT+9}, v{vT+9}, v{vT+10}, vcc""")
        code = f"buffer_load_dwordx4 v[{LBG+4*i}:{LBG+4*i+3}], v{vT+9}, s[{SWS}:{SWS+3}], s{sT0} offen sc1"
        if tracked:
            a.vmop(code, "lb")
        else:
            a(code)


def s_work_atoms(a, q):
    zr = lambda j: vACC + j
    zi = lambda j: vACC + 16 + j
    T = vT
    L = LBG
    G = LBG
    EB = 192
    q(f"""v_and_b32 v{T+8}, 31, v{vLANE}
    v_lshlrev_b32 v{T}, 3, v{T+8}
    v_add_u32 v{T}, {SCR}, v{T}""")
    for s in range(8):
        q.ldsop(f"ds_read_b64 v[{EB+2*s}:{EB+2*s+1}], v{T} offset:{SCR_ES + s*256}", "se")
    q(f"""v_mul_f32 v{T+5}, v{vA128i}, v{vA128i}
    v_mul_f32 v{T+6}, v{vA128r}, v{vA128i}
    v_fma_f32 v{T+5}, v{vA128r}, v{vA128r}, -v{T+5}
    v_add_f32 v{T+6}, v{T+6}, v{T+6}""")

    def check():
        lp, got = a.newlab("LB"), a.newlab("LBG")
        a(f"s_mov_b32 s{sSPIN}, 0")
        a.vmwait("lb")
        a.label(lp)
        a(f"""v_lshrrev_b32 v{T+1}, 5, v{vLANE}
        s_sub_u32 s{sT0}, s{sRB}, 1
        v_sub_u32 v{T+1}, s{sT0}, v{T+1}
        s_mov_b64 s[{sMASK}:{sMASK+1}], 0""")
        for i in range(8):
            a(f"""v_cmp_ne_u32 vcc, s{sTAG}, v{L+4*i+1}
            v_cmp_ne_u32 s[{sEX}:{sEX+1}], s{sTAG}, v{L+4*i+3}
            s_or_b64 s[{sEX}:{sEX+1}], s[{sEX}:{sEX+1}], vcc
            v_cmp_le_i32 vcc, {2*i}, v{T+1}
            s_and_b64 s[{sEX}:{sEX+1}], s[{sEX}:{sEX+1}], vcc
            s_or_b64 s[{sMASK}:{sMASK+1}], s[{sMASK}:{sMASK+1}], s[{sEX}:{sEX+1}]""")
        a(f"""s_cmp_eq_u64 s[{sMASK}:{sMASK+1}], 0
        s_cbranch_scc1 {got}
        s_add_u32 s{sSPIN}, s{sSPIN}, 1
        s_cmp_gt_u32 s{sSPIN}, {SPIN_MAX}
        s_cbranch_scc1 {got}""")
        lookback_loads(a, tracked=False)
        a(f"s_waitcnt vmcnt(0)\ns_branch {lp}")
        a.label(got)
    q.q.append(("call", check))
    cr, ci = T + 1, T + 2
    q(f"v_mov_b32 v{cr}, v{L+28}\nv_mov_b32 v{ci}, v{L+30}")
    for i in range(6, -1, -1):
        q(f"""v_fma_f32 v{T+3}, v{T+5}, v{cr}, v{L+4*i}
        v_fma_f32 v{T+4}, v{T+5}, v{ci}, v{L+4*i+2}
        v_fma_f32 v{T+3}, -v{T+6}, v{ci}, v{T+3}
        v_fma_f32 v{ci}, v{T+6}, v{cr}, v{T+4}
        v_mov_b32 v{cr}, v{T+3}""")
    q(f"""v_mov_b32 v{T+3}, v{cr}
    v_mov_b32 v{T+4}, v{ci}
    s_nop 1
    v_permlane32_swap_b32 v{cr}, v{T+3}
    v_permlane32_swap_b32 v{ci}, v{T+4}
    s_nop 1
    v_fma_f32 v{cr}, v{vA128r}, v{T+3}, v{cr}
    v_fma_f32 v{ci}, v{vA128r}, v{T+4}, v{ci}
    v_fma_f32 v{cr}, -v{vA128i}, v{T+4}, v{cr}
    v_fma_f32 v{ci}, v{vA128i}, v{T+3}, v{ci}
    v_lshrrev_b32 v{T+5}, 5, v{vLANE}
    v_lshl_add_u32 v{T+5}, v{vRGV}, 1, v{T+5}""")
    q.lgwait("se")
    for s in range(7):
        def seg(s=s):
            a(f"""v_fma_f32 v{T+3}, v{vA16r}, v{cr}, v{EB+2*s}
            v_fma_f32 v{T+4}, v{vA16r}, v{ci}, v{EB+2*s+1}
            v_cmp_lt_u32 vcc, {s}, v{T+5}
            v_fma_f32 v{T+3}, -v{vA16i}, v{ci}, v{T+3}
            v_fma_f32 v{T+4}, v{vA16i}, v{cr}, v{T+4}
            v_cndmask_b32 v{cr}, v{cr}, v{T+3}, vcc
            v_cndmask_b32 v{ci}, v{ci}, v{T+4}, vcc""")
        q.q.append(("calln", seg, 7))
    cur, alt = (cr, ci), (T + 3, T + 4)
    for j in range(16):
        sr, si = cur
        nr, ni = alt
        q(f"""v_fma_f32 v{nr}, v{vAr}, v{sr}, v{zr(j)}
        v_fma_f32 v{ni}, v{vAr}, v{si}, v{zi(j)}
        v_fma_f32 v{nr}, -v{vAi}, v{si}, v{nr}
        v_fma_f32 v{ni}, v{vAi}, v{sr}, v{ni}
        v_mul_f32 v{zr(j)}, v{vKr}, v{nr}
        v_mul_f32 v{zi(j)}, -v{vKr}, v{ni}
        v_fma_f32 v{zr(j)}, -v{vKi}, v{ni}, v{zr(j)}
        v_fma_f32 v{zi(j)}, -v{vKi}, v{nr}, v{zi(j)}""")
        cur, alt = alt, cur
    for j in range(0, 16, 2):
        q(f"v_cvt_pk_bf16_f32 v{G+j//2}, v{zr(j)}, v{zr(j+1)}")
        q(f"v_cvt_pk_bf16_f32 v{G+8+j//2}, v{zi(j)}, v{zi(j+1)}")
    q(f"""v_lshlrev_b32 v{T+6}, 12, v{vRGV}
    v_add_u32 v{T+6}, {SCR_T}, v{T+6}
    v_lshrrev_b32 v{T+5}, 5, v{vLANE}
    v_lshlrev_b32 v{T+5}, 3, v{T+5}
    v_lshl_add_u32 v{T+5}, v{T+8}, 6, v{T+5}
    v_add_u32 v{T+5}, v{T+6}, v{T+5}
    v_add_u32 v{T+6}, v{T+6}, v{vTRL}
    v_lshlrev_b32 v{T}, 4, v{vLANE}""")
    for part in range(2):
        for qq in range(4):
            r = G + 8 * part + 2 * qq
            q.ldsop(f"ds_write_b64 v{T+5}, v[{r}:{r+1}] offset:{part*2048 + qq*16}", "tw")
    q.lgwait("tw")
    R = G + 16
    for part in range(2):
        for s2 in range(2):
            r = R + 8 * part + 4 * s2
            o = part * 2048 + s2 * 1024
            q.ldsop(f"ds_read_b64_tr_b16 v[{r}:{r+1}], v{T+6} offset:{o}", "tr")
            q.ldsop(f"ds_read_b64_tr_b16 v[{r+2}:{r+3}], v{T+6} offset:{o+256}", "tr")
    q.lgwait("tr")
    for part in range(2):
        for s2 in range(2):
            r = R + 8 * part + 4 * s2
            q.vmop(f"buffer_store_dwordx4 v[{r}:{r+3}], v{T}, s[{SWS}:{SWS+3}], s{sMU} offen offset:{(2*part+s2)*1024} sc1", "h")


vTRL = 3


def gen(a):
    global vTRL
    vTRL = 0
    sIDX = sMX
    if STAMPS:
        a(f"s_memrealtime s[{sMASK}:{sMASK+1}]")
    a(f"""s_cmp_ge_u32 s2, 256
    s_cbranch_scc1 L_END
    s_load_dwordx16 s[40:55], s[0:1], 0
    s_load_dwordx16 s[56:71], s[0:1], 64
    v_and_b32 v{vLANE}, 63, v0
    v_lshrrev_b32 v2, 6, v0
    s_and_b32 s{sT0}, s2, 7            ; xcd
    v_readfirstlane_b32 s{sW}, v2
    s_lshr_b32 s{sIDX}, s2, 3          ; idx
    s_and_b32 s{sRB}, s{sT0}, 1
    s_lshl_b32 s{sRB}, s{sRB}, 3
    s_and_b32 s{sT2}, s{sIDX}, 7
    s_add_u32 s{sRB}, s{sRB}, s{sT2}   ; rb
    s_lshr_b32 s{sCG}, s{sT0}, 1
    s_lshl_b32 s{sCG}, s{sCG}, 2
    s_lshr_b32 s{sT2}, s{sIDX}, 3
    s_add_u32 s{sCG}, s{sCG}, s{sT2}   ; cg
    s_and_b32 s{sRG}, s{sW}, 3
    s_lshl_b32 s{sKC0}, s{sCG}, 1
    s_add_u32 s{sKC0}, s{sKC0}, s{sRB}
    s_and_b32 s{sKC0}, s{sKC0}, 7
    s_lshl_b32 s{sRB2}, s{sT0}, 2
    s_and_b32 s{sT2}, s{sIDX}, 3
    s_add_u32 s{sRB2}, s{sRB2}, s{sT2}
    s_lshr_b32 s{sCB}, s{sIDX}, 2
    s_mul_i32 s{sT2}, s{sCG}, 3
    s_lshl_b32 s{sT3}, s{sCG}, 1
    s_add_u32 s{sT3}, s{sT3}, 11
    s_cmp_lt_u32 s{sCG}, 11
    s_cselect_b32 s{sU0B}, s{sT2}, s{sT3}
    s_cselect_b32 s{sDUM}, 64, 0x40000000
    s_lshl_b32 s{sU0B}, s{sU0B}, 6
    s_lshl_b32 s{sLW}, s{sRG}, 12           ; w'*4096
    s_lshl_b32 s{sMS}, s{sRG}, 11
    s_add_u32 s{sMS}, s{sMS}, 16384         ; S pieces: 16384 + w'*2048
    s_lshl_b32 s{sM1}, s{sRG}, 10           ; kstep*1024
    v_lshrrev_b32 v2, 3, v{vLANE}           ; lane>>3
    v_and_b32 v3, 7, v{vLANE}
    v_lshrrev_b32 v{vT}, 4, v{vLANE}        ; lane>>4
    v_xor_b32 v{vT+1}, v3, v{vT}            ; (lane&7)^(lane>>4)
    s_lshl_b32 s{sT2}, s{sRB}, 7
    s_lshl_b32 s{sT3}, s{sRG}, 5
    s_add_u32 s{sT2}, s{sT2}, s{sT3}
    v_add_u32 v{vT+2}, s{sT2}, v2
    v_lshlrev_b32 v{vT+2}, 10, v{vT+2}
    v_lshl_add_u32 v{vDX0}, v{vT+1}, 4, v{vT+2}
    v_xor_b32 v{vDX1}, 64, v{vDX0}
    v_add_u32 v{vDX1}, 8192, v{vDX1}
    s_and_b32 s{sT4}, s{sRG}, 1
    s_lshl_b32 s{sT4}, s{sT4}, 4
    s_lshl_b32 s{sT3}, s{sCG}, 5
    s_add_u32 s{sT4}, s{sT4}, s{sT3}
    v_add_u32 v{vT+2}, s{sT4}, v2
    v_lshlrev_b32 v{vT+2}, 10, v{vT+2}
    v_lshl_add_u32 v{vDS}, v{vT+1}, 4, v{vT+2}
    v_xor_b32 v{vDS1}, 64, v{vDS}
    v_add_u32 v{vDS1}, 8192, v{vDS1}
    v_lshrrev_b32 v{vT+2}, 2, v{vLANE}
    s_lshl_b32 s{sT4}, s{sRG}, 4
    v_add_u32 v{vT+2}, s{sT4}, v{vT+2}
    v_mul_u32_u24 v{vT+2}, 2752, v{vT+2}
    v_and_b32 v{vT+4}, 3, v{vLANE}
    v_lshl_add_u32 v{vDM}, v{vT+4}, 4, v{vT+2}
    v_lshlrev_b32 v{vT+3}, 4, v{vLANE}
    s_and_b32 s{sT4}, s{sW}, 2
    s_waitcnt lgkmcnt(0)""")
    pstamp(a, 0)
    srd(a, SX, P_X, 2048 * 1024)
    a(f"""s_cmp_eq_u32 s{sT4}, 0
    s_cselect_b32 s{P_BRE}, s{P_BRE}, s{P_BIM}
    s_cselect_b32 s{P_BRE+1}, s{P_BRE+1}, s{P_BIM+1}
    s_cmp_lt_u32 s{sW}, 4
    s_cselect_b32 s{P_CRE}, s{P_CRE}, s{P_CIM}
    s_cselect_b32 s{P_CRE+1}, s{P_CRE+1}, s{P_CIM+1}""")
    lab0, lab1 = a.newlab("D0"), a.newlab("D1")
    a(f"s_cmp_lt_u32 s{sW}, 4\ns_cbranch_scc1 {lab0}")
    for s_ in range(NPRE):
        for code, tag in dma_p0(s_, 1):
            a(code)
    srd(a, SS, P_BRE, 512 * 1024)
    srd(a, SM, P_WG, 512 * 2752)
    a(f"s_branch {lab1}")
    a.label(lab0)
    srd(a, SS, P_BRE, 512 * 1024)
    srd(a, SM, P_WG, 512 * 2752)
    a(f"s_mov_b32 s{sT4}, s{P_WU}\ns_mov_b32 s{sT5}, s{P_WU+1}")
    srd(a, 32, sT4, 512 * 2752)
    for s_ in range(NPRE):
        for code, tag in dma_p0(s_, 0):
            a(code.replace(f"s[{SM2}:{SM2+3}]", "s[32:35]"))
        if s_ == 0:
            a(f"""s_lshl_b32 s{sT2}, s2, 3
            s_lshl_b32 s{sT3}, s{sRG}, 1
            s_add_u32 s{sT5}, s{sT2}, s{sT3}
            s_lshl_b32 s{sT5}, s{sT5}, 10
            buffer_load_dwordx4 v[{vACC}:{vACC+3}], v{vT+3}, s[{SX}:{SX+3}], s{sT5} offen
            buffer_load_dwordx4 v[{vACC+4}:{vACC+7}], v{vT+3}, s[{SX}:{SX+3}], s{sT5} offen offset:1024""")
    a.label(lab1)
    srd(a, SWS, P_WS, WS_SIZE)
    a(f"""s_add_u32 s{P_BIM}, s{P_WS}, {WS_EPOCH}
    s_addc_u32 s{P_BIM+1}, s{P_WS+1}, 0
    s_load_dword s{sTAG}, s[{P_BIM}:{P_BIM+1}], 0""")
    srd(a, SM2, P_WU, 512 * 2752)
    pstamp(a, 1)
    srd(a, SWD, P_WD, 1376 * 1024)
    srd(a, SC, P_CRE, 512 * 1024)
    a(f"""v_and_b32 v{vT+2}, 31, v{vLANE}
    s_lshl_b32 s{sT4}, s{sCG}, 5
    v_add_u32 v{vT+2}, s{sT4}, v{vT+2}
    v_lshlrev_b32 v{vT+2}, 1, v{vT+2}""")
    srd(a, ST, P_LRE, 1024)
    a.vmop(f"buffer_load_ushort v{vA16r}, v{vT+2}, s[{ST}:{ST+3}], 0 offen", "par")
    srd(a, ST, P_LIM, 1024)
    a.vmop(f"buffer_load_ushort v{vA16i}, v{vT+2}, s[{ST}:{ST+3}], 0 offen", "par")
    srd(a, ST, P_LDT, 1024)
    a.vmop(f"buffer_load_ushort v{vA128r}, v{vT+2}, s[{ST}:{ST+3}], 0 offen", "par")
    pstamp(a, 2)
    srd(a, SO, P_OUT, 2048 * 2048)
    srd(a, ST, P_DSK, 1024)
    if CODE_PREFETCH:
        lab = a.newlab("CP")
        a(f"""s_cmp_eq_u32 s{sW}, 3
        s_cbranch_scc0 {lab}
        s_getpc_b64 s[{sT2}:{sT3}]""")
        a.label("L_PC")
        a(f"""s_mul_i32 s{sT4}, s{sIDX}, {10*128}
        v_lshlrev_b32 v{vT+2}, 7, v{vLANE}
        v_add_u32 v{vT+2}, s{sT4}, v{vT+2}
        v_cmp_gt_u32 vcc, L_CODE_END-L_PC, v{vT+2}
        s_and_saveexec_b64 s[{sEX}:{sEX+1}], vcc
        v_cmp_gt_u32 vcc, 10, v{vLANE}
        s_and_b64 exec, exec, vcc
        s_cbranch_execz {lab}_R
        global_load_dword v{vK1}, v{vT+2}, s[{sT2}:{sT3}]""")
        a.label(lab + "_R")
        a(f"s_mov_b64 exec, s[{sEX}:{sEX+1}]")
        a.label(lab)
    a(f"""s_lshr_b32 s{sT3}, s{sW}, 1                ; w>>1
    s_and_b32 s{sT4}, s{sW}, 1
    s_lshl_b32 s{sT4}, s{sT4}, 14            ; (w&1)*16384
    s_mul_i32 s{s3RG}, s{sT3}, {3*32768}
    s_add_u32 s{s3RG}, s{s3RG}, s{sT4}
    s_lshl_b32 s{s2RG}, s{sT3}, 16
    s_add_u32 s{s2RG}, s{s2RG}, s{sT4}
    s_cmp_eq_u32 s{sT3}, 3
    s_cselect_b32 s{sAOFF}, 0x40000000, s{s3RG}
    s_lshl_b32 s{sXB}, s{sRG}, 14
    s_lshl_b32 s{sRT}, s{sW}, 11
    s_lshl_b32 s{sT2}, s{sRB}, 2
    s_add_u32 s{sT2}, s{sT2}, s{sRG}
    s_mul_i32 s{sHPOS}, s{sT2}, {RT_STRIDE}
    s_lshl_b32 s{sT4}, s{sRB2}, 1
    s_lshr_b32 s{sT3}, s{sW}, 2
    s_add_u32 s{sT4}, s{sT4}, s{sT3}
    s_mul_i32 s{sT4}, s{sT4}, {RT_STRIDE}
    s_lshl_b32 s{sT3}, s{sRG}, 11
    s_add_u32 s{sT4}, s{sT4}, s{sT3}
    v_lshlrev_b32 v{vDA}, 4, v{vLANE}
    v_add_u32 v{vDA}, s{sT4}, v{vDA}
    v_bfe_u32 v{vT+2}, v{vLANE}, 4, 1
    v_lshlrev_b32 v{vT+2}, 2, v{vT+2}
    v_xor_b32 v{vT+2}, v3, v{vT+2}
    v_lshlrev_b32 v{vT+4}, 10, v2
    v_lshl_add_u32 v{vT+2}, v{vT+2}, 4, v{vT+4}
    s_lshl_b32 s{sT4}, s{sCB}, 7
    v_add_u32 v{vDB}, s{sT4}, v{vT+2}
    s_lshl_b32 s{sT4}, s{sCB}, 6
    v_add_u32 v{vT+2}, s{sT4}, v2
    v_lshlrev_b32 v{vT+2}, 10, v{vT+2}
    v_lshl_add_u32 v{vDC0}, v{vT+1}, 4, v{vT+2}
    v_xor_b32 v{vDC1}, 64, v{vDC0}
    v_and_b32 v2, 31, v{vLANE}
    v_bfe_u32 v3, v2, 2, 1
    v_lshlrev_b32 v3, 4, v3
    v_lshrrev_b32 v{vT}, 3, v2
    v_lshl_add_u32 v3, v{vT}, 2, v3
    v_and_b32 v{vT+1}, 3, v2
    v_add_u32 v3, v3, v{vT+1}               ; tau
    v_bfe_u32 v{vT}, v3, 1, 3
    s_lshl_b32 s{sT4}, s{sRG}, 5
    v_add_u32 v3, s{sT4}, v3
    v_lshlrev_b32 v3, 7, v3
    v_lshrrev_b32 v{vT+1}, 5, v{vLANE}
    v_xor_b32 v{vT}, v{vT}, v{vT+1}
    v_lshl_add_u32 v{vXA}, v{vT}, 4, v3
    v_xor_b32 v{vXA+1}, 32, v{vXA}
    v_xor_b32 v{vXA+2}, 64, v{vXA}
    v_xor_b32 v{vXA+3}, 96, v{vXA}
    v_lshlrev_b32 v3, 3, v{vT+1}
    v_bfe_u32 v{vT}, v{vLANE}, 2, 2
    v_add_u32 v3, v3, v{vT}
    v_lshlrev_b32 v3, 6, v3
    v_bfe_u32 v{vT}, v{vLANE}, 4, 1
    v_lshl_add_u32 v3, v{vT}, 5, v3
    v_and_b32 v{vT}, 3, v{vLANE}
    v_lshl_add_u32 v{vTRL}, v{vT}, 3, v3
    s_lshr_b32 s{sT4}, s{sW}, 2
    s_lshl_b32 s{sT4}, s{sT4}, 13
    v_add_u32 v{vW1}, s{sT4}, v{vTRL}
    v_mov_b32 v{vRGV}, s{sRG}""")
    pstamp(a, 3)
    a(f"""s_cmp_ge_u32 s{sW}, 4
    s_cbranch_scc1 L_STREAM_B""")
    save = (list(a.vm), list(a.lg), a.nvm)
    stream(a, 0)
    a.vm, a.lg, a.nvm = list(save[0]), list(save[1]), save[2]
    a.label("L_STREAM_B")
    stream(a, 1)
    a.label("L_END")
    a("s_endpgm")
    a.label("L_CODE_END")


def w2_touch(a, which, junk=None):
    if not W2_PREFETCH:
        return
    sIDX = sMX
    j = junk or vDA
    a(f"v_lshlrev_b32 v3, 7, v{vLANE}")
    if which in (0, 1):
        a(f"""s_mul_i32 s{sT0}, s{sIDX}, 44032
        s_lshl_b32 s{sT1}, s{sRG}, 13
        s_add_u32 s{sT0}, s{sT0}, s{sT1}
        s_add_u32 s{sT0}, s{sT0}, {32768*which}""")
        a.vmop(f"buffer_load_dword v{j}, v3, s[{SWD}:{SWD+3}], s{sT0} offen", "pf")
    else:
        a(f"""s_lshl_b32 s{sT0}, s{sIDX}, 14
        s_and_b32 s{sT1}, s{sRG}, 1
        s_lshl_b32 s{sT1}, s{sT1}, 13
        s_add_u32 s{sT0}, s{sT0}, s{sT1}""")
        a.vmop(f"buffer_load_dword v{j}, v3, s[{SC}:{SC+3}], s{sT0} offen", "pf")


def w2_touch16(a, piece, junk):
    if not W2_PREFETCH:
        return
    sIDX = sMX
    a(f"v_lshlrev_b32 v3, 7, v{vLANE}")
    if piece < 6:
        a(f"""s_mul_i32 s{sT0}, s{sIDX}, 44032
        s_lshl_b32 s{sT1}, s{sRG}, 11
        s_add_u32 s{sT0}, s{sT0}, s{sT1}
        s_add_u32 s{sT0}, s{sT0}, {piece*8192}
        s_mov_b64 s[{sEX}:{sEX+1}], exec
        s_mov_b64 exec, 0xffff""")
        a.vmop(f"buffer_load_dword v{junk}, v3, s[{SWD}:{SWD+3}], s{sT0} offen", "pf")
    else:
        a(f"""s_lshl_b32 s{sT0}, s{sIDX}, 14
        s_lshl_b32 s{sT1}, s{sRG}, 11
        s_add_u32 s{sT0}, s{sT0}, s{sT1}
        s_add_u32 s{sT0}, s{sT0}, {(piece-6)*8192}
        s_mov_b64 s[{sEX}:{sEX+1}], exec
        s_mov_b64 exec, 0xffff""")
        a.vmop(f"buffer_load_dword v{junk}, v3, s[{SC}:{SC+3}], s{sT0} offen", "pf")
    a(f"s_mov_b64 exec, s[{sEX}:{sEX+1}]")


def ln_stats(a, src, row_s):
    U = vACC2
    for i in range(4):
        a(f"v_lshlrev_b32 v{U+2*i}, 16, v{src+i}\nv_and_b32 v{U+2*i+1}, 0xffff0000, v{src+i}")
    a(f"""v_add_f32 v{vT}, v{U}, v{U+1}
    v_add_f32 v{vT+1}, v{U+2}, v{U+3}
    v_add_f32 v{vT+2}, v{U+4}, v{U+5}
    v_add_f32 v{vT+4}, v{U+6}, v{U+7}
    v_add_f32 v{vT}, v{vT}, v{vT+1}
    v_add_f32 v{vT+2}, v{vT+2}, v{vT+4}
    v_add_f32 v{vT}, v{vT}, v{vT+2}""")
    wave_sum(a, vT, sT4)
    a(f"""s_nop 1
    v_mov_b32 v{vT+1}, s{sT4}
    v_mul_f32 v{vT+1}, {f2u(1.0/512)}, v{vT+1}
    v_mov_b32 v{vT}, 0""")
    for i in range(8):
        a(f"v_sub_f32 v{vT+2}, v{U+i}, v{vT+1}\nv_fmac_f32 v{vT}, v{vT+2}, v{vT+2}")
    wave_sum(a, vT, sT4)
    a(f"""s_nop 1
    v_mov_b32 v{vT+2}, s{sT4}
    v_mul_f32 v{vT+2}, {f2u(1.0/512)}, v{vT+2}""")
    rne_bf16(a, vT + 1)
    rne_bf16(a, vT + 2)
    a(f"v_add_f32 v{vT+2}, {f2u(1e-5)}, v{vT+2}")
    rne_bf16(a, vT + 2)
    a(f"v_sqrt_f32 v{vT+2}, v{vT+2}\ns_nop 0")
    rne_bf16(a, vT + 2)
    a(f"""v_mov_b32 v{U}, v{vT+1}
    v_mov_b32 v{U+1}, s{sTAG}
    v_mov_b32 v{U+2}, v{vT+2}
    v_mov_b32 v{U+3}, s{sTAG}
    s_lshl_b32 s{sT4}, s{row_s}, 4
    s_add_u32 s{sT4}, s{sT4}, {WS_STAT}
    v_mov_b32 v{vT}, 0
    s_mov_b64 s[{sEX}:{sEX+1}], exec
    s_mov_b64 exec, 1""")
    a.vmop(f"buffer_store_dwordx4 v[{U}:{U+3}], v{vT}, s[{SWS}:{SWS+3}], s{sT4} offen sc1", "stat")
    a(f"s_mov_b64 exec, s[{sEX}:{sEX+1}]")


def stream(a, ch):
    a(f"s_waitcnt lgkmcnt(0)\ns_add_u32 s{sTAG}, s{sTAG}, 1")
    if ch == 0:
        a.vm = ["st0"] * 4 + ["lnrow", "lnrow"] + [f"st{g}" for g in range(1, NPRE) for _ in range(4)] + ["par"] * 3
        a(f"""v_and_b32 v3, 31, v{vLANE}
        v_bfe_u32 v{vT}, v3, 1, 3
        v_lshrrev_b32 v{vT+1}, 5, v{vLANE}
        v_xor_b32 v{vT}, v{vT}, v{vT+1}
        v_lshlrev_b32 v3, 7, v3
        v_lshl_add_u32 v3, v{vT}, 4, v3
        v_add_u32 v{vWS}, 16384, v3
        v_xor_b32 v{vWS+1}, 32, v{vWS}
        v_xor_b32 v{vWS+2}, 64, v{vWS}
        v_xor_b32 v{vWS+3}, 96, v{vWS}""")
        waddr0 = [vWS + i for i in range(4)]
        a.vmwait("lnrow")
        pstamp(a, 4)
        a(f"""s_lshl_b32 s{sT2}, s2, 3
        s_lshl_b32 s{sT3}, s{sRG}, 1
        s_add_u32 s{sT5}, s{sT2}, s{sT3}""")
        ln_stats(a, vACC, sT5)
        a(f"s_add_u32 s{sT5}, s{sT5}, 1")
        ln_stats(a, vACC + 4, sT5)
    else:
        a.vm = [f"st{g}" for g in range(NPRE) for _ in range(4)] + ["par"] * 3
        a(f"v_add_u32 v{vWM}, 24576, v{vTRL}")
        waddr0 = [vWM]
    if W2_AT == 0 and ch == 0:
        for wch in (0, 2, 1):
            w2_touch(a, wch)
    stamp(a, 0)
    if PSTAMP:
        a(f"s_lshl_b32 s{sT0}, s2, 3\ns_add_u32 s{sT0}, s{sT0}, s{sW}\ns_lshl_b32 s{sT0}, s{sT0}, 6\ns_add_u32 s{sT0}, s{sT0}, {WS_DBG + 0x40000}")
        a("v_mov_b32 v3, 0")
        for i in range(5):
            a(f"buffer_store_dword v{232+i}, v3, s[{SWS}:{SWS+3}], s{sT0} offen offset:{4*i}")
        a.vm += ["x"] * 5
    a(f"""s_lshr_b32 s{sCSM}, s{sRB}, 3
    s_add_u32 s{sCSM}, s{sCSM}, 1
    s_cmp_eq_u32 s{sRG}, 0
    s_cselect_b32 s{sCSM}, s{sCSM}, 0""")
    for i in range(4):
        a(f"v_mov_b32 v{ONES+i}, 0x3f803f80")
    for i in range(64):
        a(f"v_mov_b32 v{vACC+i}, 0")
    xaddr = [vXA + i for i in range(4)]

    slots = []
    for g in range(8):
        for j in range(4):
            for t in range(2):
                slots.append((g, 0, j, t))
    for g in range(8, 12):
        for c2 in range(2):
            for j in range(4):
                for t in range(2):
                    slots.append((g, c2, j, t))
    NS = len(slots)
    first_of = {}
    last_of = {}
    for n, (g, c2, j, t) in enumerate(slots):
        first_of.setdefault(g, n)
        last_of[g] = n
    hi_state = {"x": 0, "w0": 0, "w1": 0}

    def set_hi(key, regs, g):
        hi = ((g % NSLOT) * SLOT) >> 16
        if hi_state[key] != hi:
            for r in regs:
                a(f"v_xor_b32 v{r}, 0x10000, v{r}")
            hi_state[key] = hi

    def frag_reg(n):
        return vFR + 4 * (n % 4)

    def issue_reads(n):
        g, c2, j, t = slots[n]
        lo = ((g % NSLOT) * SLOT) & 0xffff
        f = frag_reg(n)
        tag = f"w{n}"
        if g < 8:
            if j == 0 and t == 0:
                set_hi("x", xaddr, g)
                set_hi("w0", waddr0, g)
                for jj in range(4):
                    r = vXF + 4 * (4 * g + jj)
                    a.ldsop(f"ds_read_b128 v[{r}:{r+3}], v{vXA+jj} offset:{lo}", f"x{g}_{jj}")
            if ch == 0:
                a.ldsop(f"ds_read_b128 v[{f}:{f+3}], v{vWS+j} offset:{lo + t*4096}", tag)
            else:
                o = lo + t * 4096 + j * 1024
                a.ldsop(f"ds_read_b64_tr_b16 v[{f}:{f+1}], v{vWM} offset:{o}", tag)
                a.ldsop(f"ds_read_b64_tr_b16 v[{f+2}:{f+3}], v{vWM} offset:{o+256}", tag)
        else:
            if c2 == 0 and j == 0 and t == 0:
                set_hi("w1", [vW1], g)
            o = lo + c2 * 16384 + t * 4096 + j * 1024
            a.ldsop(f"ds_read_b64_tr_b16 v[{f}:{f+1}], v{vW1} offset:{o}", tag)
            a.ldsop(f"ds_read_b64_tr_b16 v[{f+2}:{f+3}], v{vW1} offset:{o+256}", tag)

    def mfma(n):
        g, c2, j, t = slots[n]
        f = frag_reg(n)
        if g < 8:
            xf = vXF + 4 * (4 * g + j)
            acc = vACC + 16 * t
            a.lgwait(f"x{g}_{j}")
        else:
            xf = vXF + 4 * (4 * (2 * (g - 8) + c2) + j)
            acc = vACC2 + 16 * t
        a.lgwait(f"w{n}")
        if ch == 0 and g < 8:
            a(f"v_mfma_f32_32x32x16_bf16 v[{acc}:{acc+15}], v[{xf}:{xf+3}], v[{f}:{f+3}], v[{acc}:{acc+15}]")
        else:
            a(f"v_mfma_f32_32x32x16_bf16 v[{acc}:{acc+15}], v[{f}:{f+3}], v[{xf}:{xf+3}], v[{acc}:{acc+15}]")

    def colsum_at(n):
        g, c2, j, t = slots[n]
        if (g == 0) or (g == 8 and c2 == 1):
            acc = CSACC if g == 0 else CS1ACC
            lab = a.newlab("CSK")
            f = frag_reg(n)
            c = "0" if j == 0 else f"v[{acc}:{acc+15}]"
            a(f"""s_cmp_eq_u32 s{sCSM}, {t+1}
            s_cbranch_scc0 {lab}
            v_mfma_f32_32x32x16_bf16 v[{acc}:{acc+15}], v[{ONES}:{ONES+3}], v[{f}:{f+3}], {c}""")
            a.label(lab)

    dmaq = []

    def stage_barrier(g):
        if ch == 0 and g == 7:
            gather_finish(a, 0, GATH0, a.nvm - marks["g0"], 3)
            for i in range(16):
                a(f"v_mov_b32 v{GATH0+i}, 0")
        if g == 10 and ch == 1:
            a.vmwait("u0")
            write_flag(a, 0, ch)
        a.vmwait(f"st{g+1}")
        a("s_barrier")
        if ch == 0 and g in (8, 9) and marks.get("edone") and not marks.get("published"):
            a.fill_all(); s_publish(a); a.lg = []
            marks["published"] = True
        nxt = g + 3
        if E("X_NODMA", 0):
            pass
        elif nxt < 8:
            dmaq.extend(dma_p0(nxt, ch))
        elif nxt < 12:
            dmaq.extend(dma_p1(nxt - 8, ch))
        if g == 9:
            dmaq.extend(p2_B(0)); dmaq.extend(p2_B(1))
        if g == 10:
            dmaq.extend(p2_B(2)); dmaq.extend(p2_B(3))

    marks = {}
    if (PRIO == 2 and ch == 1) or (PRIO == 3 and ch == 0):
        a("s_setprio 1")
    a.vmwait("st0")
    a("s_barrier")
    stamp(a, 1)
    for s_ in range(NPRE, 3):
        dmaq.extend(dma_p0(s_, ch))
    for n in range(LOOK):
        issue_reads(n)
    for n in range(NS):
        g, c2, j, t = slots[n]
        mfma(n)
        colsum_at(n)
        nn = n + LOOK
        if nn < NS:
            if slots[nn][0] != slots[nn - 1][0]:
                stage_barrier(slots[nn - 1][0])
            issue_reads(nn)
        every = (PACE0 if g < 8 else PACE1)
        npop = 2 if len(dmaq) > 4 else (1 if (n % every == 0) else 0)
        for _ in range(DMA_RATE if DMA_RATE else npop):
            if dmaq:
                code, tag = dmaq.pop(0)
                a.vmop(code, tag)
        if g >= 8:
            a.fill(FILL0 if ch == 0 else FILL)
        elif g >= 3:
            a.fill(3)
        if W2_AT == 4 and g >= W2_G0 and (n - first_of[g]) in (W2_P1, W2_P2):
            k = 2 * (g - W2_G0) + (0 if (n - first_of[g]) == W2_P1 else 1)
            if ch == 1 and k < 8:
                w2_touch16(a, k, vDS)
            if ch == 0 and k in (1, 3):
                w2_touch16(a, 6 + (k // 2), vDX0)
        if n == last_of[g]:
            if P1DBG == 4 and g < 9:
                a(f"s_memtime s[{STAMP0+2*(5+g)}:{STAMP0+2*(5+g)+1}]")
            if P1DBG == 5 and g >= 7:
                a(f"s_memtime s[{STAMP0+2*(g-2)}:{STAMP0+2*(g-2)+1}]")
            if P1DBG == 1 and g in (8, 9, 10):
                stamp(a, {8: 9, 9: 13, 10: 6}[g], force=True)
            if P1DBG == 2 and g in (1, 3, 5):
                stamp(a, {1: 9, 3: 13, 5: 6}[g], force=True)
            if g == 0:
                colsum_store(a, CSACC, ch)
                a("s_nop 7")
                for i in range(16):
                    a(f"v_mov_b32 v{CSACC+i}, 0")
            if W2_AT == 1 and ch == 0 and g in (3, 4, 8):
                w2_touch(a, {3: 0, 4: 2, 8: 1}[g])
            if W2_AT == 3 and ch == 1 and W2_G0 <= g < W2_G0 + 8:
                w2_touch16(a, g - W2_G0, vDS)
            if W2_AT == 3 and ch == 0 and g in (W2_G0 + 1, W2_G0 + 3):
                w2_touch16(a, 6 + (g - W2_G0) // 2, vDX0)
            if W2_AT == 2 and ch == 1 and g == 9:
                for wch in (0, 2, 1):
                    w2_touch(a, wch, junk=vDS)
            if g == 2 and ch == 0:
                a.vmwait("par")
                q = Q()
                s_params(q)
                a.fillq = q.q
            if g == 5 and ch == 0:
                gather_loads(a, 0, GATH0, 3, tracked=True)
                marks["g0"] = a.nvm
            if g == 7:
                a.fill_all()
                stamp(a, 2)
                if PRIO == 1 and ch == 0:
                    a("s_setprio 1")
                q = Q()
                if ch == 1:
                    q(f"""s_lshl_b32 s{sT5}, s{sCG}, 11
                    s_add_u32 s{sT5}, s{sT5}, s{sHPOS}""")
                    row_stats_M(q, vT)
                    gelu_epi(q, vACC, sT5, 64 * 4, "u0", 4, vT)
                else:
                    s_epilogue1(q)
                    q.q.append(("call", lambda: marks.__setitem__("edone", True)))
                a.fillq = q.q
            if g == 8:
                colsum_store(a, CS1ACC, 2 + ch, koff=1)
            if g == 9:
                a.fill_all()
                stamp(a, 3)
            if g == 10 and ch == 0:
                lookback_loads(a)
                a(f"""s_lshl_b32 s{sT5}, s{sCG}, 12
                s_add_u32 s{sMU}, s{sHPOS}, s{sT5}
                s_add_u32 s{sMU}, s{sMU}, {86*1024}""")
            if g == 10 and ch == 0 and not marks.get("published"):
                s_publish(a); a.lg = []
            if g == 10 and ch == 1:
                gather_loads(a, 1, GATH1, 3, tracked=True)
                marks["g1"] = a.nvm
    stamp(a, 4)
    while dmaq:
        code, tag = dmaq.pop(0)
        a.vmop(code, tag)
    a.fill_all()
    if ch == 0:
        q = Q()
        s_work_atoms(a, q)
        a.fillq = q.q
        a.fill_all()
        stamp(a, 6)
    else:
        gather_finish(a, 1, GATH1, a.nvm - marks["g1"], 3)
        poll_flags(a, 0, tracked=True)
        for st in range(4):
            for code, tag in p2_A(st):
                a.vmop(code, tag)
    a("s_barrier")
    stamp(a, 5)
    if ch == 0:
        for st in range(4):
            for code, tag in p2_A(st):
                a.vmop(code, tag)
    if ch == 1:
        lab = a.newlab("U2S")
        stamp(a, 6)
        a(f"""s_cmp_ge_u32 s{sCG}, 11
        s_cbranch_scc1 {lab}
        s_lshl_b32 s{sT5}, s{sCG}, 11
        s_add_u32 s{sT5}, s{sT5}, s{sHPOS}
        s_add_u32 s{sT5}, s{sT5}, {64*1024}""")
        gelu_epi(a, vACC2, sT5, 192 * 4, "u12", 48, vT, maybe=True)
        a.label(lab)
        a.lg = []
        marks["u12"] = a.nvm
        for st in range(4, 8):
            for code, tag in p2_B(st):
                a.vmop(code, tag)
        a(f"s_waitcnt vmcnt({a.nvm - marks['u12']})")
        write_flag(a, 1, 1)
        stamp(a, 8)
    else:
        a(f"""s_lshl_b32 s{sT5}, s{sCG}, 11
        s_add_u32 s{sT5}, s{sT5}, s{sHPOS}
        s_add_u32 s{sT5}, s{sT5}, {32*1024}""")
        a(f"""s_lshl_b32 s{sT5}, s{sCG}, 11
        s_add_u32 s{sT5}, s{sT5}, s{sHPOS}
        s_add_u32 s{sT5}, s{sT5}, {32*1024}""")
        gelu_epi(a, vACC2, sT5, 128 * 4, "u12", 48, vT)
        for st in range(4, 8):
            for code, tag in p2_B(st):
                a.vmop(code, tag)
        a.vmwait("h")
        write_flag(a, 2, 0)
        stamp(a, 8)
    a.marks = marks
    phase2(a, ch)


def phase2(a, ch):
    rt = ch
    vB0, vB1, vC0, vC1, vXO, vSO, vDO = 4, 5, 6, 7, 9, 11, 12
    vDK = 8
    vBF = 176
    vAC = 208
    vEX = 96
    a(f"""v_lshrrev_b32 v{vT}, 5, v{vLANE}
    v_lshlrev_b32 v{vT}, 2, v{vT}
    v_bfe_u32 v3, v{vLANE}, 2, 2
    v_add_u32 v{vT}, v{vT}, v3
    v_lshlrev_b32 v{vT}, 7, v{vT}
    v_bfe_u32 v3, v{vLANE}, 3, 1
    v_lshl_add_u32 v{vT}, v3, 6, v{vT}
    v_bfe_u32 v3, v{vLANE}, 4, 1
    v_lshl_add_u32 v{vT}, v3, 5, v{vT}
    v_and_b32 v3, 3, v{vLANE}
    v_lshl_add_u32 v{vT}, v3, 3, v{vT}
    s_lshl_b32 s{sT0}, s{sRG}, 12
    v_add_u32 v{vB0}, s{sT0}, v{vT}
    v_xor_b32 v{vB1}, 64, v{vB0}
    v_and_b32 v{vT}, 31, v{vLANE}
    v_bfe_u32 v3, v{vT}, 1, 3
    v_lshrrev_b32 v{vT+1}, 5, v{vLANE}
    s_lshr_b32 s{sT0}, s{sRG}, 1
    s_lshl_b32 s{sT0}, s{sT0}, 2
    v_add_u32 v{vT+1}, s{sT0}, v{vT+1}
    v_xor_b32 v3, v3, v{vT+1}
    v_lshlrev_b32 v{vT}, 7, v{vT}
    v_lshl_add_u32 v{vT}, v3, 4, v{vT}
    s_and_b32 s{sT0}, s{sRG}, 1
    s_lshl_b32 s{sT0}, s{sT0}, 13
    v_add_u32 v{vC0}, s{sT0}, v{vT}
    v_xor_b32 v{vC1}, 32, v{vC0}
    v_lshrrev_b32 v{vT}, 5, v{vLANE}
    v_lshlrev_b32 v{vT}, 4, v{vT}
    s_lshl_b32 s{sT0}, s{sRB2}, 6
    s_lshl_b32 s{sT1}, s{sRG}, 2
    s_add_u32 s{sT0}, s{sT0}, s{sT1}
    s_add_u32 s{sT0}, s{sT0}, {32*rt}
    v_add_u32 v{vT}, s{sT0}, v{vT}
    v_lshlrev_b32 v{vSO}, 4, v{vT}
    v_lshlrev_b32 v{vT}, 9, v{vT}
    v_and_b32 v3, 31, v{vLANE}
    s_lshl_b32 s{sT0}, s{sCB}, 6
    v_add_u32 v3, s{sT0}, v3
    v_add_u32 v{vT}, v{vT}, v3
    v_lshlrev_b32 v{vXO}, 1, v{vT}
    v_lshlrev_b32 v{vDO}, 1, v3""")

    def epi_loads():
        a.vmop(f"buffer_load_ushort v{vDK}, v{vDO}, s[{ST}:{ST+3}], 0 offen", "epi")
        a.vmop(f"buffer_load_ushort v{vDK+2}, v{vDO}, s[{ST}:{ST+3}], 0 offen offset:64", "epi")
        for ct in range(2):
            for i in range(4):
                a.vmop(f"buffer_load_ushort v{vEX+4*ct+i}, v{vXO}, s[{SX}:{SX+3}], 0 offen offset:{i*1024 + ct*64}", "epi")
        a(f"s_mov_b32 s{sT0}, {WS_STAT}")
        for i in range(4):
            a.vmop(f"buffer_load_dword v{vEX+8+i}, v{vSO}, s[{SWS}:{SWS+3}], s{sT0} offen offset:{i*16} sc1", "epi")
            a.vmop(f"buffer_load_dword v{vEX+12+i}, v{vSO}, s[{SWS}:{SWS+3}], s{sT0} offen offset:{i*16+8} sc1", "epi")
    for i in range(32):
        a(f"v_mov_b32 v{vAC+i}, 0")
    hi2 = {"v": 0}

    def p2_reads(st, n):
        slot = (st % 8) * 16384
        hi, lo = slot >> 16, slot & 0xffff
        if n == 0 and hi != hi2["v"]:
            for r in (vB0, vB1, vC0, vC1):
                a(f"v_xor_b32 v{r}, 0x10000, v{r}")
            hi2["v"] = hi
        s_, ct = n >> 1, n & 1
        f = vBF + 16 * (st % 2) + 4 * n
        tag = f"r{st}_{n}"
        if ORDER[st][0] == "M":
            vb = vB0 if ct == 0 else vB1
            a.ldsop(f"ds_read_b64_tr_b16 v[{f}:{f+1}], v{vb} offset:{lo + s_*2048}", tag)
            a.ldsop(f"ds_read_b64_tr_b16 v[{f+2}:{f+3}], v{vb} offset:{lo + s_*2048 + 1024}", tag)
        else:
            a.ldsop(f"ds_read_b128 v[{f}:{f+3}], v{vC0+s_} offset:{lo + ct*4096}", tag)

    def p2_barrier(st):
        a.vmwait(f"B{st}")
        a("s_barrier")

    p2_barrier(0)
    stamp(a, 7)
    for n in range(4):
        p2_reads(0, n)
    dq = []
    a_next = 4
    allowed = 3
    for st in range(NST2):
        if st == 4:
            stamp(a, 9)
        if st == 11:
            stamp(a, 13)
        if st + 1 < NST2:
            if ch == 0:
                if st + 1 == H_ST:
                    a.vmwait("u12")
                    write_flag(a, 1, 0)
                if st + 1 == E2_ST:
                    poll_flags(a, 2, tracked=True)
                if st + 1 == E1_ST:
                    poll_flags(a, 1, tracked=True)
            p2_barrier(st + 1)
            if st + 1 == E2_ST:
                allowed = 11
            if st + 1 == E1_ST:
                allowed = NST2 - 1
            while a_next <= min(allowed, st + NA - 1, NST2 - 1):
                dq.extend(p2_A(a_next)); a_next += 1
            if st >= 1 and st + 7 < NST2:
                dq.extend(p2_B(st + 7))
        g = sum(1 for x in dq if x[1] == f"A{st}")
        while any(x[1] == f"A{st}" for x in dq):
            code, tag = dq.pop(0); a.vmop(code, tag)
        a.vmwait(f"A{st}")
        per = (len(dq) + 3) // 4
        for n in range(4):
            s_, ct = n >> 1, n & 1
            f = vBF + 16 * (st % 2) + 4 * n
            ar = ARING[st % NA] + 4 * s_
            ac = vAC + 16 * ct
            a.lgwait(f"r{st}_{n}")
            a(f"v_mfma_f32_32x32x16_bf16 v[{ac}:{ac+15}], v[{ar}:{ar+3}], v[{f}:{f+3}], v[{ac}:{ac+15}]")
            if st + 1 < NST2:
                p2_reads(st + 1, n)
            for _ in range(per):
                if dq:
                    code, tag = dq.pop(0)
                    a.vmop(code, tag)
        if st == 3:
            epi_loads()
    stamp(a, 10)
    a(f"""s_nop 15
    s_barrier
    s_lshl_b32 s{sT0}, s{sRG}, 11
    v_lshlrev_b32 v{vT}, 4, v{vLANE}
    v_add_u32 v{vT+1}, s{sT0}, v{vT}
    v_add_u32 v{vT+1}, {rt*32768}, v{vT+1}""")
    for q in range(4):
        for ct in range(2):
            r = vAC + 16 * ct + 4 * q
            a(f"ds_write_b128 v{vT+1}, v[{r}:{r+3}] offset:{q*8192 + ct*1024}")
    a(f"""s_lshl_b32 s{sT0}, s{sRG}, 13
    v_add_u32 v{vT+1}, s{sT0}, v{vT}
    v_add_u32 v{vT+1}, {rt*32768}, v{vT+1}
    s_waitcnt lgkmcnt(0)
    s_barrier""")
    R = vAR
    for src in range(4):
        for ct in range(2):
            r = R + 8 * src + 4 * ct
            a(f"ds_read_b128 v[{r}:{r+3}], v{vT+1} offset:{src*2048 + ct*1024}")
    a("s_waitcnt vmcnt(0)")
    a.vm = []
    D0, D1 = vDK, vDK + 2
    X = vEX; M_ = vEX + 8; S_ = vEX + 12; Y = vEX + 16
    a(f"v_lshlrev_b32 v{D0}, 16, v{D0}\nv_lshlrev_b32 v{D1}, 16, v{D1}\nv_lshlrev_b32 v{vT}, 1, v{vXO}")
    for i in range(4):
        a(f"v_rcp_f32 v{S_+i}, v{S_+i}")
    for k in range(8):
        a(f"v_lshlrev_b32 v{X+k}, 16, v{X+k}")
    for k in range(8):
        a(f"v_sub_f32 v{Y+k}, v{X+k}, v{M_+(k&3)}")

    def rnd():
        for k in range(0, 8, 2):
            a(f"v_cvt_pk_bf16_f32 v{vT+1}, v{Y+k}, v{Y+k+1}")
            a(f"v_lshlrev_b32 v{Y+k}, 16, v{vT+1}\nv_and_b32 v{Y+k+1}, 0xffff0000, v{vT+1}")
    rnd()
    for k in range(8):
        a(f"v_mul_f32 v{Y+k}, v{Y+k}, v{S_+(k&3)}")
    rnd()
    for k in range(8):
        a(f"v_mul_f32 v{Y+k}, v{Y+k}, v{D0 if k < 4 else D1}")
    rnd()
    for k in range(8):
        a(f"v_add_f32 v{Y+k}, v{Y+k}, v{X+k}")
    a("s_waitcnt lgkmcnt(0)")
    for k in range(8):
        a(f"v_add_f32 v{R+k}, v{R+k}, v{R+8+k}")
        a(f"v_add_f32 v{R+16+k}, v{R+16+k}, v{R+24+k}")
    for k in range(8):
        a(f"v_add_f32 v{R+k}, v{R+k}, v{R+16+k}")
    for k in range(8):
        a(f"v_add_f32 v{R+k}, v{R+k}, v{Y+k}")
    for ct in range(2):
        for i in range(4):
            ro = i * 2048 + ct * 128
            so, io = (ro // 4096) * 4096, ro % 4096
            a(f"s_mov_b32 s{sT0}, {so}")
            a(f"buffer_store_dword v{R+4*ct+i}, v{vT}, s[{SO}:{SO+3}], s{sT0} offen offset:{io} {OUTF}")
    if ch == 0:
        lab = a.newlab("EP")
        a(f"""s_cmp_eq_u32 s{sRB2}, 31
        s_cbranch_scc0 {lab}
        s_cmp_eq_u32 s{sCB}, 0
        s_cbranch_scc0 {lab}
        s_cmp_eq_u32 s{sW}, 0
        s_cbranch_scc0 {lab}
        v_mov_b32 v4, s{sTAG}
        v_mov_b32 v3, 0
        s_mov_b32 s{sT0}, {WS_EPOCH}
        s_mov_b64 exec, 1
        buffer_store_dword v4, v3, s[{SWS}:{SWS+3}], s{sT0} offen sc1
        s_mov_b64 exec, -1""")
        a.label(lab)
    stamp(a, 11)
    if STAMPS:
        a("s_waitcnt vmcnt(0)")
        stamp(a, 12)
    stamp_flush(a, 14)
    a("s_endpgm")


if __name__ == "__main__":
    main(sys.argv[1] if len(sys.argv) > 1 else "cdna_kernels/" + NAME + ".s")
```

```python
import sys, math, struct, os

NAME = "parallel_sum__ssm_conv_s5__glu_gated_geglu__prompt"
KNAME = NAME + "_kernel"

E = lambda k, d: int(os.environ.get(k, str(d)))
STAMPS = E("STAMPS", 0)
SPIN_MAX = E("SPIN_MAX", 200000)
CODE_PREFETCH = E("CODE_PREFETCH", 1)
W2_PREFETCH = E("W2_PREFETCH", 1)
FILL = E("FILL", 7)
FILL0 = E("FILL0", 14)
SW_DELAY = E("SW_DELAY", 8)
NPRE = E("NPRE", 2)
SKIP_ST = E("SKIP_ST", 6)
OUTF = os.environ.get("OUTF", "sc0 sc1")
V17 = E("V17", 1)
DMA_RATE = E("DMA_RATE", 0)
PACE0 = E("PACE0", 2)
PACE1 = E("PACE1", 3)
PRIO = E("PRIO", 0)
W2_AT = E("W2_AT", 4)
W2_G0 = E("W2_G0", 8)
W2_P1 = E("W2_P1", 2)
W2_P2 = E("W2_P2", 9)
LOOK = E("LOOK", 3)
A_TOUCH = E("A_TOUCH", 0)
E2_ST = E("E2_ST", 3)
E1_ST = E("E1_ST", 8)
H_ST = E("H_ST", 2)
X_NOMFMA = E("X_NOMFMA", 0)
X_NOREAD = E("X_NOREAD", 0)

NKS = 150
RT_STRIDE = NKS * 1024
WS_AGG = 0xA00000
WS_STAT = 0xA40000
WS_CS = 0xA80000
WS_FLG = 0xB00000
WS_EPOCH = 0xB10000
WS_DUMMY = 0xB20000
WS_DBG = 0xF00000
WS_SIZE = 0x10000000

LOG2E = 1.4426950408889634
SLOT = 32768
NSLOT = 4
SCR = NSLOT * SLOT
SCR_T = SCR
SCR_CS = 16384
SCR_ST = 17408
SCR_ES = 18432
SCR_RV = 20480
LDS_BYTES = 163840
NST2 = 19
NBS, NAS = 3, 5
B_BASE, A_BASE = 0, 49152


def f2u(x):
    return struct.unpack("<I", struct.pack("<f", x))[0]


class A:
    def __init__(self):
        self.l = []
        self.nlab = 0
        self.vm = []
        self.nvm = 0
        self.lg = []
        self.fillq = []

    def __call__(self, s):
        for line in s.strip("\n").split("\n"):
            line = line.strip()
            if not line:
                continue
            if X_NOMFMA and line.startswith("v_mfma"):
                continue
            self.l.append("  " + line)

    def label(self, name):
        self.l.append(name + ":")

    def newlab(self, p="L"):
        self.nlab += 1
        return f"{p}_{self.nlab}"

    def vmop(self, s, tag, maybe=False):
        self(s)
        if not maybe:
            self.vm.append(tag)
            self.nvm += 1

    def vmwait(self, tag):
        idx = [i for i, t in enumerate(self.vm) if t == tag]
        if not idx:
            return
        n = len(self.vm) - 1 - idx[-1]
        assert n <= 63, n
        self(f"s_waitcnt vmcnt({n})")
        self.vm = self.vm[idx[-1] + 1:]

    def vmwait_all(self):
        self("s_waitcnt vmcnt(0)")
        self.vm = []

    def ldsop(self, s, tag):
        if X_NOREAD and tag[0] in "xwr":
            return
        self(s)
        self.lg.append(tag)
        assert len(self.lg) <= 30

    def lgwait(self, tag):
        idx = [i for i, t in enumerate(self.lg) if t == tag]
        if not idx:
            return
        n = len(self.lg) - 1 - idx[-1]
        n = min(n, 15)
        self(f"s_waitcnt lgkmcnt({n})")
        self.lg = self.lg[len(self.lg) - n:] if n else []

    def lgwait_all(self):
        self("s_waitcnt lgkmcnt(0)")
        self.lg = []

    def fill(self, n):
        if E("X_NOFILL", 0):
            self.fillq = [at for at in self.fillq if at[0] in ("vm",) or (at[0] == "call" and False)]
        while n > 0 and self.fillq:
            at = self.fillq.pop(0)
            k = at[0]
            if k == "v":
                self(at[1]); n -= 1
            elif k == "lds":
                self.ldsop(at[1], at[2]); n -= 1
            elif k == "lgw":
                self.lgwait(at[1])
            elif k == "vm":
                self.vmop(at[1], at[2], at[3]); n -= 1
            elif k == "call":
                at[1]()
            elif k == "calln":
                at[1](); n -= at[2]

    def fill_all(self):
        self.fill(10 ** 9)

    def text(self):
        return "\n".join(self.l) + "\n"


class Q:
    def __init__(self):
        self.q = []

    def __call__(self, s):
        for line in s.strip("\n").split("\n"):
            line = line.strip()
            if line:
                self.q.append(("v", line))

    def ldsop(self, s, tag):
        self.q.append(("lds", s, tag))

    def lgwait(self, tag):
        self.q.append(("lgw", tag))

    def vmop(self, s, tag, maybe=False):
        self.q.append(("vm", s, tag, maybe))


def srd(a, s, ptr_lo, nbytes):
    a(f"""s_mov_b32 s{s}, s{ptr_lo}
    s_and_b32 s{s+1}, s{ptr_lo+1}, 0xffff
    s_mov_b32 s{s+2}, {nbytes}
    s_mov_b32 s{s+3}, 0x20000""")


def rne_bf16(a, v):
    a(f"v_cvt_pk_bf16_f32 v{v}, v{v}, v{v}\nv_lshlrev_b32 v{v}, 16, v{v}")


def wave_sum(a, v, tmp_s):
    for ctrl in ("row_shr:1", "row_shr:2", "row_shr:4", "row_shr:8"):
        a(f"s_nop 1\nv_add_f32_dpp v{v}, v{v}, v{v} {ctrl} row_mask:0xf bank_mask:0xf")
    a(f"s_nop 1\nv_add_f32_dpp v{v}, v{v}, v{v} row_bcast:15 row_mask:0xa bank_mask:0xf")
    a(f"s_nop 1\nv_add_f32_dpp v{v}, v{v}, v{v} row_bcast:31 row_mask:0xc bank_mask:0xf")
    a(f"s_nop 1\nv_readlane_b32 s{tmp_s}, v{v}, 63")


SX, SS, SM, SWS, SWD, SC, SO, ST = 4, 8, 12, 16, 20, 24, 28, 32
sW, sRG, sRB, sCG = 36, 37, 38, 39
sKC0, sU0B, sDUM, sTAG = 72, 73, 74, 75
sT0, sT1, sT2, sT3, sT4, sT5 = 76, 77, 78, 79, 80, 81
sMX, sMS, sMU, sM1 = 82, 83, 84, 85
sCSM = 86
sRB2, sCB, sRT, sCT = 87, 88, 89, 90
sSPIN = 91
sEX = 92
sMASK = 94
sAOFF, sLW, s3RG, s2RG = 96, 97, 98, 99
sXB, sHPOS = 100, 101
SM2 = 68
STAMP0 = 40
P_X, P_LRE, P_LIM, P_BRE, P_BIM, P_CRE, P_CIM, P_LDT = 40, 42, 44, 46, 48, 50, 52, 54
P_DSK, P_BX, P_WG, P_WU, P_WD, P_OUT, P_DBG, P_WS = 56, 58, 60, 62, 64, 66, 68, 70

vLANE = 1
vXA = 4
vWS = 8
vWM = 8
vW1 = 12
vDX0, vDX1, vDS, vDM = 13, 14, 15, 16
vDS1 = 47
vT = 17
ONES = 28
vAr, vAi, vKr, vKi, vA16r, vA16i, vA128r, vA128i = 32, 33, 34, 35, 36, 37, 38, 39
vRINV, vNM = 40, 41
vDA, vDB, vDC0, vDC1 = 42, 43, 44, 45
vK1, vCA = 46, 47
vFR = 48
vACC = 64
vACC2 = 96
vXF = 128
CSACC = 96
GATH0 = 112
CS1ACC = 128
GATH1 = 144
JUNK = 255


PSTAMP = E("PSTAMP", 0)


def pstamp(a, i):
    if PSTAMP:
        a(f"s_memrealtime s[{sEX}:{sEX+1}]\ns_waitcnt lgkmcnt(0)\nv_mov_b32 v{232+i}, s{sEX}")


DBGD = E("DBGD", -1)


P1DBG = E("P1DBG", 0)


def stamp(a, i, force=False):
    if STAMPS and P1DBG in (4, 5) and i >= 4:
        if i == 4 and False:
            pass
        return
    if STAMPS and P1DBG in (4, 5) and i == 1:
        a(f"s_memtime s[{STAMP0+2*4}:{STAMP0+2*4+1}]")
    if STAMPS and P1DBG == 3 and i in (1, 2, 4):
        j = {1: 9, 2: 13, 4: 6}[i]
        a(f"s_memtime s[{STAMP0+2*j}:{STAMP0+2*j+1}]")
    if STAMPS:
        if i == 3:
            return
        if P1DBG and i in (6, 9, 13) and not force:
            return
        a(f"s_memrealtime s[{STAMP0+2*i}:{STAMP0+2*i+1}]")
        if i == 0:
            a(f"s_mov_b32 s{STAMP0+6}, s{sMASK}\ns_mov_b32 s{STAMP0+7}, s{sMASK+1}")


def stamp_flush(a, n):
    if not STAMPS:
        return
    a("s_waitcnt lgkmcnt(0)")
    a(f"s_lshl_b32 s{sT0}, s2, 3\ns_add_u32 s{sT0}, s{sT0}, s{sW}\ns_lshl_b32 s{sT0}, s{sT0}, 6\ns_add_u32 s{sT0}, s{sT0}, {WS_DBG}")
    a("v_mov_b32 v3, 0")
    for i in range(n):
        a(f"v_mov_b32 v2, s{STAMP0+2*i}")
        a(f"buffer_store_dword v2, v3, s[{SWS}:{SWS+3}], s{sT0} offen offset:{4*i}")
    if DBGD >= 0:
        lab = a.newlab("DD")
        a(f"""s_cmp_eq_u32 s2, {DBGD}
        s_cbranch_scc0 {lab}
        s_cmp_eq_u32 s{sW}, {E("DBGW", 0)}
        s_cbranch_scc0 {lab}
        s_load_dwordx2 s[{sT2}:{sT3}], s[0:1], 112
        s_waitcnt lgkmcnt(0)
        s_mov_b32 s{ST}, s{sT2}
        s_and_b32 s{ST+1}, s{sT3}, 0xffff
        s_mov_b32 s{ST+2}, 256
        s_mov_b32 s{ST+3}, 0x20000
        v_mov_b32 v3, 0""")
        for i in range(n):
            a(f"v_mov_b32 v2, s{STAMP0+2*i}")
            a(f"buffer_store_dword v2, v3, s[{ST}:{ST+3}], 0 offen offset:{4*i}")
        a.label(lab)


def dma_p0(s, ch):
    slot = (s % NSLOT) * SLOT
    it = []
    if ch == 1:
        pre = f"""s_add_u32 s{sT0}, s{sKC0}, {s}
        s_and_b32 s{sT0}, s{sT0}, 7
        s_lshl_b32 s{sT3}, s{sT0}, 7
        s_add_u32 s{sT4}, s{sT3}, 16384
        """
        for i in range(4):
            vd = vDX0 if i % 2 == 0 else vDX1
            so = sT3 if i < 2 else sT4
            it.append(((pre if i == 0 else "") + f"""s_add_u32 m0, s{sLW}, {slot + i*1024}
            s_nop 0
            buffer_load_dwordx4 v{vd}, s[{SX}:{SX+3}], s{so} offen lds""", f"st{s}"))
    else:
        pre = f"""s_add_u32 s{sT0}, s{sKC0}, {s}
        s_and_b32 s{sT0}, s{sT0}, 7
        s_lshl_b32 s{sT3}, s{sT0}, 7
        s_mul_i32 s{sT2}, s{sT0}, {64*2752}
        s_add_u32 s{sT2}, s{sT2}, s{sU0B}
        """
        for i in range(2):
            vd = vDS if i == 0 else vDS1
            it.append(((pre if i == 0 else "") + f"""s_add_u32 m0, s{sMS}, {slot + i*1024}
            s_nop 0
            buffer_load_dwordx4 v{vd}, s[{SS}:{SS+3}], s{sT3} offen lds""", f"st{s}"))
        for mat in range(2):
            sr = SM if mat == 0 else SM2
            it.append((f"""s_add_u32 m0, s{sM1}, {slot + 24576 + mat*4096}
            s_nop 0
            buffer_load_dwordx4 v{vDM}, s[{sr}:{sr+3}], s{sT2} offen lds""", f"st{s}"))
    return it


def dma_p1(t, ch):
    g = 8 + t
    slot = (g % NSLOT) * SLOT
    it = []
    c2 = ch
    pre = f"""s_add_u32 s{sT0}, s{sKC0}, {2*t+c2}
    s_and_b32 s{sT0}, s{sT0}, 7
    s_mul_i32 s{sT2}, s{sT0}, {64*2752}
    s_add_u32 s{sT2}, s{sT2}, s{sU0B}
    s_add_u32 s{sT2}, s{sT2}, 64
    s_add_u32 s{sT3}, s{sT2}, s{sDUM}
    """
    for mat in range(2):
        sr = SM if mat == 0 else SM2
        for j in range(2):
            so = sT2 if j == 0 else sT3
            it.append(((pre if (mat == 0 and j == 0) else "") + f"""s_add_u32 m0, s{sM1}, {slot + c2*16384 + j*8192 + mat*4096}
            s_nop 0
            buffer_load_dwordx4 v{vDM}, s[{sr}:{sr+3}], s{so} offen lds""", f"st{g}"))
    return it


ORDER = [("M", i) for i in range(4)] + [("S", j) for j in range(8)] + [("M", i) for i in range(4, 11)]


NA = E("NA", 10)
vAR = 128
ARING = [128, 136, 144, 152, 160, 168, 64, 72, 80, 88]
vAG = 42


def p2_A(st):
    kind, ix = ORDER[st]
    ks0 = 8 * ix if kind == "M" else 86 + 8 * ix
    r = ARING[st % NA]
    it = []
    if (kind, ix) == ("M", 10):
        first = f"""s_mov_b32 s{sT1}, {ks0*1024}
        s_cmp_eq_u32 s{sRG}, 3
        s_cselect_b32 s{sT1}, {(ks0-2)*1024}, s{sT1}"""
    else:
        first = f"s_mov_b32 s{sT1}, {ks0*1024}"
    it.append((first + f"""
    buffer_load_dwordx4 v[{r}:{r+3}], v{vDA}, s[{SWS}:{SWS+3}], s{sT1} offen sc1""", f"A{st}"))
    it.append((f"""buffer_load_dwordx4 v[{r+4}:{r+7}], v{vDA}, s[{SWS}:{SWS+3}], s{sT1} offen offset:1024 sc1""", f"A{st}"))
    return it


def p2_B(st):
    slot = (st % 8) * 16384
    kind, ix = ORDER[st]
    it = []
    if kind == "M":
        if ix < 3:
            reg, c = s3RG, 3 * 4 * ix
        elif ix == 3:
            reg, c = s2RG, 2 * 12 + 11
        elif ix < 7:
            reg, c = s3RG, 3 * 4 * (ix - 4) + 1
        elif ix == 7:
            reg, c = s2RG, 2 * 12 + 11 + 1
        elif ix < 10:
            reg, c = s3RG, 3 * 4 * (ix - 8) + 2
        else:
            reg, c = sAOFF, 3 * 4 * (ix - 8) + 2
        for i in range(2):
            it.append((f"""s_add_u32 s{sT1}, s{reg}, {c*32768 + i*8192}
            s_add_u32 m0, s{sRT}, {slot + i*1024}
            s_nop 0
            buffer_load_dwordx4 v{vDB}, s[{SWD}:{SWD+3}], s{sT1} offen lds""", f"B{st}"))
    else:
        j = ix
        for i in range(2):
            vd = vDC0 if i % 2 == 0 else vDC1
            it.append((f"""s_add_u32 s{sT1}, s{sXB}, {j*128 + i*8192}
            s_add_u32 m0, s{sRT}, {slot + i*1024}
            s_nop 0
            buffer_load_dwordx4 v{vd}, s[{SC}:{SC+3}], s{sT1} offen lds""", f"B{st}"))
    return it


def main(out_path):
    a = A()
    gen(a)
    ref = open("cdna_kernels/" + NAME + ".s.ref").read()
    head = []
    for line in ref.splitlines():
        if line.startswith(";") and "@launch" not in line and "Override" not in line and "grid=ceil" not in line:
            head.append(line)
        elif not line.startswith(";"):
            break
    txt = "\n".join(head) + "\n"
    txt += f"; @launch grid=(256,1,1) block=(512,1,1) lds={LDS_BYTES}\n"
    txt += '.amdgcn_target "amdgcn-amd-amdhsa--gfx950"\n.text\n'
    txt += f".globl {KNAME}\n.p2align 8\n.type {KNAME},@function\n{KNAME}:\n"
    txt += a.text()
    txt += f""".section .rodata,"a"
.p2align 6
.amdhsa_kernel {KNAME}
  .amdhsa_next_free_vgpr 256
  .amdhsa_next_free_sgpr 102
  .amdhsa_accum_offset 256
  .amdhsa_group_segment_fixed_size 0
  .amdhsa_kernarg_size 128
  .amdhsa_user_sgpr_count 2
  .amdhsa_user_sgpr_kernarg_segment_ptr 1
  .amdhsa_system_sgpr_workgroup_id_x 1
.end_amdhsa_kernel
"""
    open(out_path, "w").write(txt)


def flag_load(a, ev, rb_s, vdst, tag):
    a(f"""s_lshl_b32 s{sT0}, s{rb_s}, 8
    s_add_u32 s{sT0}, s{sT0}, {WS_FLG + ev*64}
    v_and_b32 v{vdst}, 15, v{vLANE}
    v_lshlrev_b32 v{vdst}, 2, v{vdst}""")
    a.vmop(f"buffer_load_dword v{vdst}, v{vdst}, s[{SWS}:{SWS+3}], s{sT0} offen sc1", tag)


PRG = (252, 253, 254)


FLG_OFF = {0: 0, 1: 512, 2: 1024}


def poll_flags(a, ev, tracked=False):
    lp, ok = a.newlab("PF"), a.newlab("PFOK")
    wide = (ev == 1)
    a(f"""s_lshr_b32 s{sT0}, s{sRB2}, 1
    s_lshl_b32 s{sT0}, s{sT0}, 11
    s_add_u32 s{sT0}, s{sT0}, {WS_FLG + FLG_OFF[ev]}
    v_lshlrev_b32 v{vT}, {3 if wide else 2}, v{vLANE}
    s_mov_b32 s{sSPIN}, 0""")
    regs = [(248, 249), (250, 251), (252, 253)]
    ld = (lambda r: f"buffer_load_dwordx2 v[{r[0]}:{r[1]}], v{vT}, s[{SWS}:{SWS+3}], s{sT0} offen sc1") if wide else \
         (lambda r: f"buffer_load_dword v{r[0]}, v{vT}, s[{SWS}:{SWS+3}], s{sT0} offen sc1")
    for r in regs:
        a(ld(r) + "\ns_sleep 2")
    a.label(lp)
    for r in regs:
        nx = a.newlab("PFN")
        a(f"""s_waitcnt vmcnt(2)
        v_cmp_ne_u32 vcc, s{sTAG}, v{r[0]}
        s_add_u32 s{sSPIN}, s{sSPIN}, 1""")
        if wide:
            a(f"""s_cbranch_vccnz {nx}
            v_cmp_ne_u32 vcc, s{sTAG}, v{r[1]}
            s_nop 0
            s_cbranch_vccz {ok}""")
            a.label(nx)
        else:
            a(f"s_cbranch_vccz {ok}")
        a(ld(r))
    a(f"""s_cmp_gt_u32 s{sSPIN}, {SPIN_MAX}
    s_cbranch_scc0 {lp}""")
    a.label(ok)
    if tracked:
        a.vm = ["poll", "poll"]
        a.nvm += 2


def touch_A(a, ev):
    if not A_TOUCH:
        return
    k0, nl = {0: (0, 64), 1: (32, 108), 2: (86, 128)}[ev]
    a(f"""s_lshr_b32 s{sT0}, s{sCB}, 2
    s_lshl_b32 s{sT1}, s{sRB2}, 1
    s_add_u32 s{sT0}, s{sT0}, s{sT1}
    s_mul_i32 s{sT0}, s{sT0}, {RT_STRIDE}
    s_and_b32 s{sT1}, s{sCB}, 3
    s_mul_i32 s{sT1}, s{sT1}, {nl*128}
    s_add_u32 s{sT0}, s{sT0}, s{sT1}
    s_add_u32 s{sT0}, s{sT0}, {k0*1024}
    v_lshlrev_b32 v{vT+1}, 7, v{vLANE}
    buffer_load_dword v{JUNK}, v{vT+1}, s[{SWS}:{SWS+3}], s{sT0} offen sc1""")
    if nl > 64:
        a(f"s_add_u32 s{sT0}, s{sT0}, 8192")
        if nl < 128:
            a(f"""v_cmp_gt_u32 vcc, {nl-64}, v{vLANE}
            s_and_saveexec_b64 s[{sEX}:{sEX+1}], vcc
            buffer_load_dword v{JUNK}, v{vT+1}, s[{SWS}:{SWS+3}], s{sT0} offen sc1
            s_mov_b64 exec, s[{sEX}:{sEX+1}]""")
        else:
            a(f"buffer_load_dword v{JUNK}, v{vT+1}, s[{SWS}:{SWS+3}], s{sT0} offen sc1")


def write_flag(a, ev, ch):
    sh = 5 if ev == 1 else 4
    a(f"""s_lshl_b32 s{sT0}, s{sRB}, 11
    s_lshl_b32 s{sT1}, s{sCG}, {sh}
    s_add_u32 s{sT0}, s{sT0}, s{sT1}
    s_lshl_b32 s{sT1}, s{sW if ev == 1 else sRG}, 2
    s_add_u32 s{sT0}, s{sT0}, s{sT1}
    s_add_u32 s{sT0}, s{sT0}, {WS_FLG + FLG_OFF[ev]}
    v_mov_b32 v{vT+9}, 0
    v_mov_b32 v{vT+10}, s{sTAG}
    s_mov_b64 s[{sEX}:{sEX+1}], exec
    s_mov_b64 exec, 1""")
    a.vmop(f"buffer_store_dword v{vT+10}, v{vT+9}, s[{SWS}:{SWS+3}], s{sT0} offen sc1", "flag")
    a(f"s_mov_b64 exec, s[{sEX}:{sEX+1}]")


def only_rg(a, rg, fn):
    lab = a.newlab("RG")
    a(f"s_cmp_eq_u32 s{sRG}, {rg}\ns_cbranch_scc0 {lab}")
    lg = list(a.lg)
    fn()
    a.label(lab)
    a.lg = lg


def colsum_mfma(a, wf0, wf1, accreg, first=False):
    l1, l2 = a.newlab("CS"), a.newlab("CS")
    c = "0" if first else f"v[{accreg}:{accreg+15}]"
    a(f"""s_cmp_eq_u32 s{sCSM}, 0
    s_cbranch_scc1 {l2}
    s_cmp_eq_u32 s{sCSM}, 1
    s_cbranch_scc0 {l1}
    v_mfma_f32_32x32x16_bf16 v[{accreg}:{accreg+15}], v[{ONES}:{ONES+3}], v[{wf0}:{wf0+3}], {c}
    s_branch {l2}""")
    a.label(l1)
    a(f"v_mfma_f32_32x32x16_bf16 v[{accreg}:{accreg+15}], v[{ONES}:{ONES+3}], v[{wf1}:{wf1+3}], {c}")
    a.label(l2)


def colsum_store(a, accreg, unit, koff=0):
    a(f"""s_nop 7
    s_nop 7
    s_add_u32 s{sT1}, s{sKC0}, {koff}
    s_and_b32 s{sT1}, s{sT1}, 7
    s_lshl_b32 s{sT0}, s{sCG}, 3
    s_add_u32 s{sT0}, s{sT0}, s{sT1}
    s_lshl_b32 s{sT0}, s{sT0}, 11
    s_sub_u32 s{sT1}, s{sCSM}, 1
    s_lshl_b32 s{sT1}, s{sT1}, 8
    s_add_u32 s{sT0}, s{sT0}, s{sT1}
    s_add_u32 s{sT0}, s{sT0}, {WS_CS + unit*512}
    s_lshl_b32 s{sT1}, s2, 11
    s_add_u32 s{sT1}, s{sT1}, {WS_DUMMY}
    s_cmp_eq_u32 s{sCSM}, 0
    s_cselect_b32 s{sT0}, s{sT1}, s{sT0}
    v_mov_b32 v{accreg+1}, s{sTAG}
    v_lshlrev_b32 v{accreg+2}, 3, v{vLANE}
    s_mov_b64 s[{sEX}:{sEX+1}], exec
    s_mov_b64 exec, 0xffffffff""")
    a.vmop(f"buffer_store_dwordx2 v[{accreg}:{accreg+1}], v{accreg+2}, s[{SWS}:{SWS+3}], s{sT0} offen sc1", "cs")
    a(f"s_mov_b64 exec, s[{sEX}:{sEX+1}]")


def gather_loads(a, part, dst, atmp, tracked=False):
    l1, l2 = a.newlab("G"), a.newlab("G")
    a(f"""s_cmp_lt_u32 s{sRG}, 2
    s_cbranch_scc0 {l1}
    s_lshl_b32 s{sT0}, s{sCG}, 14
    s_add_u32 s{sT0}, s{sT0}, {WS_CS + part*1024}
    s_lshl_b32 s{sT1}, s{sRG}, 9
    s_add_u32 s{sT0}, s{sT0}, s{sT1}
    v_lshlrev_b32 v{atmp}, 3, v{vLANE}""")
    for j in range(8):
        so, io = (j * 2048 // 4096) * 4096, (j * 2048) % 4096
        a(f"s_add_u32 s{sT1}, s{sT0}, {so}")
        a(f"buffer_load_dwordx2 v[{dst+2*j}:{dst+2*j+1}], v{atmp}, s[{SWS}:{SWS+3}], s{sT1} offen offset:{io} sc1")
    a(f"s_branch {l2}")
    a.label(l1)
    nd = 8
    if part == 0:
        a(f"""s_lshl_b32 s{sT0}, s{sRB}, 11
        s_sub_u32 s{sT1}, s{sRG}, 2
        s_lshl_b32 s{sT1}, s{sT1}, 10
        s_add_u32 s{sT0}, s{sT0}, s{sT1}
        s_add_u32 s{sT0}, s{sT0}, {WS_STAT}
        v_lshlrev_b32 v{atmp}, 4, v{vLANE}
        buffer_load_dwordx4 v[{dst}:{dst+3}], v{atmp}, s[{SWS}:{SWS+3}], s{sT0} offen sc1""")
        nd = 7
    a(f"s_mov_b32 s{sT0}, 0x40000000")
    for j in range(nd):
        a(f"buffer_load_dword v{dst+8+j}, v{vLANE}, s[{SWS}:{SWS+3}], s{sT0} offen")
    a.label(l2)
    if tracked:
        a.vm += ["g"] * 8
        a.nvm += 8


def gather_finish(a, part, dst, nyounger, atmp):
    lr, l1, l2, lok, lok2, l0 = [a.newlab("GF") for _ in range(6)]
    a(f"s_mov_b32 s{sSPIN}, 0")
    a(f"s_waitcnt vmcnt({nyounger})")
    a(f"s_branch {l0}")
    a.label(lr)
    a("s_waitcnt vmcnt(0)")
    a.label(l0)
    a(f"""s_cmp_lt_u32 s{sRG}, 2
    s_cbranch_scc0 {l1}
    s_mov_b64 s[{sMASK}:{sMASK+1}], 0""")
    for j in range(8):
        a(f"""v_cmp_ne_u32 vcc, s{sTAG}, v{dst+2*j+1}
        s_or_b64 s[{sMASK}:{sMASK+1}], s[{sMASK}:{sMASK+1}], vcc""")
    a(f"""s_cmp_eq_u64 s[{sMASK}:{sMASK+1}], 0
    s_cbranch_scc1 {lok}
    s_add_u32 s{sSPIN}, s{sSPIN}, 1
    s_cmp_gt_u32 s{sSPIN}, {SPIN_MAX}
    s_cbranch_scc1 {lok}""")
    gather_loads(a, part, dst, atmp)
    a(f"s_branch {lr}")
    a.label(lok)
    a(f"""v_add_f32 v{dst}, v{dst}, v{dst+2}
    v_add_f32 v{dst+4}, v{dst+4}, v{dst+6}
    v_add_f32 v{dst+8}, v{dst+8}, v{dst+10}
    v_add_f32 v{dst+12}, v{dst+12}, v{dst+14}
    v_add_f32 v{dst}, v{dst}, v{dst+4}
    v_add_f32 v{dst+8}, v{dst+8}, v{dst+12}
    v_add_f32 v{dst}, v{dst}, v{dst+8}
    s_lshl_b32 s{sT0}, s{sRG}, 8
    s_add_u32 s{sT0}, s{sT0}, {SCR}
    v_lshlrev_b32 v{atmp}, 2, v{vLANE}
    v_add_u32 v{atmp}, s{sT0}, v{atmp}
    ds_write_b32 v{atmp}, v{dst} offset:{SCR_CS + part*512}
    s_branch {l2}""")
    a.label(l1)
    if part == 0:
        a(f"""v_cmp_ne_u32 vcc, s{sTAG}, v{dst+1}
        s_mov_b64 s[{sMASK}:{sMASK+1}], vcc
        v_cmp_ne_u32 vcc, s{sTAG}, v{dst+3}
        s_or_b64 s[{sMASK}:{sMASK+1}], s[{sMASK}:{sMASK+1}], vcc
        s_cmp_eq_u64 s[{sMASK}:{sMASK+1}], 0
        s_cbranch_scc1 {lok2}
        s_add_u32 s{sSPIN}, s{sSPIN}, 1
        s_cmp_gt_u32 s{sSPIN}, {SPIN_MAX}
        s_cbranch_scc1 {lok2}""")
        gather_loads(a, part, dst, atmp)
        a(f"s_branch {lr}")
        a.label(lok2)
        a(f"""v_rcp_f32 v{dst+2}, v{dst+2}
        v_sub_f32 v{dst+3}, 0, v{dst}
        s_sub_u32 s{sT0}, s{sRG}, 2
        s_lshl_b32 s{sT0}, s{sT0}, 9
        s_add_u32 s{sT0}, s{sT0}, {SCR}
        v_lshlrev_b32 v{atmp}, 3, v{vLANE}
        v_add_u32 v{atmp}, s{sT0}, v{atmp}
        ds_write_b64 v{atmp}, v[{dst+2}:{dst+3}] offset:{SCR_ST}
        v_lshrrev_b32 v{atmp}, 1, v{atmp}
        v_add_u32 v{atmp}, {SCR//2}, v{atmp}
        ds_write_b32 v{atmp}, v{dst+2} offset:{SCR_RV}""")
    a.label(l2)
    a.lgwait_all()


def row_stats_M(q, tmp):
    q(f"""v_and_b32 v{tmp}, 31, v{vLANE}
    v_bfe_u32 v{tmp+1}, v{tmp}, 2, 1
    v_lshlrev_b32 v{tmp+1}, 4, v{tmp+1}
    v_lshrrev_b32 v{tmp+2}, 3, v{tmp}
    v_lshl_add_u32 v{tmp+1}, v{tmp+2}, 2, v{tmp+1}
    v_and_b32 v{tmp+2}, 3, v{tmp}
    v_add_u32 v{tmp+1}, v{tmp+1}, v{tmp+2}
    v_lshlrev_b32 v{tmp+2}, 5, v{vRGV}
    v_add_u32 v{tmp+1}, v{tmp+2}, v{tmp+1}
    v_lshlrev_b32 v{tmp+1}, 3, v{tmp+1}
    v_add_u32 v{tmp+1}, {SCR}, v{tmp+1}""")
    q.ldsop(f"ds_read_b64 v[{vRINV}:{vRINV+1}], v{tmp+1} offset:{SCR_ST}", "rs")
    q.lgwait("rs")


vRGV = 2


def aug_mfma(q, acc, cs_off, R, T, sform=False):
    X, W = R, R + 4
    q(f"""v_and_b32 v{T}, 31, v{vLANE}
    v_lshlrev_b32 v{T}, 2, v{T}
    v_add_u32 v{T}, {SCR + SCR_CS + cs_off}, v{T}""")
    q.ldsop(f"ds_read_b32 v{T+1}, v{T} offset:0", "ac")
    q.ldsop(f"ds_read_b32 v{T+2}, v{T} offset:128", "ac")
    q(f"""v_cmp_gt_u32 vcc, 32, v{vLANE}
    v_mov_b32 v{X+2}, 0
    v_mov_b32 v{X+3}, 0
    v_cndmask_b32 v{X}, 0, v{vNM}, vcc
    v_mov_b32 v{W+2}, 0
    v_lshrrev_b32 v{X+1}, 16, v{X}
    v_mov_b32 v{W+3}, 0
    v_or_b32 v{X}, v{X}, v{X+1}""")
    q.lgwait("ac")
    for t in range(2):
        cs = T + 1 + t
        q(f"""v_cvt_pk_bf16_f32 v{T+3}, v{cs}, v{cs}
        v_lshlrev_b32 v{T+3}, 16, v{T+3}
        v_sub_f32 v{T+3}, v{cs}, v{T+3}
        v_cvt_pk_bf16_f32 v{W}, v{cs}, v{T+3}
        v_and_b32 v{W+1}, 0xffff0000, v{W}
        v_sub_f32 v{T+3}, v{T+3}, v{W+1}
        v_cvt_pk_bf16_f32 v{W+1}, v{T+3}, v{W+2}
        s_nop 1""")
        ac = acc + 16 * t
        if sform:
            q(f"v_mfma_f32_32x32x16_bf16 v[{ac}:{ac+15}], v[{X}:{X+3}], v[{W}:{W+3}], v[{ac}:{ac+15}]")
        else:
            q(f"v_mfma_f32_32x32x16_bf16 v[{ac}:{ac+15}], v[{W}:{W+3}], v[{X}:{X+3}], v[{ac}:{ac+15}]")
    q("s_nop 15\ns_nop 3")


def gelu_epi(q, acc, pos_s, cs_off, tagname, csr, T, maybe=False):
    K0 = -2.0 * math.sqrt(2.0 / math.pi) * LOG2E
    K1c = K0 * 0.044715
    q(f"v_mov_b32 v{vK1}, {f2u(K1c)}")
    aug_mfma(q, acc, cs_off, csr, T)
    for qq in range(4):
        rs = [4 * qq + i for i in range(4)]
        for i, r in enumerate(rs):
            q(f"v_mul_f32 v{acc+r}, v{acc+r}, v{vRINV}")
        for i, r in enumerate(rs):
            q(f"v_mul_f32 v{T+i}, v{acc+r}, v{acc+r}")
        for i, r in enumerate(rs):
            q(f"v_fmaak_f32 v{T+i}, v{vK1}, v{T+i}, {f2u(K0)}")
        for i, r in enumerate(rs):
            q(f"v_mul_f32 v{T+i}, v{T+i}, v{acc+r}")
        for i, r in enumerate(rs):
            q(f"v_exp_f32 v{T+i}, v{T+i}")
        for i, r in enumerate(rs):
            q(f"v_mul_f32 v{T+4+i}, v{acc+r}, v{acc+16+r}")
        for i, r in enumerate(rs):
            q(f"v_add_f32 v{T+i}, 1.0, v{T+i}")
        for i, r in enumerate(rs):
            q(f"v_rcp_f32 v{T+i}, v{T+i}")
        for i, r in enumerate(rs):
            q(f"v_mul_f32 v{T+4+i}, v{T+4+i}, v{vRINV}")
        for i, r in enumerate(rs):
            q(f"v_mul_f32 v{T+i}, v{T+i}, v{T+4+i}")
        q(f"v_cvt_pk_bf16_f32 v{acc+2*qq}, v{T}, v{T+1}\nv_cvt_pk_bf16_f32 v{acc+2*qq+1}, v{T+2}, v{T+3}")
    q(f"v_lshlrev_b32 v{T}, 4, v{vLANE}")
    q.vmop(f"buffer_store_dwordx4 v[{acc}:{acc+3}], v{T}, s[{SWS}:{SWS+3}], s{pos_s} offen sc1", tagname, maybe)
    q.vmop(f"buffer_store_dwordx4 v[{acc+4}:{acc+7}], v{T}, s[{SWS}:{SWS+3}], s{pos_s} offen offset:1024 sc1", tagname, maybe)


def s_params(q):
    vLre, vLim, vLdt = vT + 7, vT + 8, vT + 9
    t0, t1, t2, t3, t4, t5, t6 = [vT + i for i in range(7)]
    q(f"""v_lshlrev_b32 v{vLre}, 16, v{vA16r}
    v_lshlrev_b32 v{vLim}, 16, v{vA16i}
    v_lshlrev_b32 v{vLdt}, 16, v{vA128r}
    v_mul_f32 v{t0}, {f2u(LOG2E)}, v{vLdt}
    v_exp_f32 v{t0}, v{t0}
    s_nop 0""")
    rne_bf16(q, t0)
    q(f"""v_mul_f32 v{t1}, v{t0}, v{vLre}
    v_mul_f32 v{t2}, v{t0}, v{vLim}
    v_mul_f32 v{t1}, {f2u(LOG2E)}, v{t1}
    v_exp_f32 v{t1}, v{t1}
    v_mul_f32 v{t2}, {f2u(1.0/(2*math.pi))}, v{t2}
    v_rndne_f32 v{t3}, v{t2}
    v_sub_f32 v{t2}, v{t2}, v{t3}
    v_cos_f32 v{t3}, v{t2}
    v_sin_f32 v{t4}, v{t2}
    s_nop 0
    v_mul_f32 v{vAr}, v{t1}, v{t3}
    v_mul_f32 v{vAi}, v{t1}, v{t4}
    v_add_f32 v{t3}, -1.0, v{vAr}
    v_mul_f32 v{t4}, v{vLre}, v{vLre}
    v_fmac_f32 v{t4}, v{vLim}, v{vLim}
    v_rcp_f32 v{t4}, v{t4}
    v_mul_f32 v{t5}, v{t3}, v{vLre}
    v_fmac_f32 v{t5}, v{vAi}, v{vLim}
    v_mul_f32 v{t6}, v{vAi}, v{vLre}
    v_fma_f32 v{t6}, -v{t3}, v{vLim}, v{t6}
    v_add_f32 v{t4}, v{t4}, v{t4}
    v_mul_f32 v{vKr}, v{t5}, v{t4}
    v_mul_f32 v{vKi}, v{t6}, v{t4}
    v_mov_b32 v{vA16r}, v{vAr}
    v_mov_b32 v{vA16i}, v{vAi}""")

    def csq(r, i):
        q(f"""v_mul_f32 v{t0}, v{i}, v{i}
        v_mul_f32 v{t1}, v{r}, v{i}
        v_fma_f32 v{r}, v{r}, v{r}, -v{t0}
        v_add_f32 v{i}, v{t1}, v{t1}""")
    for _ in range(4):
        csq(vA16r, vA16i)
    q(f"v_mov_b32 v{vA128r}, v{vA16r}\nv_mov_b32 v{vA128i}, v{vA16i}")
    for _ in range(3):
        csq(vA128r, vA128i)


def s_epilogue1(q):
    zr = lambda j: vACC + j
    zi = lambda j: vACC + 16 + j
    T = vT
    row_stats_M(q, T)
    aug_mfma(q, vACC, 0, 4, T, sform=True)
    q(f"""v_and_b32 v{T}, 31, v{vLANE}
    v_lshrrev_b32 v{T+2}, 5, v{vLANE}
    v_lshlrev_b32 v{T+3}, 5, v{vRGV}
    v_lshl_add_u32 v{T+3}, v{T+2}, 4, v{T+3}
    v_lshlrev_b32 v{T+3}, 2, v{T+3}
    v_add_u32 v{T+3}, {SCR}, v{T+3}""")
    q.ldsop(f"ds_read_b128 v[4:7], v{T+3} offset:{SCR_RV}", "s0")
    q.ldsop(f"ds_read_b128 v[8:11], v{T+3} offset:{SCR_RV + 16}", "s1")
    for qq in range(4):
        base = 4 if qq % 2 == 0 else 8
        q.lgwait(f"s{qq}")
        for i in range(4):
            j = 4 * qq + i
            q(f"""v_mul_f32 v{zr(j)}, v{zr(j)}, v{base+i}
            v_mul_f32 v{zi(j)}, v{zi(j)}, v{base+i}""")
        if qq + 2 < 4:
            q.ldsop(f"ds_read_b128 v[{base}:{base+3}], v{T+3} offset:{SCR_RV + (qq+2)*16}", f"s{qq+2}")
    cur, alt = (T + 4, T + 5), (T + 7, T + 8)
    q(f"v_mov_b32 v{cur[0]}, v{zr(0)}\nv_mov_b32 v{cur[1]}, v{zi(0)}")
    for j in range(1, 16):
        sr, si = cur
        nr, ni = alt
        q(f"""v_fma_f32 v{nr}, v{vAr}, v{sr}, v{zr(j)}
        v_fma_f32 v{ni}, v{vAr}, v{si}, v{zi(j)}
        v_fma_f32 v{nr}, -v{vAi}, v{si}, v{nr}
        v_fma_f32 v{ni}, v{vAi}, v{sr}, v{ni}""")
        cur, alt = alt, cur
    assert cur == (T + 7, T + 8) and (T + 7) % 2 == 0
    q(f"""v_lshlrev_b32 v{T+1}, 1, v{vRGV}
    v_add_u32 v{T+1}, v{T+1}, v{T+2}
    v_lshlrev_b32 v{T+1}, 8, v{T+1}
    v_lshl_add_u32 v{T+1}, v{T}, 3, v{T+1}
    v_add_u32 v{T+1}, {SCR}, v{T+1}""")
    q.ldsop(f"ds_write_b64 v{T+1}, v[{T+7}:{T+8}] offset:{SCR_ES}", "ew")


def s_publish(a):
    T = vT
    a(f"""s_waitcnt lgkmcnt(0)
    v_and_b32 v{T}, 31, v{vLANE}
    v_lshlrev_b32 v{T+1}, 3, v{T}
    v_add_u32 v{T+1}, {SCR}, v{T+1}
    ds_read_b64 v[4:5], v{T+1} offset:{SCR_ES}
    ds_read_b64 v[6:7], v{T+1} offset:{SCR_ES+256}
    ds_read_b64 v[8:9], v{T+1} offset:{SCR_ES+512}
    ds_read_b64 v[10:11], v{T+1} offset:{SCR_ES+768}
    s_waitcnt lgkmcnt(0)""")

    def step(er, ei):
        a(f"""v_fma_f32 v{T+2}, v{vA16r}, v4, v{er}
        v_fma_f32 v{T+3}, v{vA16r}, v5, v{ei}
        v_fma_f32 v{T+2}, -v{vA16i}, v5, v{T+2}
        v_fma_f32 v5, v{vA16i}, v4, v{T+3}
        v_mov_b32 v4, v{T+2}""")
    step(6, 7); step(8, 9); step(10, 11)
    a(f"""ds_read_b64 v[6:7], v{T+1} offset:{SCR_ES+1024}
    ds_read_b64 v[8:9], v{T+1} offset:{SCR_ES+1280}
    ds_read_b64 v[10:11], v{T+1} offset:{SCR_ES+1536}
    ds_read_b64 v[{T+5}:{T+6}], v{T+1} offset:{SCR_ES+1792}
    s_waitcnt lgkmcnt(0)""")
    assert (T + 5) % 2 == 0
    step(6, 7); step(8, 9); step(10, 11); step(T + 5, T + 6)
    a(f"""v_mov_b32 v6, v5
    v_mov_b32 v5, s{sTAG}
    v_mov_b32 v7, s{sTAG}
    s_lshl_b32 s{sT0}, s{sCG}, 5
    v_add_u32 v{T}, s{sT0}, v{T}
    v_lshlrev_b32 v{T}, 4, v{T}
    s_lshl_b32 s{sT0}, s{sRB}, 13
    s_add_u32 s{sT0}, s{sT0}, {WS_AGG}
    v_cmp_gt_u32 vcc, 32, v{vLANE}
    s_and_saveexec_b64 s[{sEX}:{sEX+1}], vcc
    buffer_store_dwordx4 v[4:7], v{T}, s[{SWS}:{SWS+3}], s{sT0} offen sc1
    s_mov_b64 exec, s[{sEX}:{sEX+1}]""")
    a.vm.append("pub"); a.nvm += 1


LBG = 160
HG = 192


def lookback_loads(a, tracked=True):
    a(f"""v_and_b32 v{vT+9}, 31, v{vLANE}
    s_lshl_b32 s{sT0}, s{sCG}, 5
    v_add_u32 v{vT+9}, s{sT0}, v{vT+9}
    v_lshlrev_b32 v{vT+9}, 4, v{vT+9}           ; p*16
    v_lshrrev_b32 v3, 5, v{vLANE}
    s_sub_u32 s{sT0}, s{sRB}, 1
    v_sub_u32 v3, s{sT0}, v3                    ; rb-1-hf
    v_lshlrev_b32 v3, 13, v3
    v_add_u32 v3, v3, v{vT+9}
    s_mov_b32 s{sT0}, {WS_AGG}
    v_mov_b32 v{vT+10}, 0x7ff00000""")
    for i in range(8):
        a(f"""v_subrev_u32 v{vT+9}, {i*16384}, v3
        v_cmp_gt_i32 vcc, 0, v{vT+9}
        s_nop 1
        v_cndmask_b32 v{vT+9}, v{vT+9}, v{vT+10}, vcc""")
        code = f"buffer_load_dwordx4 v[{LBG+4*i}:{LBG+4*i+3}], v{vT+9}, s[{SWS}:{SWS+3}], s{sT0} offen sc1"
        if tracked:
            a.vmop(code, "lb")
        else:
            a(code)


def s_work_atoms(a, q):
    zr = lambda j: vACC + j
    zi = lambda j: vACC + 16 + j
    T = vT
    L = LBG
    G = LBG
    EB = 192
    q(f"""v_and_b32 v{T+8}, 31, v{vLANE}
    v_lshlrev_b32 v{T}, 3, v{T+8}
    v_add_u32 v{T}, {SCR}, v{T}""")
    for s in range(8):
        q.ldsop(f"ds_read_b64 v[{EB+2*s}:{EB+2*s+1}], v{T} offset:{SCR_ES + s*256}", "se")
    q(f"""v_mul_f32 v{T+5}, v{vA128i}, v{vA128i}
    v_mul_f32 v{T+6}, v{vA128r}, v{vA128i}
    v_fma_f32 v{T+5}, v{vA128r}, v{vA128r}, -v{T+5}
    v_add_f32 v{T+6}, v{T+6}, v{T+6}""")

    def check():
        lp, got = a.newlab("LB"), a.newlab("LBG")
        a(f"s_mov_b32 s{sSPIN}, 0")
        a.vmwait("lb")
        a.label(lp)
        a(f"""v_lshrrev_b32 v{T+1}, 5, v{vLANE}
        s_sub_u32 s{sT0}, s{sRB}, 1
        v_sub_u32 v{T+1}, s{sT0}, v{T+1}
        s_mov_b64 s[{sMASK}:{sMASK+1}], 0""")
        for i in range(8):
            a(f"""v_cmp_ne_u32 vcc, s{sTAG}, v{L+4*i+1}
            v_cmp_ne_u32 s[{sEX}:{sEX+1}], s{sTAG}, v{L+4*i+3}
            s_or_b64 s[{sEX}:{sEX+1}], s[{sEX}:{sEX+1}], vcc
            v_cmp_le_i32 vcc, {2*i}, v{T+1}
            s_and_b64 s[{sEX}:{sEX+1}], s[{sEX}:{sEX+1}], vcc
            s_or_b64 s[{sMASK}:{sMASK+1}], s[{sMASK}:{sMASK+1}], s[{sEX}:{sEX+1}]""")
        a(f"""s_cmp_eq_u64 s[{sMASK}:{sMASK+1}], 0
        s_cbranch_scc1 {got}
        s_add_u32 s{sSPIN}, s{sSPIN}, 1
        s_cmp_gt_u32 s{sSPIN}, {SPIN_MAX}
        s_cbranch_scc1 {got}""")
        lookback_loads(a, tracked=False)
        a(f"s_waitcnt vmcnt(0)\ns_branch {lp}")
        a.label(got)
    q.q.append(("call", check))
    cr, ci = T + 1, T + 2
    q(f"v_mov_b32 v{cr}, v{L+28}\nv_mov_b32 v{ci}, v{L+30}")
    for i in range(6, -1, -1):
        q(f"""v_fma_f32 v{T+3}, v{T+5}, v{cr}, v{L+4*i}
        v_fma_f32 v{T+4}, v{T+5}, v{ci}, v{L+4*i+2}
        v_fma_f32 v{T+3}, -v{T+6}, v{ci}, v{T+3}
        v_fma_f32 v{ci}, v{T+6}, v{cr}, v{T+4}
        v_mov_b32 v{cr}, v{T+3}""")
    q(f"""v_mov_b32 v{T+3}, v{cr}
    v_mov_b32 v{T+4}, v{ci}
    s_nop 1
    v_permlane32_swap_b32 v{cr}, v{T+3}
    v_permlane32_swap_b32 v{ci}, v{T+4}
    s_nop 1
    v_fma_f32 v{cr}, v{vA128r}, v{T+3}, v{cr}
    v_fma_f32 v{ci}, v{vA128r}, v{T+4}, v{ci}
    v_fma_f32 v{cr}, -v{vA128i}, v{T+4}, v{cr}
    v_fma_f32 v{ci}, v{vA128i}, v{T+3}, v{ci}
    v_lshrrev_b32 v{T+5}, 5, v{vLANE}
    v_lshl_add_u32 v{T+5}, v{vRGV}, 1, v{T+5}""")
    q.lgwait("se")
    for s in range(7):
        def seg(s=s):
            a(f"""v_fma_f32 v{T+3}, v{vA16r}, v{cr}, v{EB+2*s}
            v_fma_f32 v{T+4}, v{vA16r}, v{ci}, v{EB+2*s+1}
            v_cmp_lt_u32 vcc, {s}, v{T+5}
            v_fma_f32 v{T+3}, -v{vA16i}, v{ci}, v{T+3}
            v_fma_f32 v{T+4}, v{vA16i}, v{cr}, v{T+4}
            v_cndmask_b32 v{cr}, v{cr}, v{T+3}, vcc
            v_cndmask_b32 v{ci}, v{ci}, v{T+4}, vcc""")
        q.q.append(("calln", seg, 7))
    cur, alt = (cr, ci), (T + 3, T + 4)
    for j in range(16):
        sr, si = cur
        nr, ni = alt
        q(f"""v_fma_f32 v{nr}, v{vAr}, v{sr}, v{zr(j)}
        v_fma_f32 v{ni}, v{vAr}, v{si}, v{zi(j)}
        v_fma_f32 v{nr}, -v{vAi}, v{si}, v{nr}
        v_fma_f32 v{ni}, v{vAi}, v{sr}, v{ni}
        v_mul_f32 v{zr(j)}, v{vKr}, v{nr}
        v_mul_f32 v{zi(j)}, -v{vKr}, v{ni}
        v_fma_f32 v{zr(j)}, -v{vKi}, v{ni}, v{zr(j)}
        v_fma_f32 v{zi(j)}, -v{vKi}, v{nr}, v{zi(j)}""")
        cur, alt = alt, cur
    for j in range(0, 16, 2):
        q(f"v_cvt_pk_bf16_f32 v{G+j//2}, v{zr(j)}, v{zr(j+1)}")
        q(f"v_cvt_pk_bf16_f32 v{G+8+j//2}, v{zi(j)}, v{zi(j+1)}")
    q(f"""v_lshlrev_b32 v{T+6}, 12, v{vRGV}
    v_add_u32 v{T+6}, {SCR_T}, v{T+6}
    v_lshrrev_b32 v{T+5}, 5, v{vLANE}
    v_lshlrev_b32 v{T+5}, 3, v{T+5}
    v_lshl_add_u32 v{T+5}, v{T+8}, 6, v{T+5}
    v_add_u32 v{T+5}, v{T+6}, v{T+5}
    v_add_u32 v{T+6}, v{T+6}, v{vTRL}
    v_lshlrev_b32 v{T}, 4, v{vLANE}""")
    for part in range(2):
        for qq in range(4):
            r = G + 8 * part + 2 * qq
            q.ldsop(f"ds_write_b64 v{T+5}, v[{r}:{r+1}] offset:{part*2048 + qq*16}", "tw")
    q.lgwait("tw")
    R = G + 16
    for part in range(2):
        for s2 in range(2):
            r = R + 8 * part + 4 * s2
            o = part * 2048 + s2 * 1024
            q.ldsop(f"ds_read_b64_tr_b16 v[{r}:{r+1}], v{T+6} offset:{o}", "tr")
            q.ldsop(f"ds_read_b64_tr_b16 v[{r+2}:{r+3}], v{T+6} offset:{o+256}", "tr")
    q.lgwait("tr")
    for part in range(2):
        for s2 in range(2):
            r = R + 8 * part + 4 * s2
            q.vmop(f"buffer_store_dwordx4 v[{r}:{r+3}], v{T}, s[{SWS}:{SWS+3}], s{sMU} offen offset:{(2*part+s2)*1024} sc1", "h")


vTRL = 3


def gen(a):
    global vTRL
    vTRL = 0
    sIDX = sMX
    if STAMPS:
        a(f"s_memrealtime s[{sMASK}:{sMASK+1}]")
    a(f"""s_cmp_ge_u32 s2, 256
    s_cbranch_scc1 L_END
    s_load_dwordx16 s[40:55], s[0:1], 0
    s_load_dwordx16 s[56:71], s[0:1], 64
    v_and_b32 v{vLANE}, 63, v0
    v_lshrrev_b32 v2, 6, v0
    s_and_b32 s{sT0}, s2, 7            ; xcd
    v_readfirstlane_b32 s{sW}, v2
    s_lshr_b32 s{sIDX}, s2, 3          ; idx
    s_and_b32 s{sRB}, s{sT0}, 1
    s_lshl_b32 s{sRB}, s{sRB}, 3
    s_and_b32 s{sT2}, s{sIDX}, 7
    s_add_u32 s{sRB}, s{sRB}, s{sT2}   ; rb
    s_lshr_b32 s{sCG}, s{sT0}, 1
    s_lshl_b32 s{sCG}, s{sCG}, 2
    s_lshr_b32 s{sT2}, s{sIDX}, 3
    s_add_u32 s{sCG}, s{sCG}, s{sT2}   ; cg
    s_and_b32 s{sRG}, s{sW}, 3
    s_lshl_b32 s{sKC0}, s{sCG}, 1
    s_add_u32 s{sKC0}, s{sKC0}, s{sRB}
    s_and_b32 s{sKC0}, s{sKC0}, 7
    s_lshl_b32 s{sRB2}, s{sT0}, 2
    s_and_b32 s{sT2}, s{sIDX}, 3
    s_add_u32 s{sRB2}, s{sRB2}, s{sT2}
    s_lshr_b32 s{sCB}, s{sIDX}, 2
    s_mul_i32 s{sT2}, s{sCG}, 3
    s_lshl_b32 s{sT3}, s{sCG}, 1
    s_add_u32 s{sT3}, s{sT3}, 11
    s_cmp_lt_u32 s{sCG}, 11
    s_cselect_b32 s{sU0B}, s{sT2}, s{sT3}
    s_cselect_b32 s{sDUM}, 64, 0x40000000
    s_lshl_b32 s{sU0B}, s{sU0B}, 6
    s_lshl_b32 s{sLW}, s{sRG}, 12           ; w'*4096
    s_lshl_b32 s{sMS}, s{sRG}, 11
    s_add_u32 s{sMS}, s{sMS}, 16384         ; S pieces: 16384 + w'*2048
    s_lshl_b32 s{sM1}, s{sRG}, 10           ; kstep*1024
    v_lshrrev_b32 v2, 3, v{vLANE}           ; lane>>3
    v_and_b32 v3, 7, v{vLANE}
    v_lshrrev_b32 v{vT}, 4, v{vLANE}        ; lane>>4
    v_xor_b32 v{vT+1}, v3, v{vT}            ; (lane&7)^(lane>>4)
    s_lshl_b32 s{sT2}, s{sRB}, 7
    s_lshl_b32 s{sT3}, s{sRG}, 5
    s_add_u32 s{sT2}, s{sT2}, s{sT3}
    v_add_u32 v{vT+2}, s{sT2}, v2
    v_lshlrev_b32 v{vT+2}, 10, v{vT+2}
    v_lshl_add_u32 v{vDX0}, v{vT+1}, 4, v{vT+2}
    v_xor_b32 v{vDX1}, 64, v{vDX0}
    v_add_u32 v{vDX1}, 8192, v{vDX1}
    s_and_b32 s{sT4}, s{sRG}, 1
    s_lshl_b32 s{sT4}, s{sT4}, 4
    s_lshl_b32 s{sT3}, s{sCG}, 5
    s_add_u32 s{sT4}, s{sT4}, s{sT3}
    v_add_u32 v{vT+2}, s{sT4}, v2
    v_lshlrev_b32 v{vT+2}, 10, v{vT+2}
    v_lshl_add_u32 v{vDS}, v{vT+1}, 4, v{vT+2}
    v_xor_b32 v{vDS1}, 64, v{vDS}
    v_add_u32 v{vDS1}, 8192, v{vDS1}
    v_lshrrev_b32 v{vT+2}, 2, v{vLANE}
    s_lshl_b32 s{sT4}, s{sRG}, 4
    v_add_u32 v{vT+2}, s{sT4}, v{vT+2}
    v_mul_u32_u24 v{vT+2}, 2752, v{vT+2}
    v_and_b32 v{vT+4}, 3, v{vLANE}
    v_lshl_add_u32 v{vDM}, v{vT+4}, 4, v{vT+2}
    v_lshlrev_b32 v{vT+3}, 4, v{vLANE}
    s_and_b32 s{sT4}, s{sW}, 2
    s_waitcnt lgkmcnt(0)""")
    pstamp(a, 0)
    srd(a, SX, P_X, 2048 * 1024)
    a(f"""s_cmp_eq_u32 s{sT4}, 0
    s_cselect_b32 s{P_BRE}, s{P_BRE}, s{P_BIM}
    s_cselect_b32 s{P_BRE+1}, s{P_BRE+1}, s{P_BIM+1}
    s_cmp_lt_u32 s{sW}, 4
    s_cselect_b32 s{P_CRE}, s{P_CRE}, s{P_CIM}
    s_cselect_b32 s{P_CRE+1}, s{P_CRE+1}, s{P_CIM+1}""")
    lab0, lab1 = a.newlab("D0"), a.newlab("D1")
    a(f"s_cmp_lt_u32 s{sW}, 4\ns_cbranch_scc1 {lab0}")
    for s_ in range(NPRE):
        for code, tag in dma_p0(s_, 1):
            a(code)
    srd(a, SS, P_BRE, 512 * 1024)
    srd(a, SM, P_WG, 512 * 2752)
    a(f"s_branch {lab1}")
    a.label(lab0)
    srd(a, SS, P_BRE, 512 * 1024)
    srd(a, SM, P_WG, 512 * 2752)
    a(f"s_mov_b32 s{sT4}, s{P_WU}\ns_mov_b32 s{sT5}, s{P_WU+1}")
    srd(a, 32, sT4, 512 * 2752)
    for s_ in range(NPRE):
        for code, tag in dma_p0(s_, 0):
            a(code.replace(f"s[{SM2}:{SM2+3}]", "s[32:35]"))
        if s_ == 0:
            a(f"""s_lshl_b32 s{sT2}, s2, 3
            s_lshl_b32 s{sT3}, s{sRG}, 1
            s_add_u32 s{sT5}, s{sT2}, s{sT3}
            s_lshl_b32 s{sT5}, s{sT5}, 10
            buffer_load_dwordx4 v[{vACC}:{vACC+3}], v{vT+3}, s[{SX}:{SX+3}], s{sT5} offen
            buffer_load_dwordx4 v[{vACC+4}:{vACC+7}], v{vT+3}, s[{SX}:{SX+3}], s{sT5} offen offset:1024""")
    a.label(lab1)
    srd(a, SWS, P_WS, WS_SIZE)
    a(f"""s_add_u32 s{P_BIM}, s{P_WS}, {WS_EPOCH}
    s_addc_u32 s{P_BIM+1}, s{P_WS+1}, 0
    s_load_dword s{sTAG}, s[{P_BIM}:{P_BIM+1}], 0""")
    srd(a, SM2, P_WU, 512 * 2752)
    pstamp(a, 1)
    srd(a, SWD, P_WD, 1376 * 1024)
    srd(a, SC, P_CRE, 512 * 1024)
    a(f"""v_and_b32 v{vT+2}, 31, v{vLANE}
    s_lshl_b32 s{sT4}, s{sCG}, 5
    v_add_u32 v{vT+2}, s{sT4}, v{vT+2}
    v_lshlrev_b32 v{vT+2}, 1, v{vT+2}""")
    srd(a, ST, P_LRE, 1024)
    a.vmop(f"buffer_load_ushort v{vA16r}, v{vT+2}, s[{ST}:{ST+3}], 0 offen", "par")
    srd(a, ST, P_LIM, 1024)
    a.vmop(f"buffer_load_ushort v{vA16i}, v{vT+2}, s[{ST}:{ST+3}], 0 offen", "par")
    srd(a, ST, P_LDT, 1024)
    a.vmop(f"buffer_load_ushort v{vA128r}, v{vT+2}, s[{ST}:{ST+3}], 0 offen", "par")
    pstamp(a, 2)
    srd(a, SO, P_OUT, 2048 * 2048)
    srd(a, ST, P_DSK, 1024)
    if CODE_PREFETCH:
        lab = a.newlab("CP")
        a(f"""s_cmp_eq_u32 s{sW}, 3
        s_cbranch_scc0 {lab}
        s_getpc_b64 s[{sT2}:{sT3}]""")
        a.label("L_PC")
        a(f"""s_mul_i32 s{sT4}, s{sIDX}, {10*128}
        v_lshlrev_b32 v{vT+2}, 7, v{vLANE}
        v_add_u32 v{vT+2}, s{sT4}, v{vT+2}
        v_cmp_gt_u32 vcc, L_CODE_END-L_PC, v{vT+2}
        s_and_saveexec_b64 s[{sEX}:{sEX+1}], vcc
        v_cmp_gt_u32 vcc, 10, v{vLANE}
        s_and_b64 exec, exec, vcc
        s_cbranch_execz {lab}_R
        global_load_dword v{vK1}, v{vT+2}, s[{sT2}:{sT3}]""")
        a.label(lab + "_R")
        a(f"s_mov_b64 exec, s[{sEX}:{sEX+1}]")
        a.label(lab)
    a(f"""s_lshr_b32 s{sT3}, s{sW}, 1                ; w>>1
    s_and_b32 s{sT4}, s{sW}, 1
    s_lshl_b32 s{sT4}, s{sT4}, 14            ; (w&1)*16384
    s_mul_i32 s{s3RG}, s{sT3}, {3*32768}
    s_add_u32 s{s3RG}, s{s3RG}, s{sT4}
    s_lshl_b32 s{s2RG}, s{sT3}, 16
    s_add_u32 s{s2RG}, s{s2RG}, s{sT4}
    s_cmp_eq_u32 s{sT3}, 3
    s_cselect_b32 s{sAOFF}, 0x40000000, s{s3RG}
    s_lshl_b32 s{sXB}, s{sRG}, 14
    s_lshl_b32 s{sRT}, s{sW}, 11
    s_lshl_b32 s{sT2}, s{sRB}, 2
    s_add_u32 s{sT2}, s{sT2}, s{sRG}
    s_mul_i32 s{sHPOS}, s{sT2}, {RT_STRIDE}
    s_lshl_b32 s{sT4}, s{sRB2}, 1
    s_lshr_b32 s{sT3}, s{sW}, 2
    s_add_u32 s{sT4}, s{sT4}, s{sT3}
    s_mul_i32 s{sT4}, s{sT4}, {RT_STRIDE}
    s_lshl_b32 s{sT3}, s{sRG}, 11
    s_add_u32 s{sT4}, s{sT4}, s{sT3}
    v_lshlrev_b32 v{vDA}, 4, v{vLANE}
    v_add_u32 v{vDA}, s{sT4}, v{vDA}
    v_bfe_u32 v{vT+2}, v{vLANE}, 4, 1
    v_lshlrev_b32 v{vT+2}, 2, v{vT+2}
    v_xor_b32 v{vT+2}, v3, v{vT+2}
    v_lshlrev_b32 v{vT+4}, 10, v2
    v_lshl_add_u32 v{vT+2}, v{vT+2}, 4, v{vT+4}
    s_lshl_b32 s{sT4}, s{sCB}, 7
    v_add_u32 v{vDB}, s{sT4}, v{vT+2}
    s_lshl_b32 s{sT4}, s{sCB}, 6
    v_add_u32 v{vT+2}, s{sT4}, v2
    v_lshlrev_b32 v{vT+2}, 10, v{vT+2}
    v_lshl_add_u32 v{vDC0}, v{vT+1}, 4, v{vT+2}
    v_xor_b32 v{vDC1}, 64, v{vDC0}
    v_and_b32 v2, 31, v{vLANE}
    v_bfe_u32 v3, v2, 2, 1
    v_lshlrev_b32 v3, 4, v3
    v_lshrrev_b32 v{vT}, 3, v2
    v_lshl_add_u32 v3, v{vT}, 2, v3
    v_and_b32 v{vT+1}, 3, v2
    v_add_u32 v3, v3, v{vT+1}               ; tau
    v_bfe_u32 v{vT}, v3, 1, 3
    s_lshl_b32 s{sT4}, s{sRG}, 5
    v_add_u32 v3, s{sT4}, v3
    v_lshlrev_b32 v3, 7, v3
    v_lshrrev_b32 v{vT+1}, 5, v{vLANE}
    v_xor_b32 v{vT}, v{vT}, v{vT+1}
    v_lshl_add_u32 v{vXA}, v{vT}, 4, v3
    v_xor_b32 v{vXA+1}, 32, v{vXA}
    v_xor_b32 v{vXA+2}, 64, v{vXA}
    v_xor_b32 v{vXA+3}, 96, v{vXA}
    v_lshlrev_b32 v3, 3, v{vT+1}
    v_bfe_u32 v{vT}, v{vLANE}, 2, 2
    v_add_u32 v3, v3, v{vT}
    v_lshlrev_b32 v3, 6, v3
    v_bfe_u32 v{vT}, v{vLANE}, 4, 1
    v_lshl_add_u32 v3, v{vT}, 5, v3
    v_and_b32 v{vT}, 3, v{vLANE}
    v_lshl_add_u32 v{vTRL}, v{vT}, 3, v3
    s_lshr_b32 s{sT4}, s{sW}, 2
    s_lshl_b32 s{sT4}, s{sT4}, 13
    v_add_u32 v{vW1}, s{sT4}, v{vTRL}
    v_mov_b32 v{vRGV}, s{sRG}""")
    pstamp(a, 3)
    a(f"""s_cmp_ge_u32 s{sW}, 4
    s_cbranch_scc1 L_STREAM_B""")
    save = (list(a.vm), list(a.lg), a.nvm)
    stream(a, 0)
    a.vm, a.lg, a.nvm = list(save[0]), list(save[1]), save[2]
    a.label("L_STREAM_B")
    stream(a, 1)
    a.label("L_END")
    a("s_endpgm")
    a.label("L_CODE_END")


def w2_touch(a, which, junk=None):
    if not W2_PREFETCH:
        return
    sIDX = sMX
    j = junk or vDA
    a(f"v_lshlrev_b32 v3, 7, v{vLANE}")
    if which in (0, 1):
        a(f"""s_mul_i32 s{sT0}, s{sIDX}, 44032
        s_lshl_b32 s{sT1}, s{sRG}, 13
        s_add_u32 s{sT0}, s{sT0}, s{sT1}
        s_add_u32 s{sT0}, s{sT0}, {32768*which}""")
        a.vmop(f"buffer_load_dword v{j}, v3, s[{SWD}:{SWD+3}], s{sT0} offen", "pf")
    else:
        a(f"""s_lshl_b32 s{sT0}, s{sIDX}, 14
        s_and_b32 s{sT1}, s{sRG}, 1
        s_lshl_b32 s{sT1}, s{sT1}, 13
        s_add_u32 s{sT0}, s{sT0}, s{sT1}""")
        a.vmop(f"buffer_load_dword v{j}, v3, s[{SC}:{SC+3}], s{sT0} offen", "pf")


def w2_touch16(a, piece, junk):
    if not W2_PREFETCH:
        return
    sIDX = sMX
    a(f"v_lshlrev_b32 v3, 7, v{vLANE}")
    if piece < 6:
        a(f"""s_mul_i32 s{sT0}, s{sIDX}, 44032
        s_lshl_b32 s{sT1}, s{sRG}, 11
        s_add_u32 s{sT0}, s{sT0}, s{sT1}
        s_add_u32 s{sT0}, s{sT0}, {piece*8192}
        s_mov_b64 s[{sEX}:{sEX+1}], exec
        s_mov_b64 exec, 0xffff""")
        a.vmop(f"buffer_load_dword v{junk}, v3, s[{SWD}:{SWD+3}], s{sT0} offen", "pf")
    else:
        a(f"""s_lshl_b32 s{sT0}, s{sIDX}, 14
        s_lshl_b32 s{sT1}, s{sRG}, 11
        s_add_u32 s{sT0}, s{sT0}, s{sT1}
        s_add_u32 s{sT0}, s{sT0}, {(piece-6)*8192}
        s_mov_b64 s[{sEX}:{sEX+1}], exec
        s_mov_b64 exec, 0xffff""")
        a.vmop(f"buffer_load_dword v{junk}, v3, s[{SC}:{SC+3}], s{sT0} offen", "pf")
    a(f"s_mov_b64 exec, s[{sEX}:{sEX+1}]")


def ln_stats(a, src, row_s):
    U = vACC2
    for i in range(4):
        a(f"v_lshlrev_b32 v{U+2*i}, 16, v{src+i}\nv_and_b32 v{U+2*i+1}, 0xffff0000, v{src+i}")
    a(f"""v_add_f32 v{vT}, v{U}, v{U+1}
    v_add_f32 v{vT+1}, v{U+2}, v{U+3}
    v_add_f32 v{vT+2}, v{U+4}, v{U+5}
    v_add_f32 v{vT+4}, v{U+6}, v{U+7}
    v_add_f32 v{vT}, v{vT}, v{vT+1}
    v_add_f32 v{vT+2}, v{vT+2}, v{vT+4}
    v_add_f32 v{vT}, v{vT}, v{vT+2}""")
    wave_sum(a, vT, sT4)
    a(f"""s_nop 1
    v_mov_b32 v{vT+1}, s{sT4}
    v_mul_f32 v{vT+1}, {f2u(1.0/512)}, v{vT+1}
    v_mov_b32 v{vT}, 0""")
    for i in range(8):
        a(f"v_sub_f32 v{vT+2}, v{U+i}, v{vT+1}\nv_fmac_f32 v{vT}, v{vT+2}, v{vT+2}")
    wave_sum(a, vT, sT4)
    a(f"""s_nop 1
    v_mov_b32 v{vT+2}, s{sT4}
    v_mul_f32 v{vT+2}, {f2u(1.0/512)}, v{vT+2}""")
    rne_bf16(a, vT + 1)
    rne_bf16(a, vT + 2)
    a(f"v_add_f32 v{vT+2}, {f2u(1e-5)}, v{vT+2}")
    rne_bf16(a, vT + 2)
    a(f"v_sqrt_f32 v{vT+2}, v{vT+2}\ns_nop 0")
    rne_bf16(a, vT + 2)
    a(f"""v_mov_b32 v{U}, v{vT+1}
    v_mov_b32 v{U+1}, s{sTAG}
    v_mov_b32 v{U+2}, v{vT+2}
    v_mov_b32 v{U+3}, s{sTAG}
    s_lshl_b32 s{sT4}, s{row_s}, 4
    s_add_u32 s{sT4}, s{sT4}, {WS_STAT}
    v_mov_b32 v{vT}, 0
    s_mov_b64 s[{sEX}:{sEX+1}], exec
    s_mov_b64 exec, 1""")
    a.vmop(f"buffer_store_dwordx4 v[{U}:{U+3}], v{vT}, s[{SWS}:{SWS+3}], s{sT4} offen sc1", "stat")
    a(f"s_mov_b64 exec, s[{sEX}:{sEX+1}]")


def stream(a, ch):
    a(f"s_waitcnt lgkmcnt(0)\ns_add_u32 s{sTAG}, s{sTAG}, 1")
    if ch == 0:
        a.vm = ["st0"] * 4 + ["lnrow", "lnrow"] + [f"st{g}" for g in range(1, NPRE) for _ in range(4)] + ["par"] * 3
        a(f"""v_and_b32 v3, 31, v{vLANE}
        v_bfe_u32 v{vT}, v3, 1, 3
        v_lshrrev_b32 v{vT+1}, 5, v{vLANE}
        v_xor_b32 v{vT}, v{vT}, v{vT+1}
        v_lshlrev_b32 v3, 7, v3
        v_lshl_add_u32 v3, v{vT}, 4, v3
        v_add_u32 v{vWS}, 16384, v3
        v_xor_b32 v{vWS+1}, 32, v{vWS}
        v_xor_b32 v{vWS+2}, 64, v{vWS}
        v_xor_b32 v{vWS+3}, 96, v{vWS}""")
        waddr0 = [vWS + i for i in range(4)]
        a.vmwait("lnrow")
        pstamp(a, 4)
        a(f"""s_lshl_b32 s{sT2}, s2, 3
        s_lshl_b32 s{sT3}, s{sRG}, 1
        s_add_u32 s{sT5}, s{sT2}, s{sT3}""")
        ln_stats(a, vACC, sT5)
        a(f"s_add_u32 s{sT5}, s{sT5}, 1")
        ln_stats(a, vACC + 4, sT5)
    else:
        a.vm = [f"st{g}" for g in range(NPRE) for _ in range(4)] + ["par"] * 3
        a(f"v_add_u32 v{vWM}, 24576, v{vTRL}")
        waddr0 = [vWM]
    if W2_AT == 0 and ch == 0:
        for wch in (0, 2, 1):
            w2_touch(a, wch)
    stamp(a, 0)
    if PSTAMP:
        a(f"s_lshl_b32 s{sT0}, s2, 3\ns_add_u32 s{sT0}, s{sT0}, s{sW}\ns_lshl_b32 s{sT0}, s{sT0}, 6\ns_add_u32 s{sT0}, s{sT0}, {WS_DBG + 0x40000}")
        a("v_mov_b32 v3, 0")
        for i in range(5):
            a(f"buffer_store_dword v{232+i}, v3, s[{SWS}:{SWS+3}], s{sT0} offen offset:{4*i}")
        a.vm += ["x"] * 5
    a(f"""s_lshr_b32 s{sCSM}, s{sRB}, 3
    s_add_u32 s{sCSM}, s{sCSM}, 1
    s_cmp_eq_u32 s{sRG}, 0
    s_cselect_b32 s{sCSM}, s{sCSM}, 0""")
    for i in range(4):
        a(f"v_mov_b32 v{ONES+i}, 0x3f803f80")
    for i in range(64):
        a(f"v_mov_b32 v{vACC+i}, 0")
    xaddr = [vXA + i for i in range(4)]

    slots = []
    for g in range(8):
        for j in range(4):
            for t in range(2):
                slots.append((g, 0, j, t))
    for g in range(8, 12):
        for c2 in range(2):
            for j in range(4):
                for t in range(2):
                    slots.append((g, c2, j, t))
    NS = len(slots)
    first_of = {}
    last_of = {}
    for n, (g, c2, j, t) in enumerate(slots):
        first_of.setdefault(g, n)
        last_of[g] = n
    hi_state = {"x": 0, "w0": 0, "w1": 0}

    def set_hi(key, regs, g):
        hi = ((g % NSLOT) * SLOT) >> 16
        if hi_state[key] != hi:
            for r in regs:
                a(f"v_xor_b32 v{r}, 0x10000, v{r}")
            hi_state[key] = hi

    def frag_reg(n):
        return vFR + 4 * (n % 4)

    def issue_reads(n):
        g, c2, j, t = slots[n]
        lo = ((g % NSLOT) * SLOT) & 0xffff
        f = frag_reg(n)
        tag = f"w{n}"
        if g < 8:
            if j == 0 and t == 0:
                set_hi("x", xaddr, g)
                set_hi("w0", waddr0, g)
                for jj in range(4):
                    r = vXF + 4 * (4 * g + jj)
                    a.ldsop(f"ds_read_b128 v[{r}:{r+3}], v{vXA+jj} offset:{lo}", f"x{g}_{jj}")
            if ch == 0:
                a.ldsop(f"ds_read_b128 v[{f}:{f+3}], v{vWS+j} offset:{lo + t*4096}", tag)
            else:
                o = lo + t * 4096 + j * 1024
                a.ldsop(f"ds_read_b64_tr_b16 v[{f}:{f+1}], v{vWM} offset:{o}", tag)
                a.ldsop(f"ds_read_b64_tr_b16 v[{f+2}:{f+3}], v{vWM} offset:{o+256}", tag)
        else:
            if c2 == 0 and j == 0 and t == 0:
                set_hi("w1", [vW1], g)
            o = lo + c2 * 16384 + t * 4096 + j * 1024
            a.ldsop(f"ds_read_b64_tr_b16 v[{f}:{f+1}], v{vW1} offset:{o}", tag)
            a.ldsop(f"ds_read_b64_tr_b16 v[{f+2}:{f+3}], v{vW1} offset:{o+256}", tag)

    def mfma(n):
        g, c2, j, t = slots[n]
        f = frag_reg(n)
        if g < 8:
            xf = vXF + 4 * (4 * g + j)
            acc = vACC + 16 * t
            a.lgwait(f"x{g}_{j}")
        else:
            xf = vXF + 4 * (4 * (2 * (g - 8) + c2) + j)
            acc = vACC2 + 16 * t
        a.lgwait(f"w{n}")
        if ch == 0 and g < 8:
            a(f"v_mfma_f32_32x32x16_bf16 v[{acc}:{acc+15}], v[{xf}:{xf+3}], v[{f}:{f+3}], v[{acc}:{acc+15}]")
        else:
            a(f"v_mfma_f32_32x32x16_bf16 v[{acc}:{acc+15}], v[{f}:{f+3}], v[{xf}:{xf+3}], v[{acc}:{acc+15}]")

    def colsum_at(n):
        g, c2, j, t = slots[n]
        if (g == 0) or (g == 8 and c2 == 1):
            acc = CSACC if g == 0 else CS1ACC
            lab = a.newlab("CSK")
            f = frag_reg(n)
            c = "0" if j == 0 else f"v[{acc}:{acc+15}]"
            a(f"""s_cmp_eq_u32 s{sCSM}, {t+1}
            s_cbranch_scc0 {lab}
            v_mfma_f32_32x32x16_bf16 v[{acc}:{acc+15}], v[{ONES}:{ONES+3}], v[{f}:{f+3}], {c}""")
            a.label(lab)

    dmaq = []

    def stage_barrier(g):
        if ch == 0 and g == 7:
            gather_finish(a, 0, GATH0, a.nvm - marks["g0"], 3)
            for i in range(16):
                a(f"v_mov_b32 v{GATH0+i}, 0")
        if g == 10 and ch == 1:
            a.vmwait("u0")
            write_flag(a, 0, ch)
        a.vmwait(f"st{g+1}")
        a("s_barrier")
        if ch == 0 and g in (8, 9) and marks.get("edone") and not marks.get("published"):
            a.fill_all(); s_publish(a); a.lg = []
            marks["published"] = True
        nxt = g + 3
        if E("X_NODMA", 0):
            pass
        elif nxt < 8:
            dmaq.extend(dma_p0(nxt, ch))
        elif nxt < 12:
            dmaq.extend(dma_p1(nxt - 8, ch))
        if g == 9:
            dmaq.extend(p2_B(0)); dmaq.extend(p2_B(1))
        if g == 10:
            dmaq.extend(p2_B(2)); dmaq.extend(p2_B(3))

    marks = {}
    if (PRIO == 2 and ch == 1) or (PRIO == 3 and ch == 0):
        a("s_setprio 1")
    a.vmwait("st0")
    a("s_barrier")
    stamp(a, 1)
    for s_ in range(NPRE, 3):
        dmaq.extend(dma_p0(s_, ch))
    for n in range(LOOK):
        issue_reads(n)
    for n in range(NS):
        g, c2, j, t = slots[n]
        mfma(n)
        colsum_at(n)
        nn = n + LOOK
        if nn < NS:
            if slots[nn][0] != slots[nn - 1][0]:
                stage_barrier(slots[nn - 1][0])
            issue_reads(nn)
        every = (PACE0 if g < 8 else PACE1)
        npop = 2 if len(dmaq) > 4 else (1 if (n % every == 0) else 0)
        for _ in range(DMA_RATE if DMA_RATE else npop):
            if dmaq:
                code, tag = dmaq.pop(0)
                a.vmop(code, tag)
        if g >= 8:
            a.fill(FILL0 if ch == 0 else FILL)
        elif g >= 3:
            a.fill(3)
        if W2_AT == 4 and g >= W2_G0 and (n - first_of[g]) in (W2_P1, W2_P2):
            k = 2 * (g - W2_G0) + (0 if (n - first_of[g]) == W2_P1 else 1)
            if ch == 1 and k < 8:
                w2_touch16(a, k, vDS)
            if ch == 0 and k in (1, 3):
                w2_touch16(a, 6 + (k // 2), vDX0)
        if n == last_of[g]:
            if P1DBG == 4 and g < 9:
                a(f"s_memtime s[{STAMP0+2*(5+g)}:{STAMP0+2*(5+g)+1}]")
            if P1DBG == 5 and g >= 7:
                a(f"s_memtime s[{STAMP0+2*(g-2)}:{STAMP0+2*(g-2)+1}]")
            if P1DBG == 1 and g in (8, 9, 10):
                stamp(a, {8: 9, 9: 13, 10: 6}[g], force=True)
            if P1DBG == 2 and g in (1, 3, 5):
                stamp(a, {1: 9, 3: 13, 5: 6}[g], force=True)
            if g == 0:
                colsum_store(a, CSACC, ch)
                a("s_nop 7")
                for i in range(16):
                    a(f"v_mov_b32 v{CSACC+i}, 0")
            if W2_AT == 1 and ch == 0 and g in (3, 4, 8):
                w2_touch(a, {3: 0, 4: 2, 8: 1}[g])
            if W2_AT == 3 and ch == 1 and W2_G0 <= g < W2_G0 + 8:
                w2_touch16(a, g - W2_G0, vDS)
            if W2_AT == 3 and ch == 0 and g in (W2_G0 + 1, W2_G0 + 3):
                w2_touch16(a, 6 + (g - W2_G0) // 2, vDX0)
            if W2_AT == 2 and ch == 1 and g == 9:
                for wch in (0, 2, 1):
                    w2_touch(a, wch, junk=vDS)
            if g == 2 and ch == 0:
                a.vmwait("par")
                q = Q()
                s_params(q)
                a.fillq = q.q
            if g == 5 and ch == 0:
                gather_loads(a, 0, GATH0, 3, tracked=True)
                marks["g0"] = a.nvm
            if g == 7:
                a.fill_all()
                stamp(a, 2)
                if PRIO == 1 and ch == 0:
                    a("s_setprio 1")
                q = Q()
                if ch == 1:
                    q(f"""s_lshl_b32 s{sT5}, s{sCG}, 11
                    s_add_u32 s{sT5}, s{sT5}, s{sHPOS}""")
                    row_stats_M(q, vT)
                    gelu_epi(q, vACC, sT5, 64 * 4, "u0", 4, vT)
                else:
                    s_epilogue1(q)
                    q.q.append(("call", lambda: marks.__setitem__("edone", True)))
                a.fillq = q.q
            if g == 8:
                colsum_store(a, CS1ACC, 2 + ch, koff=1)
            if g == 9:
                a.fill_all()
                stamp(a, 3)
            if g == 10 and ch == 0:
                lookback_loads(a)
                a(f"""s_lshl_b32 s{sT5}, s{sCG}, 12
                s_add_u32 s{sMU}, s{sHPOS}, s{sT5}
                s_add_u32 s{sMU}, s{sMU}, {86*1024}""")
            if g == 10 and ch == 0 and not marks.get("published"):
                s_publish(a); a.lg = []
            if g == 10 and ch == 1:
                gather_loads(a, 1, GATH1, 3, tracked=True)
                marks["g1"] = a.nvm
    stamp(a, 4)
    while dmaq:
        code, tag = dmaq.pop(0)
        a.vmop(code, tag)
    a.fill_all()
    if ch == 0:
        q = Q()
        s_work_atoms(a, q)
        a.fillq = q.q
        a.fill_all()
        stamp(a, 6)
    else:
        gather_finish(a, 1, GATH1, a.nvm - marks["g1"], 3)
        poll_flags(a, 0, tracked=True)
        for st in range(4):
            for code, tag in p2_A(st):
                a.vmop(code, tag)
    a("s_barrier")
    stamp(a, 5)
    if ch == 0:
        for st in range(4):
            for code, tag in p2_A(st):
                a.vmop(code, tag)
    if ch == 1:
        lab = a.newlab("U2S")
        stamp(a, 6)
        a(f"""s_cmp_ge_u32 s{sCG}, 11
        s_cbranch_scc1 {lab}
        s_lshl_b32 s{sT5}, s{sCG}, 11
        s_add_u32 s{sT5}, s{sT5}, s{sHPOS}
        s_add_u32 s{sT5}, s{sT5}, {64*1024}""")
        gelu_epi(a, vACC2, sT5, 192 * 4, "u12", 48, vT, maybe=True)
        a.label(lab)
        a.lg = []
        marks["u12"] = a.nvm
        for st in range(4, 8):
            for code, tag in p2_B(st):
                a.vmop(code, tag)
        a(f"s_waitcnt vmcnt({a.nvm - marks['u12']})")
        write_flag(a, 1, 1)
        stamp(a, 8)
    else:
        a(f"""s_lshl_b32 s{sT5}, s{sCG}, 11
        s_add_u32 s{sT5}, s{sT5}, s{sHPOS}
        s_add_u32 s{sT5}, s{sT5}, {32*1024}""")
        a(f"""s_lshl_b32 s{sT5}, s{sCG}, 11
        s_add_u32 s{sT5}, s{sT5}, s{sHPOS}
        s_add_u32 s{sT5}, s{sT5}, {32*1024}""")
        gelu_epi(a, vACC2, sT5, 128 * 4, "u12", 48, vT)
        for st in range(4, 8):
            for code, tag in p2_B(st):
                a.vmop(code, tag)
        a.vmwait("h")
        write_flag(a, 2, 0)
        stamp(a, 8)
    a.marks = marks
    phase2(a, ch)


def phase2(a, ch):
    rt = ch
    vB0, vB1, vC0, vC1, vXO, vSO, vDO = 4, 5, 6, 7, 9, 11, 12
    vDK = 8
    vBF = 176
    vAC = 208
    vEX = 96
    a(f"""v_lshrrev_b32 v{vT}, 5, v{vLANE}
    v_lshlrev_b32 v{vT}, 2, v{vT}
    v_bfe_u32 v3, v{vLANE}, 2, 2
    v_add_u32 v{vT}, v{vT}, v3
    v_lshlrev_b32 v{vT}, 7, v{vT}
    v_bfe_u32 v3, v{vLANE}, 3, 1
    v_lshl_add_u32 v{vT}, v3, 6, v{vT}
    v_bfe_u32 v3, v{vLANE}, 4, 1
    v_lshl_add_u32 v{vT}, v3, 5, v{vT}
    v_and_b32 v3, 3, v{vLANE}
    v_lshl_add_u32 v{vT}, v3, 3, v{vT}
    s_lshl_b32 s{sT0}, s{sRG}, 12
    v_add_u32 v{vB0}, s{sT0}, v{vT}
    v_xor_b32 v{vB1}, 64, v{vB0}
    v_and_b32 v{vT}, 31, v{vLANE}
    v_bfe_u32 v3, v{vT}, 1, 3
    v_lshrrev_b32 v{vT+1}, 5, v{vLANE}
    s_lshr_b32 s{sT0}, s{sRG}, 1
    s_lshl_b32 s{sT0}, s{sT0}, 2
    v_add_u32 v{vT+1}, s{sT0}, v{vT+1}
    v_xor_b32 v3, v3, v{vT+1}
    v_lshlrev_b32 v{vT}, 7, v{vT}
    v_lshl_add_u32 v{vT}, v3, 4, v{vT}
    s_and_b32 s{sT0}, s{sRG}, 1
    s_lshl_b32 s{sT0}, s{sT0}, 13
    v_add_u32 v{vC0}, s{sT0}, v{vT}
    v_xor_b32 v{vC1}, 32, v{vC0}
    v_lshrrev_b32 v{vT}, 5, v{vLANE}
    v_lshlrev_b32 v{vT}, 4, v{vT}
    s_lshl_b32 s{sT0}, s{sRB2}, 6
    s_lshl_b32 s{sT1}, s{sRG}, 2
    s_add_u32 s{sT0}, s{sT0}, s{sT1}
    s_add_u32 s{sT0}, s{sT0}, {32*rt}
    v_add_u32 v{vT}, s{sT0}, v{vT}
    v_lshlrev_b32 v{vSO}, 4, v{vT}
    v_lshlrev_b32 v{vT}, 9, v{vT}
    v_and_b32 v3, 31, v{vLANE}
    s_lshl_b32 s{sT0}, s{sCB}, 6
    v_add_u32 v3, s{sT0}, v3
    v_add_u32 v{vT}, v{vT}, v3
    v_lshlrev_b32 v{vXO}, 1, v{vT}
    v_lshlrev_b32 v{vDO}, 1, v3""")

    def epi_loads():
        a.vmop(f"buffer_load_ushort v{vDK}, v{vDO}, s[{ST}:{ST+3}], 0 offen", "epi")
        a.vmop(f"buffer_load_ushort v{vDK+2}, v{vDO}, s[{ST}:{ST+3}], 0 offen offset:64", "epi")
        for ct in range(2):
            for i in range(4):
                a.vmop(f"buffer_load_ushort v{vEX+4*ct+i}, v{vXO}, s[{SX}:{SX+3}], 0 offen offset:{i*1024 + ct*64}", "epi")
        a(f"s_mov_b32 s{sT0}, {WS_STAT}")
        for i in range(4):
            a.vmop(f"buffer_load_dword v{vEX+8+i}, v{vSO}, s[{SWS}:{SWS+3}], s{sT0} offen offset:{i*16} sc1", "epi")
            a.vmop(f"buffer_load_dword v{vEX+12+i}, v{vSO}, s[{SWS}:{SWS+3}], s{sT0} offen offset:{i*16+8} sc1", "epi")
    def skip_term():
        a.vmwait("epi")
        D0, D1 = vDK, vDK + 2
        X = vEX; M_ = vEX + 8; S_ = vEX + 12; Y = vEX + 16
        a(f"v_lshlrev_b32 v{D0}, 16, v{D0}\nv_lshlrev_b32 v{D1}, 16, v{D1}\nv_lshlrev_b32 v{vXO}, 1, v{vXO}")
        for i in range(4):
            a(f"v_rcp_f32 v{S_+i}, v{S_+i}")
        for k in range(8):
            a(f"v_lshlrev_b32 v{X+k}, 16, v{X+k}")
        for k in range(8):
            a(f"v_sub_f32 v{Y+k}, v{X+k}, v{M_+(k&3)}")

        def rnd():
            for k in range(0, 8, 2):
                a(f"v_cvt_pk_bf16_f32 v{vT+1}, v{Y+k}, v{Y+k+1}")
                a(f"v_lshlrev_b32 v{Y+k}, 16, v{vT+1}\nv_and_b32 v{Y+k+1}, 0xffff0000, v{vT+1}")
        rnd()
        for k in range(8):
            a(f"v_mul_f32 v{Y+k}, v{Y+k}, v{S_+(k&3)}")
        rnd()
        for k in range(8):
            a(f"v_mul_f32 v{Y+k}, v{Y+k}, v{D0 if k < 4 else D1}")
        rnd()
        for k in range(8):
            a(f"v_add_f32 v{Y+k}, v{Y+k}, v{X+k}")

    for i in range(32):
        a(f"v_mov_b32 v{vAC+i}, 0")
    hi2 = {"v": 0}

    def p2_reads(st, n):
        slot = (st % 8) * 16384
        hi, lo = slot >> 16, slot & 0xffff
        if n == 0 and hi != hi2["v"]:
            for r in (vB0, vB1, vC0, vC1):
                a(f"v_xor_b32 v{r}, 0x10000, v{r}")
            hi2["v"] = hi
        s_, ct = n >> 1, n & 1
        f = vBF + 16 * (st % 2) + 4 * n
        tag = f"r{st}_{n}"
        if ORDER[st][0] == "M":
            vb = vB0 if ct == 0 else vB1
            a.ldsop(f"ds_read_b64_tr_b16 v[{f}:{f+1}], v{vb} offset:{lo + s_*2048}", tag)
            a.ldsop(f"ds_read_b64_tr_b16 v[{f+2}:{f+3}], v{vb} offset:{lo + s_*2048 + 1024}", tag)
        else:
            a.ldsop(f"ds_read_b128 v[{f}:{f+3}], v{vC0+s_} offset:{lo + ct*4096}", tag)

    def p2_barrier(st):
        a.vmwait(f"B{st}")
        a("s_barrier")

    p2_barrier(0)
    stamp(a, 7)
    for n in range(4):
        p2_reads(0, n)
    dq = []
    a_next = 4
    allowed = 3
    for st in range(NST2):
        if st == 4:
            stamp(a, 9)
        if st == 11:
            stamp(a, 13)
        if st + 1 < NST2:
            if ch == 0:
                if st + 1 == H_ST:
                    a.vmwait("u12")
                    write_flag(a, 1, 0)
                if st + 1 == E2_ST:
                    poll_flags(a, 2, tracked=True)
                if st + 1 == E1_ST:
                    poll_flags(a, 1, tracked=True)
            p2_barrier(st + 1)
            if st + 1 == E2_ST:
                allowed = 11
            if st + 1 == E1_ST:
                allowed = NST2 - 1
            while a_next <= min(allowed, st + NA - 1, NST2 - 1):
                dq.extend(p2_A(a_next)); a_next += 1
            if st >= 1 and st + 7 < NST2:
                dq.extend(p2_B(st + 7))
        g = sum(1 for x in dq if x[1] == f"A{st}")
        while any(x[1] == f"A{st}" for x in dq):
            code, tag = dq.pop(0); a.vmop(code, tag)
        a.vmwait(f"A{st}")
        per = (len(dq) + 3) // 4
        for n in range(4):
            s_, ct = n >> 1, n & 1
            f = vBF + 16 * (st % 2) + 4 * n
            ar = ARING[st % NA] + 4 * s_
            ac = vAC + 16 * ct
            a.lgwait(f"r{st}_{n}")
            a(f"v_mfma_f32_32x32x16_bf16 v[{ac}:{ac+15}], v[{ar}:{ar+3}], v[{f}:{f+3}], v[{ac}:{ac+15}]")
            if st + 1 < NST2:
                p2_reads(st + 1, n)
            for _ in range(per):
                if dq:
                    code, tag = dq.pop(0)
                    a.vmop(code, tag)
        if st == 3:
            epi_loads()
        if st == SKIP_ST:
            skip_term()
    stamp(a, 10)
    a(f"""s_nop 15
    s_barrier
    s_lshl_b32 s{sT0}, s{sRG}, 11
    v_lshlrev_b32 v{vT}, 4, v{vLANE}
    v_add_u32 v{vT+1}, s{sT0}, v{vT}
    v_add_u32 v{vT+1}, {rt*32768}, v{vT+1}""")
    for q in range(4):
        for ct in range(2):
            r = vAC + 16 * ct + 4 * q
            a(f"ds_write_b128 v{vT+1}, v[{r}:{r+3}] offset:{q*8192 + ct*1024}")
    a(f"""s_lshl_b32 s{sT0}, s{sRG}, 13
    v_add_u32 v{vT+1}, s{sT0}, v{vT}
    v_add_u32 v{vT+1}, {rt*32768}, v{vT+1}
    s_waitcnt lgkmcnt(0)
    s_barrier""")
    R = vAR
    Y = vEX + 16
    for src in range(4):
        for ct in range(2):
            r = R + 8 * src + 4 * ct
            a(f"ds_read_b128 v[{r}:{r+3}], v{vT+1} offset:{src*2048 + ct*1024}")
    a("s_waitcnt lgkmcnt(0)")
    for k in range(8):
        a(f"v_add_f32 v{R+k}, v{R+k}, v{R+8+k}")
        a(f"v_add_f32 v{R+16+k}, v{R+16+k}, v{R+24+k}")
    for k in range(8):
        a(f"v_add_f32 v{R+k}, v{R+k}, v{R+16+k}")
    for k in range(8):
        a(f"v_add_f32 v{R+k}, v{R+k}, v{Y+k}")
    for ct in range(2):
        for i in range(4):
            ro = i * 2048 + ct * 128
            so, io = (ro // 4096) * 4096, ro % 4096
            a(f"s_mov_b32 s{sT0}, {so}")
            a(f"buffer_store_dword v{R+4*ct+i}, v{vXO}, s[{SO}:{SO+3}], s{sT0} offen offset:{io} {OUTF}")
    if ch == 0:
        lab = a.newlab("EP")
        a(f"""s_cmp_eq_u32 s{sRB2}, 31
        s_cbranch_scc0 {lab}
        s_cmp_eq_u32 s{sCB}, 0
        s_cbranch_scc0 {lab}
        s_cmp_eq_u32 s{sW}, 0
        s_cbranch_scc0 {lab}
        v_mov_b32 v4, s{sTAG}
        v_mov_b32 v3, 0
        s_mov_b32 s{sT0}, {WS_EPOCH}
        s_mov_b64 exec, 1
        buffer_store_dword v4, v3, s[{SWS}:{SWS+3}], s{sT0} offen sc1
        s_mov_b64 exec, -1""")
        a.label(lab)
    stamp(a, 11)
    if STAMPS:
        a("s_waitcnt vmcnt(0)")
        stamp(a, 12)
    stamp_flush(a, 14)
    a("s_endpgm")


if __name__ == "__main__":
    main(sys.argv[1] if len(sys.argv) > 1 else "cdna_kernels/" + NAME + ".s")
```

```python
import sys, math, struct, os

NAME = "parallel_sum__ssm_conv_s5__glu_gated_geglu__prompt"
KNAME = NAME + "_kernel"

E = lambda k, d: int(os.environ.get(k, str(d)))
STAMPS = E("STAMPS", 0)
SPIN_MAX = E("SPIN_MAX", 200000)
CODE_PREFETCH = E("CODE_PREFETCH", 1)
W2_PREFETCH = E("W2_PREFETCH", 1)
FILL = E("FILL", 7)
FILL0 = E("FILL0", 14)
SW_DELAY = E("SW_DELAY", 8)
NPRE = E("NPRE", 2)
SKIP_ST = E("SKIP_ST", 13)
OUTF = os.environ.get("OUTF", "sc0 sc1")
V17 = E("V17", 1)
DMA_RATE = E("DMA_RATE", 0)
PACE0 = E("PACE0", 2)
PACE1 = E("PACE1", 3)
PRIO = E("PRIO", 0)
W2_AT = E("W2_AT", 4)
W2_G0 = E("W2_G0", 8)
W2_P1 = E("W2_P1", 2)
W2_P2 = E("W2_P2", 9)
LOOK = E("LOOK", 3)
A_TOUCH = E("A_TOUCH", 0)
E2_ST = E("E2_ST", 3)
E1_ST = E("E1_ST", 6)
H_ST = E("H_ST", 2)
E1_PRE = E("E1_PRE", 4)
A_PACE = E("A_PACE", 1)
X_NOMFMA = E("X_NOMFMA", 0)
X_NOREAD = E("X_NOREAD", 0)

NKS = 150
RT_STRIDE = NKS * 1024
WS_AGG = 0xA00000
WS_STAT = 0xA40000
WS_CS = 0xA80000
WS_FLG = 0xB00000
WS_EPOCH = 0xB10000
WS_DUMMY = 0xB20000
WS_DBG = 0xF00000
WS_SIZE = 0x10000000

LOG2E = 1.4426950408889634
SLOT = 32768
NSLOT = 4
SCR = NSLOT * SLOT
SCR_T = SCR
SCR_CS = 16384
SCR_ST = 17408
SCR_ES = 18432
SCR_RV = 20480
LDS_BYTES = 163840
NST2 = 19
NBS, NAS = 3, 5
B_BASE, A_BASE = 0, 49152


def f2u(x):
    return struct.unpack("<I", struct.pack("<f", x))[0]


class A:
    def __init__(self):
        self.l = []
        self.nlab = 0
        self.vm = []
        self.nvm = 0
        self.lg = []
        self.fillq = []

    def __call__(self, s):
        for line in s.strip("\n").split("\n"):
            line = line.strip()
            if not line:
                continue
            if X_NOMFMA and line.startswith("v_mfma"):
                continue
            self.l.append("  " + line)

    def label(self, name):
        self.l.append(name + ":")

    def newlab(self, p="L"):
        self.nlab += 1
        return f"{p}_{self.nlab}"

    def vmop(self, s, tag, maybe=False):
        self(s)
        if not maybe:
            self.vm.append(tag)
            self.nvm += 1

    def vmwait(self, tag):
        idx = [i for i, t in enumerate(self.vm) if t == tag]
        if not idx:
            return
        n = len(self.vm) - 1 - idx[-1]
        assert n <= 63, n
        self(f"s_waitcnt vmcnt({n})")
        self.vm = self.vm[idx[-1] + 1:]

    def vmwait_all(self):
        self("s_waitcnt vmcnt(0)")
        self.vm = []

    def ldsop(self, s, tag):
        if X_NOREAD and tag[0] in "xwr":
            return
        self(s)
        self.lg.append(tag)
        assert len(self.lg) <= 30

    def lgwait(self, tag):
        idx = [i for i, t in enumerate(self.lg) if t == tag]
        if not idx:
            return
        n = len(self.lg) - 1 - idx[-1]
        n = min(n, 15)
        self(f"s_waitcnt lgkmcnt({n})")
        self.lg = self.lg[len(self.lg) - n:] if n else []

    def lgwait_all(self):
        self("s_waitcnt lgkmcnt(0)")
        self.lg = []

    def fill(self, n):
        if E("X_NOFILL", 0):
            self.fillq = [at for at in self.fillq if at[0] in ("vm",) or (at[0] == "call" and False)]
        while n > 0 and self.fillq:
            at = self.fillq.pop(0)
            k = at[0]
            if k == "v":
                self(at[1]); n -= 1
            elif k == "lds":
                self.ldsop(at[1], at[2]); n -= 1
            elif k == "lgw":
                self.lgwait(at[1])
            elif k == "vm":
                self.vmop(at[1], at[2], at[3]); n -= 1
            elif k == "call":
                at[1]()
            elif k == "calln":
                at[1](); n -= at[2]

    def fill_all(self):
        self.fill(10 ** 9)

    def text(self):
        return "\n".join(self.l) + "\n"


class Q:
    def __init__(self):
        self.q = []

    def __call__(self, s):
        for line in s.strip("\n").split("\n"):
            line = line.strip()
            if line:
                self.q.append(("v", line))

    def ldsop(self, s, tag):
        self.q.append(("lds", s, tag))

    def lgwait(self, tag):
        self.q.append(("lgw", tag))

    def vmop(self, s, tag, maybe=False):
        self.q.append(("vm", s, tag, maybe))


def srd(a, s, ptr_lo, nbytes):
    a(f"""s_mov_b32 s{s}, s{ptr_lo}
    s_and_b32 s{s+1}, s{ptr_lo+1}, 0xffff
    s_mov_b32 s{s+2}, {nbytes}
    s_mov_b32 s{s+3}, 0x20000""")


def rne_bf16(a, v):
    a(f"v_cvt_pk_bf16_f32 v{v}, v{v}, v{v}\nv_lshlrev_b32 v{v}, 16, v{v}")


def wave_sum(a, v, tmp_s):
    for ctrl in ("row_shr:1", "row_shr:2", "row_shr:4", "row_shr:8"):
        a(f"s_nop 1\nv_add_f32_dpp v{v}, v{v}, v{v} {ctrl} row_mask:0xf bank_mask:0xf")
    a(f"s_nop 1\nv_add_f32_dpp v{v}, v{v}, v{v} row_bcast:15 row_mask:0xa bank_mask:0xf")
    a(f"s_nop 1\nv_add_f32_dpp v{v}, v{v}, v{v} row_bcast:31 row_mask:0xc bank_mask:0xf")
    a(f"s_nop 1\nv_readlane_b32 s{tmp_s}, v{v}, 63")


SX, SS, SM, SWS, SWD, SC, SO, ST = 4, 8, 12, 16, 20, 24, 28, 32
sW, sRG, sRB, sCG = 36, 37, 38, 39
sKC0, sU0B, sDUM, sTAG = 72, 73, 74, 75
sT0, sT1, sT2, sT3, sT4, sT5 = 76, 77, 78, 79, 80, 81
sMX, sMS, sMU, sM1 = 82, 83, 84, 85
sCSM = 86
sRB2, sCB, sRT, sCT = 87, 88, 89, 90
sSPIN = 91
sEX = 92
sMASK = 94
sAOFF, sLW, s3RG, s2RG = 96, 97, 98, 99
sXB, sHPOS = 100, 101
SM2 = 68
STAMP0 = 40
P_X, P_LRE, P_LIM, P_BRE, P_BIM, P_CRE, P_CIM, P_LDT = 40, 42, 44, 46, 48, 50, 52, 54
P_DSK, P_BX, P_WG, P_WU, P_WD, P_OUT, P_DBG, P_WS = 56, 58, 60, 62, 64, 66, 68, 70

vLANE = 1
vXA = 4
vWS = 8
vWM = 8
vW1 = 12
vDX0, vDX1, vDS, vDM = 13, 14, 15, 16
vDS1 = 47
vT = 17
ONES = 28
vAr, vAi, vKr, vKi, vA16r, vA16i, vA128r, vA128i = 32, 33, 34, 35, 36, 37, 38, 39
vRINV, vNM = 40, 41
vDA, vDB, vDC0, vDC1 = 42, 43, 44, 45
vK1, vCA = 46, 47
vFR = 48
vACC = 64
vACC2 = 96
vXF = 128
CSACC = 96
GATH0 = 112
CS1ACC = 128
GATH1 = 144
JUNK = 255


PSTAMP = E("PSTAMP", 0)


def pstamp(a, i):
    if PSTAMP:
        a(f"s_memrealtime s[{sEX}:{sEX+1}]\ns_waitcnt lgkmcnt(0)\nv_mov_b32 v{232+i}, s{sEX}")


DBGD = E("DBGD", -1)


P1DBG = E("P1DBG", 0)


def stamp(a, i, force=False):
    if STAMPS and P1DBG == 6:
        if i == 0:
            a(f"s_mov_b32 s{STAMP0+6}, s{sMASK}\ns_mov_b32 s{STAMP0+7}, s{sMASK+1}")
        return
    if STAMPS and P1DBG in (4, 5) and i >= 4:
        if i == 4 and False:
            pass
        return
    if STAMPS and P1DBG in (4, 5) and i == 1:
        a(f"s_memtime s[{STAMP0+2*4}:{STAMP0+2*4+1}]")
    if STAMPS and P1DBG == 3 and i in (1, 2, 4):
        j = {1: 9, 2: 13, 4: 6}[i]
        a(f"s_memtime s[{STAMP0+2*j}:{STAMP0+2*j+1}]")
    if STAMPS:
        if i == 3:
            return
        if P1DBG and i in (6, 9, 13) and not force:
            return
        a(f"s_memrealtime s[{STAMP0+2*i}:{STAMP0+2*i+1}]")
        if i == 0:
            a(f"s_mov_b32 s{STAMP0+6}, s{sMASK}\ns_mov_b32 s{STAMP0+7}, s{sMASK+1}")


def stamp_flush(a, n):
    if not STAMPS:
        return
    a("s_waitcnt lgkmcnt(0)")
    a(f"s_lshl_b32 s{sT0}, s2, 3\ns_add_u32 s{sT0}, s{sT0}, s{sW}\ns_lshl_b32 s{sT0}, s{sT0}, 6\ns_add_u32 s{sT0}, s{sT0}, {WS_DBG}")
    a("v_mov_b32 v3, 0")
    for i in range(n):
        a(f"v_mov_b32 v2, s{STAMP0+2*i}")
        a(f"buffer_store_dword v2, v3, s[{SWS}:{SWS+3}], s{sT0} offen offset:{4*i}")
    if DBGD >= 0:
        lab = a.newlab("DD")
        a(f"""s_cmp_eq_u32 s2, {DBGD}
        s_cbranch_scc0 {lab}
        s_cmp_eq_u32 s{sW}, {E("DBGW", 0)}
        s_cbranch_scc0 {lab}
        s_load_dwordx2 s[{sT2}:{sT3}], s[0:1], 112
        s_waitcnt lgkmcnt(0)
        s_mov_b32 s{ST}, s{sT2}
        s_and_b32 s{ST+1}, s{sT3}, 0xffff
        s_mov_b32 s{ST+2}, 256
        s_mov_b32 s{ST+3}, 0x20000
        v_mov_b32 v3, 0""")
        for i in range(n):
            a(f"v_mov_b32 v2, s{STAMP0+2*i}")
            a(f"buffer_store_dword v2, v3, s[{ST}:{ST+3}], 0 offen offset:{4*i}")
        a.label(lab)


def dma_p0(s, ch):
    slot = (s % NSLOT) * SLOT
    it = []
    if ch == 1:
        pre = f"""s_add_u32 s{sT0}, s{sKC0}, {s}
        s_and_b32 s{sT0}, s{sT0}, 7
        s_lshl_b32 s{sT3}, s{sT0}, 7
        s_add_u32 s{sT4}, s{sT3}, 16384
        """
        for i in range(4):
            vd = vDX0 if i % 2 == 0 else vDX1
            so = sT3 if i < 2 else sT4
            it.append(((pre if i == 0 else "") + f"""s_add_u32 m0, s{sLW}, {slot + i*1024}
            s_nop 0
            buffer_load_dwordx4 v{vd}, s[{SX}:{SX+3}], s{so} offen lds""", f"st{s}"))
    else:
        pre = f"""s_add_u32 s{sT0}, s{sKC0}, {s}
        s_and_b32 s{sT0}, s{sT0}, 7
        s_lshl_b32 s{sT3}, s{sT0}, 7
        s_mul_i32 s{sT2}, s{sT0}, {64*2752}
        s_add_u32 s{sT2}, s{sT2}, s{sU0B}
        """
        for i in range(2):
            vd = vDS if i == 0 else vDS1
            it.append(((pre if i == 0 else "") + f"""s_add_u32 m0, s{sMS}, {slot + i*1024}
            s_nop 0
            buffer_load_dwordx4 v{vd}, s[{SS}:{SS+3}], s{sT3} offen lds""", f"st{s}"))
        for mat in range(2):
            sr = SM if mat == 0 else SM2
            it.append((f"""s_add_u32 m0, s{sM1}, {slot + 24576 + mat*4096}
            s_nop 0
            buffer_load_dwordx4 v{vDM}, s[{sr}:{sr+3}], s{sT2} offen lds""", f"st{s}"))
    return it


def dma_p1(t, ch):
    g = 8 + t
    slot = (g % NSLOT) * SLOT
    it = []
    c2 = ch
    pre = f"""s_add_u32 s{sT0}, s{sKC0}, {2*t+c2}
    s_and_b32 s{sT0}, s{sT0}, 7
    s_mul_i32 s{sT2}, s{sT0}, {64*2752}
    s_add_u32 s{sT2}, s{sT2}, s{sU0B}
    s_add_u32 s{sT2}, s{sT2}, 64
    s_add_u32 s{sT3}, s{sT2}, s{sDUM}
    """
    for mat in range(2):
        sr = SM if mat == 0 else SM2
        for j in range(2):
            so = sT2 if j == 0 else sT3
            it.append(((pre if (mat == 0 and j == 0) else "") + f"""s_add_u32 m0, s{sM1}, {slot + c2*16384 + j*8192 + mat*4096}
            s_nop 0
            buffer_load_dwordx4 v{vDM}, s[{sr}:{sr+3}], s{so} offen lds""", f"st{g}"))
    return it


ORDER = [("M", i) for i in range(4)] + [("S", j) for j in range(8)] + [("M", i) for i in range(4, 11)]


NA = E("NA", 10)
vAR = 128
ARING = [128, 136, 144, 152, 160, 168, 64, 72, 80, 88]
vAG = 42


def p2_A(st):
    kind, ix = ORDER[st]
    ks0 = 8 * ix if kind == "M" else 86 + 8 * ix
    r = ARING[st % NA]
    it = []
    if (kind, ix) == ("M", 10):
        first = f"""s_mov_b32 s{sT1}, {ks0*1024}
        s_cmp_eq_u32 s{sRG}, 3
        s_cselect_b32 s{sT1}, {(ks0-2)*1024}, s{sT1}"""
    else:
        first = f"s_mov_b32 s{sT1}, {ks0*1024}"
    it.append((first + f"""
    buffer_load_dwordx4 v[{r}:{r+3}], v{vDA}, s[{SWS}:{SWS+3}], s{sT1} offen sc1""", f"A{st}"))
    it.append((f"""buffer_load_dwordx4 v[{r+4}:{r+7}], v{vDA}, s[{SWS}:{SWS+3}], s{sT1} offen offset:1024 sc1""", f"A{st}"))
    return it


def p2_B(st):
    slot = (st % 8) * 16384
    kind, ix = ORDER[st]
    it = []
    if kind == "M":
        if ix < 3:
            reg, c = s3RG, 3 * 4 * ix
        elif ix == 3:
            reg, c = s2RG, 2 * 12 + 11
        elif ix < 7:
            reg, c = s3RG, 3 * 4 * (ix - 4) + 1
        elif ix == 7:
            reg, c = s2RG, 2 * 12 + 11 + 1
        elif ix < 10:
            reg, c = s3RG, 3 * 4 * (ix - 8) + 2
        else:
            reg, c = sAOFF, 3 * 4 * (ix - 8) + 2
        for i in range(2):
            it.append((f"""s_add_u32 s{sT1}, s{reg}, {c*32768 + i*8192}
            s_add_u32 m0, s{sRT}, {slot + i*1024}
            s_nop 0
            buffer_load_dwordx4 v{vDB}, s[{SWD}:{SWD+3}], s{sT1} offen lds""", f"B{st}"))
    else:
        j = ix
        for i in range(2):
            vd = vDC0 if i % 2 == 0 else vDC1
            it.append((f"""s_add_u32 s{sT1}, s{sXB}, {j*128 + i*8192}
            s_add_u32 m0, s{sRT}, {slot + i*1024}
            s_nop 0
            buffer_load_dwordx4 v{vd}, s[{SC}:{SC+3}], s{sT1} offen lds""", f"B{st}"))
    return it


def main(out_path):
    a = A()
    gen(a)
    ref = open("cdna_kernels/" + NAME + ".s.ref").read()
    head = []
    for line in ref.splitlines():
        if line.startswith(";") and "@launch" not in line and "Override" not in line and "grid=ceil" not in line:
            head.append(line)
        elif not line.startswith(";"):
            break
    txt = "\n".join(head) + "\n"
    txt += f"; @launch grid=(256,1,1) block=(512,1,1) lds={LDS_BYTES}\n"
    txt += '.amdgcn_target "amdgcn-amd-amdhsa--gfx950"\n.text\n'
    txt += f".globl {KNAME}\n.p2align 8\n.type {KNAME},@function\n{KNAME}:\n"
    txt += a.text()
    txt += f""".section .rodata,"a"
.p2align 6
.amdhsa_kernel {KNAME}
  .amdhsa_next_free_vgpr 256
  .amdhsa_next_free_sgpr 102
  .amdhsa_accum_offset 256
  .amdhsa_group_segment_fixed_size 0
  .amdhsa_kernarg_size 128
  .amdhsa_user_sgpr_count 2
  .amdhsa_user_sgpr_kernarg_segment_ptr 1
  .amdhsa_system_sgpr_workgroup_id_x 1
.end_amdhsa_kernel
"""
    open(out_path, "w").write(txt)


def flag_load(a, ev, rb_s, vdst, tag):
    a(f"""s_lshl_b32 s{sT0}, s{rb_s}, 8
    s_add_u32 s{sT0}, s{sT0}, {WS_FLG + ev*64}
    v_and_b32 v{vdst}, 15, v{vLANE}
    v_lshlrev_b32 v{vdst}, 2, v{vdst}""")
    a.vmop(f"buffer_load_dword v{vdst}, v{vdst}, s[{SWS}:{SWS+3}], s{sT0} offen sc1", tag)


PRG = (252, 253, 254)


FLG_OFF = {0: 0, 1: 512, 2: 1024}


def flag_preload(a, ev, r):
    wide = (ev == 1)
    a(f"""s_lshr_b32 s{sT0}, s{sRB2}, 1
    s_lshl_b32 s{sT0}, s{sT0}, 11
    s_add_u32 s{sT0}, s{sT0}, {WS_FLG + FLG_OFF[ev]}
    v_lshlrev_b32 v{vT}, {3 if wide else 2}, v{vLANE}""")
    if wide:
        a.vmop(f"buffer_load_dwordx2 v[{r}:{r+1}], v{vT}, s[{SWS}:{SWS+3}], s{sT0} offen sc1", f"pre{ev}")
    else:
        a.vmop(f"buffer_load_dword v{r}, v{vT}, s[{SWS}:{SWS+3}], s{sT0} offen sc1", f"pre{ev}")


def poll_flags(a, ev, tracked=False, pre=None):
    lp, ok = a.newlab("PF"), a.newlab("PFOK")
    wide = (ev == 1)
    done = a.newlab("PFD")
    if pre is not None:
        a.vmwait(f"pre{ev}")
        a(f"""v_cmp_ne_u32 vcc, s{sTAG}, v{pre}
        s_mov_b64 s[{sMASK}:{sMASK+1}], vcc""")
        if wide:
            a(f"""v_cmp_ne_u32 vcc, s{sTAG}, v{pre+1}
            s_or_b64 s[{sMASK}:{sMASK+1}], s[{sMASK}:{sMASK+1}], vcc""")
        a(f"""s_cmp_eq_u64 s[{sMASK}:{sMASK+1}], 0
        s_cbranch_scc1 {done}""")
        vm_keep = list(a.vm)
    a(f"""s_lshr_b32 s{sT0}, s{sRB2}, 1
    s_lshl_b32 s{sT0}, s{sT0}, 11
    s_add_u32 s{sT0}, s{sT0}, {WS_FLG + FLG_OFF[ev]}
    v_lshlrev_b32 v{vT}, {3 if wide else 2}, v{vLANE}
    s_mov_b32 s{sSPIN}, 0""")
    regs = [(248, 249), (250, 251), (252, 253)]
    ld = (lambda r: f"buffer_load_dwordx2 v[{r[0]}:{r[1]}], v{vT}, s[{SWS}:{SWS+3}], s{sT0} offen sc1") if wide else \
         (lambda r: f"buffer_load_dword v{r[0]}, v{vT}, s[{SWS}:{SWS+3}], s{sT0} offen sc1")
    for r in regs:
        a(ld(r) + "\ns_sleep 2")
    a.label(lp)
    for r in regs:
        nx = a.newlab("PFN")
        a(f"""s_waitcnt vmcnt(2)
        v_cmp_ne_u32 vcc, s{sTAG}, v{r[0]}
        s_add_u32 s{sSPIN}, s{sSPIN}, 1""")
        if wide:
            a(f"""s_cbranch_vccnz {nx}
            v_cmp_ne_u32 vcc, s{sTAG}, v{r[1]}
            s_nop 0
            s_cbranch_vccz {ok}""")
            a.label(nx)
        else:
            a(f"s_cbranch_vccz {ok}")
        a(ld(r))
    a(f"""s_cmp_gt_u32 s{sSPIN}, {SPIN_MAX}
    s_cbranch_scc0 {lp}""")
    a.label(ok)
    if pre is not None:
        a("s_waitcnt vmcnt(0)")
        a.label(done)
        a.vm = vm_keep
    elif tracked:
        a.vm = ["poll", "poll"]
        a.nvm += 2


def touch_A(a, ev):
    if not A_TOUCH:
        return
    k0, nl = {0: (0, 64), 1: (32, 108), 2: (86, 128)}[ev]
    a(f"""s_lshr_b32 s{sT0}, s{sCB}, 2
    s_lshl_b32 s{sT1}, s{sRB2}, 1
    s_add_u32 s{sT0}, s{sT0}, s{sT1}
    s_mul_i32 s{sT0}, s{sT0}, {RT_STRIDE}
    s_and_b32 s{sT1}, s{sCB}, 3
    s_mul_i32 s{sT1}, s{sT1}, {nl*128}
    s_add_u32 s{sT0}, s{sT0}, s{sT1}
    s_add_u32 s{sT0}, s{sT0}, {k0*1024}
    v_lshlrev_b32 v{vT+1}, 7, v{vLANE}
    buffer_load_dword v{JUNK}, v{vT+1}, s[{SWS}:{SWS+3}], s{sT0} offen sc1""")
    if nl > 64:
        a(f"s_add_u32 s{sT0}, s{sT0}, 8192")
        if nl < 128:
            a(f"""v_cmp_gt_u32 vcc, {nl-64}, v{vLANE}
            s_and_saveexec_b64 s[{sEX}:{sEX+1}], vcc
            buffer_load_dword v{JUNK}, v{vT+1}, s[{SWS}:{SWS+3}], s{sT0} offen sc1
            s_mov_b64 exec, s[{sEX}:{sEX+1}]""")
        else:
            a(f"buffer_load_dword v{JUNK}, v{vT+1}, s[{SWS}:{SWS+3}], s{sT0} offen sc1")


def write_flag(a, ev, ch):
    sh = 5 if ev == 1 else 4
    a(f"""s_lshl_b32 s{sT0}, s{sRB}, 11
    s_lshl_b32 s{sT1}, s{sCG}, {sh}
    s_add_u32 s{sT0}, s{sT0}, s{sT1}
    s_lshl_b32 s{sT1}, s{sW if ev == 1 else sRG}, 2
    s_add_u32 s{sT0}, s{sT0}, s{sT1}
    s_add_u32 s{sT0}, s{sT0}, {WS_FLG + FLG_OFF[ev]}
    v_mov_b32 v{vT+9}, 0
    v_mov_b32 v{vT+10}, s{sTAG}
    s_mov_b64 s[{sEX}:{sEX+1}], exec
    s_mov_b64 exec, 1""")
    a.vmop(f"buffer_store_dword v{vT+10}, v{vT+9}, s[{SWS}:{SWS+3}], s{sT0} offen sc1", "flag")
    a(f"s_mov_b64 exec, s[{sEX}:{sEX+1}]")


def only_rg(a, rg, fn):
    lab = a.newlab("RG")
    a(f"s_cmp_eq_u32 s{sRG}, {rg}\ns_cbranch_scc0 {lab}")
    lg = list(a.lg)
    fn()
    a.label(lab)
    a.lg = lg


def colsum_mfma(a, wf0, wf1, accreg, first=False):
    l1, l2 = a.newlab("CS"), a.newlab("CS")
    c = "0" if first else f"v[{accreg}:{accreg+15}]"
    a(f"""s_cmp_eq_u32 s{sCSM}, 0
    s_cbranch_scc1 {l2}
    s_cmp_eq_u32 s{sCSM}, 1
    s_cbranch_scc0 {l1}
    v_mfma_f32_32x32x16_bf16 v[{accreg}:{accreg+15}], v[{ONES}:{ONES+3}], v[{wf0}:{wf0+3}], {c}
    s_branch {l2}""")
    a.label(l1)
    a(f"v_mfma_f32_32x32x16_bf16 v[{accreg}:{accreg+15}], v[{ONES}:{ONES+3}], v[{wf1}:{wf1+3}], {c}")
    a.label(l2)


def colsum_store(a, accreg, unit, koff=0):
    a(f"""s_nop 7
    s_nop 7
    s_add_u32 s{sT1}, s{sKC0}, {koff}
    s_and_b32 s{sT1}, s{sT1}, 7
    s_lshl_b32 s{sT0}, s{sCG}, 3
    s_add_u32 s{sT0}, s{sT0}, s{sT1}
    s_lshl_b32 s{sT0}, s{sT0}, 11
    s_sub_u32 s{sT1}, s{sCSM}, 1
    s_lshl_b32 s{sT1}, s{sT1}, 8
    s_add_u32 s{sT0}, s{sT0}, s{sT1}
    s_add_u32 s{sT0}, s{sT0}, {WS_CS + unit*512}
    s_lshl_b32 s{sT1}, s2, 11
    s_add_u32 s{sT1}, s{sT1}, {WS_DUMMY}
    s_cmp_eq_u32 s{sCSM}, 0
    s_cselect_b32 s{sT0}, s{sT1}, s{sT0}
    v_mov_b32 v{accreg+1}, s{sTAG}
    v_lshlrev_b32 v{accreg+2}, 3, v{vLANE}
    s_mov_b64 s[{sEX}:{sEX+1}], exec
    s_mov_b64 exec, 0xffffffff""")
    a.vmop(f"buffer_store_dwordx2 v[{accreg}:{accreg+1}], v{accreg+2}, s[{SWS}:{SWS+3}], s{sT0} offen sc1", "cs")
    a(f"s_mov_b64 exec, s[{sEX}:{sEX+1}]")


def gather_loads(a, part, dst, atmp, tracked=False):
    l1, l2 = a.newlab("G"), a.newlab("G")
    a(f"""s_cmp_lt_u32 s{sRG}, 2
    s_cbranch_scc0 {l1}
    s_lshl_b32 s{sT0}, s{sCG}, 14
    s_add_u32 s{sT0}, s{sT0}, {WS_CS + part*1024}
    s_lshl_b32 s{sT1}, s{sRG}, 9
    s_add_u32 s{sT0}, s{sT0}, s{sT1}
    v_lshlrev_b32 v{atmp}, 3, v{vLANE}""")
    for j in range(8):
        so, io = (j * 2048 // 4096) * 4096, (j * 2048) % 4096
        a(f"s_add_u32 s{sT1}, s{sT0}, {so}")
        a(f"buffer_load_dwordx2 v[{dst+2*j}:{dst+2*j+1}], v{atmp}, s[{SWS}:{SWS+3}], s{sT1} offen offset:{io} sc1")
    a(f"s_branch {l2}")
    a.label(l1)
    nd = 8
    if part == 0:
        a(f"""s_lshl_b32 s{sT0}, s{sRB}, 11
        s_sub_u32 s{sT1}, s{sRG}, 2
        s_lshl_b32 s{sT1}, s{sT1}, 10
        s_add_u32 s{sT0}, s{sT0}, s{sT1}
        s_add_u32 s{sT0}, s{sT0}, {WS_STAT}
        v_lshlrev_b32 v{atmp}, 4, v{vLANE}
        buffer_load_dwordx4 v[{dst}:{dst+3}], v{atmp}, s[{SWS}:{SWS+3}], s{sT0} offen sc1""")
        nd = 7
    a(f"s_mov_b32 s{sT0}, 0x40000000")
    for j in range(nd):
        a(f"buffer_load_dword v{dst+8+j}, v{vLANE}, s[{SWS}:{SWS+3}], s{sT0} offen")
    a.label(l2)
    if tracked:
        a.vm += ["g"] * 8
        a.nvm += 8


def gather_finish(a, part, dst, nyounger, atmp):
    lr, l1, l2, lok, lok2, l0 = [a.newlab("GF") for _ in range(6)]
    a(f"s_mov_b32 s{sSPIN}, 0")
    a(f"s_waitcnt vmcnt({nyounger})")
    a(f"s_branch {l0}")
    a.label(lr)
    a("s_waitcnt vmcnt(0)")
    a.label(l0)
    a(f"""s_cmp_lt_u32 s{sRG}, 2
    s_cbranch_scc0 {l1}
    s_mov_b64 s[{sMASK}:{sMASK+1}], 0""")
    for j in range(8):
        a(f"""v_cmp_ne_u32 vcc, s{sTAG}, v{dst+2*j+1}
        s_or_b64 s[{sMASK}:{sMASK+1}], s[{sMASK}:{sMASK+1}], vcc""")
    a(f"""s_cmp_eq_u64 s[{sMASK}:{sMASK+1}], 0
    s_cbranch_scc1 {lok}
    s_add_u32 s{sSPIN}, s{sSPIN}, 1
    s_cmp_gt_u32 s{sSPIN}, {SPIN_MAX}
    s_cbranch_scc1 {lok}""")
    gather_loads(a, part, dst, atmp)
    a(f"s_branch {lr}")
    a.label(lok)
    a(f"""v_add_f32 v{dst}, v{dst}, v{dst+2}
    v_add_f32 v{dst+4}, v{dst+4}, v{dst+6}
    v_add_f32 v{dst+8}, v{dst+8}, v{dst+10}
    v_add_f32 v{dst+12}, v{dst+12}, v{dst+14}
    v_add_f32 v{dst}, v{dst}, v{dst+4}
    v_add_f32 v{dst+8}, v{dst+8}, v{dst+12}
    v_add_f32 v{dst}, v{dst}, v{dst+8}
    s_lshl_b32 s{sT0}, s{sRG}, 8
    s_add_u32 s{sT0}, s{sT0}, {SCR}
    v_lshlrev_b32 v{atmp}, 2, v{vLANE}
    v_add_u32 v{atmp}, s{sT0}, v{atmp}
    ds_write_b32 v{atmp}, v{dst} offset:{SCR_CS + part*512}
    s_branch {l2}""")
    a.label(l1)
    if part == 0:
        a(f"""v_cmp_ne_u32 vcc, s{sTAG}, v{dst+1}
        s_mov_b64 s[{sMASK}:{sMASK+1}], vcc
        v_cmp_ne_u32 vcc, s{sTAG}, v{dst+3}
        s_or_b64 s[{sMASK}:{sMASK+1}], s[{sMASK}:{sMASK+1}], vcc
        s_cmp_eq_u64 s[{sMASK}:{sMASK+1}], 0
        s_cbranch_scc1 {lok2}
        s_add_u32 s{sSPIN}, s{sSPIN}, 1
        s_cmp_gt_u32 s{sSPIN}, {SPIN_MAX}
        s_cbranch_scc1 {lok2}""")
        gather_loads(a, part, dst, atmp)
        a(f"s_branch {lr}")
        a.label(lok2)
        a(f"""v_rcp_f32 v{dst+2}, v{dst+2}
        v_sub_f32 v{dst+3}, 0, v{dst}
        s_sub_u32 s{sT0}, s{sRG}, 2
        s_lshl_b32 s{sT0}, s{sT0}, 9
        s_add_u32 s{sT0}, s{sT0}, {SCR}
        v_lshlrev_b32 v{atmp}, 3, v{vLANE}
        v_add_u32 v{atmp}, s{sT0}, v{atmp}
        ds_write_b64 v{atmp}, v[{dst+2}:{dst+3}] offset:{SCR_ST}
        v_lshrrev_b32 v{atmp}, 1, v{atmp}
        v_add_u32 v{atmp}, {SCR//2}, v{atmp}
        ds_write_b32 v{atmp}, v{dst+2} offset:{SCR_RV}""")
    a.label(l2)
    a.lgwait_all()


def row_stats_M(q, tmp):
    q(f"""v_and_b32 v{tmp}, 31, v{vLANE}
    v_bfe_u32 v{tmp+1}, v{tmp}, 2, 1
    v_lshlrev_b32 v{tmp+1}, 4, v{tmp+1}
    v_lshrrev_b32 v{tmp+2}, 3, v{tmp}
    v_lshl_add_u32 v{tmp+1}, v{tmp+2}, 2, v{tmp+1}
    v_and_b32 v{tmp+2}, 3, v{tmp}
    v_add_u32 v{tmp+1}, v{tmp+1}, v{tmp+2}
    v_lshlrev_b32 v{tmp+2}, 5, v{vRGV}
    v_add_u32 v{tmp+1}, v{tmp+2}, v{tmp+1}
    v_lshlrev_b32 v{tmp+1}, 3, v{tmp+1}
    v_add_u32 v{tmp+1}, {SCR}, v{tmp+1}""")
    q.ldsop(f"ds_read_b64 v[{vRINV}:{vRINV+1}], v{tmp+1} offset:{SCR_ST}", "rs")
    q.lgwait("rs")


vRGV = 2


def aug_mfma(q, acc, cs_off, R, T, sform=False):
    X, W = R, R + 4
    q(f"""v_and_b32 v{T}, 31, v{vLANE}
    v_lshlrev_b32 v{T}, 2, v{T}
    v_add_u32 v{T}, {SCR + SCR_CS + cs_off}, v{T}""")
    q.ldsop(f"ds_read_b32 v{T+1}, v{T} offset:0", "ac")
    q.ldsop(f"ds_read_b32 v{T+2}, v{T} offset:128", "ac")
    q(f"""v_cmp_gt_u32 vcc, 32, v{vLANE}
    v_mov_b32 v{X+2}, 0
    v_mov_b32 v{X+3}, 0
    v_cndmask_b32 v{X}, 0, v{vNM}, vcc
    v_mov_b32 v{W+2}, 0
    v_lshrrev_b32 v{X+1}, 16, v{X}
    v_mov_b32 v{W+3}, 0
    v_or_b32 v{X}, v{X}, v{X+1}""")
    q.lgwait("ac")
    for t in range(2):
        cs = T + 1 + t
        q(f"""v_cvt_pk_bf16_f32 v{T+3}, v{cs}, v{cs}
        v_lshlrev_b32 v{T+3}, 16, v{T+3}
        v_sub_f32 v{T+3}, v{cs}, v{T+3}
        v_cvt_pk_bf16_f32 v{W}, v{cs}, v{T+3}
        v_and_b32 v{W+1}, 0xffff0000, v{W}
        v_sub_f32 v{T+3}, v{T+3}, v{W+1}
        v_cvt_pk_bf16_f32 v{W+1}, v{T+3}, v{W+2}
        s_nop 1""")
        ac = acc + 16 * t
        if sform:
            q(f"v_mfma_f32_32x32x16_bf16 v[{ac}:{ac+15}], v[{X}:{X+3}], v[{W}:{W+3}], v[{ac}:{ac+15}]")
        else:
            q(f"v_mfma_f32_32x32x16_bf16 v[{ac}:{ac+15}], v[{W}:{W+3}], v[{X}:{X+3}], v[{ac}:{ac+15}]")
    q("s_nop 15\ns_nop 3")


def gelu_epi(q, acc, pos_s, cs_off, tagname, csr, T, maybe=False):
    K0 = -2.0 * math.sqrt(2.0 / math.pi) * LOG2E
    K1c = K0 * 0.044715
    q(f"v_mov_b32 v{vK1}, {f2u(K1c)}")
    aug_mfma(q, acc, cs_off, csr, T)
    for qq in range(4):
        rs = [4 * qq + i for i in range(4)]
        for i, r in enumerate(rs):
            q(f"v_mul_f32 v{acc+r}, v{acc+r}, v{vRINV}")
        for i, r in enumerate(rs):
            q(f"v_mul_f32 v{T+i}, v{acc+r}, v{acc+r}")
        for i, r in enumerate(rs):
            q(f"v_fmaak_f32 v{T+i}, v{vK1}, v{T+i}, {f2u(K0)}")
        for i, r in enumerate(rs):
            q(f"v_mul_f32 v{T+i}, v{T+i}, v{acc+r}")
        for i, r in enumerate(rs):
            q(f"v_exp_f32 v{T+i}, v{T+i}")
        for i, r in enumerate(rs):
            q(f"v_mul_f32 v{T+4+i}, v{acc+r}, v{acc+16+r}")
        for i, r in enumerate(rs):
            q(f"v_add_f32 v{T+i}, 1.0, v{T+i}")
        for i, r in enumerate(rs):
            q(f"v_rcp_f32 v{T+i}, v{T+i}")
        for i, r in enumerate(rs):
            q(f"v_mul_f32 v{T+4+i}, v{T+4+i}, v{vRINV}")
        for i, r in enumerate(rs):
            q(f"v_mul_f32 v{T+i}, v{T+i}, v{T+4+i}")
        q(f"v_cvt_pk_bf16_f32 v{acc+2*qq}, v{T}, v{T+1}\nv_cvt_pk_bf16_f32 v{acc+2*qq+1}, v{T+2}, v{T+3}")
    q(f"v_lshlrev_b32 v{T}, 4, v{vLANE}")
    q.vmop(f"buffer_store_dwordx4 v[{acc}:{acc+3}], v{T}, s[{SWS}:{SWS+3}], s{pos_s} offen sc1", tagname, maybe)
    q.vmop(f"buffer_store_dwordx4 v[{acc+4}:{acc+7}], v{T}, s[{SWS}:{SWS+3}], s{pos_s} offen offset:1024 sc1", tagname, maybe)


def s_params(q):
    vLre, vLim, vLdt = vT + 7, vT + 8, vT + 9
    t0, t1, t2, t3, t4, t5, t6 = [vT + i for i in range(7)]
    q(f"""v_lshlrev_b32 v{vLre}, 16, v{vA16r}
    v_lshlrev_b32 v{vLim}, 16, v{vA16i}
    v_lshlrev_b32 v{vLdt}, 16, v{vA128r}
    v_mul_f32 v{t0}, {f2u(LOG2E)}, v{vLdt}
    v_exp_f32 v{t0}, v{t0}
    s_nop 0""")
    rne_bf16(q, t0)
    q(f"""v_mul_f32 v{t1}, v{t0}, v{vLre}
    v_mul_f32 v{t2}, v{t0}, v{vLim}
    v_mul_f32 v{t1}, {f2u(LOG2E)}, v{t1}
    v_exp_f32 v{t1}, v{t1}
    v_mul_f32 v{t2}, {f2u(1.0/(2*math.pi))}, v{t2}
    v_rndne_f32 v{t3}, v{t2}
    v_sub_f32 v{t2}, v{t2}, v{t3}
    v_cos_f32 v{t3}, v{t2}
    v_sin_f32 v{t4}, v{t2}
    s_nop 0
    v_mul_f32 v{vAr}, v{t1}, v{t3}
    v_mul_f32 v{vAi}, v{t1}, v{t4}
    v_add_f32 v{t3}, -1.0, v{vAr}
    v_mul_f32 v{t4}, v{vLre}, v{vLre}
    v_fmac_f32 v{t4}, v{vLim}, v{vLim}
    v_rcp_f32 v{t4}, v{t4}
    v_mul_f32 v{t5}, v{t3}, v{vLre}
    v_fmac_f32 v{t5}, v{vAi}, v{vLim}
    v_mul_f32 v{t6}, v{vAi}, v{vLre}
    v_fma_f32 v{t6}, -v{t3}, v{vLim}, v{t6}
    v_add_f32 v{t4}, v{t4}, v{t4}
    v_mul_f32 v{vKr}, v{t5}, v{t4}
    v_mul_f32 v{vKi}, v{t6}, v{t4}
    v_mov_b32 v{vA16r}, v{vAr}
    v_mov_b32 v{vA16i}, v{vAi}""")

    def csq(r, i):
        q(f"""v_mul_f32 v{t0}, v{i}, v{i}
        v_mul_f32 v{t1}, v{r}, v{i}
        v_fma_f32 v{r}, v{r}, v{r}, -v{t0}
        v_add_f32 v{i}, v{t1}, v{t1}""")
    for _ in range(4):
        csq(vA16r, vA16i)
    q(f"v_mov_b32 v{vA128r}, v{vA16r}\nv_mov_b32 v{vA128i}, v{vA16i}")
    for _ in range(3):
        csq(vA128r, vA128i)


def s_epilogue1(q):
    zr = lambda j: vACC + j
    zi = lambda j: vACC + 16 + j
    T = vT
    row_stats_M(q, T)
    aug_mfma(q, vACC, 0, 4, T, sform=True)
    q(f"""v_and_b32 v{T}, 31, v{vLANE}
    v_lshrrev_b32 v{T+2}, 5, v{vLANE}
    v_lshlrev_b32 v{T+3}, 5, v{vRGV}
    v_lshl_add_u32 v{T+3}, v{T+2}, 4, v{T+3}
    v_lshlrev_b32 v{T+3}, 2, v{T+3}
    v_add_u32 v{T+3}, {SCR}, v{T+3}""")
    q.ldsop(f"ds_read_b128 v[4:7], v{T+3} offset:{SCR_RV}", "s0")
    q.ldsop(f"ds_read_b128 v[8:11], v{T+3} offset:{SCR_RV + 16}", "s1")
    for qq in range(4):
        base = 4 if qq % 2 == 0 else 8
        q.lgwait(f"s{qq}")
        for i in range(4):
            j = 4 * qq + i
            q(f"""v_mul_f32 v{zr(j)}, v{zr(j)}, v{base+i}
            v_mul_f32 v{zi(j)}, v{zi(j)}, v{base+i}""")
        if qq + 2 < 4:
            q.ldsop(f"ds_read_b128 v[{base}:{base+3}], v{T+3} offset:{SCR_RV + (qq+2)*16}", f"s{qq+2}")
    cur, alt = (T + 4, T + 5), (T + 7, T + 8)
    q(f"v_mov_b32 v{cur[0]}, v{zr(0)}\nv_mov_b32 v{cur[1]}, v{zi(0)}")
    for j in range(1, 16):
        sr, si = cur
        nr, ni = alt
        q(f"""v_fma_f32 v{nr}, v{vAr}, v{sr}, v{zr(j)}
        v_fma_f32 v{ni}, v{vAr}, v{si}, v{zi(j)}
        v_fma_f32 v{nr}, -v{vAi}, v{si}, v{nr}
        v_fma_f32 v{ni}, v{vAi}, v{sr}, v{ni}""")
        cur, alt = alt, cur
    assert cur == (T + 7, T + 8) and (T + 7) % 2 == 0
    q(f"""v_lshlrev_b32 v{T+1}, 1, v{vRGV}
    v_add_u32 v{T+1}, v{T+1}, v{T+2}
    v_lshlrev_b32 v{T+1}, 8, v{T+1}
    v_lshl_add_u32 v{T+1}, v{T}, 3, v{T+1}
    v_add_u32 v{T+1}, {SCR}, v{T+1}""")
    q.ldsop(f"ds_write_b64 v{T+1}, v[{T+7}:{T+8}] offset:{SCR_ES}", "ew")


def s_publish(a):
    T = vT
    a(f"""s_waitcnt lgkmcnt(0)
    v_and_b32 v{T}, 31, v{vLANE}
    v_lshlrev_b32 v{T+1}, 3, v{T}
    v_add_u32 v{T+1}, {SCR}, v{T+1}
    ds_read_b64 v[4:5], v{T+1} offset:{SCR_ES}
    ds_read_b64 v[6:7], v{T+1} offset:{SCR_ES+256}
    ds_read_b64 v[8:9], v{T+1} offset:{SCR_ES+512}
    ds_read_b64 v[10:11], v{T+1} offset:{SCR_ES+768}
    s_waitcnt lgkmcnt(0)""")

    def step(er, ei):
        a(f"""v_fma_f32 v{T+2}, v{vA16r}, v4, v{er}
        v_fma_f32 v{T+3}, v{vA16r}, v5, v{ei}
        v_fma_f32 v{T+2}, -v{vA16i}, v5, v{T+2}
        v_fma_f32 v5, v{vA16i}, v4, v{T+3}
        v_mov_b32 v4, v{T+2}""")
    step(6, 7); step(8, 9); step(10, 11)
    a(f"""ds_read_b64 v[6:7], v{T+1} offset:{SCR_ES+1024}
    ds_read_b64 v[8:9], v{T+1} offset:{SCR_ES+1280}
    ds_read_b64 v[10:11], v{T+1} offset:{SCR_ES+1536}
    ds_read_b64 v[{T+5}:{T+6}], v{T+1} offset:{SCR_ES+1792}
    s_waitcnt lgkmcnt(0)""")
    assert (T + 5) % 2 == 0
    step(6, 7); step(8, 9); step(10, 11); step(T + 5, T + 6)
    a(f"""v_mov_b32 v6, v5
    v_mov_b32 v5, s{sTAG}
    v_mov_b32 v7, s{sTAG}
    s_lshl_b32 s{sT0}, s{sCG}, 5
    v_add_u32 v{T}, s{sT0}, v{T}
    v_lshlrev_b32 v{T}, 4, v{T}
    s_lshl_b32 s{sT0}, s{sRB}, 13
    s_add_u32 s{sT0}, s{sT0}, {WS_AGG}
    v_cmp_gt_u32 vcc, 32, v{vLANE}
    s_and_saveexec_b64 s[{sEX}:{sEX+1}], vcc
    buffer_store_dwordx4 v[4:7], v{T}, s[{SWS}:{SWS+3}], s{sT0} offen sc1
    s_mov_b64 exec, s[{sEX}:{sEX+1}]""")
    a.vm.append("pub"); a.nvm += 1


LBG = 160
HG = 192


def lookback_loads(a, tracked=True):
    a(f"""v_and_b32 v{vT+9}, 31, v{vLANE}
    s_lshl_b32 s{sT0}, s{sCG}, 5
    v_add_u32 v{vT+9}, s{sT0}, v{vT+9}
    v_lshlrev_b32 v{vT+9}, 4, v{vT+9}           ; p*16
    v_lshrrev_b32 v3, 5, v{vLANE}
    s_sub_u32 s{sT0}, s{sRB}, 1
    v_sub_u32 v3, s{sT0}, v3                    ; rb-1-hf
    v_lshlrev_b32 v3, 13, v3
    v_add_u32 v3, v3, v{vT+9}
    s_mov_b32 s{sT0}, {WS_AGG}
    v_mov_b32 v{vT+10}, 0x7ff00000""")
    for i in range(8):
        a(f"""v_subrev_u32 v{vT+9}, {i*16384}, v3
        v_cmp_gt_i32 vcc, 0, v{vT+9}
        s_nop 1
        v_cndmask_b32 v{vT+9}, v{vT+9}, v{vT+10}, vcc""")
        code = f"buffer_load_dwordx4 v[{LBG+4*i}:{LBG+4*i+3}], v{vT+9}, s[{SWS}:{SWS+3}], s{sT0} offen sc1"
        if tracked:
            a.vmop(code, "lb")
        else:
            a(code)


def s_work_atoms(a, q):
    zr = lambda j: vACC + j
    zi = lambda j: vACC + 16 + j
    T = vT
    L = LBG
    G = LBG
    EB = 192
    q(f"""v_and_b32 v{T+8}, 31, v{vLANE}
    v_lshlrev_b32 v{T}, 3, v{T+8}
    v_add_u32 v{T}, {SCR}, v{T}""")
    for s in range(8):
        q.ldsop(f"ds_read_b64 v[{EB+2*s}:{EB+2*s+1}], v{T} offset:{SCR_ES + s*256}", "se")
    q(f"""v_mul_f32 v{T+5}, v{vA128i}, v{vA128i}
    v_mul_f32 v{T+6}, v{vA128r}, v{vA128i}
    v_fma_f32 v{T+5}, v{vA128r}, v{vA128r}, -v{T+5}
    v_add_f32 v{T+6}, v{T+6}, v{T+6}""")

    def check():
        lp, got = a.newlab("LB"), a.newlab("LBG")
        a(f"s_mov_b32 s{sSPIN}, 0")
        a.vmwait("lb")
        a.label(lp)
        a(f"""v_lshrrev_b32 v{T+1}, 5, v{vLANE}
        s_sub_u32 s{sT0}, s{sRB}, 1
        v_sub_u32 v{T+1}, s{sT0}, v{T+1}
        s_mov_b64 s[{sMASK}:{sMASK+1}], 0""")
        for i in range(8):
            a(f"""v_cmp_ne_u32 vcc, s{sTAG}, v{L+4*i+1}
            v_cmp_ne_u32 s[{sEX}:{sEX+1}], s{sTAG}, v{L+4*i+3}
            s_or_b64 s[{sEX}:{sEX+1}], s[{sEX}:{sEX+1}], vcc
            v_cmp_le_i32 vcc, {2*i}, v{T+1}
            s_and_b64 s[{sEX}:{sEX+1}], s[{sEX}:{sEX+1}], vcc
            s_or_b64 s[{sMASK}:{sMASK+1}], s[{sMASK}:{sMASK+1}], s[{sEX}:{sEX+1}]""")
        a(f"""s_cmp_eq_u64 s[{sMASK}:{sMASK+1}], 0
        s_cbranch_scc1 {got}
        s_add_u32 s{sSPIN}, s{sSPIN}, 1
        s_cmp_gt_u32 s{sSPIN}, {SPIN_MAX}
        s_cbranch_scc1 {got}""")
        lookback_loads(a, tracked=False)
        a(f"s_waitcnt vmcnt(0)\ns_branch {lp}")
        a.label(got)
    q.q.append(("call", check))
    cr, ci = T + 1, T + 2
    q(f"v_mov_b32 v{cr}, v{L+28}\nv_mov_b32 v{ci}, v{L+30}")
    for i in range(6, -1, -1):
        q(f"""v_fma_f32 v{T+3}, v{T+5}, v{cr}, v{L+4*i}
        v_fma_f32 v{T+4}, v{T+5}, v{ci}, v{L+4*i+2}
        v_fma_f32 v{T+3}, -v{T+6}, v{ci}, v{T+3}
        v_fma_f32 v{ci}, v{T+6}, v{cr}, v{T+4}
        v_mov_b32 v{cr}, v{T+3}""")
    q(f"""v_mov_b32 v{T+3}, v{cr}
    v_mov_b32 v{T+4}, v{ci}
    s_nop 1
    v_permlane32_swap_b32 v{cr}, v{T+3}
    v_permlane32_swap_b32 v{ci}, v{T+4}
    s_nop 1
    v_fma_f32 v{cr}, v{vA128r}, v{T+3}, v{cr}
    v_fma_f32 v{ci}, v{vA128r}, v{T+4}, v{ci}
    v_fma_f32 v{cr}, -v{vA128i}, v{T+4}, v{cr}
    v_fma_f32 v{ci}, v{vA128i}, v{T+3}, v{ci}
    v_lshrrev_b32 v{T+5}, 5, v{vLANE}
    v_lshl_add_u32 v{T+5}, v{vRGV}, 1, v{T+5}""")
    q.lgwait("se")
    for s in range(7):
        def seg(s=s):
            a(f"""v_fma_f32 v{T+3}, v{vA16r}, v{cr}, v{EB+2*s}
            v_fma_f32 v{T+4}, v{vA16r}, v{ci}, v{EB+2*s+1}
            v_cmp_lt_u32 vcc, {s}, v{T+5}
            v_fma_f32 v{T+3}, -v{vA16i}, v{ci}, v{T+3}
            v_fma_f32 v{T+4}, v{vA16i}, v{cr}, v{T+4}
            v_cndmask_b32 v{cr}, v{cr}, v{T+3}, vcc
            v_cndmask_b32 v{ci}, v{ci}, v{T+4}, vcc""")
        q.q.append(("calln", seg, 7))
    cur, alt = (cr, ci), (T + 3, T + 4)
    for j in range(16):
        sr, si = cur
        nr, ni = alt
        q(f"""v_fma_f32 v{nr}, v{vAr}, v{sr}, v{zr(j)}
        v_fma_f32 v{ni}, v{vAr}, v{si}, v{zi(j)}
        v_fma_f32 v{nr}, -v{vAi}, v{si}, v{nr}
        v_fma_f32 v{ni}, v{vAi}, v{sr}, v{ni}
        v_mul_f32 v{zr(j)}, v{vKr}, v{nr}
        v_mul_f32 v{zi(j)}, -v{vKr}, v{ni}
        v_fma_f32 v{zr(j)}, -v{vKi}, v{ni}, v{zr(j)}
        v_fma_f32 v{zi(j)}, -v{vKi}, v{nr}, v{zi(j)}""")
        cur, alt = alt, cur
    for j in range(0, 16, 2):
        q(f"v_cvt_pk_bf16_f32 v{G+j//2}, v{zr(j)}, v{zr(j+1)}")
        q(f"v_cvt_pk_bf16_f32 v{G+8+j//2}, v{zi(j)}, v{zi(j+1)}")
    q(f"""v_lshlrev_b32 v{T+6}, 12, v{vRGV}
    v_add_u32 v{T+6}, {SCR_T}, v{T+6}
    v_lshrrev_b32 v{T+5}, 5, v{vLANE}
    v_lshlrev_b32 v{T+5}, 3, v{T+5}
    v_lshl_add_u32 v{T+5}, v{T+8}, 6, v{T+5}
    v_add_u32 v{T+5}, v{T+6}, v{T+5}
    v_add_u32 v{T+6}, v{T+6}, v{vTRL}
    v_lshlrev_b32 v{T}, 4, v{vLANE}""")
    for part in range(2):
        for qq in range(4):
            r = G + 8 * part + 2 * qq
            q.ldsop(f"ds_write_b64 v{T+5}, v[{r}:{r+1}] offset:{part*2048 + qq*16}", "tw")
    q.lgwait("tw")
    R = G + 16
    for part in range(2):
        for s2 in range(2):
            r = R + 8 * part + 4 * s2
            o = part * 2048 + s2 * 1024
            q.ldsop(f"ds_read_b64_tr_b16 v[{r}:{r+1}], v{T+6} offset:{o}", "tr")
            q.ldsop(f"ds_read_b64_tr_b16 v[{r+2}:{r+3}], v{T+6} offset:{o+256}", "tr")
    q.lgwait("tr")
    for part in range(2):
        for s2 in range(2):
            r = R + 8 * part + 4 * s2
            q.vmop(f"buffer_store_dwordx4 v[{r}:{r+3}], v{T}, s[{SWS}:{SWS+3}], s{sMU} offen offset:{(2*part+s2)*1024} sc1", "h")


vTRL = 3


def gen(a):
    global vTRL
    vTRL = 0
    sIDX = sMX
    if STAMPS:
        a(f"s_memrealtime s[{sMASK}:{sMASK+1}]")
    a(f"""s_cmp_ge_u32 s2, 256
    s_cbranch_scc1 L_END
    s_load_dwordx16 s[40:55], s[0:1], 0
    s_load_dwordx16 s[56:71], s[0:1], 64
    v_and_b32 v{vLANE}, 63, v0
    v_lshrrev_b32 v2, 6, v0
    s_and_b32 s{sT0}, s2, 7            ; xcd
    v_readfirstlane_b32 s{sW}, v2
    s_lshr_b32 s{sIDX}, s2, 3          ; idx
    s_and_b32 s{sRB}, s{sT0}, 1
    s_lshl_b32 s{sRB}, s{sRB}, 3
    s_and_b32 s{sT2}, s{sIDX}, 7
    s_add_u32 s{sRB}, s{sRB}, s{sT2}   ; rb
    s_lshr_b32 s{sCG}, s{sT0}, 1
    s_lshl_b32 s{sCG}, s{sCG}, 2
    s_lshr_b32 s{sT2}, s{sIDX}, 3
    s_add_u32 s{sCG}, s{sCG}, s{sT2}   ; cg
    s_and_b32 s{sRG}, s{sW}, 3
    s_lshl_b32 s{sKC0}, s{sCG}, 1
    s_add_u32 s{sKC0}, s{sKC0}, s{sRB}
    s_and_b32 s{sKC0}, s{sKC0}, 7
    s_lshl_b32 s{sRB2}, s{sT0}, 2
    s_and_b32 s{sT2}, s{sIDX}, 3
    s_add_u32 s{sRB2}, s{sRB2}, s{sT2}
    s_lshr_b32 s{sCB}, s{sIDX}, 2
    s_mul_i32 s{sT2}, s{sCG}, 3
    s_lshl_b32 s{sT3}, s{sCG}, 1
    s_add_u32 s{sT3}, s{sT3}, 11
    s_cmp_lt_u32 s{sCG}, 11
    s_cselect_b32 s{sU0B}, s{sT2}, s{sT3}
    s_cselect_b32 s{sDUM}, 64, 0x40000000
    s_lshl_b32 s{sU0B}, s{sU0B}, 6
    s_lshl_b32 s{sLW}, s{sRG}, 12           ; w'*4096
    s_lshl_b32 s{sMS}, s{sRG}, 11
    s_add_u32 s{sMS}, s{sMS}, 16384         ; S pieces: 16384 + w'*2048
    s_lshl_b32 s{sM1}, s{sRG}, 10           ; kstep*1024
    v_lshrrev_b32 v2, 3, v{vLANE}           ; lane>>3
    v_and_b32 v3, 7, v{vLANE}
    v_lshrrev_b32 v{vT}, 4, v{vLANE}        ; lane>>4
    v_xor_b32 v{vT+1}, v3, v{vT}            ; (lane&7)^(lane>>4)
    s_lshl_b32 s{sT2}, s{sRB}, 7
    s_lshl_b32 s{sT3}, s{sRG}, 5
    s_add_u32 s{sT2}, s{sT2}, s{sT3}
    v_add_u32 v{vT+2}, s{sT2}, v2
    v_lshlrev_b32 v{vT+2}, 10, v{vT+2}
    v_lshl_add_u32 v{vDX0}, v{vT+1}, 4, v{vT+2}
    v_xor_b32 v{vDX1}, 64, v{vDX0}
    v_add_u32 v{vDX1}, 8192, v{vDX1}
    s_and_b32 s{sT4}, s{sRG}, 1
    s_lshl_b32 s{sT4}, s{sT4}, 4
    s_lshl_b32 s{sT3}, s{sCG}, 5
    s_add_u32 s{sT4}, s{sT4}, s{sT3}
    v_add_u32 v{vT+2}, s{sT4}, v2
    v_lshlrev_b32 v{vT+2}, 10, v{vT+2}
    v_lshl_add_u32 v{vDS}, v{vT+1}, 4, v{vT+2}
    v_xor_b32 v{vDS1}, 64, v{vDS}
    v_add_u32 v{vDS1}, 8192, v{vDS1}
    v_lshrrev_b32 v{vT+2}, 2, v{vLANE}
    s_lshl_b32 s{sT4}, s{sRG}, 4
    v_add_u32 v{vT+2}, s{sT4}, v{vT+2}
    v_mul_u32_u24 v{vT+2}, 2752, v{vT+2}
    v_and_b32 v{vT+4}, 3, v{vLANE}
    v_lshl_add_u32 v{vDM}, v{vT+4}, 4, v{vT+2}
    v_lshlrev_b32 v{vT+3}, 4, v{vLANE}
    s_and_b32 s{sT4}, s{sW}, 2
    s_waitcnt lgkmcnt(0)""")
    pstamp(a, 0)
    srd(a, SX, P_X, 2048 * 1024)
    a(f"""s_cmp_eq_u32 s{sT4}, 0
    s_cselect_b32 s{P_BRE}, s{P_BRE}, s{P_BIM}
    s_cselect_b32 s{P_BRE+1}, s{P_BRE+1}, s{P_BIM+1}
    s_cmp_lt_u32 s{sW}, 4
    s_cselect_b32 s{P_CRE}, s{P_CRE}, s{P_CIM}
    s_cselect_b32 s{P_CRE+1}, s{P_CRE+1}, s{P_CIM+1}""")
    lab0, lab1 = a.newlab("D0"), a.newlab("D1")
    a(f"s_cmp_lt_u32 s{sW}, 4\ns_cbranch_scc1 {lab0}")
    for s_ in range(NPRE):
        for code, tag in dma_p0(s_, 1):
            a(code)
    srd(a, SS, P_BRE, 512 * 1024)
    srd(a, SM, P_WG, 512 * 2752)
    a(f"s_branch {lab1}")
    a.label(lab0)
    srd(a, SS, P_BRE, 512 * 1024)
    srd(a, SM, P_WG, 512 * 2752)
    a(f"s_mov_b32 s{sT4}, s{P_WU}\ns_mov_b32 s{sT5}, s{P_WU+1}")
    srd(a, 32, sT4, 512 * 2752)
    for s_ in range(NPRE):
        for code, tag in dma_p0(s_, 0):
            a(code.replace(f"s[{SM2}:{SM2+3}]", "s[32:35]"))
        if s_ == 0:
            a(f"""s_lshl_b32 s{sT2}, s2, 3
            s_lshl_b32 s{sT3}, s{sRG}, 1
            s_add_u32 s{sT5}, s{sT2}, s{sT3}
            s_lshl_b32 s{sT5}, s{sT5}, 10
            buffer_load_dwordx4 v[{vACC}:{vACC+3}], v{vT+3}, s[{SX}:{SX+3}], s{sT5} offen
            buffer_load_dwordx4 v[{vACC+4}:{vACC+7}], v{vT+3}, s[{SX}:{SX+3}], s{sT5} offen offset:1024""")
    a.label(lab1)
    srd(a, SWS, P_WS, WS_SIZE)
    a(f"""s_add_u32 s{P_BIM}, s{P_WS}, {WS_EPOCH}
    s_addc_u32 s{P_BIM+1}, s{P_WS+1}, 0
    s_load_dword s{sTAG}, s[{P_BIM}:{P_BIM+1}], 0""")
    srd(a, SM2, P_WU, 512 * 2752)
    pstamp(a, 1)
    srd(a, SWD, P_WD, 1376 * 1024)
    srd(a, SC, P_CRE, 512 * 1024)
    a(f"""v_and_b32 v{vT+2}, 31, v{vLANE}
    s_lshl_b32 s{sT4}, s{sCG}, 5
    v_add_u32 v{vT+2}, s{sT4}, v{vT+2}
    v_lshlrev_b32 v{vT+2}, 1, v{vT+2}""")
    srd(a, ST, P_LRE, 1024)
    a.vmop(f"buffer_load_ushort v{vA16r}, v{vT+2}, s[{ST}:{ST+3}], 0 offen", "par")
    srd(a, ST, P_LIM, 1024)
    a.vmop(f"buffer_load_ushort v{vA16i}, v{vT+2}, s[{ST}:{ST+3}], 0 offen", "par")
    srd(a, ST, P_LDT, 1024)
    a.vmop(f"buffer_load_ushort v{vA128r}, v{vT+2}, s[{ST}:{ST+3}], 0 offen", "par")
    pstamp(a, 2)
    srd(a, SO, P_OUT, 2048 * 2048)
    srd(a, ST, P_DSK, 1024)
    if CODE_PREFETCH:
        lab = a.newlab("CP")
        a(f"""s_cmp_eq_u32 s{sW}, 3
        s_cbranch_scc0 {lab}
        s_getpc_b64 s[{sT2}:{sT3}]""")
        a.label("L_PC")
        a(f"""s_mul_i32 s{sT4}, s{sIDX}, {10*128}
        v_lshlrev_b32 v{vT+2}, 7, v{vLANE}
        v_add_u32 v{vT+2}, s{sT4}, v{vT+2}
        v_cmp_gt_u32 vcc, L_CODE_END-L_PC, v{vT+2}
        s_and_saveexec_b64 s[{sEX}:{sEX+1}], vcc
        v_cmp_gt_u32 vcc, 10, v{vLANE}
        s_and_b64 exec, exec, vcc
        s_cbranch_execz {lab}_R
        global_load_dword v{vK1}, v{vT+2}, s[{sT2}:{sT3}]""")
        a.label(lab + "_R")
        a(f"s_mov_b64 exec, s[{sEX}:{sEX+1}]")
        a.label(lab)
    a(f"""s_lshr_b32 s{sT3}, s{sW}, 1                ; w>>1
    s_and_b32 s{sT4}, s{sW}, 1
    s_lshl_b32 s{sT4}, s{sT4}, 14            ; (w&1)*16384
    s_mul_i32 s{s3RG}, s{sT3}, {3*32768}
    s_add_u32 s{s3RG}, s{s3RG}, s{sT4}
    s_lshl_b32 s{s2RG}, s{sT3}, 16
    s_add_u32 s{s2RG}, s{s2RG}, s{sT4}
    s_cmp_eq_u32 s{sT3}, 3
    s_cselect_b32 s{sAOFF}, 0x40000000, s{s3RG}
    s_lshl_b32 s{sXB}, s{sRG}, 14
    s_lshl_b32 s{sRT}, s{sW}, 11
    s_lshl_b32 s{sT2}, s{sRB}, 2
    s_add_u32 s{sT2}, s{sT2}, s{sRG}
    s_mul_i32 s{sHPOS}, s{sT2}, {RT_STRIDE}
    s_lshl_b32 s{sT4}, s{sRB2}, 1
    s_lshr_b32 s{sT3}, s{sW}, 2
    s_add_u32 s{sT4}, s{sT4}, s{sT3}
    s_mul_i32 s{sT4}, s{sT4}, {RT_STRIDE}
    s_lshl_b32 s{sT3}, s{sRG}, 11
    s_add_u32 s{sT4}, s{sT4}, s{sT3}
    v_lshlrev_b32 v{vDA}, 4, v{vLANE}
    v_add_u32 v{vDA}, s{sT4}, v{vDA}
    v_bfe_u32 v{vT+2}, v{vLANE}, 4, 1
    v_lshlrev_b32 v{vT+2}, 2, v{vT+2}
    v_xor_b32 v{vT+2}, v3, v{vT+2}
    v_lshlrev_b32 v{vT+4}, 10, v2
    v_lshl_add_u32 v{vT+2}, v{vT+2}, 4, v{vT+4}
    s_lshl_b32 s{sT4}, s{sCB}, 7
    v_add_u32 v{vDB}, s{sT4}, v{vT+2}
    s_lshl_b32 s{sT4}, s{sCB}, 6
    v_add_u32 v{vT+2}, s{sT4}, v2
    v_lshlrev_b32 v{vT+2}, 10, v{vT+2}
    v_lshl_add_u32 v{vDC0}, v{vT+1}, 4, v{vT+2}
    v_xor_b32 v{vDC1}, 64, v{vDC0}
    v_and_b32 v2, 31, v{vLANE}
    v_bfe_u32 v3, v2, 2, 1
    v_lshlrev_b32 v3, 4, v3
    v_lshrrev_b32 v{vT}, 3, v2
    v_lshl_add_u32 v3, v{vT}, 2, v3
    v_and_b32 v{vT+1}, 3, v2
    v_add_u32 v3, v3, v{vT+1}               ; tau
    v_bfe_u32 v{vT}, v3, 1, 3
    s_lshl_b32 s{sT4}, s{sRG}, 5
    v_add_u32 v3, s{sT4}, v3
    v_lshlrev_b32 v3, 7, v3
    v_lshrrev_b32 v{vT+1}, 5, v{vLANE}
    v_xor_b32 v{vT}, v{vT}, v{vT+1}
    v_lshl_add_u32 v{vXA}, v{vT}, 4, v3
    v_xor_b32 v{vXA+1}, 32, v{vXA}
    v_xor_b32 v{vXA+2}, 64, v{vXA}
    v_xor_b32 v{vXA+3}, 96, v{vXA}
    v_lshlrev_b32 v3, 3, v{vT+1}
    v_bfe_u32 v{vT}, v{vLANE}, 2, 2
    v_add_u32 v3, v3, v{vT}
    v_lshlrev_b32 v3, 6, v3
    v_bfe_u32 v{vT}, v{vLANE}, 4, 1
    v_lshl_add_u32 v3, v{vT}, 5, v3
    v_and_b32 v{vT}, 3, v{vLANE}
    v_lshl_add_u32 v{vTRL}, v{vT}, 3, v3
    s_lshr_b32 s{sT4}, s{sW}, 2
    s_lshl_b32 s{sT4}, s{sT4}, 13
    v_add_u32 v{vW1}, s{sT4}, v{vTRL}
    v_mov_b32 v{vRGV}, s{sRG}""")
    pstamp(a, 3)
    a(f"""s_cmp_ge_u32 s{sW}, 4
    s_cbranch_scc1 L_STREAM_B""")
    save = (list(a.vm), list(a.lg), a.nvm)
    stream(a, 0)
    a.vm, a.lg, a.nvm = list(save[0]), list(save[1]), save[2]
    a.label("L_STREAM_B")
    stream(a, 1)
    a.label("L_END")
    a("s_endpgm")
    a.label("L_CODE_END")


def w2_touch(a, which, junk=None):
    if not W2_PREFETCH:
        return
    sIDX = sMX
    j = junk or vDA
    a(f"v_lshlrev_b32 v3, 7, v{vLANE}")
    if which in (0, 1):
        a(f"""s_mul_i32 s{sT0}, s{sIDX}, 44032
        s_lshl_b32 s{sT1}, s{sRG}, 13
        s_add_u32 s{sT0}, s{sT0}, s{sT1}
        s_add_u32 s{sT0}, s{sT0}, {32768*which}""")
        a.vmop(f"buffer_load_dword v{j}, v3, s[{SWD}:{SWD+3}], s{sT0} offen", "pf")
    else:
        a(f"""s_lshl_b32 s{sT0}, s{sIDX}, 14
        s_and_b32 s{sT1}, s{sRG}, 1
        s_lshl_b32 s{sT1}, s{sT1}, 13
        s_add_u32 s{sT0}, s{sT0}, s{sT1}""")
        a.vmop(f"buffer_load_dword v{j}, v3, s[{SC}:{SC+3}], s{sT0} offen", "pf")


def w2_touch16(a, piece, junk):
    if not W2_PREFETCH:
        return
    sIDX = sMX
    a(f"v_lshlrev_b32 v3, 7, v{vLANE}")
    if piece < 6:
        a(f"""s_mul_i32 s{sT0}, s{sIDX}, 44032
        s_lshl_b32 s{sT1}, s{sRG}, 11
        s_add_u32 s{sT0}, s{sT0}, s{sT1}
        s_add_u32 s{sT0}, s{sT0}, {piece*8192}
        s_mov_b64 s[{sEX}:{sEX+1}], exec
        s_mov_b64 exec, 0xffff""")
        a.vmop(f"buffer_load_dword v{junk}, v3, s[{SWD}:{SWD+3}], s{sT0} offen", "pf")
    else:
        a(f"""s_lshl_b32 s{sT0}, s{sIDX}, 14
        s_lshl_b32 s{sT1}, s{sRG}, 11
        s_add_u32 s{sT0}, s{sT0}, s{sT1}
        s_add_u32 s{sT0}, s{sT0}, {(piece-6)*8192}
        s_mov_b64 s[{sEX}:{sEX+1}], exec
        s_mov_b64 exec, 0xffff""")
        a.vmop(f"buffer_load_dword v{junk}, v3, s[{SC}:{SC+3}], s{sT0} offen", "pf")
    a(f"s_mov_b64 exec, s[{sEX}:{sEX+1}]")


def ln_stats(a, src, row_s):
    U = vACC2
    for i in range(4):
        a(f"v_lshlrev_b32 v{U+2*i}, 16, v{src+i}\nv_and_b32 v{U+2*i+1}, 0xffff0000, v{src+i}")
    a(f"""v_add_f32 v{vT}, v{U}, v{U+1}
    v_add_f32 v{vT+1}, v{U+2}, v{U+3}
    v_add_f32 v{vT+2}, v{U+4}, v{U+5}
    v_add_f32 v{vT+4}, v{U+6}, v{U+7}
    v_add_f32 v{vT}, v{vT}, v{vT+1}
    v_add_f32 v{vT+2}, v{vT+2}, v{vT+4}
    v_add_f32 v{vT}, v{vT}, v{vT+2}""")
    wave_sum(a, vT, sT4)
    a(f"""s_nop 1
    v_mov_b32 v{vT+1}, s{sT4}
    v_mul_f32 v{vT+1}, {f2u(1.0/512)}, v{vT+1}
    v_mov_b32 v{vT}, 0""")
    for i in range(8):
        a(f"v_sub_f32 v{vT+2}, v{U+i}, v{vT+1}\nv_fmac_f32 v{vT}, v{vT+2}, v{vT+2}")
    wave_sum(a, vT, sT4)
    a(f"""s_nop 1
    v_mov_b32 v{vT+2}, s{sT4}
    v_mul_f32 v{vT+2}, {f2u(1.0/512)}, v{vT+2}""")
    rne_bf16(a, vT + 1)
    rne_bf16(a, vT + 2)
    a(f"v_add_f32 v{vT+2}, {f2u(1e-5)}, v{vT+2}")
    rne_bf16(a, vT + 2)
    a(f"v_sqrt_f32 v{vT+2}, v{vT+2}\ns_nop 0")
    rne_bf16(a, vT + 2)
    a(f"""v_mov_b32 v{U}, v{vT+1}
    v_mov_b32 v{U+1}, s{sTAG}
    v_mov_b32 v{U+2}, v{vT+2}
    v_mov_b32 v{U+3}, s{sTAG}
    s_lshl_b32 s{sT4}, s{row_s}, 4
    s_add_u32 s{sT4}, s{sT4}, {WS_STAT}
    v_mov_b32 v{vT}, 0
    s_mov_b64 s[{sEX}:{sEX+1}], exec
    s_mov_b64 exec, 1""")
    a.vmop(f"buffer_store_dwordx4 v[{U}:{U+3}], v{vT}, s[{SWS}:{SWS+3}], s{sT4} offen sc1", "stat")
    a(f"s_mov_b64 exec, s[{sEX}:{sEX+1}]")


def stream(a, ch):
    a(f"s_waitcnt lgkmcnt(0)\ns_add_u32 s{sTAG}, s{sTAG}, 1")
    if ch == 0:
        a.vm = ["st0"] * 4 + ["lnrow", "lnrow"] + [f"st{g}" for g in range(1, NPRE) for _ in range(4)] + ["par"] * 3
        a(f"""v_and_b32 v3, 31, v{vLANE}
        v_bfe_u32 v{vT}, v3, 1, 3
        v_lshrrev_b32 v{vT+1}, 5, v{vLANE}
        v_xor_b32 v{vT}, v{vT}, v{vT+1}
        v_lshlrev_b32 v3, 7, v3
        v_lshl_add_u32 v3, v{vT}, 4, v3
        v_add_u32 v{vWS}, 16384, v3
        v_xor_b32 v{vWS+1}, 32, v{vWS}
        v_xor_b32 v{vWS+2}, 64, v{vWS}
        v_xor_b32 v{vWS+3}, 96, v{vWS}""")
        waddr0 = [vWS + i for i in range(4)]
        a.vmwait("lnrow")
        pstamp(a, 4)
        a(f"""s_lshl_b32 s{sT2}, s2, 3
        s_lshl_b32 s{sT3}, s{sRG}, 1
        s_add_u32 s{sT5}, s{sT2}, s{sT3}""")
        ln_stats(a, vACC, sT5)
        a(f"s_add_u32 s{sT5}, s{sT5}, 1")
        ln_stats(a, vACC + 4, sT5)
    else:
        a.vm = [f"st{g}" for g in range(NPRE) for _ in range(4)] + ["par"] * 3
        a(f"v_add_u32 v{vWM}, 24576, v{vTRL}")
        waddr0 = [vWM]
    if W2_AT == 0 and ch == 0:
        for wch in (0, 2, 1):
            w2_touch(a, wch)
    stamp(a, 0)
    if PSTAMP:
        a(f"s_lshl_b32 s{sT0}, s2, 3\ns_add_u32 s{sT0}, s{sT0}, s{sW}\ns_lshl_b32 s{sT0}, s{sT0}, 6\ns_add_u32 s{sT0}, s{sT0}, {WS_DBG + 0x40000}")
        a("v_mov_b32 v3, 0")
        for i in range(5):
            a(f"buffer_store_dword v{232+i}, v3, s[{SWS}:{SWS+3}], s{sT0} offen offset:{4*i}")
        a.vm += ["x"] * 5
    a(f"""s_lshr_b32 s{sCSM}, s{sRB}, 3
    s_add_u32 s{sCSM}, s{sCSM}, 1
    s_cmp_eq_u32 s{sRG}, 0
    s_cselect_b32 s{sCSM}, s{sCSM}, 0""")
    for i in range(4):
        a(f"v_mov_b32 v{ONES+i}, 0x3f803f80")
    for i in range(64):
        a(f"v_mov_b32 v{vACC+i}, 0")
    xaddr = [vXA + i for i in range(4)]

    slots = []
    for g in range(8):
        for j in range(4):
            for t in range(2):
                slots.append((g, 0, j, t))
    for g in range(8, 12):
        for c2 in range(2):
            for j in range(4):
                for t in range(2):
                    slots.append((g, c2, j, t))
    NS = len(slots)
    first_of = {}
    last_of = {}
    for n, (g, c2, j, t) in enumerate(slots):
        first_of.setdefault(g, n)
        last_of[g] = n
    hi_state = {"x": 0, "w0": 0, "w1": 0}

    def set_hi(key, regs, g):
        hi = ((g % NSLOT) * SLOT) >> 16
        if hi_state[key] != hi:
            for r in regs:
                a(f"v_xor_b32 v{r}, 0x10000, v{r}")
            hi_state[key] = hi

    def frag_reg(n):
        return vFR + 4 * (n % 4)

    def issue_reads(n):
        g, c2, j, t = slots[n]
        lo = ((g % NSLOT) * SLOT) & 0xffff
        f = frag_reg(n)
        tag = f"w{n}"
        if g < 8:
            if j == 0 and t == 0:
                set_hi("x", xaddr, g)
                set_hi("w0", waddr0, g)
                for jj in range(4):
                    r = vXF + 4 * (4 * g + jj)
                    a.ldsop(f"ds_read_b128 v[{r}:{r+3}], v{vXA+jj} offset:{lo}", f"x{g}_{jj}")
            if ch == 0:
                a.ldsop(f"ds_read_b128 v[{f}:{f+3}], v{vWS+j} offset:{lo + t*4096}", tag)
            else:
                o = lo + t * 4096 + j * 1024
                a.ldsop(f"ds_read_b64_tr_b16 v[{f}:{f+1}], v{vWM} offset:{o}", tag)
                a.ldsop(f"ds_read_b64_tr_b16 v[{f+2}:{f+3}], v{vWM} offset:{o+256}", tag)
        else:
            if c2 == 0 and j == 0 and t == 0:
                set_hi("w1", [vW1], g)
            o = lo + c2 * 16384 + t * 4096 + j * 1024
            a.ldsop(f"ds_read_b64_tr_b16 v[{f}:{f+1}], v{vW1} offset:{o}", tag)
            a.ldsop(f"ds_read_b64_tr_b16 v[{f+2}:{f+3}], v{vW1} offset:{o+256}", tag)

    def mfma(n):
        g, c2, j, t = slots[n]
        f = frag_reg(n)
        if g < 8:
            xf = vXF + 4 * (4 * g + j)
            acc = vACC + 16 * t
            a.lgwait(f"x{g}_{j}")
        else:
            xf = vXF + 4 * (4 * (2 * (g - 8) + c2) + j)
            acc = vACC2 + 16 * t
        a.lgwait(f"w{n}")
        if ch == 0 and g < 8:
            a(f"v_mfma_f32_32x32x16_bf16 v[{acc}:{acc+15}], v[{xf}:{xf+3}], v[{f}:{f+3}], v[{acc}:{acc+15}]")
        else:
            a(f"v_mfma_f32_32x32x16_bf16 v[{acc}:{acc+15}], v[{f}:{f+3}], v[{xf}:{xf+3}], v[{acc}:{acc+15}]")

    def colsum_at(n):
        g, c2, j, t = slots[n]
        if (g == 0) or (g == 8 and c2 == 1):
            acc = CSACC if g == 0 else CS1ACC
            lab = a.newlab("CSK")
            f = frag_reg(n)
            c = "0" if j == 0 else f"v[{acc}:{acc+15}]"
            a(f"""s_cmp_eq_u32 s{sCSM}, {t+1}
            s_cbranch_scc0 {lab}
            v_mfma_f32_32x32x16_bf16 v[{acc}:{acc+15}], v[{ONES}:{ONES+3}], v[{f}:{f+3}], {c}""")
            a.label(lab)

    dmaq = []

    def stage_barrier(g):
        if ch == 0 and g == 7:
            gather_finish(a, 0, GATH0, a.nvm - marks["g0"], 3)
            for i in range(16):
                a(f"v_mov_b32 v{GATH0+i}, 0")
        if g == 10 and ch == 1:
            a.vmwait("u0")
            write_flag(a, 0, ch)
        a.vmwait(f"st{g+1}")
        a("s_barrier")
        if ch == 0 and g in (8, 9) and marks.get("edone") and not marks.get("published"):
            a.fill_all(); s_publish(a); a.lg = []
            marks["published"] = True
        nxt = g + 3
        if E("X_NODMA", 0):
            pass
        elif nxt < 8:
            dmaq.extend(dma_p0(nxt, ch))
        elif nxt < 12:
            dmaq.extend(dma_p1(nxt - 8, ch))
        if g == 9:
            dmaq.extend(p2_B(0)); dmaq.extend(p2_B(1))
        if g == 10:
            dmaq.extend(p2_B(2)); dmaq.extend(p2_B(3))

    marks = {}
    if (PRIO == 2 and ch == 1) or (PRIO == 3 and ch == 0):
        a("s_setprio 1")
    a.vmwait("st0")
    a("s_barrier")
    stamp(a, 1)
    for s_ in range(NPRE, 3):
        dmaq.extend(dma_p0(s_, ch))
    for n in range(LOOK):
        issue_reads(n)
    for n in range(NS):
        g, c2, j, t = slots[n]
        mfma(n)
        colsum_at(n)
        nn = n + LOOK
        if nn < NS:
            if slots[nn][0] != slots[nn - 1][0]:
                stage_barrier(slots[nn - 1][0])
            issue_reads(nn)
        every = (PACE0 if g < 8 else PACE1)
        npop = 2 if len(dmaq) > 4 else (1 if (n % every == 0) else 0)
        for _ in range(DMA_RATE if DMA_RATE else npop):
            if dmaq:
                code, tag = dmaq.pop(0)
                a.vmop(code, tag)
        if g >= 8:
            a.fill(FILL0 if ch == 0 else FILL)
        elif g >= 3:
            a.fill(3)
        if W2_AT == 4 and g >= W2_G0 and (n - first_of[g]) in (W2_P1, W2_P2):
            k = 2 * (g - W2_G0) + (0 if (n - first_of[g]) == W2_P1 else 1)
            if ch == 1 and k < 8:
                w2_touch16(a, k, vDS)
            if ch == 0 and k in (1, 3):
                w2_touch16(a, 6 + (k // 2), vDX0)
        if n == last_of[g]:
            if P1DBG == 4 and g < 9:
                a(f"s_memtime s[{STAMP0+2*(5+g)}:{STAMP0+2*(5+g)+1}]")
            if P1DBG == 5 and g >= 7:
                a(f"s_memtime s[{STAMP0+2*(g-2)}:{STAMP0+2*(g-2)+1}]")
            if P1DBG == 1 and g in (8, 9, 10):
                stamp(a, {8: 9, 9: 13, 10: 6}[g], force=True)
            if P1DBG == 2 and g in (1, 3, 5):
                stamp(a, {1: 9, 3: 13, 5: 6}[g], force=True)
            if g == 0:
                colsum_store(a, CSACC, ch)
                a("s_nop 7")
                for i in range(16):
                    a(f"v_mov_b32 v{CSACC+i}, 0")
            if W2_AT == 1 and ch == 0 and g in (3, 4, 8):
                w2_touch(a, {3: 0, 4: 2, 8: 1}[g])
            if W2_AT == 3 and ch == 1 and W2_G0 <= g < W2_G0 + 8:
                w2_touch16(a, g - W2_G0, vDS)
            if W2_AT == 3 and ch == 0 and g in (W2_G0 + 1, W2_G0 + 3):
                w2_touch16(a, 6 + (g - W2_G0) // 2, vDX0)
            if W2_AT == 2 and ch == 1 and g == 9:
                for wch in (0, 2, 1):
                    w2_touch(a, wch, junk=vDS)
            if g == 2 and ch == 0:
                a.vmwait("par")
                q = Q()
                s_params(q)
                a.fillq = q.q
            if g == 5 and ch == 0:
                gather_loads(a, 0, GATH0, 3, tracked=True)
                marks["g0"] = a.nvm
            if g == 7:
                a.fill_all()
                stamp(a, 2)
                if PRIO == 1 and ch == 0:
                    a("s_setprio 1")
                q = Q()
                if ch == 1:
                    q(f"""s_lshl_b32 s{sT5}, s{sCG}, 11
                    s_add_u32 s{sT5}, s{sT5}, s{sHPOS}""")
                    row_stats_M(q, vT)
                    gelu_epi(q, vACC, sT5, 64 * 4, "u0", 4, vT)
                else:
                    s_epilogue1(q)
                    q.q.append(("call", lambda: marks.__setitem__("edone", True)))
                a.fillq = q.q
            if g == 8:
                colsum_store(a, CS1ACC, 2 + ch, koff=1)
            if g == 9:
                a.fill_all()
                stamp(a, 3)
            if g == 10 and ch == 0:
                lookback_loads(a)
                a(f"""s_lshl_b32 s{sT5}, s{sCG}, 12
                s_add_u32 s{sMU}, s{sHPOS}, s{sT5}
                s_add_u32 s{sMU}, s{sMU}, {86*1024}""")
            if g == 10 and ch == 0 and not marks.get("published"):
                s_publish(a); a.lg = []
            if g == 10 and ch == 1:
                gather_loads(a, 1, GATH1, 3, tracked=True)
                marks["g1"] = a.nvm
    stamp(a, 4)
    while dmaq:
        code, tag = dmaq.pop(0)
        a.vmop(code, tag)
    a.fill_all()
    if ch == 0:
        q = Q()
        s_work_atoms(a, q)
        a.fillq = q.q
        a.fill_all()
        stamp(a, 6)
    else:
        gather_finish(a, 1, GATH1, a.nvm - marks["g1"], 3)
        poll_flags(a, 0, tracked=True)
        for st in range(4):
            for code, tag in p2_A(st):
                a.vmop(code, tag)
    a("s_barrier")
    stamp(a, 5)
    if ch == 0:
        for st in range(4):
            for code, tag in p2_A(st):
                a.vmop(code, tag)
    if ch == 1:
        lab = a.newlab("U2S")
        stamp(a, 6)
        a(f"""s_cmp_ge_u32 s{sCG}, 11
        s_cbranch_scc1 {lab}
        s_lshl_b32 s{sT5}, s{sCG}, 11
        s_add_u32 s{sT5}, s{sT5}, s{sHPOS}
        s_add_u32 s{sT5}, s{sT5}, {64*1024}""")
        gelu_epi(a, vACC2, sT5, 192 * 4, "u12", 48, vT, maybe=True)
        a.label(lab)
        a.lg = []
        marks["u12"] = a.nvm
        for st in range(4, 8):
            for code, tag in p2_B(st):
                a.vmop(code, tag)
        a(f"s_waitcnt vmcnt({a.nvm - marks['u12']})")
        write_flag(a, 1, 1)
        stamp(a, 8)
    else:
        a(f"""s_lshl_b32 s{sT5}, s{sCG}, 11
        s_add_u32 s{sT5}, s{sT5}, s{sHPOS}
        s_add_u32 s{sT5}, s{sT5}, {32*1024}""")
        a(f"""s_lshl_b32 s{sT5}, s{sCG}, 11
        s_add_u32 s{sT5}, s{sT5}, s{sHPOS}
        s_add_u32 s{sT5}, s{sT5}, {32*1024}""")
        gelu_epi(a, vACC2, sT5, 128 * 4, "u12", 48, vT)
        for st in range(4, 8):
            for code, tag in p2_B(st):
                a.vmop(code, tag)
        a.vmwait("h")
        write_flag(a, 2, 0)
        stamp(a, 8)
    a.marks = marks
    phase2(a, ch)


def phase2(a, ch):
    rt = ch
    vB0, vB1, vC0, vC1, vXO, vSO, vDO = 4, 5, 6, 7, 9, 11, 12
    vDK = 8
    vBF = 176
    vAC = 208
    vEX = 104
    a(f"""v_lshrrev_b32 v{vT}, 5, v{vLANE}
    v_lshlrev_b32 v{vT}, 2, v{vT}
    v_bfe_u32 v3, v{vLANE}, 2, 2
    v_add_u32 v{vT}, v{vT}, v3
    v_lshlrev_b32 v{vT}, 7, v{vT}
    v_bfe_u32 v3, v{vLANE}, 3, 1
    v_lshl_add_u32 v{vT}, v3, 6, v{vT}
    v_bfe_u32 v3, v{vLANE}, 4, 1
    v_lshl_add_u32 v{vT}, v3, 5, v{vT}
    v_and_b32 v3, 3, v{vLANE}
    v_lshl_add_u32 v{vT}, v3, 3, v{vT}
    s_lshl_b32 s{sT0}, s{sRG}, 12
    v_add_u32 v{vB0}, s{sT0}, v{vT}
    v_xor_b32 v{vB1}, 64, v{vB0}
    v_and_b32 v{vT}, 31, v{vLANE}
    v_bfe_u32 v3, v{vT}, 1, 3
    v_lshrrev_b32 v{vT+1}, 5, v{vLANE}
    s_lshr_b32 s{sT0}, s{sRG}, 1
    s_lshl_b32 s{sT0}, s{sT0}, 2
    v_add_u32 v{vT+1}, s{sT0}, v{vT+1}
    v_xor_b32 v3, v3, v{vT+1}
    v_lshlrev_b32 v{vT}, 7, v{vT}
    v_lshl_add_u32 v{vT}, v3, 4, v{vT}
    s_and_b32 s{sT0}, s{sRG}, 1
    s_lshl_b32 s{sT0}, s{sT0}, 13
    v_add_u32 v{vC0}, s{sT0}, v{vT}
    v_xor_b32 v{vC1}, 32, v{vC0}
    v_lshrrev_b32 v{vT}, 5, v{vLANE}
    v_lshlrev_b32 v{vT}, 4, v{vT}
    s_lshl_b32 s{sT0}, s{sRB2}, 6
    s_lshl_b32 s{sT1}, s{sRG}, 2
    s_add_u32 s{sT0}, s{sT0}, s{sT1}
    s_add_u32 s{sT0}, s{sT0}, {32*rt}
    v_add_u32 v{vT}, s{sT0}, v{vT}
    v_lshlrev_b32 v{vSO}, 4, v{vT}
    v_lshlrev_b32 v{vT}, 9, v{vT}
    v_and_b32 v3, 31, v{vLANE}
    s_lshl_b32 s{sT0}, s{sCB}, 6
    v_add_u32 v3, s{sT0}, v3
    v_add_u32 v{vT}, v{vT}, v3
    v_lshlrev_b32 v{vXO}, 1, v{vT}
    v_lshlrev_b32 v{vDO}, 1, v3""")

    def epi_loads():
        a.vmop(f"buffer_load_ushort v{vDK}, v{vDO}, s[{ST}:{ST+3}], 0 offen", "epi")
        a.vmop(f"buffer_load_ushort v{vDK+2}, v{vDO}, s[{ST}:{ST+3}], 0 offen offset:64", "epi")
        for ct in range(2):
            for i in range(4):
                a.vmop(f"buffer_load_ushort v{vEX+4*ct+i}, v{vXO}, s[{SX}:{SX+3}], 0 offen offset:{i*1024 + ct*64}", "epi")
        a(f"s_mov_b32 s{sT0}, {WS_STAT}")
        for i in range(4):
            a.vmop(f"buffer_load_dword v{vEX+8+i}, v{vSO}, s[{SWS}:{SWS+3}], s{sT0} offen offset:{i*16} sc1", "epi")
            a.vmop(f"buffer_load_dword v{vEX+12+i}, v{vSO}, s[{SWS}:{SWS+3}], s{sT0} offen offset:{i*16+8} sc1", "epi")
    def skip_term():
        a.vmwait("epi")
        D0, D1 = vDK, vDK + 2
        X = vEX; M_ = vEX + 8; S_ = vEX + 12; Y = vEX + 16
        a(f"v_lshlrev_b32 v{D0}, 16, v{D0}\nv_lshlrev_b32 v{D1}, 16, v{D1}\nv_lshlrev_b32 v{vXO}, 1, v{vXO}")
        for i in range(4):
            a(f"v_rcp_f32 v{S_+i}, v{S_+i}")
        for k in range(8):
            a(f"v_lshlrev_b32 v{X+k}, 16, v{X+k}")
        for k in range(8):
            a(f"v_sub_f32 v{Y+k}, v{X+k}, v{M_+(k&3)}")

        def rnd():
            for k in range(0, 8, 2):
                a(f"v_cvt_pk_bf16_f32 v{vT+1}, v{Y+k}, v{Y+k+1}")
                a(f"v_lshlrev_b32 v{Y+k}, 16, v{vT+1}\nv_and_b32 v{Y+k+1}, 0xffff0000, v{vT+1}")
        rnd()
        for k in range(8):
            a(f"v_mul_f32 v{Y+k}, v{Y+k}, v{S_+(k&3)}")
        rnd()
        for k in range(8):
            a(f"v_mul_f32 v{Y+k}, v{Y+k}, v{D0 if k < 4 else D1}")
        rnd()
        for k in range(8):
            a(f"v_add_f32 v{Y+k}, v{Y+k}, v{X+k}")

    for i in range(32):
        a(f"v_mov_b32 v{vAC+i}, 0")
    hi2 = {"v": 0}

    def p2_reads(st, n):
        slot = (st % 8) * 16384
        hi, lo = slot >> 16, slot & 0xffff
        if n == 0 and hi != hi2["v"]:
            for r in (vB0, vB1, vC0, vC1):
                a(f"v_xor_b32 v{r}, 0x10000, v{r}")
            hi2["v"] = hi
        s_, ct = n >> 1, n & 1
        f = vBF + 16 * (st % 2) + 4 * n
        tag = f"r{st}_{n}"
        if ORDER[st][0] == "M":
            vb = vB0 if ct == 0 else vB1
            a.ldsop(f"ds_read_b64_tr_b16 v[{f}:{f+1}], v{vb} offset:{lo + s_*2048}", tag)
            a.ldsop(f"ds_read_b64_tr_b16 v[{f+2}:{f+3}], v{vb} offset:{lo + s_*2048 + 1024}", tag)
        else:
            a.ldsop(f"ds_read_b128 v[{f}:{f+3}], v{vC0+s_} offset:{lo + ct*4096}", tag)

    def p2_barrier(st):
        a.vmwait(f"B{st}")
        a("s_barrier")

    epi_loads()
    p2_barrier(0)
    stamp(a, 7)
    for n in range(4):
        p2_reads(0, n)
    dq = []
    a_next = 4
    allowed = 3
    for st in range(NST2):
        if P1DBG == 6 and st >= 5:
            a(f"s_memrealtime s[{STAMP0+2*(st-5)}:{STAMP0+2*(st-5)+1}]") if (st - 5) != 3 else None
        if st == 4:
            stamp(a, 9)
        if st == 11:
            stamp(a, 13)
        if st + 1 < NST2:
            if ch == 0:
                if st + 1 == H_ST:
                    a.vmwait("u12")
                    write_flag(a, 1, 0)
                if st + 1 == E2_ST:
                    poll_flags(a, 2, tracked=True)
                if st + 1 == E1_PRE:
                    flag_preload(a, 1, 244)
                if st + 1 == E1_ST:
                    poll_flags(a, 1, tracked=True, pre=244)
            p2_barrier(st + 1)
            if st + 1 == E2_ST:
                allowed = 11
            if st + 1 == E1_ST:
                allowed = NST2 - 1
            nissue = 0
            while a_next <= min(allowed, st + NA - 1, NST2 - 1) and (a_next < 12 or nissue < A_PACE or a_next <= st + 2):
                dq.extend(p2_A(a_next)); a_next += 1; nissue += 1
            if st >= 1 and st + 7 < NST2:
                dq.extend(p2_B(st + 7))
        g = sum(1 for x in dq if x[1] == f"A{st}")
        while any(x[1] == f"A{st}" for x in dq):
            code, tag = dq.pop(0); a.vmop(code, tag)
        a.vmwait(f"A{st}")
        per = (len(dq) + 3) // 4
        for n in range(4):
            s_, ct = n >> 1, n & 1
            f = vBF + 16 * (st % 2) + 4 * n
            ar = ARING[st % NA] + 4 * s_
            ac = vAC + 16 * ct
            a.lgwait(f"r{st}_{n}")
            a(f"v_mfma_f32_32x32x16_bf16 v[{ac}:{ac+15}], v[{ar}:{ar+3}], v[{f}:{f+3}], v[{ac}:{ac+15}]")
            if st + 1 < NST2:
                p2_reads(st + 1, n)
            for _ in range(per):
                if dq:
                    code, tag = dq.pop(0)
                    a.vmop(code, tag)
        if st == SKIP_ST:
            skip_term()
    stamp(a, 10)
    a(f"""s_nop 15
    s_barrier
    s_lshl_b32 s{sT0}, s{sRG}, 11
    v_lshlrev_b32 v{vT}, 4, v{vLANE}
    v_add_u32 v{vT+1}, s{sT0}, v{vT}
    v_add_u32 v{vT+1}, {rt*32768}, v{vT+1}""")
    for q in range(4):
        for ct in range(2):
            r = vAC + 16 * ct + 4 * q
            a(f"ds_write_b128 v{vT+1}, v[{r}:{r+3}] offset:{q*8192 + ct*1024}")
    a(f"""s_lshl_b32 s{sT0}, s{sRG}, 13
    v_add_u32 v{vT+1}, s{sT0}, v{vT}
    v_add_u32 v{vT+1}, {rt*32768}, v{vT+1}
    s_waitcnt lgkmcnt(0)
    s_barrier""")
    R = vAR
    Y = vEX + 16
    for src in range(4):
        for ct in range(2):
            r = R + 8 * src + 4 * ct
            a(f"ds_read_b128 v[{r}:{r+3}], v{vT+1} offset:{src*2048 + ct*1024}")
    a("s_waitcnt lgkmcnt(0)")
    for k in range(8):
        a(f"v_add_f32 v{R+k}, v{R+k}, v{R+8+k}")
        a(f"v_add_f32 v{R+16+k}, v{R+16+k}, v{R+24+k}")
    for k in range(8):
        a(f"v_add_f32 v{R+k}, v{R+k}, v{R+16+k}")
    for k in range(8):
        a(f"v_add_f32 v{R+k}, v{R+k}, v{Y+k}")
    for ct in range(2):
        for i in range(4):
            ro = i * 2048 + ct * 128
            so, io = (ro // 4096) * 4096, ro % 4096
            a(f"s_mov_b32 s{sT0}, {so}")
            a(f"buffer_store_dword v{R+4*ct+i}, v{vXO}, s[{SO}:{SO+3}], s{sT0} offen offset:{io} {OUTF}")
    if ch == 0:
        lab = a.newlab("EP")
        a(f"""s_cmp_eq_u32 s{sRB2}, 31
        s_cbranch_scc0 {lab}
        s_cmp_eq_u32 s{sCB}, 0
        s_cbranch_scc0 {lab}
        s_cmp_eq_u32 s{sW}, 0
        s_cbranch_scc0 {lab}
        v_mov_b32 v4, s{sTAG}
        v_mov_b32 v3, 0
        s_mov_b32 s{sT0}, {WS_EPOCH}
        s_mov_b64 exec, 1
        buffer_store_dword v4, v3, s[{SWS}:{SWS+3}], s{sT0} offen sc1
        s_mov_b64 exec, -1""")
        a.label(lab)
    stamp(a, 11)
    if STAMPS:
        a("s_waitcnt vmcnt(0)")
        stamp(a, 12)
    stamp_flush(a, 14)
    a("s_endpgm")


if __name__ == "__main__":
    main(sys.argv[1] if len(sys.argv) > 1 else "cdna_kernels/" + NAME + ".s")
```

```python
import sys, math, struct, os

NAME = "parallel_sum__ssm_conv_s5__glu_gated_geglu__prompt"
KNAME = NAME + "_kernel"

E = lambda k, d: int(os.environ.get(k, str(d)))
STAMPS = E("STAMPS", 0)
SPIN_MAX = E("SPIN_MAX", 200000)
CODE_PREFETCH = E("CODE_PREFETCH", 1)
W2_PREFETCH = E("W2_PREFETCH", 1)
FILL = E("FILL", 7)
FILL0 = E("FILL0", 14)
SW_DELAY = E("SW_DELAY", 8)
NPRE = E("NPRE", 2)
SKIP_ST = E("SKIP_ST", 13)
OUTF = os.environ.get("OUTF", "sc0 sc1")
V17 = E("V17", 1)
DMA_RATE = E("DMA_RATE", 0)
PACE0 = E("PACE0", 2)
PACE1 = E("PACE1", 3)
PRIO = E("PRIO", 0)
W2_AT = E("W2_AT", 4)
W2_G0 = E("W2_G0", 8)
W2_P1 = E("W2_P1", 2)
W2_P2 = E("W2_P2", 9)
LOOK = E("LOOK", 3)
A_TOUCH = E("A_TOUCH", 0)
E2_ST = E("E2_ST", 3)
E1_ST = E("E1_ST", 6)
H_ST = E("H_ST", 2)
E1_PRE = E("E1_PRE", 4)
A_PACE = E("A_PACE", 1)
A_PACE2 = E("A_PACE2", 3)
X_NOMFMA = E("X_NOMFMA", 0)
X_NOREAD = E("X_NOREAD", 0)

NKS = 150
RT_STRIDE = NKS * 1024
WS_AGG = 0xA00000
WS_STAT = 0xA40000
WS_CS = 0xA80000
WS_FLG = 0xB00000
WS_EPOCH = 0xB10000
WS_DUMMY = 0xB20000
WS_DBG = 0xF00000
WS_SIZE = 0x10000000

LOG2E = 1.4426950408889634
SLOT = 32768
NSLOT = 4
SCR = NSLOT * SLOT
SCR_T = SCR
SCR_CS = 16384
SCR_ST = 17408
SCR_ES = 18432
SCR_RV = 20480
LDS_BYTES = 163840
NST2 = 19
NBS, NAS = 3, 5
B_BASE, A_BASE = 0, 49152


def f2u(x):
    return struct.unpack("<I", struct.pack("<f", x))[0]


class A:
    def __init__(self):
        self.l = []
        self.nlab = 0
        self.vm = []
        self.nvm = 0
        self.lg = []
        self.fillq = []

    def __call__(self, s):
        for line in s.strip("\n").split("\n"):
            line = line.strip()
            if not line:
                continue
            if X_NOMFMA and line.startswith("v_mfma"):
                continue
            self.l.append("  " + line)

    def label(self, name):
        self.l.append(name + ":")

    def newlab(self, p="L"):
        self.nlab += 1
        return f"{p}_{self.nlab}"

    def vmop(self, s, tag, maybe=False):
        self(s)
        if not maybe:
            self.vm.append(tag)
            self.nvm += 1

    def vmwait(self, tag):
        idx = [i for i, t in enumerate(self.vm) if t == tag]
        if not idx:
            return
        n = len(self.vm) - 1 - idx[-1]
        assert n <= 63, n
        self(f"s_waitcnt vmcnt({n})")
        self.vm = self.vm[idx[-1] + 1:]

    def vmwait_all(self):
        self("s_waitcnt vmcnt(0)")
        self.vm = []

    def ldsop(self, s, tag):
        if X_NOREAD and tag[0] in "xwr":
            return
        self(s)
        self.lg.append(tag)
        assert len(self.lg) <= 30

    def lgwait(self, tag):
        idx = [i for i, t in enumerate(self.lg) if t == tag]
        if not idx:
            return
        n = len(self.lg) - 1 - idx[-1]
        n = min(n, 15)
        self(f"s_waitcnt lgkmcnt({n})")
        self.lg = self.lg[len(self.lg) - n:] if n else []

    def lgwait_all(self):
        self("s_waitcnt lgkmcnt(0)")
        self.lg = []

    def fill(self, n):
        if E("X_NOFILL", 0):
            self.fillq = [at for at in self.fillq if at[0] in ("vm",) or (at[0] == "call" and False)]
        while n > 0 and self.fillq:
            at = self.fillq.pop(0)
            k = at[0]
            if k == "v":
                self(at[1]); n -= 1
            elif k == "lds":
                self.ldsop(at[1], at[2]); n -= 1
            elif k == "lgw":
                self.lgwait(at[1])
            elif k == "vm":
                self.vmop(at[1], at[2], at[3]); n -= 1
            elif k == "call":
                at[1]()
            elif k == "calln":
                at[1](); n -= at[2]

    def fill_all(self):
        self.fill(10 ** 9)

    def text(self):
        return "\n".join(self.l) + "\n"


class Q:
    def __init__(self):
        self.q = []

    def __call__(self, s):
        for line in s.strip("\n").split("\n"):
            line = line.strip()
            if line:
                self.q.append(("v", line))

    def ldsop(self, s, tag):
        self.q.append(("lds", s, tag))

    def lgwait(self, tag):
        self.q.append(("lgw", tag))

    def vmop(self, s, tag, maybe=False):
        self.q.append(("vm", s, tag, maybe))


def srd(a, s, ptr_lo, nbytes):
    a(f"""s_mov_b32 s{s}, s{ptr_lo}
    s_and_b32 s{s+1}, s{ptr_lo+1}, 0xffff
    s_mov_b32 s{s+2}, {nbytes}
    s_mov_b32 s{s+3}, 0x20000""")


def rne_bf16(a, v):
    a(f"v_cvt_pk_bf16_f32 v{v}, v{v}, v{v}\nv_lshlrev_b32 v{v}, 16, v{v}")


def wave_sum(a, v, tmp_s):
    for ctrl in ("row_shr:1", "row_shr:2", "row_shr:4", "row_shr:8"):
        a(f"s_nop 1\nv_add_f32_dpp v{v}, v{v}, v{v} {ctrl} row_mask:0xf bank_mask:0xf")
    a(f"s_nop 1\nv_add_f32_dpp v{v}, v{v}, v{v} row_bcast:15 row_mask:0xa bank_mask:0xf")
    a(f"s_nop 1\nv_add_f32_dpp v{v}, v{v}, v{v} row_bcast:31 row_mask:0xc bank_mask:0xf")
    a(f"s_nop 1\nv_readlane_b32 s{tmp_s}, v{v}, 63")


SX, SS, SM, SWS, SWD, SC, SO, ST = 4, 8, 12, 16, 20, 24, 28, 32
sW, sRG, sRB, sCG = 36, 37, 38, 39
sKC0, sU0B, sDUM, sTAG = 72, 73, 74, 75
sT0, sT1, sT2, sT3, sT4, sT5 = 76, 77, 78, 79, 80, 81
sMX, sMS, sMU, sM1 = 82, 83, 84, 85
sCSM = 86
sRB2, sCB, sRT, sCT = 87, 88, 89, 90
sSPIN = 91
sEX = 92
sMASK = 94
sAOFF, sLW, s3RG, s2RG = 96, 97, 98, 99
sXB, sHPOS = 100, 101
SM2 = 68
STAMP0 = 40
P_X, P_LRE, P_LIM, P_BRE, P_BIM, P_CRE, P_CIM, P_LDT = 40, 42, 44, 46, 48, 50, 52, 54
P_DSK, P_BX, P_WG, P_WU, P_WD, P_OUT, P_DBG, P_WS = 56, 58, 60, 62, 64, 66, 68, 70

vLANE = 1
vXA = 4
vWS = 8
vWM = 8
vW1 = 12
vDX0, vDX1, vDS, vDM = 13, 14, 15, 16
vDS1 = 47
vT = 17
ONES = 28
vAr, vAi, vKr, vKi, vA16r, vA16i, vA128r, vA128i = 32, 33, 34, 35, 36, 37, 38, 39
vRINV, vNM = 40, 41
vDA, vDB, vDC0, vDC1 = 42, 43, 44, 45
vK1, vCA = 46, 47
vFR = 48
vACC = 64
vACC2 = 96
vXF = 128
CSACC = 96
GATH0 = 112
CS1ACC = 128
GATH1 = 144
JUNK = 255


PSTAMP = E("PSTAMP", 0)


def pstamp(a, i):
    if PSTAMP:
        a(f"s_memrealtime s[{sEX}:{sEX+1}]\ns_waitcnt lgkmcnt(0)\nv_mov_b32 v{232+i}, s{sEX}")


DBGD = E("DBGD", -1)


P1DBG = E("P1DBG", 0)


def stamp(a, i, force=False):
    if STAMPS and P1DBG == 6:
        if i == 0:
            a(f"s_mov_b32 s{STAMP0+6}, s{sMASK}\ns_mov_b32 s{STAMP0+7}, s{sMASK+1}")
        return
    if STAMPS and P1DBG in (4, 5) and i >= 4:
        if i == 4 and False:
            pass
        return
    if STAMPS and P1DBG in (4, 5) and i == 1:
        a(f"s_memtime s[{STAMP0+2*4}:{STAMP0+2*4+1}]")
    if STAMPS and P1DBG == 3 and i in (1, 2, 4):
        j = {1: 9, 2: 13, 4: 6}[i]
        a(f"s_memtime s[{STAMP0+2*j}:{STAMP0+2*j+1}]")
    if STAMPS:
        if i == 3:
            return
        if P1DBG and i in (6, 9, 13) and not force:
            return
        a(f"s_memrealtime s[{STAMP0+2*i}:{STAMP0+2*i+1}]")
        if i == 0:
            a(f"s_mov_b32 s{STAMP0+6}, s{sMASK}\ns_mov_b32 s{STAMP0+7}, s{sMASK+1}")


def stamp_flush(a, n):
    if not STAMPS:
        return
    a("s_waitcnt lgkmcnt(0)")
    a(f"s_lshl_b32 s{sT0}, s2, 3\ns_add_u32 s{sT0}, s{sT0}, s{sW}\ns_lshl_b32 s{sT0}, s{sT0}, 6\ns_add_u32 s{sT0}, s{sT0}, {WS_DBG}")
    a("v_mov_b32 v3, 0")
    for i in range(n):
        a(f"v_mov_b32 v2, s{STAMP0+2*i}")
        a(f"buffer_store_dword v2, v3, s[{SWS}:{SWS+3}], s{sT0} offen offset:{4*i}")
    if DBGD >= 0:
        lab = a.newlab("DD")
        a(f"""s_cmp_eq_u32 s2, {DBGD}
        s_cbranch_scc0 {lab}
        s_cmp_eq_u32 s{sW}, {E("DBGW", 0)}
        s_cbranch_scc0 {lab}
        s_load_dwordx2 s[{sT2}:{sT3}], s[0:1], 112
        s_waitcnt lgkmcnt(0)
        s_mov_b32 s{ST}, s{sT2}
        s_and_b32 s{ST+1}, s{sT3}, 0xffff
        s_mov_b32 s{ST+2}, 256
        s_mov_b32 s{ST+3}, 0x20000
        v_mov_b32 v3, 0""")
        for i in range(n):
            a(f"v_mov_b32 v2, s{STAMP0+2*i}")
            a(f"buffer_store_dword v2, v3, s[{ST}:{ST+3}], 0 offen offset:{4*i}")
        a.label(lab)


def dma_p0(s, ch):
    slot = (s % NSLOT) * SLOT
    it = []
    if ch == 1:
        pre = f"""s_add_u32 s{sT0}, s{sKC0}, {s}
        s_and_b32 s{sT0}, s{sT0}, 7
        s_lshl_b32 s{sT3}, s{sT0}, 7
        s_add_u32 s{sT4}, s{sT3}, 16384
        """
        for i in range(4):
            vd = vDX0 if i % 2 == 0 else vDX1
            so = sT3 if i < 2 else sT4
            it.append(((pre if i == 0 else "") + f"""s_add_u32 m0, s{sLW}, {slot + i*1024}
            s_nop 0
            buffer_load_dwordx4 v{vd}, s[{SX}:{SX+3}], s{so} offen lds""", f"st{s}"))
    else:
        pre = f"""s_add_u32 s{sT0}, s{sKC0}, {s}
        s_and_b32 s{sT0}, s{sT0}, 7
        s_lshl_b32 s{sT3}, s{sT0}, 7
        s_mul_i32 s{sT2}, s{sT0}, {64*2752}
        s_add_u32 s{sT2}, s{sT2}, s{sU0B}
        """
        for i in range(2):
            vd = vDS if i == 0 else vDS1
            it.append(((pre if i == 0 else "") + f"""s_add_u32 m0, s{sMS}, {slot + i*1024}
            s_nop 0
            buffer_load_dwordx4 v{vd}, s[{SS}:{SS+3}], s{sT3} offen lds""", f"st{s}"))
        for mat in range(2):
            sr = SM if mat == 0 else SM2
            it.append((f"""s_add_u32 m0, s{sM1}, {slot + 24576 + mat*4096}
            s_nop 0
            buffer_load_dwordx4 v{vDM}, s[{sr}:{sr+3}], s{sT2} offen lds""", f"st{s}"))
    return it


def dma_p1(t, ch):
    g = 8 + t
    slot = (g % NSLOT) * SLOT
    it = []
    c2 = ch
    pre = f"""s_add_u32 s{sT0}, s{sKC0}, {2*t+c2}
    s_and_b32 s{sT0}, s{sT0}, 7
    s_mul_i32 s{sT2}, s{sT0}, {64*2752}
    s_add_u32 s{sT2}, s{sT2}, s{sU0B}
    s_add_u32 s{sT2}, s{sT2}, 64
    s_add_u32 s{sT3}, s{sT2}, s{sDUM}
    """
    for mat in range(2):
        sr = SM if mat == 0 else SM2
        for j in range(2):
            so = sT2 if j == 0 else sT3
            it.append(((pre if (mat == 0 and j == 0) else "") + f"""s_add_u32 m0, s{sM1}, {slot + c2*16384 + j*8192 + mat*4096}
            s_nop 0
            buffer_load_dwordx4 v{vDM}, s[{sr}:{sr+3}], s{so} offen lds""", f"st{g}"))
    return it


ORDER = [("M", i) for i in range(4)] + [("S", j) for j in range(8)] + [("M", i) for i in range(4, 11)]


NA = E("NA", 10)
vAR = 128
ARING = [128, 136, 144, 152, 160, 168, 64, 72, 80, 88]
vAG = 42


def p2_A(st):
    kind, ix = ORDER[st]
    ks0 = 8 * ix if kind == "M" else 86 + 8 * ix
    r = ARING[st % NA]
    it = []
    if (kind, ix) == ("M", 10):
        first = f"""s_mov_b32 s{sT1}, {ks0*1024}
        s_cmp_eq_u32 s{sRG}, 3
        s_cselect_b32 s{sT1}, {(ks0-2)*1024}, s{sT1}"""
    else:
        first = f"s_mov_b32 s{sT1}, {ks0*1024}"
    it.append((first + f"""
    buffer_load_dwordx4 v[{r}:{r+3}], v{vDA}, s[{SWS}:{SWS+3}], s{sT1} offen sc1""", f"A{st}"))
    it.append((f"""buffer_load_dwordx4 v[{r+4}:{r+7}], v{vDA}, s[{SWS}:{SWS+3}], s{sT1} offen offset:1024 sc1""", f"A{st}"))
    return it


def p2_B(st):
    slot = (st % 8) * 16384
    kind, ix = ORDER[st]
    it = []
    if kind == "M":
        if ix < 3:
            reg, c = s3RG, 3 * 4 * ix
        elif ix == 3:
            reg, c = s2RG, 2 * 12 + 11
        elif ix < 7:
            reg, c = s3RG, 3 * 4 * (ix - 4) + 1
        elif ix == 7:
            reg, c = s2RG, 2 * 12 + 11 + 1
        elif ix < 10:
            reg, c = s3RG, 3 * 4 * (ix - 8) + 2
        else:
            reg, c = sAOFF, 3 * 4 * (ix - 8) + 2
        for i in range(2):
            it.append((f"""s_add_u32 s{sT1}, s{reg}, {c*32768 + i*8192}
            s_add_u32 m0, s{sRT}, {slot + i*1024}
            s_nop 0
            buffer_load_dwordx4 v{vDB}, s[{SWD}:{SWD+3}], s{sT1} offen lds""", f"B{st}"))
    else:
        j = ix
        for i in range(2):
            vd = vDC0 if i % 2 == 0 else vDC1
            it.append((f"""s_add_u32 s{sT1}, s{sXB}, {j*128 + i*8192}
            s_add_u32 m0, s{sRT}, {slot + i*1024}
            s_nop 0
            buffer_load_dwordx4 v{vd}, s[{SC}:{SC+3}], s{sT1} offen lds""", f"B{st}"))
    return it


def main(out_path):
    a = A()
    gen(a)
    ref = open("cdna_kernels/" + NAME + ".s.ref").read()
    head = []
    for line in ref.splitlines():
        if line.startswith(";") and "@launch" not in line and "Override" not in line and "grid=ceil" not in line:
            head.append(line)
        elif not line.startswith(";"):
            break
    txt = "\n".join(head) + "\n"
    txt += f"; @launch grid=(256,1,1) block=(512,1,1) lds={LDS_BYTES}\n"
    txt += '.amdgcn_target "amdgcn-amd-amdhsa--gfx950"\n.text\n'
    txt += f".globl {KNAME}\n.p2align 8\n.type {KNAME},@function\n{KNAME}:\n"
    txt += a.text()
    txt += f""".section .rodata,"a"
.p2align 6
.amdhsa_kernel {KNAME}
  .amdhsa_next_free_vgpr 256
  .amdhsa_next_free_sgpr 102
  .amdhsa_accum_offset 256
  .amdhsa_group_segment_fixed_size 0
  .amdhsa_kernarg_size 128
  .amdhsa_user_sgpr_count 2
  .amdhsa_user_sgpr_kernarg_segment_ptr 1
  .amdhsa_system_sgpr_workgroup_id_x 1
.end_amdhsa_kernel
"""
    open(out_path, "w").write(txt)


def flag_load(a, ev, rb_s, vdst, tag):
    a(f"""s_lshl_b32 s{sT0}, s{rb_s}, 8
    s_add_u32 s{sT0}, s{sT0}, {WS_FLG + ev*64}
    v_and_b32 v{vdst}, 15, v{vLANE}
    v_lshlrev_b32 v{vdst}, 2, v{vdst}""")
    a.vmop(f"buffer_load_dword v{vdst}, v{vdst}, s[{SWS}:{SWS+3}], s{sT0} offen sc1", tag)


PRG = (252, 253, 254)


FLG_OFF = {0: 0, 1: 512, 2: 1024}


def flag_preload(a, ev, r):
    wide = (ev == 1)
    a(f"""s_lshr_b32 s{sT0}, s{sRB2}, 1
    s_lshl_b32 s{sT0}, s{sT0}, 11
    s_add_u32 s{sT0}, s{sT0}, {WS_FLG + FLG_OFF[ev]}
    v_lshlrev_b32 v{vT}, {3 if wide else 2}, v{vLANE}""")
    if wide:
        a.vmop(f"buffer_load_dwordx2 v[{r}:{r+1}], v{vT}, s[{SWS}:{SWS+3}], s{sT0} offen sc1", f"pre{ev}")
    else:
        a.vmop(f"buffer_load_dword v{r}, v{vT}, s[{SWS}:{SWS+3}], s{sT0} offen sc1", f"pre{ev}")


def poll_flags(a, ev, tracked=False, pre=None):
    lp, ok = a.newlab("PF"), a.newlab("PFOK")
    wide = (ev == 1)
    done = a.newlab("PFD")
    if pre is not None:
        a.vmwait(f"pre{ev}")
        a(f"""v_cmp_ne_u32 vcc, s{sTAG}, v{pre}
        s_mov_b64 s[{sMASK}:{sMASK+1}], vcc""")
        if wide:
            a(f"""v_cmp_ne_u32 vcc, s{sTAG}, v{pre+1}
            s_or_b64 s[{sMASK}:{sMASK+1}], s[{sMASK}:{sMASK+1}], vcc""")
        a(f"""s_cmp_eq_u64 s[{sMASK}:{sMASK+1}], 0
        s_cbranch_scc1 {done}""")
        vm_keep = list(a.vm)
    a(f"""s_lshr_b32 s{sT0}, s{sRB2}, 1
    s_lshl_b32 s{sT0}, s{sT0}, 11
    s_add_u32 s{sT0}, s{sT0}, {WS_FLG + FLG_OFF[ev]}
    v_lshlrev_b32 v{vT}, {3 if wide else 2}, v{vLANE}
    s_mov_b32 s{sSPIN}, 0""")
    regs = [(248, 249), (250, 251), (252, 253)]
    ld = (lambda r: f"buffer_load_dwordx2 v[{r[0]}:{r[1]}], v{vT}, s[{SWS}:{SWS+3}], s{sT0} offen sc1") if wide else \
         (lambda r: f"buffer_load_dword v{r[0]}, v{vT}, s[{SWS}:{SWS+3}], s{sT0} offen sc1")
    for r in regs:
        a(ld(r) + "\ns_sleep 2")
    a.label(lp)
    for r in regs:
        nx = a.newlab("PFN")
        a(f"""s_waitcnt vmcnt(2)
        v_cmp_ne_u32 vcc, s{sTAG}, v{r[0]}
        s_add_u32 s{sSPIN}, s{sSPIN}, 1""")
        if wide:
            a(f"""s_cbranch_vccnz {nx}
            v_cmp_ne_u32 vcc, s{sTAG}, v{r[1]}
            s_nop 0
            s_cbranch_vccz {ok}""")
            a.label(nx)
        else:
            a(f"s_cbranch_vccz {ok}")
        a(ld(r))
    a(f"""s_cmp_gt_u32 s{sSPIN}, {SPIN_MAX}
    s_cbranch_scc0 {lp}""")
    a.label(ok)
    if pre is not None:
        a("s_waitcnt vmcnt(0)")
        a.label(done)
        a.vm = vm_keep
    elif tracked:
        a.vm = ["poll", "poll"]
        a.nvm += 2


def touch_A(a, ev):
    k0, nl = {0: (0, 64), 1: (32, 108), 2: (86, 128)}[ev]
    per = nl // 4
    a(f"""s_lshr_b32 s{sT0}, s{sCB}, 2
    s_lshl_b32 s{sT1}, s{sRB2}, 1
    s_add_u32 s{sT0}, s{sT0}, s{sT1}
    s_mul_i32 s{sT0}, s{sT0}, {RT_STRIDE}
    s_and_b32 s{sT1}, s{sCB}, 3
    s_mul_i32 s{sT1}, s{sT1}, {nl*128}
    s_add_u32 s{sT0}, s{sT0}, s{sT1}
    s_mul_i32 s{sT1}, s{sRG}, {per*128}
    s_add_u32 s{sT0}, s{sT0}, s{sT1}
    s_add_u32 s{sT0}, s{sT0}, {k0*1024}
    v_lshlrev_b32 v{vT+1}, 7, v{vLANE}
    s_mov_b64 s[{sEX}:{sEX+1}], exec
    s_mov_b64 exec, {hex((1 << per) - 1)}""")
    a.vmop(f"buffer_load_dword v{JUNK}, v{vT+1}, s[{SWS}:{SWS+3}], s{sT0} offen sc1", "ta")
    a(f"s_mov_b64 exec, s[{sEX}:{sEX+1}]")


def write_flag(a, ev, ch):
    sh = 5 if ev == 1 else 4
    a(f"""s_lshl_b32 s{sT0}, s{sRB}, 11
    s_lshl_b32 s{sT1}, s{sCG}, {sh}
    s_add_u32 s{sT0}, s{sT0}, s{sT1}
    s_lshl_b32 s{sT1}, s{sW if ev == 1 else sRG}, 2
    s_add_u32 s{sT0}, s{sT0}, s{sT1}
    s_add_u32 s{sT0}, s{sT0}, {WS_FLG + FLG_OFF[ev]}
    v_mov_b32 v{vT+9}, 0
    v_mov_b32 v{vT+10}, s{sTAG}
    s_mov_b64 s[{sEX}:{sEX+1}], exec
    s_mov_b64 exec, 1""")
    a.vmop(f"buffer_store_dword v{vT+10}, v{vT+9}, s[{SWS}:{SWS+3}], s{sT0} offen sc1", "flag")
    a(f"s_mov_b64 exec, s[{sEX}:{sEX+1}]")


def only_rg(a, rg, fn):
    lab = a.newlab("RG")
    a(f"s_cmp_eq_u32 s{sRG}, {rg}\ns_cbranch_scc0 {lab}")
    lg = list(a.lg)
    fn()
    a.label(lab)
    a.lg = lg


def colsum_mfma(a, wf0, wf1, accreg, first=False):
    l1, l2 = a.newlab("CS"), a.newlab("CS")
    c = "0" if first else f"v[{accreg}:{accreg+15}]"
    a(f"""s_cmp_eq_u32 s{sCSM}, 0
    s_cbranch_scc1 {l2}
    s_cmp_eq_u32 s{sCSM}, 1
    s_cbranch_scc0 {l1}
    v_mfma_f32_32x32x16_bf16 v[{accreg}:{accreg+15}], v[{ONES}:{ONES+3}], v[{wf0}:{wf0+3}], {c}
    s_branch {l2}""")
    a.label(l1)
    a(f"v_mfma_f32_32x32x16_bf16 v[{accreg}:{accreg+15}], v[{ONES}:{ONES+3}], v[{wf1}:{wf1+3}], {c}")
    a.label(l2)


def colsum_store(a, accreg, unit, koff=0):
    a(f"""s_nop 7
    s_nop 7
    s_add_u32 s{sT1}, s{sKC0}, {koff}
    s_and_b32 s{sT1}, s{sT1}, 7
    s_lshl_b32 s{sT0}, s{sCG}, 3
    s_add_u32 s{sT0}, s{sT0}, s{sT1}
    s_lshl_b32 s{sT0}, s{sT0}, 11
    s_sub_u32 s{sT1}, s{sCSM}, 1
    s_lshl_b32 s{sT1}, s{sT1}, 8
    s_add_u32 s{sT0}, s{sT0}, s{sT1}
    s_add_u32 s{sT0}, s{sT0}, {WS_CS + unit*512}
    s_lshl_b32 s{sT1}, s2, 11
    s_add_u32 s{sT1}, s{sT1}, {WS_DUMMY}
    s_cmp_eq_u32 s{sCSM}, 0
    s_cselect_b32 s{sT0}, s{sT1}, s{sT0}
    v_mov_b32 v{accreg+1}, s{sTAG}
    v_lshlrev_b32 v{accreg+2}, 3, v{vLANE}
    s_mov_b64 s[{sEX}:{sEX+1}], exec
    s_mov_b64 exec, 0xffffffff""")
    a.vmop(f"buffer_store_dwordx2 v[{accreg}:{accreg+1}], v{accreg+2}, s[{SWS}:{SWS+3}], s{sT0} offen sc1", "cs")
    a(f"s_mov_b64 exec, s[{sEX}:{sEX+1}]")


def gather_loads(a, part, dst, atmp, tracked=False):
    l1, l2 = a.newlab("G"), a.newlab("G")
    a(f"""s_cmp_lt_u32 s{sRG}, 2
    s_cbranch_scc0 {l1}
    s_lshl_b32 s{sT0}, s{sCG}, 14
    s_add_u32 s{sT0}, s{sT0}, {WS_CS + part*1024}
    s_lshl_b32 s{sT1}, s{sRG}, 9
    s_add_u32 s{sT0}, s{sT0}, s{sT1}
    v_lshlrev_b32 v{atmp}, 3, v{vLANE}""")
    for j in range(8):
        so, io = (j * 2048 // 4096) * 4096, (j * 2048) % 4096
        a(f"s_add_u32 s{sT1}, s{sT0}, {so}")
        a(f"buffer_load_dwordx2 v[{dst+2*j}:{dst+2*j+1}], v{atmp}, s[{SWS}:{SWS+3}], s{sT1} offen offset:{io} sc1")
    a(f"s_branch {l2}")
    a.label(l1)
    nd = 8
    if part == 0:
        a(f"""s_lshl_b32 s{sT0}, s{sRB}, 11
        s_sub_u32 s{sT1}, s{sRG}, 2
        s_lshl_b32 s{sT1}, s{sT1}, 10
        s_add_u32 s{sT0}, s{sT0}, s{sT1}
        s_add_u32 s{sT0}, s{sT0}, {WS_STAT}
        v_lshlrev_b32 v{atmp}, 4, v{vLANE}
        buffer_load_dwordx4 v[{dst}:{dst+3}], v{atmp}, s[{SWS}:{SWS+3}], s{sT0} offen sc1""")
        nd = 7
    a(f"s_mov_b32 s{sT0}, 0x40000000")
    for j in range(nd):
        a(f"buffer_load_dword v{dst+8+j}, v{vLANE}, s[{SWS}:{SWS+3}], s{sT0} offen")
    a.label(l2)
    if tracked:
        a.vm += ["g"] * 8
        a.nvm += 8


def gather_finish(a, part, dst, nyounger, atmp):
    lr, l1, l2, lok, lok2, l0 = [a.newlab("GF") for _ in range(6)]
    a(f"s_mov_b32 s{sSPIN}, 0")
    a(f"s_waitcnt vmcnt({nyounger})")
    a(f"s_branch {l0}")
    a.label(lr)
    a("s_waitcnt vmcnt(0)")
    a.label(l0)
    a(f"""s_cmp_lt_u32 s{sRG}, 2
    s_cbranch_scc0 {l1}
    s_mov_b64 s[{sMASK}:{sMASK+1}], 0""")
    for j in range(8):
        a(f"""v_cmp_ne_u32 vcc, s{sTAG}, v{dst+2*j+1}
        s_or_b64 s[{sMASK}:{sMASK+1}], s[{sMASK}:{sMASK+1}], vcc""")
    a(f"""s_cmp_eq_u64 s[{sMASK}:{sMASK+1}], 0
    s_cbranch_scc1 {lok}
    s_add_u32 s{sSPIN}, s{sSPIN}, 1
    s_cmp_gt_u32 s{sSPIN}, {SPIN_MAX}
    s_cbranch_scc1 {lok}""")
    gather_loads(a, part, dst, atmp)
    a(f"s_branch {lr}")
    a.label(lok)
    a(f"""v_add_f32 v{dst}, v{dst}, v{dst+2}
    v_add_f32 v{dst+4}, v{dst+4}, v{dst+6}
    v_add_f32 v{dst+8}, v{dst+8}, v{dst+10}
    v_add_f32 v{dst+12}, v{dst+12}, v{dst+14}
    v_add_f32 v{dst}, v{dst}, v{dst+4}
    v_add_f32 v{dst+8}, v{dst+8}, v{dst+12}
    v_add_f32 v{dst}, v{dst}, v{dst+8}
    s_lshl_b32 s{sT0}, s{sRG}, 8
    s_add_u32 s{sT0}, s{sT0}, {SCR}
    v_lshlrev_b32 v{atmp}, 2, v{vLANE}
    v_add_u32 v{atmp}, s{sT0}, v{atmp}
    ds_write_b32 v{atmp}, v{dst} offset:{SCR_CS + part*512}
    s_branch {l2}""")
    a.label(l1)
    if part == 0:
        a(f"""v_cmp_ne_u32 vcc, s{sTAG}, v{dst+1}
        s_mov_b64 s[{sMASK}:{sMASK+1}], vcc
        v_cmp_ne_u32 vcc, s{sTAG}, v{dst+3}
        s_or_b64 s[{sMASK}:{sMASK+1}], s[{sMASK}:{sMASK+1}], vcc
        s_cmp_eq_u64 s[{sMASK}:{sMASK+1}], 0
        s_cbranch_scc1 {lok2}
        s_add_u32 s{sSPIN}, s{sSPIN}, 1
        s_cmp_gt_u32 s{sSPIN}, {SPIN_MAX}
        s_cbranch_scc1 {lok2}""")
        gather_loads(a, part, dst, atmp)
        a(f"s_branch {lr}")
        a.label(lok2)
        a(f"""v_rcp_f32 v{dst+2}, v{dst+2}
        v_sub_f32 v{dst+3}, 0, v{dst}
        s_sub_u32 s{sT0}, s{sRG}, 2
        s_lshl_b32 s{sT0}, s{sT0}, 9
        s_add_u32 s{sT0}, s{sT0}, {SCR}
        v_lshlrev_b32 v{atmp}, 3, v{vLANE}
        v_add_u32 v{atmp}, s{sT0}, v{atmp}
        ds_write_b64 v{atmp}, v[{dst+2}:{dst+3}] offset:{SCR_ST}
        v_lshrrev_b32 v{atmp}, 1, v{atmp}
        v_add_u32 v{atmp}, {SCR//2}, v{atmp}
        ds_write_b32 v{atmp}, v{dst+2} offset:{SCR_RV}""")
    a.label(l2)
    a.lgwait_all()


def row_stats_M(q, tmp):
    q(f"""v_and_b32 v{tmp}, 31, v{vLANE}
    v_bfe_u32 v{tmp+1}, v{tmp}, 2, 1
    v_lshlrev_b32 v{tmp+1}, 4, v{tmp+1}
    v_lshrrev_b32 v{tmp+2}, 3, v{tmp}
    v_lshl_add_u32 v{tmp+1}, v{tmp+2}, 2, v{tmp+1}
    v_and_b32 v{tmp+2}, 3, v{tmp}
    v_add_u32 v{tmp+1}, v{tmp+1}, v{tmp+2}
    v_lshlrev_b32 v{tmp+2}, 5, v{vRGV}
    v_add_u32 v{tmp+1}, v{tmp+2}, v{tmp+1}
    v_lshlrev_b32 v{tmp+1}, 3, v{tmp+1}
    v_add_u32 v{tmp+1}, {SCR}, v{tmp+1}""")
    q.ldsop(f"ds_read_b64 v[{vRINV}:{vRINV+1}], v{tmp+1} offset:{SCR_ST}", "rs")
    q.lgwait("rs")


vRGV = 2


def aug_mfma(q, acc, cs_off, R, T, sform=False):
    X, W = R, R + 4
    q(f"""v_and_b32 v{T}, 31, v{vLANE}
    v_lshlrev_b32 v{T}, 2, v{T}
    v_add_u32 v{T}, {SCR + SCR_CS + cs_off}, v{T}""")
    q.ldsop(f"ds_read_b32 v{T+1}, v{T} offset:0", "ac")
    q.ldsop(f"ds_read_b32 v{T+2}, v{T} offset:128", "ac")
    q(f"""v_cmp_gt_u32 vcc, 32, v{vLANE}
    v_mov_b32 v{X+2}, 0
    v_mov_b32 v{X+3}, 0
    v_cndmask_b32 v{X}, 0, v{vNM}, vcc
    v_mov_b32 v{W+2}, 0
    v_lshrrev_b32 v{X+1}, 16, v{X}
    v_mov_b32 v{W+3}, 0
    v_or_b32 v{X}, v{X}, v{X+1}""")
    q.lgwait("ac")
    for t in range(2):
        cs = T + 1 + t
        q(f"""v_cvt_pk_bf16_f32 v{T+3}, v{cs}, v{cs}
        v_lshlrev_b32 v{T+3}, 16, v{T+3}
        v_sub_f32 v{T+3}, v{cs}, v{T+3}
        v_cvt_pk_bf16_f32 v{W}, v{cs}, v{T+3}
        v_and_b32 v{W+1}, 0xffff0000, v{W}
        v_sub_f32 v{T+3}, v{T+3}, v{W+1}
        v_cvt_pk_bf16_f32 v{W+1}, v{T+3}, v{W+2}
        s_nop 1""")
        ac = acc + 16 * t
        if sform:
            q(f"v_mfma_f32_32x32x16_bf16 v[{ac}:{ac+15}], v[{X}:{X+3}], v[{W}:{W+3}], v[{ac}:{ac+15}]")
        else:
            q(f"v_mfma_f32_32x32x16_bf16 v[{ac}:{ac+15}], v[{W}:{W+3}], v[{X}:{X+3}], v[{ac}:{ac+15}]")
    q("s_nop 15\ns_nop 3")


def gelu_epi(q, acc, pos_s, cs_off, tagname, csr, T, maybe=False):
    K0 = -2.0 * math.sqrt(2.0 / math.pi) * LOG2E
    K1c = K0 * 0.044715
    q(f"v_mov_b32 v{vK1}, {f2u(K1c)}")
    aug_mfma(q, acc, cs_off, csr, T)
    for qq in range(4):
        rs = [4 * qq + i for i in range(4)]
        for i, r in enumerate(rs):
            q(f"v_mul_f32 v{acc+r}, v{acc+r}, v{vRINV}")
        for i, r in enumerate(rs):
            q(f"v_mul_f32 v{T+i}, v{acc+r}, v{acc+r}")
        for i, r in enumerate(rs):
            q(f"v_fmaak_f32 v{T+i}, v{vK1}, v{T+i}, {f2u(K0)}")
        for i, r in enumerate(rs):
            q(f"v_mul_f32 v{T+i}, v{T+i}, v{acc+r}")
        for i, r in enumerate(rs):
            q(f"v_exp_f32 v{T+i}, v{T+i}")
        for i, r in enumerate(rs):
            q(f"v_mul_f32 v{T+4+i}, v{acc+r}, v{acc+16+r}")
        for i, r in enumerate(rs):
            q(f"v_add_f32 v{T+i}, 1.0, v{T+i}")
        for i, r in enumerate(rs):
            q(f"v_rcp_f32 v{T+i}, v{T+i}")
        for i, r in enumerate(rs):
            q(f"v_mul_f32 v{T+4+i}, v{T+4+i}, v{vRINV}")
        for i, r in enumerate(rs):
            q(f"v_mul_f32 v{T+i}, v{T+i}, v{T+4+i}")
        q(f"v_cvt_pk_bf16_f32 v{acc+2*qq}, v{T}, v{T+1}\nv_cvt_pk_bf16_f32 v{acc+2*qq+1}, v{T+2}, v{T+3}")
    q(f"v_lshlrev_b32 v{T}, 4, v{vLANE}")
    q.vmop(f"buffer_store_dwordx4 v[{acc}:{acc+3}], v{T}, s[{SWS}:{SWS+3}], s{pos_s} offen sc1", tagname, maybe)
    q.vmop(f"buffer_store_dwordx4 v[{acc+4}:{acc+7}], v{T}, s[{SWS}:{SWS+3}], s{pos_s} offen offset:1024 sc1", tagname, maybe)


def s_params(q):
    vLre, vLim, vLdt = vT + 7, vT + 8, vT + 9
    t0, t1, t2, t3, t4, t5, t6 = [vT + i for i in range(7)]
    q(f"""v_lshlrev_b32 v{vLre}, 16, v{vA16r}
    v_lshlrev_b32 v{vLim}, 16, v{vA16i}
    v_lshlrev_b32 v{vLdt}, 16, v{vA128r}
    v_mul_f32 v{t0}, {f2u(LOG2E)}, v{vLdt}
    v_exp_f32 v{t0}, v{t0}
    s_nop 0""")
    rne_bf16(q, t0)
    q(f"""v_mul_f32 v{t1}, v{t0}, v{vLre}
    v_mul_f32 v{t2}, v{t0}, v{vLim}
    v_mul_f32 v{t1}, {f2u(LOG2E)}, v{t1}
    v_exp_f32 v{t1}, v{t1}
    v_mul_f32 v{t2}, {f2u(1.0/(2*math.pi))}, v{t2}
    v_rndne_f32 v{t3}, v{t2}
    v_sub_f32 v{t2}, v{t2}, v{t3}
    v_cos_f32 v{t3}, v{t2}
    v_sin_f32 v{t4}, v{t2}
    s_nop 0
    v_mul_f32 v{vAr}, v{t1}, v{t3}
    v_mul_f32 v{vAi}, v{t1}, v{t4}
    v_add_f32 v{t3}, -1.0, v{vAr}
    v_mul_f32 v{t4}, v{vLre}, v{vLre}
    v_fmac_f32 v{t4}, v{vLim}, v{vLim}
    v_rcp_f32 v{t4}, v{t4}
    v_mul_f32 v{t5}, v{t3}, v{vLre}
    v_fmac_f32 v{t5}, v{vAi}, v{vLim}
    v_mul_f32 v{t6}, v{vAi}, v{vLre}
    v_fma_f32 v{t6}, -v{t3}, v{vLim}, v{t6}
    v_add_f32 v{t4}, v{t4}, v{t4}
    v_mul_f32 v{vKr}, v{t5}, v{t4}
    v_mul_f32 v{vKi}, v{t6}, v{t4}
    v_mov_b32 v{vA16r}, v{vAr}
    v_mov_b32 v{vA16i}, v{vAi}""")

    def csq(r, i):
        q(f"""v_mul_f32 v{t0}, v{i}, v{i}
        v_mul_f32 v{t1}, v{r}, v{i}
        v_fma_f32 v{r}, v{r}, v{r}, -v{t0}
        v_add_f32 v{i}, v{t1}, v{t1}""")
    for _ in range(4):
        csq(vA16r, vA16i)
    q(f"v_mov_b32 v{vA128r}, v{vA16r}\nv_mov_b32 v{vA128i}, v{vA16i}")
    for _ in range(3):
        csq(vA128r, vA128i)


def s_epilogue1(q):
    zr = lambda j: vACC + j
    zi = lambda j: vACC + 16 + j
    T = vT
    row_stats_M(q, T)
    aug_mfma(q, vACC, 0, 4, T, sform=True)
    q(f"""v_and_b32 v{T}, 31, v{vLANE}
    v_lshrrev_b32 v{T+2}, 5, v{vLANE}
    v_lshlrev_b32 v{T+3}, 5, v{vRGV}
    v_lshl_add_u32 v{T+3}, v{T+2}, 4, v{T+3}
    v_lshlrev_b32 v{T+3}, 2, v{T+3}
    v_add_u32 v{T+3}, {SCR}, v{T+3}""")
    q.ldsop(f"ds_read_b128 v[4:7], v{T+3} offset:{SCR_RV}", "s0")
    q.ldsop(f"ds_read_b128 v[8:11], v{T+3} offset:{SCR_RV + 16}", "s1")
    for qq in range(4):
        base = 4 if qq % 2 == 0 else 8
        q.lgwait(f"s{qq}")
        for i in range(4):
            j = 4 * qq + i
            q(f"""v_mul_f32 v{zr(j)}, v{zr(j)}, v{base+i}
            v_mul_f32 v{zi(j)}, v{zi(j)}, v{base+i}""")
        if qq + 2 < 4:
            q.ldsop(f"ds_read_b128 v[{base}:{base+3}], v{T+3} offset:{SCR_RV + (qq+2)*16}", f"s{qq+2}")
    cur, alt = (T + 4, T + 5), (T + 7, T + 8)
    q(f"v_mov_b32 v{cur[0]}, v{zr(0)}\nv_mov_b32 v{cur[1]}, v{zi(0)}")
    for j in range(1, 16):
        sr, si = cur
        nr, ni = alt
        q(f"""v_fma_f32 v{nr}, v{vAr}, v{sr}, v{zr(j)}
        v_fma_f32 v{ni}, v{vAr}, v{si}, v{zi(j)}
        v_fma_f32 v{nr}, -v{vAi}, v{si}, v{nr}
        v_fma_f32 v{ni}, v{vAi}, v{sr}, v{ni}""")
        cur, alt = alt, cur
    assert cur == (T + 7, T + 8) and (T + 7) % 2 == 0
    q(f"""v_lshlrev_b32 v{T+1}, 1, v{vRGV}
    v_add_u32 v{T+1}, v{T+1}, v{T+2}
    v_lshlrev_b32 v{T+1}, 8, v{T+1}
    v_lshl_add_u32 v{T+1}, v{T}, 3, v{T+1}
    v_add_u32 v{T+1}, {SCR}, v{T+1}""")
    q.ldsop(f"ds_write_b64 v{T+1}, v[{T+7}:{T+8}] offset:{SCR_ES}", "ew")


def s_publish(a):
    T = vT
    a(f"""s_waitcnt lgkmcnt(0)
    v_and_b32 v{T}, 31, v{vLANE}
    v_lshlrev_b32 v{T+1}, 3, v{T}
    v_add_u32 v{T+1}, {SCR}, v{T+1}
    ds_read_b64 v[4:5], v{T+1} offset:{SCR_ES}
    ds_read_b64 v[6:7], v{T+1} offset:{SCR_ES+256}
    ds_read_b64 v[8:9], v{T+1} offset:{SCR_ES+512}
    ds_read_b64 v[10:11], v{T+1} offset:{SCR_ES+768}
    s_waitcnt lgkmcnt(0)""")

    def step(er, ei):
        a(f"""v_fma_f32 v{T+2}, v{vA16r}, v4, v{er}
        v_fma_f32 v{T+3}, v{vA16r}, v5, v{ei}
        v_fma_f32 v{T+2}, -v{vA16i}, v5, v{T+2}
        v_fma_f32 v5, v{vA16i}, v4, v{T+3}
        v_mov_b32 v4, v{T+2}""")
    step(6, 7); step(8, 9); step(10, 11)
    a(f"""ds_read_b64 v[6:7], v{T+1} offset:{SCR_ES+1024}
    ds_read_b64 v[8:9], v{T+1} offset:{SCR_ES+1280}
    ds_read_b64 v[10:11], v{T+1} offset:{SCR_ES+1536}
    ds_read_b64 v[{T+5}:{T+6}], v{T+1} offset:{SCR_ES+1792}
    s_waitcnt lgkmcnt(0)""")
    assert (T + 5) % 2 == 0
    step(6, 7); step(8, 9); step(10, 11); step(T + 5, T + 6)
    a(f"""v_mov_b32 v6, v5
    v_mov_b32 v5, s{sTAG}
    v_mov_b32 v7, s{sTAG}
    s_lshl_b32 s{sT0}, s{sCG}, 5
    v_add_u32 v{T}, s{sT0}, v{T}
    v_lshlrev_b32 v{T}, 4, v{T}
    s_lshl_b32 s{sT0}, s{sRB}, 13
    s_add_u32 s{sT0}, s{sT0}, {WS_AGG}
    v_cmp_gt_u32 vcc, 32, v{vLANE}
    s_and_saveexec_b64 s[{sEX}:{sEX+1}], vcc
    buffer_store_dwordx4 v[4:7], v{T}, s[{SWS}:{SWS+3}], s{sT0} offen sc1
    s_mov_b64 exec, s[{sEX}:{sEX+1}]""")
    a.vm.append("pub"); a.nvm += 1


LBG = 160
HG = 192


def lookback_loads(a, tracked=True):
    a(f"""v_and_b32 v{vT+9}, 31, v{vLANE}
    s_lshl_b32 s{sT0}, s{sCG}, 5
    v_add_u32 v{vT+9}, s{sT0}, v{vT+9}
    v_lshlrev_b32 v{vT+9}, 4, v{vT+9}           ; p*16
    v_lshrrev_b32 v3, 5, v{vLANE}
    s_sub_u32 s{sT0}, s{sRB}, 1
    v_sub_u32 v3, s{sT0}, v3                    ; rb-1-hf
    v_lshlrev_b32 v3, 13, v3
    v_add_u32 v3, v3, v{vT+9}
    s_mov_b32 s{sT0}, {WS_AGG}
    v_mov_b32 v{vT+10}, 0x7ff00000""")
    for i in range(8):
        a(f"""v_subrev_u32 v{vT+9}, {i*16384}, v3
        v_cmp_gt_i32 vcc, 0, v{vT+9}
        s_nop 1
        v_cndmask_b32 v{vT+9}, v{vT+9}, v{vT+10}, vcc""")
        code = f"buffer_load_dwordx4 v[{LBG+4*i}:{LBG+4*i+3}], v{vT+9}, s[{SWS}:{SWS+3}], s{sT0} offen sc1"
        if tracked:
            a.vmop(code, "lb")
        else:
            a(code)


def s_work_atoms(a, q):
    zr = lambda j: vACC + j
    zi = lambda j: vACC + 16 + j
    T = vT
    L = LBG
    G = LBG
    EB = 192
    q(f"""v_and_b32 v{T+8}, 31, v{vLANE}
    v_lshlrev_b32 v{T}, 3, v{T+8}
    v_add_u32 v{T}, {SCR}, v{T}""")
    for s in range(8):
        q.ldsop(f"ds_read_b64 v[{EB+2*s}:{EB+2*s+1}], v{T} offset:{SCR_ES + s*256}", "se")
    q(f"""v_mul_f32 v{T+5}, v{vA128i}, v{vA128i}
    v_mul_f32 v{T+6}, v{vA128r}, v{vA128i}
    v_fma_f32 v{T+5}, v{vA128r}, v{vA128r}, -v{T+5}
    v_add_f32 v{T+6}, v{T+6}, v{T+6}""")

    def check():
        lp, got = a.newlab("LB"), a.newlab("LBG")
        a(f"s_mov_b32 s{sSPIN}, 0")
        a.vmwait("lb")
        a.label(lp)
        a(f"""v_lshrrev_b32 v{T+1}, 5, v{vLANE}
        s_sub_u32 s{sT0}, s{sRB}, 1
        v_sub_u32 v{T+1}, s{sT0}, v{T+1}
        s_mov_b64 s[{sMASK}:{sMASK+1}], 0""")
        for i in range(8):
            a(f"""v_cmp_ne_u32 vcc, s{sTAG}, v{L+4*i+1}
            v_cmp_ne_u32 s[{sEX}:{sEX+1}], s{sTAG}, v{L+4*i+3}
            s_or_b64 s[{sEX}:{sEX+1}], s[{sEX}:{sEX+1}], vcc
            v_cmp_le_i32 vcc, {2*i}, v{T+1}
            s_and_b64 s[{sEX}:{sEX+1}], s[{sEX}:{sEX+1}], vcc
            s_or_b64 s[{sMASK}:{sMASK+1}], s[{sMASK}:{sMASK+1}], s[{sEX}:{sEX+1}]""")
        a(f"""s_cmp_eq_u64 s[{sMASK}:{sMASK+1}], 0
        s_cbranch_scc1 {got}
        s_add_u32 s{sSPIN}, s{sSPIN}, 1
        s_cmp_gt_u32 s{sSPIN}, {SPIN_MAX}
        s_cbranch_scc1 {got}""")
        lookback_loads(a, tracked=False)
        a(f"s_waitcnt vmcnt(0)\ns_branch {lp}")
        a.label(got)
    q.q.append(("call", check))
    cr, ci = T + 1, T + 2
    q(f"v_mov_b32 v{cr}, v{L+28}\nv_mov_b32 v{ci}, v{L+30}")
    for i in range(6, -1, -1):
        q(f"""v_fma_f32 v{T+3}, v{T+5}, v{cr}, v{L+4*i}
        v_fma_f32 v{T+4}, v{T+5}, v{ci}, v{L+4*i+2}
        v_fma_f32 v{T+3}, -v{T+6}, v{ci}, v{T+3}
        v_fma_f32 v{ci}, v{T+6}, v{cr}, v{T+4}
        v_mov_b32 v{cr}, v{T+3}""")
    q(f"""v_mov_b32 v{T+3}, v{cr}
    v_mov_b32 v{T+4}, v{ci}
    s_nop 1
    v_permlane32_swap_b32 v{cr}, v{T+3}
    v_permlane32_swap_b32 v{ci}, v{T+4}
    s_nop 1
    v_fma_f32 v{cr}, v{vA128r}, v{T+3}, v{cr}
    v_fma_f32 v{ci}, v{vA128r}, v{T+4}, v{ci}
    v_fma_f32 v{cr}, -v{vA128i}, v{T+4}, v{cr}
    v_fma_f32 v{ci}, v{vA128i}, v{T+3}, v{ci}
    v_lshrrev_b32 v{T+5}, 5, v{vLANE}
    v_lshl_add_u32 v{T+5}, v{vRGV}, 1, v{T+5}""")
    q.lgwait("se")
    for s in range(7):
        def seg(s=s):
            a(f"""v_fma_f32 v{T+3}, v{vA16r}, v{cr}, v{EB+2*s}
            v_fma_f32 v{T+4}, v{vA16r}, v{ci}, v{EB+2*s+1}
            v_cmp_lt_u32 vcc, {s}, v{T+5}
            v_fma_f32 v{T+3}, -v{vA16i}, v{ci}, v{T+3}
            v_fma_f32 v{T+4}, v{vA16i}, v{cr}, v{T+4}
            v_cndmask_b32 v{cr}, v{cr}, v{T+3}, vcc
            v_cndmask_b32 v{ci}, v{ci}, v{T+4}, vcc""")
        q.q.append(("calln", seg, 7))
    cur, alt = (cr, ci), (T + 3, T + 4)
    for j in range(16):
        sr, si = cur
        nr, ni = alt
        q(f"""v_fma_f32 v{nr}, v{vAr}, v{sr}, v{zr(j)}
        v_fma_f32 v{ni}, v{vAr}, v{si}, v{zi(j)}
        v_fma_f32 v{nr}, -v{vAi}, v{si}, v{nr}
        v_fma_f32 v{ni}, v{vAi}, v{sr}, v{ni}
        v_mul_f32 v{zr(j)}, v{vKr}, v{nr}
        v_mul_f32 v{zi(j)}, -v{vKr}, v{ni}
        v_fma_f32 v{zr(j)}, -v{vKi}, v{ni}, v{zr(j)}
        v_fma_f32 v{zi(j)}, -v{vKi}, v{nr}, v{zi(j)}""")
        cur, alt = alt, cur
    for j in range(0, 16, 2):
        q(f"v_cvt_pk_bf16_f32 v{G+j//2}, v{zr(j)}, v{zr(j+1)}")
        q(f"v_cvt_pk_bf16_f32 v{G+8+j//2}, v{zi(j)}, v{zi(j+1)}")
    q(f"""v_lshlrev_b32 v{T+6}, 12, v{vRGV}
    v_add_u32 v{T+6}, {SCR_T}, v{T+6}
    v_lshrrev_b32 v{T+5}, 5, v{vLANE}
    v_lshlrev_b32 v{T+5}, 3, v{T+5}
    v_lshl_add_u32 v{T+5}, v{T+8}, 6, v{T+5}
    v_add_u32 v{T+5}, v{T+6}, v{T+5}
    v_add_u32 v{T+6}, v{T+6}, v{vTRL}
    v_lshlrev_b32 v{T}, 4, v{vLANE}""")
    for part in range(2):
        for qq in range(4):
            r = G + 8 * part + 2 * qq
            q.ldsop(f"ds_write_b64 v{T+5}, v[{r}:{r+1}] offset:{part*2048 + qq*16}", "tw")
    q.lgwait("tw")
    R = G + 16
    for part in range(2):
        for s2 in range(2):
            r = R + 8 * part + 4 * s2
            o = part * 2048 + s2 * 1024
            q.ldsop(f"ds_read_b64_tr_b16 v[{r}:{r+1}], v{T+6} offset:{o}", "tr")
            q.ldsop(f"ds_read_b64_tr_b16 v[{r+2}:{r+3}], v{T+6} offset:{o+256}", "tr")
    q.lgwait("tr")
    for part in range(2):
        for s2 in range(2):
            r = R + 8 * part + 4 * s2
            q.vmop(f"buffer_store_dwordx4 v[{r}:{r+3}], v{T}, s[{SWS}:{SWS+3}], s{sMU} offen offset:{(2*part+s2)*1024} sc1", "h")


vTRL = 3


def gen(a):
    global vTRL
    vTRL = 0
    sIDX = sMX
    if STAMPS:
        a(f"s_memrealtime s[{sMASK}:{sMASK+1}]")
    a(f"""s_cmp_ge_u32 s2, 256
    s_cbranch_scc1 L_END
    s_load_dwordx16 s[40:55], s[0:1], 0
    s_load_dwordx16 s[56:71], s[0:1], 64
    v_and_b32 v{vLANE}, 63, v0
    v_lshrrev_b32 v2, 6, v0
    s_and_b32 s{sT0}, s2, 7            ; xcd
    v_readfirstlane_b32 s{sW}, v2
    s_lshr_b32 s{sIDX}, s2, 3          ; idx
    s_and_b32 s{sRB}, s{sT0}, 1
    s_lshl_b32 s{sRB}, s{sRB}, 3
    s_and_b32 s{sT2}, s{sIDX}, 7
    s_add_u32 s{sRB}, s{sRB}, s{sT2}   ; rb
    s_lshr_b32 s{sCG}, s{sT0}, 1
    s_lshl_b32 s{sCG}, s{sCG}, 2
    s_lshr_b32 s{sT2}, s{sIDX}, 3
    s_add_u32 s{sCG}, s{sCG}, s{sT2}   ; cg
    s_and_b32 s{sRG}, s{sW}, 3
    s_lshl_b32 s{sKC0}, s{sCG}, 1
    s_add_u32 s{sKC0}, s{sKC0}, s{sRB}
    s_and_b32 s{sKC0}, s{sKC0}, 7
    s_lshl_b32 s{sRB2}, s{sT0}, 2
    s_and_b32 s{sT2}, s{sIDX}, 3
    s_add_u32 s{sRB2}, s{sRB2}, s{sT2}
    s_lshr_b32 s{sCB}, s{sIDX}, 2
    s_mul_i32 s{sT2}, s{sCG}, 3
    s_lshl_b32 s{sT3}, s{sCG}, 1
    s_add_u32 s{sT3}, s{sT3}, 11
    s_cmp_lt_u32 s{sCG}, 11
    s_cselect_b32 s{sU0B}, s{sT2}, s{sT3}
    s_cselect_b32 s{sDUM}, 64, 0x40000000
    s_lshl_b32 s{sU0B}, s{sU0B}, 6
    s_lshl_b32 s{sLW}, s{sRG}, 12           ; w'*4096
    s_lshl_b32 s{sMS}, s{sRG}, 11
    s_add_u32 s{sMS}, s{sMS}, 16384         ; S pieces: 16384 + w'*2048
    s_lshl_b32 s{sM1}, s{sRG}, 10           ; kstep*1024
    v_lshrrev_b32 v2, 3, v{vLANE}           ; lane>>3
    v_and_b32 v3, 7, v{vLANE}
    v_lshrrev_b32 v{vT}, 4, v{vLANE}        ; lane>>4
    v_xor_b32 v{vT+1}, v3, v{vT}            ; (lane&7)^(lane>>4)
    s_lshl_b32 s{sT2}, s{sRB}, 7
    s_lshl_b32 s{sT3}, s{sRG}, 5
    s_add_u32 s{sT2}, s{sT2}, s{sT3}
    v_add_u32 v{vT+2}, s{sT2}, v2
    v_lshlrev_b32 v{vT+2}, 10, v{vT+2}
    v_lshl_add_u32 v{vDX0}, v{vT+1}, 4, v{vT+2}
    v_xor_b32 v{vDX1}, 64, v{vDX0}
    v_add_u32 v{vDX1}, 8192, v{vDX1}
    s_and_b32 s{sT4}, s{sRG}, 1
    s_lshl_b32 s{sT4}, s{sT4}, 4
    s_lshl_b32 s{sT3}, s{sCG}, 5
    s_add_u32 s{sT4}, s{sT4}, s{sT3}
    v_add_u32 v{vT+2}, s{sT4}, v2
    v_lshlrev_b32 v{vT+2}, 10, v{vT+2}
    v_lshl_add_u32 v{vDS}, v{vT+1}, 4, v{vT+2}
    v_xor_b32 v{vDS1}, 64, v{vDS}
    v_add_u32 v{vDS1}, 8192, v{vDS1}
    v_lshrrev_b32 v{vT+2}, 2, v{vLANE}
    s_lshl_b32 s{sT4}, s{sRG}, 4
    v_add_u32 v{vT+2}, s{sT4}, v{vT+2}
    v_mul_u32_u24 v{vT+2}, 2752, v{vT+2}
    v_and_b32 v{vT+4}, 3, v{vLANE}
    v_lshl_add_u32 v{vDM}, v{vT+4}, 4, v{vT+2}
    v_lshlrev_b32 v{vT+3}, 4, v{vLANE}
    s_and_b32 s{sT4}, s{sW}, 2
    s_waitcnt lgkmcnt(0)""")
    pstamp(a, 0)
    srd(a, SX, P_X, 2048 * 1024)
    a(f"""s_cmp_eq_u32 s{sT4}, 0
    s_cselect_b32 s{P_BRE}, s{P_BRE}, s{P_BIM}
    s_cselect_b32 s{P_BRE+1}, s{P_BRE+1}, s{P_BIM+1}
    s_cmp_lt_u32 s{sW}, 4
    s_cselect_b32 s{P_CRE}, s{P_CRE}, s{P_CIM}
    s_cselect_b32 s{P_CRE+1}, s{P_CRE+1}, s{P_CIM+1}""")
    lab0, lab1 = a.newlab("D0"), a.newlab("D1")
    a(f"s_cmp_lt_u32 s{sW}, 4\ns_cbranch_scc1 {lab0}")
    for s_ in range(NPRE):
        for code, tag in dma_p0(s_, 1):
            a(code)
    srd(a, SS, P_BRE, 512 * 1024)
    srd(a, SM, P_WG, 512 * 2752)
    a(f"s_branch {lab1}")
    a.label(lab0)
    srd(a, SS, P_BRE, 512 * 1024)
    srd(a, SM, P_WG, 512 * 2752)
    a(f"s_mov_b32 s{sT4}, s{P_WU}\ns_mov_b32 s{sT5}, s{P_WU+1}")
    srd(a, 32, sT4, 512 * 2752)
    for s_ in range(NPRE):
        for code, tag in dma_p0(s_, 0):
            a(code.replace(f"s[{SM2}:{SM2+3}]", "s[32:35]"))
        if s_ == 0:
            a(f"""s_lshl_b32 s{sT2}, s2, 3
            s_lshl_b32 s{sT3}, s{sRG}, 1
            s_add_u32 s{sT5}, s{sT2}, s{sT3}
            s_lshl_b32 s{sT5}, s{sT5}, 10
            buffer_load_dwordx4 v[{vACC}:{vACC+3}], v{vT+3}, s[{SX}:{SX+3}], s{sT5} offen
            buffer_load_dwordx4 v[{vACC+4}:{vACC+7}], v{vT+3}, s[{SX}:{SX+3}], s{sT5} offen offset:1024""")
    a.label(lab1)
    srd(a, SWS, P_WS, WS_SIZE)
    a(f"""s_add_u32 s{P_BIM}, s{P_WS}, {WS_EPOCH}
    s_addc_u32 s{P_BIM+1}, s{P_WS+1}, 0
    s_load_dword s{sTAG}, s[{P_BIM}:{P_BIM+1}], 0""")
    srd(a, SM2, P_WU, 512 * 2752)
    pstamp(a, 1)
    srd(a, SWD, P_WD, 1376 * 1024)
    srd(a, SC, P_CRE, 512 * 1024)
    a(f"""v_and_b32 v{vT+2}, 31, v{vLANE}
    s_lshl_b32 s{sT4}, s{sCG}, 5
    v_add_u32 v{vT+2}, s{sT4}, v{vT+2}
    v_lshlrev_b32 v{vT+2}, 1, v{vT+2}""")
    srd(a, ST, P_LRE, 1024)
    a.vmop(f"buffer_load_ushort v{vA16r}, v{vT+2}, s[{ST}:{ST+3}], 0 offen", "par")
    srd(a, ST, P_LIM, 1024)
    a.vmop(f"buffer_load_ushort v{vA16i}, v{vT+2}, s[{ST}:{ST+3}], 0 offen", "par")
    srd(a, ST, P_LDT, 1024)
    a.vmop(f"buffer_load_ushort v{vA128r}, v{vT+2}, s[{ST}:{ST+3}], 0 offen", "par")
    pstamp(a, 2)
    srd(a, SO, P_OUT, 2048 * 2048)
    srd(a, ST, P_DSK, 1024)
    if CODE_PREFETCH:
        lab = a.newlab("CP")
        a(f"""s_cmp_eq_u32 s{sW}, 3
        s_cbranch_scc0 {lab}
        s_getpc_b64 s[{sT2}:{sT3}]""")
        a.label("L_PC")
        a(f"""s_mul_i32 s{sT4}, s{sIDX}, {10*128}
        v_lshlrev_b32 v{vT+2}, 7, v{vLANE}
        v_add_u32 v{vT+2}, s{sT4}, v{vT+2}
        v_cmp_gt_u32 vcc, L_CODE_END-L_PC, v{vT+2}
        s_and_saveexec_b64 s[{sEX}:{sEX+1}], vcc
        v_cmp_gt_u32 vcc, 10, v{vLANE}
        s_and_b64 exec, exec, vcc
        s_cbranch_execz {lab}_R
        global_load_dword v{vK1}, v{vT+2}, s[{sT2}:{sT3}]""")
        a.label(lab + "_R")
        a(f"s_mov_b64 exec, s[{sEX}:{sEX+1}]")
        a.label(lab)
    a(f"""s_lshr_b32 s{sT3}, s{sW}, 1                ; w>>1
    s_and_b32 s{sT4}, s{sW}, 1
    s_lshl_b32 s{sT4}, s{sT4}, 14            ; (w&1)*16384
    s_mul_i32 s{s3RG}, s{sT3}, {3*32768}
    s_add_u32 s{s3RG}, s{s3RG}, s{sT4}
    s_lshl_b32 s{s2RG}, s{sT3}, 16
    s_add_u32 s{s2RG}, s{s2RG}, s{sT4}
    s_cmp_eq_u32 s{sT3}, 3
    s_cselect_b32 s{sAOFF}, 0x40000000, s{s3RG}
    s_lshl_b32 s{sXB}, s{sRG}, 14
    s_lshl_b32 s{sRT}, s{sW}, 11
    s_lshl_b32 s{sT2}, s{sRB}, 2
    s_add_u32 s{sT2}, s{sT2}, s{sRG}
    s_mul_i32 s{sHPOS}, s{sT2}, {RT_STRIDE}
    s_lshl_b32 s{sT4}, s{sRB2}, 1
    s_lshr_b32 s{sT3}, s{sW}, 2
    s_add_u32 s{sT4}, s{sT4}, s{sT3}
    s_mul_i32 s{sT4}, s{sT4}, {RT_STRIDE}
    s_lshl_b32 s{sT3}, s{sRG}, 11
    s_add_u32 s{sT4}, s{sT4}, s{sT3}
    v_lshlrev_b32 v{vDA}, 4, v{vLANE}
    v_add_u32 v{vDA}, s{sT4}, v{vDA}
    v_bfe_u32 v{vT+2}, v{vLANE}, 4, 1
    v_lshlrev_b32 v{vT+2}, 2, v{vT+2}
    v_xor_b32 v{vT+2}, v3, v{vT+2}
    v_lshlrev_b32 v{vT+4}, 10, v2
    v_lshl_add_u32 v{vT+2}, v{vT+2}, 4, v{vT+4}
    s_lshl_b32 s{sT4}, s{sCB}, 7
    v_add_u32 v{vDB}, s{sT4}, v{vT+2}
    s_lshl_b32 s{sT4}, s{sCB}, 6
    v_add_u32 v{vT+2}, s{sT4}, v2
    v_lshlrev_b32 v{vT+2}, 10, v{vT+2}
    v_lshl_add_u32 v{vDC0}, v{vT+1}, 4, v{vT+2}
    v_xor_b32 v{vDC1}, 64, v{vDC0}
    v_and_b32 v2, 31, v{vLANE}
    v_bfe_u32 v3, v2, 2, 1
    v_lshlrev_b32 v3, 4, v3
    v_lshrrev_b32 v{vT}, 3, v2
    v_lshl_add_u32 v3, v{vT}, 2, v3
    v_and_b32 v{vT+1}, 3, v2
    v_add_u32 v3, v3, v{vT+1}               ; tau
    v_bfe_u32 v{vT}, v3, 1, 3
    s_lshl_b32 s{sT4}, s{sRG}, 5
    v_add_u32 v3, s{sT4}, v3
    v_lshlrev_b32 v3, 7, v3
    v_lshrrev_b32 v{vT+1}, 5, v{vLANE}
    v_xor_b32 v{vT}, v{vT}, v{vT+1}
    v_lshl_add_u32 v{vXA}, v{vT}, 4, v3
    v_xor_b32 v{vXA+1}, 32, v{vXA}
    v_xor_b32 v{vXA+2}, 64, v{vXA}
    v_xor_b32 v{vXA+3}, 96, v{vXA}
    v_lshlrev_b32 v3, 3, v{vT+1}
    v_bfe_u32 v{vT}, v{vLANE}, 2, 2
    v_add_u32 v3, v3, v{vT}
    v_lshlrev_b32 v3, 6, v3
    v_bfe_u32 v{vT}, v{vLANE}, 4, 1
    v_lshl_add_u32 v3, v{vT}, 5, v3
    v_and_b32 v{vT}, 3, v{vLANE}
    v_lshl_add_u32 v{vTRL}, v{vT}, 3, v3
    s_lshr_b32 s{sT4}, s{sW}, 2
    s_lshl_b32 s{sT4}, s{sT4}, 13
    v_add_u32 v{vW1}, s{sT4}, v{vTRL}
    v_mov_b32 v{vRGV}, s{sRG}""")
    pstamp(a, 3)
    a(f"""s_cmp_ge_u32 s{sW}, 4
    s_cbranch_scc1 L_STREAM_B""")
    save = (list(a.vm), list(a.lg), a.nvm)
    stream(a, 0)
    a.vm, a.lg, a.nvm = list(save[0]), list(save[1]), save[2]
    a.label("L_STREAM_B")
    stream(a, 1)
    a.label("L_END")
    a("s_endpgm")
    a.label("L_CODE_END")


def w2_touch(a, which, junk=None):
    if not W2_PREFETCH:
        return
    sIDX = sMX
    j = junk or vDA
    a(f"v_lshlrev_b32 v3, 7, v{vLANE}")
    if which in (0, 1):
        a(f"""s_mul_i32 s{sT0}, s{sIDX}, 44032
        s_lshl_b32 s{sT1}, s{sRG}, 13
        s_add_u32 s{sT0}, s{sT0}, s{sT1}
        s_add_u32 s{sT0}, s{sT0}, {32768*which}""")
        a.vmop(f"buffer_load_dword v{j}, v3, s[{SWD}:{SWD+3}], s{sT0} offen", "pf")
    else:
        a(f"""s_lshl_b32 s{sT0}, s{sIDX}, 14
        s_and_b32 s{sT1}, s{sRG}, 1
        s_lshl_b32 s{sT1}, s{sT1}, 13
        s_add_u32 s{sT0}, s{sT0}, s{sT1}""")
        a.vmop(f"buffer_load_dword v{j}, v3, s[{SC}:{SC+3}], s{sT0} offen", "pf")


def w2_touch16(a, piece, junk):
    if not W2_PREFETCH:
        return
    sIDX = sMX
    a(f"v_lshlrev_b32 v3, 7, v{vLANE}")
    if piece < 6:
        a(f"""s_mul_i32 s{sT0}, s{sIDX}, 44032
        s_lshl_b32 s{sT1}, s{sRG}, 11
        s_add_u32 s{sT0}, s{sT0}, s{sT1}
        s_add_u32 s{sT0}, s{sT0}, {piece*8192}
        s_mov_b64 s[{sEX}:{sEX+1}], exec
        s_mov_b64 exec, 0xffff""")
        a.vmop(f"buffer_load_dword v{junk}, v3, s[{SWD}:{SWD+3}], s{sT0} offen", "pf")
    else:
        a(f"""s_lshl_b32 s{sT0}, s{sIDX}, 14
        s_lshl_b32 s{sT1}, s{sRG}, 11
        s_add_u32 s{sT0}, s{sT0}, s{sT1}
        s_add_u32 s{sT0}, s{sT0}, {(piece-6)*8192}
        s_mov_b64 s[{sEX}:{sEX+1}], exec
        s_mov_b64 exec, 0xffff""")
        a.vmop(f"buffer_load_dword v{junk}, v3, s[{SC}:{SC+3}], s{sT0} offen", "pf")
    a(f"s_mov_b64 exec, s[{sEX}:{sEX+1}]")


def ln_stats(a, src, row_s):
    U = vACC2
    for i in range(4):
        a(f"v_lshlrev_b32 v{U+2*i}, 16, v{src+i}\nv_and_b32 v{U+2*i+1}, 0xffff0000, v{src+i}")
    a(f"""v_add_f32 v{vT}, v{U}, v{U+1}
    v_add_f32 v{vT+1}, v{U+2}, v{U+3}
    v_add_f32 v{vT+2}, v{U+4}, v{U+5}
    v_add_f32 v{vT+4}, v{U+6}, v{U+7}
    v_add_f32 v{vT}, v{vT}, v{vT+1}
    v_add_f32 v{vT+2}, v{vT+2}, v{vT+4}
    v_add_f32 v{vT}, v{vT}, v{vT+2}""")
    wave_sum(a, vT, sT4)
    a(f"""s_nop 1
    v_mov_b32 v{vT+1}, s{sT4}
    v_mul_f32 v{vT+1}, {f2u(1.0/512)}, v{vT+1}
    v_mov_b32 v{vT}, 0""")
    for i in range(8):
        a(f"v_sub_f32 v{vT+2}, v{U+i}, v{vT+1}\nv_fmac_f32 v{vT}, v{vT+2}, v{vT+2}")
    wave_sum(a, vT, sT4)
    a(f"""s_nop 1
    v_mov_b32 v{vT+2}, s{sT4}
    v_mul_f32 v{vT+2}, {f2u(1.0/512)}, v{vT+2}""")
    rne_bf16(a, vT + 1)
    rne_bf16(a, vT + 2)
    a(f"v_add_f32 v{vT+2}, {f2u(1e-5)}, v{vT+2}")
    rne_bf16(a, vT + 2)
    a(f"v_sqrt_f32 v{vT+2}, v{vT+2}\ns_nop 0")
    rne_bf16(a, vT + 2)
    a(f"""v_mov_b32 v{U}, v{vT+1}
    v_mov_b32 v{U+1}, s{sTAG}
    v_mov_b32 v{U+2}, v{vT+2}
    v_mov_b32 v{U+3}, s{sTAG}
    s_lshl_b32 s{sT4}, s{row_s}, 4
    s_add_u32 s{sT4}, s{sT4}, {WS_STAT}
    v_mov_b32 v{vT}, 0
    s_mov_b64 s[{sEX}:{sEX+1}], exec
    s_mov_b64 exec, 1""")
    a.vmop(f"buffer_store_dwordx4 v[{U}:{U+3}], v{vT}, s[{SWS}:{SWS+3}], s{sT4} offen sc1", "stat")
    a(f"s_mov_b64 exec, s[{sEX}:{sEX+1}]")


def stream(a, ch):
    a(f"s_waitcnt lgkmcnt(0)\ns_add_u32 s{sTAG}, s{sTAG}, 1")
    if ch == 0:
        a.vm = ["st0"] * 4 + ["lnrow", "lnrow"] + [f"st{g}" for g in range(1, NPRE) for _ in range(4)] + ["par"] * 3
        a(f"""v_and_b32 v3, 31, v{vLANE}
        v_bfe_u32 v{vT}, v3, 1, 3
        v_lshrrev_b32 v{vT+1}, 5, v{vLANE}
        v_xor_b32 v{vT}, v{vT}, v{vT+1}
        v_lshlrev_b32 v3, 7, v3
        v_lshl_add_u32 v3, v{vT}, 4, v3
        v_add_u32 v{vWS}, 16384, v3
        v_xor_b32 v{vWS+1}, 32, v{vWS}
        v_xor_b32 v{vWS+2}, 64, v{vWS}
        v_xor_b32 v{vWS+3}, 96, v{vWS}""")
        waddr0 = [vWS + i for i in range(4)]
        a.vmwait("lnrow")
        pstamp(a, 4)
        a(f"""s_lshl_b32 s{sT2}, s2, 3
        s_lshl_b32 s{sT3}, s{sRG}, 1
        s_add_u32 s{sT5}, s{sT2}, s{sT3}""")
        ln_stats(a, vACC, sT5)
        a(f"s_add_u32 s{sT5}, s{sT5}, 1")
        ln_stats(a, vACC + 4, sT5)
    else:
        a.vm = [f"st{g}" for g in range(NPRE) for _ in range(4)] + ["par"] * 3
        a(f"v_add_u32 v{vWM}, 24576, v{vTRL}")
        waddr0 = [vWM]
    if W2_AT == 0 and ch == 0:
        for wch in (0, 2, 1):
            w2_touch(a, wch)
    stamp(a, 0)
    if PSTAMP:
        a(f"s_lshl_b32 s{sT0}, s2, 3\ns_add_u32 s{sT0}, s{sT0}, s{sW}\ns_lshl_b32 s{sT0}, s{sT0}, 6\ns_add_u32 s{sT0}, s{sT0}, {WS_DBG + 0x40000}")
        a("v_mov_b32 v3, 0")
        for i in range(5):
            a(f"buffer_store_dword v{232+i}, v3, s[{SWS}:{SWS+3}], s{sT0} offen offset:{4*i}")
        a.vm += ["x"] * 5
    a(f"""s_lshr_b32 s{sCSM}, s{sRB}, 3
    s_add_u32 s{sCSM}, s{sCSM}, 1
    s_cmp_eq_u32 s{sRG}, 0
    s_cselect_b32 s{sCSM}, s{sCSM}, 0""")
    for i in range(4):
        a(f"v_mov_b32 v{ONES+i}, 0x3f803f80")
    for i in range(64):
        a(f"v_mov_b32 v{vACC+i}, 0")
    xaddr = [vXA + i for i in range(4)]

    slots = []
    for g in range(8):
        for j in range(4):
            for t in range(2):
                slots.append((g, 0, j, t))
    for g in range(8, 12):
        for c2 in range(2):
            for j in range(4):
                for t in range(2):
                    slots.append((g, c2, j, t))
    NS = len(slots)
    first_of = {}
    last_of = {}
    for n, (g, c2, j, t) in enumerate(slots):
        first_of.setdefault(g, n)
        last_of[g] = n
    hi_state = {"x": 0, "w0": 0, "w1": 0}

    def set_hi(key, regs, g):
        hi = ((g % NSLOT) * SLOT) >> 16
        if hi_state[key] != hi:
            for r in regs:
                a(f"v_xor_b32 v{r}, 0x10000, v{r}")
            hi_state[key] = hi

    def frag_reg(n):
        return vFR + 4 * (n % 4)

    def issue_reads(n):
        g, c2, j, t = slots[n]
        lo = ((g % NSLOT) * SLOT) & 0xffff
        f = frag_reg(n)
        tag = f"w{n}"
        if g < 8:
            if j == 0 and t == 0:
                set_hi("x", xaddr, g)
                set_hi("w0", waddr0, g)
                for jj in range(4):
                    r = vXF + 4 * (4 * g + jj)
                    a.ldsop(f"ds_read_b128 v[{r}:{r+3}], v{vXA+jj} offset:{lo}", f"x{g}_{jj}")
            if ch == 0:
                a.ldsop(f"ds_read_b128 v[{f}:{f+3}], v{vWS+j} offset:{lo + t*4096}", tag)
            else:
                o = lo + t * 4096 + j * 1024
                a.ldsop(f"ds_read_b64_tr_b16 v[{f}:{f+1}], v{vWM} offset:{o}", tag)
                a.ldsop(f"ds_read_b64_tr_b16 v[{f+2}:{f+3}], v{vWM} offset:{o+256}", tag)
        else:
            if c2 == 0 and j == 0 and t == 0:
                set_hi("w1", [vW1], g)
            o = lo + c2 * 16384 + t * 4096 + j * 1024
            a.ldsop(f"ds_read_b64_tr_b16 v[{f}:{f+1}], v{vW1} offset:{o}", tag)
            a.ldsop(f"ds_read_b64_tr_b16 v[{f+2}:{f+3}], v{vW1} offset:{o+256}", tag)

    def mfma(n):
        g, c2, j, t = slots[n]
        f = frag_reg(n)
        if g < 8:
            xf = vXF + 4 * (4 * g + j)
            acc = vACC + 16 * t
            a.lgwait(f"x{g}_{j}")
        else:
            xf = vXF + 4 * (4 * (2 * (g - 8) + c2) + j)
            acc = vACC2 + 16 * t
        a.lgwait(f"w{n}")
        if ch == 0 and g < 8:
            a(f"v_mfma_f32_32x32x16_bf16 v[{acc}:{acc+15}], v[{xf}:{xf+3}], v[{f}:{f+3}], v[{acc}:{acc+15}]")
        else:
            a(f"v_mfma_f32_32x32x16_bf16 v[{acc}:{acc+15}], v[{f}:{f+3}], v[{xf}:{xf+3}], v[{acc}:{acc+15}]")

    def colsum_at(n):
        g, c2, j, t = slots[n]
        if (g == 0) or (g == 8 and c2 == 1):
            acc = CSACC if g == 0 else CS1ACC
            lab = a.newlab("CSK")
            f = frag_reg(n)
            c = "0" if j == 0 else f"v[{acc}:{acc+15}]"
            a(f"""s_cmp_eq_u32 s{sCSM}, {t+1}
            s_cbranch_scc0 {lab}
            v_mfma_f32_32x32x16_bf16 v[{acc}:{acc+15}], v[{ONES}:{ONES+3}], v[{f}:{f+3}], {c}""")
            a.label(lab)

    dmaq = []

    def stage_barrier(g):
        if ch == 0 and g == 7:
            gather_finish(a, 0, GATH0, a.nvm - marks["g0"], 3)
            for i in range(16):
                a(f"v_mov_b32 v{GATH0+i}, 0")
        if g == 10 and ch == 1:
            a.vmwait("u0")
            write_flag(a, 0, ch)
        a.vmwait(f"st{g+1}")
        a("s_barrier")
        if ch == 0 and g in (8, 9) and marks.get("edone") and not marks.get("published"):
            a.fill_all(); s_publish(a); a.lg = []
            marks["published"] = True
        nxt = g + 3
        if E("X_NODMA", 0):
            pass
        elif nxt < 8:
            dmaq.extend(dma_p0(nxt, ch))
        elif nxt < 12:
            dmaq.extend(dma_p1(nxt - 8, ch))
        if g == 9:
            dmaq.extend(p2_B(0)); dmaq.extend(p2_B(1))
        if g == 10:
            dmaq.extend(p2_B(2)); dmaq.extend(p2_B(3))

    marks = {}
    if (PRIO == 2 and ch == 1) or (PRIO == 3 and ch == 0):
        a("s_setprio 1")
    a.vmwait("st0")
    a("s_barrier")
    stamp(a, 1)
    for s_ in range(NPRE, 3):
        dmaq.extend(dma_p0(s_, ch))
    for n in range(LOOK):
        issue_reads(n)
    for n in range(NS):
        g, c2, j, t = slots[n]
        mfma(n)
        colsum_at(n)
        nn = n + LOOK
        if nn < NS:
            if slots[nn][0] != slots[nn - 1][0]:
                stage_barrier(slots[nn - 1][0])
            issue_reads(nn)
        every = (PACE0 if g < 8 else PACE1)
        npop = 2 if len(dmaq) > 4 else (1 if (n % every == 0) else 0)
        for _ in range(DMA_RATE if DMA_RATE else npop):
            if dmaq:
                code, tag = dmaq.pop(0)
                a.vmop(code, tag)
        if g >= 8:
            a.fill(FILL0 if ch == 0 else FILL)
        elif g >= 3:
            a.fill(3)
        if W2_AT == 4 and g >= W2_G0 and (n - first_of[g]) in (W2_P1, W2_P2):
            k = 2 * (g - W2_G0) + (0 if (n - first_of[g]) == W2_P1 else 1)
            if ch == 1 and k < 8:
                w2_touch16(a, k, vDS)
            if ch == 0 and k in (1, 3):
                w2_touch16(a, 6 + (k // 2), vDX0)
        if n == last_of[g]:
            if P1DBG == 4 and g < 9:
                a(f"s_memtime s[{STAMP0+2*(5+g)}:{STAMP0+2*(5+g)+1}]")
            if P1DBG == 5 and g >= 7:
                a(f"s_memtime s[{STAMP0+2*(g-2)}:{STAMP0+2*(g-2)+1}]")
            if P1DBG == 1 and g in (8, 9, 10):
                stamp(a, {8: 9, 9: 13, 10: 6}[g], force=True)
            if P1DBG == 2 and g in (1, 3, 5):
                stamp(a, {1: 9, 3: 13, 5: 6}[g], force=True)
            if g == 0:
                colsum_store(a, CSACC, ch)
                a("s_nop 7")
                for i in range(16):
                    a(f"v_mov_b32 v{CSACC+i}, 0")
            if W2_AT == 1 and ch == 0 and g in (3, 4, 8):
                w2_touch(a, {3: 0, 4: 2, 8: 1}[g])
            if W2_AT == 3 and ch == 1 and W2_G0 <= g < W2_G0 + 8:
                w2_touch16(a, g - W2_G0, vDS)
            if W2_AT == 3 and ch == 0 and g in (W2_G0 + 1, W2_G0 + 3):
                w2_touch16(a, 6 + (g - W2_G0) // 2, vDX0)
            if W2_AT == 2 and ch == 1 and g == 9:
                for wch in (0, 2, 1):
                    w2_touch(a, wch, junk=vDS)
            if g == 2 and ch == 0:
                a.vmwait("par")
                q = Q()
                s_params(q)
                a.fillq = q.q
            if g == 5 and ch == 0:
                gather_loads(a, 0, GATH0, 3, tracked=True)
                marks["g0"] = a.nvm
            if g == 7:
                a.fill_all()
                stamp(a, 2)
                if PRIO == 1 and ch == 0:
                    a("s_setprio 1")
                q = Q()
                if ch == 1:
                    q(f"""s_lshl_b32 s{sT5}, s{sCG}, 11
                    s_add_u32 s{sT5}, s{sT5}, s{sHPOS}""")
                    row_stats_M(q, vT)
                    gelu_epi(q, vACC, sT5, 64 * 4, "u0", 4, vT)
                else:
                    s_epilogue1(q)
                    q.q.append(("call", lambda: marks.__setitem__("edone", True)))
                a.fillq = q.q
            if g == 8:
                colsum_store(a, CS1ACC, 2 + ch, koff=1)
            if g == 9:
                a.fill_all()
                stamp(a, 3)
            if g == 10 and ch == 0:
                lookback_loads(a)
                a(f"""s_lshl_b32 s{sT5}, s{sCG}, 12
                s_add_u32 s{sMU}, s{sHPOS}, s{sT5}
                s_add_u32 s{sMU}, s{sMU}, {86*1024}""")
            if g == 10 and ch == 0 and not marks.get("published"):
                s_publish(a); a.lg = []
            if g == 10 and ch == 1:
                gather_loads(a, 1, GATH1, 3, tracked=True)
                marks["g1"] = a.nvm
    stamp(a, 4)
    while dmaq:
        code, tag = dmaq.pop(0)
        a.vmop(code, tag)
    a.fill_all()
    if ch == 0:
        q = Q()
        s_work_atoms(a, q)
        a.fillq = q.q
        a.fill_all()
        stamp(a, 6)
    else:
        gather_finish(a, 1, GATH1, a.nvm - marks["g1"], 3)
        poll_flags(a, 0, tracked=True)
        for st in range(4):
            for code, tag in p2_A(st):
                a.vmop(code, tag)
    a("s_barrier")
    stamp(a, 5)
    if ch == 0:
        for st in range(4):
            for code, tag in p2_A(st):
                a.vmop(code, tag)
    if ch == 1:
        lab = a.newlab("U2S")
        stamp(a, 6)
        a(f"""s_cmp_ge_u32 s{sCG}, 11
        s_cbranch_scc1 {lab}
        s_lshl_b32 s{sT5}, s{sCG}, 11
        s_add_u32 s{sT5}, s{sT5}, s{sHPOS}
        s_add_u32 s{sT5}, s{sT5}, {64*1024}""")
        gelu_epi(a, vACC2, sT5, 192 * 4, "u12", 48, vT, maybe=True)
        a.label(lab)
        a.lg = []
        marks["u12"] = a.nvm
        for st in range(4, 8):
            for code, tag in p2_B(st):
                a.vmop(code, tag)
        a(f"s_waitcnt vmcnt({a.nvm - marks['u12']})")
        write_flag(a, 1, 1)
        stamp(a, 8)
    else:
        a(f"""s_lshl_b32 s{sT5}, s{sCG}, 11
        s_add_u32 s{sT5}, s{sT5}, s{sHPOS}
        s_add_u32 s{sT5}, s{sT5}, {32*1024}""")
        a(f"""s_lshl_b32 s{sT5}, s{sCG}, 11
        s_add_u32 s{sT5}, s{sT5}, s{sHPOS}
        s_add_u32 s{sT5}, s{sT5}, {32*1024}""")
        gelu_epi(a, vACC2, sT5, 128 * 4, "u12", 48, vT)
        for st in range(4, 8):
            for code, tag in p2_B(st):
                a.vmop(code, tag)
        a.vmwait("h")
        write_flag(a, 2, 0)
        stamp(a, 8)
    a.marks = marks
    phase2(a, ch)


def phase2(a, ch):
    rt = ch
    vB0, vB1, vC0, vC1, vXO, vSO, vDO = 4, 5, 6, 7, 9, 11, 12
    vDK = 8
    vBF = 176
    vAC = 208
    vEX = 104
    a(f"""v_lshrrev_b32 v{vT}, 5, v{vLANE}
    v_lshlrev_b32 v{vT}, 2, v{vT}
    v_bfe_u32 v3, v{vLANE}, 2, 2
    v_add_u32 v{vT}, v{vT}, v3
    v_lshlrev_b32 v{vT}, 7, v{vT}
    v_bfe_u32 v3, v{vLANE}, 3, 1
    v_lshl_add_u32 v{vT}, v3, 6, v{vT}
    v_bfe_u32 v3, v{vLANE}, 4, 1
    v_lshl_add_u32 v{vT}, v3, 5, v{vT}
    v_and_b32 v3, 3, v{vLANE}
    v_lshl_add_u32 v{vT}, v3, 3, v{vT}
    s_lshl_b32 s{sT0}, s{sRG}, 12
    v_add_u32 v{vB0}, s{sT0}, v{vT}
    v_xor_b32 v{vB1}, 64, v{vB0}
    v_and_b32 v{vT}, 31, v{vLANE}
    v_bfe_u32 v3, v{vT}, 1, 3
    v_lshrrev_b32 v{vT+1}, 5, v{vLANE}
    s_lshr_b32 s{sT0}, s{sRG}, 1
    s_lshl_b32 s{sT0}, s{sT0}, 2
    v_add_u32 v{vT+1}, s{sT0}, v{vT+1}
    v_xor_b32 v3, v3, v{vT+1}
    v_lshlrev_b32 v{vT}, 7, v{vT}
    v_lshl_add_u32 v{vT}, v3, 4, v{vT}
    s_and_b32 s{sT0}, s{sRG}, 1
    s_lshl_b32 s{sT0}, s{sT0}, 13
    v_add_u32 v{vC0}, s{sT0}, v{vT}
    v_xor_b32 v{vC1}, 32, v{vC0}
    v_lshrrev_b32 v{vT}, 5, v{vLANE}
    v_lshlrev_b32 v{vT}, 4, v{vT}
    s_lshl_b32 s{sT0}, s{sRB2}, 6
    s_lshl_b32 s{sT1}, s{sRG}, 2
    s_add_u32 s{sT0}, s{sT0}, s{sT1}
    s_add_u32 s{sT0}, s{sT0}, {32*rt}
    v_add_u32 v{vT}, s{sT0}, v{vT}
    v_lshlrev_b32 v{vSO}, 4, v{vT}
    v_lshlrev_b32 v{vT}, 9, v{vT}
    v_and_b32 v3, 31, v{vLANE}
    s_lshl_b32 s{sT0}, s{sCB}, 6
    v_add_u32 v3, s{sT0}, v3
    v_add_u32 v{vT}, v{vT}, v3
    v_lshlrev_b32 v{vXO}, 1, v{vT}
    v_lshlrev_b32 v{vDO}, 1, v3""")

    def epi_loads():
        a.vmop(f"buffer_load_ushort v{vDK}, v{vDO}, s[{ST}:{ST+3}], 0 offen", "epi")
        a.vmop(f"buffer_load_ushort v{vDK+2}, v{vDO}, s[{ST}:{ST+3}], 0 offen offset:64", "epi")
        for ct in range(2):
            for i in range(4):
                a.vmop(f"buffer_load_ushort v{vEX+4*ct+i}, v{vXO}, s[{SX}:{SX+3}], 0 offen offset:{i*1024 + ct*64}", "epi")
        a(f"s_mov_b32 s{sT0}, {WS_STAT}")
        for i in range(4):
            a.vmop(f"buffer_load_dword v{vEX+8+i}, v{vSO}, s[{SWS}:{SWS+3}], s{sT0} offen offset:{i*16} sc1", "epi")
            a.vmop(f"buffer_load_dword v{vEX+12+i}, v{vSO}, s[{SWS}:{SWS+3}], s{sT0} offen offset:{i*16+8} sc1", "epi")
    def skip_term():
        a.vmwait("epi")
        D0, D1 = vDK, vDK + 2
        X = vEX; M_ = vEX + 8; S_ = vEX + 12; Y = vEX + 16
        a(f"v_lshlrev_b32 v{D0}, 16, v{D0}\nv_lshlrev_b32 v{D1}, 16, v{D1}\nv_lshlrev_b32 v{vXO}, 1, v{vXO}")
        for i in range(4):
            a(f"v_rcp_f32 v{S_+i}, v{S_+i}")
        for k in range(8):
            a(f"v_lshlrev_b32 v{X+k}, 16, v{X+k}")
        for k in range(8):
            a(f"v_sub_f32 v{Y+k}, v{X+k}, v{M_+(k&3)}")

        def rnd():
            for k in range(0, 8, 2):
                a(f"v_cvt_pk_bf16_f32 v{vT+1}, v{Y+k}, v{Y+k+1}")
                a(f"v_lshlrev_b32 v{Y+k}, 16, v{vT+1}\nv_and_b32 v{Y+k+1}, 0xffff0000, v{vT+1}")
        rnd()
        for k in range(8):
            a(f"v_mul_f32 v{Y+k}, v{Y+k}, v{S_+(k&3)}")
        rnd()
        for k in range(8):
            a(f"v_mul_f32 v{Y+k}, v{Y+k}, v{D0 if k < 4 else D1}")
        rnd()
        for k in range(8):
            a(f"v_add_f32 v{Y+k}, v{Y+k}, v{X+k}")

    for i in range(32):
        a(f"v_mov_b32 v{vAC+i}, 0")
    hi2 = {"v": 0}

    def p2_reads(st, n):
        slot = (st % 8) * 16384
        hi, lo = slot >> 16, slot & 0xffff
        if n == 0 and hi != hi2["v"]:
            for r in (vB0, vB1, vC0, vC1):
                a(f"v_xor_b32 v{r}, 0x10000, v{r}")
            hi2["v"] = hi
        s_, ct = n >> 1, n & 1
        f = vBF + 16 * (st % 2) + 4 * n
        tag = f"r{st}_{n}"
        if ORDER[st][0] == "M":
            vb = vB0 if ct == 0 else vB1
            a.ldsop(f"ds_read_b64_tr_b16 v[{f}:{f+1}], v{vb} offset:{lo + s_*2048}", tag)
            a.ldsop(f"ds_read_b64_tr_b16 v[{f+2}:{f+3}], v{vb} offset:{lo + s_*2048 + 1024}", tag)
        else:
            a.ldsop(f"ds_read_b128 v[{f}:{f+3}], v{vC0+s_} offset:{lo + ct*4096}", tag)

    def p2_barrier(st):
        a.vmwait(f"B{st}")
        a("s_barrier")

    epi_loads()
    p2_barrier(0)
    stamp(a, 7)
    for n in range(4):
        p2_reads(0, n)
    dq = []
    a_next = 4
    allowed = 3
    for st in range(NST2):
        if P1DBG == 6 and st <= 13:
            a(f"s_memrealtime s[{STAMP0+2*st}:{STAMP0+2*st+1}]") if st != 3 else None
        if st == 4:
            stamp(a, 9)
        if st == 11:
            stamp(a, 13)
        if st + 1 < NST2:
            if ch == 0:
                if st + 1 == H_ST:
                    a.vmwait("u12")
                    write_flag(a, 1, 0)
                if st + 1 == E2_ST:
                    poll_flags(a, 2, tracked=True)
                if st + 1 == E1_PRE:
                    flag_preload(a, 1, 244)
                if st + 1 == E1_ST:
                    poll_flags(a, 1, tracked=True, pre=244)
            p2_barrier(st + 1)
            if st + 1 == E2_ST:
                allowed = 11
            if st + 1 == E1_ST:
                allowed = NST2 - 1
            nissue = 0
            lim = A_PACE if a_next >= 12 else A_PACE2
            while a_next <= min(allowed, st + NA - 1, NST2 - 1) and (nissue < lim or a_next <= st + 2):
                dq.extend(p2_A(a_next)); a_next += 1; nissue += 1
            if st >= 1 and st + 7 < NST2:
                dq.extend(p2_B(st + 7))
        g = sum(1 for x in dq if x[1] == f"A{st}")
        while any(x[1] == f"A{st}" for x in dq):
            code, tag = dq.pop(0); a.vmop(code, tag)
        a.vmwait(f"A{st}")
        per = (len(dq) + 3) // 4
        for n in range(4):
            s_, ct = n >> 1, n & 1
            f = vBF + 16 * (st % 2) + 4 * n
            ar = ARING[st % NA] + 4 * s_
            ac = vAC + 16 * ct
            a.lgwait(f"r{st}_{n}")
            a(f"v_mfma_f32_32x32x16_bf16 v[{ac}:{ac+15}], v[{ar}:{ar+3}], v[{f}:{f+3}], v[{ac}:{ac+15}]")
            if st + 1 < NST2:
                p2_reads(st + 1, n)
            for _ in range(per):
                if dq:
                    code, tag = dq.pop(0)
                    a.vmop(code, tag)
        if st == SKIP_ST:
            skip_term()
    stamp(a, 10)
    a(f"""s_nop 15
    s_barrier
    s_lshl_b32 s{sT0}, s{sRG}, 11
    v_lshlrev_b32 v{vT}, 4, v{vLANE}
    v_add_u32 v{vT+1}, s{sT0}, v{vT}
    v_add_u32 v{vT+1}, {rt*32768}, v{vT+1}""")
    for q in range(4):
        for ct in range(2):
            r = vAC + 16 * ct + 4 * q
            a(f"ds_write_b128 v{vT+1}, v[{r}:{r+3}] offset:{q*8192 + ct*1024}")
    a(f"""s_lshl_b32 s{sT0}, s{sRG}, 13
    v_add_u32 v{vT+1}, s{sT0}, v{vT}
    v_add_u32 v{vT+1}, {rt*32768}, v{vT+1}
    s_waitcnt lgkmcnt(0)
    s_barrier""")
    R = vAR
    Y = vEX + 16
    for src in range(4):
        for ct in range(2):
            r = R + 8 * src + 4 * ct
            a(f"ds_read_b128 v[{r}:{r+3}], v{vT+1} offset:{src*2048 + ct*1024}")
    a("s_waitcnt lgkmcnt(0)")
    for k in range(8):
        a(f"v_add_f32 v{R+k}, v{R+k}, v{R+8+k}")
        a(f"v_add_f32 v{R+16+k}, v{R+16+k}, v{R+24+k}")
    for k in range(8):
        a(f"v_add_f32 v{R+k}, v{R+k}, v{R+16+k}")
    for k in range(8):
        a(f"v_add_f32 v{R+k}, v{R+k}, v{Y+k}")
    for ct in range(2):
        for i in range(4):
            ro = i * 2048 + ct * 128
            so, io = (ro // 4096) * 4096, ro % 4096
            a(f"s_mov_b32 s{sT0}, {so}")
            a(f"buffer_store_dword v{R+4*ct+i}, v{vXO}, s[{SO}:{SO+3}], s{sT0} offen offset:{io} {OUTF}")
    if ch == 0:
        lab = a.newlab("EP")
        a(f"""s_cmp_eq_u32 s{sRB2}, 31
        s_cbranch_scc0 {lab}
        s_cmp_eq_u32 s{sCB}, 0
        s_cbranch_scc0 {lab}
        s_cmp_eq_u32 s{sW}, 0
        s_cbranch_scc0 {lab}
        v_mov_b32 v4, s{sTAG}
        v_mov_b32 v3, 0
        s_mov_b32 s{sT0}, {WS_EPOCH}
        s_mov_b64 exec, 1
        buffer_store_dword v4, v3, s[{SWS}:{SWS+3}], s{sT0} offen sc1
        s_mov_b64 exec, -1""")
        a.label(lab)
    stamp(a, 11)
    if STAMPS:
        a("s_waitcnt vmcnt(0)")
        stamp(a, 12)
    stamp_flush(a, 14)
    a("s_endpgm")


if __name__ == "__main__":
    main(sys.argv[1] if len(sys.argv) > 1 else "cdna_kernels/" + NAME + ".s")
```

```python
import sys, math, struct, os

NAME = "parallel_sum__ssm_conv_s5__glu_gated_geglu__prompt"
KNAME = NAME + "_kernel"

E = lambda k, d: int(os.environ.get(k, str(d)))
STAMPS = E("STAMPS", 0)
SPIN_MAX = E("SPIN_MAX", 200000)
CODE_PREFETCH = E("CODE_PREFETCH", 1)
W2_PREFETCH = E("W2_PREFETCH", 1)
FILL = E("FILL", 7)
FILL0 = E("FILL0", 14)
SW_DELAY = E("SW_DELAY", 8)
NPRE = E("NPRE", 2)
P1DMA = E("P1DMA", 1)
SKIP_ST = E("SKIP_ST", 13)
OUTF = os.environ.get("OUTF", "sc0 sc1")
V17 = E("V17", 1)
DMA_RATE = E("DMA_RATE", 0)
PACE0 = E("PACE0", 2)
PACE1 = E("PACE1", 3)
PRIO = E("PRIO", 0)
W2_AT = E("W2_AT", 4)
W2_G0 = E("W2_G0", 8)
W2_P1 = E("W2_P1", 2)
W2_P2 = E("W2_P2", 9)
LOOK = E("LOOK", 3)
A_TOUCH = E("A_TOUCH", 0)
E2_ST = E("E2_ST", 3)
E1_ST = E("E1_ST", 6)
H_ST = E("H_ST", 2)
E1_PRE = E("E1_PRE", 4)
A_PACE = E("A_PACE", 1)
A_PACE2 = E("A_PACE2", 3)
X_NOMFMA = E("X_NOMFMA", 0)
X_NOREAD = E("X_NOREAD", 0)

NKS = 150
RT_STRIDE = NKS * 1024
WS_AGG = 0xA00000
WS_STAT = 0xA40000
WS_CS = 0xA80000
WS_FLG = 0xB00000
WS_EPOCH = 0xB10000
WS_DUMMY = 0xB20000
WS_DBG = 0xF00000
WS_SIZE = 0x10000000

LOG2E = 1.4426950408889634
SLOT = 32768
NSLOT = 4
SCR = NSLOT * SLOT
SCR_T = SCR
SCR_CS = 16384
SCR_ST = 17408
SCR_ES = 18432
SCR_RV = 20480
LDS_BYTES = 163840
NST2 = 19
NBS, NAS = 3, 5
B_BASE, A_BASE = 0, 49152


def f2u(x):
    return struct.unpack("<I", struct.pack("<f", x))[0]


class A:
    def __init__(self):
        self.l = []
        self.nlab = 0
        self.vm = []
        self.nvm = 0
        self.lg = []
        self.fillq = []

    def __call__(self, s):
        for line in s.strip("\n").split("\n"):
            line = line.strip()
            if not line:
                continue
            if X_NOMFMA and line.startswith("v_mfma"):
                continue
            self.l.append("  " + line)

    def label(self, name):
        self.l.append(name + ":")

    def newlab(self, p="L"):
        self.nlab += 1
        return f"{p}_{self.nlab}"

    def vmop(self, s, tag, maybe=False):
        self(s)
        if not maybe:
            self.vm.append(tag)
            self.nvm += 1

    def vmwait(self, tag):
        idx = [i for i, t in enumerate(self.vm) if t == tag]
        if not idx:
            return
        n = len(self.vm) - 1 - idx[-1]
        assert n <= 63, n
        self(f"s_waitcnt vmcnt({n})")
        self.vm = self.vm[idx[-1] + 1:]

    def vmwait_all(self):
        self("s_waitcnt vmcnt(0)")
        self.vm = []

    def ldsop(self, s, tag):
        if X_NOREAD and tag[0] in "xwr":
            return
        self(s)
        self.lg.append(tag)
        assert len(self.lg) <= 30

    def lgwait(self, tag):
        idx = [i for i, t in enumerate(self.lg) if t == tag]
        if not idx:
            return
        n = len(self.lg) - 1 - idx[-1]
        n = min(n, 15)
        self(f"s_waitcnt lgkmcnt({n})")
        self.lg = self.lg[len(self.lg) - n:] if n else []

    def lgwait_all(self):
        self("s_waitcnt lgkmcnt(0)")
        self.lg = []

    def fill(self, n):
        if E("X_NOFILL", 0):
            self.fillq = [at for at in self.fillq if at[0] in ("vm",) or (at[0] == "call" and False)]
        while n > 0 and self.fillq:
            at = self.fillq.pop(0)
            k = at[0]
            if k == "v":
                self(at[1]); n -= 1
            elif k == "lds":
                self.ldsop(at[1], at[2]); n -= 1
            elif k == "lgw":
                self.lgwait(at[1])
            elif k == "vm":
                self.vmop(at[1], at[2], at[3]); n -= 1
            elif k == "call":
                at[1]()
            elif k == "calln":
                at[1](); n -= at[2]

    def fill_all(self):
        self.fill(10 ** 9)

    def text(self):
        return "\n".join(self.l) + "\n"


class Q:
    def __init__(self):
        self.q = []

    def __call__(self, s):
        for line in s.strip("\n").split("\n"):
            line = line.strip()
            if line:
                self.q.append(("v", line))

    def ldsop(self, s, tag):
        self.q.append(("lds", s, tag))

    def lgwait(self, tag):
        self.q.append(("lgw", tag))

    def vmop(self, s, tag, maybe=False):
        self.q.append(("vm", s, tag, maybe))


def srd(a, s, ptr_lo, nbytes):
    a(f"""s_mov_b32 s{s}, s{ptr_lo}
    s_and_b32 s{s+1}, s{ptr_lo+1}, 0xffff
    s_mov_b32 s{s+2}, {nbytes}
    s_mov_b32 s{s+3}, 0x20000""")


def rne_bf16(a, v):
    a(f"v_cvt_pk_bf16_f32 v{v}, v{v}, v{v}\nv_lshlrev_b32 v{v}, 16, v{v}")


def wave_sum(a, v, tmp_s):
    for ctrl in ("row_shr:1", "row_shr:2", "row_shr:4", "row_shr:8"):
        a(f"s_nop 1\nv_add_f32_dpp v{v}, v{v}, v{v} {ctrl} row_mask:0xf bank_mask:0xf")
    a(f"s_nop 1\nv_add_f32_dpp v{v}, v{v}, v{v} row_bcast:15 row_mask:0xa bank_mask:0xf")
    a(f"s_nop 1\nv_add_f32_dpp v{v}, v{v}, v{v} row_bcast:31 row_mask:0xc bank_mask:0xf")
    a(f"s_nop 1\nv_readlane_b32 s{tmp_s}, v{v}, 63")


SX, SS, SM, SWS, SWD, SC, SO, ST = 4, 8, 12, 16, 20, 24, 28, 32
sW, sRG, sRB, sCG = 36, 37, 38, 39
sKC0, sU0B, sDUM, sTAG = 72, 73, 74, 75
sT0, sT1, sT2, sT3, sT4, sT5 = 76, 77, 78, 79, 80, 81
sMX, sMS, sMU, sM1 = 82, 83, 84, 85
sCSM = 86
sRB2, sCB, sRT, sCT = 87, 88, 89, 90
sSPIN = 91
sEX = 92
sMASK = 94
sAOFF, sLW, s3RG, s2RG = 96, 97, 98, 99
sXB, sHPOS = 100, 101
SM2 = 68
STAMP0 = 40
P_X, P_LRE, P_LIM, P_BRE, P_BIM, P_CRE, P_CIM, P_LDT = 40, 42, 44, 46, 48, 50, 52, 54
P_DSK, P_BX, P_WG, P_WU, P_WD, P_OUT, P_DBG, P_WS = 56, 58, 60, 62, 64, 66, 68, 70

vLANE = 1
vXA = 4
vWS = 8
vWM = 8
vW1 = 12
vDX0, vDX1, vDS, vDM = 13, 14, 15, 16
vDS1 = 47
vT = 17
ONES = 28
vAr, vAi, vKr, vKi, vA16r, vA16i, vA128r, vA128i = 32, 33, 34, 35, 36, 37, 38, 39
vRINV, vNM = 40, 41
vDA, vDB, vDC0, vDC1 = 42, 43, 44, 45
vK1, vCA = 46, 47
vFR = 48
vACC = 64
vACC2 = 96
vXF = 128
CSACC = 96
GATH0 = 112
CS1ACC = 128
GATH1 = 144
JUNK = 255


PSTAMP = E("PSTAMP", 0)


def pstamp(a, i):
    if PSTAMP:
        a(f"s_memrealtime s[{sEX}:{sEX+1}]\ns_waitcnt lgkmcnt(0)\nv_mov_b32 v{232+i}, s{sEX}")


DBGD = E("DBGD", -1)


P1DBG = E("P1DBG", 0)


def stamp(a, i, force=False):
    if STAMPS and P1DBG == 6:
        if i == 0:
            a(f"s_mov_b32 s{STAMP0+6}, s{sMASK}\ns_mov_b32 s{STAMP0+7}, s{sMASK+1}")
        return
    if STAMPS and P1DBG in (4, 5) and i >= 4:
        if i == 4 and False:
            pass
        return
    if STAMPS and P1DBG in (4, 5) and i == 1:
        a(f"s_memtime s[{STAMP0+2*4}:{STAMP0+2*4+1}]")
    if STAMPS and P1DBG == 3 and i in (1, 2, 4):
        j = {1: 9, 2: 13, 4: 6}[i]
        a(f"s_memtime s[{STAMP0+2*j}:{STAMP0+2*j+1}]")
    if STAMPS:
        if i == 3:
            return
        if P1DBG and i in (6, 9, 13) and not force:
            return
        a(f"s_memrealtime s[{STAMP0+2*i}:{STAMP0+2*i+1}]")
        if i == 0:
            a(f"s_mov_b32 s{STAMP0+6}, s{sMASK}\ns_mov_b32 s{STAMP0+7}, s{sMASK+1}")


def stamp_flush(a, n):
    if not STAMPS:
        return
    a("s_waitcnt lgkmcnt(0)")
    a(f"s_lshl_b32 s{sT0}, s2, 3\ns_add_u32 s{sT0}, s{sT0}, s{sW}\ns_lshl_b32 s{sT0}, s{sT0}, 6\ns_add_u32 s{sT0}, s{sT0}, {WS_DBG}")
    a("v_mov_b32 v3, 0")
    for i in range(n):
        a(f"v_mov_b32 v2, s{STAMP0+2*i}")
        a(f"buffer_store_dword v2, v3, s[{SWS}:{SWS+3}], s{sT0} offen offset:{4*i}")
    if DBGD >= 0:
        lab = a.newlab("DD")
        a(f"""s_cmp_eq_u32 s2, {DBGD}
        s_cbranch_scc0 {lab}
        s_cmp_eq_u32 s{sW}, {E("DBGW", 0)}
        s_cbranch_scc0 {lab}
        s_load_dwordx2 s[{sT2}:{sT3}], s[0:1], 112
        s_waitcnt lgkmcnt(0)
        s_mov_b32 s{ST}, s{sT2}
        s_and_b32 s{ST+1}, s{sT3}, 0xffff
        s_mov_b32 s{ST+2}, 256
        s_mov_b32 s{ST+3}, 0x20000
        v_mov_b32 v3, 0""")
        for i in range(n):
            a(f"v_mov_b32 v2, s{STAMP0+2*i}")
            a(f"buffer_store_dword v2, v3, s[{ST}:{ST+3}], 0 offen offset:{4*i}")
        a.label(lab)


def dma_p0(s, ch):
    slot = (s % NSLOT) * SLOT
    it = []
    if ch == 1:
        pre = f"""s_add_u32 s{sT0}, s{sKC0}, {s}
        s_and_b32 s{sT0}, s{sT0}, 7
        s_lshl_b32 s{sT3}, s{sT0}, 7
        s_add_u32 s{sT4}, s{sT3}, 16384
        """
        for i in range(4):
            vd = vDX0 if i % 2 == 0 else vDX1
            so = sT3 if i < 2 else sT4
            it.append(((pre if i == 0 else "") + f"""s_add_u32 m0, s{sLW}, {slot + i*1024}
            s_nop 0
            buffer_load_dwordx4 v{vd}, s[{SX}:{SX+3}], s{so} offen lds""", f"st{s}"))
    else:
        pre = f"""s_add_u32 s{sT0}, s{sKC0}, {s}
        s_and_b32 s{sT0}, s{sT0}, 7
        s_lshl_b32 s{sT3}, s{sT0}, 7
        s_mul_i32 s{sT2}, s{sT0}, {64*2752}
        s_add_u32 s{sT2}, s{sT2}, s{sU0B}
        """
        for i in range(2):
            vd = vDS if i == 0 else vDS1
            it.append(((pre if i == 0 else "") + f"""s_add_u32 m0, s{sMS}, {slot + i*1024}
            s_nop 0
            buffer_load_dwordx4 v{vd}, s[{SS}:{SS+3}], s{sT3} offen lds""", f"st{s}"))
        for mat in range(2):
            sr = SM if mat == 0 else SM2
            it.append((f"""s_add_u32 m0, s{sM1}, {slot + 24576 + mat*4096}
            s_nop 0
            buffer_load_dwordx4 v{vDM}, s[{sr}:{sr+3}], s{sT2} offen lds""", f"st{s}"))
    return it


def dma_p1(t, ch):
    g = 8 + t
    slot = (g % NSLOT) * SLOT
    it = []
    c2 = ch
    pre = f"""s_add_u32 s{sT0}, s{sKC0}, {2*t+c2}
    s_and_b32 s{sT0}, s{sT0}, 7
    s_mul_i32 s{sT2}, s{sT0}, {64*2752}
    s_add_u32 s{sT2}, s{sT2}, s{sU0B}
    s_add_u32 s{sT2}, s{sT2}, 64
    s_add_u32 s{sT3}, s{sT2}, s{sDUM}
    """
    for mat in range(2):
        sr = SM if mat == 0 else SM2
        for j in range(2):
            so = sT2 if j == 0 else sT3
            it.append(((pre if (mat == 0 and j == 0) else "") + f"""s_add_u32 m0, s{sM1}, {slot + c2*16384 + j*8192 + mat*4096}
            s_nop 0
            buffer_load_dwordx4 v{vDM}, s[{sr}:{sr+3}], s{so} offen lds""", f"st{g}"))
    return it


ORDER = [("M", i) for i in range(4)] + [("S", j) for j in range(8)] + [("M", i) for i in range(4, 11)]


NA = E("NA", 10)
vAR = 128
ARING = [128, 136, 144, 152, 160, 168, 64, 72, 80, 88]
vAG = 42


def p2_A(st):
    kind, ix = ORDER[st]
    ks0 = 8 * ix if kind == "M" else 86 + 8 * ix
    r = ARING[st % NA]
    it = []
    if (kind, ix) == ("M", 10):
        first = f"""s_mov_b32 s{sT1}, {ks0*1024}
        s_cmp_eq_u32 s{sRG}, 3
        s_cselect_b32 s{sT1}, {(ks0-2)*1024}, s{sT1}"""
    else:
        first = f"s_mov_b32 s{sT1}, {ks0*1024}"
    it.append((first + f"""
    buffer_load_dwordx4 v[{r}:{r+3}], v{vDA}, s[{SWS}:{SWS+3}], s{sT1} offen sc1""", f"A{st}"))
    it.append((f"""buffer_load_dwordx4 v[{r+4}:{r+7}], v{vDA}, s[{SWS}:{SWS+3}], s{sT1} offen offset:1024 sc1""", f"A{st}"))
    return it


def p2_B(st):
    slot = (st % 8) * 16384
    kind, ix = ORDER[st]
    it = []
    if kind == "M":
        if ix < 3:
            reg, c = s3RG, 3 * 4 * ix
        elif ix == 3:
            reg, c = s2RG, 2 * 12 + 11
        elif ix < 7:
            reg, c = s3RG, 3 * 4 * (ix - 4) + 1
        elif ix == 7:
            reg, c = s2RG, 2 * 12 + 11 + 1
        elif ix < 10:
            reg, c = s3RG, 3 * 4 * (ix - 8) + 2
        else:
            reg, c = sAOFF, 3 * 4 * (ix - 8) + 2
        for i in range(2):
            it.append((f"""s_add_u32 s{sT1}, s{reg}, {c*32768 + i*8192}
            s_add_u32 m0, s{sRT}, {slot + i*1024}
            s_nop 0
            buffer_load_dwordx4 v{vDB}, s[{SWD}:{SWD+3}], s{sT1} offen lds""", f"B{st}"))
    else:
        j = ix
        for i in range(2):
            vd = vDC0 if i % 2 == 0 else vDC1
            it.append((f"""s_add_u32 s{sT1}, s{sXB}, {j*128 + i*8192}
            s_add_u32 m0, s{sRT}, {slot + i*1024}
            s_nop 0
            buffer_load_dwordx4 v{vd}, s[{SC}:{SC+3}], s{sT1} offen lds""", f"B{st}"))
    return it


def main(out_path):
    a = A()
    gen(a)
    ref = open("cdna_kernels/" + NAME + ".s.ref").read()
    head = []
    for line in ref.splitlines():
        if line.startswith(";") and "@launch" not in line and "Override" not in line and "grid=ceil" not in line:
            head.append(line)
        elif not line.startswith(";"):
            break
    txt = "\n".join(head) + "\n"
    txt += f"; @launch grid=(256,1,1) block=(512,1,1) lds={LDS_BYTES}\n"
    txt += '.amdgcn_target "amdgcn-amd-amdhsa--gfx950"\n.text\n'
    txt += f".globl {KNAME}\n.p2align 8\n.type {KNAME},@function\n{KNAME}:\n"
    txt += a.text()
    txt += f""".section .rodata,"a"
.p2align 6
.amdhsa_kernel {KNAME}
  .amdhsa_next_free_vgpr 256
  .amdhsa_next_free_sgpr 102
  .amdhsa_accum_offset 256
  .amdhsa_group_segment_fixed_size 0
  .amdhsa_kernarg_size 128
  .amdhsa_user_sgpr_count 2
  .amdhsa_user_sgpr_kernarg_segment_ptr 1
  .amdhsa_system_sgpr_workgroup_id_x 1
.end_amdhsa_kernel
"""
    open(out_path, "w").write(txt)


def flag_load(a, ev, rb_s, vdst, tag):
    a(f"""s_lshl_b32 s{sT0}, s{rb_s}, 8
    s_add_u32 s{sT0}, s{sT0}, {WS_FLG + ev*64}
    v_and_b32 v{vdst}, 15, v{vLANE}
    v_lshlrev_b32 v{vdst}, 2, v{vdst}""")
    a.vmop(f"buffer_load_dword v{vdst}, v{vdst}, s[{SWS}:{SWS+3}], s{sT0} offen sc1", tag)


PRG = (252, 253, 254)


FLG_OFF = {0: 0, 1: 512, 2: 1024}


def flag_preload(a, ev, r):
    wide = (ev == 1)
    a(f"""s_lshr_b32 s{sT0}, s{sRB2}, 1
    s_lshl_b32 s{sT0}, s{sT0}, 11
    s_add_u32 s{sT0}, s{sT0}, {WS_FLG + FLG_OFF[ev]}
    v_lshlrev_b32 v{vT}, {3 if wide else 2}, v{vLANE}""")
    if wide:
        a.vmop(f"buffer_load_dwordx2 v[{r}:{r+1}], v{vT}, s[{SWS}:{SWS+3}], s{sT0} offen sc1", f"pre{ev}")
    else:
        a.vmop(f"buffer_load_dword v{r}, v{vT}, s[{SWS}:{SWS+3}], s{sT0} offen sc1", f"pre{ev}")


def poll_flags(a, ev, tracked=False, pre=None):
    lp, ok = a.newlab("PF"), a.newlab("PFOK")
    wide = (ev == 1)
    done = a.newlab("PFD")
    if pre is not None:
        a.vmwait(f"pre{ev}")
        a(f"""v_cmp_ne_u32 vcc, s{sTAG}, v{pre}
        s_mov_b64 s[{sMASK}:{sMASK+1}], vcc""")
        if wide:
            a(f"""v_cmp_ne_u32 vcc, s{sTAG}, v{pre+1}
            s_or_b64 s[{sMASK}:{sMASK+1}], s[{sMASK}:{sMASK+1}], vcc""")
        a(f"""s_cmp_eq_u64 s[{sMASK}:{sMASK+1}], 0
        s_cbranch_scc1 {done}""")
        vm_keep = list(a.vm)
    a(f"""s_lshr_b32 s{sT0}, s{sRB2}, 1
    s_lshl_b32 s{sT0}, s{sT0}, 11
    s_add_u32 s{sT0}, s{sT0}, {WS_FLG + FLG_OFF[ev]}
    v_lshlrev_b32 v{vT}, {3 if wide else 2}, v{vLANE}
    s_mov_b32 s{sSPIN}, 0""")
    regs = [(248, 249), (250, 251), (252, 253)]
    ld = (lambda r: f"buffer_load_dwordx2 v[{r[0]}:{r[1]}], v{vT}, s[{SWS}:{SWS+3}], s{sT0} offen sc1") if wide else \
         (lambda r: f"buffer_load_dword v{r[0]}, v{vT}, s[{SWS}:{SWS+3}], s{sT0} offen sc1")
    for r in regs:
        a(ld(r) + "\ns_sleep 2")
    a.label(lp)
    for r in regs:
        nx = a.newlab("PFN")
        a(f"""s_waitcnt vmcnt(2)
        v_cmp_ne_u32 vcc, s{sTAG}, v{r[0]}
        s_add_u32 s{sSPIN}, s{sSPIN}, 1""")
        if wide:
            a(f"""s_cbranch_vccnz {nx}
            v_cmp_ne_u32 vcc, s{sTAG}, v{r[1]}
            s_nop 0
            s_cbranch_vccz {ok}""")
            a.label(nx)
        else:
            a(f"s_cbranch_vccz {ok}")
        a(ld(r))
    a(f"""s_cmp_gt_u32 s{sSPIN}, {SPIN_MAX}
    s_cbranch_scc0 {lp}""")
    a.label(ok)
    if pre is not None:
        a("s_waitcnt vmcnt(0)")
        a.label(done)
        a.vm = vm_keep
    elif tracked:
        a.vm = ["poll", "poll"]
        a.nvm += 2


def touch_A(a, ev):
    k0, nl = {0: (0, 64), 1: (32, 108), 2: (86, 128)}[ev]
    per = nl // 4
    a(f"""s_lshr_b32 s{sT0}, s{sCB}, 2
    s_lshl_b32 s{sT1}, s{sRB2}, 1
    s_add_u32 s{sT0}, s{sT0}, s{sT1}
    s_mul_i32 s{sT0}, s{sT0}, {RT_STRIDE}
    s_and_b32 s{sT1}, s{sCB}, 3
    s_mul_i32 s{sT1}, s{sT1}, {nl*128}
    s_add_u32 s{sT0}, s{sT0}, s{sT1}
    s_mul_i32 s{sT1}, s{sRG}, {per*128}
    s_add_u32 s{sT0}, s{sT0}, s{sT1}
    s_add_u32 s{sT0}, s{sT0}, {k0*1024}
    v_lshlrev_b32 v{vT+1}, 7, v{vLANE}
    s_mov_b64 s[{sEX}:{sEX+1}], exec
    s_mov_b64 exec, {hex((1 << per) - 1)}""")
    a.vmop(f"buffer_load_dword v{JUNK}, v{vT+1}, s[{SWS}:{SWS+3}], s{sT0} offen sc1", "ta")
    a(f"s_mov_b64 exec, s[{sEX}:{sEX+1}]")


def write_flag(a, ev, ch):
    sh = 5 if ev == 1 else 4
    a(f"""s_lshl_b32 s{sT0}, s{sRB}, 11
    s_lshl_b32 s{sT1}, s{sCG}, {sh}
    s_add_u32 s{sT0}, s{sT0}, s{sT1}
    s_lshl_b32 s{sT1}, s{sW if ev == 1 else sRG}, 2
    s_add_u32 s{sT0}, s{sT0}, s{sT1}
    s_add_u32 s{sT0}, s{sT0}, {WS_FLG + FLG_OFF[ev]}
    v_mov_b32 v{vT+9}, 0
    v_mov_b32 v{vT+10}, s{sTAG}
    s_mov_b64 s[{sEX}:{sEX+1}], exec
    s_mov_b64 exec, 1""")
    a.vmop(f"buffer_store_dword v{vT+10}, v{vT+9}, s[{SWS}:{SWS+3}], s{sT0} offen sc1", "flag")
    a(f"s_mov_b64 exec, s[{sEX}:{sEX+1}]")


def only_rg(a, rg, fn):
    lab = a.newlab("RG")
    a(f"s_cmp_eq_u32 s{sRG}, {rg}\ns_cbranch_scc0 {lab}")
    lg = list(a.lg)
    fn()
    a.label(lab)
    a.lg = lg


def colsum_mfma(a, wf0, wf1, accreg, first=False):
    l1, l2 = a.newlab("CS"), a.newlab("CS")
    c = "0" if first else f"v[{accreg}:{accreg+15}]"
    a(f"""s_cmp_eq_u32 s{sCSM}, 0
    s_cbranch_scc1 {l2}
    s_cmp_eq_u32 s{sCSM}, 1
    s_cbranch_scc0 {l1}
    v_mfma_f32_32x32x16_bf16 v[{accreg}:{accreg+15}], v[{ONES}:{ONES+3}], v[{wf0}:{wf0+3}], {c}
    s_branch {l2}""")
    a.label(l1)
    a(f"v_mfma_f32_32x32x16_bf16 v[{accreg}:{accreg+15}], v[{ONES}:{ONES+3}], v[{wf1}:{wf1+3}], {c}")
    a.label(l2)


def colsum_store(a, accreg, unit, koff=0):
    a(f"""s_nop 7
    s_nop 7
    s_add_u32 s{sT1}, s{sKC0}, {koff}
    s_and_b32 s{sT1}, s{sT1}, 7
    s_lshl_b32 s{sT0}, s{sCG}, 3
    s_add_u32 s{sT0}, s{sT0}, s{sT1}
    s_lshl_b32 s{sT0}, s{sT0}, 11
    s_sub_u32 s{sT1}, s{sCSM}, 1
    s_lshl_b32 s{sT1}, s{sT1}, 8
    s_add_u32 s{sT0}, s{sT0}, s{sT1}
    s_add_u32 s{sT0}, s{sT0}, {WS_CS + unit*512}
    s_lshl_b32 s{sT1}, s2, 11
    s_add_u32 s{sT1}, s{sT1}, {WS_DUMMY}
    s_cmp_eq_u32 s{sCSM}, 0
    s_cselect_b32 s{sT0}, s{sT1}, s{sT0}
    v_mov_b32 v{accreg+1}, s{sTAG}
    v_lshlrev_b32 v{accreg+2}, 3, v{vLANE}
    s_mov_b64 s[{sEX}:{sEX+1}], exec
    s_mov_b64 exec, 0xffffffff""")
    a.vmop(f"buffer_store_dwordx2 v[{accreg}:{accreg+1}], v{accreg+2}, s[{SWS}:{SWS+3}], s{sT0} offen sc1", "cs")
    a(f"s_mov_b64 exec, s[{sEX}:{sEX+1}]")


def gather_loads(a, part, dst, atmp, tracked=False):
    l1, l2 = a.newlab("G"), a.newlab("G")
    a(f"""s_cmp_lt_u32 s{sRG}, 2
    s_cbranch_scc0 {l1}
    s_lshl_b32 s{sT0}, s{sCG}, 14
    s_add_u32 s{sT0}, s{sT0}, {WS_CS + part*1024}
    s_lshl_b32 s{sT1}, s{sRG}, 9
    s_add_u32 s{sT0}, s{sT0}, s{sT1}
    v_lshlrev_b32 v{atmp}, 3, v{vLANE}""")
    for j in range(8):
        so, io = (j * 2048 // 4096) * 4096, (j * 2048) % 4096
        a(f"s_add_u32 s{sT1}, s{sT0}, {so}")
        a(f"buffer_load_dwordx2 v[{dst+2*j}:{dst+2*j+1}], v{atmp}, s[{SWS}:{SWS+3}], s{sT1} offen offset:{io} sc1")
    a(f"s_branch {l2}")
    a.label(l1)
    nd = 8
    if part == 0:
        a(f"""s_lshl_b32 s{sT0}, s{sRB}, 11
        s_sub_u32 s{sT1}, s{sRG}, 2
        s_lshl_b32 s{sT1}, s{sT1}, 10
        s_add_u32 s{sT0}, s{sT0}, s{sT1}
        s_add_u32 s{sT0}, s{sT0}, {WS_STAT}
        v_lshlrev_b32 v{atmp}, 4, v{vLANE}
        buffer_load_dwordx4 v[{dst}:{dst+3}], v{atmp}, s[{SWS}:{SWS+3}], s{sT0} offen sc1""")
        nd = 7
    a(f"s_mov_b32 s{sT0}, 0x40000000")
    for j in range(nd):
        a(f"buffer_load_dword v{dst+8+j}, v{vLANE}, s[{SWS}:{SWS+3}], s{sT0} offen")
    a.label(l2)
    if tracked:
        a.vm += ["g"] * 8
        a.nvm += 8


def gather_finish(a, part, dst, nyounger, atmp):
    lr, l1, l2, lok, lok2, l0 = [a.newlab("GF") for _ in range(6)]
    a(f"s_mov_b32 s{sSPIN}, 0")
    a(f"s_waitcnt vmcnt({nyounger})")
    a(f"s_branch {l0}")
    a.label(lr)
    a("s_waitcnt vmcnt(0)")
    a.label(l0)
    a(f"""s_cmp_lt_u32 s{sRG}, 2
    s_cbranch_scc0 {l1}
    s_mov_b64 s[{sMASK}:{sMASK+1}], 0""")
    for j in range(8):
        a(f"""v_cmp_ne_u32 vcc, s{sTAG}, v{dst+2*j+1}
        s_or_b64 s[{sMASK}:{sMASK+1}], s[{sMASK}:{sMASK+1}], vcc""")
    a(f"""s_cmp_eq_u64 s[{sMASK}:{sMASK+1}], 0
    s_cbranch_scc1 {lok}
    s_add_u32 s{sSPIN}, s{sSPIN}, 1
    s_cmp_gt_u32 s{sSPIN}, {SPIN_MAX}
    s_cbranch_scc1 {lok}""")
    gather_loads(a, part, dst, atmp)
    a(f"s_branch {lr}")
    a.label(lok)
    a(f"""v_add_f32 v{dst}, v{dst}, v{dst+2}
    v_add_f32 v{dst+4}, v{dst+4}, v{dst+6}
    v_add_f32 v{dst+8}, v{dst+8}, v{dst+10}
    v_add_f32 v{dst+12}, v{dst+12}, v{dst+14}
    v_add_f32 v{dst}, v{dst}, v{dst+4}
    v_add_f32 v{dst+8}, v{dst+8}, v{dst+12}
    v_add_f32 v{dst}, v{dst}, v{dst+8}
    s_lshl_b32 s{sT0}, s{sRG}, 8
    s_add_u32 s{sT0}, s{sT0}, {SCR}
    v_lshlrev_b32 v{atmp}, 2, v{vLANE}
    v_add_u32 v{atmp}, s{sT0}, v{atmp}
    ds_write_b32 v{atmp}, v{dst} offset:{SCR_CS + part*512}
    s_branch {l2}""")
    a.label(l1)
    if part == 0:
        a(f"""v_cmp_ne_u32 vcc, s{sTAG}, v{dst+1}
        s_mov_b64 s[{sMASK}:{sMASK+1}], vcc
        v_cmp_ne_u32 vcc, s{sTAG}, v{dst+3}
        s_or_b64 s[{sMASK}:{sMASK+1}], s[{sMASK}:{sMASK+1}], vcc
        s_cmp_eq_u64 s[{sMASK}:{sMASK+1}], 0
        s_cbranch_scc1 {lok2}
        s_add_u32 s{sSPIN}, s{sSPIN}, 1
        s_cmp_gt_u32 s{sSPIN}, {SPIN_MAX}
        s_cbranch_scc1 {lok2}""")
        gather_loads(a, part, dst, atmp)
        a(f"s_branch {lr}")
        a.label(lok2)
        a(f"""v_rcp_f32 v{dst+2}, v{dst+2}
        v_sub_f32 v{dst+3}, 0, v{dst}
        s_sub_u32 s{sT0}, s{sRG}, 2
        s_lshl_b32 s{sT0}, s{sT0}, 9
        s_add_u32 s{sT0}, s{sT0}, {SCR}
        v_lshlrev_b32 v{atmp}, 3, v{vLANE}
        v_add_u32 v{atmp}, s{sT0}, v{atmp}
        ds_write_b64 v{atmp}, v[{dst+2}:{dst+3}] offset:{SCR_ST}
        v_lshrrev_b32 v{atmp}, 1, v{atmp}
        v_add_u32 v{atmp}, {SCR//2}, v{atmp}
        ds_write_b32 v{atmp}, v{dst+2} offset:{SCR_RV}""")
    a.label(l2)
    a.lgwait_all()


def row_stats_M(q, tmp):
    q(f"""v_and_b32 v{tmp}, 31, v{vLANE}
    v_bfe_u32 v{tmp+1}, v{tmp}, 2, 1
    v_lshlrev_b32 v{tmp+1}, 4, v{tmp+1}
    v_lshrrev_b32 v{tmp+2}, 3, v{tmp}
    v_lshl_add_u32 v{tmp+1}, v{tmp+2}, 2, v{tmp+1}
    v_and_b32 v{tmp+2}, 3, v{tmp}
    v_add_u32 v{tmp+1}, v{tmp+1}, v{tmp+2}
    v_lshlrev_b32 v{tmp+2}, 5, v{vRGV}
    v_add_u32 v{tmp+1}, v{tmp+2}, v{tmp+1}
    v_lshlrev_b32 v{tmp+1}, 3, v{tmp+1}
    v_add_u32 v{tmp+1}, {SCR}, v{tmp+1}""")
    q.ldsop(f"ds_read_b64 v[{vRINV}:{vRINV+1}], v{tmp+1} offset:{SCR_ST}", "rs")
    q.lgwait("rs")


vRGV = 2


def aug_mfma(q, acc, cs_off, R, T, sform=False):
    X, W = R, R + 4
    q(f"""v_and_b32 v{T}, 31, v{vLANE}
    v_lshlrev_b32 v{T}, 2, v{T}
    v_add_u32 v{T}, {SCR + SCR_CS + cs_off}, v{T}""")
    q.ldsop(f"ds_read_b32 v{T+1}, v{T} offset:0", "ac")
    q.ldsop(f"ds_read_b32 v{T+2}, v{T} offset:128", "ac")
    q(f"""v_cmp_gt_u32 vcc, 32, v{vLANE}
    v_mov_b32 v{X+2}, 0
    v_mov_b32 v{X+3}, 0
    v_cndmask_b32 v{X}, 0, v{vNM}, vcc
    v_mov_b32 v{W+2}, 0
    v_lshrrev_b32 v{X+1}, 16, v{X}
    v_mov_b32 v{W+3}, 0
    v_or_b32 v{X}, v{X}, v{X+1}""")
    q.lgwait("ac")
    for t in range(2):
        cs = T + 1 + t
        q(f"""v_cvt_pk_bf16_f32 v{T+3}, v{cs}, v{cs}
        v_lshlrev_b32 v{T+3}, 16, v{T+3}
        v_sub_f32 v{T+3}, v{cs}, v{T+3}
        v_cvt_pk_bf16_f32 v{W}, v{cs}, v{T+3}
        v_and_b32 v{W+1}, 0xffff0000, v{W}
        v_sub_f32 v{T+3}, v{T+3}, v{W+1}
        v_cvt_pk_bf16_f32 v{W+1}, v{T+3}, v{W+2}
        s_nop 1""")
        ac = acc + 16 * t
        if sform:
            q(f"v_mfma_f32_32x32x16_bf16 v[{ac}:{ac+15}], v[{X}:{X+3}], v[{W}:{W+3}], v[{ac}:{ac+15}]")
        else:
            q(f"v_mfma_f32_32x32x16_bf16 v[{ac}:{ac+15}], v[{W}:{W+3}], v[{X}:{X+3}], v[{ac}:{ac+15}]")
    q("s_nop 15\ns_nop 3")


def gelu_epi(q, acc, pos_s, cs_off, tagname, csr, T, maybe=False):
    K0 = -2.0 * math.sqrt(2.0 / math.pi) * LOG2E
    K1c = K0 * 0.044715
    q(f"v_mov_b32 v{vK1}, {f2u(K1c)}")
    aug_mfma(q, acc, cs_off, csr, T)
    for qq in range(4):
        rs = [4 * qq + i for i in range(4)]
        for i, r in enumerate(rs):
            q(f"v_mul_f32 v{acc+r}, v{acc+r}, v{vRINV}")
        for i, r in enumerate(rs):
            q(f"v_mul_f32 v{T+i}, v{acc+r}, v{acc+r}")
        for i, r in enumerate(rs):
            q(f"v_fmaak_f32 v{T+i}, v{vK1}, v{T+i}, {f2u(K0)}")
        for i, r in enumerate(rs):
            q(f"v_mul_f32 v{T+i}, v{T+i}, v{acc+r}")
        for i, r in enumerate(rs):
            q(f"v_exp_f32 v{T+i}, v{T+i}")
        for i, r in enumerate(rs):
            q(f"v_mul_f32 v{T+4+i}, v{acc+r}, v{acc+16+r}")
        for i, r in enumerate(rs):
            q(f"v_add_f32 v{T+i}, 1.0, v{T+i}")
        for i, r in enumerate(rs):
            q(f"v_rcp_f32 v{T+i}, v{T+i}")
        for i, r in enumerate(rs):
            q(f"v_mul_f32 v{T+4+i}, v{T+4+i}, v{vRINV}")
        for i, r in enumerate(rs):
            q(f"v_mul_f32 v{T+i}, v{T+i}, v{T+4+i}")
        q(f"v_cvt_pk_bf16_f32 v{acc+2*qq}, v{T}, v{T+1}\nv_cvt_pk_bf16_f32 v{acc+2*qq+1}, v{T+2}, v{T+3}")
    q(f"v_lshlrev_b32 v{T}, 4, v{vLANE}")
    q.vmop(f"buffer_store_dwordx4 v[{acc}:{acc+3}], v{T}, s[{SWS}:{SWS+3}], s{pos_s} offen sc1", tagname, maybe)
    q.vmop(f"buffer_store_dwordx4 v[{acc+4}:{acc+7}], v{T}, s[{SWS}:{SWS+3}], s{pos_s} offen offset:1024 sc1", tagname, maybe)


def s_params(q):
    vLre, vLim, vLdt = vT + 7, vT + 8, vT + 9
    t0, t1, t2, t3, t4, t5, t6 = [vT + i for i in range(7)]
    q(f"""v_lshlrev_b32 v{vLre}, 16, v{vA16r}
    v_lshlrev_b32 v{vLim}, 16, v{vA16i}
    v_lshlrev_b32 v{vLdt}, 16, v{vA128r}
    v_mul_f32 v{t0}, {f2u(LOG2E)}, v{vLdt}
    v_exp_f32 v{t0}, v{t0}
    s_nop 0""")
    rne_bf16(q, t0)
    q(f"""v_mul_f32 v{t1}, v{t0}, v{vLre}
    v_mul_f32 v{t2}, v{t0}, v{vLim}
    v_mul_f32 v{t1}, {f2u(LOG2E)}, v{t1}
    v_exp_f32 v{t1}, v{t1}
    v_mul_f32 v{t2}, {f2u(1.0/(2*math.pi))}, v{t2}
    v_rndne_f32 v{t3}, v{t2}
    v_sub_f32 v{t2}, v{t2}, v{t3}
    v_cos_f32 v{t3}, v{t2}
    v_sin_f32 v{t4}, v{t2}
    s_nop 0
    v_mul_f32 v{vAr}, v{t1}, v{t3}
    v_mul_f32 v{vAi}, v{t1}, v{t4}
    v_add_f32 v{t3}, -1.0, v{vAr}
    v_mul_f32 v{t4}, v{vLre}, v{vLre}
    v_fmac_f32 v{t4}, v{vLim}, v{vLim}
    v_rcp_f32 v{t4}, v{t4}
    v_mul_f32 v{t5}, v{t3}, v{vLre}
    v_fmac_f32 v{t5}, v{vAi}, v{vLim}
    v_mul_f32 v{t6}, v{vAi}, v{vLre}
    v_fma_f32 v{t6}, -v{t3}, v{vLim}, v{t6}
    v_add_f32 v{t4}, v{t4}, v{t4}
    v_mul_f32 v{vKr}, v{t5}, v{t4}
    v_mul_f32 v{vKi}, v{t6}, v{t4}
    v_mov_b32 v{vA16r}, v{vAr}
    v_mov_b32 v{vA16i}, v{vAi}""")

    def csq(r, i):
        q(f"""v_mul_f32 v{t0}, v{i}, v{i}
        v_mul_f32 v{t1}, v{r}, v{i}
        v_fma_f32 v{r}, v{r}, v{r}, -v{t0}
        v_add_f32 v{i}, v{t1}, v{t1}""")
    for _ in range(4):
        csq(vA16r, vA16i)
    q(f"v_mov_b32 v{vA128r}, v{vA16r}\nv_mov_b32 v{vA128i}, v{vA16i}")
    for _ in range(3):
        csq(vA128r, vA128i)


def s_epilogue1(q):
    zr = lambda j: vACC + j
    zi = lambda j: vACC + 16 + j
    T = vT
    row_stats_M(q, T)
    aug_mfma(q, vACC, 0, 4, T, sform=True)
    q(f"""v_and_b32 v{T}, 31, v{vLANE}
    v_lshrrev_b32 v{T+2}, 5, v{vLANE}
    v_lshlrev_b32 v{T+3}, 5, v{vRGV}
    v_lshl_add_u32 v{T+3}, v{T+2}, 4, v{T+3}
    v_lshlrev_b32 v{T+3}, 2, v{T+3}
    v_add_u32 v{T+3}, {SCR}, v{T+3}""")
    q.ldsop(f"ds_read_b128 v[4:7], v{T+3} offset:{SCR_RV}", "s0")
    q.ldsop(f"ds_read_b128 v[8:11], v{T+3} offset:{SCR_RV + 16}", "s1")
    for qq in range(4):
        base = 4 if qq % 2 == 0 else 8
        q.lgwait(f"s{qq}")
        for i in range(4):
            j = 4 * qq + i
            q(f"""v_mul_f32 v{zr(j)}, v{zr(j)}, v{base+i}
            v_mul_f32 v{zi(j)}, v{zi(j)}, v{base+i}""")
        if qq + 2 < 4:
            q.ldsop(f"ds_read_b128 v[{base}:{base+3}], v{T+3} offset:{SCR_RV + (qq+2)*16}", f"s{qq+2}")
    cur, alt = (T + 4, T + 5), (T + 7, T + 8)
    q(f"v_mov_b32 v{cur[0]}, v{zr(0)}\nv_mov_b32 v{cur[1]}, v{zi(0)}")
    for j in range(1, 16):
        sr, si = cur
        nr, ni = alt
        q(f"""v_fma_f32 v{nr}, v{vAr}, v{sr}, v{zr(j)}
        v_fma_f32 v{ni}, v{vAr}, v{si}, v{zi(j)}
        v_fma_f32 v{nr}, -v{vAi}, v{si}, v{nr}
        v_fma_f32 v{ni}, v{vAi}, v{sr}, v{ni}""")
        cur, alt = alt, cur
    assert cur == (T + 7, T + 8) and (T + 7) % 2 == 0
    q(f"""v_lshlrev_b32 v{T+1}, 1, v{vRGV}
    v_add_u32 v{T+1}, v{T+1}, v{T+2}
    v_lshlrev_b32 v{T+1}, 8, v{T+1}
    v_lshl_add_u32 v{T+1}, v{T}, 3, v{T+1}
    v_add_u32 v{T+1}, {SCR}, v{T+1}""")
    q.ldsop(f"ds_write_b64 v{T+1}, v[{T+7}:{T+8}] offset:{SCR_ES}", "ew")


def s_publish(a):
    T = vT
    a(f"""s_waitcnt lgkmcnt(0)
    v_and_b32 v{T}, 31, v{vLANE}
    v_lshlrev_b32 v{T+1}, 3, v{T}
    v_add_u32 v{T+1}, {SCR}, v{T+1}
    ds_read_b64 v[4:5], v{T+1} offset:{SCR_ES}
    ds_read_b64 v[6:7], v{T+1} offset:{SCR_ES+256}
    ds_read_b64 v[8:9], v{T+1} offset:{SCR_ES+512}
    ds_read_b64 v[10:11], v{T+1} offset:{SCR_ES+768}
    s_waitcnt lgkmcnt(0)""")

    def step(er, ei):
        a(f"""v_fma_f32 v{T+2}, v{vA16r}, v4, v{er}
        v_fma_f32 v{T+3}, v{vA16r}, v5, v{ei}
        v_fma_f32 v{T+2}, -v{vA16i}, v5, v{T+2}
        v_fma_f32 v5, v{vA16i}, v4, v{T+3}
        v_mov_b32 v4, v{T+2}""")
    step(6, 7); step(8, 9); step(10, 11)
    a(f"""ds_read_b64 v[6:7], v{T+1} offset:{SCR_ES+1024}
    ds_read_b64 v[8:9], v{T+1} offset:{SCR_ES+1280}
    ds_read_b64 v[10:11], v{T+1} offset:{SCR_ES+1536}
    ds_read_b64 v[{T+5}:{T+6}], v{T+1} offset:{SCR_ES+1792}
    s_waitcnt lgkmcnt(0)""")
    assert (T + 5) % 2 == 0
    step(6, 7); step(8, 9); step(10, 11); step(T + 5, T + 6)
    a(f"""v_mov_b32 v6, v5
    v_mov_b32 v5, s{sTAG}
    v_mov_b32 v7, s{sTAG}
    s_lshl_b32 s{sT0}, s{sCG}, 5
    v_add_u32 v{T}, s{sT0}, v{T}
    v_lshlrev_b32 v{T}, 4, v{T}
    s_lshl_b32 s{sT0}, s{sRB}, 13
    s_add_u32 s{sT0}, s{sT0}, {WS_AGG}
    v_cmp_gt_u32 vcc, 32, v{vLANE}
    s_and_saveexec_b64 s[{sEX}:{sEX+1}], vcc
    buffer_store_dwordx4 v[4:7], v{T}, s[{SWS}:{SWS+3}], s{sT0} offen sc1
    s_mov_b64 exec, s[{sEX}:{sEX+1}]""")
    a.vm.append("pub"); a.nvm += 1


LBG = 160
HG = 192


def lookback_loads(a, tracked=True):
    a(f"""v_and_b32 v{vT+9}, 31, v{vLANE}
    s_lshl_b32 s{sT0}, s{sCG}, 5
    v_add_u32 v{vT+9}, s{sT0}, v{vT+9}
    v_lshlrev_b32 v{vT+9}, 4, v{vT+9}           ; p*16
    v_lshrrev_b32 v3, 5, v{vLANE}
    s_sub_u32 s{sT0}, s{sRB}, 1
    v_sub_u32 v3, s{sT0}, v3                    ; rb-1-hf
    v_lshlrev_b32 v3, 13, v3
    v_add_u32 v3, v3, v{vT+9}
    s_mov_b32 s{sT0}, {WS_AGG}
    v_mov_b32 v{vT+10}, 0x7ff00000""")
    for i in range(8):
        a(f"""v_subrev_u32 v{vT+9}, {i*16384}, v3
        v_cmp_gt_i32 vcc, 0, v{vT+9}
        s_nop 1
        v_cndmask_b32 v{vT+9}, v{vT+9}, v{vT+10}, vcc""")
        code = f"buffer_load_dwordx4 v[{LBG+4*i}:{LBG+4*i+3}], v{vT+9}, s[{SWS}:{SWS+3}], s{sT0} offen sc1"
        if tracked:
            a.vmop(code, "lb")
        else:
            a(code)


def s_work_atoms(a, q):
    zr = lambda j: vACC + j
    zi = lambda j: vACC + 16 + j
    T = vT
    L = LBG
    G = LBG
    EB = 192
    q(f"""v_and_b32 v{T+8}, 31, v{vLANE}
    v_lshlrev_b32 v{T}, 3, v{T+8}
    v_add_u32 v{T}, {SCR}, v{T}""")
    for s in range(8):
        q.ldsop(f"ds_read_b64 v[{EB+2*s}:{EB+2*s+1}], v{T} offset:{SCR_ES + s*256}", "se")
    q(f"""v_mul_f32 v{T+5}, v{vA128i}, v{vA128i}
    v_mul_f32 v{T+6}, v{vA128r}, v{vA128i}
    v_fma_f32 v{T+5}, v{vA128r}, v{vA128r}, -v{T+5}
    v_add_f32 v{T+6}, v{T+6}, v{T+6}""")

    def check():
        lp, got = a.newlab("LB"), a.newlab("LBG")
        a(f"s_mov_b32 s{sSPIN}, 0")
        a.vmwait("lb")
        a.label(lp)
        a(f"""v_lshrrev_b32 v{T+1}, 5, v{vLANE}
        s_sub_u32 s{sT0}, s{sRB}, 1
        v_sub_u32 v{T+1}, s{sT0}, v{T+1}
        s_mov_b64 s[{sMASK}:{sMASK+1}], 0""")
        for i in range(8):
            a(f"""v_cmp_ne_u32 vcc, s{sTAG}, v{L+4*i+1}
            v_cmp_ne_u32 s[{sEX}:{sEX+1}], s{sTAG}, v{L+4*i+3}
            s_or_b64 s[{sEX}:{sEX+1}], s[{sEX}:{sEX+1}], vcc
            v_cmp_le_i32 vcc, {2*i}, v{T+1}
            s_and_b64 s[{sEX}:{sEX+1}], s[{sEX}:{sEX+1}], vcc
            s_or_b64 s[{sMASK}:{sMASK+1}], s[{sMASK}:{sMASK+1}], s[{sEX}:{sEX+1}]""")
        a(f"""s_cmp_eq_u64 s[{sMASK}:{sMASK+1}], 0
        s_cbranch_scc1 {got}
        s_add_u32 s{sSPIN}, s{sSPIN}, 1
        s_cmp_gt_u32 s{sSPIN}, {SPIN_MAX}
        s_cbranch_scc1 {got}""")
        lookback_loads(a, tracked=False)
        a(f"s_waitcnt vmcnt(0)\ns_branch {lp}")
        a.label(got)
    q.q.append(("call", check))
    cr, ci = T + 1, T + 2
    q(f"v_mov_b32 v{cr}, v{L+28}\nv_mov_b32 v{ci}, v{L+30}")
    for i in range(6, -1, -1):
        q(f"""v_fma_f32 v{T+3}, v{T+5}, v{cr}, v{L+4*i}
        v_fma_f32 v{T+4}, v{T+5}, v{ci}, v{L+4*i+2}
        v_fma_f32 v{T+3}, -v{T+6}, v{ci}, v{T+3}
        v_fma_f32 v{ci}, v{T+6}, v{cr}, v{T+4}
        v_mov_b32 v{cr}, v{T+3}""")
    q(f"""v_mov_b32 v{T+3}, v{cr}
    v_mov_b32 v{T+4}, v{ci}
    s_nop 1
    v_permlane32_swap_b32 v{cr}, v{T+3}
    v_permlane32_swap_b32 v{ci}, v{T+4}
    s_nop 1
    v_fma_f32 v{cr}, v{vA128r}, v{T+3}, v{cr}
    v_fma_f32 v{ci}, v{vA128r}, v{T+4}, v{ci}
    v_fma_f32 v{cr}, -v{vA128i}, v{T+4}, v{cr}
    v_fma_f32 v{ci}, v{vA128i}, v{T+3}, v{ci}
    v_lshrrev_b32 v{T+5}, 5, v{vLANE}
    v_lshl_add_u32 v{T+5}, v{vRGV}, 1, v{T+5}""")
    q.lgwait("se")
    for s in range(7):
        def seg(s=s):
            a(f"""v_fma_f32 v{T+3}, v{vA16r}, v{cr}, v{EB+2*s}
            v_fma_f32 v{T+4}, v{vA16r}, v{ci}, v{EB+2*s+1}
            v_cmp_lt_u32 vcc, {s}, v{T+5}
            v_fma_f32 v{T+3}, -v{vA16i}, v{ci}, v{T+3}
            v_fma_f32 v{T+4}, v{vA16i}, v{cr}, v{T+4}
            v_cndmask_b32 v{cr}, v{cr}, v{T+3}, vcc
            v_cndmask_b32 v{ci}, v{ci}, v{T+4}, vcc""")
        q.q.append(("calln", seg, 7))
    cur, alt = (cr, ci), (T + 3, T + 4)
    for j in range(16):
        sr, si = cur
        nr, ni = alt
        q(f"""v_fma_f32 v{nr}, v{vAr}, v{sr}, v{zr(j)}
        v_fma_f32 v{ni}, v{vAr}, v{si}, v{zi(j)}
        v_fma_f32 v{nr}, -v{vAi}, v{si}, v{nr}
        v_fma_f32 v{ni}, v{vAi}, v{sr}, v{ni}
        v_mul_f32 v{zr(j)}, v{vKr}, v{nr}
        v_mul_f32 v{zi(j)}, -v{vKr}, v{ni}
        v_fma_f32 v{zr(j)}, -v{vKi}, v{ni}, v{zr(j)}
        v_fma_f32 v{zi(j)}, -v{vKi}, v{nr}, v{zi(j)}""")
        cur, alt = alt, cur
    for j in range(0, 16, 2):
        q(f"v_cvt_pk_bf16_f32 v{G+j//2}, v{zr(j)}, v{zr(j+1)}")
        q(f"v_cvt_pk_bf16_f32 v{G+8+j//2}, v{zi(j)}, v{zi(j+1)}")
    q(f"""v_lshlrev_b32 v{T+6}, 12, v{vRGV}
    v_add_u32 v{T+6}, {SCR_T}, v{T+6}
    v_lshrrev_b32 v{T+5}, 5, v{vLANE}
    v_lshlrev_b32 v{T+5}, 3, v{T+5}
    v_lshl_add_u32 v{T+5}, v{T+8}, 6, v{T+5}
    v_add_u32 v{T+5}, v{T+6}, v{T+5}
    v_add_u32 v{T+6}, v{T+6}, v{vTRL}
    v_lshlrev_b32 v{T}, 4, v{vLANE}""")
    for part in range(2):
        for qq in range(4):
            r = G + 8 * part + 2 * qq
            q.ldsop(f"ds_write_b64 v{T+5}, v[{r}:{r+1}] offset:{part*2048 + qq*16}", "tw")
    q.lgwait("tw")
    R = G + 16
    for part in range(2):
        for s2 in range(2):
            r = R + 8 * part + 4 * s2
            o = part * 2048 + s2 * 1024
            q.ldsop(f"ds_read_b64_tr_b16 v[{r}:{r+1}], v{T+6} offset:{o}", "tr")
            q.ldsop(f"ds_read_b64_tr_b16 v[{r+2}:{r+3}], v{T+6} offset:{o+256}", "tr")
    q.lgwait("tr")
    for part in range(2):
        for s2 in range(2):
            r = R + 8 * part + 4 * s2
            q.vmop(f"buffer_store_dwordx4 v[{r}:{r+3}], v{T}, s[{SWS}:{SWS+3}], s{sMU} offen offset:{(2*part+s2)*1024} sc1", "h")


vTRL = 3


def gen(a):
    global vTRL
    vTRL = 0
    sIDX = sMX
    if STAMPS:
        a(f"s_memrealtime s[{sMASK}:{sMASK+1}]")
    a(f"""s_cmp_ge_u32 s2, 256
    s_cbranch_scc1 L_END
    s_load_dwordx16 s[40:55], s[0:1], 0
    s_load_dwordx16 s[56:71], s[0:1], 64
    v_and_b32 v{vLANE}, 63, v0
    v_lshrrev_b32 v2, 6, v0
    s_and_b32 s{sT0}, s2, 7            ; xcd
    v_readfirstlane_b32 s{sW}, v2
    s_lshr_b32 s{sIDX}, s2, 3          ; idx
    s_and_b32 s{sRB}, s{sT0}, 1
    s_lshl_b32 s{sRB}, s{sRB}, 3
    s_and_b32 s{sT2}, s{sIDX}, 7
    s_add_u32 s{sRB}, s{sRB}, s{sT2}   ; rb
    s_lshr_b32 s{sCG}, s{sT0}, 1
    s_lshl_b32 s{sCG}, s{sCG}, 2
    s_lshr_b32 s{sT2}, s{sIDX}, 3
    s_add_u32 s{sCG}, s{sCG}, s{sT2}   ; cg
    s_and_b32 s{sRG}, s{sW}, 3
    s_lshl_b32 s{sKC0}, s{sCG}, 1
    s_add_u32 s{sKC0}, s{sKC0}, s{sRB}
    s_and_b32 s{sKC0}, s{sKC0}, 7
    s_lshl_b32 s{sRB2}, s{sT0}, 2
    s_and_b32 s{sT2}, s{sIDX}, 3
    s_add_u32 s{sRB2}, s{sRB2}, s{sT2}
    s_lshr_b32 s{sCB}, s{sIDX}, 2
    s_mul_i32 s{sT2}, s{sCG}, 3
    s_lshl_b32 s{sT3}, s{sCG}, 1
    s_add_u32 s{sT3}, s{sT3}, 11
    s_cmp_lt_u32 s{sCG}, 11
    s_cselect_b32 s{sU0B}, s{sT2}, s{sT3}
    s_cselect_b32 s{sDUM}, 64, 0x40000000
    s_lshl_b32 s{sU0B}, s{sU0B}, 6
    s_lshl_b32 s{sLW}, s{sRG}, 12           ; w'*4096
    s_lshl_b32 s{sMS}, s{sRG}, 11
    s_add_u32 s{sMS}, s{sMS}, 16384         ; S pieces: 16384 + w'*2048
    s_lshl_b32 s{sM1}, s{sRG}, 10           ; kstep*1024
    v_lshrrev_b32 v2, 3, v{vLANE}           ; lane>>3
    v_and_b32 v3, 7, v{vLANE}
    v_lshrrev_b32 v{vT}, 4, v{vLANE}        ; lane>>4
    v_xor_b32 v{vT+1}, v3, v{vT}            ; (lane&7)^(lane>>4)
    s_lshl_b32 s{sT2}, s{sRB}, 7
    s_lshl_b32 s{sT3}, s{sRG}, 5
    s_add_u32 s{sT2}, s{sT2}, s{sT3}
    v_add_u32 v{vT+2}, s{sT2}, v2
    v_lshlrev_b32 v{vT+2}, 10, v{vT+2}
    v_lshl_add_u32 v{vDX0}, v{vT+1}, 4, v{vT+2}
    v_xor_b32 v{vDX1}, 64, v{vDX0}
    v_add_u32 v{vDX1}, 8192, v{vDX1}
    s_and_b32 s{sT4}, s{sRG}, 1
    s_lshl_b32 s{sT4}, s{sT4}, 4
    s_lshl_b32 s{sT3}, s{sCG}, 5
    s_add_u32 s{sT4}, s{sT4}, s{sT3}
    v_add_u32 v{vT+2}, s{sT4}, v2
    v_lshlrev_b32 v{vT+2}, 10, v{vT+2}
    v_lshl_add_u32 v{vDS}, v{vT+1}, 4, v{vT+2}
    v_xor_b32 v{vDS1}, 64, v{vDS}
    v_add_u32 v{vDS1}, 8192, v{vDS1}
    v_lshrrev_b32 v{vT+2}, 2, v{vLANE}
    s_lshl_b32 s{sT4}, s{sRG}, 4
    v_add_u32 v{vT+2}, s{sT4}, v{vT+2}
    v_mul_u32_u24 v{vT+2}, 2752, v{vT+2}
    v_and_b32 v{vT+4}, 3, v{vLANE}
    v_lshl_add_u32 v{vDM}, v{vT+4}, 4, v{vT+2}
    v_lshlrev_b32 v{vT+3}, 4, v{vLANE}
    s_and_b32 s{sT4}, s{sW}, 2
    s_waitcnt lgkmcnt(0)""")
    pstamp(a, 0)
    srd(a, SX, P_X, 2048 * 1024)
    a(f"""s_cmp_eq_u32 s{sT4}, 0
    s_cselect_b32 s{P_BRE}, s{P_BRE}, s{P_BIM}
    s_cselect_b32 s{P_BRE+1}, s{P_BRE+1}, s{P_BIM+1}
    s_cmp_lt_u32 s{sW}, 4
    s_cselect_b32 s{P_CRE}, s{P_CRE}, s{P_CIM}
    s_cselect_b32 s{P_CRE+1}, s{P_CRE+1}, s{P_CIM+1}""")
    lab0, lab1 = a.newlab("D0"), a.newlab("D1")
    a(f"s_cmp_lt_u32 s{sW}, 4\ns_cbranch_scc1 {lab0}")
    for s_ in range(NPRE):
        for code, tag in dma_p0(s_, 1):
            a(code)
    srd(a, SS, P_BRE, 512 * 1024)
    srd(a, SM, P_WG, 512 * 2752)
    a(f"s_branch {lab1}")
    a.label(lab0)
    srd(a, SS, P_BRE, 512 * 1024)
    srd(a, SM, P_WG, 512 * 2752)
    a(f"s_mov_b32 s{sT4}, s{P_WU}\ns_mov_b32 s{sT5}, s{P_WU+1}")
    srd(a, 32, sT4, 512 * 2752)
    for s_ in range(NPRE):
        for code, tag in dma_p0(s_, 0):
            a(code.replace(f"s[{SM2}:{SM2+3}]", "s[32:35]"))
        if s_ == 0:
            a(f"""s_lshl_b32 s{sT2}, s2, 3
            s_lshl_b32 s{sT3}, s{sRG}, 1
            s_add_u32 s{sT5}, s{sT2}, s{sT3}
            s_lshl_b32 s{sT5}, s{sT5}, 10
            buffer_load_dwordx4 v[{vACC}:{vACC+3}], v{vT+3}, s[{SX}:{SX+3}], s{sT5} offen
            buffer_load_dwordx4 v[{vACC+4}:{vACC+7}], v{vT+3}, s[{SX}:{SX+3}], s{sT5} offen offset:1024""")
    a.label(lab1)
    srd(a, SWS, P_WS, WS_SIZE)
    a(f"""s_add_u32 s{P_BIM}, s{P_WS}, {WS_EPOCH}
    s_addc_u32 s{P_BIM+1}, s{P_WS+1}, 0
    s_load_dword s{sTAG}, s[{P_BIM}:{P_BIM+1}], 0""")
    srd(a, SM2, P_WU, 512 * 2752)
    pstamp(a, 1)
    srd(a, SWD, P_WD, 1376 * 1024)
    srd(a, SC, P_CRE, 512 * 1024)
    a(f"""v_and_b32 v{vT+2}, 31, v{vLANE}
    s_lshl_b32 s{sT4}, s{sCG}, 5
    v_add_u32 v{vT+2}, s{sT4}, v{vT+2}
    v_lshlrev_b32 v{vT+2}, 1, v{vT+2}""")
    srd(a, ST, P_LRE, 1024)
    a.vmop(f"buffer_load_ushort v{vA16r}, v{vT+2}, s[{ST}:{ST+3}], 0 offen", "par")
    srd(a, ST, P_LIM, 1024)
    a.vmop(f"buffer_load_ushort v{vA16i}, v{vT+2}, s[{ST}:{ST+3}], 0 offen", "par")
    srd(a, ST, P_LDT, 1024)
    a.vmop(f"buffer_load_ushort v{vA128r}, v{vT+2}, s[{ST}:{ST+3}], 0 offen", "par")
    pstamp(a, 2)
    srd(a, SO, P_OUT, 2048 * 2048)
    srd(a, ST, P_DSK, 1024)
    if CODE_PREFETCH:
        lab = a.newlab("CP")
        a(f"""s_cmp_eq_u32 s{sW}, 3
        s_cbranch_scc0 {lab}
        s_getpc_b64 s[{sT2}:{sT3}]""")
        a.label("L_PC")
        a(f"""s_mul_i32 s{sT4}, s{sIDX}, {10*128}
        v_lshlrev_b32 v{vT+2}, 7, v{vLANE}
        v_add_u32 v{vT+2}, s{sT4}, v{vT+2}
        v_cmp_gt_u32 vcc, L_CODE_END-L_PC, v{vT+2}
        s_and_saveexec_b64 s[{sEX}:{sEX+1}], vcc
        v_cmp_gt_u32 vcc, 10, v{vLANE}
        s_and_b64 exec, exec, vcc
        s_cbranch_execz {lab}_R
        global_load_dword v{vK1}, v{vT+2}, s[{sT2}:{sT3}]""")
        a.label(lab + "_R")
        a(f"s_mov_b64 exec, s[{sEX}:{sEX+1}]")
        a.label(lab)
    a(f"""s_lshr_b32 s{sT3}, s{sW}, 1                ; w>>1
    s_and_b32 s{sT4}, s{sW}, 1
    s_lshl_b32 s{sT4}, s{sT4}, 14            ; (w&1)*16384
    s_mul_i32 s{s3RG}, s{sT3}, {3*32768}
    s_add_u32 s{s3RG}, s{s3RG}, s{sT4}
    s_lshl_b32 s{s2RG}, s{sT3}, 16
    s_add_u32 s{s2RG}, s{s2RG}, s{sT4}
    s_cmp_eq_u32 s{sT3}, 3
    s_cselect_b32 s{sAOFF}, 0x40000000, s{s3RG}
    s_lshl_b32 s{sXB}, s{sRG}, 14
    s_lshl_b32 s{sRT}, s{sW}, 11
    s_lshl_b32 s{sT2}, s{sRB}, 2
    s_add_u32 s{sT2}, s{sT2}, s{sRG}
    s_mul_i32 s{sHPOS}, s{sT2}, {RT_STRIDE}
    s_lshl_b32 s{sT4}, s{sRB2}, 1
    s_lshr_b32 s{sT3}, s{sW}, 2
    s_add_u32 s{sT4}, s{sT4}, s{sT3}
    s_mul_i32 s{sT4}, s{sT4}, {RT_STRIDE}
    s_lshl_b32 s{sT3}, s{sRG}, 11
    s_add_u32 s{sT4}, s{sT4}, s{sT3}
    v_lshlrev_b32 v{vDA}, 4, v{vLANE}
    v_add_u32 v{vDA}, s{sT4}, v{vDA}
    v_bfe_u32 v{vT+2}, v{vLANE}, 4, 1
    v_lshlrev_b32 v{vT+2}, 2, v{vT+2}
    v_xor_b32 v{vT+2}, v3, v{vT+2}
    v_lshlrev_b32 v{vT+4}, 10, v2
    v_lshl_add_u32 v{vT+2}, v{vT+2}, 4, v{vT+4}
    s_lshl_b32 s{sT4}, s{sCB}, 7
    v_add_u32 v{vDB}, s{sT4}, v{vT+2}
    s_lshl_b32 s{sT4}, s{sCB}, 6
    v_add_u32 v{vT+2}, s{sT4}, v2
    v_lshlrev_b32 v{vT+2}, 10, v{vT+2}
    v_lshl_add_u32 v{vDC0}, v{vT+1}, 4, v{vT+2}
    v_xor_b32 v{vDC1}, 64, v{vDC0}
    v_and_b32 v2, 31, v{vLANE}
    v_bfe_u32 v3, v2, 2, 1
    v_lshlrev_b32 v3, 4, v3
    v_lshrrev_b32 v{vT}, 3, v2
    v_lshl_add_u32 v3, v{vT}, 2, v3
    v_and_b32 v{vT+1}, 3, v2
    v_add_u32 v3, v3, v{vT+1}               ; tau
    v_bfe_u32 v{vT}, v3, 1, 3
    s_lshl_b32 s{sT4}, s{sRG}, 5
    v_add_u32 v3, s{sT4}, v3
    v_lshlrev_b32 v3, 7, v3
    v_lshrrev_b32 v{vT+1}, 5, v{vLANE}
    v_xor_b32 v{vT}, v{vT}, v{vT+1}
    v_lshl_add_u32 v{vXA}, v{vT}, 4, v3
    v_xor_b32 v{vXA+1}, 32, v{vXA}
    v_xor_b32 v{vXA+2}, 64, v{vXA}
    v_xor_b32 v{vXA+3}, 96, v{vXA}
    v_lshlrev_b32 v3, 3, v{vT+1}
    v_bfe_u32 v{vT}, v{vLANE}, 2, 2
    v_add_u32 v3, v3, v{vT}
    v_lshlrev_b32 v3, 6, v3
    v_bfe_u32 v{vT}, v{vLANE}, 4, 1
    v_lshl_add_u32 v3, v{vT}, 5, v3
    v_and_b32 v{vT}, 3, v{vLANE}
    v_lshl_add_u32 v{vTRL}, v{vT}, 3, v3
    s_lshr_b32 s{sT4}, s{sW}, 2
    s_lshl_b32 s{sT4}, s{sT4}, 13
    v_add_u32 v{vW1}, s{sT4}, v{vTRL}
    v_mov_b32 v{vRGV}, s{sRG}""")
    pstamp(a, 3)
    a(f"""s_cmp_ge_u32 s{sW}, 4
    s_cbranch_scc1 L_STREAM_B""")
    save = (list(a.vm), list(a.lg), a.nvm)
    stream(a, 0)
    a.vm, a.lg, a.nvm = list(save[0]), list(save[1]), save[2]
    a.label("L_STREAM_B")
    stream(a, 1)
    a.label("L_END")
    a("s_endpgm")
    a.label("L_CODE_END")


def w2_touch(a, which, junk=None):
    if not W2_PREFETCH:
        return
    sIDX = sMX
    j = junk or vDA
    a(f"v_lshlrev_b32 v3, 7, v{vLANE}")
    if which in (0, 1):
        a(f"""s_mul_i32 s{sT0}, s{sIDX}, 44032
        s_lshl_b32 s{sT1}, s{sRG}, 13
        s_add_u32 s{sT0}, s{sT0}, s{sT1}
        s_add_u32 s{sT0}, s{sT0}, {32768*which}""")
        a.vmop(f"buffer_load_dword v{j}, v3, s[{SWD}:{SWD+3}], s{sT0} offen", "pf")
    else:
        a(f"""s_lshl_b32 s{sT0}, s{sIDX}, 14
        s_and_b32 s{sT1}, s{sRG}, 1
        s_lshl_b32 s{sT1}, s{sT1}, 13
        s_add_u32 s{sT0}, s{sT0}, s{sT1}""")
        a.vmop(f"buffer_load_dword v{j}, v3, s[{SC}:{SC+3}], s{sT0} offen", "pf")


def w2_touch16(a, piece, junk):
    if not W2_PREFETCH:
        return
    sIDX = sMX
    a(f"v_lshlrev_b32 v3, 7, v{vLANE}")
    if piece < 6:
        a(f"""s_mul_i32 s{sT0}, s{sIDX}, 44032
        s_lshl_b32 s{sT1}, s{sRG}, 11
        s_add_u32 s{sT0}, s{sT0}, s{sT1}
        s_add_u32 s{sT0}, s{sT0}, {piece*8192}
        s_mov_b64 s[{sEX}:{sEX+1}], exec
        s_mov_b64 exec, 0xffff""")
        a.vmop(f"buffer_load_dword v{junk}, v3, s[{SWD}:{SWD+3}], s{sT0} offen", "pf")
    else:
        a(f"""s_lshl_b32 s{sT0}, s{sIDX}, 14
        s_lshl_b32 s{sT1}, s{sRG}, 11
        s_add_u32 s{sT0}, s{sT0}, s{sT1}
        s_add_u32 s{sT0}, s{sT0}, {(piece-6)*8192}
        s_mov_b64 s[{sEX}:{sEX+1}], exec
        s_mov_b64 exec, 0xffff""")
        a.vmop(f"buffer_load_dword v{junk}, v3, s[{SC}:{SC+3}], s{sT0} offen", "pf")
    a(f"s_mov_b64 exec, s[{sEX}:{sEX+1}]")


def ln_stats(a, src, row_s):
    U = vACC2
    for i in range(4):
        a(f"v_lshlrev_b32 v{U+2*i}, 16, v{src+i}\nv_and_b32 v{U+2*i+1}, 0xffff0000, v{src+i}")
    a(f"""v_add_f32 v{vT}, v{U}, v{U+1}
    v_add_f32 v{vT+1}, v{U+2}, v{U+3}
    v_add_f32 v{vT+2}, v{U+4}, v{U+5}
    v_add_f32 v{vT+4}, v{U+6}, v{U+7}
    v_add_f32 v{vT}, v{vT}, v{vT+1}
    v_add_f32 v{vT+2}, v{vT+2}, v{vT+4}
    v_add_f32 v{vT}, v{vT}, v{vT+2}""")
    wave_sum(a, vT, sT4)
    a(f"""s_nop 1
    v_mov_b32 v{vT+1}, s{sT4}
    v_mul_f32 v{vT+1}, {f2u(1.0/512)}, v{vT+1}
    v_mov_b32 v{vT}, 0""")
    for i in range(8):
        a(f"v_sub_f32 v{vT+2}, v{U+i}, v{vT+1}\nv_fmac_f32 v{vT}, v{vT+2}, v{vT+2}")
    wave_sum(a, vT, sT4)
    a(f"""s_nop 1
    v_mov_b32 v{vT+2}, s{sT4}
    v_mul_f32 v{vT+2}, {f2u(1.0/512)}, v{vT+2}""")
    rne_bf16(a, vT + 1)
    rne_bf16(a, vT + 2)
    a(f"v_add_f32 v{vT+2}, {f2u(1e-5)}, v{vT+2}")
    rne_bf16(a, vT + 2)
    a(f"v_sqrt_f32 v{vT+2}, v{vT+2}\ns_nop 0")
    rne_bf16(a, vT + 2)
    a(f"""v_mov_b32 v{U}, v{vT+1}
    v_mov_b32 v{U+1}, s{sTAG}
    v_mov_b32 v{U+2}, v{vT+2}
    v_mov_b32 v{U+3}, s{sTAG}
    s_lshl_b32 s{sT4}, s{row_s}, 4
    s_add_u32 s{sT4}, s{sT4}, {WS_STAT}
    v_mov_b32 v{vT}, 0
    s_mov_b64 s[{sEX}:{sEX+1}], exec
    s_mov_b64 exec, 1""")
    a.vmop(f"buffer_store_dwordx4 v[{U}:{U+3}], v{vT}, s[{SWS}:{SWS+3}], s{sT4} offen sc1", "stat")
    a(f"s_mov_b64 exec, s[{sEX}:{sEX+1}]")


def stream(a, ch):
    a(f"s_waitcnt lgkmcnt(0)\ns_add_u32 s{sTAG}, s{sTAG}, 1")
    if ch == 0:
        a.vm = ["st0"] * 4 + ["lnrow", "lnrow"] + [f"st{g}" for g in range(1, NPRE) for _ in range(4)] + ["par"] * 3
        a(f"""v_and_b32 v3, 31, v{vLANE}
        v_bfe_u32 v{vT}, v3, 1, 3
        v_lshrrev_b32 v{vT+1}, 5, v{vLANE}
        v_xor_b32 v{vT}, v{vT}, v{vT+1}
        v_lshlrev_b32 v3, 7, v3
        v_lshl_add_u32 v3, v{vT}, 4, v3
        v_add_u32 v{vWS}, 16384, v3
        v_xor_b32 v{vWS+1}, 32, v{vWS}
        v_xor_b32 v{vWS+2}, 64, v{vWS}
        v_xor_b32 v{vWS+3}, 96, v{vWS}""")
        waddr0 = [vWS + i for i in range(4)]
        a.vmwait("lnrow")
        pstamp(a, 4)
        a(f"""s_lshl_b32 s{sT2}, s2, 3
        s_lshl_b32 s{sT3}, s{sRG}, 1
        s_add_u32 s{sT5}, s{sT2}, s{sT3}""")
        ln_stats(a, vACC, sT5)
        a(f"s_add_u32 s{sT5}, s{sT5}, 1")
        ln_stats(a, vACC + 4, sT5)
    else:
        a.vm = [f"st{g}" for g in range(NPRE) for _ in range(4)] + ["par"] * 3
        a(f"v_add_u32 v{vWM}, 24576, v{vTRL}")
        waddr0 = [vWM]
    if W2_AT == 0 and ch == 0:
        for wch in (0, 2, 1):
            w2_touch(a, wch)
    stamp(a, 0)
    if PSTAMP:
        a(f"s_lshl_b32 s{sT0}, s2, 3\ns_add_u32 s{sT0}, s{sT0}, s{sW}\ns_lshl_b32 s{sT0}, s{sT0}, 6\ns_add_u32 s{sT0}, s{sT0}, {WS_DBG + 0x40000}")
        a("v_mov_b32 v3, 0")
        for i in range(5):
            a(f"buffer_store_dword v{232+i}, v3, s[{SWS}:{SWS+3}], s{sT0} offen offset:{4*i}")
        a.vm += ["x"] * 5
    a(f"""s_lshr_b32 s{sCSM}, s{sRB}, 3
    s_add_u32 s{sCSM}, s{sCSM}, 1
    s_cmp_eq_u32 s{sRG}, 0
    s_cselect_b32 s{sCSM}, s{sCSM}, 0""")
    for i in range(4):
        a(f"v_mov_b32 v{ONES+i}, 0x3f803f80")
    for i in range(64):
        a(f"v_mov_b32 v{vACC+i}, 0")
    xaddr = [vXA + i for i in range(4)]

    slots = []
    for g in range(8):
        for j in range(4):
            for t in range(2):
                slots.append((g, 0, j, t))
    for g in range(8, 12):
        for c2 in range(2):
            for j in range(4):
                for t in range(2):
                    slots.append((g, c2, j, t))
    NS = len(slots)
    first_of = {}
    last_of = {}
    for n, (g, c2, j, t) in enumerate(slots):
        first_of.setdefault(g, n)
        last_of[g] = n
    hi_state = {"x": 0, "w0": 0, "w1": 0}

    def set_hi(key, regs, g):
        hi = ((g % NSLOT) * SLOT) >> 16
        if hi_state[key] != hi:
            for r in regs:
                a(f"v_xor_b32 v{r}, 0x10000, v{r}")
            hi_state[key] = hi

    def frag_reg(n):
        return vFR + 4 * (n % 4)

    def issue_reads(n):
        g, c2, j, t = slots[n]
        lo = ((g % NSLOT) * SLOT) & 0xffff
        f = frag_reg(n)
        tag = f"w{n}"
        if g < 8:
            if j == 0 and t == 0:
                set_hi("x", xaddr, g)
                set_hi("w0", waddr0, g)
                for jj in range(4):
                    r = vXF + 4 * (4 * g + jj)
                    a.ldsop(f"ds_read_b128 v[{r}:{r+3}], v{vXA+jj} offset:{lo}", f"x{g}_{jj}")
            if ch == 0:
                a.ldsop(f"ds_read_b128 v[{f}:{f+3}], v{vWS+j} offset:{lo + t*4096}", tag)
            else:
                o = lo + t * 4096 + j * 1024
                a.ldsop(f"ds_read_b64_tr_b16 v[{f}:{f+1}], v{vWM} offset:{o}", tag)
                a.ldsop(f"ds_read_b64_tr_b16 v[{f+2}:{f+3}], v{vWM} offset:{o+256}", tag)
        else:
            if c2 == 0 and j == 0 and t == 0:
                set_hi("w1", [vW1], g)
            o = lo + c2 * 16384 + t * 4096 + j * 1024
            a.ldsop(f"ds_read_b64_tr_b16 v[{f}:{f+1}], v{vW1} offset:{o}", tag)
            a.ldsop(f"ds_read_b64_tr_b16 v[{f+2}:{f+3}], v{vW1} offset:{o+256}", tag)

    def mfma(n):
        g, c2, j, t = slots[n]
        f = frag_reg(n)
        if g < 8:
            xf = vXF + 4 * (4 * g + j)
            acc = vACC + 16 * t
            a.lgwait(f"x{g}_{j}")
        else:
            xf = vXF + 4 * (4 * (2 * (g - 8) + c2) + j)
            acc = vACC2 + 16 * t
        a.lgwait(f"w{n}")
        if ch == 0 and g < 8:
            a(f"v_mfma_f32_32x32x16_bf16 v[{acc}:{acc+15}], v[{xf}:{xf+3}], v[{f}:{f+3}], v[{acc}:{acc+15}]")
        else:
            a(f"v_mfma_f32_32x32x16_bf16 v[{acc}:{acc+15}], v[{f}:{f+3}], v[{xf}:{xf+3}], v[{acc}:{acc+15}]")

    def colsum_at(n):
        g, c2, j, t = slots[n]
        if (g == 0) or (g == 8 and c2 == 1):
            acc = CSACC if g == 0 else CS1ACC
            lab = a.newlab("CSK")
            f = frag_reg(n)
            c = "0" if j == 0 else f"v[{acc}:{acc+15}]"
            a(f"""s_cmp_eq_u32 s{sCSM}, {t+1}
            s_cbranch_scc0 {lab}
            v_mfma_f32_32x32x16_bf16 v[{acc}:{acc+15}], v[{ONES}:{ONES+3}], v[{f}:{f+3}], {c}""")
            a.label(lab)

    dmaq = []

    def stage_barrier(g):
        if ch == 0 and g == 7:
            gather_finish(a, 0, GATH0, a.nvm - marks["g0"], 3)
            for i in range(16):
                a(f"v_mov_b32 v{GATH0+i}, 0")
        if g == 10 and ch == 1:
            a.vmwait("u0")
            write_flag(a, 0, ch)
        a.vmwait(f"st{g+1}")
        a("s_barrier")
        if ch == 0 and g in (8, 9) and marks.get("edone") and not marks.get("published"):
            a.fill_all(); s_publish(a); a.lg = []
            marks["published"] = True
        nxt = g + 3
        if E("X_NODMA", 0):
            pass
        elif nxt < 8:
            dmaq.extend(dma_p0(nxt, ch))
        elif nxt < 12:
            if P1DMA == 0:
                dmaq.extend(dma_p1(nxt - 8, ch))
            elif ch == 1:
                dmaq.extend(dma_p1(nxt - 8, 0)); dmaq.extend(dma_p1(nxt - 8, 1))
        if g == 9:
            dmaq.extend(p2_B(0)); dmaq.extend(p2_B(1))
        if g == 10:
            dmaq.extend(p2_B(2)); dmaq.extend(p2_B(3))

    marks = {}
    if (PRIO == 2 and ch == 1) or (PRIO == 3 and ch == 0):
        a("s_setprio 1")
    a.vmwait("st0")
    a("s_barrier")
    stamp(a, 1)
    for s_ in range(NPRE, 3):
        dmaq.extend(dma_p0(s_, ch))
    for n in range(LOOK):
        issue_reads(n)
    for n in range(NS):
        g, c2, j, t = slots[n]
        mfma(n)
        colsum_at(n)
        nn = n + LOOK
        if nn < NS:
            if slots[nn][0] != slots[nn - 1][0]:
                stage_barrier(slots[nn - 1][0])
            issue_reads(nn)
        every = (PACE0 if g < 8 else PACE1)
        npop = 2 if len(dmaq) > 8 else (1 if (n % (every if len(dmaq) <= 4 else 1) == 0) else 0)
        for _ in range(DMA_RATE if DMA_RATE else npop):
            if dmaq:
                code, tag = dmaq.pop(0)
                a.vmop(code, tag)
        if g >= 8:
            a.fill(FILL0 if ch == 0 else FILL)
        elif g >= 3:
            a.fill(3)
        if W2_AT == 4 and g >= W2_G0 and (n - first_of[g]) in (W2_P1, W2_P2):
            k = 2 * (g - W2_G0) + (0 if (n - first_of[g]) == W2_P1 else 1)
            if ch == 1 and k < 8:
                w2_touch16(a, k, vDS)
            if ch == 0 and k in (1, 3):
                w2_touch16(a, 6 + (k // 2), vDX0)
        if n == last_of[g]:
            if P1DBG == 4 and g < 9:
                a(f"s_memtime s[{STAMP0+2*(5+g)}:{STAMP0+2*(5+g)+1}]")
            if P1DBG == 5 and g >= 7:
                a(f"s_memtime s[{STAMP0+2*(g-2)}:{STAMP0+2*(g-2)+1}]")
            if P1DBG == 1 and g in (8, 9, 10):
                stamp(a, {8: 9, 9: 13, 10: 6}[g], force=True)
            if P1DBG == 2 and g in (1, 3, 5):
                stamp(a, {1: 9, 3: 13, 5: 6}[g], force=True)
            if g == 0:
                colsum_store(a, CSACC, ch)
                a("s_nop 7")
                for i in range(16):
                    a(f"v_mov_b32 v{CSACC+i}, 0")
            if W2_AT == 1 and ch == 0 and g in (3, 4, 8):
                w2_touch(a, {3: 0, 4: 2, 8: 1}[g])
            if W2_AT == 3 and ch == 1 and W2_G0 <= g < W2_G0 + 8:
                w2_touch16(a, g - W2_G0, vDS)
            if W2_AT == 3 and ch == 0 and g in (W2_G0 + 1, W2_G0 + 3):
                w2_touch16(a, 6 + (g - W2_G0) // 2, vDX0)
            if W2_AT == 2 and ch == 1 and g == 9:
                for wch in (0, 2, 1):
                    w2_touch(a, wch, junk=vDS)
            if g == 2 and ch == 0:
                a.vmwait("par")
                q = Q()
                s_params(q)
                a.fillq = q.q
            if g == 5 and ch == 0:
                gather_loads(a, 0, GATH0, 3, tracked=True)
                marks["g0"] = a.nvm
            if g == 7:
                a.fill_all()
                stamp(a, 2)
                if PRIO == 1 and ch == 0:
                    a("s_setprio 1")
                q = Q()
                if ch == 1:
                    q(f"""s_lshl_b32 s{sT5}, s{sCG}, 11
                    s_add_u32 s{sT5}, s{sT5}, s{sHPOS}""")
                    row_stats_M(q, vT)
                    gelu_epi(q, vACC, sT5, 64 * 4, "u0", 4, vT)
                else:
                    s_epilogue1(q)
                    q.q.append(("call", lambda: marks.__setitem__("edone", True)))
                a.fillq = q.q
            if g == 8:
                colsum_store(a, CS1ACC, 2 + ch, koff=1)
            if g == 9:
                a.fill_all()
                stamp(a, 3)
            if g == 10 and ch == 0:
                lookback_loads(a)
                a(f"""s_lshl_b32 s{sT5}, s{sCG}, 12
                s_add_u32 s{sMU}, s{sHPOS}, s{sT5}
                s_add_u32 s{sMU}, s{sMU}, {86*1024}""")
            if g == 10 and ch == 0 and not marks.get("published"):
                s_publish(a); a.lg = []
            if g == 10 and ch == 1:
                gather_loads(a, 1, GATH1, 3, tracked=True)
                marks["g1"] = a.nvm
    stamp(a, 4)
    while dmaq:
        code, tag = dmaq.pop(0)
        a.vmop(code, tag)
    a.fill_all()
    if ch == 0:
        q = Q()
        s_work_atoms(a, q)
        a.fillq = q.q
        a.fill_all()
        stamp(a, 6)
    else:
        gather_finish(a, 1, GATH1, a.nvm - marks["g1"], 3)
        poll_flags(a, 0, tracked=True)
        for st in range(4):
            for code, tag in p2_A(st):
                a.vmop(code, tag)
    a("s_barrier")
    stamp(a, 5)
    if ch == 0:
        for st in range(4):
            for code, tag in p2_A(st):
                a.vmop(code, tag)
    if ch == 1:
        lab = a.newlab("U2S")
        stamp(a, 6)
        a(f"""s_cmp_ge_u32 s{sCG}, 11
        s_cbranch_scc1 {lab}
        s_lshl_b32 s{sT5}, s{sCG}, 11
        s_add_u32 s{sT5}, s{sT5}, s{sHPOS}
        s_add_u32 s{sT5}, s{sT5}, {64*1024}""")
        gelu_epi(a, vACC2, sT5, 192 * 4, "u12", 48, vT, maybe=True)
        a.label(lab)
        a.lg = []
        marks["u12"] = a.nvm
        for st in range(4, 8):
            for code, tag in p2_B(st):
                a.vmop(code, tag)
        a(f"s_waitcnt vmcnt({a.nvm - marks['u12']})")
        write_flag(a, 1, 1)
        stamp(a, 8)
    else:
        a(f"""s_lshl_b32 s{sT5}, s{sCG}, 11
        s_add_u32 s{sT5}, s{sT5}, s{sHPOS}
        s_add_u32 s{sT5}, s{sT5}, {32*1024}""")
        a(f"""s_lshl_b32 s{sT5}, s{sCG}, 11
        s_add_u32 s{sT5}, s{sT5}, s{sHPOS}
        s_add_u32 s{sT5}, s{sT5}, {32*1024}""")
        gelu_epi(a, vACC2, sT5, 128 * 4, "u12", 48, vT)
        for st in range(4, 8):
            for code, tag in p2_B(st):
                a.vmop(code, tag)
        a.vmwait("h")
        write_flag(a, 2, 0)
        stamp(a, 8)
    a.marks = marks
    phase2(a, ch)


def phase2(a, ch):
    rt = ch
    vB0, vB1, vC0, vC1, vXO, vSO, vDO = 4, 5, 6, 7, 9, 11, 12
    vDK = 8
    vBF = 176
    vAC = 208
    vEX = 104
    a(f"""v_lshrrev_b32 v{vT}, 5, v{vLANE}
    v_lshlrev_b32 v{vT}, 2, v{vT}
    v_bfe_u32 v3, v{vLANE}, 2, 2
    v_add_u32 v{vT}, v{vT}, v3
    v_lshlrev_b32 v{vT}, 7, v{vT}
    v_bfe_u32 v3, v{vLANE}, 3, 1
    v_lshl_add_u32 v{vT}, v3, 6, v{vT}
    v_bfe_u32 v3, v{vLANE}, 4, 1
    v_lshl_add_u32 v{vT}, v3, 5, v{vT}
    v_and_b32 v3, 3, v{vLANE}
    v_lshl_add_u32 v{vT}, v3, 3, v{vT}
    s_lshl_b32 s{sT0}, s{sRG}, 12
    v_add_u32 v{vB0}, s{sT0}, v{vT}
    v_xor_b32 v{vB1}, 64, v{vB0}
    v_and_b32 v{vT}, 31, v{vLANE}
    v_bfe_u32 v3, v{vT}, 1, 3
    v_lshrrev_b32 v{vT+1}, 5, v{vLANE}
    s_lshr_b32 s{sT0}, s{sRG}, 1
    s_lshl_b32 s{sT0}, s{sT0}, 2
    v_add_u32 v{vT+1}, s{sT0}, v{vT+1}
    v_xor_b32 v3, v3, v{vT+1}
    v_lshlrev_b32 v{vT}, 7, v{vT}
    v_lshl_add_u32 v{vT}, v3, 4, v{vT}
    s_and_b32 s{sT0}, s{sRG}, 1
    s_lshl_b32 s{sT0}, s{sT0}, 13
    v_add_u32 v{vC0}, s{sT0}, v{vT}
    v_xor_b32 v{vC1}, 32, v{vC0}
    v_lshrrev_b32 v{vT}, 5, v{vLANE}
    v_lshlrev_b32 v{vT}, 4, v{vT}
    s_lshl_b32 s{sT0}, s{sRB2}, 6
    s_lshl_b32 s{sT1}, s{sRG}, 2
    s_add_u32 s{sT0}, s{sT0}, s{sT1}
    s_add_u32 s{sT0}, s{sT0}, {32*rt}
    v_add_u32 v{vT}, s{sT0}, v{vT}
    v_lshlrev_b32 v{vSO}, 4, v{vT}
    v_lshlrev_b32 v{vT}, 9, v{vT}
    v_and_b32 v3, 31, v{vLANE}
    s_lshl_b32 s{sT0}, s{sCB}, 6
    v_add_u32 v3, s{sT0}, v3
    v_add_u32 v{vT}, v{vT}, v3
    v_lshlrev_b32 v{vXO}, 1, v{vT}
    v_lshlrev_b32 v{vDO}, 1, v3""")

    def epi_loads():
        a.vmop(f"buffer_load_ushort v{vDK}, v{vDO}, s[{ST}:{ST+3}], 0 offen", "epi")
        a.vmop(f"buffer_load_ushort v{vDK+2}, v{vDO}, s[{ST}:{ST+3}], 0 offen offset:64", "epi")
        for ct in range(2):
            for i in range(4):
                a.vmop(f"buffer_load_ushort v{vEX+4*ct+i}, v{vXO}, s[{SX}:{SX+3}], 0 offen offset:{i*1024 + ct*64}", "epi")
        a(f"s_mov_b32 s{sT0}, {WS_STAT}")
        for i in range(4):
            a.vmop(f"buffer_load_dword v{vEX+8+i}, v{vSO}, s[{SWS}:{SWS+3}], s{sT0} offen offset:{i*16} sc1", "epi")
            a.vmop(f"buffer_load_dword v{vEX+12+i}, v{vSO}, s[{SWS}:{SWS+3}], s{sT0} offen offset:{i*16+8} sc1", "epi")
    def skip_term():
        a.vmwait("epi")
        D0, D1 = vDK, vDK + 2
        X = vEX; M_ = vEX + 8; S_ = vEX + 12; Y = vEX + 16
        a(f"v_lshlrev_b32 v{D0}, 16, v{D0}\nv_lshlrev_b32 v{D1}, 16, v{D1}\nv_lshlrev_b32 v{vXO}, 1, v{vXO}")
        for i in range(4):
            a(f"v_rcp_f32 v{S_+i}, v{S_+i}")
        for k in range(8):
            a(f"v_lshlrev_b32 v{X+k}, 16, v{X+k}")
        for k in range(8):
            a(f"v_sub_f32 v{Y+k}, v{X+k}, v{M_+(k&3)}")

        def rnd():
            for k in range(0, 8, 2):
                a(f"v_cvt_pk_bf16_f32 v{vT+1}, v{Y+k}, v{Y+k+1}")
                a(f"v_lshlrev_b32 v{Y+k}, 16, v{vT+1}\nv_and_b32 v{Y+k+1}, 0xffff0000, v{vT+1}")
        rnd()
        for k in range(8):
            a(f"v_mul_f32 v{Y+k}, v{Y+k}, v{S_+(k&3)}")
        rnd()
        for k in range(8):
            a(f"v_mul_f32 v{Y+k}, v{Y+k}, v{D0 if k < 4 else D1}")
        rnd()
        for k in range(8):
            a(f"v_add_f32 v{Y+k}, v{Y+k}, v{X+k}")

    for i in range(32):
        a(f"v_mov_b32 v{vAC+i}, 0")
    hi2 = {"v": 0}

    def p2_reads(st, n):
        slot = (st % 8) * 16384
        hi, lo = slot >> 16, slot & 0xffff
        if n == 0 and hi != hi2["v"]:
            for r in (vB0, vB1, vC0, vC1):
                a(f"v_xor_b32 v{r}, 0x10000, v{r}")
            hi2["v"] = hi
        s_, ct = n >> 1, n & 1
        f = vBF + 16 * (st % 2) + 4 * n
        tag = f"r{st}_{n}"
        if ORDER[st][0] == "M":
            vb = vB0 if ct == 0 else vB1
            a.ldsop(f"ds_read_b64_tr_b16 v[{f}:{f+1}], v{vb} offset:{lo + s_*2048}", tag)
            a.ldsop(f"ds_read_b64_tr_b16 v[{f+2}:{f+3}], v{vb} offset:{lo + s_*2048 + 1024}", tag)
        else:
            a.ldsop(f"ds_read_b128 v[{f}:{f+3}], v{vC0+s_} offset:{lo + ct*4096}", tag)

    def p2_barrier(st):
        a.vmwait(f"B{st}")
        a("s_barrier")

    epi_loads()
    p2_barrier(0)
    stamp(a, 7)
    for n in range(4):
        p2_reads(0, n)
    dq = []
    a_next = 4
    allowed = 3
    for st in range(NST2):
        if P1DBG == 6 and st <= 13:
            a(f"s_memrealtime s[{STAMP0+2*st}:{STAMP0+2*st+1}]") if st != 3 else None
        if st == 4:
            stamp(a, 9)
        if st == 11:
            stamp(a, 13)
        if st + 1 < NST2:
            if ch == 0:
                if st + 1 == H_ST:
                    a.vmwait("u12")
                    write_flag(a, 1, 0)
                if st + 1 == E2_ST:
                    poll_flags(a, 2, tracked=True)
                if st + 1 == E1_PRE:
                    flag_preload(a, 1, 244)
                if st + 1 == E1_ST:
                    poll_flags(a, 1, tracked=True, pre=244)
            p2_barrier(st + 1)
            if st + 1 == E2_ST:
                allowed = 11
            if st + 1 == E1_ST:
                allowed = NST2 - 1
            nissue = 0
            lim = A_PACE if a_next >= 12 else A_PACE2
            while a_next <= min(allowed, st + NA - 1, NST2 - 1) and (nissue < lim or a_next <= st + 2):
                dq.extend(p2_A(a_next)); a_next += 1; nissue += 1
            if st >= 1 and st + 7 < NST2:
                dq.extend(p2_B(st + 7))
        g = sum(1 for x in dq if x[1] == f"A{st}")
        while any(x[1] == f"A{st}" for x in dq):
            code, tag = dq.pop(0); a.vmop(code, tag)
        a.vmwait(f"A{st}")
        per = (len(dq) + 3) // 4
        for n in range(4):
            s_, ct = n >> 1, n & 1
            f = vBF + 16 * (st % 2) + 4 * n
            ar = ARING[st % NA] + 4 * s_
            ac = vAC + 16 * ct
            a.lgwait(f"r{st}_{n}")
            a(f"v_mfma_f32_32x32x16_bf16 v[{ac}:{ac+15}], v[{ar}:{ar+3}], v[{f}:{f+3}], v[{ac}:{ac+15}]")
            if st + 1 < NST2:
                p2_reads(st + 1, n)
            for _ in range(per):
                if dq:
                    code, tag = dq.pop(0)
                    a.vmop(code, tag)
        if st == SKIP_ST:
            skip_term()
    stamp(a, 10)
    a(f"""s_nop 15
    s_barrier
    s_lshl_b32 s{sT0}, s{sRG}, 11
    v_lshlrev_b32 v{vT}, 4, v{vLANE}
    v_add_u32 v{vT+1}, s{sT0}, v{vT}
    v_add_u32 v{vT+1}, {rt*32768}, v{vT+1}""")
    for q in range(4):
        for ct in range(2):
            r = vAC + 16 * ct + 4 * q
            a(f"ds_write_b128 v{vT+1}, v[{r}:{r+3}] offset:{q*8192 + ct*1024}")
    a(f"""s_lshl_b32 s{sT0}, s{sRG}, 13
    v_add_u32 v{vT+1}, s{sT0}, v{vT}
    v_add_u32 v{vT+1}, {rt*32768}, v{vT+1}
    s_waitcnt lgkmcnt(0)
    s_barrier""")
    R = vAR
    Y = vEX + 16
    for src in range(4):
        for ct in range(2):
            r = R + 8 * src + 4 * ct
            a(f"ds_read_b128 v[{r}:{r+3}], v{vT+1} offset:{src*2048 + ct*1024}")
    a("s_waitcnt lgkmcnt(0)")
    for k in range(8):
        a(f"v_add_f32 v{R+k}, v{R+k}, v{R+8+k}")
        a(f"v_add_f32 v{R+16+k}, v{R+16+k}, v{R+24+k}")
    for k in range(8):
        a(f"v_add_f32 v{R+k}, v{R+k}, v{R+16+k}")
    for k in range(8):
        a(f"v_add_f32 v{R+k}, v{R+k}, v{Y+k}")
    for ct in range(2):
        for i in range(4):
            ro = i * 2048 + ct * 128
            so, io = (ro // 4096) * 4096, ro % 4096
            a(f"s_mov_b32 s{sT0}, {so}")
            a(f"buffer_store_dword v{R+4*ct+i}, v{vXO}, s[{SO}:{SO+3}], s{sT0} offen offset:{io} {OUTF}")
    if ch == 0:
        lab = a.newlab("EP")
        a(f"""s_cmp_eq_u32 s{sRB2}, 31
        s_cbranch_scc0 {lab}
        s_cmp_eq_u32 s{sCB}, 0
        s_cbranch_scc0 {lab}
        s_cmp_eq_u32 s{sW}, 0
        s_cbranch_scc0 {lab}
        v_mov_b32 v4, s{sTAG}
        v_mov_b32 v3, 0
        s_mov_b32 s{sT0}, {WS_EPOCH}
        s_mov_b64 exec, 1
        buffer_store_dword v4, v3, s[{SWS}:{SWS+3}], s{sT0} offen sc1
        s_mov_b64 exec, -1""")
        a.label(lab)
    stamp(a, 11)
    if STAMPS:
        a("s_waitcnt vmcnt(0)")
        stamp(a, 12)
    stamp_flush(a, 14)
    a("s_endpgm")


if __name__ == "__main__":
    main(sys.argv[1] if len(sys.argv) > 1 else "cdna_kernels/" + NAME + ".s")
```
